```python
import torch

def _softmax(x, axis=-1):
    return torch.softmax(x, dim=axis)

def _gelu(x):
    return torch.nn.functional.gelu(x, approximate='tanh')

def _silu(x):
    return torch.nn.functional.silu(x)

def _sigmoid(x):
    return torch.sigmoid(x)

def _layernorm(x, axis=-1, eps=1e-05):
    m = x.mean(dim=axis, keepdim=True)
    v = x.var(dim=axis, keepdim=True, unbiased=False)
    return (x - m) / torch.sqrt(v + eps)

def _scatter_add(tgt, idx, src, axis=0):
    return tgt.clone().index_add_(axis, idx, src)

def _segment_sum(src, seg, n):
    out = torch.zeros((n,) + src.shape[1:], dtype=src.dtype)
    return out.index_add_(0, seg, src)

def _pad(x, pw):
    flat = tuple((v for pair in reversed(pw) for v in pair))
    return torch.nn.functional.pad(x, flat)
kernel_name = 'parallel_sum__memory_aug_recurrent_mem_tr__dense_activation_squared_relu__prompt'

def setup_inputs():

    _w = lambda a: (lambda t: t.to(torch.bfloat16) if t.is_floating_point() else t)(torch.as_tensor(a))

    def _A_setup():
        B, S, Dm = (1, 2048, 512)
        H, Dh = (32, 128)
        M, seg = (8, 32)
        seg = min(seg, S)
        S = S // seg * seg
        return {'x': _w((lambda *s: torch.randn(*s, dtype=torch.bfloat16) * 0.05)(B, S, Dm)), 'mem0': _w((lambda *s: torch.randn(*s, dtype=torch.bfloat16) * 1.6)(B, M, Dm)), 'Wq': _w((lambda *s: torch.randn(*s, dtype=torch.bfloat16) * 0.8)(Dm, H, Dh) * Dm ** (-0.5)), 'Wk': _w((lambda *s: torch.randn(*s, dtype=torch.bfloat16) * 0.8)(Dm, H, Dh) * Dm ** (-0.5)), 'Wv': _w((lambda *s: torch.randn(*s, dtype=torch.bfloat16) * 1.6)(Dm, H, Dh) * Dm ** (-0.5)), 'Wo': _w((lambda *s: torch.randn(*s, dtype=torch.bfloat16) * 1.6)(H, Dh, Dm) * (H * Dh) ** (-0.5)), 'seg_len': seg}
    _A_in = _A_setup()

    def _B_setup():
        B, S, D, F = (1, 2048, 512, 1792)
        return {'x': _w((lambda *s: torch.randn(*s, dtype=torch.bfloat16) * 0.05)(B, S, D)), 'w1': _w((lambda *s: torch.randn(*s, dtype=torch.bfloat16) * 0.05)(D, F)), 'b1': _w((lambda *s: torch.randn(*s, dtype=torch.bfloat16) * 0.2)(F)), 'w2': _w((lambda *s: torch.randn(*s, dtype=torch.bfloat16) * 0.05)(F, D)), 'b2': _w((lambda *s: torch.randn(*s, dtype=torch.bfloat16) * 0.8)(D))}
    _B_in = _B_setup()
    return {'A_x': _A_in['x'], 'A_mem0': _A_in['mem0'], 'A_Wq': _A_in['Wq'], 'A_Wk': _A_in['Wk'], 'A_Wv': _A_in['Wv'], 'A_Wo': _A_in['Wo'], 'A_seg_len': _A_in['seg_len'], 'B_x': _B_in['x'], 'B_w1': _B_in['w1'], 'B_b1': _B_in['b1'], 'B_w2': _B_in['w2'], 'B_b2': _B_in['b2']}

def reference(A_x, A_mem0, A_Wq, A_Wk, A_Wv, A_Wo, A_seg_len, B_x, B_w1, B_b1, B_w2, B_b2):

    def _A_ref(x, mem0, Wq, Wk, Wv, Wo, seg_len):
        B, S, Dm = x.shape
        H, Dh = (Wq.shape[1], Wq.shape[2])
        M = mem0.shape[1]
        scale = Dh ** (-0.5)
        n_seg = S // seg_len
        L = M + seg_len
        idx = torch.arange(L)
        mask = (idx[:, None] < M) | (idx[:, None] >= idx[None, :])
        mem = mem0
        outs = []
        for s in range(n_seg):
            xs = x[:, s * seg_len:(s + 1) * seg_len, :].clone()
            h = torch.concatenate([mem, xs], axis=1)
            q = torch.einsum('btd,dhe->bhte', h, Wq)
            k = torch.einsum('btd,dhe->bhte', h, Wk)
            v = torch.einsum('btd,dhe->bhte', h, Wv)
            scores = torch.einsum('bhqe,bhke->bhqk', q, k) * scale
            scores = torch.where(mask[None, None], scores, -1000000000.0)
            p = _softmax(scores, axis=-1)
            o = torch.einsum('bhqk,bhke->bhqe', p, v)
            o = torch.einsum('bhte,hed->btd', o, Wo)
            mem = o[:, :M, :].clone()
            outs.append(o[:, M:, :])
        return torch.concatenate(outs, axis=1)

    def _B_ref(x, w1, b1, w2, b2):
        h = torch.einsum('bsd,df->bsf', x, w1) + b1
        zero = torch.zeros_like(h)
        r = torch.where(h > zero, h, zero)
        h = r * r
        out = torch.einsum('bsf,fd->bsd', h, w2) + b2
        return out
    x = A_x
    xn = _layernorm(x, axis=-1)
    return x + _A_ref(xn, A_mem0, A_Wq, A_Wk, A_Wv, A_Wo, A_seg_len) + _B_ref(xn, B_w1, B_b1, B_w2, B_b2)
```

```python
import re

class Asm:
    def __init__(self):
        self.lines = []
        self.dsq = []
        self.vmq = []
        self.uid = 0
    def __call__(self, s):
        for l in s.strip("\n").split("\n"):
            l = l.strip()
            if l: self.lines.append(l)
    def label(self, name): self.lines.append(name + ":")
    def newlabel(self, p="L"):
        self.uid += 1
        return f"{p}_{self.uid}"
    def ds(self, s, tag=None):
        if len(self.dsq) >= 15:
            self.wait_ds_n(13)
        self(s); self.dsq.append(tag)
    def wait_ds_n(self, n):
        if len(self.dsq) > n:
            self(f"s_waitcnt lgkmcnt({n})")
            self.dsq = self.dsq[len(self.dsq)-n:] if n else []
    def wait_ds(self, tag):
        idx = [i for i, t in enumerate(self.dsq) if t == tag]
        if not idx: return
        self.wait_ds_n(len(self.dsq) - 1 - idx[-1])
    def wait_ds_all(self, force=False):
        if self.dsq or force:
            self("s_waitcnt lgkmcnt(0)")
        self.dsq = []
    def vm(self, s, tag=None):
        self(s); self.vmq.append(tag)
    def wait_vm_n(self, n):
        if len(self.vmq) > n:
            assert n <= 63
            self(f"s_waitcnt vmcnt({n})")
            self.vmq = self.vmq[len(self.vmq)-n:] if n else []
    def wait_vm(self, tag):
        idx = [i for i, t in enumerate(self.vmq) if t == tag]
        if not idx: return
        self.wait_vm_n(len(self.vmq) - 1 - idx[-1])
    def wait_vm_all(self, force=False):
        if self.vmq or force:
            self("s_waitcnt vmcnt(0)")
        self.vmq = []
    def nop(self, n):
        while n > 0:
            k = min(n, 16); self(f"s_nop {k-1}"); n -= k
    def text(self): return "\n".join(self.lines) + "\n"

def vr(b, n=1, p="v"):
    return f"{p}{b}" if n == 1 else f"{p}[{b}:{b+n-1}]"
def ar(b, n=1): return vr(b, n, "a")
def sr(b, n=1): return vr(b, n, "s")

REG = re.compile(r"\b([vas])(?:\[(\d+):(\d+)\]|(\d+))(?![\w])")
def regs(tok):
    out = set()
    for m in REG.finditer(tok):
        p = m.group(1)
        if m.group(2) is not None:
            out |= {(p, i) for i in range(int(m.group(2)), int(m.group(3)) + 1)}
        else:
            out.add((p, int(m.group(4))))
    if re.search(r"\bvcc\b", tok): out |= {("s", "vcc")}
    if re.search(r"\bexec\b", tok): out |= {("s", "exec")}
    if re.search(r"\bm0\b", tok): out |= {("s", "m0")}
    return out
TRANS = ("v_exp_f32", "v_log_f32", "v_rcp_f32", "v_rsq_f32", "v_sqrt_f32", "v_sin_f32", "v_cos_f32")
def parse(line):
    line = line.split(";")[0].strip()
    if not line or line.endswith(":") or line.startswith("."): return None
    parts = line.split(None, 1)
    op = parts[0]; rest = parts[1] if len(parts) > 1 else ""
    ops = [o.strip() for o in re.split(r",(?![^\[]*\])", rest)] if rest else []
    d = dict(op=op, w=set(), r=set(), kind="other", line=line, passes=0, srcc=set(), ab=set(), sdata=set())
    R = [regs(o) for o in ops]
    allr = set().union(*R) if R else set()
    if op.startswith("v_mfma") or op.startswith("v_smfmac"):
        d["kind"] = "mfma"; d["passes"] = 8 if "32x32" in op else (2 if "4x4" in op else 4)
        d["w"] = R[0]; d["ab"] = R[1] | R[2]
        if op.startswith("v_smfmac"): d["srcc"] = R[0]; d["ab"] |= R[3]
        else: d["srcc"] = R[3]
        d["r"] = d["ab"] | d["srcc"]
    elif op.startswith("v_cmp"):
        d["kind"] = "valu"; d["w"] = R[0]; d["r"] = set().union(*R[1:])
        if op.startswith("v_cmpx"): d["w"] |= {("s", "exec")}
    elif op.startswith("v_permlane") and "swap" in op or op.startswith("v_swap"):
        d["kind"] = "valu"; d["w"] = allr; d["r"] = allr
    elif op.startswith("v_"):
        d["kind"] = "valu"; d["w"] = R[0]; d["r"] = set().union(*R[1:]) if len(R) > 1 else set()
        if op.startswith(("v_add_co", "v_addc_co", "v_sub_co", "v_subb_co", "v_div_scale")): d["w"] |= R[1]
        if op.startswith(("v_fmac", "v_pk_fmac", "v_dot2c", "v_writelane")) or "dpp" in line or "row_" in line or "quad_perm" in line or "dst_unused:UNUSED_PRESERVE" in line or op.endswith("_hi"): d["r"] |= R[0]
    elif op.startswith("ds_"):
        d["kind"] = "ds"
        if op.startswith(("ds_read", "ds_bpermute", "ds_permute", "ds_swizzle")) or "_rtn" in op:
            d["w"] = R[0]; d["r"] = set().union(*R[1:])
            if "d16" in op: d["r"] |= R[0]
        else: d["r"] = allr
    elif op.startswith(("buffer_", "global_")):
        d["kind"] = "vmem"
        if op in ("buffer_wbl2", "buffer_inv"): pass
        elif "load" in op and not re.search(r"\blds\b", line) and "load_lds" not in op:
            d["w"] = R[0]; d["r"] = set().union(*R[1:])
        elif "atomic" in op and re.search(r"\bsc0\b", line):
            d["w"] = R[0]; d["r"] = allr
        else:
            d["r"] = allr
            if re.search(r"\blds\b", line) or "load_lds" in op: d["r"] |= {("s", "m0")}; d["ldsdma"] = True
            if "store_dwordx4" in op or "store_dwordx3" in op:
                d["sdata"] = R[0] if op.startswith("buffer_") else R[1]
    elif op.startswith("s_"):
        d["kind"] = "salu"
        if op == "s_nop": d["nop"] = int(ops[0], 0) + 1
        elif op.startswith(("s_cmp", "s_cbranch", "s_branch", "s_waitcnt", "s_barrier", "s_endpgm", "s_sleep", "s_setprio", "s_bitcmp")):
            d["r"] = allr
            if "vcc" in op: d["r"] |= {("s", "vcc")}
        else:
            d["w"] = R[0] if R else set(); d["r"] = set().union(*R[1:]) if len(R) > 1 else set()
            if "saveexec" in op: d["w"] |= {("s", "exec")}
    return d

def check_seq(ins, report):
    n = len(ins)
    for i, p in enumerate(ins):
        dist = 0
        for j in range(i + 1, min(n, i + 24)):
            c = ins[j]
            need = 0
            isv = lambda s: {x for x in s if x[0] in "va"}
            iss = lambda s: {x for x in s if x[0] == "s"}
            if p["kind"] == "valu":
                wv, ws = isv(p["w"]), iss(p["w"])
                if c["kind"] == "mfma" and wv & c["r"]: need = max(need, 2)
                if c["kind"] == "mfma" and ("s", "exec") in ws: need = max(need, 4)
                if c["kind"] == "valu":
                    if c["op"].startswith("v_permlane") and wv & c["r"]: need = max(need, 2)
                    if ("dpp" in c["line"] or "row_" in c["line"] or "quad_perm" in c["line"]) and wv & c["r"]: need = max(need, 2)
                    if c["op"].startswith(("v_readlane", "v_readfirstlane")) and wv & c["r"]: need = max(need, 1)
                    if p["op"].startswith(TRANS) and not c["op"].startswith(TRANS) and wv & c["r"]: need = max(need, 1)
                    if ws & c["r"]: need = max(need, 4 if c["op"].startswith(("v_readlane", "v_writelane")) else 2)
                    if ("op_sel" in p["line"] and not p["op"].startswith("v_pk") or "sdwa" in p["line"] or "dst_sel" in p["line"]) and wv & (c["r"] | c["w"]): need = max(need, 1)
                if c["kind"] == "vmem" and ws & c["r"]: need = max(need, 5)
                if c["kind"] == "salu" and ws & c["r"] and not c["op"].startswith("s_cbranch"): need = max(need, 1)
            if p["kind"] == "mfma":
                P = p["passes"]; D = p["w"]
                if c["kind"] == "mfma":
                    if D & c["ab"]: need = max(need, {2: 5, 4: 8, 8: 12}[P])
                    if D & c["srcc"]:
                        if D == c["srcc"] and p["op"] == c["op"]: need = max(need, {2: 2, 4: 0, 8: 0}[P])
                        else: need = max(need, {2: 4, 4: 6, 8: 10}[P])
                    elif D & c["w"]: need = max(need, {2: 5, 4: 8, 8: 12}[P])
                elif c["kind"] in ("valu", "ds", "vmem"):
                    if D & (c["r"] | c["w"]): need = max(need, {2: 5, 4: 8, 8: 12}[P])
                    if c["kind"] == "valu" and p["srcc"] & c["w"]: need = max(need, {2: 1, 4: 3, 8: 7}[P])
            if p["kind"] == "vmem" and p["sdata"]:
                if c["kind"] == "valu" and p["sdata"] & c["w"]: need = max(need, 2)
                elif c["kind"] in ("mfma", "ds", "vmem") and p["sdata"] & c["w"]: need = max(need, 1)
            if p["kind"] == "salu" and ("s", "m0") in p["w"] and c.get("ldsdma"): need = max(need, 1)
            if need > dist:
                report.append(f"HAZARD need {need} have {dist}:\n    {p['line']}\n    {c['line']}")
            dist += c.get("nop", 1)
            if dist >= 20: break

def check(text):
    raw = [l.split(";")[0].strip() for l in text.split("\n")]
    raw = [l for l in raw if l]
    labels = {}
    ins = []
    for l in raw:
        if l.endswith(":"): labels[l[:-1]] = len(ins); continue
        d = parse(l)
        if d: ins.append(d)
    rep = []
    seg = []
    for d in ins:
        seg.append(d)
        if d["op"] in ("s_branch", "s_endpgm", "s_setpc_b64"):
            check_seq(seg, rep); seg = []
    check_seq(seg, rep)
    NOSCC = ("s_mov", "s_nop", "s_waitcnt", "s_barrier", "s_cbranch", "s_cselect", "s_memtime", "s_memrealtime", "s_load", "s_mul_i32", "s_getreg", "s_setprio", "s_sleep", "s_movk")
    for i, d in enumerate(ins):
        if d["op"].startswith(("s_cbranch_scc", "s_cselect")):
            k = i - 1
            while k >= 0 and (ins[k]["kind"] != "salu" or ins[k]["op"].startswith(NOSCC)): k -= 1
            if not ins[k]["op"].startswith(("s_cmp", "s_bitcmp")) and "sccok" not in d["line"]:
                rep.append(f"SCC: {d['line']} fed by {ins[k]['line']}")
    for i, d in enumerate(ins):
        if d["op"].startswith(("s_branch", "s_cbranch")):
            tgt = d["line"].split()[-1]
            if tgt not in labels: rep.append("unknown label " + tgt); continue
            pre = []
            k = i
            while k >= 0 and len(pre) < 24:
                if k < i and ins[k]["op"] in ("s_branch", "s_endpgm"): break
                pre.insert(0, ins[k]); k -= 1
            post = []
            k = labels[tgt]
            while k < len(ins) and len(post) < 24:
                post.append(ins[k])
                if ins[k]["op"] in ("s_branch", "s_endpgm"): break
                k += 1
            check_seq(pre + post, rep)
    return sorted(set(rep))
```

```python
from asm import *
from layout import *
import math

MISC = 131072
M_OFF = 0
X_OFF = 8192
KX_OFF = 12544
O_OFF = 20736
XS = 1088
sWS = 8
sTMP = 12
sH, sW, sStep = 16, 17, 18
sPst, sPld, sTag, sMpub, sMpoll, sMclr = 19, 20, 21, 22, 23, 24
sVx, sKx, sKm, sVm = 25, 26, 27, 28
sC = 30
sT0, sT1, sT2, sT3 = 32, 33, 34, 35
sCnt = 36
sLO8 = 38
sDBG = 40
sTS = 44
vIDX, vPld, vM16, vRing, vPst, vMpub, vXw, vXr, vOr = 1, 2, 3, 4, 5, 6, 7, 8, 9
vL8 = 0
vNEG = 10
vVA0 = 12
RA_OFF = 28928
vVX = 16
vPM = 24
vACC = 28
vA = 44
vRING = 76
vT = 124
vWK = 128
NRING = 6
WQ_SLOT = [2, 3, 1, 0]
def ringreg(i): return vRING + 8 * (i % NRING)
KXREG = [vRING + 8*4, vRING + 8*5, vRING + 0, vRING + 8]
def kx(kt, s): return KXREG[kt*2 + (s >> 1)] + 4 * (s & 1)
vXF = vRING + 16
def wv(t, s): return 8 * (t * 8 + s)
def wo(d, s): return 128 + 8 * (d * 4 + s)
def wk(t, s): return vWK + 8 * (t * 8 + s)

def wq_lds_imm(i):
    t, s = i >> 3, i & 7
    return WQ_SLOT[s >> 1] * 8192 + ((s & 1) * 2 + t) * 2048

def stamp(a, k, diag):
    if diag: a(f"s_memtime s[{sTS+2*k}:{sTS+2*k+1}]")

def prologue(a, P, diag=False):
    a(f"""
    v_lshrrev_b32 v10, 6, v0
    v_and_b32 v0, 63, v0
    v_readfirstlane_b32 s{sW}, v10
    v_and_b32 v100, 15, v0            ; n
    v_lshrrev_b32 v101, 4, v0         ; g
    v_and_b32 v102, 3, v0             ; c
    v_bfe_u32 v103, v0, 2, 2          ; r''
    """)
    a(f"""
    v_and_b32 v10, 2, v0
    v_cmp_eq_u32 vcc, 0, v10
    v_mov_b32 v11, 0xeeee
    v_mov_b32 v104, 0x4444
    v_cndmask_b32 v{vIDX}, v11, v104, vcc
    v_lshlrev_b32 v10, 4, v0
    v_add_u32 v{vM16}, {MISC}, v10
    s_lshl_b32 s{sT0}, s{sW}, 15
    v_add_u32 v{vRing}, s{sT0}, v10
    v_and_b32 v11, 0x3d, v0
    v_lshlrev_b32 v11, 4, v11
    v_add_u32 v{vOr}, {MISC+O_OFF}, v11
    v_lshlrev_b32 v10, 13, v101
    v_lshl_add_u32 v10, v102, 4, v10
    v_lshl_add_u32 v{vPst}, v103, {11 if P["pc"] else 6}, v10
    v_lshlrev_b32 v10, 4, v102
    v_bfe_u32 v11, v0, 2, 1
    v_lshl_add_u32 v10, v11, 3, v10
    v_lshrrev_b32 v11, 1, v101
    v_lshl_add_u32 v{vMpub}, v11, 2, v10
    v_lshrrev_b32 v10, 2, v0
    v_lshlrev_b32 v10, {6 if P["pc"] else 8}, v10
    v_lshl_add_u32 v{vPld}, v102, 4, v10
    v_mul_u32_u24 v10, {XS}, v101
    v_lshl_add_u32 v10, v100, 3, v10
    s_lshl_b32 s{sT0}, s{sW}, 8
    s_add_u32 s{sT0}, s{sT0}, {MISC+X_OFF}
    v_add_u32 v{vXw}, s{sT0}, v10
    v_mul_u32_u24 v10, {XS}, v102
    v_lshrrev_b32 v11, 2, v0
    v_lshl_add_u32 v10, v11, 3, v10
    v_add_u32 v{vXr}, {MISC+X_OFF}, v10
    v_bfe_u32 v10, v100, 1, 2
    v_and_b32 v11, 1, v100
    v_lshlrev_b32 v11, 4, v11
    v_mov_b32 v104, 0x3f80
    v_lshlrev_b32 v104, v11, v104
    """)
    for k in range(4):
        a(f"v_cmp_eq_u32 vcc, {k}, v10\ns_nop 1\nv_cndmask_b32 v{112+k}, 0, v104, vcc")
    a(f"s_mov_b32 s{sLO8}, 0xff\ns_mov_b32 s{sLO8+1}, 0xff")
    c = (128 ** -0.5) * math.log2(math.e)
    import struct
    cb = struct.unpack("<I", struct.pack("<f", c))[0]
    a(f"s_mov_b32 s{sC}, {cb:#x}\ns_mov_b32 s{sC+1}, {cb:#x}")
    a(f"""
    v_and_b32 v10, 1, v101
    v_lshlrev_b32 v10, 5, v10          ; 32*(g&1)
    v_lshrrev_b32 v11, 1, v101
    v_lshl_add_u32 v10, v11, 2, v10    ; +4*(g>>1)
    v_lshrrev_b32 v11, 1, v103
    v_lshl_add_u32 v10, v11, 4, v10    ; +16*(r>>1)
    v_and_b32 v11, 1, v103
    v_add_u32 v10, v10, v11            ; +(r&1)
    v_lshlrev_b32 v10, 6, v10
    v_lshl_add_u32 v10, v102, 3, v10   ; row*64 + c*8
    s_lshl_b32 s{sT0}, s{sW}, 15
    s_lshl_b32 s{sT1}, s{sW}, 13
    s_add_u32 s{sT1}, s{sT1}, {MISC}
    v_add_u32 v105, s{sT0}, v10
    v_add_u32 v106, s{sT1}, v10
    v_and_b32 v10, 1, v101
    v_lshlrev_b32 v10, 4, v10          ; 16*(g&1)
    v_lshrrev_b32 v11, 1, v101
    v_lshl_add_u32 v10, v11, 2, v10    ; +4*(g>>1)
    v_and_b32 v11, 1, v103
    v_add_u32 v10, v10, v11            ; +(r&1)
    v_lshlrev_b32 v10, 8, v10          ; *256
    v_lshrrev_b32 v11, 1, v103
    v_lshl_add_u32 v10, v11, 5, v10    ; +16*(r>>1)*2
    v_lshl_add_u32 v10, v102, 3, v10   ; +4*c*2
    v_add_u32 v107, s{sT0}, v10
    v_add_u32 v108, s{sT1}, v10
    v_lshrrev_b32 v10, 2, v0
    v_lshlrev_b32 v10, 13, v10
    v_lshl_add_u32 v10, v102, 4, v10
    s_lshl_b32 s{sT2}, s{sH}, 8
    s_lshl_b32 s{sT3}, s{sW}, 6
    s_add_u32 s{sT2}, s{sT2}, s{sT3}
    v_add_u32 v109, s{sT2}, v10
    ; wo: (l>>4)*1024 + (l&15)*16 + w*256 + h*131072
    v_lshlrev_b32 v10, 10, v101
    v_lshl_add_u32 v10, v100, 4, v10
    s_lshl_b32 s{sT2}, s{sH}, 17
    s_lshl_b32 s{sT3}, s{sW}, 8
    s_add_u32 s{sT2}, s{sT2}, s{sT3}
    v_add_u32 v110, s{sT2}, v10
    """)
    a(f"""
    s_load_dwordx4 s[48:51], s[0:1], {KA['Wq']}
    s_load_dwordx4 s[52:55], s[0:1], {KA['Wv']}
    s_load_dwordx2 s[56:57], s[0:1], {KA['mem0']}
    s_waitcnt lgkmcnt(0)
    """)
    srd = {"q": 60, "k": 64, "v": 68, "o": 72}
    src = {"q": 48, "k": 50, "v": 52, "o": 54}
    for m in "qkvo":
        a(f"s_mov_b32 s{srd[m]}, s{src[m]}\ns_mov_b32 s{srd[m]+1}, s{src[m]+1}\ns_mov_b32 s{srd[m]+2}, 0x400000\ns_mov_b32 s{srd[m]+3}, 0x20000")
    order = ["k"] * 4 + ["v"] * 4 + ["o"] * 4 + ["q"] * 4
    def issue(c):
        m = order[c]; cc = c & 3; slot = c % 5
        for i in range(8):
            if slot < 4: a(f"s_add_u32 m0, s{sT0}, {slot*8192 + i*1024}")
            else: a(f"s_add_u32 m0, s{sT1}, {i*1024}")
            so = (128 * cc + 16 * i) * 8192 if m != "o" else (32 * cc + 4 * i) * 1024
            a(f"s_mov_b32 s{sT2}, {so}")
            a.vm(f"buffer_load_dwordx4 v{109 if m != 'o' else 110}, s[{srd[m]}:{srd[m]+3}], s{sT2} offen lds", ("w", c))
    for c in range(5): issue(c)
    for c in range(16):
        m = order[c]; cc = c & 3; slot = c % 5
        a.wait_vm(("w", c))
        base1 = (105, slot * 8192) if slot < 4 else (106, 0)
        base2 = (107, slot * 8192) if slot < 4 else (108, 0)
        if m != "o":
            for s_ in range(2):
                for t in range(2):
                    for mm in range(4):
                        imm = base1[1] + (64 * s_ + 8 * (mm >> 1) + 2 * (mm & 1)) * 64 + t * 32
                        s = 2 * cc + s_
                        if m == "k": dst = vr(wk(t, s) + 2 * mm, 2)
                        elif m == "v": dst = ar(wv(t, s) + 2 * mm, 2)
                        else: dst = vr(vA + (s_ * 2 + t) * 8 + 2 * mm, 2)
                        a.ds(f"ds_read_b64_tr_b16 {dst}, v{base1[0]} offset:{imm}")
        else:
            for d in range(4):
                for mm in range(4):
                    imm = base2[1] + (8 * (mm >> 1) + 2 * (mm & 1)) * 256 + d * 64
                    a.ds(f"ds_read_b64_tr_b16 {ar(wo(d, cc) + 2*mm, 2)}, v{base2[0]} offset:{imm}")
        a.wait_ds_all()
        if m == "q":
            for k in range(8):
                a.ds(f"ds_write_b128 v{vRing}, {vr(vA + 4*k, 4)} offset:{WQ_SLOT[cc]*8192 + k*1024}")
            a.wait_ds_all()
        if c + 5 < 16: issue(c + 5)
    a("s_barrier")
    a(f"""
    s_mov_b32 s60, s56
    s_mov_b32 s61, s57
    s_mov_b32 s62, 8192
    s_mov_b32 s63, 0x20000
    v_lshrrev_b32 v10, 2, v100
    v_lshlrev_b32 v10, 1, v10
    v_and_b32 v11, 1, v0
    v_add_u32 v10, v10, v11            ; row
    v_lshlrev_b32 v10, 10, v10
    v_bfe_u32 v11, v0, 1, 1
    v_lshl_add_u32 v10, v11, 5, v10
    v_lshl_add_u32 v10, v101, 3, v10
    s_lshl_b32 s{sT2}, s{sW}, 8        ; ksteps 2w, 2w+1
    v_add_u32 v10, s{sT2}, v10
    buffer_load_dwordx2 v[116:117], v10, s[60:63], 0 offen
    buffer_load_dwordx2 v[118:119], v10, s[60:63], 0 offen offset:64
    buffer_load_dwordx2 v[120:121], v10, s[60:63], 0 offen offset:128
    buffer_load_dwordx2 v[122:123], v10, s[60:63], 0 offen offset:192
    ds_write_b128 v{vM16}, v[112:115] offset:{RA_OFF}
    v_lshlrev_b32 v{vL8}, 3, v0
    s_waitcnt vmcnt(0) lgkmcnt(0)
    """)

def seg_offsets(a, w, P):
    a(f"""
    s_and_b32 s{sT0}, s{sStep}, 3
    s_lshl_b32 s{sT1}, s{sT0}, 18
    s_lshl_b32 s{sT2}, s{sH}, {6 if P["pc"] else 8}
    s_add_u32 s{sPst}, s{sT1}, s{sT2}
    s_add_u32 s{sPst}, s{sPst}, {PART + w*65536}
    s_lshl_b32 s{sT3}, s{sH}, 13
    s_add_u32 s{sPld}, s{sT1}, s{sT3}
    s_add_u32 s{sPld}, s{sPld}, {PART + (w*2048 if P['pc'] else w*64)}
    s_add_u32 s{sT0}, s{sStep}, 3
    s_and_b32 s{sT0}, s{sT0}, 3
    s_lshl_b32 s{sT1}, s{sT0}, 18
    s_mov_b32 s{sTag}, 0
    s_lshr_b32 s{sT2}, s{sH}, 2
    s_lshl_b32 s{sT2}, s{sT2}, 10
    s_and_b32 s{sT3}, s{sH}, 3
    s_lshl_b32 s{sT3}, s{sT3}, 6
    s_add_u32 s{sT2}, s{sT2}, s{sT3}
    s_lshl_b32 s{sT1}, s{sT0}, 13
    s_add_u32 s{sMclr}, s{sT1}, s{sT2}
    s_add_u32 s{sMclr}, s{sMclr}, {MBUF + w*256}
    s_add_u32 s{sT0}, s{sStep}, 1
    s_and_b32 s{sT0}, s{sT0}, 3
    s_lshl_b32 s{sT1}, s{sT0}, 13
    s_add_u32 s{sMpub}, s{sT1}, s{sT2}
    s_add_u32 s{sMpub}, s{sMpub}, {MBUF + w*256}
    s_add_u32 s{sMpoll}, s{sT1}, {MBUF - MISC + w*2048}
    s_lshl_b32 s{sT0}, s{sStep}, 5
    s_add_u32 s{sT0}, s{sT0}, s{sH}
    s_lshl_b32 s{sT1}, s{sT0}, 13
    s_add_u32 s{sVx}, s{sT1}, {VIMG - MISC + w*2048}
    s_add_u32 s{sKx}, s{sT1}, {KIMG - MISC + 32*8192}
    s_lshl_b32 s{sT1}, s{sT0}, 12
    s_add_u32 s{sKm}, s{sT1}, {KMEM - MISC + w*1024}
    s_lshl_b32 s{sT1}, s{sT0}, 11
    s_add_u32 s{sVm}, s{sT1}, {VMEM + w*512}
    """)

sRP, sRM, sMprev, sCP1, sCP2, sCM1, sVmPrev = 76, 77, 78, 79, 80, 81, 82
def init_incr(a, w):
    a(f"""
    s_mov_b32 s{sRP}, 0
    s_mov_b32 s{sRM}, 8192
    s_mov_b32 s{sCP1}, s{sPst}
    s_mov_b32 s{sCP2}, s{sPld}
    s_sub_u32 s{sCM1}, s{sMpub}, 8192
    s_mov_b32 s{sMprev}, s{sCM1}
    """)
def advance(a, w):
    a(f"""
    s_add_u32 s{sVx}, s{sVx}, {32*8192}
    s_add_u32 s{sKx}, s{sKx}, {32*8192}
    s_add_u32 s{sKm}, s{sKm}, {32*4096}
    s_add_u32 s{sVm}, s{sVm}, {32*2048}
    s_add_u32 s{sRP}, s{sRP}, 0x40000
    s_and_b32 s{sRP}, s{sRP}, 0xfffff
    s_add_u32 s{sPst}, s{sRP}, s{sCP1}
    s_add_u32 s{sPld}, s{sRP}, s{sCP2}
    s_mov_b32 s{sMclr}, s{sMprev}
    s_mov_b32 s{sMprev}, s{sMpub}
    s_add_u32 s{sRM}, s{sRM}, 8192
    s_and_b32 s{sRM}, s{sRM}, 0x7fff
    s_add_u32 s{sMpub}, s{sRM}, s{sCM1}
    s_add_u32 s{sStep}, s{sStep}, 1
    s_bfe_u32 s{sTag}, s{sStep}, 0x10002
    """)


def korder(w):
    own = [2 * w, 2 * w + 1]
    rest = [(2 * w + 2 + k) % 8 for k in range(6)]
    seq = [(0, own[0]), (1, own[0]), (0, own[1]), (1, own[1])] + [(0, s) for s in rest] + [(1, s) for s in rest]
    return own, rest, seq

def ring_fill(a, w, i):
    t, s = korder(w)[2][i]
    r = ringreg(i); imm = WQ_SLOT[s >> 1] * 8192 + ((s & 1) * 2 + t) * 2048
    a.ds(f"ds_read_b128 {vr(r,4)}, v{vRing} offset:{imm}", ("ring", i))
    a.ds(f"ds_read_b128 {vr(r+4,4)}, v{vRing} offset:{imm+1024}", ("ring", i))

def kx_dma(a, w, parts=None):
    for i in parts or (2 * w, 2 * w + 1):
        a(f"s_mov_b32 m0, {MISC+KX_OFF+i*1024}")
        a(f"s_add_u32 s{sT0}, s{sKx}, {i*1024}")
        a.vm(f"buffer_load_dwordx4 v{vM16}, s[{sWS}:{sWS+3}], s{sT0} offen lds", "kx")

def loop(a, w, st, P, diag=False):
    tag = f"{w}{'s' if st else 'f'}"
    WS = f"s[{sWS}:{sWS+3}]"
    smf = lambda d, A, B: a(f"v_smfmac_f32_16x16x64_bf16 {vr(d,4)}, {vr(A,4)}, {B}, v{vIDX}")
    mf = lambda d, A, B, c: a(f"v_mfma_f32_16x16x32_bf16 {vr(d,4)}, {vr(A,4)}, {vr(B,4)}, {c}")
    mf16 = lambda d, A, B, c: a(f"v_mfma_f32_16x16x16_bf16 {vr(d,4)}, {vr(A,2)}, {vr(B,2)}, {c}")
    Af = lambda s: vA + 4 * s
    q = lambda t: vACC + 8 * t
    k_ = lambda t: vACC + 8 * t + 4
    vacc = lambda t: (vVA0, vPM)[t]
    own, rest, seq = korder(w)
    SL = P.get("stamps", ["start", "qkend", "xbar", "scores", "pv", "obar", "opend", "pub", "bdone"])
    def ST(n):
        if diag and n in SL: stamp(a, SL.index(n), diag)
    vVM = vVA0 + 2
    def zero_acc():
        a(f"v_mov_b32 v126, v{vVM}\nv_mov_b32 v127, v{vVM+1}\nv_mov_b32 v124, -1\ns_mov_b32 s{sVmPrev}, s{sVm}")
        for r in range(16): a(f"v_mov_b32 v{vACC+r}, 0")
        for t in range(2):
            for r in range(4): a(f"v_mov_b32 v{vacc(t)+r}, 0")
    def mwrite():
        for o in own:
            a.ds(f"ds_write_b128 v{vM16}, {vr(Af(o),4)} offset:{M_OFF + o*1024}", "mw")
    hook = P.get("hooks")
    if hook: hook["ready"](a, w, tag, True)
    for r in range(8): a(f"v_mov_b32 v{Af(own[0])+r}, v{116+r}")
    a(f"s_mov_b32 s{sStep}, -1")
    seg_offsets(a, w, P)
    kx_dma(a, w)
    a(f"s_mov_b32 s{sStep}, 0")
    seg_offsets(a, w, P)
    init_incr(a, w)
    for i in range(NRING): ring_fill(a, w, i)
    zero_acc()
    a.wait_vm_all(True); a.wait_ds_all(True)
    LB = [Af(o) for o in own]
    def check(rs):
        r = [x + k for x in rs for k in range(4)]
        a(f"v_max3_u32 v11, v{r[0]}, v{r[1]}, v{r[2]}")
        a(f"v_max3_u32 v10, v{r[3]}, v{r[4]}, v{r[5]}")
        a(f"v_max3_u32 v11, v11, v{r[6]}, v{r[7]}")
        a(f"v_max_u32 v11, v11, v10")
        a(f"v_cmp_eq_u32 vcc, -1, v11")
    def issueB():
        a(f"buffer_load_dwordx4 {vr(LB[0],4)}, v{vM16}, {WS}, s{sMpoll} offen sc1")
        a(f"buffer_load_dwordx4 {vr(LB[1],4)}, v{vM16}, {WS}, s{sMpoll} offen offset:1024 sc1")
    def retry(name, issue, cnt):
        a.label(f"CH_{name}RETRY_{tag}")
        issue()
        a(f"s_add_u32 s{sCnt}, s{sCnt}, 1")
        if diag: a(f"s_add_u32 s{cnt}, s{cnt}, 1")
        a(f"s_cmp_gt_u32 s{sCnt}, {P['bound']}")
        a(f"s_cbranch_scc1 CH_{name}OK_{tag}")
        a(f"s_branch CH_{name}_{tag}")
    mwrite()
    a(f"s_branch CH_RBOK_{tag}")
    retry("RB", issueB, sTS + 21)
    a.label(f"CH_RB_{tag}")
    ST("B_w0")
    a(f"s_waitcnt vmcnt({2*(P['depB']-1)})")
    ST("B_w1")
    a.dsq = []
    check(LB)
    mwrite()
    a(f"s_cbranch_vccnz CH_RBRETRY_{tag}")
    a.label(f"CH_RBOK_{tag}")
    if diag:
        ST("bdone")
        a("s_waitcnt lgkmcnt(0)")
        a(f"s_cmp_eq_u32 s{sStep}, 0")
        a(f"s_cbranch_scc1 CH_NOACC_{tag}")
        for k in range(8):
            a(f"s_sub_u32 s{sT0}, s{sTS+2*k+2}, s{sTS+2*k}")
            a(f"s_add_u32 s{sTS+22+k}, s{sTS+22+k}, s{sT0}")
        if P.get("trace"):
            a(f"s_cmp_eq_u32 s{sStep}, {P.get('trace', 41)}")
            for k, dst in enumerate((83, 84, 85, 86, 87, 88, 89, 100, 101)):
                a(f"s_cselect_b32 s{dst}, s{sTS+2*k}, s{dst}")
        a.label(f"CH_NOACC_{tag}")
    ST("start")
    a.vmq = ["stale"] * (2 * (P["depB"] - 1))
    vs = [(t, s) for s in own + rest for t in range(2)]
    vsm = lambda: (lambda t, s: smf(vacc(t), Af(s), ar(wv(t, s), 8)))(*vs.pop(0))
    def qk(i):
        t, s = seq[i]
        smf(q(t), Af(s), vr(ringreg(i), 8))
        for f in fq[i]: f()
        smf(k_(t), Af(s), vr(wk(t, s), 8))
        for f in fill[i]: f()
    fill = {i: [] for i in range(16)}
    fq = {i: [] for i in range(16)}
    nb = P["pre_bar"]
    def bar_and_reads():
        a.wait_ds("mw")
        ST("mbar0")
        a("s_barrier")
        ST("mbar1")
        for s in rest: a.ds(f"ds_read_b128 {vr(Af(s),4)}, v{vM16} offset:{M_OFF + s*1024}", ("A", s))
    for i in range(nb): qk(i)
    bar_and_reads()
    if P["late_fill"]:
        for i in range(4, 10): fq[i].append(lambda i=i: ring_fill(a, w, i + NRING))
    else:
        for i in range(nb): ring_fill(a, w, i + NRING)
        for i in range(nb, 10): fq[i].append(lambda i=i: ring_fill(a, w, i + NRING))
    jobs = []
    if not P.get("no_vx"):
        jobs.append(lambda: a.vm(f"buffer_load_dwordx4 {vr(vVX,4)}, v{vM16}, {WS}, s{sVx} offen", "vx"))
        jobs.append(lambda: a.vm(f"buffer_load_dwordx4 {vr(vVX+4,4)}, v{vM16}, {WS}, s{sVx} offen offset:1024", "vx"))
    if not P.get("no_exp"):
        jobs.append(lambda: a.vm(f"buffer_store_dwordx2 v[126:127], v{vL8}, {WS}, s{sVmPrev} offen sc1", "exp"))
    if not P.get("no_clr"):
        jobs.append(lambda: a.vm(f"buffer_store_dword v124, v{vMpub}, {WS}, s{sMclr} offen {st}", "clr"))
    slots = [(fill if (k & 1) else fq, 4 + (k >> 1)) for k in range(16)]
    for n_, jb in enumerate(jobs):
        tbl, idx = slots[(n_ * 4 + w) % 16]
        tbl[idx].append(jb)
    if hook:
        hook["ready"](a, w, tag, False)
        if w == 0: fill[12].append(lambda: hook["flag"](a))
    for i in range(nb, 4): qk(i)
    for i in range(4):
        vsm()
        if P["late_fill"]: ring_fill(a, w, i + NRING)
    fill[10].append(lambda: a(f"s_add_u32 s{sMpoll}, s{sRM}, {MBUF - MISC + w*2048}"))
    def post(t, r0, part):
        if part == 0:
            a(f"v_pk_add_f32 {vr(q(t),2)}, {vr(q(t),2)}, {vr(q(t)+2,2)}")
            a(f"v_cvt_pk_bf16_f32 v{r0}, v{q(t)}, v{q(t)+1}")
        else:
            a(f"v_pk_add_f32 {vr(k_(t),2)}, {vr(k_(t),2)}, {vr(k_(t)+2,2)}")
            a(f"v_cvt_pk_bf16_f32 v{r0+1}, v{k_(t)}, v{k_(t)+1}")
            a.ds(f"ds_write_b64 v{vXw}, {vr(r0,2)} offset:{t*128}", "xw")
    kxread = lambda kt, s: a.ds(f"ds_read_b128 {vr(kx(kt,s),4)}, v{vM16} offset:{KX_OFF + (kt*4+s)*1024}", "kx")
    fq[10].append(lambda: [kxread(0, 0), kxread(0, 1)])
    fq[11].append(lambda: [kxread(0, 2), kxread(0, 3)])
    fq[12].append(lambda: [kxread(1, 0), kxread(1, 1)])
    fq[13].append(lambda: [kxread(1, 2), kxread(1, 3)])
    fill[11].append(lambda: post(0, vACC + 2, 0))
    fill[12].append(lambda: post(0, vACC + 2, 1))
    xread = lambda sg: [a.ds(f"ds_read_b64_tr_b16 {vr(vXF+4*sg+2*p,2)}, v{vXr} offset:{(sg&1)*512 + p*256 + (sg>>1)*128}", ("X", sg)) for p in range(2)]
    def xbar0():
        a.wait_ds("xw"); a("s_barrier"); xread(0); xread(1)
    (fq if P["x0"] == 14 else fill)[14].append(xbar0)
    await_ = {4: rest[0], 5: rest[2], 7: rest[5]}
    for i in range(4, 16):
        if i == 4: ST("q4a")
        if i in await_: a.wait_ds(("A", await_[i]))
        if i in (4, 7, 10, 13): ST(f"q{i}")
        if i >= NRING and i % 2 == 0: a.wait_ds(("ring", i + 1))
        qk(i)
    ST("qkend")
    T0, T1, Tm = vACC + 8, vACC + 12, vT
    def score(T, sg):
        A = {T0: kx(0, sg), T1: kx(1, sg), Tm: vXF + 4 * sg}[T]
        a.wait_ds(("X", sg))
        mf(T, A, vXF + 4 * sg, "0" if sg == 0 else vr(T, 4))
    for _ in range(P["v_0"]):
        vsm(); a.nop(2)
    a.nop(7 - 3 * P["v_0"])
    post(1, vACC + 6, 0)
    post(1, vACC + 6, 1)
    for _ in range(P["v_pre"]): vsm()
    a.wait_ds_all()
    a("s_barrier")
    ST("xbar")
    xread(2); vsm(); xread(3)
    memjobs = []
    if P["kx_at"] == "X":
        memjobs = [lambda: kx_dma(a, w, [2 * w]), lambda: kx_dma(a, w, [2 * w + 1])]
    n_ = 0
    for sg in range(2):
        for T in (T0, T1, Tm):
            score(T, sg)
            if memjobs and n_ % 4 == w: memjobs.pop(0)()
            n_ += 1
    while vs:
        vsm()
        if memjobs and n_ % 4 == w: memjobs.pop(0)()
        n_ += 1
    assert not memjobs
    a.wait_vm("stale")
    ST("vdone")
    vONE = vA + 28
    m, t_ = vACC, 11
    sf = {i: [] for i in range(6)}
    sf[0] += [lambda: a(f"v_mov_b32 v{vONE}, 0x3f803f80\nv_mov_b32 v{vONE+1}, 0x3f803f80")]
    sf[1] += [lambda: a(f"v_mov_b32 v{vONE+2}, 0x3f803f80\nv_mov_b32 v{vONE+3}, 0x3f803f80")]
    if not P.get("no_exp"):
        sf[w].append(lambda: a.vm(f"buffer_store_dwordx4 {vr(vXF+4*w,4)}, v{vM16}, {WS}, s{sKm} offen sc1", "exp"))
    sf[2] += [lambda: a(f"s_cmp_ge_u32 s{sStep}, 63\ns_nop 0")]
    sf[3] += [lambda: a(f"v_pk_add_f32 {vr(vacc(0),2)}, {vr(vacc(0),2)}, {vr(vacc(0)+2,2)}\nv_pk_add_f32 {vr(vacc(1),2)}, {vr(vacc(1),2)}, {vr(vacc(1)+2,2)}")]
    sf[4] += [lambda: a(f"v_cvt_pk_bf16_f32 v{vVM}, v{vacc(0)}, v{vacc(0)+1}\nv_cvt_pk_bf16_f32 v{vVM+1}, v{vacc(1)}, v{vacc(1)+1}")]
    sf[5] += [lambda: a(f"s_cbranch_scc1 CH_DONE_{tag}\nv_mov_b32 v{vPM+1}, 0\nv_mov_b32 v{vPM+2}, 0")]
    n = 0
    for T in (T0, T1, Tm):
        for sg in (2, 3):
            score(T, sg)
            for f in sf[n]: f()
            n += 1
    ST("scores")
    oacc = lambda d: vRING + 4 * d
    zq = list(range(16))
    z = lambda n: [a(f"v_mov_b32 v{vRING+zq.pop(0)}, 0") for _ in range(n)]
    a(f"v_max3_f32 v{m}, v{T0}, v{T0+1}, v{T0+2}")
    a(f"v_max3_f32 v{m}, v{m}, v{T0+3}, v{T1}")
    a(f"v_max3_f32 v{m}, v{m}, v{T1+1}, v{T1+2}")
    a(f"v_max_f32 v{m}, v{m}, v{T1+3}")
    z(1)
    a(f"v_max3_f32 v{m}, v{m}, v{Tm+2}, v{Tm+3}")
    a(f"v_mov_b32 v{t_}, v{m}")
    z(2)
    a(f"v_permlane32_swap_b32 v{m}, v{t_}")
    a(f"v_max_f32 v{m}, v{m}, v{t_}")
    a(f"v_mov_b32 v{t_}, v{m}")
    z(2)
    a(f"v_permlane16_swap_b32 v{m}, v{t_}")
    a(f"v_max_f32 v{m}, v{m}, v{t_}")
    a(f"v_mul_f32 v10, s{sC}, v{m}")
    pf = lambda r: a(f"v_pk_fma_f32 {vr(r,2)}, {vr(r,2)}, s[{sC}:{sC+1}], v[10:11] op_sel_hi:[1,1,0] neg_lo:[0,0,1] neg_hi:[0,0,1]")
    ex = lambda r: a(f"v_exp_f32 v{r}, v{r}")
    aX, aY, aL = vA, vA + 4, vA + 24
    vPX = vACC + 4
    pf(Tm + 2); pf(T0); ex(Tm + 2); ex(Tm + 3); pf(T0 + 2); pf(T1); pf(T1 + 2)
    a(f"v_cvt_pk_bf16_f32 v{vPM}, v{Tm+2}, v{Tm+3}")
    a(f"v_cvt_pk_bf16_f32 v{vPM+3}, v{Tm+2}, v{Tm+3}")
    ex(T0); ex(T0 + 1)
    mf16(aL, vONE, vPM, "0")
    ex(T0 + 2); ex(T0 + 3)
    mf16(aX, vVM, vPM, "0")
    ex(T1); ex(T1 + 1)
    mf16(aY, vVM, vPM + 2, "0")
    ex(T1 + 2); ex(T1 + 3)
    a(f"v_cvt_pk_bf16_f32 v{vPX}, v{T0}, v{T0+1}")
    a(f"v_cvt_pk_bf16_f32 v{vPX+1}, v{T0+2}, v{T0+3}")
    a(f"v_cvt_pk_bf16_f32 v{vPX+2}, v{T1}, v{T1+1}")
    a(f"v_cvt_pk_bf16_f32 v{vPX+3}, v{T1+2}, v{T1+3}")
    a.wait_vm("vx")
    a.nop(2 if P.get("no_vx") else 1)
    mf(aL, vONE, vPX, vr(aL, 4))
    mf(aX, vVX, vPX, vr(aX, 4))
    mf(aY, vVX + 4, vPX, vr(aY, 4))
    ST("pv")
    z(6)
    a(f"v_rcp_f32 v10, v{aL}")
    z(1)
    zrest = 4
    vOW = vA + 8
    for r in range(4):
        a(f"v_pk_mul_f32 {vr(aX+2*r,2)}, {vr(aX+2*r,2)}, v[10:11] op_sel_hi:[1,0]")
    for r in range(4):
        a(f"v_cvt_pk_bf16_f32 v{vOW+r}, v{aX+2*r}, v{aX+2*r+1}")
    a.ds(f"ds_write_b128 v{vM16}, {vr(vOW,4)} offset:{O_OFF + w*2048}", "ow")
    vOF = lambda s: vA + 12 + 4 * s
    z(1)
    for r in range(4):
        a(f"v_mov_b32_dpp v{vOF(w)+r}, v{vOW+r} quad_perm:[0,1,0,1] row_mask:0xf bank_mask:0xf")
    z(3); a.nop(2)
    npre = P["o_pre"]
    for d in range(npre): smf(oacc(d), vOF(w), ar(wo(d, w), 8))
    a.wait_ds_all()
    a("s_barrier")
    ST("obar")
    orest = [(w + 1 + k) % 4 for k in range(3)]
    for s in orest:
        a.ds(f"ds_read_b128 {vr(vOF(s),4)}, v{vOr} offset:{s*2048}", ("O", s))
    a(f"s_add_u32 s{sT0}, s{sPst}, 32768")
    for d in range(npre, 4): smf(oacc(d), vOF(w), ar(wo(d, w), 8))
    vST = vRING + 16
    def cv(d):
        a(f"v_cvt_pk_bf16_f32 v{vST+2*d}, v{oacc(d)}, v{oacc(d)+1}\nv_cvt_pk_bf16_f32 v{vST+2*d+1}, v{oacc(d)+2}, v{oacc(d)+3}")
        if d % 2 == 0: a(f"v_and_or_b32 v{vST+2*d}, v{vST+2*d}, -2, s{sTag}")
    pst = lambda dp: a.vm(f"buffer_store_dwordx4 {vr(vST+4*dp,4)}, v{vPst}, {WS}, s{sT0 if dp else sPst} offen {st}", "pst")
    for dp in range(2):
        for n_, s in enumerate(orest):
            for d in (2 * dp, 2 * dp + 1):
                a.wait_ds(("O", s))
                smf(oacc(d), vOF(s), ar(wo(d, s), 8))
                if dp == 1:
                    k = n_ * 2 + (d & 1)
                    if k < 3: a.nop(2)
                    if k == 3: cv(0)
                    if k == 4: cv(1)
                    if k == 5: pst(0)
    a.nop(6)
    cv(2); cv(3); pst(1)
    ST("opend")
    LA = [Af(rest[0]), Af(rest[1])]
    vRA, vRD = Af(rest[2]), Af(rest[3])
    def issueA():
        a(f"buffer_load_dwordx4 {vr(LA[0],4)}, v{vPld}, {WS}, s{sPld} offen sc1")
        a(f"buffer_load_dwordx4 {vr(LA[1],4)}, v{vPld}, {WS}, s{sT1} offen sc1")
    a.ds(f"ds_read_b128 {vr(vRA,4)}, v{vM16} offset:{RA_OFF}", "ra")
    a(f"s_add_u32 s{sT1}, s{sPld}, {1024 if P['pc'] else 4096}")
    a(f"s_mov_b32 s{sCnt}, 0")
    if P["zpre"]: zero_acc()
    a.nop(P["dlyA"])
    issueA()
    ST("issA")
    for i in range(P["nrA"]): ring_fill(a, w, i)
    if not P["zpre"]: zero_acc()
    for _ in range(P["depA"] - 1):
        a.nop(P["gapA"]); issueA()
    a.wait_ds("ra")
    a.label(f"CH_RA_{tag}")
    ST("A_w0")
    a(f"s_waitcnt vmcnt({2*(P['depA']-1)})")
    ST("A_w2")
    a(f"v_bitop3_b32 v10, v{LA[0]}, v{LA[1]}, s{sTag} bitop3:0x7e")
    a(f"v_and_b32 v10, 1, v10")
    mf(vRD, LA[0], vRA, "0")
    a(f"v_cmp_ne_u32 vcc, 0, v10")
    mf(vRD, LA[1], vRA, vr(vRD, 4))
    a(f"s_cbranch_vccnz CH_RARETRY_{tag}")
    a.label(f"CH_RAOK_{tag}")
    ST("A_ok")
    a.nop(7)
    a(f"v_permlane32_swap_b32 v{vRD}, v{vRD+2}")
    a(f"v_permlane32_swap_b32 v{vRD+1}, v{vRD+3}")
    a(f"v_pk_add_f32 {vr(vRD,2)}, {vr(vRD,2)}, {vr(vRD+2,2)}")
    a(f"v_mov_b32 v{vRD+2}, v{vRD}")
    a(f"v_mov_b32 v{vRD+3}, v{vRD+1}")
    a.nop(1)
    a(f"v_permlane16_swap_b32 v{vRD}, v{vRD+2}")
    a(f"v_permlane16_swap_b32 v{vRD+1}, v{vRD+3}")
    a(f"v_pk_add_f32 {vr(vRD,2)}, {vr(vRD,2)}, {vr(vRD+2,2)}")
    a(f"s_mov_b64 exec, s[{sLO8}:{sLO8+1}]")
    a(f"v_cvt_pk_bf16_f32 v{vRD}, v{vRD}, v{vRD+1}")
    a(f"buffer_store_dword v{vRD}, v{vMpub}, {WS}, s{sMpub} offen {st}")
    a("s_mov_b64 exec, -1")
    ST("pub")
    a(f"s_mov_b32 s{sCnt}, 0")
    if P["chB"]: advance(a, w)
    a.nop(P["dlyB"])
    issueB()
    ST("issB")
    for i in range(P["nrA"], NRING): ring_fill(a, w, i)
    if not P["chB"]: advance(a, w)
    for _ in range(P["depB"] - 1):
        a.nop(P["gapB"]); issueB()
    a.wait_ds_all()
    a.vmq = []
    a(f"s_branch CH_RB_{tag}")
    retry("RA", issueA, sTS + 20)
    a.label(f"CH_DONE_{tag}")
    a(f"buffer_store_dwordx2 {vr(vVM,2)}, v{vL8}, {WS}, s{sVm} offen sc1")
    a.dsq = []; a.vmq = []
    if hook: hook["done"](a, w)
```

```python
XN   = 0x0000000
QIMG = 0x0200000
KIMG = 0x1200000
VIMG = 0x2200000
KMEM = 0x3200000
VMEM = 0x3A00000
OIMG = 0x3E00000
HIMG = 0x4E00000
PART = 0x5600000
MBUF = 0x5700000
DBG  = 0x5800000
WS_BYTES = 268435456
KA = dict(x=0, mem0=8, Wq=16, Wk=24, Wv=32, Wo=40, seg=48, bx=56, w1=64, b1=72, w2=80, b2=88, out=96, dbg=104, ws=112)
FLG  = 0x5710000
LNF = FLG
G1F = FLG + 0x400
CHF = FLG + 0x800
ATF = FLG + 0xA00
ERRW = DBG + 0x10000
D_MASK, D_MODE, D_T1, D_T2, D_INIT = 0, 4, 128, 132, 64
NSETS = 12
```

```python
from asm import *
from layout import *
import math, struct

sWS = 8
WS = f"s[{sWS}:{sWS+3}]"
sW = 17
sRole = 16
sDead = 37
sA, sB, sC_, sD = 32, 33, 34, 35
POLL_BOUND = 1 << 16

def fbits(x): return struct.unpack("<I", struct.pack("<f", x))[0]

def srd(a, d, ka, size):
    a(f"s_load_dwordx2 s[{d}:{d+1}], s[0:1], {KA[ka]}\ns_mov_b32 s{d+2}, {size}\ns_mov_b32 s{d+3}, 0x20000")

def poll_ge(a, load, vals, target, name, sleep=1, vtmp=None):
    L = a.newlabel("POLL_" + name); E = L + "_E"
    a(f"s_mov_b32 s{sD}, 0")
    a.label(L)
    a(f"s_cmp_lg_u32 s{sDead}, 0\ns_cbranch_scc1 {E}")
    a(load)
    a(f"s_add_u32 s{sD}, s{sD}, 1")
    a(f"s_cmp_gt_u32 s{sD}, {POLL_BOUND}\ns_cselect_b32 s{sDead}, 1, 0")
    a("s_waitcnt vmcnt(0)")
    v = vals[0]
    for k in range(1, len(vals)):
        a(f"v_min_u32 v{vtmp}, v{v}, v{vals[k]}"); v = vtmp
    a(f"v_cmp_gt_u32 vcc, {target}, v{v}")
    a(f"s_cbranch_vccz {E}")
    if sleep: a(f"s_sleep {sleep}")
    a(f"s_branch {L}")
    a.label(E)
    a.vmq = []

def flag_store(a, soff, sval, v0=2):
    a(f"v_mov_b32 v{v0}, {sval}\nv_mov_b32 v{v0+1}, 0\ns_mov_b64 exec, 1")
    a.vm(f"buffer_store_dword v{v0}, v{v0+1}, {WS}, {soff} offen sc1", "flag")
    a("s_mov_b64 exec, -1")

def layernorm(a, sTask):
    srd(a, 12, "x", 2048 * 1024)
    a(f"""
    v_and_b32 v8, 15, v0
    v_lshrrev_b32 v9, 4, v0
    v_lshlrev_b32 v8, 10, v8
    v_lshl_add_u32 v8, v9, 4, v8
    s_lshl_b32 s{sA}, s{sTask}, 14
    s_waitcnt lgkmcnt(0)
    """)
    R = 16
    F = 80
    for s in range(16):
        a.vm(f"buffer_load_dwordx4 {vr(R+4*s,4)}, v8, s[12:15], s{sA} offen offset:{s*64}", ("ln", s))
    a("v_mov_b32 v10, 0\nv_mov_b32 v11, 0")
    for s in range(16):
        a.wait_vm(("ln", s))
        for k in range(4):
            r = R + 4 * s + k; f = F + 8 * s + 2 * k
            a(f"v_lshlrev_b32 v{f}, 16, v{r}\nv_and_b32 v{f+1}, 0xffff0000, v{r}")
            a(f"v_pk_add_f32 v[10:11], v[10:11], {vr(f,2)}")
    def allred():
        a("v_add_f32 v10, v10, v11")
        for op in ("v_permlane32_swap_b32", "v_permlane16_swap_b32"):
            a(f"v_mov_b32 v11, v10\ns_nop 1\n{op} v10, v11\nv_add_f32 v10, v10, v11")
    allred()
    a(f"v_mul_f32 v12, {fbits(1/512):#x}, v10\nv_mov_b32 v10, 0\nv_mov_b32 v11, 0")
    for k in range(64):
        f = F + 2 * k
        a(f"v_pk_add_f32 {vr(f,2)}, {vr(f,2)}, v[12:13] op_sel_hi:[1,0] neg_lo:[0,1] neg_hi:[0,1]")
        a(f"v_pk_fma_f32 v[10:11], {vr(f,2)}, {vr(f,2)}, v[10:11]")
    allred()
    a(f"v_mov_b32 v12, {fbits(1e-5):#x}\nv_fmac_f32 v12, {fbits(1/512):#x}, v10\nv_rsq_f32 v12, v12")
    a(f"""
    s_lshr_b32 s{sA}, s{sTask}, 1
    s_lshl_b32 s{sA}, s{sA}, 15
    s_and_b32 s{sB}, s{sTask}, 1
    s_lshl_b32 s{sB}, s{sB}, 10
    s_add_u32 s{sA}, s{sA}, s{sB}
    s_add_u32 s{sA}, s{sA}, {XN}
    v_lshlrev_b32 v8, 4, v0
    """)
    for s in range(16):
        for k in range(4):
            f = F + 8 * s + 2 * k
            a(f"v_pk_mul_f32 {vr(f,2)}, {vr(f,2)}, v[12:13] op_sel_hi:[1,0]")
            a(f"v_cvt_pk_bf16_f32 v{R+4*s+k}, v{f}, v{f+1}")
        a.vm(f"buffer_store_dwordx4 {vr(R+4*s,4)}, v8, {WS}, s{sA} offen sc1", "lnst")
        a(f"s_add_u32 s{sA}, s{sA}, 2048")
    a.wait_vm_all()

G1_XBUF = 98304
def gemm1(a, wait_init):
    sSl, sJ, sKind, sRow, sOut, sN, sXs, sFl = 18, 19, 20, 21, 22, 23, 24, 25
    a(f"""
    s_lshr_b32 s{sSl}, s{sRole}, 2
    s_and_b32 s{sJ}, s{sRole}, 3
    s_lshr_b32 s{sKind}, s{sSl}, 4            ; 0 K, 1 V, 2 Q, 3 FFN1
    s_load_dwordx2 s[48:49], s[0:1], {KA['Wk']}
    s_load_dwordx2 s[50:51], s[0:1], {KA['Wv']}
    s_load_dwordx2 s[52:53], s[0:1], {KA['Wq']}
    s_load_dwordx2 s[54:55], s[0:1], {KA['w1']}
    s_load_dwordx2 s[56:57], s[0:1], {KA['b1']}
    s_waitcnt lgkmcnt(0)
    s_mov_b32 s12, s48
    s_mov_b32 s13, s49
    s_mov_b32 s14, {512*4096*2}
    s_mov_b32 s{sRow}, 8192
    s_cmp_eq_u32 s{sKind}, 1
    s_cselect_b32 s12, s50, s12
    s_cselect_b32 s13, s51, s13
    s_cmp_eq_u32 s{sKind}, 2
    s_cselect_b32 s12, s52, s12
    s_cselect_b32 s13, s53, s13
    s_cmp_eq_u32 s{sKind}, 3
    s_cselect_b32 s12, s54, s12
    s_cselect_b32 s13, s55, s13
    s_cselect_b32 s14, {512*1792*2}, s14
    s_cselect_b32 s{sRow}, 3584, s{sRow}
    s_mov_b32 s15, 0x20000
    v_and_b32 v240, 15, v0
    v_lshrrev_b32 v241, 4, v0
    v_and_b32 v242, 3, v0
    v_bfe_u32 v243, v0, 2, 2
    v_lshrrev_b32 v4, 3, v0
    v_mul_lo_u32 v4, v4, s{sRow}
    v_and_b32 v5, 7, v0
    v_bfe_u32 v6, v0, 4, 1
    v_lshlrev_b32 v6, 1, v6
    v_xor_b32 v5, v5, v6
    v_xor_b32 v6, 4, v5
    s_and_b32 s{sA}, s{sSl}, 15
    s_lshl_b32 s{sA}, s{sA}, 9
    s_lshl_b32 s{sB}, s{sW}, 7
    s_add_u32 s{sA}, s{sA}, s{sB}
    v_add_u32 v4, s{sA}, v4
    v_lshl_add_u32 v244, v5, 4, v4
    v_lshl_add_u32 v245, v6, 4, v4
    v_lshl_add_u32 v4, v241, 3, v243
    v_lshlrev_b32 v4, 7, v4
    v_lshl_add_u32 v4, v242, 3, v4
    s_mul_i32 s{sA}, s{sW}, 24576
    v_add_u32 v4, s{sA}, v4
    v_lshrrev_b32 v5, 1, v243
    v_and_b32 v6, 1, v241
    v_lshl_add_u32 v5, v6, 1, v5
    """)
    for f in range(4):
        a(f"v_xor_b32 v6, {f}, v5\nv_lshl_add_u32 v{246+f}, v6, 5, v4")
    a(f"s_lshl_b32 s{sC_}, s{sRow}, 3\ns_mov_b32 s{sN}, 0")
    def issue(c):
        for i in range(8):
            a(f"s_add_u32 m0, s{sA}, {(c%3)*8192 + i*1024}\ns_nop 0")
            a.vm(f"buffer_load_dwordx4 v{244 + (i&1)}, s[12:15], s{sN} offen lds", ("w", c))
            a(f"s_add_u32 s{sN}, s{sN}, s{sC_}")
    for c in range(3): issue(c)
    a(f"s_cmp_ge_u32 s{sRole}, 128\ns_cbranch_scc1 G1_NOLN\ns_cmp_lg_u32 s{sW}, 0\ns_cbranch_scc1 G1_NOLN")
    a("s_mov_b64 s[58:59], s[12:13]\ns_mov_b32 s60, s14")
    a(f"s_mov_b32 s61, s{sA}")
    keep = list(a.vmq)
    layernorm(a, sRole)
    wait_init(a)
    a(f"s_lshl_b32 s{sA}, s{sRole}, 2\ns_add_u32 s{sA}, s{sA}, {LNF}")
    flag_store(a, f"s{sA}", 1)
    a(f"s_mov_b64 s[12:13], s[58:59]\ns_mov_b32 s14, s60\ns_mov_b32 s15, 0x20000\ns_mov_b32 s{sA}, s61")
    a("s_waitcnt vmcnt(0)")
    a.label("G1_NOLN")
    a.vmq = keep
    W = lambda f, s: 4 * (f * 16 + s)
    for c in range(8):
        a.wait_vm(("w", c))
        for s_ in range(2):
            for f in range(4):
                for p in range(2):
                    a.ds(f"ds_read_b64_tr_b16 {ar(W(f, 2*c+s_) + 2*p, 2)}, v{246+f} offset:{(c%3)*8192 + (32*s_+4*p)*128}")
        a.wait_ds_all()
        if c + 3 < 8: issue(c + 3)
    vBias = 112
    for r in range(16): a(f"v_mov_b32 v{vBias+r}, 0")
    a(f"s_cmp_lg_u32 s{sKind}, 3\ns_cbranch_scc1 G1_NOBIAS")
    a(f"""
    s_mov_b32 s12, s56
    s_mov_b32 s13, s57
    s_mov_b32 s14, 3584
    s_and_b32 s{sA}, s{sSl}, 15
    s_lshl_b32 s{sA}, s{sA}, 9
    s_lshl_b32 s{sB}, s{sW}, 7
    s_add_u32 s{sA}, s{sA}, s{sB}
    v_lshlrev_b32 v4, 3, v241
    """)
    for f in range(4): a(f"buffer_load_dwordx2 {vr(8+2*f,2)}, v4, s[12:15], s{sA} offen offset:{f*32}")
    a("s_waitcnt vmcnt(0)")
    for f in range(4):
        for k in range(2):
            a(f"v_lshlrev_b32 v{vBias+4*f+2*k}, 16, v{8+2*f+k}\nv_and_b32 v{vBias+4*f+2*k+1}, 0xffff0000, v{8+2*f+k}")
    a.label("G1_NOBIAS")
    wait_init(a)
    a("v_lshlrev_b32 v4, 3, v0")
    a(f"s_mov_b32 s{sA}, {LNF}")
    poll_ge(a, f"buffer_load_dwordx2 v[6:7], v4, {WS}, s{sA} offen sc1", [6, 7], 1, "LN", vtmp=6)
    a(f"""
    v_lshlrev_b32 v4, 4, v0
    v_add_u32 v5, {G1_XBUF}, v4
    s_lshl_b32 s{sXs}, s{sJ}, 15
    s_lshl_b32 s{sA}, s{sW}, 13
    s_add_u32 s{sXs}, s{sXs}, s{sA}
    s_add_u32 s{sXs}, s{sXs}, {XN}
    s_lshl_b32 s{sFl}, s{sRole}, 2
    s_add_u32 s{sFl}, s{sFl}, {G1F}
    s_and_b32 s{sA}, s{sSl}, 15
    s_lshl_b32 s{sA}, s{sA}, 1
    s_lshr_b32 s{sB}, s{sW}, 1
    s_add_u32 s{sA}, s{sA}, s{sB}             ; head
    s_lshl_b32 s{sB}, s{sJ}, 5
    s_add_u32 s{sA}, s{sA}, s{sB}
    s_lshl_b32 s{sOut}, s{sA}, 13
    s_and_b32 s{sB}, s{sW}, 1
    """)
    def xdma(par):
        for i in range(8):
            a(f"s_lshl_b32 s{sA}, s{sW}, 13\ns_add_u32 m0, s{sA}, {G1_XBUF + par*32768 + i*1024}")
            a(f"s_add_u32 s{sA}, s{sXs}, {i*1024}")
            a.vm(f"buffer_load_dwordx4 v4, {WS}, s{sA} offen lds", "x")
        a(f"s_add_u32 s{sXs}, s{sXs}, {4*32768}")
    xdma(0)
    a(f"s_cmp_eq_u32 s{sKind}, 1\ns_cbranch_scc1 G1_V\ns_cmp_eq_u32 s{sKind}, 3\ns_cbranch_scc1 G1_H")
    for kind in ("QK", "V", "H"):
        a.label(f"G1_{kind}")
        if kind == "QK":
            a(f"s_lshl_b32 s{sB}, s{sB}, 10\ns_add_u32 s{sOut}, s{sOut}, s{sB}")
            a(f"s_mov_b32 s{sB}, {QIMG}\ns_cmp_eq_u32 s{sKind}, 0\ns_cselect_b32 s{sB}, {KIMG}, s{sB}\ns_add_u32 s{sOut}, s{sOut}, s{sB}")
            step = 4 * 32 * 8192
        elif kind == "V":
            a(f"s_lshl_b32 s{sB}, s{sB}, 12\ns_add_u32 s{sOut}, s{sOut}, s{sB}\ns_add_u32 s{sOut}, s{sOut}, {VIMG}")
            step = 4 * 32 * 8192
        else:
            a(f"s_and_b32 s{sA}, s{sSl}, 15\ns_lshl_b32 s{sA}, s{sA}, 2\ns_add_u32 s{sA}, s{sA}, s{sW}\ns_lshl_b32 s{sA}, s{sA}, 11")
            a(f"s_mul_i32 s{sB}, s{sJ}, {2*56*1024}\ns_add_u32 s{sOut}, s{sA}, s{sB}\ns_add_u32 s{sOut}, s{sOut}, {HIMG}")
            step = 4 * 2 * 56 * 1024
        acc = lambda par, mt, f: 128 + par * 32 + (mt * 4 + f) * 4
        vX = lambda s, mt: 16 + ((s % 3) * 2 + mt) * 4
        vS = 48
        def epilogue(par):
            jobs = []
            for n in range(4):
                if kind == "QK": mt, t = n >> 1, n & 1; srcs = (acc(par, mt, t), acc(par, mt, t + 2)); off = mt * 4096 + t * 2048
                elif kind == "V": srcs = (acc(par, 0, n), acc(par, 1, n)); off = n * 1024
                else: mt, t = n >> 1, n & 1; srcs = (acc(par, mt, 2 * t), acc(par, mt, 2 * t + 1)); off = mt * 56 * 1024 + t * 1024
                d = vS + 4 * n
                for h_ in range(2):
                    for k in range(2):
                        r = srcs[h_] + 2 * k
                        if kind == "H":
                            jobs.append(lambda r=r: a(f"v_max_f32 v{r}, 0, v{r}\nv_max_f32 v{r+1}, 0, v{r+1}"))
                            jobs.append(lambda r=r, d=d, h_=h_, k=k: a(f"v_pk_mul_f32 {vr(r,2)}, {vr(r,2)}, {vr(r,2)}\nv_cvt_pk_bf16_f32 v{d+2*h_+k}, v{r}, v{r+1}"))
                        else:
                            jobs.append(lambda r=r, d=d, h_=h_, k=k: a(f"v_cvt_pk_bf16_f32 v{d+2*h_+k}, v{r}, v{r+1}"))
                def st(d=d, off=off):
                    a(f"s_add_u32 s{sA}, s{sOut}, {off}")
                    a.vm(f"buffer_store_dwordx4 {vr(d,4)}, v4, {WS}, s{sA} offen sc1", "st")
                jobs.append(st)
            jobs.append(lambda: a(f"s_add_u32 s{sOut}, s{sOut}, {step}"))
            return jobs
        def segment(par, first):
            a.wait_vm_all(True)
            a("s_barrier")
            if not first:
                L = a.newlabel("G1F")
                a(f"s_cmp_lg_u32 s{sW}, 0\ns_cbranch_scc1 {L}")
                a(f"s_sub_u32 s{sA}, s{sN}, 1")
                flag_store(a, f"s{sFl}", f"s{sA}", 8)
                a.label(L)
            L = a.newlabel("G1X")
            a(f"s_cmp_ge_u32 s{sN}, 15\ns_cbranch_scc1 {L}")
            xdma(1 - par)
            a.label(L)
            rd = lambda s: [a.ds(f"ds_read_b128 {vr(vX(s,mt),4)}, v5 offset:{par*32768 + s*2048 + mt*1024}", ("x", s)) for mt in range(2)]
            rd(0); rd(1)
            jobs = [] if first else epilogue(1 - par)
            for s in range(16):
                if s + 2 < 16: rd(s + 2)
                a.wait_ds(("x", s))
                for mt in range(2):
                    for f in range(4):
                        d = acc(par, mt, f)
                        c = (vr(vBias + 4 * f, 4) if kind == "H" else "0") if s == 0 else vr(d, 4)
                        if kind == "V": a(f"v_mfma_f32_16x16x32_bf16 {vr(d,4)}, {vr(vX(s,mt),4)}, {ar(W(f,s),4)}, {c}")
                        else: a(f"v_mfma_f32_16x16x32_bf16 {vr(d,4)}, {ar(W(f,s),4)}, {vr(vX(s,mt),4)}, {c}")
                        if jobs and s >= 1: jobs.pop(0)()
            assert not jobs
            a(f"s_add_u32 s{sN}, s{sN}, 1")
        a(f"s_mov_b32 s{sN}, 0")
        segment(0, True)
        a.label(f"G1_LOOP_{kind}")
        segment(1, False)
        a(f"s_cmp_ge_u32 s{sN}, 16\ns_cbranch_scc1 G1_END_{kind}")
        segment(0, False)
        a(f"s_branch G1_LOOP_{kind}")
        a.label(f"G1_END_{kind}")
        a.nop(8)
        for j in epilogue(1): j()
        a.wait_vm_all(True)
        a("s_barrier")
        L = a.newlabel("G1F")
        a(f"s_cmp_lg_u32 s{sW}, 0\ns_cbranch_scc1 {L}")
        flag_store(a, f"s{sFl}", 16, 8)
        a.label(L)
        a.vmq = []; a.dsq = []
        if kind != "H": a("s_branch G1_DONE")
    a.label("G1_DONE")

def attention(a):
    sSeg, sQ, sKm, sVm, sO, sCh, sAt, sCnt = 18, 19, 20, 21, 22, 23, 24, 25
    sCC = 30
    sMask = 40
    c = (128 ** -0.5) * math.log2(math.e)
    a(f"""
    s_mov_b32 s{sCC}, {fbits(c):#x}
    s_mov_b32 s{sCC+1}, {fbits(c):#x}
    v_lshlrev_b32 v4, 4, v0
    v_lshlrev_b32 v5, 3, v0
    v_and_b32 v6, 15, v0
    v_lshrrev_b32 v7, 4, v0
    v_lshlrev_b32 v7, 2, v7
    """)
    for r in range(4):
        a(f"v_add_u32 v8, {r}, v7\nv_cmp_le_u32 s[{sMask+2*r}:{sMask+2*r+1}], v8, v6")
    a(f"""
    s_lshr_b32 s{sA}, s{sRole}, 1
    s_lshl_b32 s{sA}, s{sA}, 2
    s_add_u32 s{sA}, s{sA}, s{sW}
    s_lshl_b32 s{sA}, s{sA}, 2
    s_add_u32 s{sA}, s{sA}, {G1F}
    v_min_u32 v8, 2, v0
    v_lshlrev_b32 v8, 8, v8
    """)
    poll_ge(a, f"buffer_load_dword v9, v8, {WS}, s{sA} offen sc1", [9], 16, "QKV")
    a(f"""
    s_mov_b32 s{sSeg}, s{sW}
    s_lshl_b32 s{sA}, s{sW}, 5
    s_add_u32 s{sA}, s{sA}, s{sRole}
    s_lshl_b32 s{sQ}, s{sA}, 13
    s_lshl_b32 s{sKm}, s{sA}, 12
    s_add_u32 s{sKm}, s{sKm}, {KMEM}
    s_lshl_b32 s{sVm}, s{sA}, 11
    s_add_u32 s{sVm}, s{sVm}, {VMEM}
    s_lshl_b32 s{sO}, s{sW}, 18
    s_lshl_b32 s{sB}, s{sRole}, 12
    s_add_u32 s{sO}, s{sO}, s{sB}
    s_add_u32 s{sO}, s{sO}, {OIMG}
    s_lshl_b32 s{sCh}, s{sRole}, 2
    s_add_u32 s{sCh}, s{sCh}, {CHF}
    s_lshl_b32 s{sAt}, s{sA}, 2
    s_add_u32 s{sAt}, s{sAt}, {ATF}
    s_mov_b32 s{sCnt}, 0
    v_mov_b32 v10, 0
    """)
    vQ, vK, vV, vKM, vVM = 16, 48, 80, 112, 128
    ONE = 136
    S = lambda qt, kt: 140 + (qt * 3 + kt) * 4
    PX = lambda qt: 164 + qt * 4
    PM = lambda qt: 172 + qt * 4
    L_ = lambda qt: 180 + qt * 4
    O = lambda qt, ft: 188 + (qt * 8 + ft) * 4
    for r in range(4): a(f"v_mov_b32 v{ONE+r}, 0x3f803f80")
    for qt in range(2): a(f"v_mov_b32 v{PM(qt)+1}, 0\nv_mov_b32 v{PM(qt)+2}, 0")
    mf = lambda d, A, B, c_: a(f"v_mfma_f32_16x16x32_bf16 {vr(d,4)}, {vr(A,4)}, {vr(B,4)}, {c_}")
    mf16 = lambda d, A, B, c_: a(f"v_mfma_f32_16x16x16_bf16 {vr(d,4)}, {vr(A,2)}, {vr(B,2)}, {c_}")
    a.label("AT_LOOP")
    for (base, img) in ((vK, KIMG), (vQ, QIMG), (vV, VIMG)):
        for hf in range(2):
            a(f"s_add_u32 s{sA}, s{sQ}, {img + hf*4096}")
            for i in range(4):
                a.vm(f"buffer_load_dwordx4 {vr(base+16*hf+4*i,4)}, v4, {WS}, s{sA} offen offset:{i*1024} sc1", ("in", base))
    a.wait_vm(("in", vQ))
    for (qt, kt) in ((0, 0), (1, 0), (1, 1)):
        for s in range(4):
            mf(S(qt, kt), vK + 16 * kt + 4 * s, vQ + 16 * qt + 4 * s, "0" if s == 0 else vr(S(qt, kt), 4))
    a(f"s_add_u32 s{sB}, s{sSeg}, 1")
    poll_ge(a, f"buffer_load_dword v9, v10, {WS}, s{sCh} offen sc1", [9], f"s{sB}", "CH")
    for i in range(4): a.vm(f"buffer_load_dwordx4 {vr(vKM+4*i,4)}, v4, {WS}, s{sKm} offen offset:{i*1024} sc1", "km")
    for i in range(4): a.vm(f"buffer_load_dwordx2 {vr(vVM+2*i,2)}, v5, {WS}, s{sVm} offen offset:{i*512} sc1", "vm")
    a("v_mov_b32 v11, 0xff800000")
    for (qt, kt) in ((0, 0), (1, 1)):
        for r in range(4):
            a(f"v_cndmask_b32 v{S(qt,kt)+r}, v11, v{S(qt,kt)+r}, s[{sMask+2*r}:{sMask+2*r+1}]")
    a(f"v_max3_f32 v12, v{S(0,0)}, v{S(0,0)+1}, v{S(0,0)+2}\nv_max_f32 v12, v12, v{S(0,0)+3}")
    a(f"v_max3_f32 v14, v{S(1,0)}, v{S(1,0)+1}, v{S(1,0)+2}\nv_max3_f32 v14, v14, v{S(1,0)+3}, v{S(1,1)}")
    a(f"v_max3_f32 v14, v14, v{S(1,1)+1}, v{S(1,1)+2}\nv_max_f32 v14, v14, v{S(1,1)+3}")
    a.wait_vm("km")
    for qt in range(2):
        for s in range(4):
            mf(S(qt, 2), vKM + 4 * s, vQ + 16 * qt + 4 * s, "0" if s == 0 else vr(S(qt, 2), 4))
    a.nop(8)
    for qt in range(2):
        a(f"v_max3_f32 v{12+2*qt}, v{12+2*qt}, v{S(qt,2)+2}, v{S(qt,2)+3}")
    for op in ("v_permlane32_swap_b32", "v_permlane16_swap_b32"):
        a(f"v_mov_b32 v13, v12\nv_mov_b32 v15, v14\ns_nop 0\n{op} v12, v13\n{op} v14, v15\nv_max_f32 v12, v12, v13\nv_max_f32 v14, v14, v15")
    a(f"v_mul_f32 v12, s{sCC}, v12\nv_mul_f32 v14, s{sCC}, v14")
    for qt in range(2):
        m = 12 + 2 * qt
        prs = [S(qt, 2) + 2, S(qt, 0), S(qt, 0) + 2] + ([S(qt, 1), S(qt, 1) + 2] if qt else [])
        for r in prs:
            a(f"v_pk_fma_f32 {vr(r,2)}, {vr(r,2)}, s[{sCC}:{sCC+1}], {vr(m,2)} op_sel_hi:[1,1,0] neg_lo:[0,0,1] neg_hi:[0,0,1]")
        for r in prs: a(f"v_exp_f32 v{r}, v{r}\nv_exp_f32 v{r+1}, v{r+1}")
        a.nop(1)
        a(f"v_cvt_pk_bf16_f32 v{PM(qt)}, v{prs[0]}, v{prs[0]+1}\nv_cvt_pk_bf16_f32 v{PM(qt)+3}, v{prs[0]}, v{prs[0]+1}")
        for k, r in enumerate(prs[1:]): a(f"v_cvt_pk_bf16_f32 v{PX(qt)+k}, v{r}, v{r+1}")
    a.wait_vm_all()
    a.nop(2)
    for qt in range(2):
        mf16(L_(qt), ONE, PM(qt), "0")
        for ft in range(8): mf16(O(qt, ft), vVM + 2 * (ft >> 1), PM(qt) + 2 * (ft & 1), "0")
        m2 = mf if qt else mf16
        m2(L_(qt), ONE, PX(qt), vr(L_(qt), 4))
        for ft in range(8): m2(O(qt, ft), vV + 4 * ft, PX(qt), vr(O(qt, ft), 4))
    for qt in range(2):
        if qt: a.nop(4)
        a(f"v_rcp_f32 v12, v{L_(qt)}")
        if qt: a(f"s_add_u32 s{sA}, s{sO}, {128*1024}")
        else: a.nop(1)
        for pr in range(4):
            d = vK + 16 * qt + 4 * pr
            for h_ in range(2):
                for k in range(2):
                    r = O(qt, 2 * pr + h_) + 2 * k
                    a(f"v_pk_mul_f32 {vr(r,2)}, {vr(r,2)}, v[12:13] op_sel_hi:[1,0]")
                    a(f"v_cvt_pk_bf16_f32 v{d+2*h_+k}, v{r}, v{r+1}")
            a.vm(f"buffer_store_dwordx4 {vr(d,4)}, v4, {WS}, s{sA if qt else sO} offen offset:{pr*1024} sc1", "o")
    a(f"s_add_u32 s{sCnt}, s{sCnt}, 1")
    a.wait_vm_all()
    flag_store(a, f"s{sAt}", f"s{sCnt}", 8)
    a(f"""
    s_add_u32 s{sQ}, s{sQ}, {4*32*8192}
    s_add_u32 s{sKm}, s{sKm}, {4*32*4096}
    s_add_u32 s{sVm}, s{sVm}, {4*32*2048}
    s_add_u32 s{sO}, s{sO}, {4*2*128*1024}
    s_add_u32 s{sSeg}, s{sSeg}, 4
    s_cmp_lt_u32 s{sSeg}, 64
    s_cbranch_scc1 AT_LOOP
    """)
    a.vmq = []; a.dsq = []

def gemm2(a):
    sCs, sU, sO, sH_, sX, sN, sPar = 18, 19, 20, 21, 22, 23, 24
    srd(a, 12, "Wo", 4096 * 1024)
    srd(a, 48, "w2", 1792 * 1024)
    srd(a, 52, "x", 2048 * 1024)
    srd(a, 56, "out", 2048 * 1024)
    srd(a, 60, "b2", 1024)
    a(f"""
    s_and_b32 s{sCs}, s{sRole}, 15
    s_lshr_b32 s{sU}, s{sRole}, 4
    v_and_b32 v100, 15, v0
    v_lshrrev_b32 v101, 4, v0
    v_and_b32 v102, 3, v0
    v_bfe_u32 v103, v0, 2, 2
    v_lshrrev_b32 v4, 2, v0
    v_lshlrev_b32 v4, 10, v4
    v_lshl_add_u32 v4, v102, 4, v4
    s_lshl_b32 s{sA}, s{sCs}, 6
    v_add_u32 v104, s{sA}, v4
    v_lshl_add_u32 v4, v101, 2, v103
    v_lshlrev_b32 v4, 6, v4
    v_lshl_add_u32 v4, v102, 4, v4
    s_mul_i32 s{sA}, s{sW}, 32768
    v_add_u32 v105, s{sA}, v4
    s_waitcnt lgkmcnt(0)
    """)
    Wo_ = lambda s, T: ar(8 * s + 4 * T, 4)
    VW2 = 144
    W2_ = lambda s, T: vr(VW2 + 8 * s + 4 * T, 4)
    chunks = [("o", c, 8) for c in range(8)] + [("2", c, 8) for c in range(3)] + [("2", 3, 4)]
    a(f"s_lshl_b32 s{sN}, s{sW}, 20\ns_mul_i32 s{sB}, s{sW}, {448*1024}")
    def issue(n):
        m, c, cnt = chunks[n]
        for i in range(cnt):
            a(f"s_add_u32 m0, s{sA}, {(n%4)*8192 + i*1024}\ns_nop 0")
            so = sN if m == "o" else sB
            a.vm(f"buffer_load_dwordx4 v104, {'s[12:15]' if m == 'o' else 's[48:51]'}, s{so} offen lds", ("w", n))
            a(f"s_add_u32 s{so}, s{so}, {16*1024}")
    for n in range(4): issue(n)
    for n, (m, c, cnt) in enumerate(chunks):
        a.wait_vm(("w", n))
        for s_ in range(cnt // 2):
            for T in range(2):
                for p in range(2):
                    base = (8 * (4 * c + s_) + 4 * T + 2 * p)
                    dst = ar(base, 2) if m == "o" else vr(VW2 + base, 2)
                    a.ds(f"ds_read_b64_tr_b16 {dst}, v105 offset:{(n%4)*8192 + (32*s_+16*p)*64 + T*8}")
        a.wait_ds_all()
        if n + 4 < len(chunks): issue(n + 4)
    vB = 8
    a(f"""
    v_lshlrev_b32 v4, 4, v101
    s_lshl_b32 s{sA}, s{sCs}, 6
    buffer_load_dwordx4 v[16:19], v4, s[60:63], s{sA} offen
    v_lshl_add_u32 v6, v100, 10, v4
    v_add_u32 v6, s{sA}, v6
    v_lshlrev_b32 v4, 4, v0
    v_add_u32 v5, 131072, v4
    v_and_b32 v7, 7, v0
    v_lshlrev_b32 v7, 2, v7
    s_waitcnt vmcnt(0)
    """)
    for k in range(4): a(f"v_lshlrev_b32 v{vB+2*k}, 16, v{16+k}\nv_and_b32 v{vB+2*k+1}, 0xffff0000, v{16+k}")
    a(f"v_min_u32 v16, 27, v0\nv_lshlrev_b32 v16, 2, v16\ns_mov_b32 s{sA}, {G1F + 48*16}")
    poll_ge(a, f"buffer_load_dword v17, v16, {WS}, s{sA} offen sc1", [17], 16, "H")
    a(f"s_mov_b32 s{sPar}, 0")
    a("s_barrier")
    NR = 24
    vR = lambda k: 40 + 4 * (k % NR)
    AC = 24
    a.label("G2_LOOP")
    a(f"""
    s_mul_i32 s{sH_}, s{sU}, {56*1024}
    s_mul_i32 s{sA}, s{sW}, {14*1024}
    s_add_u32 s{sH_}, s{sH_}, s{sA}
    s_add_u32 s{sH_}, s{sH_}, {HIMG}
    s_lshl_b32 s{sO}, s{sU}, 17
    s_lshl_b32 s{sA}, s{sW}, 15
    s_add_u32 s{sO}, s{sO}, s{sA}
    s_add_u32 s{sO}, s{sO}, {OIMG}
    s_lshl_b32 s{sX}, s{sU}, 14
    """)
    a.vm(f"buffer_load_dwordx4 v[20:23], v6, s[52:55], s{sX} offen", "x")
    def ld(k, sbase, n):
        if n and n % 4 == 0: a(f"s_add_u32 s{sbase}, s{sbase}, 4096")
        a.vm(f"buffer_load_dwordx4 {vr(vR(k),4)}, v4, {WS}, s{sbase} offen offset:{(n%4)*1024} sc1", ("a", k))
    for n in range(14): ld(n, sH_, n)
    for n in range(14):
        a.wait_vm(("a", n))
        for T in range(2):
            a(f"v_mfma_f32_16x16x32_bf16 {vr(AC+4*T,4)}, {W2_(n,T)}, {vr(vR(n),4)}, {'0' if n == 0 else vr(AC+4*T,4)}")
    a(f"""
    s_lshr_b32 s{sB}, s{sU}, 1
    s_and_b32 s{sA}, s{sB}, 3
    s_lshl_b32 s{sA}, s{sA}, 7
    s_lshl_b32 s{sC_}, s{sW}, 5
    s_add_u32 s{sA}, s{sA}, s{sC_}
    s_add_u32 s{sA}, s{sA}, {ATF}
    s_lshr_b32 s{sB}, s{sB}, 2
    s_add_u32 s{sB}, s{sB}, 1
    """)
    poll_ge(a, f"buffer_load_dword v17, v7, {WS}, s{sA} offen sc1", [17], f"s{sB}", "AT")
    for n in range(NR): ld(n, sO, n)
    for n in range(32):
        a.wait_vm(("a", n))
        for T in range(2):
            a(f"v_mfma_f32_16x16x32_bf16 {vr(AC+4*T,4)}, {Wo_(n,T)}, {vr(vR(n),4)}, {vr(AC+4*T,4)}")
        if n + NR < 32: ld(n + NR, sO, n + NR)
    a(f"s_lshl_b32 s{sA}, s{sW}, 11\ns_add_u32 s{sA}, s{sA}, s{sPar}\nv_add_u32 v16, s{sA}, v5")
    a.nop(6)
    a.ds(f"ds_write_b128 v16, {vr(AC,4)}")
    a.ds(f"ds_write_b128 v16, {vr(AC+4,4)} offset:1024")
    a.wait_ds_all()
    a("s_barrier")
    a(f"s_cmp_lg_u32 s{sW}, 0\ns_cbranch_scc1 G2_NEXT")
    for w_ in range(1, 4):
        a.ds(f"ds_read_b128 v[32:35], v16 offset:{w_*2048}")
        a.ds(f"ds_read_b128 v[36:39], v16 offset:{w_*2048+1024}")
        a.wait_ds_all()
        for k in range(4): a(f"v_pk_add_f32 {vr(AC+2*k,2)}, {vr(AC+2*k,2)}, {vr(32+2*k,2)}")
    for k in range(4):
        a(f"v_lshlrev_b32 v32, 16, v{20+k}\nv_and_b32 v33, 0xffff0000, v{20+k}")
        a(f"v_pk_add_f32 {vr(AC+2*k,2)}, {vr(AC+2*k,2)}, {vr(vB+2*k,2)}")
        a(f"v_pk_add_f32 {vr(AC+2*k,2)}, {vr(AC+2*k,2)}, v[32:33]")
        a(f"v_cvt_pk_bf16_f32 v{36+k}, v{AC+2*k}, v{AC+2*k+1}")
    a(f"buffer_store_dwordx4 v[36:39], v6, s[56:59], s{sX} offen")
    a.label("G2_NEXT")
    a(f"""
    s_xor_b32 s{sPar}, s{sPar}, 8192
    s_add_u32 s{sU}, s{sU}, {NSETS}
    s_cmp_lt_u32 s{sU}, 128
    s_cbranch_scc1 G2_LOOP
    """)
    a.vmq = []; a.dsq = []
```

```python
import sys
from asm import *
from layout import *
import chain as C
import workers as Wk
NAME = "parallel_sum__memory_aug_recurrent_mem_tr__dense_activation_squared_relu__prompt"
CH = dict(pre_bar=2, v_0=2, v_pre=4, o_pre=2, dlyA=48, dlyB=32, zpre=1, nrA=3, chB=1, bound=1 << 15, kx_at='X', pc=1,
          depA=2, depB=2, gapA=24, gapB=24, x0=14, late_fill=1)
sDB = 4
sInit, sReady, sMode, sXcc = 84, 85, 86, 87
sA, sB, sC_, sD = Wk.sA, Wk.sB, Wk.sC_, Wk.sD
WS = Wk.WS
DB = f"s[{sDB}:{sDB+3}]"
ROLE_LDS = 163840 - 16
MODE_BOUND = 2000

def wait_init(a, v=2):
    L = a.newlabel("INIT")
    a(f"s_cmp_lg_u32 s{sInit}, 0\ns_cbranch_scc1 {L}")
    a(f"v_mov_b32 v{v}, {D_INIT}")
    Wk.poll_ge(a, f"buffer_load_dword v{v+1}, v{v}, {DB}, 0 offen sc1", [v + 1], 256, "INIT")
    a(f"s_mov_b32 s{sInit}, 1")
    a.label(L)

def atomic(a, op, off, val, dst, cmp=None):
    a(f"s_mov_b64 exec, 1\nv_mov_b32 v2, {val}\nv_mov_b32 v4, {off}")
    if cmp is not None:
        a(f"v_mov_b32 v3, {cmp}\nbuffer_atomic_cmpswap v[2:3], v4, {DB}, 0 offen sc0")
    else:
        a(f"buffer_atomic_{op} v2, v4, {DB}, 0 offen sc0")
    a(f"s_waitcnt vmcnt(0)\nv_readfirstlane_b32 s{dst}, v2\ns_mov_b64 exec, -1\ns_nop 3")

def claim(a, name, sRes):
    a.label(f"CLAIM_{name}")
    a(f"s_lshl_b32 s{sC_}, 1, s{sA}")
    atomic(a, "or", D_MASK, f"s{sC_}", sB)
    a(f"s_and_b32 s{sD}, s{sB}, s{sC_}\ns_or_b32 s{sB}, s{sB}, s{sC_}\ns_mov_b32 s{sRes}, s{sA}")
    a(f"s_cmp_eq_u32 s{sD}, 0\ns_cbranch_scc1 CLAIM_{name}_E")
    a(f"s_mov_b32 s{sRes}, -1\ns_cmp_eq_u32 s{sB}, -1\ns_cbranch_scc1 CLAIM_{name}_E")
    a(f"s_ff0_i32_b32 s{sA}, s{sB}\ns_branch CLAIM_{name}")
    a.label(f"CLAIM_{name}_E")

def bcast(a, s):
    L = a.newlabel("BC")
    a(f"v_mov_b32 v4, {ROLE_LDS}")
    a(f"s_cmp_lg_u32 s{Wk.sW}, 0\ns_cbranch_scc1 {L}\nv_mov_b32 v2, s{s}\nds_write_b32 v4, v2\ns_waitcnt lgkmcnt(0)")
    a.label(L)
    a(f"s_barrier\nds_read_b32 v2, v4\ns_waitcnt lgkmcnt(0)\nv_readfirstlane_b32 s{s}, v2\ns_barrier")

def gen(P=CH, diag=False, force_slow=False):
    a = Asm()
    sR = Wk.sRole
    a(f"""
    s_cmp_ge_u32 s2, 256
    s_cbranch_scc1 L_END
    s_load_dwordx2 s[{Wk.sWS}:{Wk.sWS+1}], s[0:1], {KA['ws']}
    s_load_dwordx2 s[{sDB}:{sDB+1}], s[0:1], {KA['dbg']}
    s_getreg_b32 s{sXcc}, hwreg(HW_REG_XCC_ID, 0, 4)
    s_mov_b32 s{Wk.sWS+2}, {WS_BYTES}
    s_mov_b32 s{Wk.sWS+3}, 0x20000
    s_mov_b32 s{sDB+2}, 256
    s_mov_b32 s{sDB+3}, 0x20000
    s_mov_b32 s{Wk.sDead}, 0
    s_mov_b32 s{sInit}, 0
    v_mov_b32 v255, v0
    v_lshrrev_b32 v1, 6, v0
    v_lshlrev_b32 v8, 4, v0
    v_readfirstlane_b32 s{Wk.sW}, v1
    v_and_b32 v0, 63, v0
    v_mov_b32 v12, -1
    v_mov_b32 v13, -1
    v_mov_b32 v14, -1
    v_mov_b32 v15, -1
    """)
    if diag: a("s_memrealtime s[90:91]")
    a(f"""
    s_lshl_b32 s3, s2, 12
    s_add_u32 s3, s3, {PART}
    s_waitcnt lgkmcnt(0)
    s_mov_b32 s{sR}, -1
    s_cmp_lg_u32 s{Wk.sW}, 0
    s_cbranch_scc1 L_NOCLAIM
    s_cmp_lg_u32 s{sXcc}, {9 if force_slow else 0}
    s_cbranch_scc1 L_NOCLAIM
    s_bfe_u32 s{sA}, s2, 0x50003
    """)
    claim(a, "A", sR)
    a(f"s_cmp_eq_u32 s{sR}, -1\ns_cbranch_scc1 L_NOCLAIM\ns_cmp_lg_u32 s{sB}, -1\ns_cbranch_scc1 L_NOCLAIM")
    atomic(a, "cmpswap", D_MODE, 1, sB, cmp=0)
    a.label("L_NOCLAIM")
    a(f"""
    buffer_store_dwordx4 v[12:15], v8, {WS}, s3 offen sc1
    s_cmp_lg_u32 s{Wk.sW}, 0
    s_cbranch_scc1 L_INIT1
    s_lshl_b32 s3, s2, 7
    s_add_u32 s3, s3, {MBUF}
    s_mov_b64 exec, 0xff
    buffer_store_dwordx4 v[12:15], v8, {WS}, s3 offen sc1
    s_lshl_b32 s3, s2, 4
    s_add_u32 s3, s3, {FLG}
    v_mov_b32 v16, 0
    v_mov_b32 v17, 0
    v_mov_b32 v18, 0
    v_mov_b32 v19, 0
    s_mov_b64 exec, 1
    buffer_store_dwordx4 v[16:19], v8, {WS}, s3 offen sc1
    s_mov_b64 exec, -1
    s_cmp_lg_u32 s{sR}, -1
    s_cbranch_scc1 L_MEMB
    """)
    atomic(a, "add", D_T1, 1, sR)
    a(f"s_add_u32 s{sR}, s{sR}, 32")
    a.label("L_MEMB")
    a.label("L_INIT1")
    a("s_waitcnt vmcnt(0)")
    bcast(a, sR)
    a(f"s_cmp_lg_u32 s{Wk.sW}, 0\ns_cbranch_scc1 L_INIT2")
    a(f"s_mov_b64 exec, 1\nv_mov_b32 v2, 1\nv_mov_b32 v4, {D_INIT}\nbuffer_atomic_add v2, v4, {DB}, 0 offen\ns_mov_b64 exec, -1")
    a.label("L_INIT2")
    a(f"s_cmp_lt_u32 s{sR}, 32\ns_cbranch_scc1 L_CHAIN")
    a(f"s_sub_u32 s{sR}, s{sR}, 32\ns_cmp_ge_u32 s{sR}, 220\ns_cbranch_scc1 L_PH2")
    Wk.gemm1(a, wait_init)
    a.label("L_PH2")
    if diag: a("s_memrealtime s[92:93]")
    wait_init(a)
    a(f"s_cmp_lg_u32 s{Wk.sW}, 0\ns_cbranch_scc1 L_PH2B")
    a(f"s_mov_b32 s{sC_}, 0\nv_mov_b32 v4, {D_MODE}")
    a.label("L_MODE")
    a(f"buffer_load_dword v2, v4, {DB}, 0 offen sc1\ns_add_u32 s{sC_}, s{sC_}, 1\ns_waitcnt vmcnt(0)\nv_readfirstlane_b32 s{sMode}, v2\ns_nop 3")
    a(f"s_cmp_lg_u32 s{sMode}, 0\ns_cbranch_scc1 L_MODEOK\ns_sleep 2\ns_cmp_lt_u32 s{sC_}, {MODE_BOUND}\ns_cbranch_scc1 L_MODE")
    atomic(a, "cmpswap", D_MODE, 2, sMode, cmp=0)
    a(f"s_cmp_eq_u32 s{sMode}, 0\ns_cselect_b32 s{sMode}, 2, s{sMode}")
    a.label("L_MODEOK")
    a(f"s_cmp_lg_u32 s{sMode}, 2\ns_cbranch_scc1 L_TICK2\ns_mov_b32 s{sA}, 0")
    claim(a, "B", sR)
    a(f"s_cmp_lg_u32 s{sR}, -1\ns_cbranch_scc1 L_PH2B")
    a.label("L_TICK2")
    atomic(a, "add", D_T2, 1, sR)
    a(f"s_add_u32 s{sR}, s{sR}, 32")
    a.label("L_PH2B")
    bcast(a, sR)
    a(f"s_cmp_lt_u32 s{sR}, 32\ns_cbranch_scc1 L_CHAIN")
    a(f"s_sub_u32 s{sR}, s{sR}, 32\ns_cmp_ge_u32 s{sR}, 32\ns_cbranch_scc1 L_G2")
    Wk.attention(a)
    a("s_branch L_FIN")
    a.label("L_G2")
    a(f"s_sub_u32 s{sR}, s{sR}, 32\ns_cmp_ge_u32 s{sR}, {16*NSETS}\ns_cbranch_scc1 L_FIN")
    Wk.gemm2(a)
    a("s_branch L_FIN")
    a.label("L_CHAIN")
    a("v_mov_b32 v0, v255")
    C.prologue(a, P, diag)
    wait_init(a, 10)
    a(f"v_mov_b32 v10, {D_MODE}")
    Wk.poll_ge(a, f"buffer_load_dword v11, v10, {DB}, 0 offen sc1", [11], 1, "MODE")
    a(f"v_readfirstlane_b32 s{sMode}, v11\ns_mov_b32 s{sReady}, 0")
    sChf, sG1 = 88, 89
    a(f"s_lshl_b32 s{sChf}, s{C.sH}, 2\ns_add_u32 s{sChf}, s{sChf}, {CHF}")
    a(f"s_lshr_b32 s{sG1}, s{C.sH}, 1\ns_lshl_b32 s{sG1}, s{sG1}, 4\ns_add_u32 s{sG1}, s{sG1}, {G1F}")
    if diag:
        for k in range(20, 30): a(f"s_mov_b32 s{C.sTS+k}, 0")
        a("s_memrealtime s[92:93]\ns_memtime s[96:97]")
    stubs = []
    def ready(a, w, tag, first):
        L = a.newlabel("RDY")
        if first: a(f"s_mov_b32 s{C.sStep}, -1")
        a(f"s_add_u32 s{C.sT0}, s{C.sStep}, 1\ns_min_u32 s{C.sT0}, s{C.sT0}, 63\ns_cmp_ge_u32 s{C.sT0}, s{sReady}\ns_cbranch_scc1 {L}_S")
        a.label(L)
        stubs.append(L)
    def flag(a):
        a(f"s_sub_u32 s{C.sT0}, s{C.sStep}, 1\ns_max_i32 s{C.sT0}, s{C.sT0}, 0")
        Wk.flag_store(a, f"s{sChf}", f"s{C.sT0}", 10)
    def done(a, w):
        a("s_waitcnt vmcnt(0)\ns_barrier")
        if w == 0: Wk.flag_store(a, f"s{sChf}", 64, 10)
        a.vmq = []
        a("s_branch L_FIN")
        for L in stubs:
            a.label(L + "_S")
            a(f"s_lshr_b32 s{C.sT0}, s{C.sT0}, 2\ns_add_u32 s{C.sT0}, s{C.sT0}, 1")
            a(f"v_lshrrev_b32 v10, 3, v{C.vL8}\nv_and_b32 v11, 3, v10\nv_bfe_u32 v10, v10, 2, 1\nv_lshlrev_b32 v10, 8, v10\nv_lshl_add_u32 v10, v11, 2, v10")
            Wk.poll_ge(a, f"buffer_load_dword v11, v10, {WS}, s{sG1} offen sc1", [11], f"s{C.sT0}", "KV", sleep=0)
            a(f"v_cmp_gt_u32 vcc, 16, v11\ns_lshl_b32 s{sReady}, s{C.sT0}, 2\ns_cmp_eq_u64 vcc, 0\ns_cselect_b32 s{sReady}, 64, s{sReady}")
            a(f"s_branch {L}")
        stubs.clear()
    P = dict(P, hooks=dict(ready=ready, flag=flag, done=done))
    a(f"s_cmp_eq_u32 s{sMode}, 1\ns_cbranch_scc0 L_SLOW")
    for st in ("", "sc1"):
        if st: a.label("L_SLOW")
        t = "s" if st else "f"
        for w in range(1, 4): a(f"s_cmp_eq_u32 s{C.sW}, {w}\ns_cbranch_scc1 CH_W{w}{t}")
        for w in range(4):
            a.label(f"CH_W{w}{t}")
            C.loop(a, w, st, P, diag)
    a.label("L_FIN")
    if diag:
        a("s_memrealtime s[94:95]\ns_memtime s[98:99]\ns_waitcnt lgkmcnt(0)")
        a(f"s_lshl_b32 s3, s2, 2\ns_add_u32 s3, s3, s{Wk.sW}\ns_lshl_b32 s3, s3, 7\ns_add_u32 s3, s3, {DBG}")
        vals = [C.sTS + 20 + k for k in range(10)] + [90, 92, 94, 96, 98, sR, sXcc, Wk.sDead]
        for i, sg in enumerate(vals):
            a(f"v_mov_b32 v20, s{sg}\nv_mov_b32 v21, {4*i}\nbuffer_store_dword v20, v21, {WS}, s3 offen")
    a("s_waitcnt vmcnt(0)")
    a.label("L_END")
    return a.text()

def wrap(body):
    ref = open(f"cdna_kernels/{NAME}.s.ref").read().split("\n")
    head = [l for l in ref if l.startswith(";") and "@launch" not in l]
    return "\n".join(head) + f"""
; @launch grid=(256,1,1) block=(256,1,1) lds=163840
.amdgcn_target "amdgcn-amd-amdhsa--gfx950"
.text
.globl {NAME}_kernel
.p2align 8
.type {NAME}_kernel,@function
{NAME}_kernel:
{body}s_endpgm
.section .rodata,"a"
.p2align 6
.amdhsa_kernel {NAME}_kernel
  .amdhsa_next_free_vgpr 512
  .amdhsa_next_free_sgpr 102
  .amdhsa_accum_offset 256
  .amdhsa_group_segment_fixed_size 0
  .amdhsa_kernarg_size 120
  .amdhsa_user_sgpr_count 2
  .amdhsa_user_sgpr_kernarg_segment_ptr 1
  .amdhsa_system_sgpr_workgroup_id_x 1
.end_amdhsa_kernel
"""
if __name__ == "__main__":
    t = gen()
    hz = check(t)
    for h in hz[:12]: print(h)
    out = sys.argv[1] if len(sys.argv) > 1 else f"cdna_kernels/{NAME}.s"
    open(out, "w").write(wrap(t))
    print("lines", len(t.split("\n")), "hazards", len(hz))
```

```python
from asm import *
from layout import *
import math

MISC = 131072
M_OFF = 0
X_OFF = 8192
KX_OFF = 16384
O_OFF = 0
XS = 1088
sWS = 8
sTMP = 12
sH, sW, sStep = 16, 17, 18
sPst, sPld, sTag, sMpub, sMpoll, sMclr = 19, 20, 21, 22, 23, 24
sVx, sKx, sKm, sVm = 25, 26, 27, 28
sC = 30
sT0, sT1, sT2, sT3 = 32, 33, 34, 35
sCnt = 36
sLO8 = 38
sDBG = 40
sTS = 44
vIDX, vKx, vM16, vRing, vPst, vMpub, vXw, vXr, vOr = 1, 2, 3, 4, 5, 6, 7, 8, 9
vL8 = 0
vNEG = 10
vVA0 = 12
RA_OFF = 12544
vVX = 16
vPM = 24
vACC = 28
vA = 44
vRING = 76
vT = 124
vWK = 128
NRING = 6
WQ_SLOT = [2, 3, 1, 0]
def ringreg(i): return vRING + 8 * (i % NRING)
KXREG = [vRING + 8*4, vRING + 8*5, vRING + 0, vRING + 8]
def kx(kt, s): return KXREG[kt*2 + (s >> 1)] + 4 * (s & 1)
vXF = vRING + 16
def wv(t, s): return 8 * (t * 8 + s)
def wo(d, s): return 128 + 8 * (d * 4 + s)
def wk(t, s): return vWK + 8 * (t * 8 + s)

def wq_lds_imm(i):
    t, s = i >> 3, i & 7
    return WQ_SLOT[s >> 1] * 8192 + ((s & 1) * 2 + t) * 2048

def stamp(a, k, diag):
    if diag: a(f"s_memtime s[{sTS+2*k}:{sTS+2*k+1}]")

def prologue(a, P, diag=False):
    a(f"v_lshrrev_b32 v10, 6, v0\nv_and_b32 v0, 63, v0\nv_readfirstlane_b32 s{sW}, v10\ns_nop 3")
    prologue_a(a, P, True); prologue_b(a, P)

def prologue_a(a, P, dma):
    WNT[0] = P.get("wnt", "")
    a(f"""
    v_and_b32 v100, 15, v0            ; n
    v_lshrrev_b32 v101, 4, v0         ; g
    v_and_b32 v102, 3, v0             ; c
    v_bfe_u32 v103, v0, 2, 2          ; r''
    """)
    a(f"""
    v_and_b32 v10, 2, v0
    v_cmp_eq_u32 vcc, 0, v10
    v_mov_b32 v11, 0xeeee
    v_mov_b32 v104, 0x4444
    v_cndmask_b32 v{vIDX}, v11, v104, vcc
    v_lshlrev_b32 v10, 4, v0
    v_add_u32 v{vM16}, {MISC}, v10
    s_lshl_b32 s{sT0}, s{sW}, 15
    v_add_u32 v{vRing}, s{sT0}, v10
    v_and_b32 v11, 0x3d, v0
    v_lshlrev_b32 v11, 4, v11
    v_add_u32 v{vOr}, {MISC+O_OFF}, v11
    v_lshlrev_b32 v10, 14, v101
    v_lshrrev_b32 v11, 3, v100
    v_lshl_add_u32 v10, v11, 13, v10
    v_and_b32 v11, 7, v100
    v_lshl_add_u32 v{vPst}, v11, 4, v10
    v_lshlrev_b32 v10, 4, v102
    v_bfe_u32 v11, v0, 2, 1
    v_lshl_add_u32 v10, v11, 3, v10
    v_lshrrev_b32 v11, 1, v101
    v_lshl_add_u32 v10, v11, 2, v10
    v_and_b32 v11, 1, v101
    v_lshl_add_u32 v{vMpub}, v11, 8, v10
    v_add_u32 v{vKx}, {KX_OFF}, v{vM16}
    v_mul_u32_u24 v10, {XS}, v101
    v_lshl_add_u32 v10, v100, 3, v10
    s_lshl_b32 s{sT0}, s{sW}, 8
    s_add_u32 s{sT0}, s{sT0}, {MISC+X_OFF}
    v_add_u32 v{vXw}, s{sT0}, v10
    v_mul_u32_u24 v10, {XS}, v102
    v_lshrrev_b32 v11, 2, v0
    v_lshl_add_u32 v10, v11, 3, v10
    v_add_u32 v{vXr}, {MISC+X_OFF}, v10
    v_bfe_u32 v10, v100, 1, 2
    v_and_b32 v11, 1, v100
    v_lshlrev_b32 v11, 4, v11
    v_mov_b32 v104, 0x3f80
    v_lshlrev_b32 v104, v11, v104
    """)
    for k in range(4):
        a(f"v_cmp_eq_u32 vcc, {k}, v10\ns_nop 1\nv_cndmask_b32 v{112+k}, 0, v104, vcc")
    a(f"s_mov_b32 s{sLO8}, 0x00ff00ff\ns_mov_b32 s{sLO8+1}, 0x00ff00ff\ns_mov_b32 s{sB1M}, 0xcccccccc\ns_mov_b32 s{sB1M+1}, 0xcccccccc\ns_mov_b32 s{sONE}, 0x3f803f80")
    c = (128 ** -0.5) * math.log2(math.e)
    import struct
    cb = struct.unpack("<I", struct.pack("<f", c))[0]
    a(f"s_mov_b32 s{sC}, {cb:#x}\ns_mov_b32 s{sC+1}, {cb:#x}")
    a(f"""
    v_and_b32 v10, 1, v101
    v_lshlrev_b32 v10, 5, v10          ; 32*(g&1)
    v_lshrrev_b32 v11, 1, v101
    v_lshl_add_u32 v10, v11, 2, v10    ; +4*(g>>1)
    v_lshrrev_b32 v11, 1, v103
    v_lshl_add_u32 v10, v11, 4, v10    ; +16*(r>>1)
    v_and_b32 v11, 1, v103
    v_add_u32 v10, v10, v11            ; +(r&1)
    v_lshlrev_b32 v10, 6, v10
    v_lshl_add_u32 v10, v102, 3, v10   ; row*64 + c*8
    s_lshl_b32 s{sT0}, s{sW}, 15
    s_lshl_b32 s{sT1}, s{sW}, 13
    s_add_u32 s{sT1}, s{sT1}, {MISC}
    v_add_u32 v105, s{sT0}, v10
    v_add_u32 v106, s{sT1}, v10
    v_and_b32 v10, 1, v101
    v_lshlrev_b32 v10, 4, v10          ; 16*(g&1)
    v_lshrrev_b32 v11, 1, v101
    v_lshl_add_u32 v10, v11, 2, v10    ; +4*(g>>1)
    v_and_b32 v11, 1, v103
    v_add_u32 v10, v10, v11            ; +(r&1)
    v_lshlrev_b32 v10, 8, v10          ; *256
    v_lshrrev_b32 v11, 1, v103
    v_lshl_add_u32 v10, v11, 5, v10    ; +16*(r>>1)*2
    v_lshl_add_u32 v10, v102, 3, v10   ; +4*c*2
    v_add_u32 v107, s{sT0}, v10
    v_add_u32 v108, s{sT1}, v10
    v_lshrrev_b32 v10, 2, v0
    v_lshlrev_b32 v10, 13, v10
    v_lshl_add_u32 v10, v102, 4, v10
    s_lshl_b32 s{sT2}, s{sH}, 8
    s_lshl_b32 s{sT3}, s{sW}, 6
    s_add_u32 s{sT2}, s{sT2}, s{sT3}
    v_add_u32 v109, s{sT2}, v10
    ; wo: (l>>4)*1024 + (l&15)*16 + w*256 + h*131072
    v_lshlrev_b32 v10, 10, v101
    v_lshl_add_u32 v10, v100, 4, v10
    s_lshl_b32 s{sT2}, s{sH}, 17
    s_lshl_b32 s{sT3}, s{sW}, 8
    s_add_u32 s{sT2}, s{sT2}, s{sT3}
    v_add_u32 v110, s{sT2}, v10
    """)
    a(f"""
    s_load_dwordx4 s[48:51], s[0:1], {KA['Wq']}
    s_load_dwordx4 s[52:55], s[0:1], {KA['Wv']}
    s_load_dwordx2 s[56:57], s[0:1], {KA['mem0']}
    s_waitcnt lgkmcnt(0)
    """)
    src = {"q": 48, "k": 50, "v": 52, "o": 54}
    for m in "qkvo":
        a(f"s_mov_b32 s{srd[m]}, s{src[m]}\ns_mov_b32 s{srd[m]+1}, s{src[m]+1}\ns_mov_b32 s{srd[m]+2}, 0x400000\ns_mov_b32 s{srd[m]+3}, 0x20000")
    a(f"s_mov_b32 s{sB0}, s{sT0}\ns_mov_b32 s{sB1}, s{sT1}")
    a(f"""
    s_mov_b32 s12, s56
    s_mov_b32 s13, s57
    s_mov_b32 s14, 8192
    s_mov_b32 s15, 0x20000
    v_lshrrev_b32 v10, 2, v100
    v_lshlrev_b32 v10, 1, v10
    v_and_b32 v11, 1, v0
    v_add_u32 v10, v10, v11            ; row
    v_lshlrev_b32 v10, 10, v10
    v_bfe_u32 v11, v0, 1, 1
    v_lshl_add_u32 v10, v11, 5, v10
    v_lshl_add_u32 v10, v101, 3, v10
    s_lshl_b32 s{sT2}, s{sW}, 8        ; ksteps 2w, 2w+1
    v_add_u32 v10, s{sT2}, v10
    buffer_load_dwordx2 v[116:117], v10, s[12:15], 0 offen
    buffer_load_dwordx2 v[118:119], v10, s[12:15], 0 offen offset:64
    buffer_load_dwordx2 v[120:121], v10, s[12:15], 0 offen offset:128
    buffer_load_dwordx2 v[122:123], v10, s[12:15], 0 offen offset:192
    """)
    if dma:
        for c in range(4): w_issue(a, c)

order = ["k"] * 4 + ["v"] * 4 + ["o"] * 4 + ["q"] * 4
srd = {"q": 60, "k": 64, "v": 68, "o": 72}
WNT = ['']
sB0, sB1 = 76, 77
def w_issue(a, c):
    m = order[c]; cc = c & 3; slot = c % 5
    for i in range(8):
        if slot < 4: a(f"s_add_u32 m0, s{sB0}, {slot*8192 + i*1024}")
        else: a(f"s_add_u32 m0, s{sB1}, {i*1024}")
        so = (128 * cc + 16 * i) * 8192 if m != "o" else (32 * cc + 4 * i) * 1024
        a(f"s_mov_b32 s{sT2}, {so}")
        a.vm(f"buffer_load_dwordx4 v{109 if m != 'o' else 110}, s[{srd[m]}:{srd[m]+3}], s{sT2} offen {WNT[0]} lds", ("w", c))

def prologue_b(a, P, first_chunk=None, staged=None, peek=None):
    issue = lambda c: w_issue(a, c)
    a.vmq = [("w", c) for c in range(4) for _ in range(8)]
    issue(4)
    for c in range(16):
        m = order[c]; cc = c & 3; slot = c % 5
        a.wait_vm(("w", c))
        if c == 0 and first_chunk: first_chunk(a)
        base1 = (105, slot * 8192) if slot < 4 else (106, 0)
        base2 = (107, slot * 8192) if slot < 4 else (108, 0)
        if m != "o":
            for s_ in range(2):
                for t in range(2):
                    for mm in range(4):
                        imm = base1[1] + (64 * s_ + 8 * (mm >> 1) + 2 * (mm & 1)) * 64 + t * 32
                        s = 2 * cc + s_
                        if m == "k": dst = vr(wk(t, s) + 2 * mm, 2)
                        elif m == "v": dst = ar(wv(t, s) + 2 * mm, 2)
                        else: dst = vr(vA + (s_ * 2 + t) * 8 + 2 * mm, 2)
                        a.ds(f"ds_read_b64_tr_b16 {dst}, v{base1[0]} offset:{imm}")
        else:
            for d in range(4):
                for mm in range(4):
                    imm = base2[1] + (8 * (mm >> 1) + 2 * (mm & 1)) * 256 + d * 64
                    a.ds(f"ds_read_b64_tr_b16 {ar(wo(d, cc) + 2*mm, 2)}, v{base2[0]} offset:{imm}")
        a.wait_ds_all()
        if m == "q":
            for k in range(8):
                a.ds(f"ds_write_b128 v{vRing}, {vr(vA + 4*k, 4)} offset:{WQ_SLOT[cc]*8192 + k*1024}")
            a.wait_ds_all()
        if c + 5 < 16: issue(c + 5)
        if c == P.get('peek', 13) and peek: peek(a)
    a("s_barrier")
    if staged: staged(a)
    a(f"""
    ds_write_b128 v{vM16}, v[112:115] offset:{RA_OFF}
    v_lshlrev_b32 v{vL8}, 3, v0
    s_waitcnt lgkmcnt(0)
    """)

def seg_offsets(a, w, P):
    a(f"""
    s_and_b32 s{sT0}, s{sStep}, 3
    s_lshl_b32 s{sT1}, s{sT0}, 18
    s_lshl_b32 s{sT2}, s{sH}, 7
    s_add_u32 s{sPst}, s{sT1}, s{sT2}
    s_add_u32 s{sPst}, s{sPst}, {PART + w*65536}
    s_lshl_b32 s{sT3}, s{sH}, 13
    s_add_u32 s{sPld}, s{sT1}, s{sT3}
    s_add_u32 s{sPld}, s{sPld}, {PART - MISC + (w&1)*4096}
    s_add_u32 s{sT0}, s{sStep}, 3
    s_and_b32 s{sT0}, s{sT0}, 3
    s_lshl_b32 s{sT1}, s{sT0}, 18
    s_mov_b32 s{sTag}, 0
    s_lshr_b32 s{sT2}, s{sH}, 3
    s_lshl_b32 s{sT2}, s{sT2}, 11
    s_and_b32 s{sT3}, s{sH}, 1
    s_lshl_b32 s{sT3}, s{sT3}, 9
    s_add_u32 s{sT2}, s{sT2}, s{sT3}
    s_bfe_u32 s{sT3}, s{sH}, 0x20001
    s_lshl_b32 s{sT3}, s{sT3}, 6
    s_add_u32 s{sT2}, s{sT2}, s{sT3}
    s_lshl_b32 s{sT1}, s{sT0}, 13
    s_add_u32 s{sMclr}, s{sT1}, s{sT2}
    s_add_u32 s{sMclr}, s{sMclr}, {MBUF + (w&1)*1024}
    s_add_u32 s{sT0}, s{sStep}, 1
    s_and_b32 s{sT0}, s{sT0}, 3
    s_lshl_b32 s{sT1}, s{sT0}, 13
    s_add_u32 s{sMpub}, s{sT1}, s{sT2}
    s_add_u32 s{sMpub}, s{sMpub}, {MBUF + (w&1)*1024}
    s_add_u32 s{sMpoll}, s{sT1}, {MBUF - MISC + w*2048}
    s_lshl_b32 s{sT0}, s{sStep}, 5
    s_add_u32 s{sT0}, s{sT0}, s{sH}
    s_lshl_b32 s{sT1}, s{sT0}, 13
    s_add_u32 s{sVx}, s{sT1}, {VIMG - MISC + w*2048}
    s_add_u32 s{sKx}, s{sT1}, {KIMG - MISC + 32*8192}
    s_lshl_b32 s{sT1}, s{sT0}, 12
    s_add_u32 s{sKm}, s{sT1}, {KMEM - MISC + w*1024}
    s_lshl_b32 s{sT1}, s{sT0}, 11
    s_add_u32 s{sVm}, s{sT1}, {VMEM + w*512}
    """)

sRP, sRM, sMprev, sCP1, sCP2, sCM1, sVmPrev = 76, 77, 78, 79, 80, 81, 82
sKb, sStage = 75, 74
sONE = 42
sB1M = 40
def init_incr(a, w):
    a(f"""
    s_mov_b32 s{sRP}, 0
    s_mov_b32 s{sRM}, 8192
    s_mov_b32 s{sCP1}, s{sPst}
    s_mov_b32 s{sCP2}, s{sPld}
    s_sub_u32 s{sCM1}, s{sMpub}, 8192
    s_mov_b32 s{sMprev}, s{sCM1}
    """)
NP = [1]
def advance(a, w):
    a(f"""
    s_add_u32 s{sVx}, s{sVx}, {32*8192}
    s_add_u32 s{sKx}, s{sKx}, {32*8192}
    s_add_u32 s{sKm}, s{sKm}, {32*4096}
    s_sub_u32 s{sMclr}, s{sMprev}, {(w&1)*1024}
    s_mov_b32 s{sMprev}, s{sMpub}
    s_add_u32 s{sRM}, s{sRM}, 8192
    s_and_b32 s{sRM}, s{sRM}, 0x7fff
    s_add_u32 s{sMpub}, s{sRM}, s{sCM1}
    s_add_u32 s{sStep}, s{sStep}, 1
    """)
    if NP[0] == 1: a(f"s_xor_b32 s{sTag}, s{sTag}, 1")
    else:
        a(f"""
        s_add_u32 s{sRP}, s{sRP}, 0x40000
        s_and_b32 s{sRP}, s{sRP}, {NP[0]*0x40000 - 1}
        s_add_u32 s{sPst}, s{sRP}, s{sCP1}
        s_add_u32 s{sPld}, s{sRP}, s{sCP2}
        s_bfe_u32 s{sTag}, s{sStep}, {0x10000 + NP[0].bit_length() - 1}
        """)

def korder(w):
    own = [2 * w, 2 * w + 1]
    rest = [(2 * w + 2 + k) % 8 for k in range(6)]
    seq = [(0, own[0]), (1, own[0]), (0, own[1]), (1, own[1])] + [(0, s) for s in rest] + [(1, s) for s in rest]
    return own, rest, seq

ABL = [""]; NT = [""]
def ring_fill(a, w, i):
    if "r" in ABL[0] and i >= NRING: return
    t, s = korder(w)[2][i]
    r = ringreg(i); imm = WQ_SLOT[s >> 1] * 8192 + ((s & 1) * 2 + t) * 2048
    a.ds(f"ds_read_b128 {vr(r,4)}, v{vRing} offset:{imm}", ("ring", i))
    a.ds(f"ds_read_b128 {vr(r+4,4)}, v{vRing} offset:{imm+1024}", ("ring", i))

def kx_dma(a, w, i):
    a(f"s_add_u32 m0, s{sKb}, {i*1024}")
    a(f"s_add_u32 s{sT0}, s{sKx}, {i*1024}")
    a.vm(f"buffer_load_dwordx4 v{vM16}, s[{sWS}:{sWS+3}], s{sT0} offen {NT[0]} lds", "kx")

class Stream:
    def __init__(self): self.ops = []; self.fill = {}
    def add(self, f, pre=None): self.ops.append((f, pre)); return len(self.ops) - 1
    def at(self, g, f): self.fill.setdefault(g, []).append(f)
    def emit(self):
        for g, (f, pre) in enumerate(self.ops):
            if pre: pre()
            f()
            for x in self.fill.pop(g, []): x()
        assert not self.fill, self.fill.keys()

def loop(a, w, st, P, diag=False):
    tag = f"{w}{'s' if st else 'f'}"
    WS = f"s[{sWS}:{sWS+3}]"
    smf = lambda d, A, B: a(f"v_smfmac_f32_16x16x64_bf16 {vr(d,4)}, {vr(A,4)}, {B}, v{vIDX}")
    mf = lambda d, A, B, c: a(f"v_mfma_f32_16x16x32_bf16 {vr(d,4)}, {vr(A,4)}, {vr(B,4)}, {c}")
    mf16 = lambda d, A, B, c: a(f"v_mfma_f32_16x16x16_bf16 {vr(d,4)}, {vr(A,2)}, {vr(B,2)}, {c}")
    I = lambda t: (lambda: a(t))
    Af = lambda s: vA + 4 * s
    q = lambda t: vACC + 8 * t
    k_ = lambda t: vACC + 8 * t + 4
    vacc = lambda t: (vVA0, vPM)[t]
    own, rest, seq = korder(w)
    ABL[0] = P.get("abl", ""); NP[0] = P.get("np", 1); NT[0] = P.get("nt", "nt")
    SL = P.get("stamps", ["start", "qkend", "xbar", "scores", "pv", "obar", "opend", "pub", "bdone"])
    def ST(n):
        if diag and n in SL:
            if P.get("trace"): a(f"s_memrealtime s[{sTS+2*SL.index(n)}:{sTS+2*SL.index(n)+1}]")
            else: stamp(a, SL.index(n), diag)
    vVM = vVA0 + 2
    def zero_acc():
        if w == 3:
            a(f"v_mov_b32 v124, -1\nv_lshrrev_b32 v125, 8, v{vL8}\nv_bfe_u32 v126, v{vL8}, 7, 1\nv_lshl_add_u32 v125, v125, 2, v126\nv_bfe_u32 v126, v{vL8}, 1, 6\nv_lshl_add_u32 v125, v125, 8, v126")
        for r in range(16): a(f"v_mov_b32 v{vACC+r}, 0")
        for t in range(2):
            for r in range(4): a(f"v_mov_b32 v{vacc(t)+r}, 0")
    def mwrite():
        for o in own:
            a.ds(f"ds_write_b128 v{vM16}, {vr(Af(o),4)} offset:{M_OFF + o*1024}", "mw")
    hook = P.get("hooks")
    if hook: hook["ready"](a, w, tag, True)
    for r in range(8): a(f"v_mov_b32 v{Af(own[0])+r}, v{116+r}")
    vxl = [lambda: a.vm(f"buffer_load_dwordx4 {vr(vVX,4)}, v{vM16}, {WS}, s{sVx} offen {NT[0]}", "vx"),
           lambda: a.vm(f"buffer_load_dwordx4 {vr(vVX+4,4)}, v{vM16}, {WS}, s{sVx} offen offset:1024 {NT[0]}", "vx")]
    a(f"s_mov_b32 s{sStep}, -1\ns_mov_b32 s{sKb}, {MISC+KX_OFF}")
    seg_offsets(a, w, P)
    kx_dma(a, w, 2 * w); kx_dma(a, w, 2 * w + 1)
    a(f"s_mov_b32 s{sStep}, 0\ns_mov_b32 s{sKb}, {MISC+KX_OFF+8192}")
    seg_offsets(a, w, P)
    if P["jobs"] != "S":
        kx_dma(a, w, 2 * w); kx_dma(a, w, 2 * w + 1)
        vxl[0](); vxl[1]()
    a(f"s_mov_b32 s{sVmPrev}, s{sKm}\ns_sub_u32 s{sMclr}, s{sMclr}, {(w&1)*1024}")
    init_incr(a, w)
    for i in range(NRING): ring_fill(a, w, i)
    zero_acc()
    a.wait_vm_all(True); a.wait_ds_all(True)
    LB = [Af(o) for o in own]
    loadB = lambda k: a(f"buffer_load_dwordx4 {vr(LB[k],4)}, v{vM16}, {WS}, s{sMpoll} offen offset:{k*1024} sc1")
    NS = P["depB"]
    def checkB(k):
        a(f"v_max3_u32 v10, v{LB[k]}, v{LB[k]+1}, v{LB[k]+2}")
        a(f"v_max_u32 v10, v10, v{LB[k]+3}")
        a(f"v_cmp_eq_u32 vcc, -1, v10")
        a.ds(f"ds_write_b128 v{vM16}, {vr(LB[k],4)} offset:{M_OFF + own[k]*1024}", "mw")
        a(f"s_cbranch_vccnz CH_RB{k}RETRY_{tag}" if not P.get("free") else "s_nop 0")
        a.label(f"CH_RB{k}OK_{tag}")
    def retryB(k):
        a.label(f"CH_RB{k}RETRY_{tag}")
        if k == 0: loadB(0)
        loadB(1)
        if diag: a(f"s_add_u32 s{sTS+21}, s{sTS+21}, {1 if k else 0x10000}")
        a(f"s_add_u32 s{sCnt}, s{sCnt}, 1")
        a(f"s_cmp_gt_u32 s{sCnt}, {P['bound']}\ns_cbranch_scc1 CH_RB{k}OK_{tag}")
        if k == 0: a(f"s_branch CH_RB_{tag}")
        else: a(f"s_waitcnt vmcnt({max(NS - 1, 0)})\ns_branch CH_RB1_{tag}")
    JOBS = []
    a(f"s_mov_b32 s{sCnt}, 0")
    for k in range(8): a(f"v_min_u32 v{LB[0]+k}, 0xfffffffe, v{LB[0]+k}")
    a.label(f"CH_RB_{tag}")
    ST("B_w0")
    a(f"s_waitcnt vmcnt({2 * NS - 1})")
    a.dsq = []
    checkB(0)
    if diag:
        ST("bdone")
        a("s_waitcnt lgkmcnt(0)")
        a(f"s_cmp_eq_u32 s{sStep}, 0")
        a(f"s_cbranch_scc1 CH_NOACC_{tag}")
        for k in range(8):
            a(f"s_sub_u32 s{sT0}, s{sTS+2*k+2}, s{sTS+2*k}")
            a(f"s_add_u32 s{sTS+22+k}, s{sTS+22+k}, s{sT0}")
        if P.get("trace"):
            a(f"s_cmp_eq_u32 s{sStep}, {P['trace']}")
            for k, dst in enumerate((83, 84, 85, 86, 87, 88, 89, 100, 101)):
                a(f"s_cselect_b32 s{dst}, s{sTS+2*k}, s{dst}")
        a.label(f"CH_NOACC_{tag}")
        if w == 3 and P.get("steptime"):
            a(f"s_memrealtime s[{sT2}:{sT2+1}]\ns_lshl_b32 s{sT0}, s{sH}, 6\ns_add_u32 s{sT0}, s{sT0}, s{sStep}\ns_lshl_b32 s{sT0}, s{sT0}, 2\ns_add_u32 s{sT0}, s{sT0}, {DBG + 0x40000}\ns_waitcnt lgkmcnt(0)")
            a(f"v_mov_b32 v10, s{sT2}\nv_mov_b32 v11, 0\nbuffer_store_dword v10, v11, {WS}, s{sT0} offen")
            a(f"s_memtime s[{sT2}:{sT2+1}]\ns_add_u32 s{sT0}, s{sT0}, 0x10000\ns_waitcnt lgkmcnt(0)\nv_mov_b32 v10, s{sT2}\nbuffer_store_dword v10, v11, {WS}, s{sT0} offen")
    ST("start")
    a.vmq = ["stale"] * (2 * NS - 2) + (["dbg", "dbg"] if diag and w == 3 and P.get("steptime") else [])
    S = Stream()
    vs = [(t, s) for s in own + rest for t in range(2)]
    def vsm(S, pre=None):
        t, s = vs.pop(0)
        return S.add(lambda: smf(vacc(t), Af(s), ar(wv(t, s), 8)), pre)
    gq = {}
    aread = lambda s: a.ds(f"ds_read_b128 {vr(Af(s),4)}, v{vM16} offset:{M_OFF + s*1024}", ("A", s))
    NB = P["pre_bar"]
    def bar_and_reads():
        a.wait_ds("mw")
        ST("mbar0")
        a("s_barrier")
        ST("mbar1")
        for s in rest[:P["a_burst"]]: aread(s)
    xread = lambda sg: [a.ds(f"ds_read_b64_tr_b16 {vr(vXF+4*sg+2*p,2)}, v{vXr} offset:{(sg&1)*512 + p*256 + (sg>>1)*128}", ("X", sg)) for p in range(2)]
    def late_half():
        a(f"s_waitcnt vmcnt({2 * NS - 2})")
        a.label(f"CH_RB1_{tag}")
        ST("B_w1")
        a.dsq = []
        checkB(1)
    for i in range(16):
        t, s = seq[i]
        def pre(i=i, s=s):
            if i == 2: late_half()
            a.wait_ds(("A", s))
            if i in (4, 7, 10, 13): ST(f"q{i}")
            a.wait_ds(("ring", i))
        if i == 2:
            for n in range(2): vsm(S)
        if i == 4:
            for n in range(2): vsm(S)
        gq[i] = S.add(lambda t=t, s=s, i=i: smf(q(t), Af(s), vr(ringreg(i), 8)), pre)
        S.add(lambda t=t, s=s: smf(k_(t), Af(s), vr(wk(t, s), 8)))
    GB = 5 + P["pre_bar"]
    S.at(GB, bar_and_reads)
    kxread = lambda kt, s: a.ds(f"ds_read_b128 {vr(kx(kt,s),4)}, v{vKx} offset:{(kt*4+s)*1024}", "kx")
    def half_fill(i, h):
        t, s = seq[i]
        r = ringreg(i) + 4 * h; imm = WQ_SLOT[s >> 1] * 8192 + ((s & 1) * 2 + t) * 2048 + h * 1024
        a.ds(f"ds_read_b128 {vr(r,4)}, v{vRing} offset:{imm}", ("ring", i))
    reads = [(GB + 1, lambda s=s: aread(s)) for s in rest[P["a_burst"]:]]
    ringr = [(gq[i - NRING], lambda i=i, h=h: half_fill(i, h)) for i in range(NRING, 16) for h in range(2)]
    npre = P["r_pre"]
    for n in range(npre): S.at(max(ringr[n][0], n + 1), ringr[n][1])
    if "r" not in ABL[0]: reads += ringr[npre:]
    if "k" not in ABL[0]: reads += [(gq[10 + n // 2], lambda n=n: kxread(n >> 2, n & 3)) for n in range(P["kx_in"])]
    g = GB + 1
    for (e, f) in reads:
        g = max(g, e)
        S.at(min(g, 35), f); g += 1
    def post(t, r0):
        return [I(f"v_add_f32 v{q(t)}, v{q(t)}, v{q(t)+2}"), I(f"v_add_f32 v{q(t)+1}, v{q(t)+1}, v{q(t)+3}"),
                I(f"v_add_f32 v{k_(t)}, v{k_(t)}, v{k_(t)+2}"), I(f"v_add_f32 v{k_(t)+1}, v{k_(t)+1}, v{k_(t)+3}"),
                I(f"v_cvt_pk_bf16_f32 v{r0}, v{q(t)}, v{q(t)+1}"), I(f"v_cvt_pk_bf16_f32 v{r0+1}, v{k_(t)}, v{k_(t)+1}"),
                lambda: a.ds(f"ds_write_b64 v{vXw}, {vr(r0,2)} offset:{t*128}", "xw")]
    p0 = post(0, vACC + 6)
    g0 = gq[10] + 2
    S.at(gq[10], lambda: a.nop(2)); S.at(gq[10] + 1, lambda: a.nop(2))
    g0 += P.get("p0off", 0)
    if "p" not in ABL[0]:
        for n in range(6): S.at(g0 + n, p0[n])
        S.at(g0 + 5 + P.get("p0w", 0), p0[6])
    vONE = vACC
    if not P.get("one_late"):
        for n in range(4): S.at(g0 + 6 + n, I(f"v_mov_b32 v{vONE+n}, s{sONE}"))
    late = {}
    if P["jobs"] == "S" and "j" not in ABL[0]:
        jobs = [lambda: a.vm(f"buffer_store_dwordx4 {vr(vVX,4)}, v{vM16}, {WS}, s{sVmPrev} offen sc1", "exp"), vxl[0], vxl[1],
                lambda: kx_dma(a, w, 2 * w), lambda: kx_dma(a, w, 2 * w + 1)]
        if w == 3: jobs.append(lambda: a.vm(f"buffer_store_dword v124, v125, {WS}, s{sMclr} offen {st}", "clr"))
        if hook and w == P.get("fw", 0): jobs.append(lambda: hook["flag"](a))
        for n, jb in enumerate(jobs):
            g = P["j0"] + P["jstr"] * n + P["jw"] * w
            if n == 5: g = P["j0"] + P["jstr"] * (2 if w else 3) + P["jw"] * w + P["jstr"] // 2
            if g < 36: S.at(g, jb)
            else: late.setdefault(g - 36 + 2, []).append(jb)
    S.at(gq[12], I(f"s_add_u32 s{sMpoll}, s{sRM}, {MBUF - MISC + w*2048}"))
    if 35 not in S.fill: S.at(35, lambda: a.nop(1))
    S.emit()
    ST("qkend")
    T0, T1, Tm = vACC + 8, vACC + 12, vT
    def score(S, T, sg):
        A = {T0: kx(0, sg), T1: kx(1, sg), Tm: vXF + 4 * sg}[T]
        return S.add(lambda: mf(T, A, vXF + 4 * sg, "0" if sg == 0 else vr(T, 4)), lambda: a.wait_ds(("X", sg)))
    p1 = post(1, vACC + 4)
    S = Stream()
    a.nop(6)
    a(f"v_pk_add_f32 {vr(q(1),2)}, {vr(q(1),2)}, {vr(q(1)+2,2)}\nv_pk_add_f32 {vr(k_(1),2)}, {vr(k_(1),2)}, {vr(k_(1)+2,2)}")
    for n in range(4, 7): p1[n]()
    for n in range(P["v_pre"]):
        g = vsm(S)
        if P["kx_in"] + n < 8: S.at(g, lambda n=n: kxread((P["kx_in"] + n) >> 2, (P["kx_in"] + n) & 3))
    assert P["kx_in"] + P["v_pre"] >= 8
    def xbar1():
        a.wait_ds("xw")
        a("s_barrier"); ST("xbar"); xread(0)
    g = vsm(S, xbar1)
    S.at(g, lambda: xread(1))
    S.at(vsm(S), lambda: xread(2)); S.at(vsm(S), lambda: xread(3))
    ones = list(range(4)) if P.get("one_late") else []
    while vs:
        gl = vsm(S)
        if ones: S.at(gl, I(f"v_mov_b32 v{vONE+ones.pop(0)}, s{sONE}"))
    for g, l_ in late.items():
        for jb in l_: S.at(g, jb)
    S.at(gl, lambda: (a.wait_vm("stale"), a.wait_ds("kx"), ST("vdone")))
    m, t_ = vT, 11
    gs = [score(S, T, sg) for T in (T0, T1, Tm) for sg in range(4)]
    va = [I(f"v_add_f32 v{vacc(t)+k}, v{vacc(t)+k}, v{vacc(t)+k+2}") for t in range(2) for k in range(2)]
    for n in range(4): S.at(gs[n], lambda: a.nop(1))
    S.at(gs[4], va[0]); S.at(gs[4], va[1]); S.at(gs[5], va[2]); S.at(gs[5], va[3])
    S.at(gs[6], I(f"v_cvt_pk_bf16_f32 v{vVM}, v{vacc(0)}, v{vacc(0)+1}"))
    S.at(gs[7], I(f"v_cvt_pk_bf16_f32 v{vVM+1}, v{vacc(1)}, v{vacc(1)+1}\ns_cmp_ge_u32 s{sStep}, 63\ns_cbranch_scc1 CH_DONE_{tag}"))
    S.at(gs[8], I(f"v_max3_f32 v10, v{T0}, v{T0+1}, v{T0+2}\nv_mov_b32 v{vPM+1}, 0\ns_nop 1"))
    S.at(gs[9], I(f"v_max_f32 v10, v10, v{T0+3}\nv_mov_b32 v{vPM+2}, 0\ns_nop 1"))
    S.at(gs[10], I(f"v_max3_f32 v10, v10, v{T1}, v{T1+1}"))
    S.at(gs[11], I(f"v_max3_f32 v10, v10, v{T1+2}, v{T1+3}"))
    S.emit()
    ST("scores")
    oacc = lambda d: vRING + 4 * d
    zq = list(range(16))
    z = lambda n: [a(f"v_mov_b32 v{vRING+zq.pop(0)}, 0") for _ in range(n)]
    z(7)
    a(f"v_max3_f32 v{m}, v10, v{Tm+2}, v{Tm+3}")
    a(f"v_mov_b32 v{t_}, v{m}")
    z(2)
    a(f"v_permlane32_swap_b32 v{m}, v{t_}")
    a(f"v_max_f32 v{m}, v{m}, v{t_}")
    a(f"v_mov_b32 v{t_}, v{m}")
    z(2)
    a(f"v_permlane16_swap_b32 v{m}, v{t_}")
    a(f"v_max_f32 v{m}, v{m}, v{t_}")
    a(f"v_mul_f32 v10, s{sC}, v{m}")
    pf = lambda r: a(f"v_pk_fma_f32 {vr(r,2)}, {vr(r,2)}, s[{sC}:{sC+1}], v[10:11] op_sel_hi:[1,1,0] neg_lo:[0,0,1] neg_hi:[0,0,1]")
    ex = lambda r: a(f"v_exp_f32 v{r}, v{r}")
    aX, aY, aL = vA, vA + 4, vA + 24
    vPX = vACC + 4
    pf(Tm + 2); pf(T0); ex(Tm + 2); ex(Tm + 3); pf(T0 + 2); pf(T1); pf(T1 + 2)
    a(f"v_cvt_pk_bf16_f32 v{vPM}, v{Tm+2}, v{Tm+3}")
    a(f"v_cvt_pk_bf16_f32 v{vPM+3}, v{Tm+2}, v{Tm+3}")
    ex(T0); ex(T0 + 1)
    mf16(aL, vONE, vPM, "0")
    ex(T0 + 2); ex(T0 + 3)
    mf16(aX, vVM, vPM, "0")
    ex(T1); ex(T1 + 1)
    mf16(aY, vVM, vPM + 2, "0")
    ex(T1 + 2); ex(T1 + 3)
    a(f"v_cvt_pk_bf16_f32 v{vPX}, v{T0}, v{T0+1}")
    a(f"v_cvt_pk_bf16_f32 v{vPX+1}, v{T0+2}, v{T0+3}")
    a(f"v_cvt_pk_bf16_f32 v{vPX+2}, v{T1}, v{T1+1}")
    a(f"v_cvt_pk_bf16_f32 v{vPX+3}, v{T1+2}, v{T1+3}")
    a.wait_vm("vx")
    a.nop(2 if "j" in ABL[0] else 1)
    mf(aL, vONE, vPX, vr(aL, 4)); z(2)
    mf(aX, vVX, vPX, vr(aX, 4)); z(2)
    mf(aY, vVX + 4, vPX, vr(aY, 4))
    ST("pv")
    z(1); a.nop(1)
    a(f"v_rcp_f32 v10, v{aL}")
    a.nop(3)
    vOW = vA + 8
    for r in range(4):
        if r == 2: a.nop(1)
        a(f"v_pk_mul_f32 {vr(aX+2*r,2)}, {vr(aX+2*r,2)}, v[10:11] op_sel_hi:[1,0]")
    for r in range(4):
        a(f"v_cvt_pk_bf16_f32 v{vOW+r}, v{aX+2*r}, v{aX+2*r+1}")
    a.ds(f"ds_write_b128 v{vM16}, {vr(vOW,4)} offset:{O_OFF + w*1024}", "ow")
    vOF = lambda s: vA + 12 + 4 * s
    a.nop(1)
    for r in range(4):
        a(f"v_mov_b32_dpp v{vOF(w)+r}, v{vOW+r} quad_perm:[0,1,0,1] row_mask:0xf bank_mask:0xf")
    a.nop(2)
    assert not zq
    S = Stream()
    orest = [(w + 1 + k) % 4 for k in range(3)]
    def obar():
        a.wait_ds_all()
        a("s_barrier")
        ST("obar")
        for s in orest: a.ds(f"ds_read_b128 {vr(vOF(s),4)}, v{vOr} offset:{s*1024}", ("O", s))
        a(f"s_add_u32 s{sT0}, s{sPst}, 4096")
    XW = vXF + 4 * w
    sel = lambda d, f: f"v_cndmask_b32 v{vVX+d}, v{f}, v{XW+d}, s[{sB1M}:{sB1M+1}]"
    dpp = lambda d: f"v_mov_b32_dpp v{10+d}, v{vVM+d} quad_perm:[2,3,2,3] row_mask:0xf bank_mask:0xf"
    pack = [I(dpp(0) + "\n" + sel(0, vVM)), I(dpp(1) + "\n" + sel(1, vVM + 1)), I(sel(2, 10)), I(sel(3, 11))]
    for d in range(4):
        g = S.add(lambda d=d: smf(oacc(d), vOF(w), ar(wo(d, w), 8)), obar if d == P["o_pre"] else None)
        S.at(g, pack[d])
    if P["o_pre"] == 4: S.at(g, obar)
    vST = vRING + 16
    go = [S.add(lambda d=d, s=s: smf(oacc(d), vOF(s), ar(wo(d, s), 8)), lambda s=s: a.wait_ds(("O", s)))
          for dp in range(2) for s in orest for d in (2 * dp, 2 * dp + 1)]
    cv = lambda d, k: I(f"v_cvt_pk_bf16_f32 v{vST+2*d+k}, v{oacc(d)+2*k}, v{oacc(d)+2*k+1}")
    tg = lambda dp: I(f"v_and_or_b32 v{vST+4*dp}, v{vST+4*dp}, -2, s{sTag}")
    pst = lambda dp: a.vm(f"buffer_store_dwordx4 {vr(vST+4*dp,4)}, v{vPst}, {WS}, s{sT0 if dp else sPst} offen {st}", "pst")
    S.at(go[6], lambda: a.nop(6)); S.at(go[6], cv(0, 0)); S.at(go[7], cv(0, 1)); S.at(go[8], tg(0)); S.at(go[9], cv(1, 0)); S.at(go[10], cv(1, 1))
    S.at(go[10], lambda: pst(0))
    S.emit()
    a.nop(6)
    cv(2, 0)(); cv(2, 1)(); cv(3, 0)(); cv(3, 1)(); tg(1)(); pst(1)
    ST("opend")
    LA = [Af(rest[k]) for k in range(4)]
    vRA, vRD = Af(rest[4]), Af(rest[5])
    def issueA():
        for k in range(4): a(f"buffer_load_dwordx4 {vr(LA[k],4)}, v{vM16}, {WS}, s{sPld} offen offset:{k*1024} sc1")
    def chores():
        zero_acc()
        a(f"v_xor_b32 v{vKx}, 8192, v{vKx}\ns_xor_b32 s{sKb}, s{sKb}, 8192")
    a(f"s_mov_b32 s{sCnt}, 0")
    if w < 2:
        a.ds(f"ds_read_b128 {vr(vRA,4)}, v{vM16} offset:{RA_OFF}", "ra")
        if w == 1: chores()
        a.nop(P["dlyA"][w])
        issueA()
        ST("issA")
        if w == 0: chores()
        for i in range(P["nrA"]): ring_fill(a, w, i)
        for _ in range(P["depA"] - 1):
            a.nop(P["gapA"]); issueA()
        a.wait_ds("ra")
        a.label(f"CH_RA_{tag}")
        ny = 4 * (P["depA"] - 1)
        for k in range(4):
            a(f"s_waitcnt vmcnt({ny + 3 - k})")
            if k == 3:
                ST("A_w2")
                a(f"v_bitop3_b32 v11, v{LA[2]}, v{LA[3]}, s{sTag} bitop3:0x7e")
                a(f"v_bitop3_b32 v10, v10, v11, 1 bitop3:0xa8")
            if k == 1: a(f"v_bitop3_b32 v10, v{LA[0]}, v{LA[1]}, s{sTag} bitop3:0x7e")
            if k == 0 and P["depA"] > 1: continue
            if k == 1 and P["depA"] > 1: mf(vRD, LA[0], vRA, "0")
            if k == 2 and P["depA"] > 1: continue
            if k == 3 and P["depA"] > 1: mf(vRD, LA[2], vRA, vr(vRD, 4))
            mf(vRD, LA[k], vRA, "0" if k == 0 else vr(vRD, 4))
        a(f"v_cmp_ne_u32 vcc, 0, v10")
        a(f"s_cbranch_vccnz CH_RARETRY_{tag}" if not P.get("free") else "s_nop 0")
        a.label(f"CH_RAOK_{tag}")
        ST("A_ok")
        a.nop(6)
        a(f"v_permlane32_swap_b32 v{vRD}, v{vRD+2}")
        a(f"v_permlane32_swap_b32 v{vRD+1}, v{vRD+3}")
        a(f"s_mov_b64 exec, s[{sLO8}:{sLO8+1}]")
        a(f"v_pk_add_f32 {vr(vRD,2)}, {vr(vRD,2)}, {vr(vRD+2,2)}")
        a(f"v_cvt_pk_bf16_f32 v{vRD}, v{vRD}, v{vRD+1}")
        a(f"buffer_store_dword v{vRD}, v{vMpub}, {WS}, s{sMpub} offen {st}")
        a("s_mov_b64 exec, -1")
        ST("pub")
        if w == 0:
            for i in range(P["nrA"], NRING): ring_fill(a, w, i)
    else:
        chores()
        for i in range(NRING): ring_fill(a, w, i)
    def adv():
        a(f"s_mov_b32 s{sCnt}, 0\ns_mov_b32 s{sVmPrev}, s{sKm}")
        advance(a, w)
        if hook: hook["ready"](a, w, tag, False)
    if w != 1: adv()
    if P["pbar"]: a("s_barrier")
    a.nop(P["dlyB"][min(w, 2)])
    loadB(0); loadB(1)
    ST("issB")
    if w == 1:
        adv()
        for i in range(P["nrA"], NRING): ring_fill(a, w, i)
    for _ in range(NS - 1):
        a.nop(P["gapB"] if w != 1 else max(0, P["gapB"] - P["w1c"])); loadB(0); loadB(1)
    a.wait_ds_all()
    a.vmq = []
    a(f"s_branch CH_RB_{tag}")
    if w < 2:
        a.label(f"CH_RARETRY_{tag}")
        issueA()
        a(f"s_add_u32 s{sCnt}, s{sCnt}, 1")
        if diag: a(f"s_add_u32 s{sTS+20}, s{sTS+20}, 1")
        a(f"s_cmp_gt_u32 s{sCnt}, {P['bound']}")
        a(f"s_cbranch_scc1 CH_RAOK_{tag}")
        a(f"s_branch CH_RA_{tag}")
    retryB(0); retryB(1)
    a.label(f"CH_DONE_{tag}")
    a.wait_vm_all(True)
    a.nop(1)
    for f in pack: f()
    a(f"buffer_store_dwordx4 {vr(vVX,4)}, v{vM16}, {WS}, s{sKm} offen sc1")
    a.dsq = []; a.vmq = []
    if hook: hook["done"](a, w)
```

```python
XN   = 0x0000000
QIMG = 0x0200000
KIMG = 0x1200000
VIMG = 0x2200000
KMEM = 0x3200000
VMEM = 0x3A00000
OIMG = 0x3E00000
HIMG = 0x4E00000
PART = 0x5600000
MBUF = 0x5700000
DBG  = 0x5800000
WS_BYTES = 268435456
KA = dict(x=0, mem0=8, Wq=16, Wk=24, Wv=32, Wo=40, seg=48, bx=56, w1=64, b1=72, w2=80, b2=88, out=96, dbg=104, ws=112)
FLG  = 0x5710000
G1F = FLG
CHF = FLG + 0x7000
ATF = FLG + 0x8000
ERRW = DBG + 0x10000
D_MODE, D_INIT, D_LNDONE, D_STAGED = 0, 4, 8, 12
D_MASK, D_LN2, D_WM, D_LN = 128, 136, 140, 192
NSETS = 12
```

```python
from asm import *
from layout import *
import math, struct

sWS = 8
WS = f"s[{sWS}:{sWS+3}]"
DB = "s[4:7]"
sW = 17
sRole = 16
sDead = 37
sA, sB, sC_, sD = 32, 33, 34, 35
POLL_BOUND = 1 << 16
SLEEP = [2]
HOLD = [0]
PREFETCH = [(48, 50, 58, 52)]

def fbits(x): return struct.unpack("<I", struct.pack("<f", x))[0]

def srd(a, d, ka, size):
    a(f"s_load_dwordx2 s[{d}:{d+1}], s[0:1], {KA[ka]}\ns_mov_b32 s{d+2}, {size}\ns_mov_b32 s{d+3}, 0x20000")

def poll_ge(a, load, vals, target, name, sleep=1, vtmp=None):
    L = a.newlabel("POLL_" + name); E = L + "_E"
    a(f"s_mov_b32 s{sD}, 0")
    a.label(L)
    a(f"s_cmp_lg_u32 s{sDead}, 0\ns_cbranch_scc1 {E}")
    a(load)
    a(f"s_add_u32 s{sD}, s{sD}, 1")
    a(f"s_cmp_gt_u32 s{sD}, {POLL_BOUND}\ns_cselect_b32 s{sDead}, 1, 0")
    a("s_waitcnt vmcnt(0)")
    v = vals[0]
    for k in range(1, len(vals)):
        a(f"v_min_u32 v{vtmp}, v{v}, v{vals[k]}"); v = vtmp
    a(f"v_cmp_gt_u32 vcc, {target}, v{v}")
    a(f"s_cbranch_vccz {E}")
    if sleep: a(f"s_sleep {sleep}")
    a(f"s_branch {L}")
    a.label(E)
    a.vmq = []

def flag_store(a, soff, sval, v0=2):
    a(f"v_mov_b32 v{v0}, {sval}\nv_mov_b32 v{v0+1}, 0\ns_mov_b64 exec, 1")
    a.vm(f"buffer_store_dword v{v0}, v{v0+1}, {WS}, {soff} offen sc1", "flag")
    a("s_mov_b64 exec, -1")

def layernorm(a, sTask, diag=False, local=None, after_loads=None):
    srd(a, 60, "x", 2048 * 1024)
    a(f"""
    v_and_b32 v8, 7, v0
    v_lshrrev_b32 v9, 3, v0
    v_lshlrev_b32 v14, 10, v8
    v_lshl_add_u32 v14, v9, 4, v14
    s_lshl_b32 s27, s{sTask}, 13
    s_waitcnt lgkmcnt(0)
    """)
    R, F = 16, 48
    for s in range(8):
        a.vm(f"buffer_load_dwordx4 {vr(R+4*s,4)}, v14, s[60:63], s27 offen offset:{s*128}", ("ln", s))
    a(f"""
    v_lshrrev_b32 v15, 2, v9
    v_lshlrev_b32 v15, 11, v15
    v_and_b32 v9, 3, v9
    v_lshl_add_u32 v15, v9, 8, v15
    v_lshl_add_u32 v15, v8, 4, v15
    s_lshr_b32 s27, s{sTask}, 2
    s_lshl_b32 s27, s27, 15
    s_bfe_u32 s28, s{sTask}, 0x10001
    s_lshl_b32 s28, s28, 10
    s_add_u32 s27, s27, s28
    s_and_b32 s28, s{sTask}, 1
    s_lshl_b32 s28, s28, 7
    s_add_u32 s27, s27, s28
    s_add_u32 s27, s27, {XN}
    v_mov_b32 v10, 0
    v_mov_b32 v11, 0
    """)
    if after_loads: after_loads()
    for s in range(8):
        a.wait_vm(("ln", s))
        for k in range(4):
            r = R + 4 * s + k; f = F + 8 * s + 2 * k
            a(f"v_lshlrev_b32 v{f}, 16, v{r}\nv_and_b32 v{f+1}, 0xffff0000, v{r}")
            a(f"v_pk_add_f32 v[10:11], v[10:11], {vr(f,2)}")
    if diag: a("s_memrealtime s[72:73]")
    def allred():
        a("v_add_f32 v10, v10, v11\ns_nop 1\nv_add_f32_dpp v10, v10, v10 row_ror:8 row_mask:0xf bank_mask:0xf")
        for op in ("v_permlane32_swap_b32", "v_permlane16_swap_b32"):
            a(f"v_mov_b32 v11, v10\ns_nop 1\n{op} v10, v11\nv_add_f32 v10, v10, v11")
    allred()
    a(f"v_mul_f32 v12, {fbits(1/512):#x}, v10\nv_mov_b32 v10, 0\nv_mov_b32 v11, 0")
    for k in range(32):
        f = F + 2 * k
        a(f"v_pk_add_f32 {vr(f,2)}, {vr(f,2)}, v[12:13] op_sel_hi:[1,0] neg_lo:[0,1] neg_hi:[0,1]")
        a(f"v_pk_fma_f32 v[10:11], {vr(f,2)}, {vr(f,2)}, v[10:11]")
    allred()
    a(f"v_mov_b32 v12, {fbits(1e-5):#x}\nv_fmac_f32 v12, {fbits(1/512):#x}, v10\nv_rsq_f32 v12, v12\ns_nop 0")
    for s in range(8):
        for k in range(4):
            f = F + 8 * s + 2 * k
            a(f"v_pk_mul_f32 {vr(f,2)}, {vr(f,2)}, v[12:13] op_sel_hi:[1,0]")
            a(f"v_cvt_pk_bf16_f32 v{R+4*s+k}, v{f}, v{f+1}")
        if local is None:
            a.vm(f"buffer_store_dwordx4 {vr(R+4*s,4)}, v15, {WS}, s27 offen sc1", "lnst")
            a(f"s_add_u32 s27, s27, 4096")
        else:
            if s == 0: a(f"s_and_b32 s27, s27, 0x7fff\ns_add_u32 s27, s27, {local}\nv_add_u32 v15, s27, v15")
            a.ds(f"ds_write_b128 v15, {vr(R+4*s,4)} offset:{s*4096}")
    if diag: a("s_memrealtime s[74:75]")

G1_XBUF = 98304
def gemm1(a, wait_init, verdict, init_done, diag=False):
    sSl, sJ, sKind, sRow, sOut, sN, sXs, sFl = 18, 19, 20, 21, 22, 23, 24, 25
    a(f"""
    s_lshr_b32 s{sSl}, s{sRole}, 2
    s_and_b32 s{sJ}, s{sRole}, 3
    s_lshr_b32 s{sKind}, s{sSl}, 4            ; 0 K, 1 V, 2 Q, 3 FFN1
    s_load_dwordx2 s[48:49], s[0:1], {KA['Wk']}
    s_load_dwordx2 s[50:51], s[0:1], {KA['Wv']}
    s_load_dwordx2 s[52:53], s[0:1], {KA['Wq']}
    s_load_dwordx2 s[54:55], s[0:1], {KA['w1']}
    s_load_dwordx2 s[56:57], s[0:1], {KA['b1']}
    s_load_dwordx2 s[58:59], s[0:1], {KA['Wo']}
    s_waitcnt lgkmcnt(0)
    s_mov_b32 s12, s48
    s_mov_b32 s13, s49
    s_mov_b32 s14, {512*4096*2}
    s_mov_b32 s{sRow}, 8192
    s_cmp_eq_u32 s{sKind}, 1
    s_cselect_b32 s12, s50, s12
    s_cselect_b32 s13, s51, s13
    s_cmp_eq_u32 s{sKind}, 2
    s_cselect_b32 s12, s52, s12
    s_cselect_b32 s13, s53, s13
    s_cmp_eq_u32 s{sKind}, 3
    s_cselect_b32 s12, s54, s12
    s_cselect_b32 s13, s55, s13
    s_cselect_b32 s14, {512*1792*2}, s14
    s_cselect_b32 s{sRow}, 3584, s{sRow}
    s_mov_b32 s15, 0x20000
    v_and_b32 v240, 15, v0
    v_lshrrev_b32 v241, 4, v0
    v_and_b32 v242, 3, v0
    v_bfe_u32 v243, v0, 2, 2
    v_lshrrev_b32 v4, 3, v0
    v_mul_lo_u32 v4, v4, s{sRow}
    v_and_b32 v5, 7, v0
    v_bfe_u32 v6, v0, 4, 1
    v_lshlrev_b32 v6, 1, v6
    v_xor_b32 v5, v5, v6
    v_xor_b32 v6, 4, v5
    s_and_b32 s{sA}, s{sSl}, 15
    s_lshl_b32 s{sA}, s{sA}, 9
    s_lshl_b32 s{sB}, s{sW}, 7
    s_add_u32 s{sA}, s{sA}, s{sB}
    v_add_u32 v4, s{sA}, v4
    v_lshl_add_u32 v244, v5, 4, v4
    v_lshl_add_u32 v245, v6, 4, v4
    v_lshl_add_u32 v4, v241, 3, v243
    v_lshlrev_b32 v4, 7, v4
    v_lshl_add_u32 v4, v242, 3, v4
    s_mul_i32 s{sA}, s{sW}, 24576
    v_add_u32 v4, s{sA}, v4
    v_lshrrev_b32 v5, 1, v243
    v_and_b32 v6, 1, v241
    v_lshl_add_u32 v5, v6, 1, v5
    """)
    for f in range(4):
        a(f"v_xor_b32 v6, {f}, v5\nv_lshl_add_u32 v{246+f}, v6, 5, v4")
    a(f"s_lshl_b32 s{sC_}, s{sRow}, 3\ns_mov_b32 s{sN}, 0")
    def issue(c):
        for i in range(8):
            a(f"s_add_u32 m0, s{sA}, {(c%3)*8192 + i*1024}\ns_nop 0")
            a.vm(f"buffer_load_dwordx4 v{244 + (i&1)}, s[12:15], s{sN} offen lds", ("w", c))
            a(f"s_add_u32 s{sN}, s{sN}, s{sC_}")
    def prefetch():
        if not PREFETCH[0]: return
        a(f"s_lshl_b32 s{sB}, s{sRole}, 2\ns_add_u32 s{sB}, s{sB}, s{sW}\ns_lshl_b32 s{sB}, s{sB}, 12\ns_add_u32 s{sD}, s{sB}, {896*4096}")
        a("v_lshlrev_b32 v13, 6, v0\ns_mov_b32 s42, 0x400000\ns_mov_b32 s43, 0x20000")
        for p in PREFETCH[0]:
            a(f"s_mov_b32 s40, s{p}\ns_mov_b32 s41, s{p+1}")
            a.vm(f"buffer_load_dword v252, v13, s[40:43], s{sB} offen", "pf")
            a.vm(f"buffer_load_dword v252, v13, s[40:43], s{sD} offen", "pf")
    sTask, sHave = 26, 31
    a(f"""
    s_mov_b32 s{sHave}, 0
    v_mov_b32 v251, 0
    s_mov_b32 s27, 0
    s_mov_b32 s28, 0
    s_mov_b32 s{sTask}, s{sRole}
    s_cmp_eq_u32 s{sW}, s{sJ}
    s_cbranch_scc1 G1_LN
    s_xor_b32 s{sB}, s{sJ}, 2
    s_cmp_lg_u32 s{sW}, s{sB}
    s_cbranch_scc1 G1_NOLN
    s_and_b32 s{sB}, s{sRole}, 31
    s_cmp_ge_u32 s{sB}, 5
    s_cbranch_scc1 G1_NOLN
    s_lshr_b32 s{sTask}, s{sRole}, 5
    s_mul_i32 s{sTask}, s{sTask}, 5
    s_add_u32 s{sTask}, s{sTask}, s{sB}
    s_add_u32 s{sTask}, s{sTask}, 224
    s_cmp_ge_u32 s{sTask}, 256
    s_cbranch_scc1 G1_NOLN
    G1_LN:
    """)
    layernorm(a, sTask, diag, None, prefetch)
    a(f"s_mov_b32 s{sHave}, 1\ns_branch G1_LN1")
    a.label("G1_NOLN")
    prefetch()
    a.label("G1_LN1")
    a(f"s_cmp_ge_u32 s{sRole}, 220\ns_cbranch_scc1 G1_LNREP")
    a.vmq = []
    a(f"s_lshl_b32 s30, s{sJ}, 2\ns_add_u32 s30, s30, s{sW}")
    layernorm(a, 30, False, G1_XBUF, lambda: [issue(c) for c in range(3)])
    a.label("G1_LNREP")
    keep = list(a.vmq)
    a(f"s_cmp_eq_u32 s{sHave}, 0\ns_cbranch_scc1 G1_LNX")
    a(f"s_cmp_lt_u32 s{sRole}, 220\ns_cbranch_scc1 G1_LNR2\ns_waitcnt vmcnt(0)")
    a.label("G1_LNR2")
    if diag: a("s_memrealtime s[76:77]")
    a(f"s_lshl_b32 s27, 1, s{sTask}\ns_lshr_b32 s28, s{sTask}, 5\ns_lshl_b32 s{sB}, s28, 2\ns_add_u32 s{sB}, s{sB}, {D_LN}")
    a(f"s_mov_b64 exec, 1\nv_mov_b32 v251, s27\nv_mov_b32 v3, s{sB}\nbuffer_atomic_or v251, v3, {DB}, 0 offen sc0\ns_mov_b64 exec, -1")
    a.label("G1_LNX")
    def ln_tree(a):
        L = a.newlabel("LNT")
        a(f"s_cmp_eq_u32 s{sHave}, 0\ns_cbranch_scc1 {L}\ns_mov_b32 s{sHave}, 0")
        a(f"v_readfirstlane_b32 s{sB}, v251\ns_nop 3\ns_or_b32 s{sB}, s{sB}, s27\ns_cmp_lg_u32 s{sB}, -1\ns_cbranch_scc1 {L}")
        a(f"s_mov_b64 exec, 1\ns_lshl_b32 s27, 1, s28\nv_mov_b32 v2, s27\nv_mov_b32 v3, {D_LN2}\nbuffer_atomic_or v2, v3, {DB}, 0 offen sc0\ns_waitcnt vmcnt(0)")
        a(f"v_readfirstlane_b32 s{sB}, v2\ns_nop 3\ns_or_b32 s{sB}, s{sB}, s27\ns_cmp_lg_u32 s{sB}, 0xff\ns_cbranch_scc1 {L}_X")
        a(f"v_mov_b32 v2, 1\nv_mov_b32 v3, {D_LNDONE}\nbuffer_store_dword v2, v3, {DB}, 0 offen sc1")
        a.label(L + "_X")
        a("s_mov_b64 exec, -1")
        a.label(L)
    a(f"s_cmp_ge_u32 s{sRole}, 220\ns_cbranch_scc1 G1_IDLE")
    a.vmq = keep
    W = lambda f, s: 4 * (f * 16 + s)
    for c in range(8):
        a.wait_vm(("w", c))
        if c == 0: init_done(a)
        if c == 2: ln_tree(a)
        for s_ in range(2):
            for f in range(4):
                for p in range(2):
                    a.ds(f"ds_read_b64_tr_b16 {ar(W(f, 2*c+s_) + 2*p, 2)}, v{246+f} offset:{(c%3)*8192 + (32*s_+4*p)*128}")
        a.wait_ds_all()
        if c + 3 < 8: issue(c + 3)
    if diag: a("s_memrealtime s[64:65]")
    vBias = 112
    for r in range(16): a(f"v_mov_b32 v{vBias+r}, 0")
    a(f"s_cmp_lg_u32 s{sKind}, 3\ns_cbranch_scc1 G1_NOBIAS")
    a(f"""
    s_mov_b32 s12, s56
    s_mov_b32 s13, s57
    s_mov_b32 s14, 3584
    s_and_b32 s{sA}, s{sSl}, 15
    s_lshl_b32 s{sA}, s{sA}, 9
    s_lshl_b32 s{sB}, s{sW}, 7
    s_add_u32 s{sA}, s{sA}, s{sB}
    v_lshlrev_b32 v4, 3, v241
    """)
    for f in range(4): a(f"buffer_load_dwordx2 {vr(8+2*f,2)}, v4, s[12:15], s{sA} offen offset:{f*32}")
    a("s_waitcnt vmcnt(0)")
    for f in range(4):
        for k in range(2):
            a(f"v_lshlrev_b32 v{vBias+4*f+2*k}, 16, v{8+2*f+k}\nv_and_b32 v{vBias+4*f+2*k+1}, 0xffff0000, v{8+2*f+k}")
    a.label("G1_NOBIAS")
    verdict(a)
    if diag: a("s_memrealtime s[66:67]\ns_memtime s[96:97]")
    a(f"""
    v_lshlrev_b32 v4, 4, v0
    v_add_u32 v5, {G1_XBUF}, v4
    s_lshl_b32 s{sXs}, s{sJ}, 15
    s_lshl_b32 s{sA}, s{sW}, 13
    s_add_u32 s{sXs}, s{sXs}, s{sA}
    s_add_u32 s{sXs}, s{sXs}, {XN}
    s_lshl_b32 s{sFl}, s{sRole}, 7
    s_add_u32 s{sFl}, s{sFl}, {G1F}
    s_and_b32 s{sA}, s{sSl}, 15
    s_lshl_b32 s{sA}, s{sA}, 1
    s_lshr_b32 s{sB}, s{sW}, 1
    s_add_u32 s{sA}, s{sA}, s{sB}             ; head
    s_lshl_b32 s{sB}, s{sJ}, 5
    s_add_u32 s{sA}, s{sA}, s{sB}
    s_lshl_b32 s{sOut}, s{sA}, 13
    s_and_b32 s{sB}, s{sW}, 1
    """)
    sLb = 26
    a(f"s_lshl_b32 s{sLb}, s{sW}, 13")
    def xdma1(par, i):
        a(f"s_add_u32 m0, s{sLb}, {G1_XBUF + par*32768 + i*1024}")
        a(f"s_add_u32 s{sXs}, s{sXs}, {1024 if i else 4*32768 - 7*1024}")
        a.vm(f"buffer_load_dwordx4 v4, {WS}, s{sXs} offen lds", "x")
    a(f"s_add_u32 s{sXs}, s{sXs}, {7*1024}")
    a(f"s_cmp_eq_u32 s{sKind}, 1\ns_cbranch_scc1 G1_V\ns_cmp_eq_u32 s{sKind}, 3\ns_cbranch_scc1 G1_H")
    for kind in ("QK", "V", "H"):
        a.label(f"G1_{kind}")
        if kind == "QK":
            a(f"s_lshl_b32 s{sB}, s{sB}, 10\ns_add_u32 s{sOut}, s{sOut}, s{sB}")
            a(f"s_mov_b32 s{sB}, {QIMG}\ns_cmp_eq_u32 s{sKind}, 0\ns_cselect_b32 s{sB}, {KIMG}, s{sB}\ns_add_u32 s{sOut}, s{sOut}, s{sB}")
            step = 4 * 32 * 8192
        elif kind == "V":
            a(f"s_lshl_b32 s{sB}, s{sB}, 12\ns_add_u32 s{sOut}, s{sOut}, s{sB}\ns_add_u32 s{sOut}, s{sOut}, {VIMG}")
            step = 4 * 32 * 8192
        else:
            a(f"s_and_b32 s{sA}, s{sSl}, 15\ns_lshl_b32 s{sA}, s{sA}, 2\ns_add_u32 s{sA}, s{sA}, s{sW}\ns_lshl_b32 s{sA}, s{sA}, 11")
            a(f"s_mul_i32 s{sB}, s{sJ}, {2*56*1024}\ns_add_u32 s{sOut}, s{sA}, s{sB}\ns_add_u32 s{sOut}, s{sOut}, {HIMG}")
            step = 4 * 2 * 56 * 1024
        acc = lambda par, mt, f: 128 + par * 32 + (mt * 4 + f) * 4
        vX = lambda s, mt: 16 + ((s % 3) * 2 + mt) * 4
        vS = 48
        def epilogue(par):
            jobs = []
            for n in range(4):
                if kind == "QK": mt, t = n >> 1, n & 1; srcs = (acc(par, mt, t), acc(par, mt, t + 2)); off = mt * 4096 + t * 2048
                elif kind == "V": srcs = (acc(par, 0, n), acc(par, 1, n)); off = n * 1024
                else: mt, t = n >> 1, n & 1; srcs = (acc(par, mt, 2 * t), acc(par, mt, 2 * t + 1)); off = mt * 56 * 1024 + t * 1024
                d = vS + 4 * n
                for h_ in range(2):
                    for k in range(2):
                        r = srcs[h_] + 2 * k
                        if kind == "H":
                            jobs.append(lambda r=r: a(f"v_max_f32 v{r}, 0, v{r}\nv_max_f32 v{r+1}, 0, v{r+1}"))
                            jobs.append(lambda r=r: a(f"v_mul_f32 v{r}, v{r}, v{r}\nv_mul_f32 v{r+1}, v{r+1}, v{r+1}"))
                            jobs.append(lambda r=r, d=d, h_=h_, k=k: a(f"v_cvt_pk_bf16_f32 v{d+2*h_+k}, v{r}, v{r+1}"))
                        else:
                            jobs.append(lambda r=r, d=d, h_=h_, k=k: a(f"v_cvt_pk_bf16_f32 v{d+2*h_+k}, v{r}, v{r+1}"))
                def st(d=d, off=off):
                    a(f"s_add_u32 s{sA}, s{sOut}, {off}")
                    a.vm(f"buffer_store_dwordx4 {vr(d,4)}, v4, {WS}, s{sA} offen sc1", "st")
                jobs.append(st)
            jobs.append(lambda: a(f"s_add_u32 s{sOut}, s{sOut}, {step}"))
            return jobs
        def publish(val):
            L = a.newlabel("G1F")
            a(f"s_cmp_lg_u32 s{sW}, 0\ns_cbranch_scc1 {L}")
            wait_init(a, 8)
            if val is None: a(f"s_sub_u32 s{sA}, s{sN}, 2\ns_max_u32 s{sA}, s{sA}, 1"); val = f"s{sA}"
            flag_store(a, f"s{sFl}", val, 8)
            a.label(L)
        def segment(par, n):
            a("s_waitcnt vmcnt(4)" if n == 2 else "s_waitcnt vmcnt(0) lgkmcnt(0)"); a.vmq = []; a.dsq = []
            a("s_barrier")
            rd = lambda s: [a.ds(f"ds_read_b128 {vr(vX(s,mt),4)}, v5 offset:{par*32768 + s*2048 + mt*1024}", ("x", s)) for mt in range(2)]
            rd(0); rd(1)
            if n == 1: publish(1)
            if n == 2: publish(None)
            jobs = epilogue(1 - par) if n == 2 else []
            for s in range(16):
                if s + 2 < 16: rd(s + 2)
                a.wait_ds(("x", s))
                for mt in range(2):
                    for f in range(4):
                        d = acc(par, mt, f)
                        c = (vr(vBias + 4 * f, 4) if kind == "H" else "0") if s == 0 else vr(d, 4)
                        if kind == "V": a(f"v_mfma_f32_16x16x32_bf16 {vr(d,4)}, {vr(vX(s,mt),4)}, {ar(W(f,s),4)}, {c}")
                        else: a(f"v_mfma_f32_16x16x32_bf16 {vr(d,4)}, {ar(W(f,s),4)}, {vr(vX(s,mt),4)}, {c}")
                        if n and s < 8 and mt == 0 and f == 3: xdma1(1 - par, s)
                        elif jobs and s >= 8: jobs.pop(0)()
            assert not jobs
            if n == 1: a("s_waitcnt vmcnt(0)")
            a(f"s_add_u32 s{sN}, s{sN}, 1")
        a(f"s_mov_b32 s{sN}, 0")
        segment(0, 0)
        a.nop(8)
        for j in epilogue(0): j()
        L = a.newlabel("G1LN")
        a(f"s_cmp_lg_u32 s{sW}, 0\ns_cbranch_scc1 {L}\nv_mov_b32 v8, {D_LNDONE}")
        poll_ge(a, f"buffer_load_dword v9, v8, {DB}, 0 offen sc1", [9], 1, "LN", sleep=2)
        if HOLD[0]:
            poll_ge(a, f"buffer_load_dword v9, v8, {DB}, 0 offen offset:{D_STAGED - D_LNDONE} sc1", [9], HOLD[0], "STG", sleep=8)
        a.label(L)
        a("s_barrier")
        for i in range(8): xdma1(1, i)
        segment(1, 1)
        a.label(f"G1_LOOP_{kind}")
        segment(0, 2)
        segment(1, 2)
        a(f"s_cmp_lt_u32 s{sN}, 16\ns_cbranch_scc1 G1_LOOP_{kind}")
        a.label(f"G1_END_{kind}")
        a.nop(8)
        for j in epilogue(1): j()
        a.wait_vm_all(True)
        a("s_barrier")
        L = a.newlabel("G1F")
        a(f"s_cmp_lg_u32 s{sW}, 0\ns_cbranch_scc1 {L}")
        flag_store(a, f"s{sFl}", 16, 8)
        a.label(L)
        a.vmq = []; a.dsq = []
        a("s_branch G1_DONE")
    a.label("G1_IDLE")
    a("s_waitcnt vmcnt(0)")
    init_done(a)
    ln_tree(a)
    verdict(a)
    a.label("G1_DONE")

def attention(a):
    sSeg, sQ, sKm, sVm, sO, sCh, sAt, sCnt = 18, 19, 20, 21, 22, 23, 24, 25
    sCC = 30
    sMask = 40
    c = (128 ** -0.5) * math.log2(math.e)
    a(f"""
    s_mov_b32 s{sCC}, {fbits(c):#x}
    s_mov_b32 s{sCC+1}, {fbits(c):#x}
    v_lshlrev_b32 v4, 4, v0
    v_and_b32 v5, 0x3d, v0
    v_lshlrev_b32 v5, 4, v5
    v_bfe_u32 v6, v0, 1, 1
    v_lshl_add_u32 v5, v6, 3, v5
    v_and_b32 v6, 15, v0
    v_lshrrev_b32 v7, 4, v0
    v_lshlrev_b32 v7, 2, v7
    """)
    for r in range(4):
        a(f"v_add_u32 v8, {r}, v7\nv_cmp_le_u32 s[{sMask+2*r}:{sMask+2*r+1}], v8, v6")
    a(f"""
    s_lshr_b32 s{sA}, s{sRole}, 1
    s_lshl_b32 s{sA}, s{sA}, 2
    s_add_u32 s{sA}, s{sA}, s{sW}
    s_lshl_b32 s{sA}, s{sA}, 7
    s_add_u32 s{sA}, s{sA}, {G1F}
    v_min_u32 v8, 2, v0
    v_lshlrev_b32 v8, 13, v8
    """)
    poll_ge(a, f"buffer_load_dword v9, v8, {WS}, s{sA} offen sc1", [9], 16, "QKV")
    a(f"""
    s_mov_b32 s{sSeg}, s{sW}
    s_lshl_b32 s{sA}, s{sW}, 5
    s_add_u32 s{sA}, s{sA}, s{sRole}
    s_lshl_b32 s{sQ}, s{sA}, 13
    s_lshl_b32 s{sKm}, s{sA}, 12
    s_add_u32 s{sKm}, s{sKm}, {KMEM}
    s_lshl_b32 s{sVm}, s{sA}, 11
    s_add_u32 s{sVm}, s{sVm}, {VMEM}
    s_lshl_b32 s{sO}, s{sW}, 18
    s_lshl_b32 s{sB}, s{sRole}, 12
    s_add_u32 s{sO}, s{sO}, s{sB}
    s_add_u32 s{sO}, s{sO}, {OIMG}
    s_lshl_b32 s{sCh}, s{sRole}, 7
    s_add_u32 s{sCh}, s{sCh}, {CHF}
    s_lshl_b32 s{sAt}, s{sA}, 7
    s_add_u32 s{sAt}, s{sAt}, {ATF}
    s_mov_b32 s{sCnt}, 0
    v_mov_b32 v10, 0
    """)
    vQ, vK, vV, vKM, vVM = 16, 48, 80, 112, 128
    ONE = 136
    S = lambda qt, kt: 140 + (qt * 3 + kt) * 4
    PX = lambda qt: 164 + qt * 4
    PM = lambda qt: 172 + qt * 4
    L_ = lambda qt: 180 + qt * 4
    O = lambda qt, ft: 188 + (qt * 8 + ft) * 4
    for r in range(4): a(f"v_mov_b32 v{ONE+r}, 0x3f803f80")
    for qt in range(2): a(f"v_mov_b32 v{PM(qt)+1}, 0\nv_mov_b32 v{PM(qt)+2}, 0")
    mf = lambda d, A, B, c_: a(f"v_mfma_f32_16x16x32_bf16 {vr(d,4)}, {vr(A,4)}, {vr(B,4)}, {c_}")
    mf16 = lambda d, A, B, c_: a(f"v_mfma_f32_16x16x16_bf16 {vr(d,4)}, {vr(A,2)}, {vr(B,2)}, {c_}")
    a.label("AT_LOOP")
    for (base, img) in ((vK, KIMG), (vQ, QIMG), (vV, VIMG)):
        for hf in range(2):
            a(f"s_add_u32 s{sA}, s{sQ}, {img + hf*4096}")
            for i in range(4):
                a.vm(f"buffer_load_dwordx4 {vr(base+16*hf+4*i,4)}, v4, {WS}, s{sA} offen offset:{i*1024} sc1", ("in", base))
    a.wait_vm(("in", vQ))
    for (qt, kt) in ((0, 0), (1, 0), (1, 1)):
        for s in range(4):
            mf(S(qt, kt), vK + 16 * kt + 4 * s, vQ + 16 * qt + 4 * s, "0" if s == 0 else vr(S(qt, kt), 4))
    a(f"s_add_u32 s{sB}, s{sSeg}, 1")
    poll_ge(a, f"buffer_load_dword v9, v10, {WS}, s{sCh} offen sc1", [9], f"s{sB}", "CH", sleep=SLEEP[0])
    for i in range(4): a.vm(f"buffer_load_dwordx4 {vr(vKM+4*i,4)}, v4, {WS}, s{sKm} offen offset:{i*1024} sc1", "km")
    for i in range(4): a.vm(f"buffer_load_dwordx2 {vr(vVM+2*i,2)}, v5, {WS}, s{sKm} offen offset:{i*1024} sc1", "vm")
    a("v_mov_b32 v11, 0xff800000")
    for (qt, kt) in ((0, 0), (1, 1)):
        for r in range(4):
            a(f"v_cndmask_b32 v{S(qt,kt)+r}, v11, v{S(qt,kt)+r}, s[{sMask+2*r}:{sMask+2*r+1}]")
    a(f"v_max3_f32 v12, v{S(0,0)}, v{S(0,0)+1}, v{S(0,0)+2}\nv_max_f32 v12, v12, v{S(0,0)+3}")
    a(f"v_max3_f32 v14, v{S(1,0)}, v{S(1,0)+1}, v{S(1,0)+2}\nv_max3_f32 v14, v14, v{S(1,0)+3}, v{S(1,1)}")
    a(f"v_max3_f32 v14, v14, v{S(1,1)+1}, v{S(1,1)+2}\nv_max_f32 v14, v14, v{S(1,1)+3}")
    a.wait_vm("km")
    for qt in range(2):
        for s in range(4):
            mf(S(qt, 2), vKM + 4 * s, vQ + 16 * qt + 4 * s, "0" if s == 0 else vr(S(qt, 2), 4))
    a.nop(8)
    for qt in range(2):
        a(f"v_max3_f32 v{12+2*qt}, v{12+2*qt}, v{S(qt,2)+2}, v{S(qt,2)+3}")
    for op in ("v_permlane32_swap_b32", "v_permlane16_swap_b32"):
        a(f"v_mov_b32 v13, v12\nv_mov_b32 v15, v14\ns_nop 0\n{op} v12, v13\n{op} v14, v15\nv_max_f32 v12, v12, v13\nv_max_f32 v14, v14, v15")
    a(f"v_mul_f32 v12, s{sCC}, v12\nv_mul_f32 v14, s{sCC}, v14")
    for qt in range(2):
        m = 12 + 2 * qt
        prs = [S(qt, 2) + 2, S(qt, 0), S(qt, 0) + 2] + ([S(qt, 1), S(qt, 1) + 2] if qt else [])
        for r in prs:
            a(f"v_pk_fma_f32 {vr(r,2)}, {vr(r,2)}, s[{sCC}:{sCC+1}], {vr(m,2)} op_sel_hi:[1,1,0] neg_lo:[0,0,1] neg_hi:[0,0,1]")
        for r in prs: a(f"v_exp_f32 v{r}, v{r}\nv_exp_f32 v{r+1}, v{r+1}")
        a.nop(1)
        a(f"v_cvt_pk_bf16_f32 v{PM(qt)}, v{prs[0]}, v{prs[0]+1}\nv_cvt_pk_bf16_f32 v{PM(qt)+3}, v{prs[0]}, v{prs[0]+1}")
        for k, r in enumerate(prs[1:]): a(f"v_cvt_pk_bf16_f32 v{PX(qt)+k}, v{r}, v{r+1}")
    a.wait_vm_all()
    a.nop(2)
    for qt in range(2):
        mf16(L_(qt), ONE, PM(qt), "0")
        for ft in range(8): mf16(O(qt, ft), vVM + 2 * (ft >> 1), PM(qt) + 2 * (ft & 1), "0")
        m2 = mf if qt else mf16
        m2(L_(qt), ONE, PX(qt), vr(L_(qt), 4))
        for ft in range(8): m2(O(qt, ft), vV + 4 * ft, PX(qt), vr(O(qt, ft), 4))
    for qt in range(2):
        if qt: a.nop(4)
        a(f"v_rcp_f32 v12, v{L_(qt)}")
        if qt: a(f"s_add_u32 s{sA}, s{sO}, {128*1024}")
        else: a.nop(1)
        for pr in range(4):
            d = vK + 16 * qt + 4 * pr
            for h_ in range(2):
                for k in range(2):
                    r = O(qt, 2 * pr + h_) + 2 * k
                    a(f"v_pk_mul_f32 {vr(r,2)}, {vr(r,2)}, v[12:13] op_sel_hi:[1,0]")
                    a(f"v_cvt_pk_bf16_f32 v{d+2*h_+k}, v{r}, v{r+1}")
            a.vm(f"buffer_store_dwordx4 {vr(d,4)}, v4, {WS}, s{sA if qt else sO} offen offset:{pr*1024} sc1", "o")
    a(f"s_add_u32 s{sCnt}, s{sCnt}, 1")
    a.wait_vm_all()
    flag_store(a, f"s{sAt}", f"s{sCnt}", 8)
    a(f"""
    s_add_u32 s{sQ}, s{sQ}, {4*32*8192}
    s_add_u32 s{sKm}, s{sKm}, {4*32*4096}
    s_add_u32 s{sVm}, s{sVm}, {4*32*2048}
    s_add_u32 s{sO}, s{sO}, {4*2*128*1024}
    s_add_u32 s{sSeg}, s{sSeg}, 4
    s_cmp_lt_u32 s{sSeg}, 64
    s_cbranch_scc1 AT_LOOP
    """)
    a.vmq = []; a.dsq = []

def gemm2(a, diag=False):
    sCs, sU, sO, sH_, sX, sN, sPar = 18, 19, 20, 21, 22, 23, 24
    srd(a, 12, "Wo", 4096 * 1024)
    srd(a, 48, "w2", 1792 * 1024)
    srd(a, 52, "x", 2048 * 1024)
    srd(a, 56, "out", 2048 * 1024)
    srd(a, 60, "b2", 1024)
    a(f"""
    s_and_b32 s{sCs}, s{sRole}, 15
    s_lshr_b32 s{sU}, s{sRole}, 4
    v_and_b32 v100, 15, v0
    v_lshrrev_b32 v101, 4, v0
    v_and_b32 v102, 3, v0
    v_bfe_u32 v103, v0, 2, 2
    v_lshrrev_b32 v4, 2, v0
    v_lshlrev_b32 v4, 10, v4
    v_lshl_add_u32 v4, v102, 4, v4
    s_lshl_b32 s{sA}, s{sCs}, 6
    v_add_u32 v104, s{sA}, v4
    v_lshl_add_u32 v4, v101, 2, v103
    v_lshlrev_b32 v4, 6, v4
    v_lshl_add_u32 v4, v102, 4, v4
    s_mul_i32 s{sA}, s{sW}, 32768
    v_add_u32 v105, s{sA}, v4
    s_waitcnt lgkmcnt(0)
    """)
    Wo_ = lambda s, T: ar(8 * s + 4 * T, 4)
    VW2 = 144
    W2_ = lambda s, T: vr(VW2 + 8 * s + 4 * T, 4)
    chunks = [("o", c, 8) for c in range(8)] + [("2", c, 8) for c in range(3)] + [("2", 3, 4)]
    a(f"s_lshl_b32 s{sN}, s{sW}, 20\ns_mul_i32 s{sB}, s{sW}, {448*1024}")
    def issue(n):
        m, c, cnt = chunks[n]
        for i in range(cnt):
            a(f"s_add_u32 m0, s{sA}, {(n%4)*8192 + i*1024}\ns_nop 0")
            so = sN if m == "o" else sB
            a.vm(f"buffer_load_dwordx4 v104, {'s[12:15]' if m == 'o' else 's[48:51]'}, s{so} offen lds", ("w", n))
            a(f"s_add_u32 s{so}, s{so}, {16*1024}")
    for n in range(4): issue(n)
    for n, (m, c, cnt) in enumerate(chunks):
        a.wait_vm(("w", n))
        for s_ in range(cnt // 2):
            for T in range(2):
                for p in range(2):
                    base = (8 * (4 * c + s_) + 4 * T + 2 * p)
                    dst = ar(base, 2) if m == "o" else vr(VW2 + base, 2)
                    a.ds(f"ds_read_b64_tr_b16 {dst}, v105 offset:{(n%4)*8192 + (32*s_+16*p)*64 + T*8}")
        a.wait_ds_all()
        if n + 4 < len(chunks): issue(n + 4)
    if diag: a("s_memrealtime s[68:69]")
    vB = 8
    a(f"""
    v_lshlrev_b32 v4, 4, v101
    s_lshl_b32 s{sA}, s{sCs}, 6
    buffer_load_dwordx4 v[16:19], v4, s[60:63], s{sA} offen
    v_lshl_add_u32 v6, v100, 10, v4
    v_add_u32 v6, s{sA}, v6
    v_lshlrev_b32 v4, 4, v0
    v_add_u32 v5, 131072, v4
    v_and_b32 v7, 7, v0
    v_lshlrev_b32 v7, 7, v7
    s_waitcnt vmcnt(0)
    """)
    for k in range(4): a(f"v_lshlrev_b32 v{vB+2*k}, 16, v{16+k}\nv_and_b32 v{vB+2*k+1}, 0xffff0000, v{16+k}")
    a(f"v_min_u32 v16, 27, v0\nv_lshlrev_b32 v16, 7, v16\ns_mov_b32 s{sA}, {G1F + 48*4*128}")
    poll_ge(a, f"buffer_load_dword v17, v16, {WS}, s{sA} offen sc1", [17], 16, "H")
    a(f"s_mov_b32 s{sPar}, 0")
    a("s_barrier")
    NR = 24
    vR = lambda k: 40 + 4 * (k % NR)
    AC = 24
    a.label("G2_LOOP")
    a(f"""
    s_mul_i32 s{sH_}, s{sU}, {56*1024}
    s_mul_i32 s{sA}, s{sW}, {14*1024}
    s_add_u32 s{sH_}, s{sH_}, s{sA}
    s_add_u32 s{sH_}, s{sH_}, {HIMG}
    s_lshl_b32 s{sO}, s{sU}, 17
    s_lshl_b32 s{sA}, s{sW}, 15
    s_add_u32 s{sO}, s{sO}, s{sA}
    s_add_u32 s{sO}, s{sO}, {OIMG}
    s_lshl_b32 s{sX}, s{sU}, 14
    """)
    a.vm(f"buffer_load_dwordx4 v[20:23], v6, s[52:55], s{sX} offen", "x")
    def ld(k, sbase, n):
        if n and n % 4 == 0: a(f"s_add_u32 s{sbase}, s{sbase}, 4096")
        a.vm(f"buffer_load_dwordx4 {vr(vR(k),4)}, v4, {WS}, s{sbase} offen offset:{(n%4)*1024} sc1", ("a", k))
    for n in range(14): ld(n, sH_, n)
    for n in range(14):
        a.wait_vm(("a", n))
        for T in range(2):
            a(f"v_mfma_f32_16x16x32_bf16 {vr(AC+4*T,4)}, {W2_(n,T)}, {vr(vR(n),4)}, {'0' if n == 0 else vr(AC+4*T,4)}")
    a(f"""
    s_lshr_b32 s{sB}, s{sU}, 1
    s_and_b32 s{sA}, s{sB}, 3
    s_lshl_b32 s{sA}, s{sA}, 12
    s_lshl_b32 s{sC_}, s{sW}, 10
    s_add_u32 s{sA}, s{sA}, s{sC_}
    s_add_u32 s{sA}, s{sA}, {ATF}
    s_lshr_b32 s{sB}, s{sB}, 2
    s_add_u32 s{sB}, s{sB}, 1
    """)
    poll_ge(a, f"buffer_load_dword v17, v7, {WS}, s{sA} offen sc1", [17], f"s{sB}", "AT", sleep=SLEEP[0])
    for n in range(NR): ld(n, sO, n)
    for n in range(32):
        a.wait_vm(("a", n))
        for T in range(2):
            a(f"v_mfma_f32_16x16x32_bf16 {vr(AC+4*T,4)}, {Wo_(n,T)}, {vr(vR(n),4)}, {vr(AC+4*T,4)}")
        if n + NR < 32: ld(n + NR, sO, n + NR)
    a(f"s_lshl_b32 s{sA}, s{sW}, 11\ns_add_u32 s{sA}, s{sA}, s{sPar}\nv_add_u32 v16, s{sA}, v5")
    a.nop(6)
    a.ds(f"ds_write_b128 v16, {vr(AC,4)}")
    a.ds(f"ds_write_b128 v16, {vr(AC+4,4)} offset:1024")
    a.wait_ds_all()
    a("s_barrier")
    a(f"s_cmp_lg_u32 s{sW}, 0\ns_cbranch_scc1 G2_NEXT")
    for w_ in range(1, 4):
        a.ds(f"ds_read_b128 v[32:35], v16 offset:{w_*2048}")
        a.ds(f"ds_read_b128 v[36:39], v16 offset:{w_*2048+1024}")
        a.wait_ds_all()
        for k in range(4): a(f"v_pk_add_f32 {vr(AC+2*k,2)}, {vr(AC+2*k,2)}, {vr(32+2*k,2)}")
    for k in range(4):
        a(f"v_lshlrev_b32 v32, 16, v{20+k}\nv_and_b32 v33, 0xffff0000, v{20+k}")
        a(f"v_pk_add_f32 {vr(AC+2*k,2)}, {vr(AC+2*k,2)}, {vr(vB+2*k,2)}")
        a(f"v_pk_add_f32 {vr(AC+2*k,2)}, {vr(AC+2*k,2)}, v[32:33]")
        a(f"v_cvt_pk_bf16_f32 v{36+k}, v{AC+2*k}, v{AC+2*k+1}")
    a(f"buffer_store_dwordx4 v[36:39], v6, s[56:59], s{sX} offen")
    a.label("G2_NEXT")
    a(f"""
    s_xor_b32 s{sPar}, s{sPar}, 8192
    s_add_u32 s{sU}, s{sU}, {NSETS}
    s_cmp_lt_u32 s{sU}, 128
    s_cbranch_scc1 G2_LOOP
    """)
    a.vmq = []; a.dsq = []
```

```python
import sys
from asm import *
from layout import *
import chain as C
import workers as Wk
NAME = "parallel_sum__memory_aug_recurrent_mem_tr__dense_activation_squared_relu__prompt"
CH = dict(pre_bar=2, v_0=0, v_pre=3, o_pre=2, dlyA=(32, 48), dlyB=(0, 0, 0), w1c=20, pbar=1, nrA=3, bound=1 << 15, depA=2, depB=2, gapA=24, gapB=16, x0=0, xw_only=1, jbar=1, jobs='S', j0=6, jstr=9, jw=2, a_burst=2, r_pre=2, kx_in=5, nt='')
sDB = 4
sInit, sReady, sMode, sXcc, sTent = 84, 85, 86, 87, 83
sCounted, sLost = 29, 79
sA, sB, sC_, sD = Wk.sA, Wk.sB, Wk.sC_, Wk.sD
WS = Wk.WS
DB = f"s[{sDB}:{sDB+3}]"
ROLE_LDS = 163840 - 16
MODE_BOUND = 2000

def wait_init(a, v=2):
    L = a.newlabel("INIT")
    a(f"s_cmp_lg_u32 s{sInit}, 0\ns_cbranch_scc1 {L}")
    a(f"v_mov_b32 v{v}, {D_INIT}")
    Wk.poll_ge(a, f"buffer_load_dword v{v+1}, v{v}, {DB}, 0 offen sc1", [v + 1], 256, "INIT", sleep=4)
    a(f"s_mov_b32 s{sInit}, 1")
    a.label(L)

def atomic(a, op, off, val, dst, cmp=None):
    a(f"s_mov_b64 exec, 1\nv_mov_b32 v20, {val}\nv_mov_b32 v22, {off}")
    if cmp is not None:
        a(f"v_mov_b32 v21, {cmp}\nbuffer_atomic_cmpswap v[20:21], v22, {DB}, 0 offen sc0")
    else:
        a(f"buffer_atomic_{op} v20, v22, {DB}, 0 offen sc0")
    a(f"s_waitcnt vmcnt(0)\nv_readfirstlane_b32 s{dst}, v20\ns_mov_b64 exec, -1\ns_nop 3")

def claim(a, name, sRes, sOff):
    a.label(f"CLAIM_{name}")
    a(f"s_lshl_b32 s{sC_}, 1, s{sA}")
    atomic(a, "or", f"s{sOff}", f"s{sC_}", sB)
    a.label(f"CLAIM_{name}_R")
    a(f"s_and_b32 s{sD}, s{sB}, s{sC_}\ns_or_b32 s{sB}, s{sB}, s{sC_}\ns_mov_b32 s{sRes}, s{sA}")
    a(f"s_cmp_eq_u32 s{sD}, 0\ns_cbranch_scc1 CLAIM_{name}_E")
    a(f"s_mov_b32 s{sRes}, -1\ns_cmp_eq_u32 s{sB}, -1\ns_cbranch_scc1 CLAIM_{name}_E")
    a(f"s_ff0_i32_b32 s{sA}, s{sB}\ns_branch CLAIM_{name}")
    a.label(f"CLAIM_{name}_E")

def bcast(a, s):
    L = a.newlabel("BC")
    a(f"v_mov_b32 v22, {ROLE_LDS}")
    a(f"s_cmp_lg_u32 s{Wk.sW}, 0\ns_cbranch_scc1 {L}\nv_mov_b32 v20, s{s}\nds_write_b32 v22, v20\ns_waitcnt lgkmcnt(0)")
    a.label(L)
    a(f"s_barrier\nds_read_b32 v20, v22\ns_waitcnt lgkmcnt(0)\nv_readfirstlane_b32 s{s}, v20\ns_barrier")

def gen(P=CH, diag=False, force_slow=False):
    a = Asm()
    Wk.SLEEP[0] = P.get('sleep', 2); Wk.PREFETCH[0] = P.get('pf', ()); Wk.HOLD[0] = P.get('hold', 0)
    sR = Wk.sRole
    a(f"""
    s_cmp_ge_u32 s2, 256
    s_cbranch_scc1 L_END
    s_load_dwordx2 s[{Wk.sWS}:{Wk.sWS+1}], s[0:1], {KA['ws']}
    s_load_dwordx2 s[{sDB}:{sDB+1}], s[0:1], {KA['dbg']}
    s_getreg_b32 s{sXcc}, hwreg(HW_REG_XCC_ID, 0, 4)
    s_mov_b32 s{Wk.sWS+2}, {WS_BYTES}
    s_mov_b32 s{Wk.sWS+3}, 0x20000
    s_mov_b32 s{sDB+2}, 256
    s_mov_b32 s{sDB+3}, 0x20000
    s_mov_b32 s{Wk.sDead}, 0
    s_mov_b32 s{sInit}, 0
    s_mov_b32 s{sCounted}, 0
    s_mov_b32 s82, 0
    s_mov_b32 s{sLost}, 0
    v_mov_b32 v250, 0
    v_lshrrev_b32 v1, 6, v0
    v_lshlrev_b32 v8, 4, v0
    v_readfirstlane_b32 s{Wk.sW}, v1
    v_and_b32 v0, 63, v0
    v_mov_b32 v12, -1
    v_mov_b32 v13, -1
    v_mov_b32 v14, -1
    v_mov_b32 v15, -1
    """)
    if diag: a("s_memrealtime s[90:91]")
    CX = 9 if force_slow else 0
    sOff, sTry, sDie, sWord, sSpec = 18, 19, 80, 81, 82
    def declare(a):
        L = a.newlabel("DECL")
        a(f"s_cmp_lg_u32 s{sB}, -1\ns_cbranch_scc1 {L}")
        a(f"s_mov_b64 exec, 1\nv_mov_b32 v20, 1\nv_mov_b32 v21, 0\nv_mov_b32 v22, {D_MODE}\nbuffer_atomic_cmpswap v[20:21], v22, {DB}, 0 offen\ns_mov_b64 exec, -1")
        a.label(L)
    a(f"""
    s_bfe_u32 s{sR}, s2, 0x50003
    s_waitcnt lgkmcnt(0)
    """)
    a(f"""
    s_mov_b32 s{sTent}, s{sR}
    s_add_u32 s{sDie}, s{sXcc}, 6
    s_cmp_ge_u32 s{sDie}, 7
    s_cselect_b32 s3, 7, 0
    s_sub_u32 s{sDie}, s{sDie}, s3
    s_min_u32 s{sDie}, s{sDie}, 6
    s_lshl_b32 s{sWord}, s{sDie}, 2
    s_add_u32 s{sWord}, s{sWord}, {D_WM}
    s_cmp_eq_u32 s{sXcc}, {CX}
    s_cselect_b32 s{sWord}, {D_MASK}, s{sWord}
    s_cmp_lg_u32 s{Wk.sW}, 0
    s_cbranch_scc1 L_I1
    s_lshl_b32 s3, s2, 10
    s_add_u32 s3, s3, {PART}
    buffer_store_dwordx4 v[12:15], v8, {WS}, s3 offen sc1
    s_lshl_b32 s3, s2, 7
    s_add_u32 s3, s3, {MBUF}
    s_mov_b64 exec, 0xff
    buffer_store_dwordx4 v[12:15], v8, {WS}, s3 offen sc1
    s_mov_b64 exec, -1
    s_mul_i32 s3, s2, 192
    s_add_u32 s3, s3, {FLG}
    v_mov_b32 v16, 0
    v_mov_b32 v17, 0
    v_mov_b32 v18, 0
    v_mov_b32 v19, 0
    s_mov_b64 exec, 0xfff
    buffer_store_dwordx4 v[16:19], v8, {WS}, s3 offen sc1
    s_mov_b64 exec, 1
    s_lshl_b32 s3, 1, s{sTent}
    v_mov_b32 v250, s3
    v_mov_b32 v22, s{sWord}
    buffer_atomic_or v250, v22, {DB}, 0 offen sc0
    s_mov_b64 exec, -1
    L_I1:
    s_cmp_lg_u32 s{sXcc}, {CX}
    s_cbranch_scc1 L_NOSPEC
    s_mov_b32 s{sSpec}, 1
    s_branch L_CHAIN
    L_CLOST:
    s_cmp_lg_u32 s{Wk.sW}, 0
    s_cbranch_scc1 L_ROLE
    s_mov_b32 s{sA}, s{sTent}
    s_mov_b32 s{sOff}, {D_MASK}
    """)
    claim(a, "A", sR, sOff)
    a(f"s_cmp_eq_u32 s{sR}, -1\ns_cbranch_scc1 L_WCLAIM")
    declare(a)
    a("s_branch L_ROLE")
    a.label("L_NOSPEC")
    a(f"s_lshl_b32 s{sR}, s{sDie}, 5\ns_add_u32 s{sR}, s{sR}, s{sTent}\ns_mov_b32 s{sSpec}, 1\ns_branch L_WORK")
    a.label("L_WLOST")
    a(f"s_cmp_lg_u32 s{Wk.sW}, 0\ns_cbranch_scc1 L_ROLE2")
    a.label("L_WCLAIM")
    a(f"s_mov_b32 s{sOff}, s{sDie}\ns_mov_b32 s{sTry}, 0\ns_mov_b32 s{sA}, s{sTent}")
    a.label("L_WNEXT")
    a(f"s_cmp_ge_u32 s{sOff}, 7\ns_cselect_b32 s{sB}, 7, 0\ns_sub_u32 s{sOff}, s{sOff}, s{sB}")
    a(f"s_cmp_ge_u32 s{sOff}, 7\ns_cselect_b32 s{sB}, 7, 0\ns_sub_u32 s{sOff}, s{sOff}, s{sB}")
    a(f"s_lshl_b32 s{sOff}, s{sOff}, 2\ns_add_u32 s{sOff}, s{sOff}, {D_WM}")
    claim(a, "W", sR, sOff)
    a(f"s_sub_u32 s{sOff}, s{sOff}, {D_WM}\ns_lshr_b32 s{sOff}, s{sOff}, 2")
    a(f"s_cmp_eq_u32 s{sR}, -1\ns_cbranch_scc0 L_WGOT")
    a(f"s_add_u32 s{sOff}, s{sOff}, 1\ns_add_u32 s{sTry}, s{sTry}, 1\ns_mov_b32 s{sA}, 0\ns_cmp_lt_u32 s{sTry}, 7\ns_cbranch_scc1 L_WNEXT")
    atomic(a, "cmpswap", D_MODE, 2, sB, cmp=0)
    a(f"s_mov_b32 s{sA}, 0\ns_mov_b32 s{sOff}, {D_MASK}")
    claim(a, "B", sR, sOff)
    a("s_branch L_ROLE")
    a.label("L_WGOT")
    a(f"s_lshl_b32 s{sOff}, s{sOff}, 5\ns_add_u32 s{sR}, s{sR}, s{sOff}\ns_add_u32 s{sR}, s{sR}, 32")
    def init_done(a):
        L = a.newlabel("INITD")
        a(f"s_cmp_lg_u32 s{Wk.sW}, 0\ns_cbranch_scc1 {L}\ns_cmp_lg_u32 s{sCounted}, 0\ns_cbranch_scc1 {L}\ns_mov_b32 s{sCounted}, 1")
        a(f"s_mov_b64 exec, 1\nv_mov_b32 v20, 1\nv_mov_b32 v22, {D_INIT}\nbuffer_atomic_add v20, v22, {DB}, 0 offen\ns_mov_b64 exec, -1")
        a.label(L)
    def verdict(a):
        L = a.newlabel("VERD")
        a(f"s_cmp_eq_u32 s{sSpec}, 0\ns_cbranch_scc1 {L}\ns_mov_b32 s{sSpec}, 0")
        a(f"s_waitcnt vmcnt(0)\nv_readfirstlane_b32 s{sB}, v250\ns_nop 3\ns_lshr_b32 s{sB}, s{sB}, s{sTent}\ns_and_b32 s{sB}, s{sB}, 1")
        bcast(a, sB)
        a(f"s_cmp_lg_u32 s{sB}, 0\ns_cbranch_scc1 L_WLOST")
        a.label(L)
    a.label("L_ROLE")
    a.label("L_ROLE2")
    bcast(a, sR)
    a(f"s_cmp_lt_u32 s{sR}, 32\ns_cbranch_scc1 L_CHAIN")
    a(f"s_cmp_eq_u32 s{sR}, -1\ns_cbranch_scc1 L_FIN")
    a(f"s_waitcnt vmcnt(0)\ns_sub_u32 s{sR}, s{sR}, 32")
    a.label("L_WORK")
    if diag: a("s_memrealtime s[70:71]\ns_waitcnt lgkmcnt(0)\ns_mov_b32 s100, s70\ns_add_u32 s101, s16, 32")
    if diag: a("s_mov_b32 s64, 0\ns_mov_b32 s66, 0\ns_mov_b32 s68, 0\ns_mov_b32 s72, 0")
    Wk.gemm1(a, wait_init, verdict, init_done, diag)
    if diag: a("s_memtime s[78:79]")
    if diag: a("s_memrealtime s[92:93]")
    wait_init(a)
    a(f"s_cmp_ge_u32 s{sR}, 32\ns_cbranch_scc1 L_G2")
    Wk.attention(a)
    a("s_branch L_FIN")
    a.label("L_G2")
    a(f"s_sub_u32 s{sR}, s{sR}, 32")
    Wk.gemm2(a, diag)
    a("s_branch L_FIN")
    a.label("L_CHAIN")
    if diag: a("s_memrealtime s[70:71]\ns_waitcnt lgkmcnt(0)\ns_mov_b32 s100, s70\ns_mov_b32 s101, s16")
    def first_chunk(a):
        init_done(a)
        L = a.newlabel("CV")
        a(f"s_cmp_eq_u32 s{sSpec}, 0\ns_cbranch_scc1 {L}\ns_cmp_lg_u32 s{Wk.sW}, 0\ns_cbranch_scc1 {L}")
        a(f"v_readfirstlane_b32 s{sB}, v250\ns_lshl_b32 s3, 1, s{sTent}\ns_nop 2\ns_and_b32 s{sLost}, s{sB}, s3\ns_or_b32 s{sB}, s{sB}, s3")
        a(f"s_cmp_lg_u32 s{sLost}, 0\ns_cbranch_scc1 {L}")
        declare(a)
        a.label(L)
    def staged(a):
        L = a.newlabel("CV")
        a(f"s_cmp_eq_u32 s{sSpec}, 0\ns_cbranch_scc1 {L}\ns_mov_b32 s{sSpec}, 0")
        bcast(a, sLost)
        a(f"s_cmp_lg_u32 s{sLost}, 0\ns_cbranch_scc1 L_CLOST")
        a.label(L)
    sChf, sG1 = 88, 89
    def g1addr(a, lane):
        a(f"v_and_b32 v11, 3, {lane}\nv_bfe_u32 v10, {lane}, 2, 1\nv_lshlrev_b32 v10, 13, v10\nv_lshl_add_u32 v10, v11, 7, v10")
    def set_ready(a, v):
        for perm in ("quad_perm:[1,0,3,2]", "quad_perm:[2,3,0,1]", "row_half_mirror"):
            a(f"s_nop 1\nv_min_u32_dpp v{v}, v{v}, v{v} {perm} row_mask:0xf bank_mask:0xf")
        a(f"s_nop 0\nv_readfirstlane_b32 s{sReady}, v{v}\ns_nop 3\ns_lshl_b32 s{sReady}, s{sReady}, 2")
    def peek(a):
        if P.get("hold"):
            L = a.newlabel("STG")
            a(f"s_cmp_lg_u32 s{Wk.sW}, 0\ns_cbranch_scc1 {L}\ns_cmp_lg_u32 s{sLost}, 0\ns_cbranch_scc1 {L}")
            a(f"s_mov_b64 exec, 1\nv_mov_b32 v20, 1\nv_mov_b32 v22, {D_STAGED}\nbuffer_atomic_add v20, v22, {DB}, 0 offen\ns_mov_b64 exec, -1")
            a.label(L)
        a(f"s_lshl_b32 s{sChf}, s{C.sH}, 7\ns_add_u32 s{sChf}, s{sChf}, {CHF}")
        a(f"s_lshr_b32 s{sG1}, s{C.sH}, 1\ns_lshl_b32 s{sG1}, s{sG1}, 9\ns_add_u32 s{sG1}, s{sG1}, {G1F}")
        g1addr(a, "v0")
        a(f"v_mov_b32 v24, 0\nbuffer_load_dwordx2 v[26:27], v24, {DB}, 0 offen sc1\nbuffer_load_dword v25, v10, {WS}, s{sG1} offen sc1")
    C.prologue_a(a, P, True)
    C.prologue_b(a, P, first_chunk, staged, peek)
    a(f"s_waitcnt vmcnt(0)\nv_readfirstlane_b32 s{sMode}, v26\nv_readfirstlane_b32 s3, v27")
    set_ready(a, 25)
    a(f"s_cmp_ge_u32 s3, 256\ns_cselect_b32 s{sInit}, 1, s{sInit}\ns_cselect_b32 s{sReady}, s{sReady}, 0")
    wait_init(a, 10)
    a(f"s_cmp_lg_u32 s{sMode}, 0\ns_cbranch_scc1 L_MODEOK\nv_mov_b32 v10, {D_MODE}")
    Wk.poll_ge(a, f"buffer_load_dword v11, v10, {DB}, 0 offen sc1", [11], 1, "MODE")
    a(f"v_readfirstlane_b32 s{sMode}, v11\ns_nop 3")
    a.label("L_MODEOK")
    if diag:
        for k in range(20, 30): a(f"s_mov_b32 s{C.sTS+k}, 0")
        a("s_memrealtime s[92:93]\ns_memtime s[96:97]")
    stubs = []
    def ready(a, w, tag, first):
        L = a.newlabel("RDY")
        if first: a(f"s_mov_b32 s{C.sStep}, 0")
        a(f"s_add_u32 s{C.sT0}, s{C.sStep}, 1\ns_min_u32 s{C.sT0}, s{C.sT0}, 63\ns_cmp_ge_u32 s{C.sT0}, s{sReady}\ns_cbranch_scc1 {L}_S")
        a.label(L)
        stubs.append(L)
    def flag(a):
        if P.get("noflag"): return
        a(f"s_sub_u32 s{C.sT0}, s{C.sStep}, 1\ns_max_i32 s{C.sT0}, s{C.sT0}, 0")
        Wk.flag_store(a, f"s{sChf}", f"s{C.sT0}", 10)
    def done(a, w):
        a("s_waitcnt vmcnt(0)\ns_barrier")
        if w == 0: Wk.flag_store(a, f"s{sChf}", 64, 10)
        a.vmq = []
        a("s_branch L_FIN")
        for L in stubs:
            a.label(L + "_S")
            a(f"s_lshr_b32 s{C.sT0}, s{C.sT0}, 2\ns_add_u32 s{C.sT0}, s{C.sT0}, 1")
            a(f"v_lshrrev_b32 v10, 3, v{C.vL8}")
            g1addr(a, "v10")
            Wk.poll_ge(a, f"buffer_load_dword v11, v10, {WS}, s{sG1} offen sc1", [11], f"s{C.sT0}", "KV", sleep=0)
            set_ready(a, 11)
            a(f"s_branch {L}")
        stubs.clear()
    P = dict(P, hooks=dict(ready=ready, flag=flag, done=done))
    a(f"s_cmp_eq_u32 s{sMode}, 1\ns_cbranch_scc0 L_SLOW")
    for st in ("", "sc1"):
        if st: a.label("L_SLOW")
        t = "s" if st else "f"
        for w in range(1, 4): a(f"s_cmp_eq_u32 s{C.sW}, {w}\ns_cbranch_scc1 CH_W{w}{t}")
        for w in range(4):
            a.label(f"CH_W{w}{t}")
            C.loop(a, w, st, P, diag)
    a.label("L_FIN")
    if diag:
        a("s_memrealtime s[94:95]\ns_memtime s[98:99]\ns_waitcnt lgkmcnt(0)")
        a(f"s_lshl_b32 s3, s2, 2\ns_add_u32 s3, s3, s{Wk.sW}\ns_lshl_b32 s3, s3, 7\ns_add_u32 s3, s3, {DBG}")
        vals = [C.sTS + 20 + k for k in range(10)] + [90, 92, 94, 96, 98, sR, sXcc, Wk.sDead, 100, 101, 72, 74, 76, 78]
        for i, sg in enumerate(vals):
            a(f"v_mov_b32 v20, s{sg}\nv_mov_b32 v21, {4*i}\nbuffer_store_dword v20, v21, {WS}, s3 offen")
    a("s_waitcnt vmcnt(0)")
    a.label("L_END")
    return a.text()

def wrap(body):
    ref = open(f"cdna_kernels/{NAME}.s.ref").read().split("\n")
    head = [l for l in ref if l.startswith(";") and "@launch" not in l]
    return "\n".join(head) + f"""
; @launch grid=(256,1,1) block=(256,1,1) lds=163840
.amdgcn_target "amdgcn-amd-amdhsa--gfx950"
.text
.globl {NAME}_kernel
.p2align 8
.type {NAME}_kernel,@function
{NAME}_kernel:
{body}s_endpgm
.section .rodata,"a"
.p2align 6
.amdhsa_kernel {NAME}_kernel
  .amdhsa_next_free_vgpr 512
  .amdhsa_next_free_sgpr 102
  .amdhsa_accum_offset 256
  .amdhsa_group_segment_fixed_size 0
  .amdhsa_kernarg_size 120
  .amdhsa_user_sgpr_count 2
  .amdhsa_user_sgpr_kernarg_segment_ptr 1
  .amdhsa_system_sgpr_workgroup_id_x 1
.end_amdhsa_kernel
"""
if __name__ == "__main__":
    import ast
    P = dict(CH)
    if len(sys.argv) > 2: P.update(ast.literal_eval(sys.argv[2]))
    t = gen(P)
    hz = check(t)
    for h in hz[:12]: print(h)
    out = sys.argv[1] if len(sys.argv) > 1 else f"cdna_kernels/{NAME}.s"
    open(out, "w").write(wrap(t))
    print("lines", len(t.split("\n")), "hazards", len(hz))
```

```python
from asm import *
from layout import *
import math

MISC = 131072
M_OFF = 0
X_OFF = 8192
KX_OFF = 16384
O_OFF = 0
XS = 1088
sWS = 8
sTMP = 12
sH, sW, sStep = 16, 17, 18
sPst, sPld, sTag, sMpub, sMpoll, sMclr = 19, 20, 21, 22, 23, 24
sVx, sKx, sKm, sVm = 25, 26, 27, 28
sC = 30
sT0, sT1, sT2, sT3 = 32, 33, 34, 35
sCnt = 36
sLO8 = 38
sDBG = 40
sTS = 44
vIDX, vKx, vM16, vRing, vPst, vMpub, vXw, vXr, vOr = 1, 2, 3, 4, 5, 6, 7, 8, 9
vL8 = 0
vNEG = 10
vVA0 = 12
RA_OFF = 12544
vVX = 16
vPM = 24
vACC = 28
vA = 44
vRING = 76
vT = 124
vWK = 128
NRING = 6
WQ_SLOT = [2, 3, 1, 0]
def ringreg(i): return vRING + 8 * (i % NRING)
KXREG = [vRING + 8*4, vRING + 8*5, vRING + 0, vRING + 8]
def kx(kt, s): return KXREG[kt*2 + (s >> 1)] + 4 * (s & 1)
vXF = vRING + 16
def wv(t, s): return 8 * (t * 8 + s)
def wo(d, s): return 128 + 8 * (d * 4 + s)
def wk(t, s): return vWK + 8 * (t * 8 + s)

def wq_lds_imm(i):
    t, s = i >> 3, i & 7
    return WQ_SLOT[s >> 1] * 8192 + ((s & 1) * 2 + t) * 2048

def stamp(a, k, diag):
    if diag: a(f"s_memtime s[{sTS+2*k}:{sTS+2*k+1}]")

def prologue(a, P, diag=False):
    a(f"v_lshrrev_b32 v10, 6, v0\nv_and_b32 v0, 63, v0\nv_readfirstlane_b32 s{sW}, v10\ns_nop 3")
    prologue_a(a, P, True); prologue_b(a, P)

def prologue_a(a, P, dma):
    WNT[0] = P.get("wnt", "")
    a(f"""
    s_load_dwordx4 s[48:51], s[0:1], {KA['Wq']}
    s_load_dwordx4 s[52:55], s[0:1], {KA['Wv']}
    s_load_dwordx2 s[56:57], s[0:1], {KA['mem0']}
    """)
    a(f"""
    v_and_b32 v100, 15, v0            ; n
    v_lshrrev_b32 v101, 4, v0         ; g
    v_and_b32 v102, 3, v0             ; c
    v_bfe_u32 v103, v0, 2, 2          ; r''
    """)
    a(f"""
    s_lshl_b32 s{sT2}, s{sH}, 8
    s_lshl_b32 s{sT3}, s{sW}, 6
    s_add_u32 s{sT2}, s{sT2}, s{sT3}
    v_lshrrev_b32 v10, 2, v0
    """)
    for k in range(4):
        a(f"v_xor_b32 v11, {k & 2}, v10\nv_lshlrev_b32 v11, 13, v11\nv_xor_b32 v104, {2*(k&1)}, v102\nv_lshl_add_u32 v11, v104, 4, v11\nv_add_u32 v{vSQ+k}, s{sT2}, v11")
        a(f"v_mov_b32 v{vSRC+k}, v{vSQ+k}\nv_mov_b32 v{vSRC+4+k}, v{vSQ+k}")
    a(f"""
    s_lshl_b32 s{sB0}, s{sW}, 15
    s_lshl_b32 s{sB1}, s{sW}, 13
    s_add_u32 s{sB1}, s{sB1}, {MISC}
    s_mov_b32 s62, 0x400000
    s_mov_b32 s63, 0x20000
    s_getpc_b64 s[{sSub}:{sSub+1}]
    s_add_u32 s{sSub}, s{sSub}, 12
    s_addc_u32 s{sSub+1}, s{sSub+1}, 0
    s_branch CH_SUBE
    """)
    for i in range(8):
        a(f"s_mov_b32 m0, s64\ns_add_u32 s64, s64, 1024\nbuffer_load_dwordx4 v{vSRC+i}, s[60:63], s65 offen {WNT[0]} lds\ns_add_u32 s65, s65, s66")
    a(f"s_setpc_b64 s[{sRet}:{sRet+1}]")
    a.label("CH_SUBE")
    a("s_waitcnt lgkmcnt(0)")
    for c in range(5): w_issue(a, c)
    a(f"""
    v_and_b32 v10, 2, v0
    v_cmp_eq_u32 vcc, 0, v10
    v_mov_b32 v11, 0xeeee
    v_mov_b32 v104, 0x4444
    v_cndmask_b32 v{vIDX}, v11, v104, vcc
    v_lshlrev_b32 v10, 4, v0
    v_add_u32 v{vM16}, {MISC}, v10
    s_lshl_b32 s{sT0}, s{sW}, 15
    v_add_u32 v{vRing}, s{sT0}, v10
    v_and_b32 v11, 0x3d, v0
    v_lshlrev_b32 v11, 4, v11
    v_add_u32 v{vOr}, {MISC+O_OFF}, v11
    v_lshlrev_b32 v10, 14, v101
    v_lshrrev_b32 v11, 3, v100
    v_lshl_add_u32 v10, v11, 13, v10
    v_and_b32 v11, 7, v100
    v_lshl_add_u32 v{vPst}, v11, 4, v10
    v_lshlrev_b32 v10, 4, v102
    v_bfe_u32 v11, v0, 2, 1
    v_lshl_add_u32 v10, v11, 3, v10
    v_lshrrev_b32 v11, 1, v101
    v_lshl_add_u32 v10, v11, 2, v10
    v_and_b32 v11, 1, v101
    v_lshl_add_u32 v{vMpub}, v11, 8, v10
    v_add_u32 v{vKx}, {KX_OFF}, v{vM16}
    v_mul_u32_u24 v10, {XS}, v101
    v_lshl_add_u32 v10, v100, 3, v10
    s_lshl_b32 s{sT0}, s{sW}, 8
    s_add_u32 s{sT0}, s{sT0}, {MISC+X_OFF}
    v_add_u32 v{vXw}, s{sT0}, v10
    v_mul_u32_u24 v10, {XS}, v102
    v_lshrrev_b32 v11, 2, v0
    v_lshl_add_u32 v10, v11, 3, v10
    v_add_u32 v{vXr}, {MISC+X_OFF}, v10
    v_bfe_u32 v10, v100, 1, 2
    v_and_b32 v11, 1, v100
    v_lshlrev_b32 v11, 4, v11
    v_mov_b32 v104, 0x3f80
    v_lshlrev_b32 v104, v11, v104
    """)
    for k in range(4):
        a(f"v_cmp_eq_u32 vcc, {k}, v10\ns_nop 1\nv_cndmask_b32 v{112+k}, 0, v104, vcc")
    a(f"s_mov_b32 s{sLO8}, 0x00ff00ff\ns_mov_b32 s{sLO8+1}, 0x00ff00ff\ns_mov_b32 s{sB1M}, 0xcccccccc\ns_mov_b32 s{sB1M+1}, 0xcccccccc\ns_mov_b32 s{sONE}, 0x3f803f80")
    c = (128 ** -0.5) * math.log2(math.e)
    import struct
    cb = struct.unpack("<I", struct.pack("<f", c))[0]
    a(f"s_mov_b32 s{sC}, {cb:#x}\ns_mov_b32 s{sC+1}, {cb:#x}")
    a(f"""
    s_lshl_b32 s{sT2}, s{sH}, 17
    s_lshl_b32 s{sT3}, s{sW}, 8
    s_add_u32 s{sT2}, s{sT2}, s{sT3}
    v_and_b32 v105, 1, v101            ; g&1
    v_lshrrev_b32 v106, 1, v101        ; g>>1
    v_and_b32 v107, 1, v103            ; r&1
    v_lshrrev_b32 v108, 1, v103        ; r>>1
    v_lshlrev_b32 v10, 5, v105
    v_lshl_add_u32 v10, v106, 2, v10
    v_lshl_add_u32 v10, v108, 4, v10
    v_add_u32 v109, v10, v107
    v_lshlrev_b32 v10, 4, v105
    v_lshl_add_u32 v10, v106, 2, v10
    v_add_u32 v110, v10, v107
    """)
    for k in range(2):
        a(f"v_lshl_add_u32 v10, v105, 2, 0\nv_xor_b32 v10, v10, v100\nv_xor_b32 v10, {8*k}, v10\nv_lshlrev_b32 v11, 10, v101\nv_lshl_add_u32 v10, v10, 4, v11\nv_add_u32 v{vSO+k}, s{sT2}, v10")
    for mb in range(2):
        for t in range(2):
            a(f"v_add_u32 v10, {2*mb}, v109\nv_lshlrev_b32 v11, 1, v105\nv_xor_b32 v10, v10, v11\nv_lshlrev_b32 v10, 6, v10")
            a(f"v_xor_b32 v11, {t}, v108\nv_lshl_add_u32 v10, v11, 5, v10\nv_lshl_add_u32 v10, v102, 3, v10")
            a(f"v_add_u32 v{vB1+mb*2+t}, s{sB0}, v10\nv_add_u32 v{vB1+4+mb*2+t}, s{sB1}, v10")
    for d in range(4):
        a(f"v_lshl_add_u32 v11, v105, 1, v107\nv_xor_b32 v11, {d}, v11\nv_lshlrev_b32 v10, 8, v110\nv_lshl_add_u32 v10, v11, 6, v10")
        a(f"v_lshl_add_u32 v10, v108, 5, v10\nv_lshl_add_u32 v10, v102, 3, v10")
        a(f"v_add_u32 v{vB2+d}, s{sB0}, v10\nv_add_u32 v{vB2+4+d}, s{sB1}, v10")
    a(f"""
    s_mov_b32 s12, s56
    s_mov_b32 s13, s57
    s_mov_b32 s14, 8192
    s_mov_b32 s15, 0x20000
    v_lshrrev_b32 v10, 2, v100
    v_lshlrev_b32 v10, 1, v10
    v_and_b32 v11, 1, v0
    v_add_u32 v10, v10, v11            ; row
    v_lshlrev_b32 v10, 10, v10
    v_bfe_u32 v11, v0, 1, 1
    v_lshl_add_u32 v10, v11, 5, v10
    v_lshl_add_u32 v10, v101, 3, v10
    s_lshl_b32 s{sT2}, s{sW}, 8        ; ksteps 2w, 2w+1
    v_add_u32 v10, s{sT2}, v10
    buffer_load_dwordx2 v[16:17], v10, s[12:15], 0 offen
    buffer_load_dwordx2 v[18:19], v10, s[12:15], 0 offen offset:64
    buffer_load_dwordx2 v[12:13], v10, s[12:15], 0 offen offset:128
    buffer_load_dwordx2 v[14:15], v10, s[12:15], 0 offen offset:192
    """)

order = ["k"] * 4 + ["v"] * 4 + ["o"] * 4 + ["q"] * 4
srd = {"q": 60, "k": 64, "v": 68, "o": 72}
WNT = ['']
sB0, sB1 = 76, 77
sSub, sRet = 68, 70
vSRC, vSQ, vSO, vB1, vB2 = 76, 84, 88, 90, 116
def w_issue(a, c):
    m = order[c]; cc = c & 3; slot = c % 5
    if cc == 0:
        src = {"q": 48, "k": 50, "v": 52, "o": 54}[m]
        a(f"s_mov_b32 s60, s{src}\ns_mov_b32 s61, s{src+1}\ns_mov_b32 s65, 0")
        if c in (0, 8, 12): a(f"s_mov_b32 s66, {4096 if m == 'o' else 131072}")
        if c in (8, 12):
            for k in range(8): a(f"v_mov_b32 v{vSRC+k}, v{vSO + (k >> 2) if m == 'o' else vSQ + (k & 3)}")
    a(f"s_add_u32 s64, s{sB0}, {slot*8192}" if slot < 4 else f"s_mov_b32 s64, s{sB1}")
    a(f"s_swappc_b64 s[{sRet}:{sRet+1}], s[{sSub}:{sSub+1}]")
    a.vmq += [("w", c)] * 8

def prologue_b(a, P, first_chunk=None, staged=None, peek=None):
    issue = lambda c: w_issue(a, c)
    a.vmq = [("w", c) for c in range(5) for _ in range(8)]
    for c in range(16):
        m = order[c]; cc = c & 3; slot = c % 5
        a.wait_vm(("w", c))
        if c == 0 and first_chunk: first_chunk(a)
        so, sb = (slot * 8192, 0) if slot < 4 else (0, 4)
        if m != "o":
            for s_ in range(2):
                for t in range(2):
                    for mm in range(4):
                        imm = so + (64 * s_ + 8 * (mm >> 1)) * 64
                        s = 2 * cc + s_
                        if m == "k": dst = vr(wk(t, s) + 2 * mm, 2)
                        elif m == "v": dst = ar(wv(t, s) + 2 * mm, 2)
                        else: dst = vr(vA + (s_ * 2 + t) * 8 + 2 * mm, 2)
                        a.ds(f"ds_read_b64_tr_b16 {dst}, v{vB1 + sb + (mm & 1) * 2 + t} offset:{imm}")
        else:
            for d in range(4):
                for mm in range(4):
                    imm = so + (8 * (mm >> 1) + 2 * (mm & 1)) * 256
                    a.ds(f"ds_read_b64_tr_b16 {ar(wo(d, cc) + 2*mm, 2)}, v{vB2 + sb + d} offset:{imm}")
        a.wait_ds_all()
        if m == "q":
            for k in range(8):
                a.ds(f"ds_write_b128 v{vRing}, {vr(vA + 4*k, 4)} offset:{WQ_SLOT[cc]*8192 + k*1024}")
            a.wait_ds_all()
        if c + 5 < 16: issue(c + 5)
        if c == P.get('peek', 13) and peek: peek(a)
        if c == P.get("help_at", -1):
            lo, per = P["help"]
            a(f"s_lshl_b32 s{sT0}, s{sH}, 2\ns_add_u32 s{sT0}, s{sT0}, s{sW}\nv_lshlrev_b32 v10, 7, v0")
            for rep in range(P.get("help_rep", 2)):
                if rep: a(f"s_add_u32 s{sT0}, s{sT0}, {128 // P.get('help_rep', 2) + 1}\ns_and_b32 s{sT0}, s{sT0}, 127")
                a(f"s_mul_i32 s{sT1}, s{sT0}, {per*8192}\ns_add_u32 s{sT1}, s{sT1}, {lo*8192}")
                for k in range(per):
                    a(f"buffer_load_dword v11, v10, s[60:63], s{sT1} offen")
                    if k + 1 < per: a(f"s_add_u32 s{sT1}, s{sT1}, 8192")
    a("s_barrier")
    if staged: staged(a)
    a(f"""
    ds_write_b128 v{vM16}, v[112:115] offset:{RA_OFF}
    v_lshlrev_b32 v{vL8}, 3, v0
    s_waitcnt lgkmcnt(0)
    """)

def seg_offsets(a, w, P):
    a(f"""
    s_and_b32 s{sT0}, s{sStep}, 3
    s_lshl_b32 s{sT1}, s{sT0}, 18
    s_lshl_b32 s{sT2}, s{sH}, 7
    s_add_u32 s{sPst}, s{sT1}, s{sT2}
    s_add_u32 s{sPst}, s{sPst}, {PART + w*65536}
    s_lshl_b32 s{sT3}, s{sH}, 13
    s_add_u32 s{sPld}, s{sT1}, s{sT3}
    s_add_u32 s{sPld}, s{sPld}, {PART - MISC + (w&1)*4096}
    s_add_u32 s{sT0}, s{sStep}, 3
    s_and_b32 s{sT0}, s{sT0}, 3
    s_lshl_b32 s{sT1}, s{sT0}, 18
    s_mov_b32 s{sTag}, 0
    s_lshr_b32 s{sT2}, s{sH}, 3
    s_lshl_b32 s{sT2}, s{sT2}, 11
    s_and_b32 s{sT3}, s{sH}, 1
    s_lshl_b32 s{sT3}, s{sT3}, 9
    s_add_u32 s{sT2}, s{sT2}, s{sT3}
    s_bfe_u32 s{sT3}, s{sH}, 0x20001
    s_lshl_b32 s{sT3}, s{sT3}, 6
    s_add_u32 s{sT2}, s{sT2}, s{sT3}
    s_lshl_b32 s{sT1}, s{sT0}, 13
    s_add_u32 s{sMclr}, s{sT1}, s{sT2}
    s_add_u32 s{sMclr}, s{sMclr}, {MBUF + (w&1)*1024}
    s_add_u32 s{sT0}, s{sStep}, 1
    s_and_b32 s{sT0}, s{sT0}, 3
    s_lshl_b32 s{sT1}, s{sT0}, 13
    s_add_u32 s{sMpub}, s{sT1}, s{sT2}
    s_add_u32 s{sMpub}, s{sMpub}, {MBUF + (w&1)*1024}
    s_add_u32 s{sMpoll}, s{sT1}, {MBUF - MISC + w*2048}
    s_lshl_b32 s{sT0}, s{sStep}, 5
    s_add_u32 s{sT0}, s{sT0}, s{sH}
    s_lshl_b32 s{sT1}, s{sT0}, 13
    s_add_u32 s{sVx}, s{sT1}, {VIMG - MISC + w*2048}
    s_add_u32 s{sKx}, s{sT1}, {KIMG - MISC + 32*8192}
    s_lshl_b32 s{sT1}, s{sT0}, 12
    s_add_u32 s{sKm}, s{sT1}, {KMEM - MISC + w*1024}
    s_lshl_b32 s{sT1}, s{sT0}, 11
    s_add_u32 s{sVm}, s{sT1}, {VMEM + w*512}
    """)

sRP, sRM, sMprev, sCP1, sCP2, sCM1, sVmPrev = 76, 77, 78, 79, 80, 81, 82
sKb, sStage = 75, 74
sONE = 42
sB1M = 40
def init_incr(a, w):
    a(f"""
    s_mov_b32 s{sRP}, 0
    s_mov_b32 s{sRM}, 8192
    s_mov_b32 s{sCP1}, s{sPst}
    s_mov_b32 s{sCP2}, s{sPld}
    s_sub_u32 s{sCM1}, s{sMpub}, 8192
    s_mov_b32 s{sMprev}, s{sCM1}
    """)
NP = [1]
def advance(a, w):
    a(f"""
    s_add_u32 s{sVx}, s{sVx}, {32*8192}
    s_add_u32 s{sKx}, s{sKx}, {32*8192}
    s_add_u32 s{sKm}, s{sKm}, {32*4096}
    s_sub_u32 s{sMclr}, s{sMprev}, {(w&1)*1024}
    s_mov_b32 s{sMprev}, s{sMpub}
    s_add_u32 s{sRM}, s{sRM}, 8192
    s_and_b32 s{sRM}, s{sRM}, 0x7fff
    s_add_u32 s{sMpub}, s{sRM}, s{sCM1}
    s_add_u32 s{sStep}, s{sStep}, 1
    """)
    if NP[0] == 1: a(f"s_xor_b32 s{sTag}, s{sTag}, 1")
    else:
        a(f"""
        s_add_u32 s{sRP}, s{sRP}, 0x40000
        s_and_b32 s{sRP}, s{sRP}, {NP[0]*0x40000 - 1}
        s_add_u32 s{sPst}, s{sRP}, s{sCP1}
        s_add_u32 s{sPld}, s{sRP}, s{sCP2}
        s_bfe_u32 s{sTag}, s{sStep}, {0x10000 + NP[0].bit_length() - 1}
        """)

def korder(w):
    own = [2 * w, 2 * w + 1]
    rest = [(2 * w + 2 + k) % 8 for k in range(6)]
    seq = [(0, own[0]), (1, own[0]), (0, own[1]), (1, own[1])] + [(0, s) for s in rest] + [(1, s) for s in rest]
    return own, rest, seq

ABL = [""]; NT = [""]
def ring_fill(a, w, i):
    if "r" in ABL[0] and i >= NRING: return
    t, s = korder(w)[2][i]
    r = ringreg(i); imm = WQ_SLOT[s >> 1] * 8192 + ((s & 1) * 2 + t) * 2048
    a.ds(f"ds_read_b128 {vr(r,4)}, v{vRing} offset:{imm}", ("ring", i))
    a.ds(f"ds_read_b128 {vr(r+4,4)}, v{vRing} offset:{imm+1024}", ("ring", i))

def kx_dma(a, w, i):
    a(f"s_add_u32 m0, s{sKb}, {i*1024}")
    a(f"s_add_u32 s{sT0}, s{sKx}, {i*1024}")
    a.vm(f"buffer_load_dwordx4 v{vM16}, s[{sWS}:{sWS+3}], s{sT0} offen {NT[0]} lds", "kx")

class Stream:
    def __init__(self): self.ops = []; self.fill = {}
    def add(self, f, pre=None): self.ops.append((f, pre)); return len(self.ops) - 1
    def at(self, g, f): self.fill.setdefault(g, []).append(f)
    def emit(self):
        for g, (f, pre) in enumerate(self.ops):
            if pre: pre()
            f()
            for x in self.fill.pop(g, []): x()
        assert not self.fill, self.fill.keys()

def loop(a, w, st, P, diag=False):
    tag = f"{w}{'s' if st else 'f'}"
    WS = f"s[{sWS}:{sWS+3}]"
    smf = lambda d, A, B: a(f"v_smfmac_f32_16x16x64_bf16 {vr(d,4)}, {vr(A,4)}, {B}, v{vIDX}")
    mf = lambda d, A, B, c: a(f"v_mfma_f32_16x16x32_bf16 {vr(d,4)}, {vr(A,4)}, {vr(B,4)}, {c}")
    mf16 = lambda d, A, B, c: a(f"v_mfma_f32_16x16x16_bf16 {vr(d,4)}, {vr(A,2)}, {vr(B,2)}, {c}")
    I = lambda t: (lambda: a(t))
    Af = lambda s: vA + 4 * s
    q = lambda t: vACC + 8 * t
    k_ = lambda t: vACC + 8 * t + 4
    vacc = lambda t: (vVA0, vPM)[t]
    own, rest, seq = korder(w)
    ABL[0] = P.get("abl", ""); NP[0] = P.get("np", 1); NT[0] = P.get("nt", "nt")
    SL = P.get("stamps", ["start", "qkend", "xbar", "scores", "pv", "obar", "opend", "pub", "bdone"])
    def ST(n):
        if diag and n in SL:
            if P.get("trace"): a(f"s_memrealtime s[{sTS+2*SL.index(n)}:{sTS+2*SL.index(n)+1}]")
            else: stamp(a, SL.index(n), diag)
    vVM = vVA0 + 2
    def zero_acc():
        if w == 3:
            a(f"v_mov_b32 v124, -1\nv_lshrrev_b32 v125, 8, v{vL8}\nv_bfe_u32 v126, v{vL8}, 7, 1\nv_lshl_add_u32 v125, v125, 2, v126\nv_bfe_u32 v126, v{vL8}, 1, 6\nv_lshl_add_u32 v125, v125, 8, v126")
        for r in range(16): a(f"v_mov_b32 v{vACC+r}, 0")
        for t in range(2):
            for r in range(4): a(f"v_mov_b32 v{vacc(t)+r}, 0")
    def mwrite():
        for o in own:
            a.ds(f"ds_write_b128 v{vM16}, {vr(Af(o),4)} offset:{M_OFF + o*1024}", "mw")
    hook = P.get("hooks")
    if hook: hook["ready"](a, w, tag, True)
    for r in range(8): a(f"v_mov_b32 v{Af(own[0])+r}, v{(16, 17, 18, 19, 12, 13, 14, 15)[r]}")
    vxl = [lambda: a.vm(f"buffer_load_dwordx4 {vr(vVX,4)}, v{vM16}, {WS}, s{sVx} offen {NT[0]}", "vx"),
           lambda: a.vm(f"buffer_load_dwordx4 {vr(vVX+4,4)}, v{vM16}, {WS}, s{sVx} offen offset:1024 {NT[0]}", "vx")]
    a(f"s_mov_b32 s{sStep}, -1\ns_mov_b32 s{sKb}, {MISC+KX_OFF}")
    seg_offsets(a, w, P)
    kx_dma(a, w, 2 * w); kx_dma(a, w, 2 * w + 1)
    a(f"s_mov_b32 s{sStep}, 0\ns_mov_b32 s{sKb}, {MISC+KX_OFF+8192}")
    seg_offsets(a, w, P)
    if P["jobs"] != "S":
        kx_dma(a, w, 2 * w); kx_dma(a, w, 2 * w + 1)
        vxl[0](); vxl[1]()
    a(f"s_mov_b32 s{sVmPrev}, s{sKm}\ns_sub_u32 s{sMclr}, s{sMclr}, {(w&1)*1024}")
    init_incr(a, w)
    for i in range(NRING): ring_fill(a, w, i)
    zero_acc()
    a.wait_vm_all(True); a.wait_ds_all(True)
    LB = [Af(o) for o in own]
    loadB = lambda k: a(f"buffer_load_dwordx4 {vr(LB[k],4)}, v{vM16}, {WS}, s{sMpoll} offen offset:{k*1024} sc1")
    NS = P["depB"]
    def checkB(k):
        a(f"v_max3_u32 v10, v{LB[k]}, v{LB[k]+1}, v{LB[k]+2}")
        a(f"v_max_u32 v10, v10, v{LB[k]+3}")
        a(f"v_cmp_eq_u32 vcc, -1, v10")
        a.ds(f"ds_write_b128 v{vM16}, {vr(LB[k],4)} offset:{M_OFF + own[k]*1024}", "mw")
        a(f"s_cbranch_vccnz CH_RB{k}RETRY_{tag}" if not P.get("free") else "s_nop 0")
        a.label(f"CH_RB{k}OK_{tag}")
    def retryB(k):
        a.label(f"CH_RB{k}RETRY_{tag}")
        if k == 0: loadB(0)
        loadB(1)
        if diag: a(f"s_add_u32 s{sTS+21}, s{sTS+21}, {1 if k else 0x10000}")
        a(f"s_add_u32 s{sCnt}, s{sCnt}, 1")
        a(f"s_cmp_gt_u32 s{sCnt}, {P['bound']}\ns_cbranch_scc1 CH_RB{k}OK_{tag}")
        if k == 0: a(f"s_branch CH_RB_{tag}")
        else: a(f"s_waitcnt vmcnt({max(NS - 1, 0)})\ns_branch CH_RB1_{tag}")
    JOBS = []
    a(f"s_mov_b32 s{sCnt}, 0")
    for k in range(8): a(f"v_min_u32 v{LB[0]+k}, 0xfffffffe, v{LB[0]+k}")
    a.label(f"CH_RB_{tag}")
    ST("B_w0")
    a(f"s_waitcnt vmcnt({2 * NS - 1})")
    a.dsq = []
    checkB(0)
    if diag:
        ST("bdone")
        a("s_waitcnt lgkmcnt(0)")
        a(f"s_cmp_eq_u32 s{sStep}, 0")
        a(f"s_cbranch_scc1 CH_NOACC_{tag}")
        for k in range(8):
            a(f"s_sub_u32 s{sT0}, s{sTS+2*k+2}, s{sTS+2*k}")
            a(f"s_add_u32 s{sTS+22+k}, s{sTS+22+k}, s{sT0}")
        if P.get("trace"):
            a(f"s_cmp_eq_u32 s{sStep}, {P['trace']}")
            for k, dst in enumerate((83, 84, 85, 86, 87, 88, 89, 100, 101)):
                a(f"s_cselect_b32 s{dst}, s{sTS+2*k}, s{dst}")
        a.label(f"CH_NOACC_{tag}")
        if w == 3 and P.get("steptime"):
            a(f"s_memrealtime s[{sT2}:{sT2+1}]\ns_lshl_b32 s{sT0}, s{sH}, 6\ns_add_u32 s{sT0}, s{sT0}, s{sStep}\ns_lshl_b32 s{sT0}, s{sT0}, 2\ns_add_u32 s{sT0}, s{sT0}, {DBG + 0x40000}\ns_waitcnt lgkmcnt(0)")
            a(f"v_mov_b32 v10, s{sT2}\nv_mov_b32 v11, 0\nbuffer_store_dword v10, v11, {WS}, s{sT0} offen")
            a(f"s_memtime s[{sT2}:{sT2+1}]\ns_add_u32 s{sT0}, s{sT0}, 0x10000\ns_waitcnt lgkmcnt(0)\nv_mov_b32 v10, s{sT2}\nbuffer_store_dword v10, v11, {WS}, s{sT0} offen")
    ST("start")
    a.vmq = ["stale"] * (2 * NS - 2) + (["dbg", "dbg"] if diag and w == 3 and P.get("steptime") else [])
    S = Stream()
    vs = [(t, s) for s in own + rest for t in range(2)]
    def vsm(S, pre=None):
        t, s = vs.pop(0)
        return S.add(lambda: smf(vacc(t), Af(s), ar(wv(t, s), 8)), pre)
    gq = {}
    aread = lambda s: a.ds(f"ds_read_b128 {vr(Af(s),4)}, v{vM16} offset:{M_OFF + s*1024}", ("A", s))
    NB = P["pre_bar"]
    def bar_and_reads():
        a.wait_ds("mw")
        ST("mbar0")
        a("s_barrier")
        ST("mbar1")
        for s in rest[:P["a_burst"]]: aread(s)
    xread = lambda sg: [a.ds(f"ds_read_b64_tr_b16 {vr(vXF+4*sg+2*p,2)}, v{vXr} offset:{(sg&1)*512 + p*256 + (sg>>1)*128}", ("X", sg)) for p in range(2)]
    def late_half():
        a(f"s_waitcnt vmcnt({2 * NS - 2})")
        a.label(f"CH_RB1_{tag}")
        ST("B_w1")
        a.dsq = []
        checkB(1)
    for i in range(16):
        t, s = seq[i]
        def pre(i=i, s=s):
            if i == 2: late_half()
            a.wait_ds(("A", s))
            if i in (4, 7, 10, 13): ST(f"q{i}")
            a.wait_ds(("ring", i))
        if i == 2:
            for n in range(2): vsm(S)
        if i == 4:
            for n in range(2): vsm(S)
        gq[i] = S.add(lambda t=t, s=s, i=i: smf(q(t), Af(s), vr(ringreg(i), 8)), pre)
        S.add(lambda t=t, s=s: smf(k_(t), Af(s), vr(wk(t, s), 8)))
    GB = 5 + P["pre_bar"]
    S.at(GB, bar_and_reads)
    kxread = lambda kt, s: a.ds(f"ds_read_b128 {vr(kx(kt,s),4)}, v{vKx} offset:{(kt*4+s)*1024}", "kx")
    def half_fill(i, h):
        t, s = seq[i]
        r = ringreg(i) + 4 * h; imm = WQ_SLOT[s >> 1] * 8192 + ((s & 1) * 2 + t) * 2048 + h * 1024
        a.ds(f"ds_read_b128 {vr(r,4)}, v{vRing} offset:{imm}", ("ring", i))
    reads = [(GB + 1, lambda s=s: aread(s)) for s in rest[P["a_burst"]:]]
    ringr = [(gq[i - NRING], lambda i=i, h=h: half_fill(i, h)) for i in range(NRING, 16) for h in range(2)]
    npre = P["r_pre"]
    for n in range(npre): S.at(max(ringr[n][0], n + 1), ringr[n][1])
    if "r" not in ABL[0]: reads += ringr[npre:]
    if "k" not in ABL[0]: reads += [(gq[10 + n // 2], lambda n=n: kxread(n >> 2, n & 3)) for n in range(P["kx_in"])]
    g = GB + 1
    for (e, f) in reads:
        g = max(g, e)
        S.at(min(g, 35), f); g += 1
    def post(t, r0):
        return [I(f"v_add_f32 v{q(t)}, v{q(t)}, v{q(t)+2}"), I(f"v_add_f32 v{q(t)+1}, v{q(t)+1}, v{q(t)+3}"),
                I(f"v_add_f32 v{k_(t)}, v{k_(t)}, v{k_(t)+2}"), I(f"v_add_f32 v{k_(t)+1}, v{k_(t)+1}, v{k_(t)+3}"),
                I(f"v_cvt_pk_bf16_f32 v{r0}, v{q(t)}, v{q(t)+1}"), I(f"v_cvt_pk_bf16_f32 v{r0+1}, v{k_(t)}, v{k_(t)+1}"),
                lambda: a.ds(f"ds_write_b64 v{vXw}, {vr(r0,2)} offset:{t*128}", "xw")]
    p0 = post(0, vACC + 6)
    g0 = gq[10] + 2
    S.at(gq[10], lambda: a.nop(2)); S.at(gq[10] + 1, lambda: a.nop(2))
    g0 += P.get("p0off", 0)
    if "p" not in ABL[0]:
        for n in range(6): S.at(g0 + n, p0[n])
        S.at(g0 + 5 + P.get("p0w", 0), p0[6])
    vONE = vACC
    if not P.get("one_late"):
        for n in range(4): S.at(g0 + 6 + n, I(f"v_mov_b32 v{vONE+n}, s{sONE}"))
    late = {}
    if P["jobs"] == "S" and "j" not in ABL[0]:
        jobs = [lambda: a.vm(f"buffer_store_dwordx4 {vr(vVX,4)}, v{vM16}, {WS}, s{sVmPrev} offen sc1", "exp"), vxl[0], vxl[1],
                lambda: kx_dma(a, w, 2 * w), lambda: kx_dma(a, w, 2 * w + 1)]
        if w == 3: jobs.append(lambda: a.vm(f"buffer_store_dword v124, v125, {WS}, s{sMclr} offen {st}", "clr"))
        if hook and w == P.get("fw", 0): jobs.append(lambda: hook["flag"](a))
        for n, jb in enumerate(jobs):
            g = P["j0"] + P["jstr"] * n + P["jw"] * w
            if n == 5: g = P["j0"] + P["jstr"] * (2 if w else 3) + P["jw"] * w + P["jstr"] // 2
            if g < 36: S.at(g, jb)
            else: late.setdefault(g - 36 + 2, []).append(jb)
    S.at(gq[12], I(f"s_add_u32 s{sMpoll}, s{sRM}, {MBUF - MISC + w*2048}"))
    if 35 not in S.fill: S.at(35, lambda: a.nop(1))
    S.emit()
    ST("qkend")
    T0, T1, Tm = vACC + 8, vACC + 12, vT
    def score(S, T, sg):
        A = {T0: kx(0, sg), T1: kx(1, sg), Tm: vXF + 4 * sg}[T]
        return S.add(lambda: mf(T, A, vXF + 4 * sg, "0" if sg == 0 else vr(T, 4)), lambda: a.wait_ds(("X", sg)))
    p1 = post(1, vACC + 4)
    S = Stream()
    a.nop(6)
    a(f"v_pk_add_f32 {vr(q(1),2)}, {vr(q(1),2)}, {vr(q(1)+2,2)}\nv_pk_add_f32 {vr(k_(1),2)}, {vr(k_(1),2)}, {vr(k_(1)+2,2)}")
    for n in range(4, 7): p1[n]()
    for n in range(P["v_pre"]):
        g = vsm(S)
        if P["kx_in"] + n < 8: S.at(g, lambda n=n: kxread((P["kx_in"] + n) >> 2, (P["kx_in"] + n) & 3))
    assert P["kx_in"] + P["v_pre"] >= 8
    def xbar1():
        a.wait_ds("xw")
        a("s_barrier"); ST("xbar"); xread(0)
    g = vsm(S, xbar1)
    S.at(g, lambda: xread(1))
    S.at(vsm(S), lambda: xread(2)); S.at(vsm(S), lambda: xread(3))
    ones = list(range(4)) if P.get("one_late") else []
    while vs:
        gl = vsm(S)
        if ones: S.at(gl, I(f"v_mov_b32 v{vONE+ones.pop(0)}, s{sONE}"))
    for g, l_ in late.items():
        for jb in l_: S.at(g, jb)
    S.at(gl, lambda: (a.wait_vm("stale"), a.wait_ds("kx"), ST("vdone")))
    m, t_ = vT, 11
    gs = [score(S, T, sg) for T in (T0, T1, Tm) for sg in range(4)]
    va = [I(f"v_add_f32 v{vacc(t)+k}, v{vacc(t)+k}, v{vacc(t)+k+2}") for t in range(2) for k in range(2)]
    for n in range(4): S.at(gs[n], lambda: a.nop(1))
    S.at(gs[4], va[0]); S.at(gs[4], va[1]); S.at(gs[5], va[2]); S.at(gs[5], va[3])
    S.at(gs[6], I(f"v_cvt_pk_bf16_f32 v{vVM}, v{vacc(0)}, v{vacc(0)+1}"))
    S.at(gs[7], I(f"v_cvt_pk_bf16_f32 v{vVM+1}, v{vacc(1)}, v{vacc(1)+1}\ns_cmp_ge_u32 s{sStep}, 63\ns_cbranch_scc1 CH_DONE_{tag}"))
    S.at(gs[8], I(f"v_max3_f32 v10, v{T0}, v{T0+1}, v{T0+2}\nv_mov_b32 v{vPM+1}, 0\ns_nop 1"))
    S.at(gs[9], I(f"v_max_f32 v10, v10, v{T0+3}\nv_mov_b32 v{vPM+2}, 0\ns_nop 1"))
    S.at(gs[10], I(f"v_max3_f32 v10, v10, v{T1}, v{T1+1}"))
    S.at(gs[11], I(f"v_max3_f32 v10, v10, v{T1+2}, v{T1+3}"))
    S.emit()
    ST("scores")
    oacc = lambda d: vRING + 4 * d
    zq = list(range(16))
    z = lambda n: [a(f"v_mov_b32 v{vRING+zq.pop(0)}, 0") for _ in range(n)]
    z(7)
    a(f"v_max3_f32 v{m}, v10, v{Tm+2}, v{Tm+3}")
    a(f"v_mov_b32 v{t_}, v{m}")
    z(2)
    a(f"v_permlane32_swap_b32 v{m}, v{t_}")
    a(f"v_max_f32 v{m}, v{m}, v{t_}")
    a(f"v_mov_b32 v{t_}, v{m}")
    z(2)
    a(f"v_permlane16_swap_b32 v{m}, v{t_}")
    a(f"v_max_f32 v{m}, v{m}, v{t_}")
    a(f"v_mul_f32 v10, s{sC}, v{m}")
    pf = lambda r: a(f"v_pk_fma_f32 {vr(r,2)}, {vr(r,2)}, s[{sC}:{sC+1}], v[10:11] op_sel_hi:[1,1,0] neg_lo:[0,0,1] neg_hi:[0,0,1]")
    ex = lambda r: a(f"v_exp_f32 v{r}, v{r}")
    aX, aY, aL = vA, vA + 4, vA + 24
    vPX = vACC + 4
    pf(Tm + 2); pf(T0); ex(Tm + 2); ex(Tm + 3); pf(T0 + 2); pf(T1); pf(T1 + 2)
    a(f"v_cvt_pk_bf16_f32 v{vPM}, v{Tm+2}, v{Tm+3}")
    a(f"v_cvt_pk_bf16_f32 v{vPM+3}, v{Tm+2}, v{Tm+3}")
    ex(T0); ex(T0 + 1)
    mf16(aL, vONE, vPM, "0")
    ex(T0 + 2); ex(T0 + 3)
    mf16(aX, vVM, vPM, "0")
    ex(T1); ex(T1 + 1)
    mf16(aY, vVM, vPM + 2, "0")
    ex(T1 + 2); ex(T1 + 3)
    a(f"v_cvt_pk_bf16_f32 v{vPX}, v{T0}, v{T0+1}")
    a(f"v_cvt_pk_bf16_f32 v{vPX+1}, v{T0+2}, v{T0+3}")
    a(f"v_cvt_pk_bf16_f32 v{vPX+2}, v{T1}, v{T1+1}")
    a(f"v_cvt_pk_bf16_f32 v{vPX+3}, v{T1+2}, v{T1+3}")
    a.wait_vm("vx")
    a.nop(2 if "j" in ABL[0] else 1)
    mf(aL, vONE, vPX, vr(aL, 4)); z(2)
    mf(aX, vVX, vPX, vr(aX, 4)); z(2)
    mf(aY, vVX + 4, vPX, vr(aY, 4))
    ST("pv")
    z(1); a.nop(1)
    a(f"v_rcp_f32 v10, v{aL}")
    a.nop(3)
    vOW = vA + 8
    for r in range(4):
        if r == 2: a.nop(1)
        a(f"v_pk_mul_f32 {vr(aX+2*r,2)}, {vr(aX+2*r,2)}, v[10:11] op_sel_hi:[1,0]")
    for r in range(4):
        a(f"v_cvt_pk_bf16_f32 v{vOW+r}, v{aX+2*r}, v{aX+2*r+1}")
    a.ds(f"ds_write_b128 v{vM16}, {vr(vOW,4)} offset:{O_OFF + w*1024}", "ow")
    vOF = lambda s: vA + 12 + 4 * s
    a.nop(1)
    for r in range(4):
        a(f"v_mov_b32_dpp v{vOF(w)+r}, v{vOW+r} quad_perm:[0,1,0,1] row_mask:0xf bank_mask:0xf")
    a.nop(2)
    assert not zq
    S = Stream()
    orest = [(w + 1 + k) % 4 for k in range(3)]
    def obar():
        a.wait_ds_all()
        a("s_barrier")
        ST("obar")
        for s in orest: a.ds(f"ds_read_b128 {vr(vOF(s),4)}, v{vOr} offset:{s*1024}", ("O", s))
        a(f"s_add_u32 s{sT0}, s{sPst}, 4096")
    XW = vXF + 4 * w
    sel = lambda d, f: f"v_cndmask_b32 v{vVX+d}, v{f}, v{XW+d}, s[{sB1M}:{sB1M+1}]"
    dpp = lambda d: f"v_mov_b32_dpp v{10+d}, v{vVM+d} quad_perm:[2,3,2,3] row_mask:0xf bank_mask:0xf"
    pack = [I(dpp(0) + "\n" + sel(0, vVM)), I(dpp(1) + "\n" + sel(1, vVM + 1)), I(sel(2, 10)), I(sel(3, 11))]
    for d in range(4):
        g = S.add(lambda d=d: smf(oacc(d), vOF(w), ar(wo(d, w), 8)), obar if d == P["o_pre"] else None)
        S.at(g, pack[d])
    if P["o_pre"] == 4: S.at(g, obar)
    vST = vRING + 16
    go = [S.add(lambda d=d, s=s: smf(oacc(d), vOF(s), ar(wo(d, s), 8)), lambda s=s: a.wait_ds(("O", s)))
          for dp in range(2) for s in orest for d in (2 * dp, 2 * dp + 1)]
    cv = lambda d, k: I(f"v_cvt_pk_bf16_f32 v{vST+2*d+k}, v{oacc(d)+2*k}, v{oacc(d)+2*k+1}")
    tg = lambda dp: I(f"v_and_or_b32 v{vST+4*dp}, v{vST+4*dp}, -2, s{sTag}")
    pst = lambda dp: a.vm(f"buffer_store_dwordx4 {vr(vST+4*dp,4)}, v{vPst}, {WS}, s{sT0 if dp else sPst} offen {st}", "pst")
    S.at(go[6], lambda: a.nop(6)); S.at(go[6], cv(0, 0)); S.at(go[7], cv(0, 1)); S.at(go[8], tg(0)); S.at(go[9], cv(1, 0)); S.at(go[10], cv(1, 1))
    S.at(go[10], lambda: pst(0))
    S.emit()
    a.nop(6)
    cv(2, 0)(); cv(2, 1)(); cv(3, 0)(); cv(3, 1)(); tg(1)(); pst(1)
    ST("opend")
    LA = [Af(rest[k]) for k in range(4)]
    vRA, vRD = Af(rest[4]), Af(rest[5])
    def issueA():
        for k in range(4): a(f"buffer_load_dwordx4 {vr(LA[k],4)}, v{vM16}, {WS}, s{sPld} offen offset:{k*1024} sc1")
    def chores():
        zero_acc()
        a(f"v_xor_b32 v{vKx}, 8192, v{vKx}\ns_xor_b32 s{sKb}, s{sKb}, 8192")
    a(f"s_mov_b32 s{sCnt}, 0")
    if w < 2:
        a.ds(f"ds_read_b128 {vr(vRA,4)}, v{vM16} offset:{RA_OFF}", "ra")
        if w == 1: chores()
        a.nop(P["dlyA"][w])
        issueA()
        ST("issA")
        if w == 0: chores()
        for i in range(P["nrA"]): ring_fill(a, w, i)
        for _ in range(P["depA"] - 1):
            a.nop(P["gapA"]); issueA()
        a.wait_ds("ra")
        a.label(f"CH_RA_{tag}")
        ny = 4 * (P["depA"] - 1)
        for k in range(4):
            a(f"s_waitcnt vmcnt({ny + 3 - k})")
            if k == 3:
                ST("A_w2")
                a(f"v_bitop3_b32 v11, v{LA[2]}, v{LA[3]}, s{sTag} bitop3:0x7e")
                a(f"v_bitop3_b32 v10, v10, v11, 1 bitop3:0xa8")
            if k == 1: a(f"v_bitop3_b32 v10, v{LA[0]}, v{LA[1]}, s{sTag} bitop3:0x7e")
            if k == 0 and P["depA"] > 1: continue
            if k == 1 and P["depA"] > 1: mf(vRD, LA[0], vRA, "0")
            if k == 2 and P["depA"] > 1: continue
            if k == 3 and P["depA"] > 1: mf(vRD, LA[2], vRA, vr(vRD, 4))
            mf(vRD, LA[k], vRA, "0" if k == 0 else vr(vRD, 4))
        a(f"v_cmp_ne_u32 vcc, 0, v10")
        a(f"s_cbranch_vccnz CH_RARETRY_{tag}" if not P.get("free") else "s_nop 0")
        a.label(f"CH_RAOK_{tag}")
        ST("A_ok")
        a.nop(6)
        a(f"v_permlane32_swap_b32 v{vRD}, v{vRD+2}")
        a(f"v_permlane32_swap_b32 v{vRD+1}, v{vRD+3}")
        a(f"s_mov_b64 exec, s[{sLO8}:{sLO8+1}]")
        a(f"v_pk_add_f32 {vr(vRD,2)}, {vr(vRD,2)}, {vr(vRD+2,2)}")
        a(f"v_cvt_pk_bf16_f32 v{vRD}, v{vRD}, v{vRD+1}")
        a(f"buffer_store_dword v{vRD}, v{vMpub}, {WS}, s{sMpub} offen {st}")
        a("s_mov_b64 exec, -1")
        ST("pub")
        if w == 0:
            for i in range(P["nrA"], NRING): ring_fill(a, w, i)
    else:
        chores()
        for i in range(NRING): ring_fill(a, w, i)
    def adv():
        a(f"s_mov_b32 s{sCnt}, 0\ns_mov_b32 s{sVmPrev}, s{sKm}")
        advance(a, w)
        if hook: hook["ready"](a, w, tag, False)
    if w != 1: adv()
    if P["pbar"]: a("s_barrier")
    a.nop(P["dlyB"][min(w, 2)])
    loadB(0); loadB(1)
    ST("issB")
    if w == 1:
        adv()
        for i in range(P["nrA"], NRING): ring_fill(a, w, i)
    for _ in range(NS - 1):
        a.nop(P["gapB"] if w != 1 else max(0, P["gapB"] - P["w1c"])); loadB(0); loadB(1)
    a.wait_ds_all()
    a.vmq = []
    a(f"s_branch CH_RB_{tag}")
    if w < 2:
        a.label(f"CH_RARETRY_{tag}")
        issueA()
        a(f"s_add_u32 s{sCnt}, s{sCnt}, 1")
        if diag: a(f"s_add_u32 s{sTS+20}, s{sTS+20}, 1")
        a(f"s_cmp_gt_u32 s{sCnt}, {P['bound']}")
        a(f"s_cbranch_scc1 CH_RAOK_{tag}")
        a(f"s_branch CH_RA_{tag}")
    retryB(0); retryB(1)
    a.label(f"CH_DONE_{tag}")
    a.wait_vm_all(True)
    a.nop(1)
    for f in pack: f()
    a(f"buffer_store_dwordx4 {vr(vVX,4)}, v{vM16}, {WS}, s{sKm} offen sc1")
    a.dsq = []; a.vmq = []
    if hook: hook["done"](a, w)
```

```python
import sys
from asm import *
from layout import *
import chain as C
import workers as Wk
NAME = "parallel_sum__memory_aug_recurrent_mem_tr__dense_activation_squared_relu__prompt"
CH = dict(pre_bar=2, v_0=0, v_pre=3, o_pre=2, dlyA=(32, 48), dlyB=(0, 0, 0), w1c=20, pbar=1, nrA=3, bound=1 << 15, depA=2, depB=2, gapA=24, gapB=16, x0=0, xw_only=1, jbar=1, jobs='S', j0=6, jstr=9, jw=2, a_burst=2, r_pre=2, kx_in=5, nt='')
sDB = 4
sInit, sReady, sMode, sXcc, sTent = 84, 85, 86, 87, 83
sCounted, sLost = 29, 79
sA, sB, sC_, sD = Wk.sA, Wk.sB, Wk.sC_, Wk.sD
WS = Wk.WS
DB = f"s[{sDB}:{sDB+3}]"
ROLE_LDS = 163840 - 16
MODE_BOUND = 2000

def wait_init(a, v=2):
    L = a.newlabel("INIT")
    a(f"s_cmp_lg_u32 s{sInit}, 0\ns_cbranch_scc1 {L}")
    a(f"v_mov_b32 v{v}, {D_INIT}")
    Wk.poll_ge(a, f"buffer_load_dword v{v+1}, v{v}, {DB}, 0 offen sc1", [v + 1], 256, "INIT", sleep=4)
    a(f"s_mov_b32 s{sInit}, 1")
    a.label(L)

def atomic(a, op, off, val, dst, cmp=None):
    a(f"s_mov_b64 exec, 1\nv_mov_b32 v20, {val}\nv_mov_b32 v22, {off}")
    if cmp is not None:
        a(f"v_mov_b32 v21, {cmp}\nbuffer_atomic_cmpswap v[20:21], v22, {DB}, 0 offen sc0")
    else:
        a(f"buffer_atomic_{op} v20, v22, {DB}, 0 offen sc0")
    a(f"s_waitcnt vmcnt(0)\nv_readfirstlane_b32 s{dst}, v20\ns_mov_b64 exec, -1\ns_nop 3")

def claim(a, name, sRes, sOff):
    a.label(f"CLAIM_{name}")
    a(f"s_lshl_b32 s{sC_}, 1, s{sA}")
    atomic(a, "or", f"s{sOff}", f"s{sC_}", sB)
    a.label(f"CLAIM_{name}_R")
    a(f"s_and_b32 s{sD}, s{sB}, s{sC_}\ns_or_b32 s{sB}, s{sB}, s{sC_}\ns_mov_b32 s{sRes}, s{sA}")
    a(f"s_cmp_eq_u32 s{sD}, 0\ns_cbranch_scc1 CLAIM_{name}_E")
    a(f"s_mov_b32 s{sRes}, -1\ns_cmp_eq_u32 s{sB}, -1\ns_cbranch_scc1 CLAIM_{name}_E")
    a(f"s_ff0_i32_b32 s{sA}, s{sB}\ns_branch CLAIM_{name}")
    a.label(f"CLAIM_{name}_E")

def bcast(a, s):
    L = a.newlabel("BC")
    a(f"v_mov_b32 v22, {ROLE_LDS}")
    a(f"s_cmp_lg_u32 s{Wk.sW}, 0\ns_cbranch_scc1 {L}\nv_mov_b32 v20, s{s}\nds_write_b32 v22, v20\ns_waitcnt lgkmcnt(0)")
    a.label(L)
    a(f"s_barrier\nds_read_b32 v20, v22\ns_waitcnt lgkmcnt(0)\nv_readfirstlane_b32 s{s}, v20\ns_barrier")

def gen(P=CH, diag=False, force_slow=False):
    a = Asm()
    def mark(a, word, neg=False):
        if not P.get("marks"): return
        a(f"s_memrealtime s[98:99]\ns_waitcnt lgkmcnt(0)")
        if neg: a("s_not_b32 s98, s98")
        a(f"s_mov_b64 exec, 1\nv_mov_b32 v10, s98\nv_mov_b32 v11, {4*word}\nbuffer_atomic_umax v10, v11, {DB}, 0 offen\ns_mov_b64 exec, -1")
    Wk.SLEEP[0] = P.get('sleep', 2); Wk.PREFETCH[0] = P.get('pf', ()); Wk.HOLD[0] = P.get('hold', 0)
    sR = Wk.sRole
    a(f"""
    s_cmp_ge_u32 s2, 256
    s_cbranch_scc1 L_END
    s_load_dwordx2 s[{Wk.sWS}:{Wk.sWS+1}], s[0:1], {KA['ws']}
    s_load_dwordx2 s[{sDB}:{sDB+1}], s[0:1], {KA['dbg']}
    s_getreg_b32 s{sXcc}, hwreg(HW_REG_XCC_ID, 0, 4)
    s_mov_b32 s{Wk.sWS+2}, {WS_BYTES}
    s_mov_b32 s{Wk.sWS+3}, 0x20000
    s_mov_b32 s{sDB+2}, 256
    s_mov_b32 s{sDB+3}, 0x20000
    s_mov_b32 s{Wk.sDead}, 0
    s_mov_b32 s{sInit}, 0
    s_mov_b32 s{sCounted}, 0
    s_mov_b32 s82, 0
    s_mov_b32 s{sLost}, 0
    v_mov_b32 v250, 0
    v_lshrrev_b32 v1, 6, v0
    v_lshlrev_b32 v8, 4, v0
    v_readfirstlane_b32 s{Wk.sW}, v1
    v_and_b32 v0, 63, v0
    v_mov_b32 v12, -1
    v_mov_b32 v13, -1
    v_mov_b32 v14, -1
    v_mov_b32 v15, -1
    """)
    if diag: a("s_memrealtime s[90:91]")
    CX = 9 if force_slow else P.get('cx', 3)
    sOff, sTry, sDie, sWord, sSpec = 18, 19, 80, 81, 82
    def declare(a):
        L = a.newlabel("DECL")
        a(f"s_cmp_lg_u32 s{sB}, -1\ns_cbranch_scc1 {L}")
        a(f"s_mov_b64 exec, 1\nv_mov_b32 v20, 1\nv_mov_b32 v21, 0\nv_mov_b32 v22, {D_MODE}\nbuffer_atomic_cmpswap v[20:21], v22, {DB}, 0 offen\ns_mov_b64 exec, -1")
        a.label(L)
    a(f"""
    s_bfe_u32 s{sR}, s2, 0x50003
    s_waitcnt lgkmcnt(0)
    """)
    if P.get("marks"):
        a(f"s_cmp_lg_u32 s{Wk.sW}, 0\ns_cbranch_scc1 L_MK0\ns_and_b32 s3, s2, 15\ns_cmp_lg_u32 s3, 0\ns_cbranch_scc1 L_MK0")
        mark(a, 4, True)
        a.label("L_MK0")
    a(f"""
    s_mov_b32 s{sTent}, s{sR}
    s_add_u32 s{sDie}, s{sXcc}, {(15 - CX) % 8}
    s_and_b32 s{sDie}, s{sDie}, 7
    s_min_u32 s{sDie}, s{sDie}, 6
    s_lshl_b32 s{sWord}, s{sDie}, 2
    s_add_u32 s{sWord}, s{sWord}, {D_WM}
    s_cmp_eq_u32 s{sXcc}, {CX}
    s_cselect_b32 s{sWord}, {D_MASK}, s{sWord}
    s_cmp_lg_u32 s{Wk.sW}, 0
    s_cbranch_scc1 L_I1
    s_lshl_b32 s3, s2, 10
    s_add_u32 s3, s3, {PART}
    buffer_store_dwordx4 v[12:15], v8, {WS}, s3 offen sc1
    s_lshl_b32 s3, s2, 7
    s_add_u32 s3, s3, {MBUF}
    s_mov_b64 exec, 0xff
    buffer_store_dwordx4 v[12:15], v8, {WS}, s3 offen sc1
    s_mov_b64 exec, -1
    s_mul_i32 s3, s2, 192
    s_add_u32 s3, s3, {FLG}
    v_mov_b32 v16, 0
    v_mov_b32 v17, 0
    v_mov_b32 v18, 0
    v_mov_b32 v19, 0
    s_mov_b64 exec, 0xfff
    buffer_store_dwordx4 v[16:19], v8, {WS}, s3 offen sc1
    s_mov_b64 exec, 1
    s_lshl_b32 s3, 1, s{sTent}
    v_mov_b32 v250, s3
    v_mov_b32 v22, s{sWord}
    buffer_atomic_or v250, v22, {DB}, 0 offen sc0
    s_mov_b64 exec, -1
    L_I1:
    s_cmp_lg_u32 s{sXcc}, {CX}
    s_cbranch_scc1 L_NOSPEC
    s_mov_b32 s{sSpec}, 1
    s_branch L_CHAIN
    L_CLOST:
    s_cmp_lg_u32 s{Wk.sW}, 0
    s_cbranch_scc1 L_ROLE
    s_mov_b32 s{sA}, s{sTent}
    s_mov_b32 s{sOff}, {D_MASK}
    """)
    claim(a, "A", sR, sOff)
    a(f"s_cmp_eq_u32 s{sR}, -1\ns_cbranch_scc1 L_WCLAIM")
    declare(a)
    a("s_branch L_ROLE")
    a.label("L_NOSPEC")
    a(f"s_lshl_b32 s{sR}, s{sDie}, 5\ns_add_u32 s{sR}, s{sR}, s{sTent}\ns_mov_b32 s{sSpec}, 1\ns_branch L_WORK")
    a.label("L_WLOST")
    a(f"s_cmp_lg_u32 s{Wk.sW}, 0\ns_cbranch_scc1 L_ROLE2")
    a.label("L_WCLAIM")
    a(f"s_mov_b32 s{sOff}, s{sDie}\ns_mov_b32 s{sTry}, 0\ns_mov_b32 s{sA}, s{sTent}")
    a.label("L_WNEXT")
    a(f"s_cmp_ge_u32 s{sOff}, 7\ns_cselect_b32 s{sB}, 7, 0\ns_sub_u32 s{sOff}, s{sOff}, s{sB}")
    a(f"s_cmp_ge_u32 s{sOff}, 7\ns_cselect_b32 s{sB}, 7, 0\ns_sub_u32 s{sOff}, s{sOff}, s{sB}")
    a(f"s_lshl_b32 s{sOff}, s{sOff}, 2\ns_add_u32 s{sOff}, s{sOff}, {D_WM}")
    claim(a, "W", sR, sOff)
    a(f"s_sub_u32 s{sOff}, s{sOff}, {D_WM}\ns_lshr_b32 s{sOff}, s{sOff}, 2")
    a(f"s_cmp_eq_u32 s{sR}, -1\ns_cbranch_scc0 L_WGOT")
    a(f"s_add_u32 s{sOff}, s{sOff}, 1\ns_add_u32 s{sTry}, s{sTry}, 1\ns_mov_b32 s{sA}, 0\ns_cmp_lt_u32 s{sTry}, 7\ns_cbranch_scc1 L_WNEXT")
    atomic(a, "cmpswap", D_MODE, 2, sB, cmp=0)
    a(f"s_mov_b32 s{sA}, 0\ns_mov_b32 s{sOff}, {D_MASK}")
    claim(a, "B", sR, sOff)
    a("s_branch L_ROLE")
    a.label("L_WGOT")
    a(f"s_lshl_b32 s{sOff}, s{sOff}, 5\ns_add_u32 s{sR}, s{sR}, s{sOff}\ns_add_u32 s{sR}, s{sR}, 32")
    def init_done(a):
        L = a.newlabel("INITD")
        a(f"s_cmp_lg_u32 s{Wk.sW}, 0\ns_cbranch_scc1 {L}\ns_cmp_lg_u32 s{sCounted}, 0\ns_cbranch_scc1 {L}\ns_mov_b32 s{sCounted}, 1")
        a(f"s_mov_b64 exec, 1\nv_mov_b32 v20, 1\nv_mov_b32 v22, {D_INIT}\nbuffer_atomic_add v20, v22, {DB}, 0 offen\ns_mov_b64 exec, -1")
        a.label(L)
    def verdict(a):
        L = a.newlabel("VERD")
        a(f"s_cmp_eq_u32 s{sSpec}, 0\ns_cbranch_scc1 {L}\ns_mov_b32 s{sSpec}, 0")
        a(f"s_waitcnt vmcnt(0)\nv_readfirstlane_b32 s{sB}, v250\ns_nop 3\ns_lshr_b32 s{sB}, s{sB}, s{sTent}\ns_and_b32 s{sB}, s{sB}, 1")
        bcast(a, sB)
        a(f"s_cmp_lg_u32 s{sB}, 0\ns_cbranch_scc1 L_WLOST")
        a.label(L)
    a.label("L_ROLE")
    a.label("L_ROLE2")
    bcast(a, sR)
    a(f"s_cmp_lt_u32 s{sR}, 32\ns_cbranch_scc1 L_CHAIN")
    a(f"s_cmp_eq_u32 s{sR}, -1\ns_cbranch_scc1 L_FIN")
    a(f"s_waitcnt vmcnt(0)\ns_sub_u32 s{sR}, s{sR}, 32")
    a.label("L_WORK")
    if diag: a("s_memrealtime s[70:71]\ns_waitcnt lgkmcnt(0)\ns_mov_b32 s100, s70\ns_add_u32 s101, s16, 32")
    if diag: a("s_mov_b32 s64, 0\ns_mov_b32 s66, 0\ns_mov_b32 s68, 0\ns_mov_b32 s72, 0")
    Wk.gemm1(a, wait_init, verdict, init_done, diag)
    if diag: a("s_memtime s[78:79]")
    if P.get("marks"):
        a(f"s_cmp_lg_u32 s{Wk.sW}, 0\ns_cbranch_scc1 L_MK2\ns_and_b32 s3, s{sR}, 7\ns_cmp_lg_u32 s3, 0\ns_cbranch_scc1 L_MK2")
        mark(a, 8)
        a.label("L_MK2")
    if diag: a("s_memrealtime s[92:93]")
    wait_init(a)
    a(f"s_cmp_ge_u32 s{sR}, 32\ns_cbranch_scc1 L_G2")
    Wk.attention(a)
    a("s_branch L_FIN")
    a.label("L_G2")
    a(f"s_sub_u32 s{sR}, s{sR}, 32")
    Wk.gemm2(a, diag)
    if P.get("marks"):
        a(f"s_waitcnt vmcnt(0)\ns_cmp_lg_u32 s{Wk.sW}, 0\ns_cbranch_scc1 L_FIN")
        mark(a, 9)
    a("s_branch L_FIN")
    a.label("L_CHAIN")
    if diag: a("s_memrealtime s[70:71]\ns_waitcnt lgkmcnt(0)\ns_mov_b32 s100, s70\ns_mov_b32 s101, s16")
    def first_chunk(a):
        init_done(a)
        L = a.newlabel("CV")
        a(f"s_cmp_eq_u32 s{sSpec}, 0\ns_cbranch_scc1 {L}\ns_cmp_lg_u32 s{Wk.sW}, 0\ns_cbranch_scc1 {L}")
        a(f"v_readfirstlane_b32 s{sB}, v250\ns_lshl_b32 s3, 1, s{sTent}\ns_nop 2\ns_and_b32 s{sLost}, s{sB}, s3\ns_or_b32 s{sB}, s{sB}, s3")
        a(f"s_cmp_lg_u32 s{sLost}, 0\ns_cbranch_scc1 {L}")
        declare(a)
        a.label(L)
    def staged(a):
        L = a.newlabel("CV")
        a(f"s_cmp_eq_u32 s{sSpec}, 0\ns_cbranch_scc1 {L}\ns_mov_b32 s{sSpec}, 0")
        bcast(a, sLost)
        a(f"s_cmp_lg_u32 s{sLost}, 0\ns_cbranch_scc1 L_CLOST")
        a.label(L)
    sChf, sG1 = 88, 89
    def g1addr(a, lane):
        a(f"v_and_b32 v11, 3, {lane}\nv_bfe_u32 v10, {lane}, 2, 1\nv_lshlrev_b32 v10, 13, v10\nv_lshl_add_u32 v10, v11, 7, v10")
    def set_ready(a, v):
        for perm in ("quad_perm:[1,0,3,2]", "quad_perm:[2,3,0,1]", "row_half_mirror"):
            a(f"s_nop 1\nv_min_u32_dpp v{v}, v{v}, v{v} {perm} row_mask:0xf bank_mask:0xf")
        a(f"s_nop 0\nv_readfirstlane_b32 s{sReady}, v{v}\ns_nop 3\ns_lshl_b32 s{sReady}, s{sReady}, 2")
    def peek(a):
        if P.get("hold"):
            L = a.newlabel("STG")
            a(f"s_cmp_lg_u32 s{Wk.sW}, 0\ns_cbranch_scc1 {L}\ns_cmp_lg_u32 s{sLost}, 0\ns_cbranch_scc1 {L}")
            a(f"s_mov_b64 exec, 1\nv_mov_b32 v20, 1\nv_mov_b32 v22, {D_STAGED}\nbuffer_atomic_add v20, v22, {DB}, 0 offen\ns_mov_b64 exec, -1")
            a.label(L)
        a(f"s_lshl_b32 s{sChf}, s{C.sH}, 7\ns_add_u32 s{sChf}, s{sChf}, {CHF}")
        a(f"s_lshr_b32 s{sG1}, s{C.sH}, 1\ns_lshl_b32 s{sG1}, s{sG1}, 9\ns_add_u32 s{sG1}, s{sG1}, {G1F}")
        g1addr(a, "v0")
        a(f"v_mov_b32 v24, 0\nbuffer_load_dwordx2 v[26:27], v24, {DB}, 0 offen sc1\nbuffer_load_dword v25, v10, {WS}, s{sG1} offen sc1")
    C.prologue_a(a, P, True)
    C.prologue_b(a, P, first_chunk, staged, peek)
    a(f"s_waitcnt vmcnt(0)\nv_readfirstlane_b32 s{sMode}, v26\nv_readfirstlane_b32 s3, v27")
    set_ready(a, 25)
    a(f"s_cmp_ge_u32 s3, 256\ns_cselect_b32 s{sInit}, 1, s{sInit}\ns_cselect_b32 s{sReady}, s{sReady}, 0")
    wait_init(a, 10)
    a(f"s_cmp_lg_u32 s{sMode}, 0\ns_cbranch_scc1 L_MODEOK\nv_mov_b32 v10, {D_MODE}")
    Wk.poll_ge(a, f"buffer_load_dword v11, v10, {DB}, 0 offen sc1", [11], 1, "MODE")
    a(f"v_readfirstlane_b32 s{sMode}, v11\ns_nop 3")
    a.label("L_MODEOK")
    if P.get("marks"):
        a(f"s_cmp_lg_u32 s{Wk.sW}, 1\ns_cbranch_scc1 L_MK1")
        mark(a, 5); mark(a, 6, True)
        a.label("L_MK1")
    if diag:
        for k in range(20, 30): a(f"s_mov_b32 s{C.sTS+k}, 0")
        a("s_memrealtime s[92:93]\ns_memtime s[96:97]")
    stubs = []
    def ready(a, w, tag, first):
        L = a.newlabel("RDY")
        if first: a(f"s_mov_b32 s{C.sStep}, 0")
        a(f"s_add_u32 s{C.sT0}, s{C.sStep}, 1\ns_min_u32 s{C.sT0}, s{C.sT0}, 63\ns_cmp_ge_u32 s{C.sT0}, s{sReady}\ns_cbranch_scc1 {L}_S")
        a.label(L)
        stubs.append(L)
    def flag(a):
        if P.get("noflag"): return
        a(f"s_sub_u32 s{C.sT0}, s{C.sStep}, 1\ns_max_i32 s{C.sT0}, s{C.sT0}, 0")
        Wk.flag_store(a, f"s{sChf}", f"s{C.sT0}", 10)
    def done(a, w):
        a("s_waitcnt vmcnt(0)\ns_barrier")
        if w == 0: Wk.flag_store(a, f"s{sChf}", 64, 10)
        if w == 1: mark(a, 7)
        a.vmq = []
        a("s_branch L_FIN")
        for L in stubs:
            a.label(L + "_S")
            a(f"s_lshr_b32 s{C.sT0}, s{C.sT0}, 2\ns_add_u32 s{C.sT0}, s{C.sT0}, 1")
            a(f"v_lshrrev_b32 v10, 3, v{C.vL8}")
            g1addr(a, "v10")
            Wk.poll_ge(a, f"buffer_load_dword v11, v10, {WS}, s{sG1} offen sc1", [11], f"s{C.sT0}", "KV", sleep=0)
            set_ready(a, 11)
            a(f"s_branch {L}")
        stubs.clear()
    P = dict(P, hooks=dict(ready=ready, flag=flag, done=done))
    a(f"s_cmp_eq_u32 s{sMode}, 1\ns_cbranch_scc0 L_SLOW")
    for st in ("", "sc1"):
        if st: a.label("L_SLOW")
        t = "s" if st else "f"
        for w in range(1, 4): a(f"s_cmp_eq_u32 s{C.sW}, {w}\ns_cbranch_scc1 CH_W{w}{t}")
        for w in range(4):
            a.label(f"CH_W{w}{t}")
            C.loop(a, w, st, P, diag)
    a.label("L_FIN")
    if diag:
        a("s_memrealtime s[94:95]\ns_memtime s[98:99]\ns_waitcnt lgkmcnt(0)")
        a(f"s_lshl_b32 s3, s2, 2\ns_add_u32 s3, s3, s{Wk.sW}\ns_lshl_b32 s3, s3, 7\ns_add_u32 s3, s3, {DBG}")
        vals = [C.sTS + 20 + k for k in range(10)] + [90, 92, 94, 96, 98, sR, sXcc, Wk.sDead, 100, 101, 72, 74, 76, 78]
        for i, sg in enumerate(vals):
            a(f"v_mov_b32 v20, s{sg}\nv_mov_b32 v21, {4*i}\nbuffer_store_dword v20, v21, {WS}, s3 offen")
    a("s_waitcnt vmcnt(0)")
    a.label("L_END")
    return a.text()

def wrap(body):
    ref = open(f"cdna_kernels/{NAME}.s.ref").read().split("\n")
    head = [l for l in ref if l.startswith(";") and "@launch" not in l]
    return "\n".join(head) + f"""
; @launch grid=(256,1,1) block=(256,1,1) lds=163840
.amdgcn_target "amdgcn-amd-amdhsa--gfx950"
.text
.globl {NAME}_kernel
.p2align 8
.type {NAME}_kernel,@function
{NAME}_kernel:
{body}s_endpgm
.section .rodata,"a"
.p2align 6
.amdhsa_kernel {NAME}_kernel
  .amdhsa_next_free_vgpr 512
  .amdhsa_next_free_sgpr 102
  .amdhsa_accum_offset 256
  .amdhsa_group_segment_fixed_size 0
  .amdhsa_kernarg_size 120
  .amdhsa_user_sgpr_count 2
  .amdhsa_user_sgpr_kernarg_segment_ptr 1
  .amdhsa_system_sgpr_workgroup_id_x 1
.end_amdhsa_kernel
"""
if __name__ == "__main__":
    import ast
    P = dict(CH)
    if len(sys.argv) > 2: P.update(ast.literal_eval(sys.argv[2]))
    t = gen(P)
    hz = check(t)
    for h in hz[:12]: print(h)
    out = sys.argv[1] if len(sys.argv) > 1 else f"cdna_kernels/{NAME}.s"
    open(out, "w").write(wrap(t))
    print("lines", len(t.split("\n")), "hazards", len(hz))
```

```python
from asm import *
from layout import *
import math

MISC = 131072
M_OFF = 0
X_OFF = 8192
KX_OFF = 16384
O_OFF = 0
XS = 1088
sWS = 8
sTMP = 12
sH, sW, sStep = 16, 17, 18
sPst, sPld, sTag, sMpub, sMpoll, sMclr = 19, 20, 21, 22, 23, 24
sVx, sKx, sKm, sVm = 25, 26, 27, 28
sC = 30
sT0, sT1, sT2, sT3 = 32, 33, 34, 35
sCnt = 36
sLO8 = 38
sDBG = 40
sTS = 44
vIDX, vKx, vM16, vRing, vPst, vMpub, vXw, vXr, vOr = 1, 2, 3, 4, 5, 6, 7, 8, 9
vL8 = 0
vNEG = 10
vVA0 = 12
RA_OFF = 12544
vVX = 16
vPM = 24
vACC = 28
vA = 44
vRING = 76
vT = 124
vWK = 128
NRING = 6
WQ_SLOT = [2, 3, 1, 0]
def ringreg(i): return vRING + 8 * (i % NRING)
KXREG = [vRING + 8*4, vRING + 8*5, vRING + 0, vRING + 8]
def kx(kt, s): return KXREG[kt*2 + (s >> 1)] + 4 * (s & 1)
vXF = vRING + 16
def wv(t, s): return 8 * (t * 8 + s)
def wo(d, s): return 128 + 8 * (d * 4 + s)
def wk(t, s): return vWK + 8 * (t * 8 + s)

def wq_lds_imm(i):
    t, s = i >> 3, i & 7
    return WQ_SLOT[s >> 1] * 8192 + ((s & 1) * 2 + t) * 2048

def stamp(a, k, diag):
    if diag: a(f"s_memtime s[{sTS+2*k}:{sTS+2*k+1}]")

def prologue(a, P, diag=False):
    a(f"v_lshrrev_b32 v10, 6, v0\nv_and_b32 v0, 63, v0\nv_readfirstlane_b32 s{sW}, v10\ns_nop 3")
    prologue_a(a, P, True); prologue_b(a, P)

def prologue_a(a, P, dma):
    WNT[0] = P.get("wnt", "")
    a(f"""
    s_load_dwordx4 s[48:51], s[0:1], {KA['Wq']}
    s_load_dwordx4 s[52:55], s[0:1], {KA['Wv']}
    s_load_dwordx2 s[56:57], s[0:1], {KA['mem0']}
    """)
    a(f"""
    v_and_b32 v100, 15, v0            ; n
    v_lshrrev_b32 v101, 4, v0         ; g
    v_and_b32 v102, 3, v0             ; c
    v_bfe_u32 v103, v0, 2, 2          ; r''
    """)
    a(f"""
    s_lshl_b32 s{sT2}, s{sH}, 8
    s_lshl_b32 s{sT3}, s{sW}, 6
    s_add_u32 s{sT2}, s{sT2}, s{sT3}
    v_lshrrev_b32 v10, 2, v0
    """)
    for k in range(4):
        a(f"v_xor_b32 v11, {k & 2}, v10\nv_lshlrev_b32 v11, 13, v11\nv_xor_b32 v104, {2*(k&1)}, v102\nv_lshl_add_u32 v11, v104, 4, v11\nv_add_u32 v{vSQ+k}, s{sT2}, v11")
        a(f"v_mov_b32 v{vSRC+k}, v{vSQ+k}\nv_mov_b32 v{vSRC+4+k}, v{vSQ+k}")
    a(f"""
    s_lshl_b32 s{sB0}, s{sW}, 15
    s_lshl_b32 s{sB1}, s{sW}, 13
    s_add_u32 s{sB1}, s{sB1}, {MISC}
    s_mov_b32 s62, 0x400000
    s_mov_b32 s63, 0x20000
    s_getpc_b64 s[{sSub}:{sSub+1}]
    s_add_u32 s{sSub}, s{sSub}, 12
    s_addc_u32 s{sSub+1}, s{sSub+1}, 0
    s_branch CH_SUBE
    """)
    for i in range(8):
        a(f"s_mov_b32 m0, s64\ns_add_u32 s64, s64, 1024\nbuffer_load_dwordx4 v{vSRC+i}, s[60:63], s65 offen {WNT[0]} lds\ns_add_u32 s65, s65, s66")
    a(f"s_setpc_b64 s[{sRet}:{sRet+1}]")
    a.label("CH_SUBE")
    a("s_waitcnt lgkmcnt(0)")
    for c in range(5): w_issue(a, c)
    a(f"""
    v_and_b32 v10, 2, v0
    v_cmp_eq_u32 vcc, 0, v10
    v_mov_b32 v11, 0xeeee
    v_mov_b32 v104, 0x4444
    v_cndmask_b32 v{vIDX}, v11, v104, vcc
    v_lshlrev_b32 v10, 4, v0
    v_add_u32 v{vM16}, {MISC}, v10
    s_lshl_b32 s{sT0}, s{sW}, 15
    v_add_u32 v{vRing}, s{sT0}, v10
    v_and_b32 v11, 0x3d, v0
    v_lshlrev_b32 v11, 4, v11
    v_add_u32 v{vOr}, {MISC+O_OFF}, v11
    v_lshlrev_b32 v10, 14, v101
    v_lshrrev_b32 v11, 3, v100
    v_lshl_add_u32 v10, v11, 13, v10
    v_and_b32 v11, 7, v100
    v_lshl_add_u32 v{vPst}, v11, 4, v10
    v_lshlrev_b32 v10, 4, v102
    v_bfe_u32 v11, v0, 2, 1
    v_lshl_add_u32 v10, v11, 3, v10
    v_lshrrev_b32 v11, 1, v101
    v_lshl_add_u32 v10, v11, 2, v10
    v_and_b32 v11, 1, v101
    v_lshl_add_u32 v{vMpub}, v11, 8, v10
    v_add_u32 v{vKx}, {KX_OFF}, v{vM16}
    v_mul_u32_u24 v10, {XS}, v101
    v_lshl_add_u32 v10, v100, 3, v10
    s_lshl_b32 s{sT0}, s{sW}, 8
    s_add_u32 s{sT0}, s{sT0}, {MISC+X_OFF}
    v_add_u32 v{vXw}, s{sT0}, v10
    v_mul_u32_u24 v10, {XS}, v102
    v_lshrrev_b32 v11, 2, v0
    v_lshl_add_u32 v10, v11, 3, v10
    v_add_u32 v{vXr}, {MISC+X_OFF}, v10
    v_bfe_u32 v10, v100, 1, 2
    v_and_b32 v11, 1, v100
    v_lshlrev_b32 v11, 4, v11
    v_mov_b32 v104, 0x3f80
    v_lshlrev_b32 v104, v11, v104
    """)
    for k in range(4):
        a(f"v_cmp_eq_u32 vcc, {k}, v10\ns_nop 1\nv_cndmask_b32 v{112+k}, 0, v104, vcc")
    a(f"s_mov_b32 s{sLO8}, 0x00ff00ff\ns_mov_b32 s{sLO8+1}, 0x00ff00ff\ns_mov_b32 s{sB1M}, 0xcccccccc\ns_mov_b32 s{sB1M+1}, 0xcccccccc\ns_mov_b32 s{sONE}, 0x3f803f80")
    c = (128 ** -0.5) * math.log2(math.e)
    import struct
    cb = struct.unpack("<I", struct.pack("<f", c))[0]
    a(f"s_mov_b32 s{sC}, {cb:#x}\ns_mov_b32 s{sC+1}, {cb:#x}")
    a(f"""
    s_lshl_b32 s{sT2}, s{sH}, 17
    s_lshl_b32 s{sT3}, s{sW}, 8
    s_add_u32 s{sT2}, s{sT2}, s{sT3}
    v_and_b32 v105, 1, v101            ; g&1
    v_lshrrev_b32 v106, 1, v101        ; g>>1
    v_and_b32 v107, 1, v103            ; r&1
    v_lshrrev_b32 v108, 1, v103        ; r>>1
    v_lshlrev_b32 v10, 5, v105
    v_lshl_add_u32 v10, v106, 2, v10
    v_lshl_add_u32 v10, v108, 4, v10
    v_add_u32 v109, v10, v107
    v_lshlrev_b32 v10, 4, v105
    v_lshl_add_u32 v10, v106, 2, v10
    v_add_u32 v110, v10, v107
    """)
    for k in range(2):
        a(f"v_lshl_add_u32 v10, v105, 2, 0\nv_xor_b32 v10, v10, v100\nv_xor_b32 v10, {8*k}, v10\nv_lshlrev_b32 v11, 10, v101\nv_lshl_add_u32 v10, v10, 4, v11\nv_add_u32 v{vSO+k}, s{sT2}, v10")
    for mb in range(2):
        for t in range(2):
            a(f"v_add_u32 v10, {2*mb}, v109\nv_lshlrev_b32 v11, 1, v105\nv_xor_b32 v10, v10, v11\nv_lshlrev_b32 v10, 6, v10")
            a(f"v_xor_b32 v11, {t}, v108\nv_lshl_add_u32 v10, v11, 5, v10\nv_lshl_add_u32 v10, v102, 3, v10")
            a(f"v_add_u32 v{vB1+mb*2+t}, s{sB0}, v10\nv_add_u32 v{vB1+4+mb*2+t}, s{sB1}, v10")
    for d in range(4):
        a(f"v_lshl_add_u32 v11, v105, 1, v107\nv_xor_b32 v11, {d}, v11\nv_lshlrev_b32 v10, 8, v110\nv_lshl_add_u32 v10, v11, 6, v10")
        a(f"v_lshl_add_u32 v10, v108, 5, v10\nv_lshl_add_u32 v10, v102, 3, v10")
        a(f"v_add_u32 v{vB2+d}, s{sB0}, v10\nv_add_u32 v{vB2+4+d}, s{sB1}, v10")
    a(f"""
    s_mov_b32 s12, s56
    s_mov_b32 s13, s57
    s_mov_b32 s14, 8192
    s_mov_b32 s15, 0x20000
    v_lshrrev_b32 v10, 2, v100
    v_lshlrev_b32 v10, 1, v10
    v_and_b32 v11, 1, v0
    v_add_u32 v10, v10, v11            ; row
    v_lshlrev_b32 v10, 10, v10
    v_bfe_u32 v11, v0, 1, 1
    v_lshl_add_u32 v10, v11, 5, v10
    v_lshl_add_u32 v10, v101, 3, v10
    s_lshl_b32 s{sT2}, s{sW}, 8        ; ksteps 2w, 2w+1
    v_add_u32 v10, s{sT2}, v10
    buffer_load_dwordx2 v[16:17], v10, s[12:15], 0 offen
    buffer_load_dwordx2 v[18:19], v10, s[12:15], 0 offen offset:64
    buffer_load_dwordx2 v[12:13], v10, s[12:15], 0 offen offset:128
    buffer_load_dwordx2 v[14:15], v10, s[12:15], 0 offen offset:192
    """)

order = ["k"] * 4 + ["v"] * 4 + ["o"] * 4 + ["q"] * 4
srd = {"q": 60, "k": 64, "v": 68, "o": 72}
WNT = ['']
sB0, sB1 = 76, 77
sSub, sRet = 68, 70
vSRC, vSQ, vSO, vB1, vB2 = 76, 84, 88, 90, 116
def w_issue(a, c):
    m = order[c]; cc = c & 3; slot = c % 5
    if cc == 0:
        src = {"q": 48, "k": 50, "v": 52, "o": 54}[m]
        a(f"s_mov_b32 s60, s{src}\ns_mov_b32 s61, s{src+1}\ns_mov_b32 s65, 0")
        if c in (0, 8, 12): a(f"s_mov_b32 s66, {4096 if m == 'o' else 131072}")
        if c in (8, 12):
            for k in range(8): a(f"v_mov_b32 v{vSRC+k}, v{vSO + (k >> 2) if m == 'o' else vSQ + (k & 3)}")
    a(f"s_add_u32 s64, s{sB0}, {slot*8192}" if slot < 4 else f"s_mov_b32 s64, s{sB1}")
    a(f"s_swappc_b64 s[{sRet}:{sRet+1}], s[{sSub}:{sSub+1}]")
    a.vmq += [("w", c)] * 8

def prologue_b(a, P, first_chunk=None, staged=None, peek=None):
    issue = lambda c: w_issue(a, c)
    a.vmq = [("w", c) for c in range(5) for _ in range(8)]
    for c in range(16):
        m = order[c]; cc = c & 3; slot = c % 5
        a.wait_vm(("w", c))
        if c == 0 and first_chunk: first_chunk(a)
        so, sb = (slot * 8192, 0) if slot < 4 else (0, 4)
        if m != "o":
            for s_ in range(2):
                for t in range(2):
                    for mm in range(4):
                        imm = so + (64 * s_ + 8 * (mm >> 1)) * 64
                        s = 2 * cc + s_
                        if m == "k": dst = vr(wk(t, s) + 2 * mm, 2)
                        elif m == "v": dst = ar(wv(t, s) + 2 * mm, 2)
                        else: dst = vr(vA + (s_ * 2 + t) * 8 + 2 * mm, 2)
                        a.ds(f"ds_read_b64_tr_b16 {dst}, v{vB1 + sb + (mm & 1) * 2 + t} offset:{imm}")
        else:
            for d in range(4):
                for mm in range(4):
                    imm = so + (8 * (mm >> 1) + 2 * (mm & 1)) * 256
                    a.ds(f"ds_read_b64_tr_b16 {ar(wo(d, cc) + 2*mm, 2)}, v{vB2 + sb + d} offset:{imm}")
        a.wait_ds_all()
        if m == "q":
            for k in range(8):
                a.ds(f"ds_write_b128 v{vRing}, {vr(vA + 4*k, 4)} offset:{WQ_SLOT[cc]*8192 + k*1024}")
            a.wait_ds_all()
        if c + 5 < 16: issue(c + 5)
        if c == P.get('peek', 13) and peek: peek(a)
        if c == P.get("help_at", -1):
            lo, per = P["help"]
            a(f"s_lshl_b32 s{sT0}, s{sH}, 2\ns_add_u32 s{sT0}, s{sT0}, s{sW}\nv_lshlrev_b32 v10, 7, v0")
            for rep in range(P.get("help_rep", 2)):
                if rep: a(f"s_add_u32 s{sT0}, s{sT0}, {128 // P.get('help_rep', 2) + 1}\ns_and_b32 s{sT0}, s{sT0}, 127")
                a(f"s_mul_i32 s{sT1}, s{sT0}, {per*8192}\ns_add_u32 s{sT1}, s{sT1}, {lo*8192}")
                for k in range(per):
                    a(f"buffer_load_dword v11, v10, s[60:63], s{sT1} offen")
                    if k + 1 < per: a(f"s_add_u32 s{sT1}, s{sT1}, 8192")
    a("s_barrier")
    if staged: staged(a)
    a(f"""
    ds_write_b128 v{vM16}, v[112:115] offset:{RA_OFF}
    v_lshlrev_b32 v{vL8}, 3, v0
    s_waitcnt lgkmcnt(0)
    """)

def seg_offsets(a, w, P):
    a(f"""
    s_and_b32 s{sT0}, s{sStep}, 3
    s_lshl_b32 s{sT1}, s{sT0}, 18
    s_lshl_b32 s{sT2}, s{sH}, 7
    s_add_u32 s{sPst}, s{sT1}, s{sT2}
    s_add_u32 s{sPst}, s{sPst}, {PART + w*65536}
    s_lshl_b32 s{sT3}, s{sH}, 13
    s_add_u32 s{sPld}, s{sT1}, s{sT3}
    s_add_u32 s{sPld}, s{sPld}, {PART - MISC + (w&1)*4096}
    s_add_u32 s{sT0}, s{sStep}, 3
    s_and_b32 s{sT0}, s{sT0}, 3
    s_lshl_b32 s{sT1}, s{sT0}, 18
    s_mov_b32 s{sTag}, 0
    s_lshr_b32 s{sT2}, s{sH}, 3
    s_lshl_b32 s{sT2}, s{sT2}, 11
    s_and_b32 s{sT3}, s{sH}, 1
    s_lshl_b32 s{sT3}, s{sT3}, 9
    s_add_u32 s{sT2}, s{sT2}, s{sT3}
    s_bfe_u32 s{sT3}, s{sH}, 0x20001
    s_lshl_b32 s{sT3}, s{sT3}, 6
    s_add_u32 s{sT2}, s{sT2}, s{sT3}
    s_lshl_b32 s{sT1}, s{sT0}, 13
    s_add_u32 s{sMclr}, s{sT1}, s{sT2}
    s_add_u32 s{sMclr}, s{sMclr}, {MBUF + (w&1)*1024}
    s_add_u32 s{sT0}, s{sStep}, 1
    s_and_b32 s{sT0}, s{sT0}, 3
    s_lshl_b32 s{sT1}, s{sT0}, 13
    s_add_u32 s{sMpub}, s{sT1}, s{sT2}
    s_add_u32 s{sMpub}, s{sMpub}, {MBUF + (w&1)*1024}
    s_add_u32 s{sMpoll}, s{sT1}, {MBUF - MISC + w*2048}
    s_lshl_b32 s{sT0}, s{sStep}, 5
    s_add_u32 s{sT0}, s{sT0}, s{sH}
    s_lshl_b32 s{sT1}, s{sT0}, 13
    s_add_u32 s{sVx}, s{sT1}, {VIMG - MISC + w*2048}
    s_add_u32 s{sKx}, s{sT1}, {KIMG - MISC + 32*8192}
    s_lshl_b32 s{sT1}, s{sT0}, 12
    s_add_u32 s{sKm}, s{sT1}, {KMEM - MISC + w*1024}
    s_lshl_b32 s{sT1}, s{sT0}, 11
    s_add_u32 s{sVm}, s{sT1}, {VMEM + w*512}
    """)

sRP, sRM, sMprev, sCP1, sCP2, sCM1, sVmPrev = 76, 77, 78, 79, 80, 81, 82
sKb, sStage = 75, 74
sONE = 42
sB1M = 40
def init_incr(a, w):
    a(f"""
    s_mov_b32 s{sRP}, 0
    s_mov_b32 s{sRM}, 8192
    s_mov_b32 s{sCP1}, s{sPst}
    s_mov_b32 s{sCP2}, s{sPld}
    s_sub_u32 s{sCM1}, s{sMpub}, 8192
    s_mov_b32 s{sMprev}, s{sCM1}
    """)
NP = [1]
def advance(a, w):
    a(f"""
    s_add_u32 s{sVx}, s{sVx}, {32*8192}
    s_add_u32 s{sKx}, s{sKx}, {32*8192}
    s_add_u32 s{sKm}, s{sKm}, {32*4096}
    s_sub_u32 s{sMclr}, s{sMprev}, {(w&1)*1024}
    s_mov_b32 s{sMprev}, s{sMpub}
    s_add_u32 s{sRM}, s{sRM}, 8192
    s_and_b32 s{sRM}, s{sRM}, 0x7fff
    s_add_u32 s{sMpub}, s{sRM}, s{sCM1}
    s_add_u32 s{sStep}, s{sStep}, 1
    """)
    if NP[0] == 1: a(f"s_xor_b32 s{sTag}, s{sTag}, 1")
    else:
        a(f"""
        s_add_u32 s{sRP}, s{sRP}, 0x40000
        s_and_b32 s{sRP}, s{sRP}, {NP[0]*0x40000 - 1}
        s_add_u32 s{sPst}, s{sRP}, s{sCP1}
        s_add_u32 s{sPld}, s{sRP}, s{sCP2}
        s_bfe_u32 s{sTag}, s{sStep}, {0x10000 + NP[0].bit_length() - 1}
        """)

def korder(w):
    own = [2 * w, 2 * w + 1]
    rest = [(2 * w + 2 + k) % 8 for k in range(6)]
    seq = [(0, own[0]), (1, own[0]), (0, own[1]), (1, own[1])] + [(0, s) for s in rest] + [(1, s) for s in rest]
    return own, rest, seq

ABL = [""]; NT = [""]
def ring_fill(a, w, i):
    if "r" in ABL[0] and i >= NRING: return
    t, s = korder(w)[2][i]
    r = ringreg(i); imm = WQ_SLOT[s >> 1] * 8192 + ((s & 1) * 2 + t) * 2048
    a.ds(f"ds_read_b128 {vr(r,4)}, v{vRing} offset:{imm}", ("ring", i))
    a.ds(f"ds_read_b128 {vr(r+4,4)}, v{vRing} offset:{imm+1024}", ("ring", i))

def kx_dma(a, w, i):
    a(f"s_add_u32 m0, s{sKb}, {i*1024}")
    a(f"s_add_u32 s{sT0}, s{sKx}, {i*1024}")
    a.vm(f"buffer_load_dwordx4 v{vM16}, s[{sWS}:{sWS+3}], s{sT0} offen {NT[0]} lds", "kx")

class Stream:
    def __init__(self): self.ops = []; self.fill = {}
    def add(self, f, pre=None): self.ops.append((f, pre)); return len(self.ops) - 1
    def at(self, g, f): self.fill.setdefault(g, []).append(f)
    def emit(self):
        for g, (f, pre) in enumerate(self.ops):
            if pre: pre()
            f()
            for x in self.fill.pop(g, []): x()
        assert not self.fill, self.fill.keys()

def loop(a, w, st, P, diag=False):
    tag = f"{w}{'s' if st else 'f'}"
    WS = f"s[{sWS}:{sWS+3}]"
    smf = lambda d, A, B: a(f"v_smfmac_f32_16x16x64_bf16 {vr(d,4)}, {vr(A,4)}, {B}, v{vIDX}")
    mf = lambda d, A, B, c: a(f"v_mfma_f32_16x16x32_bf16 {vr(d,4)}, {vr(A,4)}, {vr(B,4)}, {c}")
    mf16 = lambda d, A, B, c: a(f"v_mfma_f32_16x16x16_bf16 {vr(d,4)}, {vr(A,2)}, {vr(B,2)}, {c}")
    I = lambda t: (lambda: a(t))
    Af = lambda s: vA + 4 * s
    q = lambda t: vACC + 8 * t
    k_ = lambda t: vACC + 8 * t + 4
    vacc = lambda t: (vVA0, vPM)[t]
    own, rest, seq = korder(w)
    ABL[0] = P.get("abl", ""); NP[0] = P.get("np", 1); NT[0] = P.get("nt", "nt")
    SL = P.get("stamps", ["start", "qkend", "xbar", "scores", "pv", "obar", "opend", "pub", "bdone"])
    def ST(n):
        if diag and n in SL:
            if P.get("trace"): a(f"s_memrealtime s[{sTS+2*SL.index(n)}:{sTS+2*SL.index(n)+1}]")
            else: stamp(a, SL.index(n), diag)
    vVM = vVA0 + 2
    def zero_acc():
        if w == 3:
            a(f"v_mov_b32 v124, -1\nv_lshrrev_b32 v125, 8, v{vL8}\nv_bfe_u32 v126, v{vL8}, 7, 1\nv_lshl_add_u32 v125, v125, 2, v126\nv_bfe_u32 v126, v{vL8}, 1, 6\nv_lshl_add_u32 v125, v125, 8, v126")
        for r in range(16): a(f"v_mov_b32 v{vACC+r}, 0")
        for t in range(2):
            for r in range(4): a(f"v_mov_b32 v{vacc(t)+r}, 0")
    def mwrite():
        for o in own:
            a.ds(f"ds_write_b128 v{vM16}, {vr(Af(o),4)} offset:{M_OFF + o*1024}", "mw")
    hook = P.get("hooks")
    if hook: hook["ready"](a, w, tag, True)
    for r in range(8): a(f"v_mov_b32 v{Af(own[0])+r}, v{(16, 17, 18, 19, 12, 13, 14, 15)[r]}")
    vxl = [lambda: a.vm(f"buffer_load_dwordx4 {vr(vVX,4)}, v{vM16}, {WS}, s{sVx} offen {NT[0]}", "vx"),
           lambda: a.vm(f"buffer_load_dwordx4 {vr(vVX+4,4)}, v{vM16}, {WS}, s{sVx} offen offset:1024 {NT[0]}", "vx")]
    a(f"s_mov_b32 s{sStep}, -1\ns_mov_b32 s{sKb}, {MISC+KX_OFF}")
    seg_offsets(a, w, P)
    kx_dma(a, w, 2 * w); kx_dma(a, w, 2 * w + 1)
    a(f"s_mov_b32 s{sStep}, 0\ns_mov_b32 s{sKb}, {MISC+KX_OFF+8192}")
    seg_offsets(a, w, P)
    if P["jobs"] != "S":
        kx_dma(a, w, 2 * w); kx_dma(a, w, 2 * w + 1)
        vxl[0](); vxl[1]()
    a(f"s_mov_b32 s{sVmPrev}, s{sKm}\ns_sub_u32 s{sMclr}, s{sMclr}, {(w&1)*1024}")
    init_incr(a, w)
    for i in range(NRING): ring_fill(a, w, i)
    zero_acc()
    a.wait_vm_all(True); a.wait_ds_all(True)
    LB = [Af(o) for o in own]
    loadB = lambda k: a(f"buffer_load_dwordx4 {vr(LB[k],4)}, v{vM16}, {WS}, s{sMpoll} offen offset:{k*1024} sc1")
    NS = P["depB"]
    def retryB():
        a.label(f"CH_RBRETRY_{tag}")
        loadB(0); loadB(1)
        if diag: a(f"s_add_u32 s{sTS+21}, s{sTS+21}, 1")
        a(f"s_add_u32 s{sCnt}, s{sCnt}, 1")
        a(f"s_cmp_gt_u32 s{sCnt}, {P['bound']}\ns_cbranch_scc1 CH_RBOK_{tag}\ns_branch CH_RB_{tag}")
    a(f"s_mov_b32 s{sCnt}, 0")
    for k in range(8): a(f"v_min_u32 v{LB[0]+k}, 0xfffffffe, v{LB[0]+k}")
    a.label(f"CH_RB_{tag}")
    ST("B_w0")
    a.dsq = []
    r_ = [LB[0] + k for k in range(8)]
    a(f"s_waitcnt vmcnt({2 * NS - 1})")
    a(f"v_max3_u32 v10, v{r_[0]}, v{r_[1]}, v{r_[2]}")
    a(f"v_max_u32 v10, v10, v{r_[3]}")
    a.ds(f"ds_write_b128 v{vM16}, {vr(LB[0],4)} offset:{M_OFF + own[0]*1024}", "mw")
    a(f"s_waitcnt vmcnt({2 * NS - 2})")
    a(f"v_max3_u32 v10, v10, v{r_[4]}, v{r_[5]}")
    a(f"v_max3_u32 v10, v10, v{r_[6]}, v{r_[7]}")
    a.ds(f"ds_write_b128 v{vM16}, {vr(LB[1],4)} offset:{M_OFF + own[1]*1024}", "mw")
    a(f"v_cmp_eq_u32 vcc, -1, v10")
    a(f"s_cbranch_vccnz CH_RBRETRY_{tag}" if not P.get("free") else "s_nop 0")
    a.label(f"CH_RBOK_{tag}")
    if diag:
        ST("bdone")
        a("s_waitcnt lgkmcnt(0)")
        a(f"s_cmp_eq_u32 s{sStep}, 0")
        a(f"s_cbranch_scc1 CH_NOACC_{tag}")
        for k in range(8):
            a(f"s_sub_u32 s{sT0}, s{sTS+2*k+2}, s{sTS+2*k}")
            a(f"s_add_u32 s{sTS+22+k}, s{sTS+22+k}, s{sT0}")
        if P.get("trace"):
            a(f"s_cmp_eq_u32 s{sStep}, {P['trace']}")
            for k, dst in enumerate((83, 84, 85, 86, 87, 88, 89, 100, 101)):
                a(f"s_cselect_b32 s{dst}, s{sTS+2*k}, s{dst}")
        a.label(f"CH_NOACC_{tag}")
        if w == 3 and P.get("steptime"):
            a(f"s_memrealtime s[{sT2}:{sT2+1}]\ns_lshl_b32 s{sT0}, s{sH}, 6\ns_add_u32 s{sT0}, s{sT0}, s{sStep}\ns_lshl_b32 s{sT0}, s{sT0}, 2\ns_add_u32 s{sT0}, s{sT0}, {DBG + 0x40000}\ns_waitcnt lgkmcnt(0)")
            a(f"v_mov_b32 v10, s{sT2}\nv_mov_b32 v11, 0\nbuffer_store_dword v10, v11, {WS}, s{sT0} offen")
            a(f"s_memtime s[{sT2}:{sT2+1}]\ns_add_u32 s{sT0}, s{sT0}, 0x10000\ns_waitcnt lgkmcnt(0)\nv_mov_b32 v10, s{sT2}\nbuffer_store_dword v10, v11, {WS}, s{sT0} offen")
    ST("start")
    a.vmq = ["stale"] * (2 * NS - 2) + (["dbg", "dbg"] if diag and w == 3 and P.get("steptime") else [])
    S = Stream()
    vs = [(t, s) for s in own + rest for t in range(2)]
    def vsm(S, pre=None):
        t, s = vs.pop(0)
        return S.add(lambda: smf(vacc(t), Af(s), ar(wv(t, s), 8)), pre)
    gq = {}
    aread = lambda s: a.ds(f"ds_read_b128 {vr(Af(s),4)}, v{vM16} offset:{M_OFF + s*1024}", ("A", s))
    NB = P["pre_bar"]
    def bar_and_reads():
        a.wait_ds("mw")
        ST("mbar0")
        a("s_barrier")
        ST("mbar1")
        for s in rest[:P["a_burst"]]: aread(s)
    xread = lambda sg: [a.ds(f"ds_read_b64_tr_b16 {vr(vXF+4*sg+2*p,2)}, v{vXr} offset:{(sg&1)*512 + p*256 + (sg>>1)*128}", ("X", sg)) for p in range(2)]
    for i in range(16):
        t, s = seq[i]
        def pre(i=i, s=s):
            a.wait_ds(("A", s))
            if i in (4, 7, 10, 13): ST(f"q{i}")
            a.wait_ds(("ring", i))
        if i == 4:
            for n in range(4): vsm(S)
        gq[i] = S.add(lambda t=t, s=s, i=i: smf(q(t), Af(s), vr(ringreg(i), 8)), pre)
        S.add(lambda t=t, s=s: smf(k_(t), Af(s), vr(wk(t, s), 8)))
    GB = P["pre_bar"] - 1
    S.at(GB, bar_and_reads)
    kxread = lambda kt, s: a.ds(f"ds_read_b128 {vr(kx(kt,s),4)}, v{vKx} offset:{(kt*4+s)*1024}", "kx")
    def half_fill(i, h):
        t, s = seq[i]
        r = ringreg(i) + 4 * h; imm = WQ_SLOT[s >> 1] * 8192 + ((s & 1) * 2 + t) * 2048 + h * 1024
        a.ds(f"ds_read_b128 {vr(r,4)}, v{vRing} offset:{imm}", ("ring", i))
    reads = [(GB + 1, lambda s=s: aread(s)) for s in rest[P["a_burst"]:]]
    ringr = [(gq[i - NRING], lambda i=i, h=h: half_fill(i, h)) for i in range(NRING, 16) for h in range(2)]
    npre = P["r_pre"]
    for n in range(npre): S.at(max(ringr[n][0], min(n + 1, GB)), ringr[n][1])
    if "r" not in ABL[0]: reads += ringr[npre:]
    if "k" not in ABL[0]: reads += [(gq[10 + n // 2], lambda n=n: kxread(n >> 2, n & 3)) for n in range(P["kx_in"])]
    g = GB + 1
    for (e, f) in reads:
        g = max(g, e)
        S.at(min(g, 35), f); g += 1
    def post(t, r0):
        return [I(f"v_add_f32 v{q(t)}, v{q(t)}, v{q(t)+2}"), I(f"v_add_f32 v{q(t)+1}, v{q(t)+1}, v{q(t)+3}"),
                I(f"v_add_f32 v{k_(t)}, v{k_(t)}, v{k_(t)+2}"), I(f"v_add_f32 v{k_(t)+1}, v{k_(t)+1}, v{k_(t)+3}"),
                I(f"v_cvt_pk_bf16_f32 v{r0}, v{q(t)}, v{q(t)+1}"), I(f"v_cvt_pk_bf16_f32 v{r0+1}, v{k_(t)}, v{k_(t)+1}"),
                lambda: a.ds(f"ds_write_b64 v{vXw}, {vr(r0,2)} offset:{t*128}", "xw")]
    p0 = post(0, vACC + 6)
    g0 = gq[10] + 2
    S.at(gq[10], lambda: a.nop(2)); S.at(gq[10] + 1, lambda: a.nop(2))
    g0 += P.get("p0off", 0)
    if "p" not in ABL[0]:
        for n in range(6): S.at(g0 + n, p0[n])
        S.at(g0 + 5 + P.get("p0w", 0), p0[6])
    vONE = vACC
    if not P.get("one_late"):
        for n in range(4): S.at(g0 + 6 + n, I(f"v_mov_b32 v{vONE+n}, s{sONE}"))
    late = {}
    if P["jobs"] == "S" and "j" not in ABL[0]:
        jobs = [lambda: a.vm(f"buffer_store_dwordx4 {vr(vVX,4)}, v{vM16}, {WS}, s{sVmPrev} offen sc1", "exp"), vxl[0], vxl[1],
                lambda: kx_dma(a, w, 2 * w), lambda: kx_dma(a, w, 2 * w + 1)]
        if w == 3: jobs.append(lambda: a.vm(f"buffer_store_dword v124, v125, {WS}, s{sMclr} offen {st}", "clr"))
        if hook and w == P.get("fw", 0): jobs.append(lambda: hook["flag"](a))
        for n, jb in enumerate(jobs):
            g = P["j0"] + P["jstr"] * n + P["jw"] * w
            if n == 5: g = P["j0"] + P["jstr"] * (2 if w else 3) + P["jw"] * w + P["jstr"] // 2
            if g < 36: S.at(g, jb)
            else: late.setdefault(g - 36 + 2, []).append(jb)
    S.at(gq[12], I(f"s_add_u32 s{sMpoll}, s{sRM}, {MBUF - MISC + w*2048}"))
    if 35 not in S.fill: S.at(35, lambda: a.nop(1))
    S.emit()
    ST("qkend")
    T0, T1, Tm = vACC + 8, vACC + 12, vT
    def score(S, T, sg):
        A = {T0: kx(0, sg), T1: kx(1, sg), Tm: vXF + 4 * sg}[T]
        return S.add(lambda: mf(T, A, vXF + 4 * sg, "0" if sg == 0 else vr(T, 4)), lambda: a.wait_ds(("X", sg)))
    p1 = post(1, vACC + 4)
    S = Stream()
    a.nop(6)
    a(f"v_pk_add_f32 {vr(q(1),2)}, {vr(q(1),2)}, {vr(q(1)+2,2)}\nv_pk_add_f32 {vr(k_(1),2)}, {vr(k_(1),2)}, {vr(k_(1)+2,2)}")
    for n in range(4, 7): p1[n]()
    for n in range(P["v_pre"]):
        g = vsm(S)
        if P["kx_in"] + n < 8: S.at(g, lambda n=n: kxread((P["kx_in"] + n) >> 2, (P["kx_in"] + n) & 3))
    assert P["kx_in"] + P["v_pre"] >= 8
    def xbar1():
        a.wait_ds("xw")
        a("s_barrier"); ST("xbar"); xread(0)
    g = vsm(S, xbar1)
    S.at(g, lambda: xread(1))
    S.at(vsm(S), lambda: xread(2)); S.at(vsm(S), lambda: xread(3))
    ones = list(range(4)) if P.get("one_late") else []
    while vs:
        gl = vsm(S)
        if ones: S.at(gl, I(f"v_mov_b32 v{vONE+ones.pop(0)}, s{sONE}"))
    for g, l_ in late.items():
        for jb in l_: S.at(g, jb)
    S.at(gl, lambda: (a.wait_vm("stale"), a.wait_ds("kx"), ST("vdone")))
    m, t_ = vT, 11
    gs = [score(S, T, sg) for T in (T0, T1, Tm) for sg in range(4)]
    va = [I(f"v_add_f32 v{vacc(t)+k}, v{vacc(t)+k}, v{vacc(t)+k+2}") for t in range(2) for k in range(2)]
    for n in range(4): S.at(gs[n], lambda: a.nop(1))
    S.at(gs[4], va[0]); S.at(gs[4], va[1]); S.at(gs[5], va[2]); S.at(gs[5], va[3])
    S.at(gs[6], I(f"v_cvt_pk_bf16_f32 v{vVM}, v{vacc(0)}, v{vacc(0)+1}"))
    S.at(gs[7], I(f"v_cvt_pk_bf16_f32 v{vVM+1}, v{vacc(1)}, v{vacc(1)+1}\ns_cmp_ge_u32 s{sStep}, 63\ns_cbranch_scc1 CH_DONE_{tag}"))
    S.at(gs[8], I(f"v_max3_f32 v10, v{T0}, v{T0+1}, v{T0+2}\nv_mov_b32 v{vPM+1}, 0\ns_nop 1"))
    S.at(gs[9], I(f"v_max_f32 v10, v10, v{T0+3}\nv_mov_b32 v{vPM+2}, 0\ns_nop 1"))
    S.at(gs[10], I(f"v_max3_f32 v10, v10, v{T1}, v{T1+1}"))
    S.at(gs[11], I(f"v_max3_f32 v10, v10, v{T1+2}, v{T1+3}"))
    S.emit()
    ST("scores")
    oacc = lambda d: vRING + 4 * d
    zq = list(range(16))
    z = lambda n: [a(f"v_mov_b32 v{vRING+zq.pop(0)}, 0") for _ in range(n)]
    z(7)
    a(f"v_max3_f32 v{m}, v10, v{Tm+2}, v{Tm+3}")
    a(f"v_mov_b32 v{t_}, v{m}")
    z(2)
    a(f"v_permlane32_swap_b32 v{m}, v{t_}")
    a(f"v_max_f32 v{m}, v{m}, v{t_}")
    a(f"v_mov_b32 v{t_}, v{m}")
    z(2)
    a(f"v_permlane16_swap_b32 v{m}, v{t_}")
    a(f"v_max_f32 v{m}, v{m}, v{t_}")
    a(f"v_mul_f32 v10, s{sC}, v{m}")
    pf = lambda r: a(f"v_pk_fma_f32 {vr(r,2)}, {vr(r,2)}, s[{sC}:{sC+1}], v[10:11] op_sel_hi:[1,1,0] neg_lo:[0,0,1] neg_hi:[0,0,1]")
    ex = lambda r: a(f"v_exp_f32 v{r}, v{r}")
    aX, aY, aL = vA, vA + 4, vA + 24
    vPX = vACC + 4
    pf(Tm + 2); pf(T0); ex(Tm + 2); ex(Tm + 3); pf(T0 + 2); pf(T1); pf(T1 + 2)
    a(f"v_cvt_pk_bf16_f32 v{vPM}, v{Tm+2}, v{Tm+3}")
    a(f"v_cvt_pk_bf16_f32 v{vPM+3}, v{Tm+2}, v{Tm+3}")
    ex(T0); ex(T0 + 1)
    mf16(aL, vONE, vPM, "0")
    ex(T0 + 2); ex(T0 + 3)
    mf16(aX, vVM, vPM, "0")
    ex(T1); ex(T1 + 1)
    mf16(aY, vVM, vPM + 2, "0")
    ex(T1 + 2); ex(T1 + 3)
    a(f"v_cvt_pk_bf16_f32 v{vPX}, v{T0}, v{T0+1}")
    a(f"v_cvt_pk_bf16_f32 v{vPX+1}, v{T0+2}, v{T0+3}")
    a(f"v_cvt_pk_bf16_f32 v{vPX+2}, v{T1}, v{T1+1}")
    a(f"v_cvt_pk_bf16_f32 v{vPX+3}, v{T1+2}, v{T1+3}")
    a.wait_vm("vx")
    a.nop(2 if "j" in ABL[0] else 1)
    mf(aL, vONE, vPX, vr(aL, 4)); z(2)
    mf(aX, vVX, vPX, vr(aX, 4)); z(2)
    mf(aY, vVX + 4, vPX, vr(aY, 4))
    ST("pv")
    z(1); a.nop(1)
    a(f"v_rcp_f32 v10, v{aL}")
    a.nop(3)
    vOW = vA + 8
    for r in range(4):
        if r == 2: a.nop(1)
        a(f"v_pk_mul_f32 {vr(aX+2*r,2)}, {vr(aX+2*r,2)}, v[10:11] op_sel_hi:[1,0]")
    for r in range(4):
        a(f"v_cvt_pk_bf16_f32 v{vOW+r}, v{aX+2*r}, v{aX+2*r+1}")
    a.ds(f"ds_write_b128 v{vM16}, {vr(vOW,4)} offset:{O_OFF + w*1024}", "ow")
    vOF = lambda s: vA + 12 + 4 * s
    a.nop(1)
    for r in range(4):
        a(f"v_mov_b32_dpp v{vOF(w)+r}, v{vOW+r} quad_perm:[0,1,0,1] row_mask:0xf bank_mask:0xf")
    a.nop(2)
    assert not zq
    S = Stream()
    orest = [(w + 1 + k) % 4 for k in range(3)]
    def obar():
        a.wait_ds_all()
        a("s_barrier")
        ST("obar")
        for s in orest: a.ds(f"ds_read_b128 {vr(vOF(s),4)}, v{vOr} offset:{s*1024}", ("O", s))
        a(f"s_add_u32 s{sT0}, s{sPst}, 4096")
    XW = vXF + 4 * w
    sel = lambda d, f: f"v_cndmask_b32 v{vVX+d}, v{f}, v{XW+d}, s[{sB1M}:{sB1M+1}]"
    dpp = lambda d: f"v_mov_b32_dpp v{10+d}, v{vVM+d} quad_perm:[2,3,2,3] row_mask:0xf bank_mask:0xf"
    pack = [I(dpp(0) + "\n" + sel(0, vVM)), I(dpp(1) + "\n" + sel(1, vVM + 1)), I(sel(2, 10)), I(sel(3, 11))]
    for d in range(4):
        g = S.add(lambda d=d: smf(oacc(d), vOF(w), ar(wo(d, w), 8)), obar if d == P["o_pre"] else None)
        S.at(g, pack[d])
    if P["o_pre"] == 4: S.at(g, obar)
    vST = vRING + 16
    go = [S.add(lambda d=d, s=s: smf(oacc(d), vOF(s), ar(wo(d, s), 8)), lambda s=s: a.wait_ds(("O", s)))
          for dp in range(2) for s in orest for d in (2 * dp, 2 * dp + 1)]
    cv = lambda d, k: I(f"v_cvt_pk_bf16_f32 v{vST+2*d+k}, v{oacc(d)+2*k}, v{oacc(d)+2*k+1}")
    tg = lambda dp: I(f"v_and_or_b32 v{vST+4*dp}, v{vST+4*dp}, -2, s{sTag}")
    pst = lambda dp: a.vm(f"buffer_store_dwordx4 {vr(vST+4*dp,4)}, v{vPst}, {WS}, s{sT0 if dp else sPst} offen {st}", "pst")
    if P.get("pst0", 0) == 0:
        S.at(go[6], lambda: a.nop(6)); S.at(go[6], cv(0, 0)); S.at(go[7], cv(0, 1)); S.at(go[8], tg(0)); S.at(go[9], cv(1, 0)); S.at(go[10], cv(1, 1))
        S.at(go[10], lambda: pst(0))
    elif P["pst0"] == 1:
        S.at(go[6], lambda: a.nop(6)); S.at(go[6], cv(0, 0)); S.at(go[6], cv(0, 1)); S.at(go[7], cv(1, 0)); S.at(go[7], cv(1, 1)); S.at(go[7], tg(0))
        S.at(go[7], lambda: pst(0))
    else:
        S.at(go[6], lambda: a.nop(6))
        for f in (cv(0, 0), cv(0, 1), cv(1, 0), cv(1, 1), tg(0), lambda: pst(0)): S.at(go[6], f)
    S.emit()
    a.nop(7 if P.get('pst0', 0) else 6)
    cv(2, 0)(); cv(2, 1)(); cv(3, 0)(); cv(3, 1)(); tg(1)(); pst(1)
    ST("opend")
    LA = [Af(rest[k]) for k in range(4)]
    vRA, vRD = Af(rest[4]), Af(rest[5])
    def issueA():
        for k in range(4): a(f"buffer_load_dwordx4 {vr(LA[k],4)}, v{vM16}, {WS}, s{sPld} offen offset:{k*1024} sc1")
    def chores():
        zero_acc()
        a(f"v_xor_b32 v{vKx}, 8192, v{vKx}\ns_xor_b32 s{sKb}, s{sKb}, 8192")
    a(f"s_mov_b32 s{sCnt}, 0")
    if w < 2:
        a.ds(f"ds_read_b128 {vr(vRA,4)}, v{vM16} offset:{RA_OFF}", "ra")
        if w == 1: chores()
        a.nop(P["dlyA"][w])
        issueA()
        ST("issA")
        if w == 0: chores()
        for i in range(P["nrA"]): ring_fill(a, w, i)
        DA = P["depA"][w]
        for _ in range(DA - 1):
            a.nop(P["gapA"]); issueA()
        a.wait_ds("ra")
        a.label(f"CH_RA_{tag}")
        ny = 4 * (DA - 1)
        for k in range(4):
            a(f"s_waitcnt vmcnt({ny + 3 - k})")
            if k == 3:
                ST("A_w2")
                a(f"v_bitop3_b32 v11, v{LA[2]}, v{LA[3]}, s{sTag} bitop3:0x7e")
                a(f"v_bitop3_b32 v10, v10, v11, 1 bitop3:0xa8")
            if k == 1: a(f"v_bitop3_b32 v10, v{LA[0]}, v{LA[1]}, s{sTag} bitop3:0x7e")
            if k == 0 and DA > 1: continue
            if k == 1 and DA > 1: mf(vRD, LA[0], vRA, "0")
            if k == 2 and DA > 1: continue
            if k == 3 and DA > 1: mf(vRD, LA[2], vRA, vr(vRD, 4))
            mf(vRD, LA[k], vRA, "0" if k == 0 else vr(vRD, 4))
        a(f"v_cmp_ne_u32 vcc, 0, v10")
        a(f"s_cbranch_vccnz CH_RARETRY_{tag}" if not P.get("free") else "s_nop 0")
        a.label(f"CH_RAOK_{tag}")
        ST("A_ok")
        a.nop(6)
        a(f"v_permlane32_swap_b32 v{vRD}, v{vRD+2}")
        a(f"v_permlane32_swap_b32 v{vRD+1}, v{vRD+3}")
        a(f"s_mov_b64 exec, s[{sLO8}:{sLO8+1}]")
        a(f"v_pk_add_f32 {vr(vRD,2)}, {vr(vRD,2)}, {vr(vRD+2,2)}")
        a(f"v_cvt_pk_bf16_f32 v{vRD}, v{vRD}, v{vRD+1}")
        a(f"buffer_store_dword v{vRD}, v{vMpub}, {WS}, s{sMpub} offen {st}")
        a("s_mov_b64 exec, -1")
        ST("pub")
        if w == 0:
            for i in range(P["nrA"], NRING): ring_fill(a, w, i)
    else:
        chores()
        for i in range(NRING): ring_fill(a, w, i)
    def adv():
        a(f"s_mov_b32 s{sCnt}, 0\ns_mov_b32 s{sVmPrev}, s{sKm}")
        advance(a, w)
        if hook: hook["ready"](a, w, tag, False)
    if w != 1: adv()
    a("s_barrier")
    a.nop(P["dlyB"])
    loadB(0); loadB(1)
    ST("issB")
    if w == 1: adv()
    for _ in range(NS - 1):
        a.nop(P["gapB"] if w != 1 else max(0, P["gapB"] - P["w1c"])); loadB(0); loadB(1)
    if w == 1:
        for i in range(P["nrA"], NRING): ring_fill(a, w, i)
    a.wait_ds_all()
    a.vmq = []
    a(f"s_branch CH_RB_{tag}")
    if w < 2:
        a.label(f"CH_RARETRY_{tag}")
        issueA()
        a(f"s_add_u32 s{sCnt}, s{sCnt}, 1")
        if diag: a(f"s_add_u32 s{sTS+20}, s{sTS+20}, 1")
        a(f"s_cmp_gt_u32 s{sCnt}, {P['bound']}")
        a(f"s_cbranch_scc1 CH_RAOK_{tag}")
        a(f"s_branch CH_RA_{tag}")
    retryB()
    a.label(f"CH_DONE_{tag}")
    a.wait_vm_all(True)
    a.nop(1)
    for f in pack: f()
    a(f"buffer_store_dwordx4 {vr(vVX,4)}, v{vM16}, {WS}, s{sKm} offen sc1")
    a.dsq = []; a.vmq = []
    if hook: hook["done"](a, w)
```

```python
XN   = 0x0000000
QIMG = 0x0200000
KIMG = 0x1200000
VIMG = 0x2200000
KMEM = 0x3200000
VMEM = 0x3A00000
OIMG = 0x3E00000
HIMG = 0x4E00000
PART = 0x5600000
MBUF = 0x5700000
DBG  = 0x5800000
WS_BYTES = 268435456
KA = dict(x=0, mem0=8, Wq=16, Wk=24, Wv=32, Wo=40, seg=48, bx=56, w1=64, b1=72, w2=80, b2=88, out=96, dbg=104, ws=112)
FLG  = 0x5710000
G1F = FLG
CHF = FLG + 0x7000
ATF = FLG + 0x8000
LNF = FLG + 0xC000
WQP = 0x6000000
WVP = 0x6400000
SLOWH = [1, 5, 9, 13, 17, 21, 25, 29, 31]
NINIT = 16
ERRW = DBG + 0x10000
D_MODE, D_INIT = 0, 4
D_VP = 12
D_QP = 8
D_MASK, D_WM = 128, 140
NSETS = 10
EFROM = 60
```

```python
from asm import *
from layout import *
import math, struct

sWS = 8
WS = f"s[{sWS}:{sWS+3}]"
DB = "s[4:7]"
sW = 17
sRole = 16
sDead = 37
sA, sB, sC_, sD = 32, 33, 34, 35
POLL_BOUND = 1 << 16
SLEEP = [2]
OUTF = ['']
HOLD = [0]
PREFETCH = [(48, 50, 58, 52)]

def fbits(x): return struct.unpack("<I", struct.pack("<f", x))[0]

def srd(a, d, ka, size):
    a(f"s_load_dwordx2 s[{d}:{d+1}], s[0:1], {KA[ka]}\ns_mov_b32 s{d+2}, {size}\ns_mov_b32 s{d+3}, 0x20000")

def poll_ge(a, load, vals, target, name, sleep=1, vtmp=None):
    L = a.newlabel("POLL_" + name); E = L + "_E"
    a(f"s_mov_b32 s{sD}, 0")
    a.label(L)
    a(f"s_cmp_lg_u32 s{sDead}, 0\ns_cbranch_scc1 {E}")
    a(load)
    a(f"s_add_u32 s{sD}, s{sD}, 1")
    a(f"s_cmp_gt_u32 s{sD}, {POLL_BOUND}\ns_cselect_b32 s{sDead}, 1, 0")
    a("s_waitcnt vmcnt(0)")
    v = vals[0]
    for k in range(1, len(vals)):
        a(f"v_min_u32 v{vtmp}, v{v}, v{vals[k]}"); v = vtmp
    a(f"v_cmp_gt_u32 vcc, {target}, v{v}")
    a(f"s_cbranch_vccz {E}")
    if sleep: a(f"s_sleep {sleep}")
    a(f"s_branch {L}")
    a.label(E)
    a.vmq = []

def flag_store(a, soff, sval, v0=2):
    a(f"v_mov_b32 v{v0}, {sval}\nv_mov_b32 v{v0+1}, 0\ns_mov_b64 exec, 1")
    a.vm(f"buffer_store_dword v{v0}, v{v0+1}, {WS}, {soff} offen sc1", "flag")
    a("s_mov_b64 exec, -1")

def layernorm(a, sTask, diag=False, local=None, after_loads=None, after_sum=None):
    srd(a, 60, "x", 2048 * 1024)
    a(f"""
    v_and_b32 v8, 7, v0
    v_lshrrev_b32 v9, 3, v0
    v_lshlrev_b32 v14, 10, v8
    v_lshl_add_u32 v14, v9, 4, v14
    s_lshl_b32 s27, s{sTask}, 13
    s_waitcnt lgkmcnt(0)
    """)
    R, F = 16, 48
    for s in range(8):
        a.vm(f"buffer_load_dwordx4 {vr(R+4*s,4)}, v14, s[60:63], s27 offen offset:{s*128}", ("ln", s))
    a(f"""
    v_lshrrev_b32 v15, 2, v9
    v_lshlrev_b32 v15, 11, v15
    v_and_b32 v9, 3, v9
    v_lshl_add_u32 v15, v9, 8, v15
    v_lshl_add_u32 v15, v8, 4, v15
    s_lshr_b32 s27, s{sTask}, 2
    s_lshl_b32 s27, s27, 15
    s_bfe_u32 s28, s{sTask}, 0x10001
    s_lshl_b32 s28, s28, 10
    s_add_u32 s27, s27, s28
    s_and_b32 s28, s{sTask}, 1
    s_lshl_b32 s28, s28, 7
    s_add_u32 s27, s27, s28
    s_add_u32 s27, s27, {XN}
    v_mov_b32 v10, 0
    v_mov_b32 v11, 0
    """)
    if after_loads: after_loads()
    for s in range(8):
        a.wait_vm(("ln", s))
        for k in range(4):
            r = R + 4 * s + k; f = F + 8 * s + 2 * k
            a(f"v_lshlrev_b32 v{f}, 16, v{r}\nv_and_b32 v{f+1}, 0xffff0000, v{r}")
            a(f"v_pk_add_f32 v[10:11], v[10:11], {vr(f,2)}")
    if diag: a("s_memrealtime s[72:73]")
    if after_sum: after_sum()
    def allred():
        a("v_add_f32 v10, v10, v11\ns_nop 1\nv_add_f32_dpp v10, v10, v10 row_ror:8 row_mask:0xf bank_mask:0xf")
        for op in ("v_permlane32_swap_b32", "v_permlane16_swap_b32"):
            a(f"v_mov_b32 v11, v10\ns_nop 1\n{op} v10, v11\nv_add_f32 v10, v10, v11")
    allred()
    a(f"v_mul_f32 v12, {fbits(1/512):#x}, v10\nv_mov_b32 v10, 0\nv_mov_b32 v11, 0")
    for k in range(32):
        f = F + 2 * k
        a(f"v_pk_add_f32 {vr(f,2)}, {vr(f,2)}, v[12:13] op_sel_hi:[1,0] neg_lo:[0,1] neg_hi:[0,1]")
        a(f"v_pk_fma_f32 v[10:11], {vr(f,2)}, {vr(f,2)}, v[10:11]")
    allred()
    a(f"v_mov_b32 v12, {fbits(1e-5):#x}\nv_fmac_f32 v12, {fbits(1/512):#x}, v10\nv_rsq_f32 v12, v12\ns_nop 0")
    for s in range(8):
        for k in range(4):
            f = F + 8 * s + 2 * k
            a(f"v_pk_mul_f32 {vr(f,2)}, {vr(f,2)}, v[12:13] op_sel_hi:[1,0]")
            a(f"v_cvt_pk_bf16_f32 v{R+4*s+k}, v{f}, v{f+1}")
        if local is None:
            a.vm(f"buffer_store_dwordx4 {vr(R+4*s,4)}, v15, {WS}, s27 offen sc1", "lnst")
            a(f"s_add_u32 s27, s27, 4096")
        else:
            if s == 0: a(f"s_and_b32 s27, s27, 0x7fff\ns_add_u32 s27, s27, {local}\nv_add_u32 v15, s27, v15")
            a.ds(f"ds_write_b128 v15, {vr(R+4*s,4)} offset:{s*4096}")
    if diag: a("s_memrealtime s[74:75]")

G1_XBUF = 98304
def gemm1(a, wait_init, verdict, sInit, diag=False):
    sSl, sJ, sKind, sRow, sOut, sN, sXs, sFl = 18, 19, 20, 21, 22, 23, 24, 25
    a(f"""
    s_lshr_b32 s{sSl}, s{sRole}, 2
    s_and_b32 s{sJ}, s{sRole}, 3
    s_lshr_b32 s{sKind}, s{sSl}, 4            ; 0 K, 1 V, 2 Q, 3 FFN1
    s_load_dwordx2 s[48:49], s[0:1], {KA['Wk']}
    s_load_dwordx2 s[50:51], s[0:1], {KA['Wv']}
    s_load_dwordx2 s[52:53], s[0:1], {KA['Wq']}
    s_load_dwordx2 s[54:55], s[0:1], {KA['w1']}
    s_load_dwordx2 s[56:57], s[0:1], {KA['b1']}
    s_load_dwordx2 s[58:59], s[0:1], {KA['Wo']}
    s_waitcnt lgkmcnt(0)
    s_mov_b32 s12, s48
    s_mov_b32 s13, s49
    s_mov_b32 s14, {512*4096*2}
    s_mov_b32 s{sRow}, 8192
    s_cmp_eq_u32 s{sKind}, 1
    s_cselect_b32 s12, s50, s12
    s_cselect_b32 s13, s51, s13
    s_cmp_eq_u32 s{sKind}, 2
    s_cselect_b32 s12, s52, s12
    s_cselect_b32 s13, s53, s13
    s_cmp_eq_u32 s{sKind}, 3
    s_cselect_b32 s12, s54, s12
    s_cselect_b32 s13, s55, s13
    s_cselect_b32 s14, {512*1792*2}, s14
    s_cselect_b32 s{sRow}, 3584, s{sRow}
    s_mov_b32 s15, 0x20000
    v_and_b32 v240, 15, v0
    v_lshrrev_b32 v241, 4, v0
    v_and_b32 v242, 3, v0
    v_bfe_u32 v243, v0, 2, 2
    v_lshrrev_b32 v4, 3, v0
    v_mul_lo_u32 v4, v4, s{sRow}
    v_and_b32 v5, 7, v0
    v_bfe_u32 v6, v0, 4, 1
    v_lshlrev_b32 v6, 1, v6
    v_xor_b32 v5, v5, v6
    v_xor_b32 v6, 4, v5
    s_and_b32 s{sA}, s{sSl}, 15
    s_lshl_b32 s{sA}, s{sA}, 9
    s_lshl_b32 s{sB}, s{sW}, 7
    s_add_u32 s{sA}, s{sA}, s{sB}
    v_add_u32 v4, s{sA}, v4
    v_lshl_add_u32 v244, v5, 4, v4
    v_lshl_add_u32 v245, v6, 4, v4
    v_lshl_add_u32 v4, v241, 3, v243
    v_lshlrev_b32 v4, 7, v4
    v_lshl_add_u32 v4, v242, 3, v4
    s_mul_i32 s{sA}, s{sW}, 24576
    v_add_u32 v4, s{sA}, v4
    v_lshrrev_b32 v5, 1, v243
    v_and_b32 v6, 1, v241
    v_lshl_add_u32 v5, v6, 1, v5
    """)
    for f in range(4):
        a(f"v_xor_b32 v6, {f}, v5\nv_lshl_add_u32 v{246+f}, v6, 5, v4")
    a(f"s_lshl_b32 s{sC_}, s{sRow}, 3\ns_mov_b32 s{sN}, 0")
    def issue(c):
        for i in range(8):
            a(f"s_add_u32 m0, s{sA}, {(c%3)*8192 + i*1024}\ns_nop 0")
            a.vm(f"buffer_load_dwordx4 v{244 + (i&1)}, s[12:15], s{sN} offen lds", ("w", c))
            a(f"s_add_u32 s{sN}, s{sN}, s{sC_}")
    def prefetch():
        if not PREFETCH[0]: return
        a(f"s_lshl_b32 s{sB}, s{sRole}, 2\ns_add_u32 s{sB}, s{sB}, s{sW}\ns_lshl_b32 s{sB}, s{sB}, 12\ns_add_u32 s{sD}, s{sB}, {896*4096}")
        a("v_lshlrev_b32 v13, 6, v0\ns_mov_b32 s42, 0x400000\ns_mov_b32 s43, 0x20000")
        for p in PREFETCH[0]:
            a(f"s_mov_b32 s40, s{p}\ns_mov_b32 s41, s{p+1}")
            a.vm(f"buffer_load_dword v252, v13, s[40:43], s{sB} offen", "pf")
            a.vm(f"buffer_load_dword v252, v13, s[40:43], s{sD} offen", "pf")
    sTask, sHave, sBit, sWd = 26, 31, 38, 39
    a(f"""
    s_mov_b32 s{sHave}, 0
    s_mov_b32 s{sTask}, s{sRole}
    s_cmp_eq_u32 s{sW}, s{sJ}
    s_cbranch_scc1 G1_LN
    s_xor_b32 s{sB}, s{sJ}, 2
    s_cmp_lg_u32 s{sW}, s{sB}
    s_cbranch_scc1 G1_NOLN
    s_and_b32 s{sB}, s{sRole}, 31
    s_cmp_ge_u32 s{sB}, 5
    s_cbranch_scc1 G1_NOLN
    s_lshr_b32 s{sTask}, s{sRole}, 5
    s_mul_i32 s{sTask}, s{sTask}, 5
    s_add_u32 s{sTask}, s{sTask}, s{sB}
    s_add_u32 s{sTask}, s{sTask}, 224
    s_cmp_ge_u32 s{sTask}, 256
    s_cbranch_scc1 G1_NOLN
    G1_LN:
    """)
    layernorm(a, sTask, diag, None, prefetch)
    a(f"s_mov_b32 s{sHave}, 1\ns_branch G1_LN1")
    a.label("G1_NOLN")
    prefetch()
    a.label("G1_LN1")
    def peek():
        a(f"v_mov_b32 v2, {D_INIT}")
        a.vm(f"buffer_load_dword v251, v2, {DB}, 0 offen sc1", "peek")
    def report():
        L = a.newlabel("LNREP")
        a(f"s_cmp_eq_u32 s{sHave}, 0\ns_cbranch_scc1 {L}")
        a(f"v_readfirstlane_b32 s{sB}, v251\ns_nop 3\ns_cmp_ge_u32 s{sB}, {2*NINIT}\ns_cselect_b32 s{sInit}, 1, s{sInit}")
        keep = list(a.vmq)
        wait_init(a, 2)
        if diag: a("s_memrealtime s[76:77]")
        a(f"s_lshl_b32 s{sB}, s{sTask}, 7\ns_add_u32 s{sB}, s{sB}, {LNF}")
        flag_store(a, f"s{sB}", 1, 2)
        a.vmq = keep
        a.label(L)
    a(f"s_cmp_ge_u32 s{sRole}, 220\ns_cbranch_scc1 G1_IDLE")
    a.vmq = []
    a(f"s_lshl_b32 s30, s{sJ}, 2\ns_add_u32 s30, s30, s{sW}")
    layernorm(a, 30, False, G1_XBUF, lambda: [peek()] + [issue(c) for c in range(3)], lambda: (a.wait_vm("peek"), report()))
    W = lambda f, s: 4 * (f * 16 + s)
    for c in range(8):
        a.wait_vm(("w", c))
        for s_ in range(2):
            for f in range(4):
                for p in range(2):
                    a.ds(f"ds_read_b64_tr_b16 {ar(W(f, 2*c+s_) + 2*p, 2)}, v{246+f} offset:{(c%3)*8192 + (32*s_+4*p)*128}")
        a.wait_ds_all()
        if c + 3 < 8: issue(c + 3)
    if diag: a("s_memrealtime s[64:65]")
    vBias = 112
    for r in range(16): a(f"v_mov_b32 v{vBias+r}, 0")
    a(f"s_cmp_lg_u32 s{sKind}, 3\ns_cbranch_scc1 G1_NOBIAS")
    a(f"""
    s_mov_b32 s12, s56
    s_mov_b32 s13, s57
    s_mov_b32 s14, 3584
    s_and_b32 s{sA}, s{sSl}, 15
    s_lshl_b32 s{sA}, s{sA}, 9
    s_lshl_b32 s{sB}, s{sW}, 7
    s_add_u32 s{sA}, s{sA}, s{sB}
    v_lshlrev_b32 v4, 3, v241
    """)
    for f in range(4): a(f"buffer_load_dwordx2 {vr(8+2*f,2)}, v4, s[12:15], s{sA} offen offset:{f*32}")
    a("s_waitcnt vmcnt(0)")
    for f in range(4):
        for k in range(2):
            a(f"v_lshlrev_b32 v{vBias+4*f+2*k}, 16, v{8+2*f+k}\nv_and_b32 v{vBias+4*f+2*k+1}, 0xffff0000, v{8+2*f+k}")
    a.label("G1_NOBIAS")
    verdict(a)
    if diag: a("s_memtime s[96:97]")
    a(f"""
    v_lshlrev_b32 v4, 4, v0
    v_add_u32 v5, {G1_XBUF}, v4
    s_lshl_b32 s{sXs}, s{sJ}, 15
    s_lshl_b32 s{sA}, s{sW}, 13
    s_add_u32 s{sXs}, s{sXs}, s{sA}
    s_add_u32 s{sXs}, s{sXs}, {XN}
    s_lshl_b32 s{sFl}, s{sRole}, 7
    s_add_u32 s{sFl}, s{sFl}, {G1F}
    s_and_b32 s{sA}, s{sSl}, 15
    s_lshl_b32 s{sA}, s{sA}, 1
    s_lshr_b32 s{sB}, s{sW}, 1
    s_add_u32 s{sA}, s{sA}, s{sB}             ; head
    s_lshl_b32 s{sB}, s{sJ}, 5
    s_add_u32 s{sA}, s{sA}, s{sB}
    s_lshl_b32 s{sOut}, s{sA}, 13
    s_and_b32 s{sB}, s{sW}, 1
    """)
    sLb = 26
    a(f"s_lshl_b32 s{sLb}, s{sW}, 13")
    def xdma1(par, i):
        a(f"s_add_u32 m0, s{sLb}, {G1_XBUF + par*32768 + i*1024}")
        a(f"s_add_u32 s{sXs}, s{sXs}, {1024 if i else 4*32768 - 7*1024}")
        a.vm(f"buffer_load_dwordx4 v4, {WS}, s{sXs} offen lds", "x")
    a(f"s_add_u32 s{sXs}, s{sXs}, {7*1024}")
    a(f"s_cmp_eq_u32 s{sKind}, 1\ns_cbranch_scc1 G1_V\ns_cmp_eq_u32 s{sKind}, 3\ns_cbranch_scc1 G1_H")
    for kind in ("QK", "V", "H"):
        a.label(f"G1_{kind}")
        if kind == "QK":
            a(f"s_lshl_b32 s{sB}, s{sB}, 10\ns_add_u32 s{sOut}, s{sOut}, s{sB}")
            a(f"s_mov_b32 s{sB}, {QIMG}\ns_cmp_eq_u32 s{sKind}, 0\ns_cselect_b32 s{sB}, {KIMG}, s{sB}\ns_add_u32 s{sOut}, s{sOut}, s{sB}")
            step = 4 * 32 * 8192
        elif kind == "V":
            a(f"s_lshl_b32 s{sB}, s{sB}, 12\ns_add_u32 s{sOut}, s{sOut}, s{sB}\ns_add_u32 s{sOut}, s{sOut}, {VIMG}")
            step = 4 * 32 * 8192
        else:
            a(f"s_and_b32 s{sA}, s{sSl}, 15\ns_lshl_b32 s{sA}, s{sA}, 2\ns_add_u32 s{sA}, s{sA}, s{sW}\ns_lshl_b32 s{sA}, s{sA}, 11")
            a(f"s_mul_i32 s{sB}, s{sJ}, {2*56*1024}\ns_add_u32 s{sOut}, s{sA}, s{sB}\ns_add_u32 s{sOut}, s{sOut}, {HIMG}")
            step = 4 * 2 * 56 * 1024
        acc = lambda par, mt, f: 128 + par * 32 + (mt * 4 + f) * 4
        vX = lambda s, mt: 16 + ((s % 3) * 2 + mt) * 4
        vS = 48
        def epilogue(par):
            jobs = []
            for n in range(4):
                if kind == "QK": mt, t = n >> 1, n & 1; srcs = (acc(par, mt, t), acc(par, mt, t + 2)); off = mt * 4096 + t * 2048
                elif kind == "V": srcs = (acc(par, 0, n), acc(par, 1, n)); off = n * 1024
                else: mt, t = n >> 1, n & 1; srcs = (acc(par, mt, 2 * t), acc(par, mt, 2 * t + 1)); off = mt * 56 * 1024 + t * 1024
                d = vS + 4 * n
                for h_ in range(2):
                    for k in range(2):
                        r = srcs[h_] + 2 * k
                        if kind == "H":
                            jobs.append(lambda r=r: a(f"v_max_f32 v{r}, 0, v{r}\nv_max_f32 v{r+1}, 0, v{r+1}"))
                            jobs.append(lambda r=r: a(f"v_mul_f32 v{r}, v{r}, v{r}\nv_mul_f32 v{r+1}, v{r+1}, v{r+1}"))
                            jobs.append(lambda r=r, d=d, h_=h_, k=k: a(f"v_cvt_pk_bf16_f32 v{d+2*h_+k}, v{r}, v{r+1}"))
                        else:
                            jobs.append(lambda r=r, d=d, h_=h_, k=k: a(f"v_cvt_pk_bf16_f32 v{d+2*h_+k}, v{r}, v{r+1}"))
                def st(d=d, off=off):
                    a(f"s_add_u32 s{sA}, s{sOut}, {off}")
                    a.vm(f"buffer_store_dwordx4 {vr(d,4)}, v4, {WS}, s{sA} offen sc1", "st")
                jobs.append(st)
            jobs.append(lambda: a(f"s_add_u32 s{sOut}, s{sOut}, {step}"))
            return jobs
        def publish(val):
            L = a.newlabel("G1F")
            a(f"s_cmp_lg_u32 s{sW}, 0\ns_cbranch_scc1 {L}")
            wait_init(a, 8)
            if val is None: a(f"s_sub_u32 s{sA}, s{sN}, 2\ns_max_u32 s{sA}, s{sA}, 1"); val = f"s{sA}"
            flag_store(a, f"s{sFl}", val, 8)
            a.label(L)
        def segment(par, n):
            a("s_waitcnt vmcnt(4)" if n == 2 else "s_waitcnt vmcnt(0) lgkmcnt(0)"); a.vmq = []; a.dsq = []
            a("s_barrier")
            rd = lambda s: [a.ds(f"ds_read_b128 {vr(vX(s,mt),4)}, v5 offset:{par*32768 + s*2048 + mt*1024}", ("x", s)) for mt in range(2)]
            rd(0); rd(1)
            if n == 1: publish(1)
            if n == 2: publish(None)
            jobs = epilogue(1 - par) if n == 2 else []
            for s in range(16):
                if s + 2 < 16: rd(s + 2)
                a.wait_ds(("x", s))
                for mt in range(2):
                    for f in range(4):
                        d = acc(par, mt, f)
                        c = (vr(vBias + 4 * f, 4) if kind == "H" else "0") if s == 0 else vr(d, 4)
                        if kind == "V": a(f"v_mfma_f32_16x16x32_bf16 {vr(d,4)}, {vr(vX(s,mt),4)}, {ar(W(f,s),4)}, {c}")
                        else: a(f"v_mfma_f32_16x16x32_bf16 {vr(d,4)}, {ar(W(f,s),4)}, {vr(vX(s,mt),4)}, {c}")
                        if n and s < 8 and mt == 0 and f == 3: xdma1(1 - par, s)
                        elif jobs and s >= 8: jobs.pop(0)()
            assert not jobs
            if n == 1: a("s_waitcnt vmcnt(0)")
            a(f"s_add_u32 s{sN}, s{sN}, 1")
        a(f"s_mov_b32 s{sN}, 0")
        segment(0, 0)
        a.nop(8)
        for j in epilogue(0): j()
        if HOLD[0]:
            a("s_waitcnt vmcnt(0)\ns_barrier")
            publish(1)
        L = a.newlabel("G1LN")
        a(f"s_cmp_lg_u32 s{sW}, 0\ns_cbranch_scc1 {L}")
        wait_init(a, 8)
        a(f"v_lshrrev_b32 v8, 2, v0\nv_lshlrev_b32 v8, 11, v8\nv_and_b32 v9, 3, v0\nv_lshl_add_u32 v8, v9, 7, v8\ns_lshl_b32 s{sA}, s{sJ}, 9\ns_add_u32 s{sA}, s{sA}, {LNF}")
        poll_ge(a, f"buffer_load_dword v9, v8, {WS}, s{sA} offen sc1", [9], 1, "LN", sleep=2)
        if HOLD[0]:
            wait_init(a, 8)
            a(f"s_and_b32 s{sA}, s{sRole}, 31\ns_lshl_b32 s{sA}, s{sA}, 7\ns_add_u32 s{sA}, s{sA}, {CHF + 64}\nv_mov_b32 v8, 0")
            if HOLD[0] == 1:
                publish_now = a.newlabel("PUB")
            poll_ge(a, f"buffer_load_dword v9, v8, {WS}, s{sA} offen sc1", [9], 1, "STG", sleep=8)
        a.label(L)
        a("s_barrier")
        if diag: a("s_memrealtime s[66:67]")
        for i in range(8): xdma1(1, i)
        segment(1, 1)
        a.label(f"G1_LOOP_{kind}")
        segment(0, 2)
        segment(1, 2)
        a(f"s_cmp_lt_u32 s{sN}, 16\ns_cbranch_scc1 G1_LOOP_{kind}")
        a.label(f"G1_END_{kind}")
        a.nop(8)
        for j in epilogue(1): j()
        a.wait_vm_all(True)
        a("s_barrier")
        L = a.newlabel("G1F")
        a(f"s_cmp_lg_u32 s{sW}, 0\ns_cbranch_scc1 {L}")
        flag_store(a, f"s{sFl}", 16, 8)
        a.label(L)
        a.vmq = []; a.dsq = []
        a("s_branch G1_DONE")
    a.label("G1_IDLE")
    peek()
    a.wait_vm_all(True)
    report()
    verdict(a)
    a.label("G1_DONE")

def attention(a):
    sSeg, sQ, sKm, sVm, sO, sCh, sAt, sCnt = 18, 19, 20, 21, 22, 23, 24, 25
    sCC = 30
    sMask = 40
    c = (128 ** -0.5) * math.log2(math.e)
    a(f"""
    s_mov_b32 s{sCC}, {fbits(c):#x}
    s_mov_b32 s{sCC+1}, {fbits(c):#x}
    v_lshlrev_b32 v4, 4, v0
    v_and_b32 v5, 0x3d, v0
    v_lshlrev_b32 v5, 4, v5
    v_bfe_u32 v6, v0, 1, 1
    v_lshl_add_u32 v5, v6, 3, v5
    v_and_b32 v6, 15, v0
    v_lshrrev_b32 v7, 4, v0
    v_lshlrev_b32 v7, 2, v7
    """)
    for r in range(4):
        a(f"v_add_u32 v8, {r}, v7\nv_cmp_le_u32 s[{sMask+2*r}:{sMask+2*r+1}], v8, v6")
    a(f"""
    s_lshr_b32 s{sA}, s{sRole}, 1
    s_lshl_b32 s{sA}, s{sA}, 2
    s_add_u32 s{sA}, s{sA}, s{sW}
    s_lshl_b32 s{sA}, s{sA}, 7
    s_add_u32 s{sA}, s{sA}, {G1F}
    v_min_u32 v8, 2, v0
    v_lshlrev_b32 v8, 13, v8
    """)
    poll_ge(a, f"buffer_load_dword v9, v8, {WS}, s{sA} offen sc1", [9], 16, "QKV")
    a(f"""
    s_mov_b32 s{sSeg}, s{sW}
    s_lshl_b32 s{sA}, s{sW}, 5
    s_add_u32 s{sA}, s{sA}, s{sRole}
    s_lshl_b32 s{sQ}, s{sA}, 13
    s_lshl_b32 s{sKm}, s{sA}, 12
    s_add_u32 s{sKm}, s{sKm}, {KMEM}
    s_lshl_b32 s{sVm}, s{sA}, 11
    s_add_u32 s{sVm}, s{sVm}, {VMEM}
    s_lshl_b32 s{sO}, s{sW}, 18
    s_lshl_b32 s{sB}, s{sRole}, 12
    s_add_u32 s{sO}, s{sO}, s{sB}
    s_add_u32 s{sO}, s{sO}, {OIMG}
    s_lshl_b32 s{sCh}, s{sRole}, 7
    s_add_u32 s{sCh}, s{sCh}, {CHF}
    s_lshl_b32 s{sAt}, s{sA}, 7
    s_add_u32 s{sAt}, s{sAt}, {ATF}
    s_mov_b32 s{sCnt}, 0
    v_mov_b32 v10, 0
    """)
    vQ, vK, vV, vKM, vVM = 16, 48, 80, 112, 128
    ONE = 136
    S = lambda qt, kt: 140 + (qt * 3 + kt) * 4
    PX = lambda qt: 164 + qt * 4
    PM = lambda qt: 172 + qt * 4
    L_ = lambda qt: 180 + qt * 4
    O = lambda qt, ft: 188 + (qt * 8 + ft) * 4
    for r in range(4): a(f"v_mov_b32 v{ONE+r}, 0x3f803f80")
    for qt in range(2): a(f"v_mov_b32 v{PM(qt)+1}, 0\nv_mov_b32 v{PM(qt)+2}, 0")
    mf = lambda d, A, B, c_: a(f"v_mfma_f32_16x16x32_bf16 {vr(d,4)}, {vr(A,4)}, {vr(B,4)}, {c_}")
    mf16 = lambda d, A, B, c_: a(f"v_mfma_f32_16x16x16_bf16 {vr(d,4)}, {vr(A,2)}, {vr(B,2)}, {c_}")
    a.label("AT_LOOP")
    for (base, img) in ((vK, KIMG), (vQ, QIMG), (vV, VIMG)):
        for hf in range(2):
            a(f"s_add_u32 s{sA}, s{sQ}, {img + hf*4096}")
            for i in range(4):
                a.vm(f"buffer_load_dwordx4 {vr(base+16*hf+4*i,4)}, v4, {WS}, s{sA} offen offset:{i*1024} sc1", ("in", base))
    a.wait_vm(("in", vQ))
    for (qt, kt) in ((0, 0), (1, 0), (1, 1)):
        for s in range(4):
            mf(S(qt, kt), vK + 16 * kt + 4 * s, vQ + 16 * qt + 4 * s, "0" if s == 0 else vr(S(qt, kt), 4))
    a(f"s_add_u32 s{sB}, s{sSeg}, 1")
    poll_ge(a, f"buffer_load_dword v9, v10, {WS}, s{sCh} offen sc1", [9], f"s{sB}", "CH", sleep=SLEEP[0])
    for i in range(4): a.vm(f"buffer_load_dwordx4 {vr(vKM+4*i,4)}, v4, {WS}, s{sKm} offen offset:{i*1024} sc1", "km")
    for i in range(4): a.vm(f"buffer_load_dwordx2 {vr(vVM+2*i,2)}, v5, {WS}, s{sKm} offen offset:{i*1024} sc1", "vm")
    a("v_mov_b32 v11, 0xff800000")
    for (qt, kt) in ((0, 0), (1, 1)):
        for r in range(4):
            a(f"v_cndmask_b32 v{S(qt,kt)+r}, v11, v{S(qt,kt)+r}, s[{sMask+2*r}:{sMask+2*r+1}]")
    a(f"v_max3_f32 v12, v{S(0,0)}, v{S(0,0)+1}, v{S(0,0)+2}\nv_max_f32 v12, v12, v{S(0,0)+3}")
    a(f"v_max3_f32 v14, v{S(1,0)}, v{S(1,0)+1}, v{S(1,0)+2}\nv_max3_f32 v14, v14, v{S(1,0)+3}, v{S(1,1)}")
    a(f"v_max3_f32 v14, v14, v{S(1,1)+1}, v{S(1,1)+2}\nv_max_f32 v14, v14, v{S(1,1)+3}")
    a.wait_vm("km")
    for qt in range(2):
        for s in range(4):
            mf(S(qt, 2), vKM + 4 * s, vQ + 16 * qt + 4 * s, "0" if s == 0 else vr(S(qt, 2), 4))
    a.nop(8)
    for qt in range(2):
        a(f"v_max3_f32 v{12+2*qt}, v{12+2*qt}, v{S(qt,2)+2}, v{S(qt,2)+3}")
    for op in ("v_permlane32_swap_b32", "v_permlane16_swap_b32"):
        a(f"v_mov_b32 v13, v12\nv_mov_b32 v15, v14\ns_nop 0\n{op} v12, v13\n{op} v14, v15\nv_max_f32 v12, v12, v13\nv_max_f32 v14, v14, v15")
    a(f"v_mul_f32 v12, s{sCC}, v12\nv_mul_f32 v14, s{sCC}, v14")
    for qt in range(2):
        m = 12 + 2 * qt
        prs = [S(qt, 2) + 2, S(qt, 0), S(qt, 0) + 2] + ([S(qt, 1), S(qt, 1) + 2] if qt else [])
        for r in prs:
            a(f"v_pk_fma_f32 {vr(r,2)}, {vr(r,2)}, s[{sCC}:{sCC+1}], {vr(m,2)} op_sel_hi:[1,1,0] neg_lo:[0,0,1] neg_hi:[0,0,1]")
        for r in prs: a(f"v_exp_f32 v{r}, v{r}\nv_exp_f32 v{r+1}, v{r+1}")
        a.nop(1)
        a(f"v_cvt_pk_bf16_f32 v{PM(qt)}, v{prs[0]}, v{prs[0]+1}\nv_cvt_pk_bf16_f32 v{PM(qt)+3}, v{prs[0]}, v{prs[0]+1}")
        for k, r in enumerate(prs[1:]): a(f"v_cvt_pk_bf16_f32 v{PX(qt)+k}, v{r}, v{r+1}")
    a.wait_vm_all()
    a.nop(2)
    for qt in range(2):
        mf16(L_(qt), ONE, PM(qt), "0")
        for ft in range(8): mf16(O(qt, ft), vVM + 2 * (ft >> 1), PM(qt) + 2 * (ft & 1), "0")
        m2 = mf if qt else mf16
        m2(L_(qt), ONE, PX(qt), vr(L_(qt), 4))
        for ft in range(8): m2(O(qt, ft), vV + 4 * ft, PX(qt), vr(O(qt, ft), 4))
    for qt in range(2):
        if qt: a.nop(4)
        a(f"v_rcp_f32 v12, v{L_(qt)}")
        if qt: a(f"s_add_u32 s{sA}, s{sO}, {128*1024}")
        else: a.nop(1)
        for pr in range(4):
            d = vK + 16 * qt + 4 * pr
            for h_ in range(2):
                for k in range(2):
                    r = O(qt, 2 * pr + h_) + 2 * k
                    a(f"v_pk_mul_f32 {vr(r,2)}, {vr(r,2)}, v[12:13] op_sel_hi:[1,0]")
                    a(f"v_cvt_pk_bf16_f32 v{d+2*h_+k}, v{r}, v{r+1}")
            a.vm(f"buffer_store_dwordx4 {vr(d,4)}, v4, {WS}, s{sA if qt else sO} offen offset:{pr*1024} sc1", "o")
    a(f"s_add_u32 s{sCnt}, s{sCnt}, 1")
    a.wait_vm_all()
    flag_store(a, f"s{sAt}", f"s{sCnt}", 8)
    a(f"""
    s_add_u32 s{sQ}, s{sQ}, {4*32*8192}
    s_add_u32 s{sKm}, s{sKm}, {4*32*4096}
    s_add_u32 s{sVm}, s{sVm}, {4*32*2048}
    s_add_u32 s{sO}, s{sO}, {4*2*128*1024}
    s_add_u32 s{sSeg}, s{sSeg}, 4
    s_cmp_lt_u32 s{sSeg}, 64
    s_cbranch_scc1 AT_LOOP
    """)
    a.vmq = []; a.dsq = []

def gemm2(a, diag=False):
    sCs, sU, sO, sH_, sX, sN, sPar = 18, 19, 20, 21, 22, 23, 24
    srd(a, 12, "Wo", 4096 * 1024)
    srd(a, 48, "w2", 1792 * 1024)
    srd(a, 52, "x", 2048 * 1024)
    srd(a, 56, "out", 2048 * 1024)
    srd(a, 60, "b2", 1024)
    a(f"""
    s_and_b32 s{sCs}, s{sRole}, 15
    s_lshr_b32 s{sU}, s{sRole}, 4
    v_and_b32 v100, 15, v0
    v_lshrrev_b32 v101, 4, v0
    v_and_b32 v102, 3, v0
    v_bfe_u32 v103, v0, 2, 2
    v_lshrrev_b32 v4, 2, v0
    v_lshlrev_b32 v4, 10, v4
    v_lshl_add_u32 v4, v102, 4, v4
    s_lshl_b32 s{sA}, s{sCs}, 6
    v_add_u32 v104, s{sA}, v4
    v_lshl_add_u32 v4, v101, 2, v103
    v_lshlrev_b32 v4, 6, v4
    v_lshl_add_u32 v4, v102, 4, v4
    s_mul_i32 s{sA}, s{sW}, 32768
    v_add_u32 v105, s{sA}, v4
    s_waitcnt lgkmcnt(0)
    """)
    Wo_ = lambda s, T: ar(8 * s + 4 * T, 4)
    VW2 = 144
    W2_ = lambda s, T: vr(VW2 + 8 * s + 4 * T, 4)
    chunks = [("o", c, 8) for c in range(8)] + [("2", c, 8) for c in range(3)] + [("2", 3, 4)]
    a(f"s_lshl_b32 s{sN}, s{sW}, 20\ns_mul_i32 s{sB}, s{sW}, {448*1024}")
    def issue(n):
        m, c, cnt = chunks[n]
        for i in range(cnt):
            a(f"s_add_u32 m0, s{sA}, {(n%4)*8192 + i*1024}\ns_nop 0")
            so = sN if m == "o" else sB
            a.vm(f"buffer_load_dwordx4 v104, {'s[12:15]' if m == 'o' else 's[48:51]'}, s{so} offen lds", ("w", n))
            a(f"s_add_u32 s{so}, s{so}, {16*1024}")
    for n in range(4): issue(n)
    for n, (m, c, cnt) in enumerate(chunks):
        a.wait_vm(("w", n))
        for s_ in range(cnt // 2):
            for T in range(2):
                for p in range(2):
                    base = (8 * (4 * c + s_) + 4 * T + 2 * p)
                    dst = ar(base, 2) if m == "o" else vr(VW2 + base, 2)
                    a.ds(f"ds_read_b64_tr_b16 {dst}, v105 offset:{(n%4)*8192 + (32*s_+16*p)*64 + T*8}")
        a.wait_ds_all()
        if n + 4 < len(chunks): issue(n + 4)
    if diag: a("s_memrealtime s[68:69]")
    vB = 8
    a(f"""
    v_lshlrev_b32 v4, 4, v101
    s_lshl_b32 s{sA}, s{sCs}, 6
    buffer_load_dwordx4 v[16:19], v4, s[60:63], s{sA} offen
    v_lshl_add_u32 v6, v100, 10, v4
    v_add_u32 v6, s{sA}, v6
    v_lshlrev_b32 v4, 4, v0
    v_add_u32 v5, 131072, v4
    v_and_b32 v7, 7, v0
    v_lshlrev_b32 v7, 7, v7
    s_waitcnt vmcnt(0)
    """)
    for k in range(4): a(f"v_lshlrev_b32 v{vB+2*k}, 16, v{16+k}\nv_and_b32 v{vB+2*k+1}, 0xffff0000, v{16+k}")
    a(f"v_min_u32 v16, 27, v0\nv_lshlrev_b32 v16, 7, v16\ns_mov_b32 s{sA}, {G1F + 48*4*128}")
    poll_ge(a, f"buffer_load_dword v17, v16, {WS}, s{sA} offen sc1", [17], 16, "H")
    a(f"s_mov_b32 s{sPar}, 0")
    a("s_barrier")
    NR = 24
    vR = lambda k: 40 + 4 * (k % NR)
    AC = 24
    a.label("G2_LOOP")
    a(f"""
    s_mul_i32 s{sH_}, s{sU}, {56*1024}
    s_mul_i32 s{sA}, s{sW}, {14*1024}
    s_add_u32 s{sH_}, s{sH_}, s{sA}
    s_add_u32 s{sH_}, s{sH_}, {HIMG}
    s_lshl_b32 s{sO}, s{sU}, 17
    s_lshl_b32 s{sA}, s{sW}, 15
    s_add_u32 s{sO}, s{sO}, s{sA}
    s_add_u32 s{sO}, s{sO}, {OIMG}
    s_lshl_b32 s{sX}, s{sU}, 14
    """)
    a.vm(f"buffer_load_dwordx4 v[20:23], v6, s[52:55], s{sX} offen", "x")
    def ld(k, sbase, n):
        if n and n % 4 == 0: a(f"s_add_u32 s{sbase}, s{sbase}, 4096")
        a.vm(f"buffer_load_dwordx4 {vr(vR(k),4)}, v4, {WS}, s{sbase} offen offset:{(n%4)*1024} sc1", ("a", k))
    for n in range(14): ld(n, sH_, n)
    for n in range(14):
        a.wait_vm(("a", n))
        for T in range(2):
            a(f"v_mfma_f32_16x16x32_bf16 {vr(AC+4*T,4)}, {W2_(n,T)}, {vr(vR(n),4)}, {'0' if n == 0 else vr(AC+4*T,4)}")
    a(f"""
    s_lshr_b32 s{sB}, s{sU}, 1
    s_and_b32 s{sA}, s{sB}, 3
    s_lshl_b32 s{sA}, s{sA}, 12
    s_lshl_b32 s{sC_}, s{sW}, 10
    s_add_u32 s{sA}, s{sA}, s{sC_}
    s_add_u32 s{sA}, s{sA}, {ATF}
    s_lshr_b32 s{sB}, s{sB}, 2
    s_add_u32 s{sB}, s{sB}, 1
    """)
    poll_ge(a, f"buffer_load_dword v17, v7, {WS}, s{sA} offen sc1", [17], f"s{sB}", "AT", sleep=SLEEP[0])
    for n in range(NR): ld(n, sO, n)
    for n in range(32):
        a.wait_vm(("a", n))
        for T in range(2):
            a(f"v_mfma_f32_16x16x32_bf16 {vr(AC+4*T,4)}, {Wo_(n,T)}, {vr(vR(n),4)}, {vr(AC+4*T,4)}")
        if n + NR < 32: ld(n + NR, sO, n + NR)
    a(f"s_lshl_b32 s{sA}, s{sW}, 11\ns_add_u32 s{sA}, s{sA}, s{sPar}\nv_add_u32 v16, s{sA}, v5")
    a.nop(6)
    a.ds(f"ds_write_b128 v16, {vr(AC,4)}")
    a.ds(f"ds_write_b128 v16, {vr(AC+4,4)} offset:1024")
    a.wait_ds_all()
    a("s_barrier")
    a(f"s_cmp_lg_u32 s{sW}, 0\ns_cbranch_scc1 G2_NEXT")
    for w_ in range(1, 4):
        a.ds(f"ds_read_b128 v[32:35], v16 offset:{w_*2048}")
        a.ds(f"ds_read_b128 v[36:39], v16 offset:{w_*2048+1024}")
        a.wait_ds_all()
        for k in range(4): a(f"v_pk_add_f32 {vr(AC+2*k,2)}, {vr(AC+2*k,2)}, {vr(32+2*k,2)}")
    for k in range(4):
        a(f"v_lshlrev_b32 v32, 16, v{20+k}\nv_and_b32 v33, 0xffff0000, v{20+k}")
        a(f"v_pk_add_f32 {vr(AC+2*k,2)}, {vr(AC+2*k,2)}, {vr(vB+2*k,2)}")
        a(f"v_pk_add_f32 {vr(AC+2*k,2)}, {vr(AC+2*k,2)}, v[32:33]")
        a(f"v_cvt_pk_bf16_f32 v{36+k}, v{AC+2*k}, v{AC+2*k+1}")
    a(f"buffer_store_dwordx4 v[36:39], v6, s[56:59], s{sX} offen {OUTF[0]}")
    a.label("G2_NEXT")
    a(f"""
    s_xor_b32 s{sPar}, s{sPar}, 8192
    s_add_u32 s{sU}, s{sU}, {NSETS}
    s_cmp_lt_u32 s{sU}, 128
    s_cbranch_scc1 G2_LOOP
    """)
    a.vmq = []; a.dsq = []
```

```python
import sys
from asm import *
from layout import *
import chain as C
import workers as Wk
NAME = "parallel_sum__memory_aug_recurrent_mem_tr__dense_activation_squared_relu__prompt"
CH = dict(pre_bar=4, v_0=0, v_pre=3, o_pre=2, dlyA=(16, 40), dlyB=16, w1c=12, pst0=1, pbar=1, nrA=3, bound=1 << 15, depA=(2, 2), depB=2, gapA=24, gapB=16, x0=0, xw_only=1, jbar=1, jobs='S', j0=4, jstr=9, jw=2, a_burst=2, r_pre=2, kx_in=5, nt='')
sDB = 4
sInit, sReady, sMode, sXcc, sTent = 84, 85, 86, 87, 83
sCounted, sLost = 29, 79
sA, sB, sC_, sD = Wk.sA, Wk.sB, Wk.sC_, Wk.sD
WS = Wk.WS
DB = f"s[{sDB}:{sDB+3}]"
ROLE_LDS = 163840 - 16
MODE_BOUND = 2000

def wait_init(a, v=2):
    L = a.newlabel("INIT")
    a(f"s_cmp_lg_u32 s{sInit}, 0\ns_cbranch_scc1 {L}")
    a(f"v_mov_b32 v{v}, {D_INIT}")
    Wk.poll_ge(a, f"buffer_load_dword v{v+1}, v{v}, {DB}, 0 offen sc1", [v + 1], 2 * NINIT, "INIT", sleep=4)
    a(f"s_mov_b32 s{sInit}, 1")
    a.label(L)

def atomic(a, op, off, val, dst, cmp=None):
    a(f"s_mov_b64 exec, 1\nv_mov_b32 v20, {val}\nv_mov_b32 v22, {off}")
    if cmp is not None:
        a(f"v_mov_b32 v21, {cmp}\nbuffer_atomic_cmpswap v[20:21], v22, {DB}, 0 offen sc0")
    else:
        a(f"buffer_atomic_{op} v20, v22, {DB}, 0 offen sc0")
    a(f"s_waitcnt vmcnt(0)\nv_readfirstlane_b32 s{dst}, v20\ns_mov_b64 exec, -1\ns_nop 3")

def claim(a, name, sRes, sOff):
    a.label(f"CLAIM_{name}")
    a(f"s_lshl_b32 s{sC_}, 1, s{sA}")
    atomic(a, "or", f"s{sOff}", f"s{sC_}", sB)
    a.label(f"CLAIM_{name}_R")
    a(f"s_and_b32 s{sD}, s{sB}, s{sC_}\ns_or_b32 s{sB}, s{sB}, s{sC_}\ns_mov_b32 s{sRes}, s{sA}")
    a(f"s_cmp_eq_u32 s{sD}, 0\ns_cbranch_scc1 CLAIM_{name}_E")
    a(f"s_mov_b32 s{sRes}, -1\ns_cmp_eq_u32 s{sB}, -1\ns_cbranch_scc1 CLAIM_{name}_E")
    a(f"s_ff0_i32_b32 s{sA}, s{sB}\ns_branch CLAIM_{name}")
    a.label(f"CLAIM_{name}_E")

def bcast(a, s):
    L = a.newlabel("BC")
    a(f"v_mov_b32 v22, {ROLE_LDS}")
    a(f"s_cmp_lg_u32 s{Wk.sW}, 0\ns_cbranch_scc1 {L}\nv_mov_b32 v20, s{s}\nds_write_b32 v22, v20\ns_waitcnt lgkmcnt(0)")
    a.label(L)
    a(f"s_barrier\nds_read_b32 v20, v22\ns_waitcnt lgkmcnt(0)\nv_readfirstlane_b32 s{s}, v20\ns_barrier")

def gen(P=CH, diag=False, force_slow=False):
    a = Asm()
    def mark(a, word, neg=False):
        if not P.get("marks"): return
        a(f"s_memrealtime s[98:99]\ns_waitcnt lgkmcnt(0)")
        if neg: a("s_not_b32 s98, s98")
        a(f"s_mov_b64 exec, 1\nv_mov_b32 v10, s98\nv_mov_b32 v11, {4*word}\nbuffer_atomic_umax v10, v11, {DB}, 0 offen\ns_mov_b64 exec, -1")
    Wk.SLEEP[0] = P.get('sleep', 2); Wk.PREFETCH[0] = P.get('pf', ()); Wk.HOLD[0] = P.get('hold', 0); Wk.OUTF[0] = P.get('outf', '')
    sR = Wk.sRole
    a(f"""
    s_cmp_ge_u32 s2, 256
    s_cbranch_scc1 L_END
    s_load_dwordx2 s[{Wk.sWS}:{Wk.sWS+1}], s[0:1], {KA['ws']}
    s_load_dwordx2 s[{sDB}:{sDB+1}], s[0:1], {KA['dbg']}
    s_getreg_b32 s{sXcc}, hwreg(HW_REG_XCC_ID, 0, 4)
    s_mov_b32 s{Wk.sWS+2}, {WS_BYTES}
    s_mov_b32 s{Wk.sWS+3}, 0x20000
    s_mov_b32 s{sDB+2}, 256
    s_mov_b32 s{sDB+3}, 0x20000
    s_mov_b32 s{Wk.sDead}, 0
    s_mov_b32 s{sInit}, 0
    s_mov_b32 s82, 0
    s_mov_b32 s{sLost}, 0
    v_mov_b32 v250, 0
    v_lshrrev_b32 v1, 6, v0
    v_lshlrev_b32 v8, 4, v0
    v_readfirstlane_b32 s{Wk.sW}, v1
    v_and_b32 v0, 63, v0
    v_mov_b32 v12, -1
    v_mov_b32 v13, -1
    v_mov_b32 v14, -1
    v_mov_b32 v15, -1
    """)
    if diag: a("s_memrealtime s[90:91]")
    CX = 9 if force_slow else P.get('cx', 3)
    sOff, sTry, sDie, sWord, sSpec = 18, 19, 80, 81, 82
    def declare(a):
        L = a.newlabel("DECL")
        a(f"s_cmp_lg_u32 s{sB}, -1\ns_cbranch_scc1 {L}")
        a(f"s_mov_b64 exec, 1\nv_mov_b32 v20, 1\nv_mov_b32 v21, 0\nv_mov_b32 v22, {D_MODE}\nbuffer_atomic_cmpswap v[20:21], v22, {DB}, 0 offen\ns_mov_b64 exec, -1")
        a.label(L)
    a(f"""
    s_bfe_u32 s{sR}, s2, 0x50003
    s_waitcnt lgkmcnt(0)
    """)
    if P.get("marks"):
        a(f"s_cmp_lg_u32 s{Wk.sW}, 0\ns_cbranch_scc1 L_MK0\ns_and_b32 s3, s2, 15\ns_cmp_lg_u32 s3, 0\ns_cbranch_scc1 L_MK0")
        mark(a, 4, True)
        a.label("L_MK0")
    a(f"""
    s_mov_b32 s{sTent}, s{sR}
    s_add_u32 s{sDie}, s{sXcc}, {(15 - CX) % 8}
    s_and_b32 s{sDie}, s{sDie}, 7
    s_min_u32 s{sDie}, s{sDie}, 6
    s_lshl_b32 s{sWord}, s{sDie}, 2
    s_add_u32 s{sWord}, s{sWord}, {D_WM}
    s_cmp_eq_u32 s{sXcc}, {CX}
    s_cselect_b32 s{sWord}, {D_MASK}, s{sWord}
    s_and_b32 s3, s2, 0xe8
    s_cmp_lg_u32 s3, 0
    s_cbranch_scc1 L_I3
    s_xor_b32 s3, s{Wk.sW}, s{sTent}
    s_bitcmp1_b32 s3, 0
    s_cbranch_scc0 L_I3
    """)
    a(f"s_and_b32 s{sA}, s2, 7\ns_lshr_b32 s3, s2, 1\ns_and_b32 s3, s3, 8\ns_add_u32 s{sA}, s{sA}, s3")
    a(f"s_lshr_b32 s3, s{Wk.sW}, 1\ns_lshl_b32 s{sA}, s{sA}, 1\ns_add_u32 s{sA}, s{sA}, s3\nv_lshlrev_b32 v9, 4, v0")
    a(f"s_lshl_b32 s3, s{sA}, 13\ns_add_u32 s3, s3, {PART}")
    for k in range(8):
        a(f"buffer_store_dwordx4 v[12:15], v9, {WS}, s3 offen offset:{(k&3)*1024} sc1")
        if k == 3: a("s_add_u32 s3, s3, 4096")
    a(f"""
    s_lshl_b32 s3, s{sA}, 10
    s_add_u32 s3, s3, {MBUF}
    buffer_store_dwordx4 v[12:15], v9, {WS}, s3 offen sc1
    s_mul_i32 s3, s{sA}, 2560
    s_add_u32 s3, s3, {FLG}
    v_mov_b32 v16, 0
    v_mov_b32 v17, 0
    v_mov_b32 v18, 0
    v_mov_b32 v19, 0
    buffer_store_dwordx4 v[16:19], v9, {WS}, s3 offen sc1
    buffer_store_dwordx4 v[16:19], v9, {WS}, s3 offen offset:1024 sc1
    s_mov_b64 exec, 0xffffffff
    buffer_store_dwordx4 v[16:19], v9, {WS}, s3 offen offset:2048 sc1
    s_mov_b64 exec, -1
    s_waitcnt vmcnt(0)
    s_mov_b64 exec, 1
    v_mov_b32 v20, 1
    v_mov_b32 v22, {D_INIT}
    buffer_atomic_add v20, v22, {DB}, 0 offen
    s_mov_b64 exec, -1
    L_I3:
    s_cmp_lg_u32 s{Wk.sW}, 0
    s_cbranch_scc1 L_I2
    s_mov_b64 exec, 1
    s_lshl_b32 s3, 1, s{sTent}
    v_mov_b32 v250, s3
    v_mov_b32 v22, s{sWord}
    buffer_atomic_or v250, v22, {DB}, 0 offen sc0
    s_mov_b64 exec, -1
    L_I2:
    s_cmp_lg_u32 s{sXcc}, {CX}
    s_cbranch_scc1 L_NOSPEC
    s_mov_b32 s{sSpec}, 1
    s_branch L_CHAIN
    L_CLOST:
    s_cmp_lg_u32 s{Wk.sW}, 0
    s_cbranch_scc1 L_ROLE
    s_mov_b32 s{sA}, s{sTent}
    s_mov_b32 s{sOff}, {D_MASK}
    """)
    claim(a, "A", sR, sOff)
    a(f"s_cmp_eq_u32 s{sR}, -1\ns_cbranch_scc1 L_WCLAIM")
    declare(a)
    a("s_branch L_ROLE")
    a.label("L_NOSPEC")
    if P.get("pf0"):
        a(f"s_load_dwordx4 s[48:51], s[0:1], {KA['Wq']}\ns_load_dwordx4 s[52:55], s[0:1], {KA['Wv']}\ns_mov_b32 s42, 0x400000\ns_mov_b32 s43, 0x20000")
        a(f"v_lshlrev_b32 v13, 2, v8\ns_lshl_b32 s3, s2, 14\ns_add_u32 s44, s2, 1\ns_and_b32 s44, s44, 255\ns_lshl_b32 s44, s44, 14\ns_waitcnt lgkmcnt(0)")
        for p in P["pf0"]:
            a(f"s_mov_b32 s40, s{p}\ns_mov_b32 s41, s{p+1}\nbuffer_load_dword v252, v13, s[40:43], s3 offen\nbuffer_load_dword v252, v13, s[40:43], s44 offen")
    a(f"s_lshl_b32 s{sR}, s{sDie}, 5\ns_add_u32 s{sR}, s{sR}, s{sTent}\ns_mov_b32 s{sSpec}, 1\ns_branch L_WORK")
    a.label("L_WLOST")
    a(f"s_cmp_lg_u32 s{Wk.sW}, 0\ns_cbranch_scc1 L_ROLE2")
    a.label("L_WCLAIM")
    a(f"s_mov_b32 s{sOff}, s{sDie}\ns_mov_b32 s{sTry}, 0\ns_mov_b32 s{sA}, s{sTent}")
    a.label("L_WNEXT")
    a(f"s_cmp_ge_u32 s{sOff}, 7\ns_cselect_b32 s{sB}, 7, 0\ns_sub_u32 s{sOff}, s{sOff}, s{sB}")
    a(f"s_cmp_ge_u32 s{sOff}, 7\ns_cselect_b32 s{sB}, 7, 0\ns_sub_u32 s{sOff}, s{sOff}, s{sB}")
    a(f"s_lshl_b32 s{sOff}, s{sOff}, 2\ns_add_u32 s{sOff}, s{sOff}, {D_WM}")
    claim(a, "W", sR, sOff)
    a(f"s_sub_u32 s{sOff}, s{sOff}, {D_WM}\ns_lshr_b32 s{sOff}, s{sOff}, 2")
    a(f"s_cmp_eq_u32 s{sR}, -1\ns_cbranch_scc0 L_WGOT")
    a(f"s_add_u32 s{sOff}, s{sOff}, 1\ns_add_u32 s{sTry}, s{sTry}, 1\ns_mov_b32 s{sA}, 0\ns_cmp_lt_u32 s{sTry}, 7\ns_cbranch_scc1 L_WNEXT")
    atomic(a, "cmpswap", D_MODE, 2, sB, cmp=0)
    a(f"s_mov_b32 s{sA}, 0\ns_mov_b32 s{sOff}, {D_MASK}")
    claim(a, "B", sR, sOff)
    a("s_branch L_ROLE")
    a.label("L_WGOT")
    a(f"s_lshl_b32 s{sOff}, s{sOff}, 5\ns_add_u32 s{sR}, s{sR}, s{sOff}\ns_add_u32 s{sR}, s{sR}, 32")
    def verdict(a):
        L = a.newlabel("VERD")
        a(f"s_cmp_eq_u32 s{sSpec}, 0\ns_cbranch_scc1 {L}\ns_mov_b32 s{sSpec}, 0")
        a(f"s_waitcnt vmcnt(0)\nv_readfirstlane_b32 s{sB}, v250\ns_nop 3\ns_lshr_b32 s{sB}, s{sB}, s{sTent}\ns_and_b32 s{sB}, s{sB}, 1")
        bcast(a, sB)
        a(f"s_cmp_lg_u32 s{sB}, 0\ns_cbranch_scc1 L_WLOST")
        a.label(L)
    a.label("L_ROLE")
    a.label("L_ROLE2")
    bcast(a, sR)
    a(f"s_cmp_lt_u32 s{sR}, 32\ns_cbranch_scc1 L_CHAIN")
    a(f"s_cmp_eq_u32 s{sR}, -1\ns_cbranch_scc1 L_FIN")
    a(f"s_waitcnt vmcnt(0)\ns_sub_u32 s{sR}, s{sR}, 32")
    a.label("L_WORK")
    if diag: a("s_memrealtime s[70:71]\ns_waitcnt lgkmcnt(0)\ns_mov_b32 s100, s70\ns_add_u32 s101, s16, 32")
    if diag: a("s_mov_b32 s64, 0\ns_mov_b32 s66, 0\ns_mov_b32 s68, 0\ns_mov_b32 s72, 0")
    Wk.gemm1(a, wait_init, verdict, sInit, diag)
    if diag: a("s_memtime s[78:79]")
    if P.get("marks"):
        a(f"s_cmp_lg_u32 s{Wk.sW}, 0\ns_cbranch_scc1 L_MK2\ns_and_b32 s3, s{sR}, 7\ns_cmp_lg_u32 s3, 0\ns_cbranch_scc1 L_MK2")
        mark(a, 8)
        a.label("L_MK2")
    if diag: a("s_memrealtime s[92:93]")
    wait_init(a)
    a(f"s_cmp_ge_u32 s{sR}, 32\ns_cbranch_scc1 L_G2")
    Wk.attention(a)
    a("s_branch L_FIN")
    a.label("L_G2")
    a(f"s_sub_u32 s{sR}, s{sR}, 32")
    Wk.gemm2(a, diag)
    if P.get("marks"):
        a(f"s_waitcnt vmcnt(0)\ns_cmp_lg_u32 s{Wk.sW}, 0\ns_cbranch_scc1 L_FIN")
        mark(a, 9)
    a("s_branch L_FIN")
    a.label("L_CHAIN")
    if diag: a("s_memrealtime s[70:71]\ns_waitcnt lgkmcnt(0)\ns_mov_b32 s100, s70\ns_mov_b32 s101, s16")
    def first_chunk(a):
        L = a.newlabel("CV")
        a(f"s_cmp_eq_u32 s{sSpec}, 0\ns_cbranch_scc1 {L}\ns_cmp_lg_u32 s{Wk.sW}, 0\ns_cbranch_scc1 {L}")
        a(f"v_readfirstlane_b32 s{sB}, v250\ns_lshl_b32 s3, 1, s{sTent}\ns_nop 2\ns_and_b32 s{sLost}, s{sB}, s3\ns_or_b32 s{sB}, s{sB}, s3")
        a(f"s_cmp_lg_u32 s{sLost}, 0\ns_cbranch_scc1 {L}")
        declare(a)
        a.label(L)
    def staged(a):
        L = a.newlabel("CV")
        a(f"s_cmp_eq_u32 s{sSpec}, 0\ns_cbranch_scc1 {L}\ns_mov_b32 s{sSpec}, 0")
        bcast(a, sLost)
        a(f"s_cmp_lg_u32 s{sLost}, 0\ns_cbranch_scc1 L_CLOST")
        a.label(L)
    sChf, sG1 = 88, 89
    def g1addr(a, lane):
        a(f"v_and_b32 v11, 3, {lane}\nv_bfe_u32 v10, {lane}, 2, 1\nv_lshlrev_b32 v10, 13, v10\nv_lshl_add_u32 v10, v11, 7, v10")
    def set_ready(a, v):
        for perm in ("quad_perm:[1,0,3,2]", "quad_perm:[2,3,0,1]", "row_half_mirror"):
            a(f"s_nop 1\nv_min_u32_dpp v{v}, v{v}, v{v} {perm} row_mask:0xf bank_mask:0xf")
        a(f"s_nop 0\nv_readfirstlane_b32 s{sReady}, v{v}\ns_nop 3\ns_lshl_b32 s{sReady}, s{sReady}, 2")
    def peek(a):
        a(f"s_lshl_b32 s{sChf}, s{C.sH}, 7\ns_add_u32 s{sChf}, s{sChf}, {CHF}")
        a(f"s_lshr_b32 s{sG1}, s{C.sH}, 1\ns_lshl_b32 s{sG1}, s{sG1}, 9\ns_add_u32 s{sG1}, s{sG1}, {G1F}")
        g1addr(a, "v0")
        a(f"v_mov_b32 v24, 0\nbuffer_load_dwordx2 v[26:27], v24, {DB}, 0 offen sc1\nbuffer_load_dword v25, v10, {WS}, s{sG1} offen sc1")
    C.prologue_a(a, P, True)
    C.prologue_b(a, P, first_chunk, staged, peek)
    a(f"s_waitcnt vmcnt(0)\nv_readfirstlane_b32 s{sMode}, v26\nv_readfirstlane_b32 s3, v27")
    set_ready(a, 25)
    a(f"s_cmp_ge_u32 s3, {2 * NINIT}\ns_cselect_b32 s{sInit}, 1, s{sInit}\ns_cselect_b32 s{sReady}, s{sReady}, 0")
    wait_init(a, 10)
    if P.get("hold"):
        a(f"s_cmp_lg_u32 s{Wk.sW}, 0\ns_cbranch_scc1 L_STG\ns_add_u32 s3, s{sChf}, 64")
        Wk.flag_store(a, "s3", 1, 10)
        a.label("L_STG")
    a(f"s_cmp_lg_u32 s{sMode}, 0\ns_cbranch_scc1 L_MODEOK\nv_mov_b32 v10, {D_MODE}")
    Wk.poll_ge(a, f"buffer_load_dword v11, v10, {DB}, 0 offen sc1", [11], 1, "MODE")
    a(f"v_readfirstlane_b32 s{sMode}, v11\ns_nop 3")
    a.label("L_MODEOK")
    if P.get("marks"):
        a(f"s_cmp_lg_u32 s{Wk.sW}, 1\ns_cbranch_scc1 L_MK1")
        mark(a, 5); mark(a, 6, True)
        a.label("L_MK1")
    if diag:
        for k in range(20, 30): a(f"s_mov_b32 s{C.sTS+k}, 0")
        a("s_memrealtime s[92:93]\ns_memtime s[96:97]")
    stubs = []
    def ready(a, w, tag, first):
        if not first and w != 2: return
        L = a.newlabel("RDY")
        if first: a(f"s_mov_b32 s{C.sStep}, 0")
        a(f"s_add_u32 s{C.sT0}, s{C.sStep}, {1 if first else 3}\ns_min_u32 s{C.sT0}, s{C.sT0}, 63\ns_cmp_ge_u32 s{C.sT0}, s{sReady}\ns_cbranch_scc1 {L}_S")
        a.label(L)
        stubs.append((L, first))
    def flag(a):
        if P.get("noflag"): return
        a(f"s_sub_u32 s{C.sT0}, s{C.sStep}, 1\ns_max_i32 s{C.sT0}, s{C.sT0}, 0")
        Wk.flag_store(a, f"s{sChf}", f"s{C.sT0}", 10)
    def done(a, w):
        a("s_waitcnt vmcnt(0)\ns_barrier")
        if w == 0: Wk.flag_store(a, f"s{sChf}", 64, 10)
        if w == 1: mark(a, 7)
        a.vmq = []
        a("s_branch L_FIN")
        for L, first in stubs:
            a.label(L + "_S")
            a(f"s_add_u32 s{C.sT0}, s{C.sStep}, 1\ns_min_u32 s{C.sT0}, s{C.sT0}, 63\ns_lshr_b32 s{C.sT0}, s{C.sT0}, 2\ns_add_u32 s{C.sT0}, s{C.sT0}, 1")
            a(f"v_lshrrev_b32 v10, 3, v{C.vL8}")
            g1addr(a, "v10")
            Wk.poll_ge(a, f"buffer_load_dword v11, v10, {WS}, s{sG1} offen sc1", [11], f"s{C.sT0}", "KV", sleep=0)
            set_ready(a, 11)
            a(f"s_branch {L}")
        stubs.clear()
    P = dict(P, hooks=dict(ready=ready, flag=flag, done=done))
    a(f"s_cmp_eq_u32 s{sMode}, 1\ns_cbranch_scc0 L_SLOW")
    for st in ("", "sc1"):
        if st: a.label("L_SLOW")
        t = "s" if st else "f"
        for w in range(1, 4): a(f"s_cmp_eq_u32 s{C.sW}, {w}\ns_cbranch_scc1 CH_W{w}{t}")
        for w in range(4):
            a.label(f"CH_W{w}{t}")
            C.loop(a, w, st, P, diag)
    a.label("L_FIN")
    if diag:
        a("s_memrealtime s[94:95]\ns_memtime s[98:99]\ns_waitcnt lgkmcnt(0)")
        a(f"s_lshl_b32 s3, s2, 2\ns_add_u32 s3, s3, s{Wk.sW}\ns_lshl_b32 s3, s3, 7\ns_add_u32 s3, s3, {DBG}")
        vals = [C.sTS + 20 + k for k in range(10)] + [90, 92, 94, 96, 98, sR, sXcc, Wk.sDead, 100, 101, 72, 74, 76, 78]
        for i, sg in enumerate(vals):
            a(f"v_mov_b32 v20, s{sg}\nv_mov_b32 v21, {4*i}\nbuffer_store_dword v20, v21, {WS}, s3 offen")
    a("s_waitcnt vmcnt(0)")
    a.label("L_END")
    return a.text()

def wrap(body):
    ref = open(f"cdna_kernels/{NAME}.s.ref").read().split("\n")
    head = [l for l in ref if l.startswith(";") and "@launch" not in l]
    return "\n".join(head) + f"""
; @launch grid=(256,1,1) block=(256,1,1) lds=163840
.amdgcn_target "amdgcn-amd-amdhsa--gfx950"
.text
.globl {NAME}_kernel
.p2align 8
.type {NAME}_kernel,@function
{NAME}_kernel:
{body}s_endpgm
.section .rodata,"a"
.p2align 6
.amdhsa_kernel {NAME}_kernel
  .amdhsa_next_free_vgpr 512
  .amdhsa_next_free_sgpr 102
  .amdhsa_accum_offset 256
  .amdhsa_group_segment_fixed_size 0
  .amdhsa_kernarg_size 120
  .amdhsa_user_sgpr_count 2
  .amdhsa_user_sgpr_kernarg_segment_ptr 1
  .amdhsa_system_sgpr_workgroup_id_x 1
.end_amdhsa_kernel
"""
if __name__ == "__main__":
    import ast
    P = dict(CH)
    if len(sys.argv) > 2: P.update(ast.literal_eval(sys.argv[2]))
    t = gen(P)
    hz = check(t)
    for h in hz[:12]: print(h)
    out = sys.argv[1] if len(sys.argv) > 1 else f"cdna_kernels/{NAME}.s"
    open(out, "w").write(wrap(t))
    print("lines", len(t.split("\n")), "hazards", len(hz))
```

```python
import sys
from asm import *
from layout import *
import chain as C
import workers as Wk
NAME = "parallel_sum__memory_aug_recurrent_mem_tr__dense_activation_squared_relu__prompt"
CH = dict(pre_bar=4, v_0=0, v_pre=3, o_pre=2, dlyA=(16, 40), dlyB=16, w1c=12, pst0=1, pbar=1, nrA=3, bound=1 << 15, depA=(2, 2), depB=2, gapA=24, gapB=16, x0=0, xw_only=1, jbar=1, jobs='S', j0=4, jstr=9, jw=2, a_burst=2, r_pre=2, kx_in=5, nt='')
sDB = 4
sInit, sReady, sMode, sXcc, sTent = 84, 85, 86, 87, 83
sCounted, sLost = 29, 79
sA, sB, sC_, sD = Wk.sA, Wk.sB, Wk.sC_, Wk.sD
WS = Wk.WS
DB = f"s[{sDB}:{sDB+3}]"
ROLE_LDS = 163840 - 16
MODE_BOUND = 2000

def wait_init(a, v=2):
    L = a.newlabel("INIT")
    a(f"s_cmp_lg_u32 s{sInit}, 0\ns_cbranch_scc1 {L}")
    a(f"v_mov_b32 v{v}, {D_INIT}")
    Wk.poll_ge(a, f"buffer_load_dword v{v+1}, v{v}, {DB}, 0 offen sc1", [v + 1], 2 * NINIT, "INIT", sleep=4)
    a(f"s_mov_b32 s{sInit}, 1")
    a.label(L)

def atomic(a, op, off, val, dst, cmp=None):
    a(f"s_mov_b64 exec, 1\nv_mov_b32 v20, {val}\nv_mov_b32 v22, {off}")
    if cmp is not None:
        a(f"v_mov_b32 v21, {cmp}\nbuffer_atomic_cmpswap v[20:21], v22, {DB}, 0 offen sc0")
    else:
        a(f"buffer_atomic_{op} v20, v22, {DB}, 0 offen sc0")
    a(f"s_waitcnt vmcnt(0)\nv_readfirstlane_b32 s{dst}, v20\ns_mov_b64 exec, -1\ns_nop 3")

def claim(a, name, sRes, sOff):
    a.label(f"CLAIM_{name}")
    a(f"s_lshl_b32 s{sC_}, 1, s{sA}")
    atomic(a, "or", f"s{sOff}", f"s{sC_}", sB)
    a.label(f"CLAIM_{name}_R")
    a(f"s_and_b32 s{sD}, s{sB}, s{sC_}\ns_or_b32 s{sB}, s{sB}, s{sC_}\ns_mov_b32 s{sRes}, s{sA}")
    a(f"s_cmp_eq_u32 s{sD}, 0\ns_cbranch_scc1 CLAIM_{name}_E")
    a(f"s_mov_b32 s{sRes}, -1\ns_cmp_eq_u32 s{sB}, -1\ns_cbranch_scc1 CLAIM_{name}_E")
    a(f"s_ff0_i32_b32 s{sA}, s{sB}\ns_branch CLAIM_{name}")
    a.label(f"CLAIM_{name}_E")

def bcast(a, s):
    L = a.newlabel("BC")
    a(f"v_mov_b32 v22, {ROLE_LDS}")
    a(f"s_cmp_lg_u32 s{Wk.sW}, 0\ns_cbranch_scc1 {L}\nv_mov_b32 v20, s{s}\nds_write_b32 v22, v20\ns_waitcnt lgkmcnt(0)")
    a.label(L)
    a(f"s_barrier\nds_read_b32 v20, v22\ns_waitcnt lgkmcnt(0)\nv_readfirstlane_b32 s{s}, v20\ns_barrier")

def gen(P=CH, diag=False, force_slow=False):
    a = Asm()
    def mark(a, word, neg=False):
        if not P.get("marks"): return
        a(f"s_memrealtime s[98:99]\ns_waitcnt lgkmcnt(0)")
        if neg: a("s_not_b32 s98, s98")
        a(f"s_mov_b64 exec, 1\nv_mov_b32 v10, s98\nv_mov_b32 v11, {4*word}\nbuffer_atomic_umax v10, v11, {DB}, 0 offen\ns_mov_b64 exec, -1")
    Wk.SLEEP[0] = P.get('sleep', 2); Wk.PREFETCH[0] = P.get('pf', ()); Wk.HOLD[0] = P.get('hold', 0); Wk.OUTF[0] = P.get('outf', 'sc1')
    sR = Wk.sRole
    a(f"""
    s_cmp_ge_u32 s2, 256
    s_cbranch_scc1 L_END
    s_load_dwordx2 s[{Wk.sWS}:{Wk.sWS+1}], s[0:1], {KA['ws']}
    s_load_dwordx2 s[{sDB}:{sDB+1}], s[0:1], {KA['dbg']}
    s_getreg_b32 s{sXcc}, hwreg(HW_REG_XCC_ID, 0, 4)
    s_mov_b32 s{Wk.sWS+2}, {WS_BYTES}
    s_mov_b32 s{Wk.sWS+3}, 0x20000
    s_mov_b32 s{sDB+2}, 256
    s_mov_b32 s{sDB+3}, 0x20000
    s_mov_b32 s{Wk.sDead}, 0
    s_mov_b32 s{sInit}, 0
    s_mov_b32 s82, 0
    s_mov_b32 s{sLost}, 0
    v_mov_b32 v250, 0
    v_lshrrev_b32 v1, 6, v0
    v_lshlrev_b32 v8, 4, v0
    v_readfirstlane_b32 s{Wk.sW}, v1
    v_and_b32 v0, 63, v0
    v_mov_b32 v12, -1
    v_mov_b32 v13, -1
    v_mov_b32 v14, -1
    v_mov_b32 v15, -1
    """)
    if diag: a("s_memrealtime s[90:91]")
    CX = 9 if force_slow else P.get('cx', 3)
    sOff, sTry, sDie, sWord, sSpec = 18, 19, 80, 81, 82
    def declare(a):
        L = a.newlabel("DECL")
        a(f"s_cmp_lg_u32 s{sB}, -1\ns_cbranch_scc1 {L}")
        a(f"s_mov_b64 exec, 1\nv_mov_b32 v20, 1\nv_mov_b32 v21, 0\nv_mov_b32 v22, {D_MODE}\nbuffer_atomic_cmpswap v[20:21], v22, {DB}, 0 offen\ns_mov_b64 exec, -1")
        a.label(L)
    a(f"""
    s_bfe_u32 s{sR}, s2, 0x50003
    s_waitcnt lgkmcnt(0)
    """)
    if P.get("marks"):
        a(f"s_cmp_lg_u32 s{Wk.sW}, 0\ns_cbranch_scc1 L_MK0\ns_and_b32 s3, s2, 15\ns_cmp_lg_u32 s3, 0\ns_cbranch_scc1 L_MK0")
        mark(a, 4, True)
        a.label("L_MK0")
    a(f"""
    s_mov_b32 s{sTent}, s{sR}
    s_add_u32 s{sDie}, s{sXcc}, {(15 - CX) % 8}
    s_and_b32 s{sDie}, s{sDie}, 7
    s_min_u32 s{sDie}, s{sDie}, 6
    s_lshl_b32 s{sWord}, s{sDie}, 2
    s_add_u32 s{sWord}, s{sWord}, {D_WM}
    s_cmp_eq_u32 s{sXcc}, {CX}
    s_cselect_b32 s{sWord}, {D_MASK}, s{sWord}
    s_and_b32 s3, s2, 0xe8
    s_cmp_lg_u32 s3, 0
    s_cbranch_scc1 L_I3
    s_xor_b32 s3, s{Wk.sW}, s{sTent}
    s_bitcmp1_b32 s3, 0
    s_cbranch_scc0 L_I3
    """)
    a(f"s_and_b32 s{sA}, s2, 7\ns_lshr_b32 s3, s2, 1\ns_and_b32 s3, s3, 8\ns_add_u32 s{sA}, s{sA}, s3")
    a(f"s_lshr_b32 s3, s{Wk.sW}, 1\ns_lshl_b32 s{sA}, s{sA}, 1\ns_add_u32 s{sA}, s{sA}, s3\nv_lshlrev_b32 v9, 4, v0")
    a(f"s_lshl_b32 s3, s{sA}, 13\ns_add_u32 s3, s3, {PART}")
    for k in range(8):
        a(f"buffer_store_dwordx4 v[12:15], v9, {WS}, s3 offen offset:{(k&3)*1024} sc1")
        if k == 3: a("s_add_u32 s3, s3, 4096")
    a(f"""
    s_lshl_b32 s3, s{sA}, 10
    s_add_u32 s3, s3, {MBUF}
    buffer_store_dwordx4 v[12:15], v9, {WS}, s3 offen sc1
    s_mul_i32 s3, s{sA}, 2560
    s_add_u32 s3, s3, {FLG}
    v_mov_b32 v16, 0
    v_mov_b32 v17, 0
    v_mov_b32 v18, 0
    v_mov_b32 v19, 0
    buffer_store_dwordx4 v[16:19], v9, {WS}, s3 offen sc1
    buffer_store_dwordx4 v[16:19], v9, {WS}, s3 offen offset:1024 sc1
    s_mov_b64 exec, 0xffffffff
    buffer_store_dwordx4 v[16:19], v9, {WS}, s3 offen offset:2048 sc1
    s_mov_b64 exec, -1
    s_waitcnt vmcnt(0)
    s_mov_b64 exec, 1
    v_mov_b32 v20, 1
    v_mov_b32 v22, {D_INIT}
    buffer_atomic_add v20, v22, {DB}, 0 offen
    s_mov_b64 exec, -1
    L_I3:
    s_cmp_lg_u32 s{Wk.sW}, 0
    s_cbranch_scc1 L_I2
    s_mov_b64 exec, 1
    s_lshl_b32 s3, 1, s{sTent}
    v_mov_b32 v250, s3
    v_mov_b32 v22, s{sWord}
    buffer_atomic_or v250, v22, {DB}, 0 offen sc0
    s_mov_b64 exec, -1
    L_I2:
    s_cmp_lg_u32 s{sXcc}, {CX}
    s_cbranch_scc1 L_NOSPEC
    s_mov_b32 s{sSpec}, 1
    s_branch L_CHAIN
    L_CLOST:
    s_cmp_lg_u32 s{Wk.sW}, 0
    s_cbranch_scc1 L_ROLE
    s_mov_b32 s{sA}, s{sTent}
    s_mov_b32 s{sOff}, {D_MASK}
    """)
    claim(a, "A", sR, sOff)
    a(f"s_cmp_eq_u32 s{sR}, -1\ns_cbranch_scc1 L_WCLAIM")
    declare(a)
    a("s_branch L_ROLE")
    a.label("L_NOSPEC")
    if P.get("pf0"):
        a(f"s_load_dwordx4 s[48:51], s[0:1], {KA['Wq']}\ns_load_dwordx4 s[52:55], s[0:1], {KA['Wv']}\ns_mov_b32 s42, 0x400000\ns_mov_b32 s43, 0x20000")
        a(f"v_lshlrev_b32 v13, 2, v8\ns_lshl_b32 s3, s2, 14\ns_add_u32 s44, s2, 1\ns_and_b32 s44, s44, 255\ns_lshl_b32 s44, s44, 14\ns_waitcnt lgkmcnt(0)")
        for p in P["pf0"]:
            a(f"s_mov_b32 s40, s{p}\ns_mov_b32 s41, s{p+1}\nbuffer_load_dword v252, v13, s[40:43], s3 offen\nbuffer_load_dword v252, v13, s[40:43], s44 offen")
    a(f"s_lshl_b32 s{sR}, s{sDie}, 5\ns_add_u32 s{sR}, s{sR}, s{sTent}\ns_mov_b32 s{sSpec}, 1\ns_branch L_WORK")
    a.label("L_WLOST")
    a(f"s_cmp_lg_u32 s{Wk.sW}, 0\ns_cbranch_scc1 L_ROLE2")
    a.label("L_WCLAIM")
    a(f"s_mov_b32 s{sOff}, s{sDie}\ns_mov_b32 s{sTry}, 0\ns_mov_b32 s{sA}, s{sTent}")
    a.label("L_WNEXT")
    a(f"s_cmp_ge_u32 s{sOff}, 7\ns_cselect_b32 s{sB}, 7, 0\ns_sub_u32 s{sOff}, s{sOff}, s{sB}")
    a(f"s_cmp_ge_u32 s{sOff}, 7\ns_cselect_b32 s{sB}, 7, 0\ns_sub_u32 s{sOff}, s{sOff}, s{sB}")
    a(f"s_lshl_b32 s{sOff}, s{sOff}, 2\ns_add_u32 s{sOff}, s{sOff}, {D_WM}")
    claim(a, "W", sR, sOff)
    a(f"s_sub_u32 s{sOff}, s{sOff}, {D_WM}\ns_lshr_b32 s{sOff}, s{sOff}, 2")
    a(f"s_cmp_eq_u32 s{sR}, -1\ns_cbranch_scc0 L_WGOT")
    a(f"s_add_u32 s{sOff}, s{sOff}, 1\ns_add_u32 s{sTry}, s{sTry}, 1\ns_mov_b32 s{sA}, 0\ns_cmp_lt_u32 s{sTry}, 7\ns_cbranch_scc1 L_WNEXT")
    atomic(a, "cmpswap", D_MODE, 2, sB, cmp=0)
    a(f"s_mov_b32 s{sA}, 0\ns_mov_b32 s{sOff}, {D_MASK}")
    claim(a, "B", sR, sOff)
    a("s_branch L_ROLE")
    a.label("L_WGOT")
    a(f"s_lshl_b32 s{sOff}, s{sOff}, 5\ns_add_u32 s{sR}, s{sR}, s{sOff}\ns_add_u32 s{sR}, s{sR}, 32")
    def verdict(a):
        L = a.newlabel("VERD")
        a(f"s_cmp_eq_u32 s{sSpec}, 0\ns_cbranch_scc1 {L}\ns_mov_b32 s{sSpec}, 0")
        a(f"s_waitcnt vmcnt(0)\nv_readfirstlane_b32 s{sB}, v250\ns_nop 3\ns_lshr_b32 s{sB}, s{sB}, s{sTent}\ns_and_b32 s{sB}, s{sB}, 1")
        bcast(a, sB)
        a(f"s_cmp_lg_u32 s{sB}, 0\ns_cbranch_scc1 L_WLOST")
        a.label(L)
    a.label("L_ROLE")
    a.label("L_ROLE2")
    bcast(a, sR)
    a(f"s_cmp_lt_u32 s{sR}, 32\ns_cbranch_scc1 L_CHAIN")
    a(f"s_cmp_eq_u32 s{sR}, -1\ns_cbranch_scc1 L_FIN")
    a(f"s_waitcnt vmcnt(0)\ns_sub_u32 s{sR}, s{sR}, 32")
    a.label("L_WORK")
    if diag: a("s_memrealtime s[70:71]\ns_waitcnt lgkmcnt(0)\ns_mov_b32 s100, s70\ns_add_u32 s101, s16, 32")
    if diag: a("s_mov_b32 s64, 0\ns_mov_b32 s66, 0\ns_mov_b32 s68, 0\ns_mov_b32 s72, 0")
    Wk.gemm1(a, wait_init, verdict, sInit, diag)
    if diag: a("s_memtime s[78:79]")
    if P.get("marks"):
        a(f"s_cmp_lg_u32 s{Wk.sW}, 0\ns_cbranch_scc1 L_MK2\ns_and_b32 s3, s{sR}, 7\ns_cmp_lg_u32 s3, 0\ns_cbranch_scc1 L_MK2")
        mark(a, 8)
        a.label("L_MK2")
    if diag: a("s_memrealtime s[92:93]")
    wait_init(a)
    a(f"s_cmp_ge_u32 s{sR}, 32\ns_cbranch_scc1 L_G2")
    Wk.attention(a)
    a("s_branch L_FIN")
    a.label("L_G2")
    a(f"s_sub_u32 s{sR}, s{sR}, 32")
    Wk.gemm2(a, diag)
    if P.get("marks"):
        a(f"s_waitcnt vmcnt(0)\ns_cmp_lg_u32 s{Wk.sW}, 0\ns_cbranch_scc1 L_FIN")
        mark(a, 9)
    a("s_branch L_FIN")
    a.label("L_CHAIN")
    if diag: a("s_memrealtime s[70:71]\ns_waitcnt lgkmcnt(0)\ns_mov_b32 s100, s70\ns_mov_b32 s101, s16")
    def first_chunk(a):
        L = a.newlabel("CV")
        a(f"s_cmp_eq_u32 s{sSpec}, 0\ns_cbranch_scc1 {L}\ns_cmp_lg_u32 s{Wk.sW}, 0\ns_cbranch_scc1 {L}")
        a(f"v_readfirstlane_b32 s{sB}, v250\ns_lshl_b32 s3, 1, s{sTent}\ns_nop 2\ns_and_b32 s{sLost}, s{sB}, s3\ns_or_b32 s{sB}, s{sB}, s3")
        a(f"s_cmp_lg_u32 s{sLost}, 0\ns_cbranch_scc1 {L}")
        declare(a)
        a.label(L)
    def staged(a):
        L = a.newlabel("CV")
        a(f"s_cmp_eq_u32 s{sSpec}, 0\ns_cbranch_scc1 {L}\ns_mov_b32 s{sSpec}, 0")
        bcast(a, sLost)
        a(f"s_cmp_lg_u32 s{sLost}, 0\ns_cbranch_scc1 L_CLOST")
        a.label(L)
    sChf, sG1 = 88, 89
    def g1addr(a, lane):
        a(f"v_and_b32 v11, 3, {lane}\nv_bfe_u32 v10, {lane}, 2, 1\nv_lshlrev_b32 v10, 13, v10\nv_lshl_add_u32 v10, v11, 7, v10")
    def set_ready(a, v):
        for perm in ("quad_perm:[1,0,3,2]", "quad_perm:[2,3,0,1]", "row_half_mirror"):
            a(f"s_nop 1\nv_min_u32_dpp v{v}, v{v}, v{v} {perm} row_mask:0xf bank_mask:0xf")
        a(f"s_nop 0\nv_readfirstlane_b32 s{sReady}, v{v}\ns_nop 3\ns_lshl_b32 s{sReady}, s{sReady}, 2")
    def peek(a):
        a(f"s_lshl_b32 s{sChf}, s{C.sH}, 7\ns_add_u32 s{sChf}, s{sChf}, {CHF}")
        a(f"s_lshr_b32 s{sG1}, s{C.sH}, 1\ns_lshl_b32 s{sG1}, s{sG1}, 9\ns_add_u32 s{sG1}, s{sG1}, {G1F}")
        g1addr(a, "v0")
        a(f"v_mov_b32 v24, 0\nbuffer_load_dwordx2 v[26:27], v24, {DB}, 0 offen sc1\nbuffer_load_dword v25, v10, {WS}, s{sG1} offen sc1")
    C.prologue_a(a, P, True)
    C.prologue_b(a, P, first_chunk, staged, peek)
    a(f"s_waitcnt vmcnt(0)\nv_readfirstlane_b32 s{sMode}, v26\nv_readfirstlane_b32 s3, v27")
    set_ready(a, 25)
    a(f"s_cmp_ge_u32 s3, {2 * NINIT}\ns_cselect_b32 s{sInit}, 1, s{sInit}\ns_cselect_b32 s{sReady}, s{sReady}, 0")
    wait_init(a, 10)
    if P.get("hold"):
        a(f"s_cmp_lg_u32 s{Wk.sW}, 0\ns_cbranch_scc1 L_STG\ns_add_u32 s3, s{sChf}, 64")
        Wk.flag_store(a, "s3", 1, 10)
        a.label("L_STG")
    a(f"s_cmp_lg_u32 s{sMode}, 0\ns_cbranch_scc1 L_MODEOK\nv_mov_b32 v10, {D_MODE}")
    Wk.poll_ge(a, f"buffer_load_dword v11, v10, {DB}, 0 offen sc1", [11], 1, "MODE")
    a(f"v_readfirstlane_b32 s{sMode}, v11\ns_nop 3")
    a.label("L_MODEOK")
    if P.get("marks"):
        a(f"s_cmp_lg_u32 s{Wk.sW}, 1\ns_cbranch_scc1 L_MK1")
        mark(a, 5); mark(a, 6, True)
        a.label("L_MK1")
    if diag:
        for k in range(20, 30): a(f"s_mov_b32 s{C.sTS+k}, 0")
        a("s_memrealtime s[92:93]\ns_memtime s[96:97]")
    stubs = []
    def ready(a, w, tag, first):
        if not first and w != 2: return
        L = a.newlabel("RDY")
        if first: a(f"s_mov_b32 s{C.sStep}, 0")
        a(f"s_add_u32 s{C.sT0}, s{C.sStep}, {1 if first else 3}\ns_min_u32 s{C.sT0}, s{C.sT0}, 63\ns_cmp_ge_u32 s{C.sT0}, s{sReady}\ns_cbranch_scc1 {L}_S")
        a.label(L)
        stubs.append((L, first))
    def flag(a):
        if P.get("noflag"): return
        if P.get("marks"):
            L = a.newlabel("MK")
            a(f"s_and_b32 s{C.sT0}, s{C.sStep}, 15\ns_cmp_lg_u32 s{C.sT0}, 1\ns_cbranch_scc1 {L}\ns_cmp_lg_u32 s{C.sH}, 5\ns_cbranch_scc1 {L}")
            a(f"s_memrealtime s[98:99]\ns_lshr_b32 s{C.sT0}, s{C.sStep}, 4\ns_lshl_b32 s{C.sT0}, s{C.sT0}, 2\ns_add_u32 s{C.sT0}, s{C.sT0}, 40\ns_waitcnt lgkmcnt(0)")
            a(f"s_mov_b64 exec, 1\nv_mov_b32 v10, s98\nv_mov_b32 v11, s{C.sT0}\nbuffer_store_dword v10, v11, {DB}, 0 offen\ns_mov_b64 exec, -1")
            a.label(L)
        a(f"s_sub_u32 s{C.sT0}, s{C.sStep}, 1\ns_max_i32 s{C.sT0}, s{C.sT0}, 0")
        Wk.flag_store(a, f"s{sChf}", f"s{C.sT0}", 10)
    def done(a, w):
        a("s_waitcnt vmcnt(0)\ns_barrier")
        if w == 0: Wk.flag_store(a, f"s{sChf}", 64, 10)
        if w == 1: mark(a, 7)
        a.vmq = []
        a("s_branch L_FIN")
        for L, first in stubs:
            a.label(L + "_S")
            a(f"s_add_u32 s{C.sT0}, s{C.sStep}, 1\ns_min_u32 s{C.sT0}, s{C.sT0}, 63\ns_lshr_b32 s{C.sT0}, s{C.sT0}, 2\ns_add_u32 s{C.sT0}, s{C.sT0}, 1")
            a(f"v_lshrrev_b32 v10, 3, v{C.vL8}")
            g1addr(a, "v10")
            Wk.poll_ge(a, f"buffer_load_dword v11, v10, {WS}, s{sG1} offen sc1", [11], f"s{C.sT0}", "KV", sleep=0)
            set_ready(a, 11)
            a(f"s_branch {L}")
        stubs.clear()
    P = dict(P, hooks=dict(ready=ready, flag=flag, done=done))
    a(f"s_cmp_eq_u32 s{sMode}, 1\ns_cbranch_scc0 L_SLOW")
    for st in ("", "sc1"):
        if st: a.label("L_SLOW")
        t = "s" if st else "f"
        for w in range(1, 4): a(f"s_cmp_eq_u32 s{C.sW}, {w}\ns_cbranch_scc1 CH_W{w}{t}")
        for w in range(4):
            a.label(f"CH_W{w}{t}")
            C.loop(a, w, st, P, diag)
    a.label("L_FIN")
    if diag:
        a("s_memrealtime s[94:95]\ns_memtime s[98:99]\ns_waitcnt lgkmcnt(0)")
        a(f"s_lshl_b32 s3, s2, 2\ns_add_u32 s3, s3, s{Wk.sW}\ns_lshl_b32 s3, s3, 7\ns_add_u32 s3, s3, {DBG}")
        vals = [C.sTS + 20 + k for k in range(10)] + [90, 92, 94, 96, 98, sR, sXcc, Wk.sDead, 100, 101, 72, 74, 76, 78]
        for i, sg in enumerate(vals):
            a(f"v_mov_b32 v20, s{sg}\nv_mov_b32 v21, {4*i}\nbuffer_store_dword v20, v21, {WS}, s3 offen")
    a("s_waitcnt vmcnt(0)")
    a.label("L_END")
    return a.text()

def wrap(body):
    ref = open(f"cdna_kernels/{NAME}.s.ref").read().split("\n")
    head = [l for l in ref if l.startswith(";") and "@launch" not in l]
    return "\n".join(head) + f"""
; @launch grid=(256,1,1) block=(256,1,1) lds=163840
.amdgcn_target "amdgcn-amd-amdhsa--gfx950"
.text
.globl {NAME}_kernel
.p2align 8
.type {NAME}_kernel,@function
{NAME}_kernel:
{body}s_endpgm
.section .rodata,"a"
.p2align 6
.amdhsa_kernel {NAME}_kernel
  .amdhsa_next_free_vgpr 512
  .amdhsa_next_free_sgpr 102
  .amdhsa_accum_offset 256
  .amdhsa_group_segment_fixed_size 0
  .amdhsa_kernarg_size 120
  .amdhsa_user_sgpr_count 2
  .amdhsa_user_sgpr_kernarg_segment_ptr 1
  .amdhsa_system_sgpr_workgroup_id_x 1
.end_amdhsa_kernel
"""
if __name__ == "__main__":
    import ast
    P = dict(CH)
    if len(sys.argv) > 2: P.update(ast.literal_eval(sys.argv[2]))
    t = gen(P)
    hz = check(t)
    for h in hz[:12]: print(h)
    out = sys.argv[1] if len(sys.argv) > 1 else f"cdna_kernels/{NAME}.s"
    open(out, "w").write(wrap(t))
    print("lines", len(t.split("\n")), "hazards", len(hz))
```

```python
import sys
from asm import *
from layout import *
import chain as C
import workers as Wk
NAME = "parallel_sum__memory_aug_recurrent_mem_tr__dense_activation_squared_relu__prompt"
CH = dict(pre_bar=4, v_0=0, v_pre=3, o_pre=2, dlyA=(16, 40), dlyB=16, w1c=12, pst0=1, pbar=1, nrA=3, bound=1 << 15, depA=(2, 2), depB=2, gapA=24, gapB=16, x0=0, xw_only=1, jbar=1, jobs='S', j0=4, jstr=9, jw=2, a_burst=2, r_pre=2, kx_in=5, nt='')
sDB = 4
sInit, sReady, sMode, sXcc, sTent = 84, 85, 86, 87, 83
sCounted, sLost = 29, 79
sA, sB, sC_, sD = Wk.sA, Wk.sB, Wk.sC_, Wk.sD
WS = Wk.WS
DB = f"s[{sDB}:{sDB+3}]"
ROLE_LDS = 163840 - 16
MODE_BOUND = 2000

def wait_init(a, v=2):
    L = a.newlabel("INIT")
    a(f"s_cmp_lg_u32 s{sInit}, 0\ns_cbranch_scc1 {L}")
    a(f"v_mov_b32 v{v}, {D_INIT}")
    Wk.poll_ge(a, f"buffer_load_dword v{v+1}, v{v}, {DB}, 0 offen sc1", [v + 1], 2 * NINIT, "INIT", sleep=4)
    a(f"s_mov_b32 s{sInit}, 1")
    a.label(L)

def atomic(a, op, off, val, dst, cmp=None):
    a(f"s_mov_b64 exec, 1\nv_mov_b32 v20, {val}\nv_mov_b32 v22, {off}")
    if cmp is not None:
        a(f"v_mov_b32 v21, {cmp}\nbuffer_atomic_cmpswap v[20:21], v22, {DB}, 0 offen sc0")
    else:
        a(f"buffer_atomic_{op} v20, v22, {DB}, 0 offen sc0")
    a(f"s_waitcnt vmcnt(0)\nv_readfirstlane_b32 s{dst}, v20\ns_mov_b64 exec, -1\ns_nop 3")

def claim(a, name, sRes, sOff):
    a.label(f"CLAIM_{name}")
    a(f"s_lshl_b32 s{sC_}, 1, s{sA}")
    atomic(a, "or", f"s{sOff}", f"s{sC_}", sB)
    a.label(f"CLAIM_{name}_R")
    a(f"s_and_b32 s{sD}, s{sB}, s{sC_}\ns_or_b32 s{sB}, s{sB}, s{sC_}\ns_mov_b32 s{sRes}, s{sA}")
    a(f"s_cmp_eq_u32 s{sD}, 0\ns_cbranch_scc1 CLAIM_{name}_E")
    a(f"s_mov_b32 s{sRes}, -1\ns_cmp_eq_u32 s{sB}, -1\ns_cbranch_scc1 CLAIM_{name}_E")
    a(f"s_ff0_i32_b32 s{sA}, s{sB}\ns_branch CLAIM_{name}")
    a.label(f"CLAIM_{name}_E")

def bcast(a, s):
    L = a.newlabel("BC")
    a(f"v_mov_b32 v22, {ROLE_LDS}")
    a(f"s_cmp_lg_u32 s{Wk.sW}, 0\ns_cbranch_scc1 {L}\nv_mov_b32 v20, s{s}\nds_write_b32 v22, v20\ns_waitcnt lgkmcnt(0)")
    a.label(L)
    a(f"s_barrier\nds_read_b32 v20, v22\ns_waitcnt lgkmcnt(0)\nv_readfirstlane_b32 s{s}, v20\ns_barrier")

def gen(P=CH, diag=False, force_slow=False):
    a = Asm()
    def mark(a, word, neg=False):
        if not P.get("marks"): return
        a(f"s_memrealtime s[98:99]\ns_waitcnt lgkmcnt(0)")
        if neg: a("s_not_b32 s98, s98")
        a(f"s_mov_b64 exec, 1\nv_mov_b32 v10, s98\nv_mov_b32 v11, {4*word}\nbuffer_atomic_umax v10, v11, {DB}, 0 offen\ns_mov_b64 exec, -1")
    Wk.SLEEP[0] = P.get('sleep', 2); Wk.PREFETCH[0] = P.get('pf', ()); Wk.HOLD[0] = P.get('hold', 0); Wk.OUTF[0] = P.get('outf', 'sc1')
    sR = Wk.sRole
    a(f"""
    s_cmp_ge_u32 s2, 256
    s_cbranch_scc1 L_END
    s_load_dwordx2 s[{Wk.sWS}:{Wk.sWS+1}], s[0:1], {KA['ws']}
    s_load_dwordx2 s[{sDB}:{sDB+1}], s[0:1], {KA['dbg']}
    s_getreg_b32 s{sXcc}, hwreg(HW_REG_XCC_ID, 0, 4)
    s_mov_b32 s{Wk.sWS+2}, {WS_BYTES}
    s_mov_b32 s{Wk.sWS+3}, 0x20000
    s_mov_b32 s{sDB+2}, 256
    s_mov_b32 s{sDB+3}, 0x20000
    s_mov_b32 s{Wk.sDead}, 0
    s_mov_b32 s{sInit}, 0
    s_mov_b32 s82, 0
    s_mov_b32 s{sLost}, 0
    v_mov_b32 v250, 0
    v_lshrrev_b32 v1, 6, v0
    v_lshlrev_b32 v8, 4, v0
    v_readfirstlane_b32 s{Wk.sW}, v1
    v_and_b32 v0, 63, v0
    v_mov_b32 v12, -1
    v_mov_b32 v13, -1
    v_mov_b32 v14, -1
    v_mov_b32 v15, -1
    """)
    if diag: a("s_memrealtime s[90:91]")
    CX = 9 if force_slow else P.get('cx', 3)
    sOff, sTry, sDie, sWord, sSpec = 18, 19, 80, 81, 82
    def declare(a):
        L = a.newlabel("DECL")
        a(f"s_cmp_lg_u32 s{sB}, -1\ns_cbranch_scc1 {L}")
        a(f"s_mov_b64 exec, 1\nv_mov_b32 v20, 1\nv_mov_b32 v21, 0\nv_mov_b32 v22, {D_MODE}\nbuffer_atomic_cmpswap v[20:21], v22, {DB}, 0 offen\ns_mov_b64 exec, -1")
        a.label(L)
    a(f"""
    s_bfe_u32 s{sR}, s2, 0x50003
    s_waitcnt lgkmcnt(0)
    """)
    if P.get("marks"):
        a(f"s_cmp_lg_u32 s{Wk.sW}, 0\ns_cbranch_scc1 L_MK0\ns_and_b32 s3, s2, 15\ns_cmp_lg_u32 s3, 0\ns_cbranch_scc1 L_MK0")
        mark(a, 4, True)
        a.label("L_MK0")
    a(f"""
    s_mov_b32 s{sTent}, s{sR}
    s_add_u32 s{sDie}, s{sXcc}, {(15 - CX) % 8}
    s_and_b32 s{sDie}, s{sDie}, 7
    s_min_u32 s{sDie}, s{sDie}, 6
    s_lshl_b32 s{sWord}, s{sDie}, 2
    s_add_u32 s{sWord}, s{sWord}, {D_WM}
    s_cmp_eq_u32 s{sXcc}, {CX}
    s_cselect_b32 s{sWord}, {D_MASK}, s{sWord}
    s_and_b32 s3, s2, 0xe8
    s_cmp_lg_u32 s3, 0
    s_cbranch_scc1 L_I3
    s_xor_b32 s3, s{Wk.sW}, s{sTent}
    s_bitcmp1_b32 s3, 0
    s_cbranch_scc0 L_I3
    """)
    a(f"s_and_b32 s{sA}, s2, 7\ns_lshr_b32 s3, s2, 1\ns_and_b32 s3, s3, 8\ns_add_u32 s{sA}, s{sA}, s3")
    a(f"s_lshr_b32 s3, s{Wk.sW}, 1\ns_lshl_b32 s{sA}, s{sA}, 1\ns_add_u32 s{sA}, s{sA}, s3\nv_lshlrev_b32 v9, 4, v0")
    a(f"s_lshl_b32 s3, s{sA}, 13\ns_add_u32 s3, s3, {PART}")
    for k in range(8):
        a(f"buffer_store_dwordx4 v[12:15], v9, {WS}, s3 offen offset:{(k&3)*1024} sc1")
        if k == 3: a("s_add_u32 s3, s3, 4096")
    a(f"""
    s_lshl_b32 s3, s{sA}, 10
    s_add_u32 s3, s3, {MBUF}
    buffer_store_dwordx4 v[12:15], v9, {WS}, s3 offen sc1
    s_mul_i32 s3, s{sA}, 2560
    s_add_u32 s3, s3, {FLG}
    v_mov_b32 v16, 0
    v_mov_b32 v17, 0
    v_mov_b32 v18, 0
    v_mov_b32 v19, 0
    buffer_store_dwordx4 v[16:19], v9, {WS}, s3 offen sc1
    buffer_store_dwordx4 v[16:19], v9, {WS}, s3 offen offset:1024 sc1
    s_mov_b64 exec, 0xffffffff
    buffer_store_dwordx4 v[16:19], v9, {WS}, s3 offen offset:2048 sc1
    s_mov_b64 exec, -1
    s_waitcnt vmcnt(0)
    s_mov_b64 exec, 1
    v_mov_b32 v20, 1
    v_mov_b32 v22, {D_INIT}
    buffer_atomic_add v20, v22, {DB}, 0 offen
    s_mov_b64 exec, -1
    L_I3:
    s_cmp_lg_u32 s{Wk.sW}, 0
    s_cbranch_scc1 L_I2
    s_mov_b64 exec, 1
    s_lshl_b32 s3, 1, s{sTent}
    v_mov_b32 v250, s3
    v_mov_b32 v22, s{sWord}
    buffer_atomic_or v250, v22, {DB}, 0 offen sc0
    s_mov_b64 exec, -1
    L_I2:
    s_cmp_lg_u32 s{sXcc}, {CX}
    s_cbranch_scc1 L_NOSPEC
    s_mov_b32 s{sSpec}, 1
    s_branch L_CHAIN
    L_CLOST:
    s_cmp_lg_u32 s{Wk.sW}, 0
    s_cbranch_scc1 L_ROLE
    s_mov_b32 s{sA}, s{sTent}
    s_mov_b32 s{sOff}, {D_MASK}
    """)
    claim(a, "A", sR, sOff)
    a(f"s_cmp_eq_u32 s{sR}, -1\ns_cbranch_scc1 L_WCLAIM")
    declare(a)
    a("s_branch L_ROLE")
    a.label("L_NOSPEC")
    if P.get("pf0"):
        a(f"s_xor_b32 s3, s{Wk.sW}, s{sTent}\ns_bitcmp1_b32 s3, 0\ns_cbranch_scc0 L_PF")
        a(f"s_load_dwordx4 s[48:51], s[0:1], {KA['Wq']}\ns_load_dwordx4 s[52:55], s[0:1], {KA['Wv']}\ns_mov_b32 s42, 0x400000\ns_mov_b32 s43, 0x20000")
        a(f"v_lshlrev_b32 v13, 7, v0\ns_lshr_b32 s3, s{Wk.sW}, 1\ns_add_u32 s3, s3, s2\ns_and_b32 s3, s3, 255\ns_lshl_b32 s3, s3, 14\ns_add_u32 s44, s3, 8192\ns_waitcnt lgkmcnt(0)")
        for p in P["pf0"]:
            a(f"s_mov_b32 s40, s{p}\ns_mov_b32 s41, s{p+1}\nbuffer_load_dword v252, v13, s[40:43], s3 offen\nbuffer_load_dword v252, v13, s[40:43], s44 offen")
        a.label("L_PF")
    a(f"s_lshl_b32 s{sR}, s{sDie}, 5\ns_add_u32 s{sR}, s{sR}, s{sTent}\ns_mov_b32 s{sSpec}, 1\ns_branch L_WORK")
    a.label("L_WLOST")
    a(f"s_cmp_lg_u32 s{Wk.sW}, 0\ns_cbranch_scc1 L_ROLE2")
    a.label("L_WCLAIM")
    a(f"s_mov_b32 s{sOff}, s{sDie}\ns_mov_b32 s{sTry}, 0\ns_mov_b32 s{sA}, s{sTent}")
    a.label("L_WNEXT")
    a(f"s_cmp_ge_u32 s{sOff}, 7\ns_cselect_b32 s{sB}, 7, 0\ns_sub_u32 s{sOff}, s{sOff}, s{sB}")
    a(f"s_cmp_ge_u32 s{sOff}, 7\ns_cselect_b32 s{sB}, 7, 0\ns_sub_u32 s{sOff}, s{sOff}, s{sB}")
    a(f"s_lshl_b32 s{sOff}, s{sOff}, 2\ns_add_u32 s{sOff}, s{sOff}, {D_WM}")
    claim(a, "W", sR, sOff)
    a(f"s_sub_u32 s{sOff}, s{sOff}, {D_WM}\ns_lshr_b32 s{sOff}, s{sOff}, 2")
    a(f"s_cmp_eq_u32 s{sR}, -1\ns_cbranch_scc0 L_WGOT")
    a(f"s_add_u32 s{sOff}, s{sOff}, 1\ns_add_u32 s{sTry}, s{sTry}, 1\ns_mov_b32 s{sA}, 0\ns_cmp_lt_u32 s{sTry}, 7\ns_cbranch_scc1 L_WNEXT")
    atomic(a, "cmpswap", D_MODE, 2, sB, cmp=0)
    a(f"s_mov_b32 s{sA}, 0\ns_mov_b32 s{sOff}, {D_MASK}")
    claim(a, "B", sR, sOff)
    a("s_branch L_ROLE")
    a.label("L_WGOT")
    a(f"s_lshl_b32 s{sOff}, s{sOff}, 5\ns_add_u32 s{sR}, s{sR}, s{sOff}\ns_add_u32 s{sR}, s{sR}, 32")
    def verdict(a):
        L = a.newlabel("VERD")
        a(f"s_cmp_eq_u32 s{sSpec}, 0\ns_cbranch_scc1 {L}\ns_mov_b32 s{sSpec}, 0")
        a(f"s_waitcnt vmcnt(0)\nv_readfirstlane_b32 s{sB}, v250\ns_nop 3\ns_lshr_b32 s{sB}, s{sB}, s{sTent}\ns_and_b32 s{sB}, s{sB}, 1")
        bcast(a, sB)
        a(f"s_cmp_lg_u32 s{sB}, 0\ns_cbranch_scc1 L_WLOST")
        a.label(L)
    a.label("L_ROLE")
    a.label("L_ROLE2")
    bcast(a, sR)
    a(f"s_cmp_lt_u32 s{sR}, 32\ns_cbranch_scc1 L_CHAIN")
    a(f"s_cmp_eq_u32 s{sR}, -1\ns_cbranch_scc1 L_FIN")
    a(f"s_waitcnt vmcnt(0)\ns_sub_u32 s{sR}, s{sR}, 32")
    a.label("L_WORK")
    if diag: a("s_memrealtime s[70:71]\ns_waitcnt lgkmcnt(0)\ns_mov_b32 s100, s70\ns_add_u32 s101, s16, 32")
    if diag: a("s_mov_b32 s64, 0\ns_mov_b32 s66, 0\ns_mov_b32 s68, 0\ns_mov_b32 s72, 0")
    Wk.gemm1(a, wait_init, verdict, sInit, diag)
    if diag: a("s_memtime s[78:79]")
    if P.get("marks"):
        a(f"s_cmp_lg_u32 s{Wk.sW}, 0\ns_cbranch_scc1 L_MK2\ns_and_b32 s3, s{sR}, 7\ns_cmp_lg_u32 s3, 0\ns_cbranch_scc1 L_MK2")
        mark(a, 8)
        a.label("L_MK2")
    if diag: a("s_memrealtime s[92:93]")
    wait_init(a)
    a(f"s_cmp_ge_u32 s{sR}, 32\ns_cbranch_scc1 L_G2")
    Wk.attention(a)
    a("s_branch L_FIN")
    a.label("L_G2")
    a(f"s_sub_u32 s{sR}, s{sR}, 32")
    Wk.gemm2(a, diag)
    if P.get("marks"):
        a(f"s_waitcnt vmcnt(0)\ns_cmp_lg_u32 s{Wk.sW}, 0\ns_cbranch_scc1 L_FIN")
        mark(a, 9)
    a("s_branch L_FIN")
    a.label("L_CHAIN")
    if diag: a("s_memrealtime s[70:71]\ns_waitcnt lgkmcnt(0)\ns_mov_b32 s100, s70\ns_mov_b32 s101, s16")
    def first_chunk(a):
        L = a.newlabel("CV")
        a(f"s_cmp_eq_u32 s{sSpec}, 0\ns_cbranch_scc1 {L}\ns_cmp_lg_u32 s{Wk.sW}, 0\ns_cbranch_scc1 {L}")
        a(f"v_readfirstlane_b32 s{sB}, v250\ns_lshl_b32 s3, 1, s{sTent}\ns_nop 2\ns_and_b32 s{sLost}, s{sB}, s3\ns_or_b32 s{sB}, s{sB}, s3")
        a(f"s_cmp_lg_u32 s{sLost}, 0\ns_cbranch_scc1 {L}")
        declare(a)
        a.label(L)
    def staged(a):
        L = a.newlabel("CV")
        a(f"s_cmp_eq_u32 s{sSpec}, 0\ns_cbranch_scc1 {L}\ns_mov_b32 s{sSpec}, 0")
        bcast(a, sLost)
        a(f"s_cmp_lg_u32 s{sLost}, 0\ns_cbranch_scc1 L_CLOST")
        a.label(L)
    sChf, sG1 = 88, 89
    def g1addr(a, lane):
        a(f"v_and_b32 v11, 3, {lane}\nv_bfe_u32 v10, {lane}, 2, 1\nv_lshlrev_b32 v10, 13, v10\nv_lshl_add_u32 v10, v11, 7, v10")
    def set_ready(a, v):
        for perm in ("quad_perm:[1,0,3,2]", "quad_perm:[2,3,0,1]", "row_half_mirror"):
            a(f"s_nop 1\nv_min_u32_dpp v{v}, v{v}, v{v} {perm} row_mask:0xf bank_mask:0xf")
        a(f"s_nop 0\nv_readfirstlane_b32 s{sReady}, v{v}\ns_nop 3\ns_lshl_b32 s{sReady}, s{sReady}, 2")
    def peek(a):
        a(f"s_lshl_b32 s{sChf}, s{C.sH}, 7\ns_add_u32 s{sChf}, s{sChf}, {CHF}")
        a(f"s_lshr_b32 s{sG1}, s{C.sH}, 1\ns_lshl_b32 s{sG1}, s{sG1}, 9\ns_add_u32 s{sG1}, s{sG1}, {G1F}")
        g1addr(a, "v0")
        a(f"v_mov_b32 v24, 0\nbuffer_load_dwordx2 v[26:27], v24, {DB}, 0 offen sc1\nbuffer_load_dword v25, v10, {WS}, s{sG1} offen sc1")
    C.prologue_a(a, P, True)
    C.prologue_b(a, P, first_chunk, staged, peek)
    a(f"s_waitcnt vmcnt(0)\nv_readfirstlane_b32 s{sMode}, v26\nv_readfirstlane_b32 s3, v27")
    set_ready(a, 25)
    a(f"s_cmp_ge_u32 s3, {2 * NINIT}\ns_cselect_b32 s{sInit}, 1, s{sInit}\ns_cselect_b32 s{sReady}, s{sReady}, 0")
    wait_init(a, 10)
    if P.get("hold"):
        a(f"s_cmp_lg_u32 s{Wk.sW}, 0\ns_cbranch_scc1 L_STG\ns_add_u32 s3, s{sChf}, 64")
        Wk.flag_store(a, "s3", 1, 10)
        a.label("L_STG")
    a(f"s_cmp_lg_u32 s{sMode}, 0\ns_cbranch_scc1 L_MODEOK\nv_mov_b32 v10, {D_MODE}")
    Wk.poll_ge(a, f"buffer_load_dword v11, v10, {DB}, 0 offen sc1", [11], 1, "MODE")
    a(f"v_readfirstlane_b32 s{sMode}, v11\ns_nop 3")
    a.label("L_MODEOK")
    if P.get("marks"):
        a(f"s_cmp_lg_u32 s{Wk.sW}, 1\ns_cbranch_scc1 L_MK1")
        mark(a, 5); mark(a, 6, True)
        a.label("L_MK1")
    if diag:
        for k in range(20, 30): a(f"s_mov_b32 s{C.sTS+k}, 0")
        a("s_memrealtime s[92:93]\ns_memtime s[96:97]")
    stubs = []
    def ready(a, w, tag, first):
        if not first and w != 2: return
        L = a.newlabel("RDY")
        if first: a(f"s_mov_b32 s{C.sStep}, 0")
        a(f"s_add_u32 s{C.sT0}, s{C.sStep}, {1 if first else 3}\ns_min_u32 s{C.sT0}, s{C.sT0}, 63\ns_cmp_ge_u32 s{C.sT0}, s{sReady}\ns_cbranch_scc1 {L}_S")
        a.label(L)
        stubs.append((L, first))
    def flag(a):
        if P.get("noflag"): return
        if P.get("marks"):
            L = a.newlabel("MK")
            a(f"s_and_b32 s{C.sT0}, s{C.sStep}, 15\ns_cmp_lg_u32 s{C.sT0}, 1\ns_cbranch_scc1 {L}\ns_cmp_lg_u32 s{C.sH}, 5\ns_cbranch_scc1 {L}")
            a(f"s_memrealtime s[98:99]\ns_lshr_b32 s{C.sT0}, s{C.sStep}, 4\ns_lshl_b32 s{C.sT0}, s{C.sT0}, 2\ns_add_u32 s{C.sT0}, s{C.sT0}, 40\ns_waitcnt lgkmcnt(0)")
            a(f"s_mov_b64 exec, 1\nv_mov_b32 v10, s98\nv_mov_b32 v11, s{C.sT0}\nbuffer_store_dword v10, v11, {DB}, 0 offen\ns_mov_b64 exec, -1")
            a.label(L)
        a(f"s_sub_u32 s{C.sT0}, s{C.sStep}, 1\ns_max_i32 s{C.sT0}, s{C.sT0}, 0")
        Wk.flag_store(a, f"s{sChf}", f"s{C.sT0}", 10)
    def done(a, w):
        a("s_waitcnt vmcnt(0)\ns_barrier")
        if w == 0: Wk.flag_store(a, f"s{sChf}", 64, 10)
        if w == 1: mark(a, 7)
        a.vmq = []
        a("s_branch L_FIN")
        for L, first in stubs:
            a.label(L + "_S")
            a(f"s_add_u32 s{C.sT0}, s{C.sStep}, 1\ns_min_u32 s{C.sT0}, s{C.sT0}, 63\ns_lshr_b32 s{C.sT0}, s{C.sT0}, 2\ns_add_u32 s{C.sT0}, s{C.sT0}, 1")
            a(f"v_lshrrev_b32 v10, 3, v{C.vL8}")
            g1addr(a, "v10")
            Wk.poll_ge(a, f"buffer_load_dword v11, v10, {WS}, s{sG1} offen sc1", [11], f"s{C.sT0}", "KV", sleep=0)
            set_ready(a, 11)
            a(f"s_branch {L}")
        stubs.clear()
    P = dict(P, hooks=dict(ready=ready, flag=flag, done=done))
    a(f"s_cmp_eq_u32 s{sMode}, 1\ns_cbranch_scc0 L_SLOW")
    for st in ("", "sc1"):
        if st: a.label("L_SLOW")
        t = "s" if st else "f"
        for w in range(1, 4): a(f"s_cmp_eq_u32 s{C.sW}, {w}\ns_cbranch_scc1 CH_W{w}{t}")
        for w in range(4):
            a.label(f"CH_W{w}{t}")
            C.loop(a, w, st, P, diag)
    a.label("L_FIN")
    if diag:
        a("s_memrealtime s[94:95]\ns_memtime s[98:99]\ns_waitcnt lgkmcnt(0)")
        a(f"s_lshl_b32 s3, s2, 2\ns_add_u32 s3, s3, s{Wk.sW}\ns_lshl_b32 s3, s3, 7\ns_add_u32 s3, s3, {DBG}")
        vals = [C.sTS + 20 + k for k in range(10)] + [90, 92, 94, 96, 98, sR, sXcc, Wk.sDead, 100, 101, 72, 74, 76, 78]
        for i, sg in enumerate(vals):
            a(f"v_mov_b32 v20, s{sg}\nv_mov_b32 v21, {4*i}\nbuffer_store_dword v20, v21, {WS}, s3 offen")
    a("s_waitcnt vmcnt(0)")
    a.label("L_END")
    return a.text()

def wrap(body):
    ref = open(f"cdna_kernels/{NAME}.s.ref").read().split("\n")
    head = [l for l in ref if l.startswith(";") and "@launch" not in l]
    return "\n".join(head) + f"""
; @launch grid=(256,1,1) block=(256,1,1) lds=163840
.amdgcn_target "amdgcn-amd-amdhsa--gfx950"
.text
.globl {NAME}_kernel
.p2align 8
.type {NAME}_kernel,@function
{NAME}_kernel:
{body}s_endpgm
.section .rodata,"a"
.p2align 6
.amdhsa_kernel {NAME}_kernel
  .amdhsa_next_free_vgpr 512
  .amdhsa_next_free_sgpr 102
  .amdhsa_accum_offset 256
  .amdhsa_group_segment_fixed_size 0
  .amdhsa_kernarg_size 120
  .amdhsa_user_sgpr_count 2
  .amdhsa_user_sgpr_kernarg_segment_ptr 1
  .amdhsa_system_sgpr_workgroup_id_x 1
.end_amdhsa_kernel
"""
if __name__ == "__main__":
    import ast
    P = dict(CH)
    if len(sys.argv) > 2: P.update(ast.literal_eval(sys.argv[2]))
    t = gen(P)
    hz = check(t)
    for h in hz[:12]: print(h)
    out = sys.argv[1] if len(sys.argv) > 1 else f"cdna_kernels/{NAME}.s"
    open(out, "w").write(wrap(t))
    print("lines", len(t.split("\n")), "hazards", len(hz))
```

```python
from asm import *
from layout import *
import math

MISC = 131072
M_OFF = 0
X_OFF = 8192
KX_OFF = 16384
O_OFF = 0
XS = 1088
sWS = 8
sTMP = 12
sH, sW, sStep = 16, 17, 18
sPst, sPld, sTag, sMpub, sMpoll, sMclr = 19, 20, 21, 22, 23, 24
sVx, sKx, sKm, sVm = 25, 26, 27, 28
sC = 30
sT0, sT1, sT2, sT3 = 32, 33, 34, 35
sCnt = 36
sLO8 = 38
sDBG = 40
sTS = 44
vIDX, vKx, vM16, vRing, vPst, vMpub, vXw, vXr, vOr = 1, 2, 3, 4, 5, 6, 7, 8, 9
vL8 = 0
vNEG = 10
vVA0 = 12
RA_OFF = 12544
vVX = 16
vPM = 24
vACC = 28
vA = 44
vRING = 76
vT = 124
vWK = 128
NRING = 6
WQ_SLOT = [2, 3, 1, 0]
def ringreg(i): return vRING + 8 * (i % NRING)
KXREG = [vRING + 8*4, vRING + 8*5, vRING + 0, vRING + 8]
def kx(kt, s): return KXREG[kt*2 + (s >> 1)] + 4 * (s & 1)
vXF = vRING + 16
def wv(t, s): return 8 * (t * 8 + s)
def wo(d, s): return 128 + 8 * (d * 4 + s)
def wk(t, s): return vWK + 8 * (t * 8 + s)

def wq_lds_imm(i):
    t, s = i >> 3, i & 7
    return WQ_SLOT[s >> 1] * 8192 + ((s & 1) * 2 + t) * 2048

def stamp(a, k, diag):
    if diag: a(f"s_memtime s[{sTS+2*k}:{sTS+2*k+1}]")

def prologue(a, P, diag=False):
    a(f"v_lshrrev_b32 v10, 6, v0\nv_and_b32 v0, 63, v0\nv_readfirstlane_b32 s{sW}, v10\ns_nop 3")
    prologue_a(a, P, True); prologue_b(a, P)

def prologue_a(a, P, dma):
    WNT[0] = P.get("wnt", "")
    a(f"""
    s_load_dwordx4 s[48:51], s[0:1], {KA['Wq']}
    s_load_dwordx4 s[52:55], s[0:1], {KA['Wv']}
    s_load_dwordx2 s[56:57], s[0:1], {KA['mem0']}
    """)
    a(f"""
    v_and_b32 v100, 15, v0            ; n
    v_lshrrev_b32 v101, 4, v0         ; g
    v_and_b32 v102, 3, v0             ; c
    v_bfe_u32 v103, v0, 2, 2          ; r''
    """)
    a(f"""
    s_lshl_b32 s{sT2}, s{sH}, 8
    s_lshl_b32 s{sT3}, s{sW}, 6
    s_add_u32 s{sT2}, s{sT2}, s{sT3}
    v_lshrrev_b32 v10, 2, v0
    """)
    for k in range(4):
        a(f"v_xor_b32 v11, {k & 2}, v10\nv_lshlrev_b32 v11, 13, v11\nv_xor_b32 v104, {2*(k&1)}, v102\nv_lshl_add_u32 v11, v104, 4, v11\nv_add_u32 v{vSQ+k}, s{sT2}, v11")
        a(f"v_mov_b32 v{vSRC+k}, v{vSQ+k}\nv_mov_b32 v{vSRC+4+k}, v{vSQ+k}")
    a(f"""
    s_lshl_b32 s{sB0}, s{sW}, 15
    s_lshl_b32 s{sB1}, s{sW}, 13
    s_add_u32 s{sB1}, s{sB1}, {MISC}
    s_mov_b32 s62, 0x400000
    s_mov_b32 s63, 0x20000
    s_getpc_b64 s[{sSub}:{sSub+1}]
    s_add_u32 s{sSub}, s{sSub}, 12
    s_addc_u32 s{sSub+1}, s{sSub+1}, 0
    s_branch CH_SUBE
    """)
    for i in range(8):
        a(f"s_mov_b32 m0, s64\ns_add_u32 s64, s64, 1024\nbuffer_load_dwordx4 v{vSRC+i}, s[60:63], s65 offen {WNT[0]} lds\ns_add_u32 s65, s65, s66")
    a(f"s_setpc_b64 s[{sRet}:{sRet+1}]")
    a.label("CH_SUBE")
    a("s_waitcnt lgkmcnt(0)")
    for c in range(5): w_issue(a, c)
    a(f"""
    v_and_b32 v10, 2, v0
    v_cmp_eq_u32 vcc, 0, v10
    v_mov_b32 v11, 0xeeee
    v_mov_b32 v104, 0x4444
    v_cndmask_b32 v{vIDX}, v11, v104, vcc
    v_lshlrev_b32 v10, 4, v0
    v_add_u32 v{vM16}, {MISC}, v10
    s_lshl_b32 s{sT0}, s{sW}, 15
    v_add_u32 v{vRing}, s{sT0}, v10
    v_and_b32 v11, 0x3d, v0
    v_lshlrev_b32 v11, 4, v11
    v_add_u32 v{vOr}, {MISC+O_OFF}, v11
    v_lshlrev_b32 v10, 14, v101
    v_lshrrev_b32 v11, 3, v100
    v_lshl_add_u32 v10, v11, 13, v10
    v_and_b32 v11, 7, v100
    v_lshl_add_u32 v{vPst}, v11, 4, v10
    v_lshlrev_b32 v10, 4, v102
    v_bfe_u32 v11, v0, 2, 1
    v_lshl_add_u32 v10, v11, 3, v10
    v_lshrrev_b32 v11, 1, v101
    v_lshl_add_u32 v10, v11, 2, v10
    v_and_b32 v11, 1, v101
    v_lshl_add_u32 v{vMpub}, v11, 8, v10
    v_add_u32 v{vKx}, {KX_OFF}, v{vM16}
    v_mul_u32_u24 v10, {XS}, v101
    v_lshl_add_u32 v10, v100, 3, v10
    s_lshl_b32 s{sT0}, s{sW}, 8
    s_add_u32 s{sT0}, s{sT0}, {MISC+X_OFF}
    v_add_u32 v{vXw}, s{sT0}, v10
    v_mul_u32_u24 v10, {XS}, v102
    v_lshrrev_b32 v11, 2, v0
    v_lshl_add_u32 v10, v11, 3, v10
    v_add_u32 v{vXr}, {MISC+X_OFF}, v10
    v_bfe_u32 v10, v100, 1, 2
    v_and_b32 v11, 1, v100
    v_lshlrev_b32 v11, 4, v11
    v_mov_b32 v104, 0x3f80
    v_lshlrev_b32 v104, v11, v104
    """)
    for k in range(4):
        a(f"v_cmp_eq_u32 vcc, {k}, v10\ns_nop 1\nv_cndmask_b32 v{112+k}, 0, v104, vcc")
    a(f"s_mov_b32 s{sLO8}, 0x00ff00ff\ns_mov_b32 s{sLO8+1}, 0x00ff00ff\ns_mov_b32 s{sB1M}, 0xcccccccc\ns_mov_b32 s{sB1M+1}, 0xcccccccc\ns_mov_b32 s{sONE}, 0x3f803f80")
    c = (128 ** -0.5) * math.log2(math.e)
    import struct
    cb = struct.unpack("<I", struct.pack("<f", c))[0]
    a(f"s_mov_b32 s{sC}, {cb:#x}\ns_mov_b32 s{sC+1}, {cb:#x}")
    a(f"""
    s_lshl_b32 s{sT2}, s{sH}, 17
    s_lshl_b32 s{sT3}, s{sW}, 8
    s_add_u32 s{sT2}, s{sT2}, s{sT3}
    v_and_b32 v105, 1, v101            ; g&1
    v_lshrrev_b32 v106, 1, v101        ; g>>1
    v_and_b32 v107, 1, v103            ; r&1
    v_lshrrev_b32 v108, 1, v103        ; r>>1
    v_lshlrev_b32 v10, 5, v105
    v_lshl_add_u32 v10, v106, 2, v10
    v_lshl_add_u32 v10, v108, 4, v10
    v_add_u32 v109, v10, v107
    v_lshlrev_b32 v10, 4, v105
    v_lshl_add_u32 v10, v106, 2, v10
    v_add_u32 v110, v10, v107
    """)
    for k in range(2):
        a(f"v_lshl_add_u32 v10, v105, 2, 0\nv_xor_b32 v10, v10, v100\nv_xor_b32 v10, {8*k}, v10\nv_lshlrev_b32 v11, 10, v101\nv_lshl_add_u32 v10, v10, 4, v11\nv_add_u32 v{vSO+k}, s{sT2}, v10")
    for mb in range(2):
        for t in range(2):
            a(f"v_add_u32 v10, {2*mb}, v109\nv_lshlrev_b32 v11, 1, v105\nv_xor_b32 v10, v10, v11\nv_lshlrev_b32 v10, 6, v10")
            a(f"v_xor_b32 v11, {t}, v108\nv_lshl_add_u32 v10, v11, 5, v10\nv_lshl_add_u32 v10, v102, 3, v10")
            a(f"v_add_u32 v{vB1+mb*2+t}, s{sB0}, v10\nv_add_u32 v{vB1+4+mb*2+t}, s{sB1}, v10")
    for d in range(4):
        a(f"v_lshl_add_u32 v11, v105, 1, v107\nv_xor_b32 v11, {d}, v11\nv_lshlrev_b32 v10, 8, v110\nv_lshl_add_u32 v10, v11, 6, v10")
        a(f"v_lshl_add_u32 v10, v108, 5, v10\nv_lshl_add_u32 v10, v102, 3, v10")
        a(f"v_add_u32 v{vB2+d}, s{sB0}, v10\nv_add_u32 v{vB2+4+d}, s{sB1}, v10")
    a(f"""
    s_mov_b32 s12, s56
    s_mov_b32 s13, s57
    s_mov_b32 s14, 8192
    s_mov_b32 s15, 0x20000
    v_lshrrev_b32 v10, 2, v100
    v_lshlrev_b32 v10, 1, v10
    v_and_b32 v11, 1, v0
    v_add_u32 v10, v10, v11            ; row
    v_lshlrev_b32 v10, 10, v10
    v_bfe_u32 v11, v0, 1, 1
    v_lshl_add_u32 v10, v11, 5, v10
    v_lshl_add_u32 v10, v101, 3, v10
    s_lshl_b32 s{sT2}, s{sW}, 8        ; ksteps 2w, 2w+1
    v_add_u32 v10, s{sT2}, v10
    buffer_load_dwordx2 v[16:17], v10, s[12:15], 0 offen
    buffer_load_dwordx2 v[18:19], v10, s[12:15], 0 offen offset:64
    buffer_load_dwordx2 v[12:13], v10, s[12:15], 0 offen offset:128
    buffer_load_dwordx2 v[14:15], v10, s[12:15], 0 offen offset:192
    """)

order = ["k"] * 4 + ["v"] * 4 + ["o"] * 4 + ["q"] * 4
srd = {"q": 60, "k": 64, "v": 68, "o": 72}
WNT = ['']
sB0, sB1 = 76, 77
sSub, sRet = 68, 70
vSRC, vSQ, vSO, vB1, vB2 = 76, 84, 88, 90, 116
def w_issue(a, c):
    m = order[c]; cc = c & 3; slot = c % 5
    if cc == 0:
        src = {"q": 48, "k": 50, "v": 52, "o": 54}[m]
        a(f"s_mov_b32 s60, s{src}\ns_mov_b32 s61, s{src+1}\ns_mov_b32 s65, 0")
        if c in (0, 8, 12): a(f"s_mov_b32 s66, {4096 if m == 'o' else 131072}")
        if c in (8, 12):
            for k in range(8): a(f"v_mov_b32 v{vSRC+k}, v{vSO + (k >> 2) if m == 'o' else vSQ + (k & 3)}")
    a(f"s_add_u32 s64, s{sB0}, {slot*8192}" if slot < 4 else f"s_mov_b32 s64, s{sB1}")
    a(f"s_swappc_b64 s[{sRet}:{sRet+1}], s[{sSub}:{sSub+1}]")
    a.vmq += [("w", c)] * 8

def prologue_b(a, P, first_chunk=None, staged=None, peek=None):
    issue = lambda c: w_issue(a, c)
    a.vmq = [("w", c) for c in range(5) for _ in range(8)]
    for c in range(16):
        m = order[c]; cc = c & 3; slot = c % 5
        a.wait_vm(("w", c))
        if c == 0 and first_chunk: first_chunk(a)
        so, sb = (slot * 8192, 0) if slot < 4 else (0, 4)
        if m != "o":
            for s_ in range(2):
                for t in range(2):
                    for mm in range(4):
                        imm = so + (64 * s_ + 8 * (mm >> 1)) * 64
                        s = 2 * cc + s_
                        if m == "k": dst = vr(wk(t, s) + 2 * mm, 2)
                        elif m == "v": dst = ar(wv(t, s) + 2 * mm, 2)
                        else: dst = vr(vA + (s_ * 2 + t) * 8 + 2 * mm, 2)
                        a.ds(f"ds_read_b64_tr_b16 {dst}, v{vB1 + sb + (mm & 1) * 2 + t} offset:{imm}")
        else:
            for d in range(4):
                for mm in range(4):
                    imm = so + (8 * (mm >> 1) + 2 * (mm & 1)) * 256
                    a.ds(f"ds_read_b64_tr_b16 {ar(wo(d, cc) + 2*mm, 2)}, v{vB2 + sb + d} offset:{imm}")
        a.wait_ds_all()
        if m == "q":
            for k in range(8):
                a.ds(f"ds_write_b128 v{vRing}, {vr(vA + 4*k, 4)} offset:{WQ_SLOT[cc]*8192 + k*1024}")
            a.wait_ds_all()
        if c + 5 < 16: issue(c + 5)
        if c == P.get('peek', 13) and peek: peek(a)
        if c == P.get("help_at", -1):
            lo, per = P["help"]
            a(f"s_lshl_b32 s{sT0}, s{sH}, 2\ns_add_u32 s{sT0}, s{sT0}, s{sW}\nv_lshlrev_b32 v10, 7, v0")
            for rep in range(P.get("help_rep", 2)):
                if rep: a(f"s_add_u32 s{sT0}, s{sT0}, {128 // P.get('help_rep', 2) + 1}\ns_and_b32 s{sT0}, s{sT0}, 127")
                a(f"s_mul_i32 s{sT1}, s{sT0}, {per*8192}\ns_add_u32 s{sT1}, s{sT1}, {lo*8192}")
                for k in range(per):
                    a(f"buffer_load_dword v11, v10, s[60:63], s{sT1} offen")
                    if k + 1 < per: a(f"s_add_u32 s{sT1}, s{sT1}, 8192")
    a("s_barrier")
    if staged: staged(a)
    a(f"""
    ds_write_b128 v{vM16}, v[112:115] offset:{RA_OFF}
    v_lshlrev_b32 v{vL8}, 3, v0
    s_waitcnt lgkmcnt(0)
    """)

def seg_offsets(a, w, P):
    a(f"""
    s_and_b32 s{sT0}, s{sStep}, 3
    s_lshl_b32 s{sT1}, s{sT0}, 18
    s_lshl_b32 s{sT2}, s{sH}, 7
    s_add_u32 s{sPst}, s{sT1}, s{sT2}
    s_add_u32 s{sPst}, s{sPst}, {PART + w*65536}
    s_lshl_b32 s{sT3}, s{sH}, 13
    s_add_u32 s{sPld}, s{sT1}, s{sT3}
    s_add_u32 s{sPld}, s{sPld}, {PART - MISC + (w&1)*4096}
    s_add_u32 s{sT0}, s{sStep}, 3
    s_and_b32 s{sT0}, s{sT0}, 3
    s_lshl_b32 s{sT1}, s{sT0}, 18
    s_mov_b32 s{sTag}, 0
    s_lshr_b32 s{sT2}, s{sH}, 3
    s_lshl_b32 s{sT2}, s{sT2}, 11
    s_and_b32 s{sT3}, s{sH}, 1
    s_lshl_b32 s{sT3}, s{sT3}, 9
    s_add_u32 s{sT2}, s{sT2}, s{sT3}
    s_bfe_u32 s{sT3}, s{sH}, 0x20001
    s_lshl_b32 s{sT3}, s{sT3}, 6
    s_add_u32 s{sT2}, s{sT2}, s{sT3}
    s_lshl_b32 s{sT1}, s{sT0}, 13
    s_add_u32 s{sMclr}, s{sT1}, s{sT2}
    s_add_u32 s{sMclr}, s{sMclr}, {MBUF + (w&1)*1024}
    s_add_u32 s{sT0}, s{sStep}, 1
    s_and_b32 s{sT0}, s{sT0}, 3
    s_lshl_b32 s{sT1}, s{sT0}, 13
    s_add_u32 s{sMpub}, s{sT1}, s{sT2}
    s_add_u32 s{sMpub}, s{sMpub}, {MBUF + (w&1)*1024}
    s_add_u32 s{sMpoll}, s{sT1}, {MBUF - MISC + w*2048}
    s_lshl_b32 s{sT0}, s{sStep}, 5
    s_add_u32 s{sT0}, s{sT0}, s{sH}
    s_lshl_b32 s{sT1}, s{sT0}, 13
    s_add_u32 s{sVx}, s{sT1}, {VIMG - MISC + w*2048}
    s_add_u32 s{sKx}, s{sT1}, {KIMG - MISC + 32*8192}
    s_lshl_b32 s{sT1}, s{sT0}, 12
    s_add_u32 s{sKm}, s{sT1}, {KMEM - MISC + w*1024}
    s_lshl_b32 s{sT1}, s{sT0}, 11
    s_add_u32 s{sVm}, s{sT1}, {VMEM + w*512}
    """)

sRP, sRM, sMprev, sCP1, sCP2, sCM1, sVmPrev = 76, 77, 78, 79, 80, 81, 82
sKb, sStage = 75, 74
sONE = 42
sB1M = 40
def init_incr(a, w):
    a(f"""
    s_mov_b32 s{sRP}, 0
    s_mov_b32 s{sRM}, 8192
    s_mov_b32 s{sCP1}, s{sPst}
    s_mov_b32 s{sCP2}, s{sPld}
    s_sub_u32 s{sCM1}, s{sMpub}, 8192
    s_mov_b32 s{sMprev}, s{sCM1}
    """)
NP = [1]
def advance(a, w):
    a(f"""
    s_add_u32 s{sVx}, s{sVx}, {32*8192}
    s_add_u32 s{sKx}, s{sKx}, {32*8192}
    s_add_u32 s{sKm}, s{sKm}, {32*4096}
    s_sub_u32 s{sMclr}, s{sMprev}, {(w&1)*1024}
    s_mov_b32 s{sMprev}, s{sMpub}
    s_add_u32 s{sRM}, s{sRM}, 8192
    s_and_b32 s{sRM}, s{sRM}, 0x7fff
    s_add_u32 s{sMpub}, s{sRM}, s{sCM1}
    s_add_u32 s{sStep}, s{sStep}, 1
    """)
    if NP[0] == 1: a(f"s_xor_b32 s{sTag}, s{sTag}, 1")
    else:
        a(f"""
        s_add_u32 s{sRP}, s{sRP}, 0x40000
        s_and_b32 s{sRP}, s{sRP}, {NP[0]*0x40000 - 1}
        s_add_u32 s{sPst}, s{sRP}, s{sCP1}
        s_add_u32 s{sPld}, s{sRP}, s{sCP2}
        s_bfe_u32 s{sTag}, s{sStep}, {0x10000 + NP[0].bit_length() - 1}
        """)

def korder(w):
    own = [2 * w, 2 * w + 1]
    rest = [(2 * w + 2 + k) % 8 for k in range(6)]
    seq = [(0, own[0]), (1, own[0]), (0, own[1]), (1, own[1])] + [(0, s) for s in rest] + [(1, s) for s in rest]
    return own, rest, seq

ABL = [""]; NT = [""]
def ring_fill(a, w, i):
    if "r" in ABL[0] and i >= NRING: return
    t, s = korder(w)[2][i]
    r = ringreg(i); imm = WQ_SLOT[s >> 1] * 8192 + ((s & 1) * 2 + t) * 2048
    a.ds(f"ds_read_b128 {vr(r,4)}, v{vRing} offset:{imm}", ("ring", i))
    a.ds(f"ds_read_b128 {vr(r+4,4)}, v{vRing} offset:{imm+1024}", ("ring", i))

def kx_dma(a, w, i):
    a(f"s_add_u32 m0, s{sKb}, {i*1024}")
    a(f"s_add_u32 s{sT0}, s{sKx}, {i*1024}")
    a.vm(f"buffer_load_dwordx4 v{vM16}, s[{sWS}:{sWS+3}], s{sT0} offen {NT[0]} lds", "kx")

class Stream:
    def __init__(self): self.ops = []; self.fill = {}
    def add(self, f, pre=None): self.ops.append((f, pre)); return len(self.ops) - 1
    def at(self, g, f): self.fill.setdefault(g, []).append(f)
    def emit(self):
        for g, (f, pre) in enumerate(self.ops):
            if pre: pre()
            f()
            for x in self.fill.pop(g, []): x()
        assert not self.fill, self.fill.keys()

def loop(a, w, st, P, diag=False):
    tag = f"{w}{'s' if st else 'f'}"
    WS = f"s[{sWS}:{sWS+3}]"
    smf = lambda d, A, B: a(f"v_smfmac_f32_16x16x64_bf16 {vr(d,4)}, {vr(A,4)}, {B}, v{vIDX}")
    mf = lambda d, A, B, c: a(f"v_mfma_f32_16x16x32_bf16 {vr(d,4)}, {vr(A,4)}, {vr(B,4)}, {c}")
    mf16 = lambda d, A, B, c: a(f"v_mfma_f32_16x16x16_bf16 {vr(d,4)}, {vr(A,2)}, {vr(B,2)}, {c}")
    I = lambda t: (lambda: a(t))
    Af = lambda s: vA + 4 * s
    q = lambda t: vACC + 8 * t
    k_ = lambda t: vACC + 8 * t + 4
    vacc = lambda t: (vVA0, vPM)[t]
    own, rest, seq = korder(w)
    ABL[0] = P.get("abl", ""); NP[0] = P.get("np", 1); NT[0] = P.get("nt", "nt")
    SL = P.get("stamps", ["start", "qkend", "xbar", "scores", "pv", "obar", "opend", "pub", "bdone"])
    def ST(n):
        if diag and n in SL:
            if P.get("trace"): a(f"s_memrealtime s[{sTS+2*SL.index(n)}:{sTS+2*SL.index(n)+1}]")
            else: stamp(a, SL.index(n), diag)
    vVM = vVA0 + 2
    def zero_acc():
        if w == 3:
            a(f"v_mov_b32 v124, -1\nv_lshrrev_b32 v125, 8, v{vL8}\nv_bfe_u32 v126, v{vL8}, 7, 1\nv_lshl_add_u32 v125, v125, 2, v126\nv_bfe_u32 v126, v{vL8}, 1, 6\nv_lshl_add_u32 v125, v125, 8, v126")
        for r in range(16): a(f"v_mov_b32 v{vACC+r}, 0")
        for t in range(2):
            for r in range(4): a(f"v_mov_b32 v{vacc(t)+r}, 0")
    def mwrite():
        for o in own:
            a.ds(f"ds_write_b128 v{vM16}, {vr(Af(o),4)} offset:{M_OFF + o*1024}", "mw")
    hook = P.get("hooks")
    if hook: hook["ready"](a, w, tag, True)
    for r in range(8): a(f"v_mov_b32 v{Af(own[0])+r}, v{(16, 17, 18, 19, 12, 13, 14, 15)[r]}")
    vxl = [lambda: a.vm(f"buffer_load_dwordx4 {vr(vVX,4)}, v{vM16}, {WS}, s{sVx} offen {NT[0]}", "vx"),
           lambda: a.vm(f"buffer_load_dwordx4 {vr(vVX+4,4)}, v{vM16}, {WS}, s{sVx} offen offset:1024 {NT[0]}", "vx")]
    a(f"s_mov_b32 s{sStep}, -1\ns_mov_b32 s{sKb}, {MISC+KX_OFF}")
    seg_offsets(a, w, P)
    kx_dma(a, w, 2 * w); kx_dma(a, w, 2 * w + 1)
    a(f"s_mov_b32 s{sStep}, 0\ns_mov_b32 s{sKb}, {MISC+KX_OFF+8192}")
    seg_offsets(a, w, P)
    if P.get("kxA"): kx_dma(a, w, 2 * w); kx_dma(a, w, 2 * w + 1)
    a(f"s_mov_b32 s{sVmPrev}, s{sKm}\ns_sub_u32 s{sMclr}, s{sMclr}, {(w&1)*1024}")
    init_incr(a, w)
    if hook:
        a(f"v_mov_b32 v124, -1\nv_mov_b32 v125, -1\nv_mov_b32 v126, -1\nv_mov_b32 v127, -1\ns_add_u32 s{sT0}, s{sKm}, {62*32*4096}")
        a(f"buffer_store_dwordx4 v[124:127], v{vM16}, {WS}, s{sT0} offen sc1\ns_add_u32 s{sT0}, s{sT0}, {32*4096}")
        a(f"buffer_store_dwordx4 v[124:127], v{vM16}, {WS}, s{sT0} offen sc1")
    for i in range(NRING): ring_fill(a, w, i)
    zero_acc()
    a.wait_vm_all(True); a.wait_ds_all(True)
    LB = [Af(o) for o in own]
    loadB = lambda k: a(f"buffer_load_dwordx4 {vr(LB[k],4)}, v{vM16}, {WS}, s{sMpoll} offen offset:{k*1024} sc1")
    NS = P["depB"]
    def retryB():
        a.label(f"CH_RBRETRY_{tag}")
        loadB(0); loadB(1)
        if diag: a(f"s_add_u32 s{sTS+21}, s{sTS+21}, 1")
        a(f"s_add_u32 s{sCnt}, s{sCnt}, 1")
        a(f"s_cmp_gt_u32 s{sCnt}, {P['bound']}\ns_cbranch_scc1 CH_RBOK_{tag}\ns_branch CH_RB_{tag}")
    a(f"s_mov_b32 s{sCnt}, 0")
    for k in range(8): a(f"v_min_u32 v{LB[0]+k}, 0xfffffffe, v{LB[0]+k}")
    a.label(f"CH_RB_{tag}")
    ST("B_w0")
    a.dsq = []
    r_ = [LB[0] + k for k in range(8)]
    a(f"s_waitcnt vmcnt({2 * NS - 1})")
    a(f"v_max3_u32 v10, v{r_[0]}, v{r_[1]}, v{r_[2]}")
    a(f"v_max_u32 v10, v10, v{r_[3]}")
    a.ds(f"ds_write_b128 v{vM16}, {vr(LB[0],4)} offset:{M_OFF + own[0]*1024}", "mw")
    a(f"s_waitcnt vmcnt({2 * NS - 2})")
    a(f"v_max3_u32 v10, v10, v{r_[4]}, v{r_[5]}")
    a(f"v_max3_u32 v10, v10, v{r_[6]}, v{r_[7]}")
    a.ds(f"ds_write_b128 v{vM16}, {vr(LB[1],4)} offset:{M_OFF + own[1]*1024}", "mw")
    a(f"v_cmp_eq_u32 vcc, -1, v10")
    a(f"s_cbranch_vccnz CH_RBRETRY_{tag}" if not P.get("free") else "s_nop 0")
    a.label(f"CH_RBOK_{tag}")
    if diag:
        ST("bdone")
        a("s_waitcnt lgkmcnt(0)")
        a(f"s_cmp_eq_u32 s{sStep}, 0")
        a(f"s_cbranch_scc1 CH_NOACC_{tag}")
        for k in range(8):
            a(f"s_sub_u32 s{sT0}, s{sTS+2*k+2}, s{sTS+2*k}")
            a(f"s_add_u32 s{sTS+22+k}, s{sTS+22+k}, s{sT0}")
        if P.get("trace"):
            a(f"s_cmp_eq_u32 s{sStep}, {P['trace']}")
            for k, dst in enumerate((83, 84, 85, 86, 87, 88, 89, 100, 101)):
                a(f"s_cselect_b32 s{dst}, s{sTS+2*k}, s{dst}")
        a.label(f"CH_NOACC_{tag}")
        if w == 3 and P.get("steptime"):
            a(f"s_memrealtime s[{sT2}:{sT2+1}]\ns_lshl_b32 s{sT0}, s{sH}, 6\ns_add_u32 s{sT0}, s{sT0}, s{sStep}\ns_lshl_b32 s{sT0}, s{sT0}, 2\ns_add_u32 s{sT0}, s{sT0}, {DBG + 0x40000}\ns_waitcnt lgkmcnt(0)")
            a(f"v_mov_b32 v10, s{sT2}\nv_mov_b32 v11, 0\nbuffer_store_dword v10, v11, {WS}, s{sT0} offen")
            a(f"s_memtime s[{sT2}:{sT2+1}]\ns_add_u32 s{sT0}, s{sT0}, 0x10000\ns_waitcnt lgkmcnt(0)\nv_mov_b32 v10, s{sT2}\nbuffer_store_dword v10, v11, {WS}, s{sT0} offen")
    ST("start")
    a.vmq = ["stale"] * (2 * NS - 2) + (["dbg", "dbg"] if diag and w == 3 and P.get("steptime") else [])
    S = Stream()
    vs = [(t, s) for s in own + rest for t in range(2)]
    def vsm(S, pre=None):
        t, s = vs.pop(0)
        return S.add(lambda: smf(vacc(t), Af(s), ar(wv(t, s), 8)), pre)
    gq = {}
    aread = lambda s: a.ds(f"ds_read_b128 {vr(Af(s),4)}, v{vM16} offset:{M_OFF + s*1024}", ("A", s))
    NB = P["pre_bar"]
    def bar_and_reads():
        a.wait_ds("mw")
        ST("mbar0")
        a("s_barrier")
        ST("mbar1")
        for s in rest[:P["a_burst"]]: aread(s)
    xread = lambda sg: [a.ds(f"ds_read_b64_tr_b16 {vr(vXF+4*sg+2*p,2)}, v{vXr} offset:{(sg&1)*512 + p*256 + (sg>>1)*128}", ("X", sg)) for p in range(2)]
    for i in range(16):
        t, s = seq[i]
        def pre(i=i, s=s):
            a.wait_ds(("A", s))
            if i in (4, 7, 10, 13): ST(f"q{i}")
            a.wait_ds(("ring", i))
        if i == 4:
            for n in range(4): vsm(S)
        gq[i] = S.add(lambda t=t, s=s, i=i: smf(q(t), Af(s), vr(ringreg(i), 8)), pre)
        S.add(lambda t=t, s=s: smf(k_(t), Af(s), vr(wk(t, s), 8)))
    GB = P["pre_bar"] - 1
    S.at(GB, bar_and_reads)
    kxread = lambda kt, s: a.ds(f"ds_read_b128 {vr(kx(kt,s),4)}, v{vKx} offset:{(kt*4+s)*1024}", "kx")
    def half_fill(i, h):
        t, s = seq[i]
        r = ringreg(i) + 4 * h; imm = WQ_SLOT[s >> 1] * 8192 + ((s & 1) * 2 + t) * 2048 + h * 1024
        a.ds(f"ds_read_b128 {vr(r,4)}, v{vRing} offset:{imm}", ("ring", i))
    reads = [(GB + 1, lambda s=s: aread(s)) for s in rest[P["a_burst"]:]]
    ringr = [(gq[i - NRING], lambda i=i, h=h: half_fill(i, h)) for i in range(NRING, 16) for h in range(2)]
    npre = P["r_pre"]
    for n in range(npre): S.at(max(ringr[n][0], min(n + 1, GB)), ringr[n][1])
    if "r" not in ABL[0]: reads += ringr[npre:]
    if "k" not in ABL[0]: reads += [(gq[10 + n // 2], lambda n=n: kxread(n >> 2, n & 3)) for n in range(P["kx_in"])]
    g = GB + 1
    for (e, f) in reads:
        g = max(g, e)
        S.at(min(g, 35), f); g += 1
    def post(t, r0):
        return [I(f"v_add_f32 v{q(t)}, v{q(t)}, v{q(t)+2}"), I(f"v_add_f32 v{q(t)+1}, v{q(t)+1}, v{q(t)+3}"),
                I(f"v_add_f32 v{k_(t)}, v{k_(t)}, v{k_(t)+2}"), I(f"v_add_f32 v{k_(t)+1}, v{k_(t)+1}, v{k_(t)+3}"),
                I(f"v_cvt_pk_bf16_f32 v{r0}, v{q(t)}, v{q(t)+1}"), I(f"v_cvt_pk_bf16_f32 v{r0+1}, v{k_(t)}, v{k_(t)+1}"),
                lambda: a.ds(f"ds_write_b64 v{vXw}, {vr(r0,2)} offset:{t*128}", "xw")]
    p0 = post(0, vACC + 6)
    g0 = gq[10] + 2
    S.at(gq[10], lambda: a.nop(2)); S.at(gq[10] + 1, lambda: a.nop(2))
    g0 += P.get("p0off", 0)
    if "p" not in ABL[0] and not P.get("pboth"):
        for n in range(6): S.at(g0 + n, p0[n])
        if not P.get("xw2"): S.at(g0 + 5 + P.get("p0w", 0), p0[6])
    vONE = vACC
    if not P.get("one_late") and not P.get("pboth"):
        for n in range(4): S.at(g0 + 6 + n, I(f"v_mov_b32 v{vONE+n}, s{sONE}"))
    late = {}
    if P["jobs"] == "S" and "j" not in ABL[0]:
        jobs = [lambda: a.vm(f"buffer_store_dwordx4 {vr(vVX,4)}, v{vM16}, {WS}, s{sVmPrev} offen sc1", "exp"), vxl[0], vxl[1],
                lambda: kx_dma(a, w, 2 * w), lambda: kx_dma(a, w, 2 * w + 1)]
        if P.get("kxA"): jobs = jobs[:3] + [None] * 2
        if w == 3: jobs.append(lambda: a.vm(f"buffer_store_dword v124, v125, {WS}, s{sMclr} offen {st}", "clr"))
        if hook and w == P.get("fw", 0): jobs.append(lambda: hook["flag"](a))
        for n, jb in enumerate(jobs):
            if jb is None: continue
            g = P["j0"] + P["jstr"] * n + P["jw"] * w
            if n == 5: g = P["j0"] + P["jstr"] * (2 if w else 1) + P["jw"] * w + P["jstr"] // 2
            if g < 36: S.at(g, jb)
            else: late.setdefault(g - 36 + 2, []).append(jb)
    S.at(gq[12], I(f"s_add_u32 s{sMpoll}, s{sRM}, {MBUF - MISC + w*2048}"))
    if 35 not in S.fill: S.at(35, lambda: a.nop(1))
    S.emit()
    ST("qkend")
    T0, T1, Tm = vACC + 8, vACC + 12, vT
    def score(S, T, sg):
        A = {T0: kx(0, sg), T1: kx(1, sg), Tm: vXF + 4 * sg}[T]
        return S.add(lambda: mf(T, A, vXF + 4 * sg, "0" if sg == 0 else vr(T, 4)), lambda: a.wait_ds(("X", sg)))
    p1 = post(1, vACC + 4)
    S = Stream()
    if P.get("pboth"):
        a(f"v_pk_add_f32 {vr(q(0),2)}, {vr(q(0),2)}, {vr(q(0)+2,2)}\nv_pk_add_f32 {vr(k_(0),2)}, {vr(k_(0),2)}, {vr(k_(0)+2,2)}")
        p0[4](); p0[5]()
        if not P.get("xw2"): p0[6]()
        a.nop(2 if P.get("xw2") else 1)
    else: a.nop(6)
    a(f"v_pk_add_f32 {vr(q(1),2)}, {vr(q(1),2)}, {vr(q(1)+2,2)}\nv_pk_add_f32 {vr(k_(1),2)}, {vr(k_(1),2)}, {vr(k_(1)+2,2)}")
    for n in range(4, 6): p1[n]()
    if P.get("xw2"): a.ds(f"ds_write2_b64 v{vXw}, {vr(vACC+6,2)}, {vr(vACC+4,2)} offset0:0 offset1:16", "xw")
    else: p1[6]()
    for n in range(P["v_pre"]):
        g = vsm(S)
        if P["kx_in"] + n < 8: S.at(g, lambda n=n: kxread((P["kx_in"] + n) >> 2, (P["kx_in"] + n) & 3))
    assert P["kx_in"] + P["v_pre"] >= 8
    def xbar1():
        a.wait_ds("xw")
        a("s_barrier"); ST("xbar"); xread(0)
    g = vsm(S, xbar1)
    S.at(g, lambda: xread(1))
    S.at(vsm(S), lambda: xread(2)); S.at(vsm(S), lambda: xread(3))
    ones = list(range(4)) if P.get("one_late") or P.get("pboth") else []
    while vs:
        gl = vsm(S)
        if ones: S.at(gl, I(f"v_mov_b32 v{vONE+ones.pop(0)}, s{sONE}"))
    for g, l_ in late.items():
        for jb in l_: S.at(g, jb)
    S.at(gl, lambda: (a.wait_vm("stale"), a.wait_ds("kx"), ST("vdone")))
    m, t_ = vT, 11
    gs = [score(S, T, sg) for T in (T0, T1, Tm) for sg in range(4)]
    va = [I(f"v_add_f32 v{vacc(t)+k}, v{vacc(t)+k}, v{vacc(t)+k+2}") for t in range(2) for k in range(2)]
    for n in range(4): S.at(gs[n], lambda: a.nop(1))
    S.at(gs[4], va[0]); S.at(gs[4], va[1]); S.at(gs[5], va[2]); S.at(gs[5], va[3])
    S.at(gs[6], I(f"v_cvt_pk_bf16_f32 v{vVM}, v{vacc(0)}, v{vacc(0)+1}"))
    S.at(gs[7], I(f"v_cvt_pk_bf16_f32 v{vVM+1}, v{vacc(1)}, v{vacc(1)+1}"))
    S.at(gl, I(f"s_cmp_ge_u32 s{sStep}, 63\ns_cbranch_scc1 CH_DONE_{tag}"))
    S.at(gs[8], I(f"v_max3_f32 v10, v{T0}, v{T0+1}, v{T0+2}\nv_mov_b32 v{vPM+1}, 0\ns_nop 1"))
    S.at(gs[9], I(f"v_max_f32 v10, v10, v{T0+3}\nv_mov_b32 v{vPM+2}, 0\ns_nop 1"))
    S.at(gs[10], I(f"v_max3_f32 v10, v10, v{T1}, v{T1+1}"))
    S.at(gs[11], I(f"v_max3_f32 v10, v10, v{T1+2}, v{T1+3}"))
    S.emit()
    ST("scores")
    oacc = lambda d: vRING + 4 * d
    zq = list(range(16))
    z = lambda n: [a(f"v_mov_b32 v{vRING+zq.pop(0)}, 0") for _ in range(n)]
    z(7)
    a(f"v_max3_f32 v{m}, v10, v{Tm+2}, v{Tm+3}")
    a(f"v_mov_b32 v{t_}, v{m}")
    z(2)
    a(f"v_permlane32_swap_b32 v{m}, v{t_}")
    a(f"v_max_f32 v{m}, v{m}, v{t_}")
    a(f"v_mov_b32 v{t_}, v{m}")
    z(2)
    a(f"v_permlane16_swap_b32 v{m}, v{t_}")
    a(f"v_max_f32 v{m}, v{m}, v{t_}")
    a(f"v_mul_f32 v10, s{sC}, v{m}")
    pf = lambda r: a(f"v_pk_fma_f32 {vr(r,2)}, {vr(r,2)}, s[{sC}:{sC+1}], v[10:11] op_sel_hi:[1,1,0] neg_lo:[0,0,1] neg_hi:[0,0,1]")
    ex = lambda r: a(f"v_exp_f32 v{r}, v{r}")
    aX, aY, aL = vA, vA + 4, vA + 24
    vPX = vACC + 4
    pf(Tm + 2); pf(T0); ex(Tm + 2); ex(Tm + 3); pf(T0 + 2); pf(T1); pf(T1 + 2)
    a(f"v_cvt_pk_bf16_f32 v{vPM}, v{Tm+2}, v{Tm+3}")
    a(f"v_cvt_pk_bf16_f32 v{vPM+3}, v{Tm+2}, v{Tm+3}")
    ex(T0); ex(T0 + 1)
    mf16(aL, vONE, vPM, "0")
    ex(T0 + 2); ex(T0 + 3)
    mf16(aX, vVM, vPM, "0")
    ex(T1); ex(T1 + 1)
    mf16(aY, vVM, vPM + 2, "0")
    ex(T1 + 2); ex(T1 + 3)
    a(f"v_cvt_pk_bf16_f32 v{vPX}, v{T0}, v{T0+1}")
    a(f"v_cvt_pk_bf16_f32 v{vPX+1}, v{T0+2}, v{T0+3}")
    a(f"v_cvt_pk_bf16_f32 v{vPX+2}, v{T1}, v{T1+1}")
    a(f"v_cvt_pk_bf16_f32 v{vPX+3}, v{T1+2}, v{T1+3}")
    a.wait_vm("vx")
    a.nop(2 if "j" in ABL[0] else 1)
    mf(aL, vONE, vPX, vr(aL, 4)); z(2)
    mf(aX, vVX, vPX, vr(aX, 4)); z(2)
    mf(aY, vVX + 4, vPX, vr(aY, 4))
    ST("pv")
    z(1); a.nop(1)
    a(f"v_rcp_f32 v10, v{aL}")
    a.nop(3)
    vOW = vA + 8
    for r in range(4):
        if r == 2: a.nop(1)
        a(f"v_pk_mul_f32 {vr(aX+2*r,2)}, {vr(aX+2*r,2)}, v[10:11] op_sel_hi:[1,0]")
    for r in range(4):
        a(f"v_cvt_pk_bf16_f32 v{vOW+r}, v{aX+2*r}, v{aX+2*r+1}")
    if P.get("omask"): a(f"s_not_b64 exec, s[{sB1M}:{sB1M+1}]")
    a.ds(f"ds_write_b128 v{vM16}, {vr(vOW,4)} offset:{O_OFF + w*1024}", "ow")
    if P.get("omask"): a("s_mov_b64 exec, -1")
    vOF = lambda s: vA + 12 + 4 * s
    a.nop(1)
    for r in range(4):
        a(f"v_mov_b32_dpp v{vOF(w)+r}, v{vOW+r} quad_perm:[0,1,0,1] row_mask:0xf bank_mask:0xf")
    a.nop(2)
    assert not zq
    S = Stream()
    orest = [(w + 1 + k) % 4 for k in range(3)]
    def obar():
        a.wait_ds_all()
        a("s_barrier")
        ST("obar")
        for s in orest: a.ds(f"ds_read_b128 {vr(vOF(s),4)}, v{vOr} offset:{s*1024}", ("O", s))
        a(f"s_add_u32 s{sT0}, s{sPst}, 4096")
    XW = vXF + 4 * w
    sel = lambda d, f, dst=vVX: f"v_cndmask_b32 v{dst+d}, v{f}, v{XW+d}, s[{sB1M}:{sB1M+1}]"
    dpp = lambda d: f"v_mov_b32_dpp v{10+d}, v{vVM+d} quad_perm:[2,3,2,3] row_mask:0xf bank_mask:0xf"
    pack = [I(dpp(0) + "\n" + sel(0, vVM)), I(dpp(1) + "\n" + sel(1, vVM + 1)), I(sel(2, 10)), I(sel(3, 11))]
    for d in range(4):
        g = S.add(lambda d=d: smf(oacc(d), vOF(w), ar(wo(d, w), 8)), obar if d == P["o_pre"] else None)
        S.at(g, pack[d])
    if P["o_pre"] == 4: S.at(g, obar)
    vST = vRING + 16
    go = [S.add(lambda d=d, s=s: smf(oacc(d), vOF(s), ar(wo(d, s), 8)), lambda s=s: a.wait_ds(("O", s)))
          for (d, s) in ([(d, s) for s in orest for d in (0, 1)] + ([(d, s) for d in (2, 3) for s in orest] if P.get("dmaj") else [(d, s) for s in orest for d in (2, 3)]))]
    cv = lambda d, k: I(f"v_cvt_pk_bf16_f32 v{vST+2*d+k}, v{oacc(d)+2*k}, v{oacc(d)+2*k+1}")
    tg = lambda dp: I(f"v_and_or_b32 v{vST+4*dp}, v{vST+4*dp}, -2, s{sTag}")
    pst = lambda dp: a.vm(f"buffer_store_dwordx4 {vr(vST+4*dp,4)}, v{vPst}, {WS}, s{sT0 if dp else sPst} offen {st}", "pst")
    if P.get("pst0", 0) == 0:
        S.at(go[6], lambda: a.nop(6)); S.at(go[6], cv(0, 0)); S.at(go[7], cv(0, 1)); S.at(go[8], tg(0)); S.at(go[9], cv(1, 0)); S.at(go[10], cv(1, 1))
        S.at(go[10], lambda: pst(0))
    elif P["pst0"] == 1:
        S.at(go[6], lambda: a.nop(6)); S.at(go[6], cv(0, 0)); S.at(go[6], cv(0, 1)); S.at(go[7], cv(1, 0)); S.at(go[7], cv(1, 1)); S.at(go[7], tg(0))
        S.at(go[7], lambda: pst(0))
    else:
        S.at(go[6], lambda: a.nop(6))
        for f in (cv(0, 0), cv(0, 1), cv(1, 0), cv(1, 1), tg(0), lambda: pst(0)): S.at(go[6], f)
    if P.get("dmaj"):
        S.at(go[9], lambda: a.nop(3)); S.at(go[10], lambda: a.nop(3)); S.at(go[10], cv(2, 0))
    S.emit()
    if P.get("dmaj"):
        cv(2, 1)(); tg(1)(); a.nop(6); cv(3, 0)(); cv(3, 1)(); pst(1)
    else:
        a.nop(7 if P.get('pst0', 0) else 6)
        cv(2, 0)(); cv(2, 1)(); cv(3, 0)(); cv(3, 1)(); tg(1)(); pst(1)
    ST("opend")
    LA = [Af(rest[k]) for k in range(4)]
    vRA, vRD = Af(rest[4]), Af(rest[5])
    def issueA():
        for k in range(4): a(f"buffer_load_dwordx4 {vr(LA[k],4)}, v{vM16}, {WS}, s{sPld} offen offset:{k*1024} sc1")
    def adv():
        a(f"s_mov_b32 s{sCnt}, 0\ns_mov_b32 s{sVmPrev}, s{sKm}")
        advance(a, w)
        if hook: hook["ready"](a, w, tag, False)
    def chores():
        zero_acc()
        a(f"v_xor_b32 v{vKx}, 8192, v{vKx}\ns_xor_b32 s{sKb}, s{sKb}, 8192")
    a(f"s_mov_b32 s{sCnt}, 0")
    if w < 2:
        a.ds(f"ds_read_b128 {vr(vRA,4)}, v{vM16} offset:{RA_OFF}", "ra")
        if w == 1: chores()
        a.nop(P["dlyA"][w])
        issueA()
        ST("issA")
        if w == 0: chores()
        for i in range(P["nrA"]): ring_fill(a, w, i)
        DA = P["depA"][w]
        for _ in range(DA - 1):
            a.nop(P["gapA"]); issueA()
        a.wait_ds("ra")
        a.label(f"CH_RA_{tag}")
        ny = 4 * (DA - 1)
        for k in range(4):
            a(f"s_waitcnt vmcnt({ny + 3 - k})")
            if k == 3:
                ST("A_w2")
                a(f"v_bitop3_b32 v11, v{LA[2]}, v{LA[3]}, s{sTag} bitop3:0x7e")
                a(f"v_bitop3_b32 v10, v10, v11, 1 bitop3:0xa8")
            if k == 1: a(f"v_bitop3_b32 v10, v{LA[0]}, v{LA[1]}, s{sTag} bitop3:0x7e")
            if k == 0 and DA > 1: continue
            if k == 1 and DA > 1: mf(vRD, LA[0], vRA, "0")
            if k == 2 and DA > 1: continue
            if k == 3 and DA > 1: mf(vRD, LA[2], vRA, vr(vRD, 4))
            mf(vRD, LA[k], vRA, "0" if k == 0 else vr(vRD, 4))
        a(f"v_cmp_ne_u32 vcc, 0, v10")
        a(f"s_cbranch_vccnz CH_RARETRY_{tag}" if not P.get("free") else "s_nop 0")
        a.label(f"CH_RAOK_{tag}")
        ST("A_ok")
        a.nop(6)
        a(f"v_permlane32_swap_b32 v{vRD}, v{vRD+2}")
        a(f"v_permlane32_swap_b32 v{vRD+1}, v{vRD+3}")
        a(f"s_mov_b64 exec, s[{sLO8}:{sLO8+1}]")
        a(f"v_pk_add_f32 {vr(vRD,2)}, {vr(vRD,2)}, {vr(vRD+2,2)}")
        a(f"v_cvt_pk_bf16_f32 v{vRD}, v{vRD}, v{vRD+1}")
        a(f"buffer_store_dword v{vRD}, v{vMpub}, {WS}, s{sMpub} offen {st}")
        a("s_mov_b64 exec, -1")
        ST("pub")
        if w == 0:
            for i in range(P["nrA"], NRING): ring_fill(a, w, i)
    else:
        chores()
        if P.get("kxA"):
            adv()
            for i in range(4): kx_dma(a, w, 4 * (w - 2) + i)
        for i in range(NRING): ring_fill(a, w, i)
    if w == 0 or (w > 1 and not P.get("kxA")): adv()
    a("s_barrier")
    a.nop(P["dlyB"])
    loadB(0); loadB(1)
    ST("issB")
    if w == 1: adv()
    for _ in range(NS - 1):
        a.nop(P["gapB"] if w != 1 else max(0, P["gapB"] - P["w1c"])); loadB(0); loadB(1)
    if w == 1:
        for i in range(P["nrA"], NRING): ring_fill(a, w, i)
    a.wait_ds_all()
    a.vmq = []
    a(f"s_branch CH_RB_{tag}")
    if w < 2:
        a.label(f"CH_RARETRY_{tag}")
        issueA()
        a(f"s_add_u32 s{sCnt}, s{sCnt}, 1")
        if diag: a(f"s_add_u32 s{sTS+20}, s{sTS+20}, 1")
        a(f"s_cmp_gt_u32 s{sCnt}, {P['bound']}")
        a(f"s_cbranch_scc1 CH_RAOK_{tag}")
        a(f"s_branch CH_RA_{tag}")
    retryB()
    a.label(f"CH_DONE_{tag}")
    a.wait_ds_all(True)
    a.nop(5)
    for f in va: f()
    a(f"v_cvt_pk_bf16_f32 v{vVM}, v{vacc(0)}, v{vacc(0)+1}\nv_cvt_pk_bf16_f32 v{vVM+1}, v{vacc(1)}, v{vacc(1)+1}")
    a.nop(2)
    a(dpp(0)); a(dpp(1))
    for d, f in enumerate((vVM, vVM + 1, 10, 11)): a(sel(d, f, T0))
    a(f"buffer_store_dwordx4 {vr(T0,4)}, v{vM16}, {WS}, s{sKm} offen sc1")
    a.dsq = []; a.vmq = []
    if hook: hook["done"](a, w)
```

```python
from asm import *
from layout import *
import math, struct

sWS = 8
WS = f"s[{sWS}:{sWS+3}]"
DB = "s[4:7]"
sW = 17
sRole = 16
sDead = 37
sA, sB, sC_, sD = 32, 33, 34, 35
POLL_BOUND = 1 << 16
SLEEP = [2]
EARLY = [1]
EXP = [None]
OUTF = ['']
HOLD = [0]
PREFETCH = [(48, 50, 58, 52)]

def fbits(x): return struct.unpack("<I", struct.pack("<f", x))[0]

def srd(a, d, ka, size):
    a(f"s_load_dwordx2 s[{d}:{d+1}], s[0:1], {KA[ka]}\ns_mov_b32 s{d+2}, {size}\ns_mov_b32 s{d+3}, 0x20000")

def poll_ge(a, load, vals, target, name, sleep=1, vtmp=None):
    L = a.newlabel("POLL_" + name); E = L + "_E"
    a(f"s_mov_b32 s{sD}, 0")
    a.label(L)
    a(f"s_cmp_lg_u32 s{sDead}, 0\ns_cbranch_scc1 {E}")
    a(load)
    a(f"s_add_u32 s{sD}, s{sD}, 1")
    a(f"s_cmp_gt_u32 s{sD}, {POLL_BOUND}\ns_cselect_b32 s{sDead}, 1, 0")
    a("s_waitcnt vmcnt(0)")
    v = vals[0]
    for k in range(1, len(vals)):
        a(f"v_min_u32 v{vtmp}, v{v}, v{vals[k]}"); v = vtmp
    a(f"v_cmp_gt_u32 vcc, {target}, v{v}")
    a(f"s_cbranch_vccz {E}")
    if sleep: a(f"s_sleep {sleep}")
    a(f"s_branch {L}")
    a.label(E)
    a.vmq = []

def flag_store(a, soff, sval, v0=2):
    a(f"v_mov_b32 v{v0}, {sval}\nv_mov_b32 v{v0+1}, 0\ns_mov_b64 exec, 1")
    a.vm(f"buffer_store_dword v{v0}, v{v0+1}, {WS}, {soff} offen sc1", "flag")
    a("s_mov_b64 exec, -1")

def layernorm(a, sTask, diag=False, local=None, after_loads=None, after_sum=None):
    srd(a, 60, "x", 2048 * 1024)
    a(f"""
    v_and_b32 v8, 7, v0
    v_lshrrev_b32 v9, 3, v0
    v_lshlrev_b32 v14, 10, v8
    v_lshl_add_u32 v14, v9, 4, v14
    s_lshl_b32 s27, s{sTask}, 13
    s_waitcnt lgkmcnt(0)
    """)
    R, F = 16, 48
    for s in range(8):
        a.vm(f"buffer_load_dwordx4 {vr(R+4*s,4)}, v14, s[60:63], s27 offen offset:{s*128}", ("ln", s))
    a(f"""
    v_lshrrev_b32 v15, 2, v9
    v_lshlrev_b32 v15, 11, v15
    v_and_b32 v9, 3, v9
    v_lshl_add_u32 v15, v9, 8, v15
    v_lshl_add_u32 v15, v8, 4, v15
    s_lshr_b32 s27, s{sTask}, 2
    s_lshl_b32 s27, s27, 15
    s_bfe_u32 s28, s{sTask}, 0x10001
    s_lshl_b32 s28, s28, 10
    s_add_u32 s27, s27, s28
    s_and_b32 s28, s{sTask}, 1
    s_lshl_b32 s28, s28, 7
    s_add_u32 s27, s27, s28
    s_add_u32 s27, s27, {XN}
    v_mov_b32 v10, 0
    v_mov_b32 v11, 0
    """)
    if after_loads: after_loads()
    for s in range(8):
        a.wait_vm(("ln", s))
        for k in range(4):
            r = R + 4 * s + k; f = F + 8 * s + 2 * k
            a(f"v_lshlrev_b32 v{f}, 16, v{r}\nv_and_b32 v{f+1}, 0xffff0000, v{r}")
            a(f"v_pk_add_f32 v[10:11], v[10:11], {vr(f,2)}")
    if diag: a("s_memrealtime s[72:73]")
    if after_sum: after_sum()
    def allred():
        a("v_add_f32 v10, v10, v11\ns_nop 1\nv_add_f32_dpp v10, v10, v10 row_ror:8 row_mask:0xf bank_mask:0xf")
        for op in ("v_permlane32_swap_b32", "v_permlane16_swap_b32"):
            a(f"v_mov_b32 v11, v10\ns_nop 1\n{op} v10, v11\nv_add_f32 v10, v10, v11")
    allred()
    a(f"v_mul_f32 v12, {fbits(1/512):#x}, v10\nv_mov_b32 v10, 0\nv_mov_b32 v11, 0")
    for k in range(32):
        f = F + 2 * k
        a(f"v_pk_add_f32 {vr(f,2)}, {vr(f,2)}, v[12:13] op_sel_hi:[1,0] neg_lo:[0,1] neg_hi:[0,1]")
        a(f"v_pk_fma_f32 v[10:11], {vr(f,2)}, {vr(f,2)}, v[10:11]")
    allred()
    a(f"v_mov_b32 v12, {fbits(1e-5):#x}\nv_fmac_f32 v12, {fbits(1/512):#x}, v10\nv_rsq_f32 v12, v12\ns_nop 0")
    for s in range(8):
        for k in range(4):
            f = F + 8 * s + 2 * k
            a(f"v_pk_mul_f32 {vr(f,2)}, {vr(f,2)}, v[12:13] op_sel_hi:[1,0]")
            a(f"v_cvt_pk_bf16_f32 v{R+4*s+k}, v{f}, v{f+1}")
        if local is None:
            a.vm(f"buffer_store_dwordx4 {vr(R+4*s,4)}, v15, {WS}, s27 offen sc1", "lnst")
            a(f"s_add_u32 s27, s27, 4096")
        else:
            if s == 0: a(f"s_and_b32 s27, s27, 0x7fff\ns_add_u32 s27, s27, {local}\nv_add_u32 v15, s27, v15")
            a.ds(f"ds_write_b128 v15, {vr(R+4*s,4)} offset:{s*4096}")
    if diag: a("s_memrealtime s[74:75]")

G1_XBUF = 98304
def gemm1(a, wait_init, verdict, sInit, diag=False):
    sSl, sJ, sKind, sRow, sOut, sN, sXs, sFl = 18, 19, 20, 21, 22, 23, 24, 25
    a(f"""
    s_lshr_b32 s{sSl}, s{sRole}, 2
    s_and_b32 s{sJ}, s{sRole}, 3
    s_lshr_b32 s{sKind}, s{sSl}, 4            ; 0 K, 1 V, 2 Q, 3 FFN1
    s_load_dwordx2 s[48:49], s[0:1], {KA['Wk']}
    s_load_dwordx2 s[50:51], s[0:1], {KA['Wv']}
    s_load_dwordx2 s[52:53], s[0:1], {KA['Wq']}
    s_load_dwordx2 s[54:55], s[0:1], {KA['w1']}
    s_load_dwordx2 s[56:57], s[0:1], {KA['b1']}
    s_load_dwordx2 s[58:59], s[0:1], {KA['Wo']}
    s_waitcnt lgkmcnt(0)
    s_mov_b32 s12, s48
    s_mov_b32 s13, s49
    s_mov_b32 s14, {512*4096*2}
    s_mov_b32 s{sRow}, 8192
    s_cmp_eq_u32 s{sKind}, 1
    s_cselect_b32 s12, s50, s12
    s_cselect_b32 s13, s51, s13
    s_cmp_eq_u32 s{sKind}, 2
    s_cselect_b32 s12, s52, s12
    s_cselect_b32 s13, s53, s13
    s_cmp_eq_u32 s{sKind}, 3
    s_cselect_b32 s12, s54, s12
    s_cselect_b32 s13, s55, s13
    s_cselect_b32 s14, {512*1792*2}, s14
    s_cselect_b32 s{sRow}, 3584, s{sRow}
    s_mov_b32 s15, 0x20000
    v_and_b32 v240, 15, v0
    v_lshrrev_b32 v241, 4, v0
    v_and_b32 v242, 3, v0
    v_bfe_u32 v243, v0, 2, 2
    v_lshrrev_b32 v4, 3, v0
    v_mul_lo_u32 v4, v4, s{sRow}
    v_and_b32 v5, 7, v0
    v_bfe_u32 v6, v0, 4, 1
    v_lshlrev_b32 v6, 1, v6
    v_xor_b32 v5, v5, v6
    v_xor_b32 v6, 4, v5
    s_and_b32 s{sA}, s{sSl}, 15
    s_lshl_b32 s{sA}, s{sA}, 9
    s_lshl_b32 s{sB}, s{sW}, 7
    s_add_u32 s{sA}, s{sA}, s{sB}
    v_add_u32 v4, s{sA}, v4
    v_lshl_add_u32 v244, v5, 4, v4
    v_lshl_add_u32 v245, v6, 4, v4
    v_lshl_add_u32 v4, v241, 3, v243
    v_lshlrev_b32 v4, 7, v4
    v_lshl_add_u32 v4, v242, 3, v4
    s_mul_i32 s{sA}, s{sW}, 24576
    v_add_u32 v4, s{sA}, v4
    v_lshrrev_b32 v5, 1, v243
    v_and_b32 v6, 1, v241
    v_lshl_add_u32 v5, v6, 1, v5
    """)
    for f in range(4):
        a(f"v_xor_b32 v6, {f}, v5\nv_lshl_add_u32 v{246+f}, v6, 5, v4")
    a(f"s_lshl_b32 s{sC_}, s{sRow}, 3\ns_mov_b32 s{sN}, 0")
    def issue(c):
        for i in range(8):
            a(f"s_add_u32 m0, s{sA}, {(c%3)*8192 + i*1024}\ns_nop 0")
            a.vm(f"buffer_load_dwordx4 v{244 + (i&1)}, s[12:15], s{sN} offen lds", ("w", c))
            a(f"s_add_u32 s{sN}, s{sN}, s{sC_}")
    def prefetch():
        if not PREFETCH[0]: return
        a(f"s_lshl_b32 s{sB}, s{sRole}, 2\ns_add_u32 s{sB}, s{sB}, s{sW}\ns_lshl_b32 s{sB}, s{sB}, 12\ns_add_u32 s{sD}, s{sB}, {896*4096}")
        a("v_lshlrev_b32 v13, 6, v0\ns_mov_b32 s42, 0x400000\ns_mov_b32 s43, 0x20000")
        for p in PREFETCH[0]:
            a(f"s_mov_b32 s40, s{p}\ns_mov_b32 s41, s{p+1}")
            a.vm(f"buffer_load_dword v252, v13, s[40:43], s{sB} offen", "pf")
            a.vm(f"buffer_load_dword v252, v13, s[40:43], s{sD} offen", "pf")
    sTask, sHave, sBit, sWd = 26, 31, 38, 39
    a(f"""
    s_mov_b32 s{sHave}, 0
    s_mov_b32 s{sTask}, s{sRole}
    s_cmp_eq_u32 s{sW}, s{sJ}
    s_cbranch_scc1 G1_LN
    s_xor_b32 s{sB}, s{sJ}, 2
    s_cmp_lg_u32 s{sW}, s{sB}
    s_cbranch_scc1 G1_NOLN
    s_and_b32 s{sB}, s{sRole}, 31
    s_cmp_ge_u32 s{sB}, 5
    s_cbranch_scc1 G1_NOLN
    s_lshr_b32 s{sTask}, s{sRole}, 5
    s_mul_i32 s{sTask}, s{sTask}, 5
    s_add_u32 s{sTask}, s{sTask}, s{sB}
    s_add_u32 s{sTask}, s{sTask}, 224
    s_cmp_ge_u32 s{sTask}, 256
    s_cbranch_scc1 G1_NOLN
    G1_LN:
    """)
    layernorm(a, sTask, diag, None, prefetch)
    a(f"s_mov_b32 s{sHave}, 1\ns_branch G1_LN1")
    a.label("G1_NOLN")
    prefetch()
    a.label("G1_LN1")
    def peek():
        a(f"v_mov_b32 v2, {D_INIT}")
        a.vm(f"buffer_load_dword v251, v2, {DB}, 0 offen sc1", "peek")
    def report():
        L = a.newlabel("LNREP")
        a(f"s_cmp_eq_u32 s{sHave}, 0\ns_cbranch_scc1 {L}")
        a(f"v_readfirstlane_b32 s{sB}, v251\ns_nop 3\ns_cmp_ge_u32 s{sB}, {2*NINIT}\ns_cselect_b32 s{sInit}, 1, s{sInit}")
        keep = list(a.vmq)
        wait_init(a, 2)
        if diag: a("s_memrealtime s[76:77]")
        a(f"s_lshl_b32 s{sB}, s{sTask}, 7\ns_add_u32 s{sB}, s{sB}, {LNF}")
        flag_store(a, f"s{sB}", 1, 2)
        a.vmq = keep
        a.label(L)
    a(f"s_cmp_ge_u32 s{sRole}, 220\ns_cbranch_scc1 G1_IDLE")
    if EXP[0]:
        kmin, n = EXP[0]
        a(f"s_cmp_lt_u32 s{sKind}, {kmin}\ns_cbranch_scc1 G1_EXP")
        peek(); a.wait_vm_all(True); report(); a(f"s_mov_b32 s{sHave}, 0")
        for _ in range(n): a("s_sleep 127")
        a.label("G1_EXP")
    a.vmq = []
    a(f"s_lshl_b32 s30, s{sJ}, 2\ns_add_u32 s30, s30, s{sW}")
    layernorm(a, 30, False, G1_XBUF, lambda: [peek()] + [issue(c) for c in range(3)], lambda: (a.wait_vm("peek"), report()))
    W = lambda f, s: 4 * (f * 16 + s)
    for c in range(8):
        a.wait_vm(("w", c))
        for s_ in range(2):
            for f in range(4):
                for p in range(2):
                    a.ds(f"ds_read_b64_tr_b16 {ar(W(f, 2*c+s_) + 2*p, 2)}, v{246+f} offset:{(c%3)*8192 + (32*s_+4*p)*128}")
        a.wait_ds_all()
        if c + 3 < 8: issue(c + 3)
    if diag: a("s_memrealtime s[64:65]")
    vBias = 112
    for r in range(16): a(f"v_mov_b32 v{vBias+r}, 0")
    a(f"s_cmp_lg_u32 s{sKind}, 3\ns_cbranch_scc1 G1_NOBIAS")
    a(f"""
    s_mov_b32 s12, s56
    s_mov_b32 s13, s57
    s_mov_b32 s14, 3584
    s_and_b32 s{sA}, s{sSl}, 15
    s_lshl_b32 s{sA}, s{sA}, 9
    s_lshl_b32 s{sB}, s{sW}, 7
    s_add_u32 s{sA}, s{sA}, s{sB}
    v_lshlrev_b32 v4, 3, v241
    """)
    for f in range(4): a(f"buffer_load_dwordx2 {vr(8+2*f,2)}, v4, s[12:15], s{sA} offen offset:{f*32}")
    a("s_waitcnt vmcnt(0)")
    for f in range(4):
        for k in range(2):
            a(f"v_lshlrev_b32 v{vBias+4*f+2*k}, 16, v{8+2*f+k}\nv_and_b32 v{vBias+4*f+2*k+1}, 0xffff0000, v{8+2*f+k}")
    a.label("G1_NOBIAS")
    verdict(a)
    if diag: a("s_memtime s[96:97]")
    a(f"""
    v_lshlrev_b32 v4, 4, v0
    v_add_u32 v5, {G1_XBUF}, v4
    s_lshl_b32 s{sXs}, s{sJ}, 15
    s_lshl_b32 s{sA}, s{sW}, 13
    s_add_u32 s{sXs}, s{sXs}, s{sA}
    s_add_u32 s{sXs}, s{sXs}, {XN}
    s_lshl_b32 s{sFl}, s{sRole}, 7
    s_add_u32 s{sFl}, s{sFl}, {G1F}
    s_and_b32 s{sA}, s{sSl}, 15
    s_lshl_b32 s{sA}, s{sA}, 1
    s_lshr_b32 s{sB}, s{sW}, 1
    s_add_u32 s{sA}, s{sA}, s{sB}             ; head
    s_lshl_b32 s{sB}, s{sJ}, 5
    s_add_u32 s{sA}, s{sA}, s{sB}
    s_lshl_b32 s{sOut}, s{sA}, 13
    s_and_b32 s{sB}, s{sW}, 1
    """)
    sLb = 26
    a(f"s_lshl_b32 s{sLb}, s{sW}, 13")
    def xdma1(par, i):
        a(f"s_add_u32 m0, s{sLb}, {G1_XBUF + par*32768 + i*1024}")
        a(f"s_add_u32 s{sXs}, s{sXs}, {1024 if i else 4*32768 - 7*1024}")
        a.vm(f"buffer_load_dwordx4 v4, {WS}, s{sXs} offen lds", "x")
    a(f"s_add_u32 s{sXs}, s{sXs}, {7*1024}")
    a(f"s_cmp_eq_u32 s{sKind}, 1\ns_cbranch_scc1 G1_V\ns_cmp_eq_u32 s{sKind}, 3\ns_cbranch_scc1 G1_H")
    for kind in ("QK", "V", "H"):
        a.label(f"G1_{kind}")
        if kind == "QK":
            a(f"s_lshl_b32 s{sB}, s{sB}, 10\ns_add_u32 s{sOut}, s{sOut}, s{sB}")
            a(f"s_mov_b32 s{sB}, {QIMG}\ns_cmp_eq_u32 s{sKind}, 0\ns_cselect_b32 s{sB}, {KIMG}, s{sB}\ns_add_u32 s{sOut}, s{sOut}, s{sB}")
            step = 4 * 32 * 8192
        elif kind == "V":
            a(f"s_lshl_b32 s{sB}, s{sB}, 12\ns_add_u32 s{sOut}, s{sOut}, s{sB}\ns_add_u32 s{sOut}, s{sOut}, {VIMG}")
            step = 4 * 32 * 8192
        else:
            a(f"s_and_b32 s{sA}, s{sSl}, 15\ns_lshl_b32 s{sA}, s{sA}, 2\ns_add_u32 s{sA}, s{sA}, s{sW}\ns_lshl_b32 s{sA}, s{sA}, 11")
            a(f"s_mul_i32 s{sB}, s{sJ}, {2*56*1024}\ns_add_u32 s{sOut}, s{sA}, s{sB}\ns_add_u32 s{sOut}, s{sOut}, {HIMG}")
            step = 4 * 2 * 56 * 1024
        acc = lambda par, mt, f: 128 + par * 32 + (mt * 4 + f) * 4
        vX = lambda s, mt: 16 + ((s % 3) * 2 + mt) * 4
        vS = 48
        def epilogue(par):
            jobs = []
            for n in range(4):
                if kind == "QK": mt, t = n >> 1, n & 1; srcs = (acc(par, mt, t), acc(par, mt, t + 2)); off = mt * 4096 + t * 2048
                elif kind == "V": srcs = (acc(par, 0, n), acc(par, 1, n)); off = n * 1024
                else: mt, t = n >> 1, n & 1; srcs = (acc(par, mt, 2 * t), acc(par, mt, 2 * t + 1)); off = mt * 56 * 1024 + t * 1024
                d = vS + 4 * n
                for h_ in range(2):
                    for k in range(2):
                        r = srcs[h_] + 2 * k
                        if kind == "H":
                            jobs.append(lambda r=r: a(f"v_max_f32 v{r}, 0, v{r}\nv_max_f32 v{r+1}, 0, v{r+1}"))
                            jobs.append(lambda r=r: a(f"v_mul_f32 v{r}, v{r}, v{r}\nv_mul_f32 v{r+1}, v{r+1}, v{r+1}"))
                            jobs.append(lambda r=r, d=d, h_=h_, k=k: a(f"v_cvt_pk_bf16_f32 v{d+2*h_+k}, v{r}, v{r+1}"))
                        else:
                            jobs.append(lambda r=r, d=d, h_=h_, k=k: a(f"v_cvt_pk_bf16_f32 v{d+2*h_+k}, v{r}, v{r+1}"))
                def st(d=d, off=off):
                    a(f"s_add_u32 s{sA}, s{sOut}, {off}")
                    a.vm(f"buffer_store_dwordx4 {vr(d,4)}, v4, {WS}, s{sA} offen sc1", "st")
                jobs.append(st)
            jobs.append(lambda: a(f"s_add_u32 s{sOut}, s{sOut}, {step}"))
            return jobs
        def publish(val):
            L = a.newlabel("G1F")
            a(f"s_cmp_lg_u32 s{sW}, 0\ns_cbranch_scc1 {L}")
            wait_init(a, 8)
            if val is None: a(f"s_sub_u32 s{sA}, s{sN}, 2\ns_max_u32 s{sA}, s{sA}, 1"); val = f"s{sA}"
            flag_store(a, f"s{sFl}", val, 8)
            a.label(L)
        def segment(par, n):
            a("s_waitcnt vmcnt(4)" if n == 2 else "s_waitcnt vmcnt(0) lgkmcnt(0)"); a.vmq = []; a.dsq = []
            a("s_barrier")
            rd = lambda s: [a.ds(f"ds_read_b128 {vr(vX(s,mt),4)}, v5 offset:{par*32768 + s*2048 + mt*1024}", ("x", s)) for mt in range(2)]
            rd(0); rd(1)
            if n == 1: publish(1)
            if n == 2: publish(None)
            jobs = epilogue(1 - par) if n == 2 else []
            for s in range(16):
                if s + 2 < 16: rd(s + 2)
                a.wait_ds(("x", s))
                for mt in range(2):
                    for f in range(4):
                        d = acc(par, mt, f)
                        c = (vr(vBias + 4 * f, 4) if kind == "H" else "0") if s == 0 else vr(d, 4)
                        if kind == "V": a(f"v_mfma_f32_16x16x32_bf16 {vr(d,4)}, {vr(vX(s,mt),4)}, {ar(W(f,s),4)}, {c}")
                        else: a(f"v_mfma_f32_16x16x32_bf16 {vr(d,4)}, {ar(W(f,s),4)}, {vr(vX(s,mt),4)}, {c}")
                        if n and s < 8 and mt == 0 and f == 3: xdma1(1 - par, s)
                        elif jobs and s >= 8: jobs.pop(0)()
            assert not jobs
            if n == 1: a("s_waitcnt vmcnt(0)")
            a(f"s_add_u32 s{sN}, s{sN}, 1")
        a(f"s_mov_b32 s{sN}, 0")
        segment(0, 0)
        a.nop(8)
        for j in epilogue(0): j()
        if HOLD[0]:
            a("s_waitcnt vmcnt(0)\ns_barrier")
            publish(1)
        L = a.newlabel("G1LN")
        a(f"s_cmp_lg_u32 s{sW}, 0\ns_cbranch_scc1 {L}")
        wait_init(a, 8)
        a(f"v_lshrrev_b32 v8, 2, v0\nv_lshlrev_b32 v8, 11, v8\nv_and_b32 v9, 3, v0\nv_lshl_add_u32 v8, v9, 7, v8\ns_lshl_b32 s{sA}, s{sJ}, 9\ns_add_u32 s{sA}, s{sA}, {LNF}")
        poll_ge(a, f"buffer_load_dword v9, v8, {WS}, s{sA} offen sc1", [9], 1, "LN", sleep=2)
        if HOLD[0]:
            wait_init(a, 8)
            a(f"s_and_b32 s{sA}, s{sRole}, 31\ns_lshl_b32 s{sA}, s{sA}, 7\ns_add_u32 s{sA}, s{sA}, {CHF + 64}\nv_mov_b32 v8, 0")
            if HOLD[0] == 1:
                publish_now = a.newlabel("PUB")
            poll_ge(a, f"buffer_load_dword v9, v8, {WS}, s{sA} offen sc1", [9], 1, "STG", sleep=8)
        a.label(L)
        a("s_barrier")
        if diag: a("s_memrealtime s[66:67]")
        for i in range(8): xdma1(1, i)
        segment(1, 1)
        a.label(f"G1_LOOP_{kind}")
        segment(0, 2)
        segment(1, 2)
        a(f"s_cmp_lt_u32 s{sN}, 16\ns_cbranch_scc1 G1_LOOP_{kind}")
        a.label(f"G1_END_{kind}")
        a.nop(8)
        for j in epilogue(1): j()
        a.wait_vm_all(True)
        a("s_barrier")
        L = a.newlabel("G1F")
        a(f"s_cmp_lg_u32 s{sW}, 0\ns_cbranch_scc1 {L}")
        flag_store(a, f"s{sFl}", 16, 8)
        a.label(L)
        a.vmq = []; a.dsq = []
        a("s_branch G1_DONE")
    a.label("G1_IDLE")
    peek()
    a.wait_vm_all(True)
    report()
    verdict(a)
    a.label("G1_DONE")

def attention(a, diag=False):
    sSeg, sQ, sKm, sVm, sO, sCh, sAt, sCnt = 18, 19, 20, 21, 22, 23, 24, 25
    sCC = 30
    sMask = 40
    c = (128 ** -0.5) * math.log2(math.e)
    a(f"""
    s_mov_b32 s{sCC}, {fbits(c):#x}
    s_mov_b32 s{sCC+1}, {fbits(c):#x}
    v_lshlrev_b32 v4, 4, v0
    v_and_b32 v5, 0x3d, v0
    v_lshlrev_b32 v5, 4, v5
    v_bfe_u32 v6, v0, 1, 1
    v_lshl_add_u32 v5, v6, 3, v5
    v_and_b32 v6, 15, v0
    v_lshrrev_b32 v7, 4, v0
    v_lshlrev_b32 v7, 2, v7
    """)
    for r in range(4):
        a(f"v_add_u32 v8, {r}, v7\nv_cmp_le_u32 s[{sMask+2*r}:{sMask+2*r+1}], v8, v6")
    a(f"""
    s_lshr_b32 s{sA}, s{sRole}, 1
    s_lshl_b32 s{sA}, s{sA}, 2
    s_add_u32 s{sA}, s{sA}, s{sW}
    s_lshl_b32 s{sA}, s{sA}, 7
    s_add_u32 s{sA}, s{sA}, {G1F}
    v_min_u32 v8, 2, v0
    v_lshlrev_b32 v8, 13, v8
    """)
    poll_ge(a, f"buffer_load_dword v9, v8, {WS}, s{sA} offen sc1", [9], 16, "QKV")
    a(f"""
    s_mov_b32 s{sSeg}, s{sW}
    s_lshl_b32 s{sA}, s{sW}, 5
    s_add_u32 s{sA}, s{sA}, s{sRole}
    s_lshl_b32 s{sQ}, s{sA}, 13
    s_lshl_b32 s{sKm}, s{sA}, 12
    s_add_u32 s{sKm}, s{sKm}, {KMEM}
    s_lshl_b32 s{sVm}, s{sA}, 11
    s_add_u32 s{sVm}, s{sVm}, {VMEM}
    s_lshl_b32 s{sO}, s{sW}, 18
    s_lshl_b32 s{sB}, s{sRole}, 12
    s_add_u32 s{sO}, s{sO}, s{sB}
    s_add_u32 s{sO}, s{sO}, {OIMG}
    s_lshl_b32 s{sCh}, s{sRole}, 7
    s_add_u32 s{sCh}, s{sCh}, {CHF}
    s_lshl_b32 s{sAt}, s{sA}, 7
    s_add_u32 s{sAt}, s{sAt}, {ATF}
    s_mov_b32 s{sCnt}, 0
    v_mov_b32 v10, 0
    """)
    vQ, vK, vV, vKM, vVM = 16, 48, 80, 112, 128
    ONE = 136
    S = lambda qt, kt: 140 + (qt * 3 + kt) * 4
    PX = lambda qt: 164 + qt * 4
    PM = lambda qt: 172 + qt * 4
    L_ = lambda qt: 180 + qt * 4
    O = lambda qt, ft: 188 + (qt * 8 + ft) * 4
    for r in range(4): a(f"v_mov_b32 v{ONE+r}, 0x3f803f80")
    for qt in range(2): a(f"v_mov_b32 v{PM(qt)+1}, 0\nv_mov_b32 v{PM(qt)+2}, 0")
    mf = lambda d, A, B, c_: a(f"v_mfma_f32_16x16x32_bf16 {vr(d,4)}, {vr(A,4)}, {vr(B,4)}, {c_}")
    mf16 = lambda d, A, B, c_: a(f"v_mfma_f32_16x16x16_bf16 {vr(d,4)}, {vr(A,2)}, {vr(B,2)}, {c_}")
    if EARLY[0]:
        a(f"s_cmp_lt_u32 s{sW}, 2\ns_cbranch_scc1 AT_LOOP")
        for r in range(4): a(f"v_mov_b32 v{vK+r}, -1")
        for qt in range(2):
            a(f"s_add_u32 s{sA}, s{sO}, {15*4*2*128*1024 + qt*128*1024}")
            for i in range(4): a(f"buffer_store_dwordx4 {vr(vK,4)}, v4, {WS}, s{sA} offen offset:{i*1024} sc1")
        a.nop(2)
    a.label("AT_LOOP")
    for (base, img) in ((vK, KIMG), (vQ, QIMG), (vV, VIMG)):
        for hf in range(2):
            a(f"s_add_u32 s{sA}, s{sQ}, {img + hf*4096}")
            for i in range(4):
                a.vm(f"buffer_load_dwordx4 {vr(base+16*hf+4*i,4)}, v4, {WS}, s{sA} offen offset:{i*1024} sc1", ("in", base))
    a.wait_vm(("in", vQ))
    for (qt, kt) in ((0, 0), (1, 0), (1, 1)):
        for s in range(4):
            mf(S(qt, kt), vK + 16 * kt + 4 * s, vQ + 16 * qt + 4 * s, "0" if s == 0 else vr(S(qt, kt), 4))
    a(f"s_add_u32 s{sB}, s{sSeg}, 1")
    if EARLY[0] == 2: a(f"s_min_u32 s{sB}, s{sB}, 61")
    poll_ge(a, f"buffer_load_dword v9, v10, {WS}, s{sCh} offen sc1", [9], f"s{sB}", "CH", sleep=SLEEP[0])
    def kmload():
        for i in range(4): a.vm(f"buffer_load_dwordx4 {vr(vKM+4*i,4)}, v4, {WS}, s{sKm} offen offset:{i*1024} sc1", "km")
        for i in range(4): a.vm(f"buffer_load_dwordx2 {vr(vVM+2*i,2)}, v5, {WS}, s{sKm} offen offset:{i*1024} sc1", "vm")
    if diag: a("s_memrealtime s[72:73]")
    kmload()
    a("v_mov_b32 v11, 0xff800000")
    for (qt, kt) in ((0, 0), (1, 1)):
        for r in range(4):
            a(f"v_cndmask_b32 v{S(qt,kt)+r}, v11, v{S(qt,kt)+r}, s[{sMask+2*r}:{sMask+2*r+1}]")
    a(f"v_max3_f32 v12, v{S(0,0)}, v{S(0,0)+1}, v{S(0,0)+2}\nv_max_f32 v12, v12, v{S(0,0)+3}")
    a(f"v_max3_f32 v14, v{S(1,0)}, v{S(1,0)+1}, v{S(1,0)+2}\nv_max3_f32 v14, v14, v{S(1,0)+3}, v{S(1,1)}")
    a(f"v_max3_f32 v14, v14, v{S(1,1)+1}, v{S(1,1)+2}\nv_max_f32 v14, v14, v{S(1,1)+3}")
    if EARLY[0]:
        a(f"s_cmp_lt_u32 s{sSeg}, 62\ns_cbranch_scc1 AT_KMOK\ns_mov_b32 s{sD}, 0")
        a.label("AT_KMCHK")
        a("s_waitcnt vmcnt(0)")
        rs = list(range(vKM, vKM + 24))
        a(f"v_max3_u32 v13, v{rs[0]}, v{rs[1]}, v{rs[2]}\nv_max3_u32 v15, v{rs[3]}, v{rs[4]}, v{rs[5]}")
        for k in range(6, 22, 4): a(f"v_max3_u32 v13, v13, v{rs[k]}, v{rs[k+1]}\nv_max3_u32 v15, v15, v{rs[k+2]}, v{rs[k+3]}")
        a(f"v_max3_u32 v13, v13, v{rs[22]}, v{rs[23]}\nv_max_u32 v13, v13, v15\nv_cmp_eq_u32 vcc, -1, v13\ns_cbranch_vccz AT_KMOK")
        a(f"s_add_u32 s{sD}, s{sD}, 1\ns_cmp_gt_u32 s{sD}, {POLL_BOUND}\ns_cbranch_scc1 AT_KMOK")
        keep = list(a.vmq); kmload(); a.vmq = keep
        a("s_branch AT_KMCHK")
        a.label("AT_KMOK")
    a.wait_vm("km")
    for qt in range(2):
        for s in range(4):
            mf(S(qt, 2), vKM + 4 * s, vQ + 16 * qt + 4 * s, "0" if s == 0 else vr(S(qt, 2), 4))
    a.nop(8)
    for qt in range(2):
        a(f"v_max3_f32 v{12+2*qt}, v{12+2*qt}, v{S(qt,2)+2}, v{S(qt,2)+3}")
    for op in ("v_permlane32_swap_b32", "v_permlane16_swap_b32"):
        a(f"v_mov_b32 v13, v12\nv_mov_b32 v15, v14\ns_nop 0\n{op} v12, v13\n{op} v14, v15\nv_max_f32 v12, v12, v13\nv_max_f32 v14, v14, v15")
    a(f"v_mul_f32 v12, s{sCC}, v12\nv_mul_f32 v14, s{sCC}, v14")
    for qt in range(2):
        m = 12 + 2 * qt
        prs = [S(qt, 2) + 2, S(qt, 0), S(qt, 0) + 2] + ([S(qt, 1), S(qt, 1) + 2] if qt else [])
        for r in prs:
            a(f"v_pk_fma_f32 {vr(r,2)}, {vr(r,2)}, s[{sCC}:{sCC+1}], {vr(m,2)} op_sel_hi:[1,1,0] neg_lo:[0,0,1] neg_hi:[0,0,1]")
        for r in prs: a(f"v_exp_f32 v{r}, v{r}\nv_exp_f32 v{r+1}, v{r+1}")
        a.nop(1)
        a(f"v_cvt_pk_bf16_f32 v{PM(qt)}, v{prs[0]}, v{prs[0]+1}\nv_cvt_pk_bf16_f32 v{PM(qt)+3}, v{prs[0]}, v{prs[0]+1}")
        for k, r in enumerate(prs[1:]): a(f"v_cvt_pk_bf16_f32 v{PX(qt)+k}, v{r}, v{r+1}")
    a.wait_vm_all()
    a.nop(2)
    for qt in range(2):
        mf16(L_(qt), ONE, PM(qt), "0")
        for ft in range(8): mf16(O(qt, ft), vVM + 2 * (ft >> 1), PM(qt) + 2 * (ft & 1), "0")
        m2 = mf if qt else mf16
        m2(L_(qt), ONE, PX(qt), vr(L_(qt), 4))
        for ft in range(8): m2(O(qt, ft), vV + 4 * ft, PX(qt), vr(O(qt, ft), 4))
    for qt in range(2):
        if qt: a.nop(4)
        a(f"v_rcp_f32 v12, v{L_(qt)}")
        if qt: a(f"s_add_u32 s{sA}, s{sO}, {128*1024}")
        else: a.nop(1)
        for pr in range(4):
            d = vK + 16 * qt + 4 * pr
            for h_ in range(2):
                for k in range(2):
                    r = O(qt, 2 * pr + h_) + 2 * k
                    a(f"v_pk_mul_f32 {vr(r,2)}, {vr(r,2)}, v[12:13] op_sel_hi:[1,0]")
                    a(f"v_cvt_pk_bf16_f32 v{d+2*h_+k}, v{r}, v{r+1}")
            a.vm(f"buffer_store_dwordx4 {vr(d,4)}, v4, {WS}, s{sA if qt else sO} offen offset:{pr*1024} sc1", "o")
    a(f"s_add_u32 s{sCnt}, s{sCnt}, 1")
    if EARLY[0]: a(f"s_cmp_ge_u32 s{sSeg}, 62\ns_cbranch_scc1 AT_FLAG")
    a.wait_vm_all()
    a.label("AT_FLAG")
    if diag: a("s_memrealtime s[74:75]")
    flag_store(a, f"s{sAt}", f"s{sCnt}", 8)
    a(f"""
    s_add_u32 s{sQ}, s{sQ}, {4*32*8192}
    s_add_u32 s{sKm}, s{sKm}, {4*32*4096}
    s_add_u32 s{sVm}, s{sVm}, {4*32*2048}
    s_add_u32 s{sO}, s{sO}, {4*2*128*1024}
    s_add_u32 s{sSeg}, s{sSeg}, 4
    s_cmp_lt_u32 s{sSeg}, 64
    s_cbranch_scc1 AT_LOOP
    """)
    a.vmq = []; a.dsq = []

def gemm2(a, diag=False):
    sCs, sU, sO, sH_, sX, sN, sPar = 18, 19, 20, 21, 22, 23, 24
    srd(a, 12, "Wo", 4096 * 1024)
    srd(a, 48, "w2", 1792 * 1024)
    srd(a, 52, "x", 2048 * 1024)
    srd(a, 56, "out", 2048 * 1024)
    srd(a, 60, "b2", 1024)
    a(f"""
    s_and_b32 s{sCs}, s{sRole}, 15
    s_lshr_b32 s{sU}, s{sRole}, 4
    v_and_b32 v100, 15, v0
    v_lshrrev_b32 v101, 4, v0
    v_and_b32 v102, 3, v0
    v_bfe_u32 v103, v0, 2, 2
    v_lshrrev_b32 v4, 2, v0
    v_lshlrev_b32 v4, 10, v4
    v_lshl_add_u32 v4, v102, 4, v4
    s_lshl_b32 s{sA}, s{sCs}, 6
    v_add_u32 v104, s{sA}, v4
    v_lshl_add_u32 v4, v101, 2, v103
    v_lshlrev_b32 v4, 6, v4
    v_lshl_add_u32 v4, v102, 4, v4
    s_mul_i32 s{sA}, s{sW}, 32768
    v_add_u32 v105, s{sA}, v4
    s_waitcnt lgkmcnt(0)
    """)
    Wo_ = lambda s, T: ar(8 * s + 4 * T, 4)
    VW2 = 144
    W2_ = lambda s, T: vr(VW2 + 8 * s + 4 * T, 4)
    chunks = [("o", c, 8) for c in range(8)] + [("2", c, 8) for c in range(3)] + [("2", 3, 4)]
    a(f"s_lshl_b32 s{sN}, s{sW}, 20\ns_mul_i32 s{sB}, s{sW}, {448*1024}")
    def issue(n):
        m, c, cnt = chunks[n]
        for i in range(cnt):
            a(f"s_add_u32 m0, s{sA}, {(n%4)*8192 + i*1024}\ns_nop 0")
            so = sN if m == "o" else sB
            a.vm(f"buffer_load_dwordx4 v104, {'s[12:15]' if m == 'o' else 's[48:51]'}, s{so} offen lds", ("w", n))
            a(f"s_add_u32 s{so}, s{so}, {16*1024}")
    for n in range(4): issue(n)
    for n, (m, c, cnt) in enumerate(chunks):
        a.wait_vm(("w", n))
        for s_ in range(cnt // 2):
            for T in range(2):
                for p in range(2):
                    base = (8 * (4 * c + s_) + 4 * T + 2 * p)
                    dst = ar(base, 2) if m == "o" else vr(VW2 + base, 2)
                    a.ds(f"ds_read_b64_tr_b16 {dst}, v105 offset:{(n%4)*8192 + (32*s_+16*p)*64 + T*8}")
        a.wait_ds_all()
        if n + 4 < len(chunks): issue(n + 4)
    if diag: a("s_memrealtime s[68:69]")
    vB = 8
    a(f"""
    v_lshlrev_b32 v4, 4, v101
    s_lshl_b32 s{sA}, s{sCs}, 6
    buffer_load_dwordx4 v[16:19], v4, s[60:63], s{sA} offen
    v_lshl_add_u32 v6, v100, 10, v4
    v_add_u32 v6, s{sA}, v6
    v_lshlrev_b32 v4, 4, v0
    v_add_u32 v5, 131072, v4
    v_and_b32 v7, 7, v0
    v_lshlrev_b32 v7, 7, v7
    s_waitcnt vmcnt(0)
    """)
    for k in range(4): a(f"v_lshlrev_b32 v{vB+2*k}, 16, v{16+k}\nv_and_b32 v{vB+2*k+1}, 0xffff0000, v{16+k}")
    a(f"v_min_u32 v16, 27, v0\nv_lshlrev_b32 v16, 7, v16\ns_mov_b32 s{sA}, {G1F + 48*4*128}")
    poll_ge(a, f"buffer_load_dword v17, v16, {WS}, s{sA} offen sc1", [17], 16, "H")
    a(f"s_mov_b32 s{sPar}, 0")
    a("s_barrier")
    NR = 24
    vR = lambda k: 40 + 4 * (k % NR)
    AC = 24
    a.label("G2_LOOP")
    a(f"""
    s_mul_i32 s{sH_}, s{sU}, {56*1024}
    s_mul_i32 s{sA}, s{sW}, {14*1024}
    s_add_u32 s{sH_}, s{sH_}, s{sA}
    s_add_u32 s{sH_}, s{sH_}, {HIMG}
    s_lshl_b32 s{sO}, s{sU}, 17
    s_lshl_b32 s{sA}, s{sW}, 15
    s_add_u32 s{sO}, s{sO}, s{sA}
    s_add_u32 s{sO}, s{sO}, {OIMG}
    s_lshl_b32 s{sX}, s{sU}, 14
    """)
    a.vm(f"buffer_load_dwordx4 v[20:23], v6, s[52:55], s{sX} offen", "x")
    def ld(k, sbase, n):
        if n and n % 4 == 0: a(f"s_add_u32 s{sbase}, s{sbase}, 4096")
        a.vm(f"buffer_load_dwordx4 {vr(vR(k),4)}, v4, {WS}, s{sbase} offen offset:{(n%4)*1024} sc1", ("a", k))
    for n in range(14): ld(n, sH_, n)
    for n in range(14):
        a.wait_vm(("a", n))
        for T in range(2):
            a(f"v_mfma_f32_16x16x32_bf16 {vr(AC+4*T,4)}, {W2_(n,T)}, {vr(vR(n),4)}, {'0' if n == 0 else vr(AC+4*T,4)}")
    a(f"""
    s_lshr_b32 s{sB}, s{sU}, 1
    s_and_b32 s{sA}, s{sB}, 3
    s_lshl_b32 s{sA}, s{sA}, 12
    s_lshl_b32 s{sC_}, s{sW}, 10
    s_add_u32 s{sA}, s{sA}, s{sC_}
    s_add_u32 s{sA}, s{sA}, {ATF}
    s_lshr_b32 s{sB}, s{sB}, 2
    s_add_u32 s{sB}, s{sB}, 1
    """)
    poll_ge(a, f"buffer_load_dword v17, v7, {WS}, s{sA} offen sc1", [17], f"s{sB}", "AT", sleep=SLEEP[0])
    if diag: a("s_memrealtime s[72:73]")
    if EARLY[0]:
        for k in range(8): a(f"v_mov_b32 v{136+k}, v{AC+k}")
        a(f"s_mov_b32 s{sN}, 0")
        a.label("G2_OPART")
    for n in range(NR): ld(n, sO, n)
    for n in range(32):
        a.wait_vm(("a", n))
        for T in range(2):
            a(f"v_mfma_f32_16x16x32_bf16 {vr(AC+4*T,4)}, {Wo_(n,T)}, {vr(vR(n),4)}, {vr(AC+4*T,4)}")
        if n + NR < 32: ld(n + NR, sO, n + NR)
    a(f"s_lshl_b32 s{sA}, s{sW}, 11\ns_add_u32 s{sA}, s{sA}, s{sPar}\nv_add_u32 v16, s{sA}, v5")
    a.nop(6)
    if EARLY[0]:
        a(f"s_cmp_lt_u32 s{sU}, 124\ns_cbranch_scc1 G2_OOK\nv_cmp_u_f32 vcc, v{AC}, v{AC}\ns_cbranch_vccz G2_OOK")
        a(f"s_add_u32 s{sN}, s{sN}, 1\ns_cmp_gt_u32 s{sN}, 256\ns_cbranch_scc1 G2_OOK")
        for k in range(8): a(f"v_mov_b32 v{AC+k}, v{136+k}")
        a(f"s_sub_u32 s{sO}, s{sO}, {7*4096}\ns_branch G2_OPART")
        a.label("G2_OOK")
    if diag: a(f"s_memrealtime s[74:75]\ns_mov_b32 s76, s{sN}")
    a.ds(f"ds_write_b128 v16, {vr(AC,4)}")
    a.ds(f"ds_write_b128 v16, {vr(AC+4,4)} offset:1024")
    a.wait_ds_all()
    a("s_barrier")
    a(f"s_cmp_lg_u32 s{sW}, 0\ns_cbranch_scc1 G2_NEXT")
    for w_ in range(1, 4):
        a.ds(f"ds_read_b128 {vr(32+8*w_,4)}, v16 offset:{w_*2048}", ("r", w_))
        a.ds(f"ds_read_b128 {vr(36+8*w_,4)}, v16 offset:{w_*2048+1024}", ("r", w_))
    for k in range(4):
        a(f"v_lshlrev_b32 v32, 16, v{20+k}\nv_and_b32 v33, 0xffff0000, v{20+k}")
        a(f"v_pk_add_f32 {vr(AC+2*k,2)}, {vr(AC+2*k,2)}, {vr(vB+2*k,2)}")
        a(f"v_pk_add_f32 {vr(AC+2*k,2)}, {vr(AC+2*k,2)}, v[32:33]")
    for w_ in range(1, 4):
        a.wait_ds(("r", w_))
        for k in range(4): a(f"v_pk_add_f32 {vr(AC+2*k,2)}, {vr(AC+2*k,2)}, {vr(32+8*w_+2*k,2)}")
    for k in range(4): a(f"v_cvt_pk_bf16_f32 v{36+k}, v{AC+2*k}, v{AC+2*k+1}")
    a(f"buffer_store_dwordx4 v[36:39], v6, s[56:59], s{sX} offen {OUTF[0]}")
    a.label("G2_NEXT")
    a(f"""
    s_xor_b32 s{sPar}, s{sPar}, 8192
    s_add_u32 s{sU}, s{sU}, {NSETS}
    s_cmp_lt_u32 s{sU}, 128
    s_cbranch_scc1 G2_LOOP
    """)
    a.vmq = []; a.dsq = []
```

```python
import sys
from asm import *
from layout import *
import chain as C
import workers as Wk
NAME = "parallel_sum__memory_aug_recurrent_mem_tr__dense_activation_squared_relu__prompt"
CH = dict(pre_bar=4, v_0=0, v_pre=3, o_pre=2, dlyA=(56, 56), pboth=1, dlyB=12, w1c=12, pst0=1, pbar=1, nrA=3, bound=1 << 15, depA=(2, 2), depB=2, gapA=24, gapB=16, x0=0, xw_only=1, jbar=1, jobs='S', j0=4, jstr=9, jw=2, a_burst=2, r_pre=2, kx_in=5, nt='', pf0=(52, 54, 48))
sDB = 4
sInit, sReady, sMode, sXcc, sTent = 84, 85, 86, 87, 83
sCounted, sLost = 29, 79
sA, sB, sC_, sD = Wk.sA, Wk.sB, Wk.sC_, Wk.sD
WS = Wk.WS
DB = f"s[{sDB}:{sDB+3}]"
ROLE_LDS = 163840 - 16
MODE_BOUND = 2000

def wait_init(a, v=2):
    L = a.newlabel("INIT")
    a(f"s_cmp_lg_u32 s{sInit}, 0\ns_cbranch_scc1 {L}")
    a(f"v_mov_b32 v{v}, {D_INIT}")
    Wk.poll_ge(a, f"buffer_load_dword v{v+1}, v{v}, {DB}, 0 offen sc1", [v + 1], 2 * NINIT, "INIT", sleep=4)
    a(f"s_mov_b32 s{sInit}, 1")
    a.label(L)

def atomic(a, op, off, val, dst, cmp=None):
    a(f"s_mov_b64 exec, 1\nv_mov_b32 v20, {val}\nv_mov_b32 v22, {off}")
    if cmp is not None:
        a(f"v_mov_b32 v21, {cmp}\nbuffer_atomic_cmpswap v[20:21], v22, {DB}, 0 offen sc0")
    else:
        a(f"buffer_atomic_{op} v20, v22, {DB}, 0 offen sc0")
    a(f"s_waitcnt vmcnt(0)\nv_readfirstlane_b32 s{dst}, v20\ns_mov_b64 exec, -1\ns_nop 3")

def claim(a, name, sRes, sOff):
    a.label(f"CLAIM_{name}")
    a(f"s_lshl_b32 s{sC_}, 1, s{sA}")
    atomic(a, "or", f"s{sOff}", f"s{sC_}", sB)
    a.label(f"CLAIM_{name}_R")
    a(f"s_and_b32 s{sD}, s{sB}, s{sC_}\ns_or_b32 s{sB}, s{sB}, s{sC_}\ns_mov_b32 s{sRes}, s{sA}")
    a(f"s_cmp_eq_u32 s{sD}, 0\ns_cbranch_scc1 CLAIM_{name}_E")
    a(f"s_mov_b32 s{sRes}, -1\ns_cmp_eq_u32 s{sB}, -1\ns_cbranch_scc1 CLAIM_{name}_E")
    a(f"s_ff0_i32_b32 s{sA}, s{sB}\ns_branch CLAIM_{name}")
    a.label(f"CLAIM_{name}_E")

def bcast(a, s):
    L = a.newlabel("BC")
    a(f"v_mov_b32 v22, {ROLE_LDS}")
    a(f"s_cmp_lg_u32 s{Wk.sW}, 0\ns_cbranch_scc1 {L}\nv_mov_b32 v20, s{s}\nds_write_b32 v22, v20\ns_waitcnt lgkmcnt(0)")
    a.label(L)
    a(f"s_barrier\nds_read_b32 v20, v22\ns_waitcnt lgkmcnt(0)\nv_readfirstlane_b32 s{s}, v20\ns_barrier")

def gen(P=CH, diag=False, force_slow=False):
    a = Asm()
    def mark(a, word, neg=False):
        if not P.get("marks"): return
        a(f"s_memrealtime s[98:99]\ns_waitcnt lgkmcnt(0)")
        if neg: a("s_not_b32 s98, s98")
        a(f"s_mov_b64 exec, 1\nv_mov_b32 v10, s98\nv_mov_b32 v11, {4*word}\nbuffer_atomic_umax v10, v11, {DB}, 0 offen\ns_mov_b64 exec, -1")
    Wk.SLEEP[0] = P.get('sleep', 1); Wk.PREFETCH[0] = P.get('pf', ()); Wk.EXP[0] = P.get('exp'); Wk.EARLY[0] = P.get('early', 2); Wk.HOLD[0] = P.get('hold', 0); Wk.OUTF[0] = P.get('outf', 'sc1')
    sR = Wk.sRole
    a(f"""
    s_cmp_ge_u32 s2, 256
    s_cbranch_scc1 L_END
    s_load_dwordx2 s[{Wk.sWS}:{Wk.sWS+1}], s[0:1], {KA['ws']}
    s_load_dwordx2 s[{sDB}:{sDB+1}], s[0:1], {KA['dbg']}
    s_getreg_b32 s{sXcc}, hwreg(HW_REG_XCC_ID, 0, 4)
    s_mov_b32 s{Wk.sWS+2}, {WS_BYTES}
    s_mov_b32 s{Wk.sWS+3}, 0x20000
    s_mov_b32 s{sDB+2}, 256
    s_mov_b32 s{sDB+3}, 0x20000
    s_mov_b32 s{Wk.sDead}, 0
    s_mov_b32 s{sInit}, 0
    s_mov_b32 s82, 0
    s_mov_b32 s{sLost}, 0
    v_mov_b32 v250, 0
    v_lshrrev_b32 v1, 6, v0
    v_lshlrev_b32 v8, 4, v0
    v_readfirstlane_b32 s{Wk.sW}, v1
    v_and_b32 v0, 63, v0
    v_mov_b32 v12, -1
    v_mov_b32 v13, -1
    v_mov_b32 v14, -1
    v_mov_b32 v15, -1
    """)
    if diag: a("s_memrealtime s[90:91]")
    CX = 9 if force_slow else P.get('cx', 3)
    sOff, sTry, sDie, sWord, sSpec = 18, 19, 80, 81, 82
    def declare(a):
        L = a.newlabel("DECL")
        a(f"s_cmp_lg_u32 s{sB}, -1\ns_cbranch_scc1 {L}")
        a(f"s_mov_b64 exec, 1\nv_mov_b32 v20, 1\nv_mov_b32 v21, 0\nv_mov_b32 v22, {D_MODE}\nbuffer_atomic_cmpswap v[20:21], v22, {DB}, 0 offen\ns_mov_b64 exec, -1")
        a.label(L)
    a(f"""
    s_bfe_u32 s{sR}, s2, 0x50003
    s_waitcnt lgkmcnt(0)
    """)
    if P.get("marks"):
        a(f"s_cmp_lg_u32 s{Wk.sW}, 0\ns_cbranch_scc1 L_MK0\ns_and_b32 s3, s2, 15\ns_cmp_lg_u32 s3, 0\ns_cbranch_scc1 L_MK0")
        mark(a, 4, True)
        a.label("L_MK0")
    a(f"""
    s_mov_b32 s{sTent}, s{sR}
    s_add_u32 s{sDie}, s{sXcc}, {(15 - CX) % 8}
    s_and_b32 s{sDie}, s{sDie}, 7
    s_min_u32 s{sDie}, s{sDie}, 6
    s_lshl_b32 s{sWord}, s{sDie}, 2
    s_add_u32 s{sWord}, s{sWord}, {D_WM}
    s_cmp_eq_u32 s{sXcc}, {CX}
    s_cselect_b32 s{sWord}, {D_MASK}, s{sWord}
    s_and_b32 s3, s2, 0x87
    s_cmp_lg_u32 s3, 0
    s_cbranch_scc1 L_I3
    s_xor_b32 s3, s{Wk.sW}, s{sTent}
    s_bitcmp1_b32 s3, 0
    s_cbranch_scc0 L_I3
    """)
    a(f"s_lshr_b32 s{sA}, s2, 3")
    a(f"s_lshr_b32 s3, s{Wk.sW}, 1\ns_lshl_b32 s{sA}, s{sA}, 1\ns_add_u32 s{sA}, s{sA}, s3\nv_lshlrev_b32 v9, 4, v0")
    a(f"s_lshl_b32 s3, s{sA}, 13\ns_add_u32 s3, s3, {PART}")
    for k in range(8):
        a(f"buffer_store_dwordx4 v[12:15], v9, {WS}, s3 offen offset:{(k&3)*1024} sc1")
        if k == 3: a("s_add_u32 s3, s3, 4096")
    a(f"""
    s_lshl_b32 s3, s{sA}, 10
    s_add_u32 s3, s3, {MBUF}
    buffer_store_dwordx4 v[12:15], v9, {WS}, s3 offen sc1
    s_mul_i32 s3, s{sA}, 2560
    s_add_u32 s3, s3, {FLG}
    v_mov_b32 v16, 0
    v_mov_b32 v17, 0
    v_mov_b32 v18, 0
    v_mov_b32 v19, 0
    buffer_store_dwordx4 v[16:19], v9, {WS}, s3 offen sc1
    buffer_store_dwordx4 v[16:19], v9, {WS}, s3 offen offset:1024 sc1
    s_mov_b64 exec, 0xffffffff
    buffer_store_dwordx4 v[16:19], v9, {WS}, s3 offen offset:2048 sc1
    s_mov_b64 exec, -1
    s_waitcnt vmcnt(0)
    s_mov_b64 exec, 1
    v_mov_b32 v20, 1
    v_mov_b32 v22, {D_INIT}
    buffer_atomic_add v20, v22, {DB}, 0 offen
    s_mov_b64 exec, -1
    L_I3:
    s_cmp_lg_u32 s{Wk.sW}, 0
    s_cbranch_scc1 L_I2
    s_mov_b64 exec, 1
    s_lshl_b32 s3, 1, s{sTent}
    v_mov_b32 v250, s3
    v_mov_b32 v22, s{sWord}
    buffer_atomic_or v250, v22, {DB}, 0 offen sc0
    s_mov_b64 exec, -1
    L_I2:
    s_cmp_lg_u32 s{sXcc}, {CX}
    s_cbranch_scc1 L_NOSPEC
    s_mov_b32 s{sSpec}, 1
    s_branch L_CHAIN
    L_CLOST:
    s_cmp_lg_u32 s{Wk.sW}, 0
    s_cbranch_scc1 L_ROLE
    s_mov_b32 s{sA}, s{sTent}
    s_mov_b32 s{sOff}, {D_MASK}
    """)
    claim(a, "A", sR, sOff)
    a(f"s_cmp_eq_u32 s{sR}, -1\ns_cbranch_scc1 L_WCLAIM")
    declare(a)
    a("s_branch L_ROLE")
    a.label("L_NOSPEC")
    if P.get("pf0"):
        a(f"s_xor_b32 s3, s{Wk.sW}, s{sTent}\ns_bitcmp1_b32 s3, 0\ns_cbranch_scc0 L_PF")
        a(f"s_load_dwordx4 s[48:51], s[0:1], {KA['Wq']}\ns_load_dwordx4 s[52:55], s[0:1], {KA['Wv']}\ns_mov_b32 s42, 0x400000\ns_mov_b32 s43, 0x20000")
        a(f"v_lshlrev_b32 v13, 7, v0\ns_lshr_b32 s3, s{Wk.sW}, 1\ns_add_u32 s3, s3, s2\ns_and_b32 s3, s3, 255\ns_lshl_b32 s3, s3, 14\ns_add_u32 s44, s3, 8192\ns_waitcnt lgkmcnt(0)")
        for p in P["pf0"]:
            a(f"s_mov_b32 s40, s{p}\ns_mov_b32 s41, s{p+1}\nbuffer_load_dword v252, v13, s[40:43], s3 offen\nbuffer_load_dword v252, v13, s[40:43], s44 offen")
        a.label("L_PF")
    a(f"s_lshl_b32 s{sR}, s{sDie}, 5\ns_add_u32 s{sR}, s{sR}, s{sTent}\ns_mov_b32 s{sSpec}, 1\ns_branch L_WORK")
    a.label("L_WLOST")
    a(f"s_cmp_lg_u32 s{Wk.sW}, 0\ns_cbranch_scc1 L_ROLE2")
    a.label("L_WCLAIM")
    a(f"s_mov_b32 s{sOff}, s{sDie}\ns_mov_b32 s{sTry}, 0\ns_mov_b32 s{sA}, s{sTent}")
    a.label("L_WNEXT")
    a(f"s_cmp_ge_u32 s{sOff}, 7\ns_cselect_b32 s{sB}, 7, 0\ns_sub_u32 s{sOff}, s{sOff}, s{sB}")
    a(f"s_cmp_ge_u32 s{sOff}, 7\ns_cselect_b32 s{sB}, 7, 0\ns_sub_u32 s{sOff}, s{sOff}, s{sB}")
    a(f"s_lshl_b32 s{sOff}, s{sOff}, 2\ns_add_u32 s{sOff}, s{sOff}, {D_WM}")
    claim(a, "W", sR, sOff)
    a(f"s_sub_u32 s{sOff}, s{sOff}, {D_WM}\ns_lshr_b32 s{sOff}, s{sOff}, 2")
    a(f"s_cmp_eq_u32 s{sR}, -1\ns_cbranch_scc0 L_WGOT")
    a(f"s_add_u32 s{sOff}, s{sOff}, 1\ns_add_u32 s{sTry}, s{sTry}, 1\ns_mov_b32 s{sA}, 0\ns_cmp_lt_u32 s{sTry}, 7\ns_cbranch_scc1 L_WNEXT")
    atomic(a, "cmpswap", D_MODE, 2, sB, cmp=0)
    a(f"s_mov_b32 s{sA}, 0\ns_mov_b32 s{sOff}, {D_MASK}")
    claim(a, "B", sR, sOff)
    a("s_branch L_ROLE")
    a.label("L_WGOT")
    a(f"s_lshl_b32 s{sOff}, s{sOff}, 5\ns_add_u32 s{sR}, s{sR}, s{sOff}\ns_add_u32 s{sR}, s{sR}, 32")
    def verdict(a):
        L = a.newlabel("VERD")
        a(f"s_cmp_eq_u32 s{sSpec}, 0\ns_cbranch_scc1 {L}\ns_mov_b32 s{sSpec}, 0")
        a(f"s_waitcnt vmcnt(0)\nv_readfirstlane_b32 s{sB}, v250\ns_nop 3\ns_lshr_b32 s{sB}, s{sB}, s{sTent}\ns_and_b32 s{sB}, s{sB}, 1")
        bcast(a, sB)
        a(f"s_cmp_lg_u32 s{sB}, 0\ns_cbranch_scc1 L_WLOST")
        a.label(L)
    a.label("L_ROLE")
    a.label("L_ROLE2")
    bcast(a, sR)
    a(f"s_cmp_lt_u32 s{sR}, 32\ns_cbranch_scc1 L_CHAIN")
    a(f"s_cmp_eq_u32 s{sR}, -1\ns_cbranch_scc1 L_FIN")
    a(f"s_waitcnt vmcnt(0)\ns_sub_u32 s{sR}, s{sR}, 32")
    a.label("L_WORK")
    if diag: a("s_memrealtime s[70:71]\ns_waitcnt lgkmcnt(0)\ns_mov_b32 s100, s70\ns_add_u32 s101, s16, 32")
    if diag: a("s_mov_b32 s64, 0\ns_mov_b32 s66, 0\ns_mov_b32 s68, 0\ns_mov_b32 s72, 0")
    Wk.gemm1(a, wait_init, verdict, sInit, diag)
    if diag: a("s_memtime s[78:79]")
    if P.get("marks"):
        a(f"s_cmp_lg_u32 s{Wk.sW}, 0\ns_cbranch_scc1 L_MK2\ns_and_b32 s3, s{sR}, 7\ns_cmp_lg_u32 s3, 0\ns_cbranch_scc1 L_MK2")
        mark(a, 8)
        a.label("L_MK2")
    if diag: a("s_memrealtime s[92:93]")
    wait_init(a)
    a(f"s_cmp_ge_u32 s{sR}, 192\ns_cbranch_scc1 L_FIN\ns_cmp_lt_u32 s{sR}, 160\ns_cbranch_scc1 L_G2\ns_sub_u32 s{sR}, s{sR}, 160")
    Wk.attention(a, diag)
    a("s_branch L_FIN")
    a.label("L_G2")
    Wk.gemm2(a, diag)
    if P.get("marks"):
        a(f"s_waitcnt vmcnt(0)\ns_cmp_lg_u32 s{Wk.sW}, 0\ns_cbranch_scc1 L_FIN")
        mark(a, 9)
    a("s_branch L_FIN")
    a.label("L_CHAIN")
    if diag: a("s_memrealtime s[70:71]\ns_waitcnt lgkmcnt(0)\ns_mov_b32 s100, s70\ns_mov_b32 s101, s16")
    def first_chunk(a):
        L = a.newlabel("CV")
        a(f"s_cmp_eq_u32 s{sSpec}, 0\ns_cbranch_scc1 {L}\ns_cmp_lg_u32 s{Wk.sW}, 0\ns_cbranch_scc1 {L}")
        a(f"v_readfirstlane_b32 s{sB}, v250\ns_lshl_b32 s3, 1, s{sTent}\ns_nop 2\ns_and_b32 s{sLost}, s{sB}, s3\ns_or_b32 s{sB}, s{sB}, s3")
        a(f"s_cmp_lg_u32 s{sLost}, 0\ns_cbranch_scc1 {L}")
        declare(a)
        a.label(L)
    def staged(a):
        L = a.newlabel("CV")
        a(f"s_cmp_eq_u32 s{sSpec}, 0\ns_cbranch_scc1 {L}\ns_mov_b32 s{sSpec}, 0")
        bcast(a, sLost)
        a(f"s_cmp_lg_u32 s{sLost}, 0\ns_cbranch_scc1 L_CLOST")
        a.label(L)
    sChf, sG1 = 88, 89
    def g1addr(a, lane):
        a(f"v_and_b32 v11, 3, {lane}\nv_bfe_u32 v10, {lane}, 2, 1\nv_lshlrev_b32 v10, 13, v10\nv_lshl_add_u32 v10, v11, 7, v10")
    def set_ready(a, v):
        for perm in ("quad_perm:[1,0,3,2]", "quad_perm:[2,3,0,1]", "row_half_mirror"):
            a(f"s_nop 1\nv_min_u32_dpp v{v}, v{v}, v{v} {perm} row_mask:0xf bank_mask:0xf")
        a(f"s_nop 0\nv_readfirstlane_b32 s{sReady}, v{v}\ns_nop 3\ns_lshl_b32 s{sReady}, s{sReady}, 2")
    def peek(a):
        a(f"s_lshl_b32 s{sChf}, s{C.sH}, 7\ns_add_u32 s{sChf}, s{sChf}, {CHF}")
        a(f"s_lshr_b32 s{sG1}, s{C.sH}, 1\ns_lshl_b32 s{sG1}, s{sG1}, 9\ns_add_u32 s{sG1}, s{sG1}, {G1F}")
        g1addr(a, "v0")
        a(f"v_mov_b32 v24, 0\nbuffer_load_dwordx2 v[26:27], v24, {DB}, 0 offen sc1\nbuffer_load_dword v25, v10, {WS}, s{sG1} offen sc1")
    C.prologue_a(a, P, True)
    C.prologue_b(a, P, first_chunk, staged, peek)
    a(f"s_waitcnt vmcnt(0)\nv_readfirstlane_b32 s{sMode}, v26\nv_readfirstlane_b32 s3, v27")
    set_ready(a, 25)
    a(f"s_cmp_ge_u32 s3, {2 * NINIT}\ns_cselect_b32 s{sInit}, 1, s{sInit}\ns_cselect_b32 s{sReady}, s{sReady}, 0")
    wait_init(a, 10)
    if P.get("hold"):
        a(f"s_cmp_lg_u32 s{Wk.sW}, 0\ns_cbranch_scc1 L_STG\ns_add_u32 s3, s{sChf}, 64")
        Wk.flag_store(a, "s3", 1, 10)
        a.label("L_STG")
    a(f"s_cmp_lg_u32 s{sMode}, 0\ns_cbranch_scc1 L_MODEOK\nv_mov_b32 v10, {D_MODE}")
    Wk.poll_ge(a, f"buffer_load_dword v11, v10, {DB}, 0 offen sc1", [11], 1, "MODE")
    a(f"v_readfirstlane_b32 s{sMode}, v11\ns_nop 3")
    a.label("L_MODEOK")
    if P.get("marks"):
        a(f"s_cmp_lg_u32 s{Wk.sW}, 1\ns_cbranch_scc1 L_MK1")
        mark(a, 5); mark(a, 6, True)
        a.label("L_MK1")
    if diag:
        for k in range(20, 30): a(f"s_mov_b32 s{C.sTS+k}, 0")
        a("s_memrealtime s[92:93]\ns_memtime s[96:97]")
    stubs = []
    def ready(a, w, tag, first):
        if not first and w != 2 and not (w == 3 and P.get('kxA')): return
        L = a.newlabel("RDY")
        if first: a(f"s_mov_b32 s{C.sStep}, 0")
        a(f"s_add_u32 s{C.sT0}, s{C.sStep}, {1 if first else 3}\ns_min_u32 s{C.sT0}, s{C.sT0}, 63\ns_cmp_ge_u32 s{C.sT0}, s{sReady}\ns_cbranch_scc1 {L}_S")
        a.label(L)
        stubs.append((L, first))
    def flag(a):
        if P.get("noflag"): return
        if P.get("marks"):
            L = a.newlabel("MK")
            a(f"s_and_b32 s{C.sT0}, s{C.sStep}, 15\ns_cmp_lg_u32 s{C.sT0}, 1\ns_cbranch_scc1 {L}\ns_cmp_lg_u32 s{C.sH}, 5\ns_cbranch_scc1 {L}")
            a(f"s_memrealtime s[98:99]\ns_lshr_b32 s{C.sT0}, s{C.sStep}, 4\ns_lshl_b32 s{C.sT0}, s{C.sT0}, 2\ns_add_u32 s{C.sT0}, s{C.sT0}, 40\ns_waitcnt lgkmcnt(0)")
            a(f"s_mov_b64 exec, 1\nv_mov_b32 v10, s98\nv_mov_b32 v11, s{C.sT0}\nbuffer_store_dword v10, v11, {DB}, 0 offen\ns_mov_b64 exec, -1")
            a.label(L)
        a(f"s_sub_u32 s{C.sT0}, s{C.sStep}, 1\ns_max_i32 s{C.sT0}, s{C.sT0}, 0")
        if P.get("early", 1): a(f"s_cmp_eq_u32 s{C.sStep}, 63\ns_cselect_b32 s{C.sT0}, 63, s{C.sT0}")
        Wk.flag_store(a, f"s{sChf}", f"s{C.sT0}", 10)
    def done(a, w):
        a("s_barrier" if P.get("early", 1) else "s_waitcnt vmcnt(0)\ns_barrier")
        if w == 0: Wk.flag_store(a, f"s{sChf}", 64, 10)
        if w == 1: mark(a, 7)
        a.vmq = []
        a("s_branch L_FIN")
        for L, first in stubs:
            a.label(L + "_S")
            a(f"s_add_u32 s{C.sT0}, s{C.sStep}, 1\ns_min_u32 s{C.sT0}, s{C.sT0}, 63\ns_lshr_b32 s{C.sT0}, s{C.sT0}, 2\ns_add_u32 s{C.sT0}, s{C.sT0}, 1")
            a(f"v_lshrrev_b32 v10, 3, v{C.vL8}")
            g1addr(a, "v10")
            Wk.poll_ge(a, f"buffer_load_dword v11, v10, {WS}, s{sG1} offen sc1", [11], f"s{C.sT0}", "KV", sleep=0)
            set_ready(a, 11)
            a(f"s_branch {L}")
        stubs.clear()
    P = dict(P, hooks=dict(ready=ready, flag=flag, done=done))
    a(f"s_cmp_eq_u32 s{sMode}, 1\ns_cbranch_scc0 L_SLOW")
    for st in ("", "sc1"):
        if st: a.label("L_SLOW")
        t = "s" if st else "f"
        for w in range(1, 4): a(f"s_cmp_eq_u32 s{C.sW}, {w}\ns_cbranch_scc1 CH_W{w}{t}")
        for w in range(4):
            a.label(f"CH_W{w}{t}")
            C.loop(a, w, st, P, diag)
    a.label("L_FIN")
    if diag:
        a("s_memrealtime s[94:95]\ns_memtime s[98:99]\ns_waitcnt lgkmcnt(0)")
        a(f"s_lshl_b32 s3, s2, 2\ns_add_u32 s3, s3, s{Wk.sW}\ns_lshl_b32 s3, s3, 7\ns_add_u32 s3, s3, {DBG}")
        vals = [C.sTS + 20 + k for k in range(10)] + [90, 92, 94, 96, 98, sR, sXcc, Wk.sDead, 100, 101, 72, 74, 76, 78]
        for i, sg in enumerate(vals):
            a(f"v_mov_b32 v20, s{sg}\nv_mov_b32 v21, {4*i}\nbuffer_store_dword v20, v21, {WS}, s3 offen")
    a("s_waitcnt vmcnt(0)")
    a.label("L_END")
    return a.text()

def wrap(body):
    ref = open(f"cdna_kernels/{NAME}.s.ref").read().split("\n")
    head = [l for l in ref if l.startswith(";") and "@launch" not in l]
    return "\n".join(head) + f"""
; @launch grid=(256,1,1) block=(256,1,1) lds=163840
.amdgcn_target "amdgcn-amd-amdhsa--gfx950"
.text
.globl {NAME}_kernel
.p2align 8
.type {NAME}_kernel,@function
{NAME}_kernel:
{body}s_endpgm
.section .rodata,"a"
.p2align 6
.amdhsa_kernel {NAME}_kernel
  .amdhsa_next_free_vgpr 512
  .amdhsa_next_free_sgpr 102
  .amdhsa_accum_offset 256
  .amdhsa_group_segment_fixed_size 0
  .amdhsa_kernarg_size 120
  .amdhsa_user_sgpr_count 2
  .amdhsa_user_sgpr_kernarg_segment_ptr 1
  .amdhsa_system_sgpr_workgroup_id_x 1
.end_amdhsa_kernel
"""
if __name__ == "__main__":
    import ast
    P = dict(CH)
    if len(sys.argv) > 2: P.update(ast.literal_eval(sys.argv[2]))
    t = gen(P)
    hz = check(t)
    for h in hz[:12]: print(h)
    out = sys.argv[1] if len(sys.argv) > 1 else f"cdna_kernels/{NAME}.s"
    open(out, "w").write(wrap(t))
    print("lines", len(t.split("\n")), "hazards", len(hz))
```

```python
from asm import *
from layout import *
import math

MISC = 131072
M_OFF = 0
X_OFF = 8192
KX_OFF = 16384
O_OFF = 13568
XS = 1088
sWS = 8
sTMP = 12
sH, sW, sStep = 16, 17, 18
sPst, sPld, sTag, sMpub, sMpoll, sMclr = 19, 20, 21, 22, 23, 24
sVx, sKx, sKm, sVm = 25, 26, 27, 28
sC = 30
sT0, sT1, sT2, sT3 = 32, 33, 34, 35
sCnt = 36
sLO8 = 38
sDBG = 40
sTS = 44
vIDX, vKx, vM16, vRing, vPst, vMpub, vXw, vXr, vOr = 1, 2, 3, 4, 5, 6, 7, 8, 9
vL8 = 0
vNEG = 10
vVA0 = 12
RA_OFF = 12544
vVX = 16
vPM = 24
vACC = 28
vA = 44
vRING = 76
vT = 124
vWK = 128
NRING = 6
WQ_SLOT = [2, 3, 1, 0]
def ringreg(i): return vRING + 8 * (i % NRING)
KXREG = [vRING + 8*4, vRING + 8*5, vRING + 0, vRING + 8]
def kx(kt, s): return KXREG[kt*2 + (s >> 1)] + 4 * (s & 1)
vXF = vRING + 16
def wv(t, s): return 8 * (t * 8 + s)
def wo(d, s): return 128 + 8 * (d * 4 + s)
def wk(t, s): return vWK + 8 * (t * 8 + s)

def wq_lds_imm(i):
    t, s = i >> 3, i & 7
    return WQ_SLOT[s >> 1] * 8192 + ((s & 1) * 2 + t) * 2048

def stamp(a, k, diag):
    if diag: a(f"s_memtime s[{sTS+2*k}:{sTS+2*k+1}]")

def prologue(a, P, diag=False):
    a(f"v_lshrrev_b32 v10, 6, v0\nv_and_b32 v0, 63, v0\nv_readfirstlane_b32 s{sW}, v10\ns_nop 3")
    prologue_a(a, P, True); prologue_b(a, P)

def prologue_a(a, P, dma):
    WNT[0] = P.get("wnt", "")
    a(f"""
    s_load_dwordx4 s[48:51], s[0:1], {KA['Wq']}
    s_load_dwordx4 s[52:55], s[0:1], {KA['Wv']}
    s_load_dwordx2 s[56:57], s[0:1], {KA['mem0']}
    """)
    a(f"""
    v_and_b32 v100, 15, v0            ; n
    v_lshrrev_b32 v101, 4, v0         ; g
    v_and_b32 v102, 3, v0             ; c
    v_bfe_u32 v103, v0, 2, 2          ; r''
    """)
    a(f"""
    s_lshl_b32 s{sT2}, s{sH}, 8
    s_lshl_b32 s{sT3}, s{sW}, 6
    s_add_u32 s{sT2}, s{sT2}, s{sT3}
    v_lshrrev_b32 v10, 2, v0
    """)
    for k in range(4):
        a(f"v_xor_b32 v11, {k & 2}, v10\nv_lshlrev_b32 v11, 13, v11\nv_xor_b32 v104, {2*(k&1)}, v102\nv_lshl_add_u32 v11, v104, 4, v11\nv_add_u32 v{vSQ+k}, s{sT2}, v11")
        a(f"v_mov_b32 v{vSRC+k}, v{vSQ+k}\nv_mov_b32 v{vSRC+4+k}, v{vSQ+k}")
    a(f"""
    s_lshl_b32 s{sB0}, s{sW}, 15
    s_lshl_b32 s{sB1}, s{sW}, 13
    s_add_u32 s{sB1}, s{sB1}, {MISC}
    s_mov_b32 s62, 0x400000
    s_mov_b32 s63, 0x20000
    s_getpc_b64 s[{sSub}:{sSub+1}]
    s_add_u32 s{sSub}, s{sSub}, 12
    s_addc_u32 s{sSub+1}, s{sSub+1}, 0
    s_branch CH_SUBE
    """)
    for i in range(8):
        a(f"s_mov_b32 m0, s64\ns_add_u32 s64, s64, 1024\nbuffer_load_dwordx4 v{vSRC+i}, s[60:63], s65 offen {WNT[0]} lds\ns_add_u32 s65, s65, s66")
    a(f"s_setpc_b64 s[{sRet}:{sRet+1}]")
    a.label("CH_SUBE")
    a("s_waitcnt lgkmcnt(0)")
    for c in range(5): w_issue(a, c)
    a(f"""
    v_and_b32 v10, 2, v0
    v_cmp_eq_u32 vcc, 0, v10
    v_mov_b32 v11, 0xeeee
    v_mov_b32 v104, 0x4444
    v_cndmask_b32 v{vIDX}, v11, v104, vcc
    v_lshlrev_b32 v10, 4, v0
    v_add_u32 v{vM16}, {MISC}, v10
    s_lshl_b32 s{sT0}, s{sW}, 15
    v_add_u32 v{vRing}, s{sT0}, v10
    v_lshrrev_b32 v11, 2, v0
    v_lshlrev_b32 v11, 1, v11
    v_and_b32 v104, 1, v0
    v_add_u32 v11, v11, v104
    v_lshlrev_b32 v11, 4, v11
    v_add_u32 v{vOr}, {MISC+O_OFF}, v11
    v_lshlrev_b32 v10, 14, v101
    v_lshrrev_b32 v11, 3, v100
    v_lshl_add_u32 v10, v11, 13, v10
    v_and_b32 v11, 7, v100
    v_lshl_add_u32 v{vPst}, v11, 4, v10
    v_lshlrev_b32 v10, 4, v102
    v_bfe_u32 v11, v0, 2, 1
    v_lshl_add_u32 v10, v11, 3, v10
    v_lshrrev_b32 v11, 1, v101
    v_lshl_add_u32 v10, v11, 2, v10
    v_and_b32 v11, 1, v101
    v_lshl_add_u32 v{vMpub}, v11, 8, v10
    v_add_u32 v{vKx}, {KX_OFF}, v{vM16}
    v_mul_u32_u24 v10, {XS}, v101
    v_lshl_add_u32 v10, v100, 3, v10
    s_lshl_b32 s{sT0}, s{sW}, 8
    s_add_u32 s{sT0}, s{sT0}, {MISC+X_OFF}
    v_add_u32 v{vXw}, s{sT0}, v10
    v_mul_u32_u24 v10, {XS}, v102
    v_lshrrev_b32 v11, 2, v0
    v_lshl_add_u32 v10, v11, 3, v10
    v_add_u32 v{vXr}, {MISC+X_OFF}, v10
    v_bfe_u32 v10, v100, 1, 2
    v_and_b32 v11, 1, v100
    v_lshlrev_b32 v11, 4, v11
    v_mov_b32 v104, 0x3f80
    v_lshlrev_b32 v104, v11, v104
    """)
    for k in range(4):
        a(f"v_cmp_eq_u32 vcc, {k}, v10\ns_nop 1\nv_cndmask_b32 v{112+k}, 0, v104, vcc")
    a(f"s_mov_b32 s{sLO8}, 0x00ff00ff\ns_mov_b32 s{sLO8+1}, 0x00ff00ff\ns_mov_b32 s{sB1M}, 0xcccccccc\ns_mov_b32 s{sB1M+1}, 0xcccccccc\ns_mov_b32 s{sONE}, 0x3f803f80")
    c = (128 ** -0.5) * math.log2(math.e)
    import struct
    cb = struct.unpack("<I", struct.pack("<f", c))[0]
    a(f"s_mov_b32 s{sC}, {cb:#x}\ns_mov_b32 s{sC+1}, {cb:#x}")
    a(f"""
    s_lshl_b32 s{sT2}, s{sH}, 17
    s_lshl_b32 s{sT3}, s{sW}, 8
    s_add_u32 s{sT2}, s{sT2}, s{sT3}
    v_and_b32 v105, 1, v101            ; g&1
    v_lshrrev_b32 v106, 1, v101        ; g>>1
    v_and_b32 v107, 1, v103            ; r&1
    v_lshrrev_b32 v108, 1, v103        ; r>>1
    v_lshlrev_b32 v10, 5, v105
    v_lshl_add_u32 v10, v106, 2, v10
    v_lshl_add_u32 v10, v108, 4, v10
    v_add_u32 v109, v10, v107
    v_lshlrev_b32 v10, 4, v105
    v_lshl_add_u32 v10, v106, 2, v10
    v_add_u32 v110, v10, v107
    """)
    for k in range(2):
        a(f"v_lshl_add_u32 v10, v105, 2, 0\nv_xor_b32 v10, v10, v100\nv_xor_b32 v10, {8*k}, v10\nv_lshlrev_b32 v11, 10, v101\nv_lshl_add_u32 v10, v10, 4, v11\nv_add_u32 v{vSO+k}, s{sT2}, v10")
    for mb in range(2):
        for t in range(2):
            a(f"v_add_u32 v10, {2*mb}, v109\nv_lshlrev_b32 v11, 1, v105\nv_xor_b32 v10, v10, v11\nv_lshlrev_b32 v10, 6, v10")
            a(f"v_xor_b32 v11, {t}, v108\nv_lshl_add_u32 v10, v11, 5, v10\nv_lshl_add_u32 v10, v102, 3, v10")
            a(f"v_add_u32 v{vB1+mb*2+t}, s{sB0}, v10\nv_add_u32 v{vB1+4+mb*2+t}, s{sB1}, v10")
    for d in range(4):
        a(f"v_lshl_add_u32 v11, v105, 1, v107\nv_xor_b32 v11, {d}, v11\nv_lshlrev_b32 v10, 8, v110\nv_lshl_add_u32 v10, v11, 6, v10")
        a(f"v_lshl_add_u32 v10, v108, 5, v10\nv_lshl_add_u32 v10, v102, 3, v10")
        a(f"v_add_u32 v{vB2+d}, s{sB0}, v10\nv_add_u32 v{vB2+4+d}, s{sB1}, v10")
    a(f"""
    s_mov_b32 s12, s56
    s_mov_b32 s13, s57
    s_mov_b32 s14, 8192
    s_mov_b32 s15, 0x20000
    v_lshrrev_b32 v10, 2, v100
    v_lshlrev_b32 v10, 1, v10
    v_and_b32 v11, 1, v0
    v_add_u32 v10, v10, v11            ; row
    v_lshlrev_b32 v10, 10, v10
    v_bfe_u32 v11, v0, 1, 1
    v_lshl_add_u32 v10, v11, 5, v10
    v_lshl_add_u32 v10, v101, 3, v10
    s_lshl_b32 s{sT2}, s{sW}, 8        ; ksteps 2w, 2w+1
    v_add_u32 v10, s{sT2}, v10
    buffer_load_dwordx2 v[16:17], v10, s[12:15], 0 offen
    buffer_load_dwordx2 v[18:19], v10, s[12:15], 0 offen offset:64
    buffer_load_dwordx2 v[12:13], v10, s[12:15], 0 offen offset:128
    buffer_load_dwordx2 v[14:15], v10, s[12:15], 0 offen offset:192
    """)

order = ["k"] * 4 + ["v"] * 4 + ["o"] * 4 + ["q"] * 4
srd = {"q": 60, "k": 64, "v": 68, "o": 72}
WNT = ['']
sB0, sB1 = 76, 77
sSub, sRet = 68, 70
vSRC, vSQ, vSO, vB1, vB2 = 76, 84, 88, 90, 116
def w_issue(a, c):
    m = order[c]; cc = c & 3; slot = c % 5
    if cc == 0:
        src = {"q": 48, "k": 50, "v": 52, "o": 54}[m]
        a(f"s_mov_b32 s60, s{src}\ns_mov_b32 s61, s{src+1}\ns_mov_b32 s65, 0")
        if c in (0, 8, 12): a(f"s_mov_b32 s66, {4096 if m == 'o' else 131072}")
        if c in (8, 12):
            for k in range(8): a(f"v_mov_b32 v{vSRC+k}, v{vSO + (k >> 2) if m == 'o' else vSQ + (k & 3)}")
    a(f"s_add_u32 s64, s{sB0}, {slot*8192}" if slot < 4 else f"s_mov_b32 s64, s{sB1}")
    a(f"s_swappc_b64 s[{sRet}:{sRet+1}], s[{sSub}:{sSub+1}]")
    a.vmq += [("w", c)] * 8

def prologue_b(a, P, first_chunk=None, staged=None, peek=None):
    issue = lambda c: w_issue(a, c)
    a.vmq = [("w", c) for c in range(5) for _ in range(8)]
    for c in range(16):
        m = order[c]; cc = c & 3; slot = c % 5
        a.wait_vm(("w", c))
        if c == 0 and first_chunk: first_chunk(a)
        so, sb = (slot * 8192, 0) if slot < 4 else (0, 4)
        if m != "o":
            for s_ in range(2):
                for t in range(2):
                    for mm in range(4):
                        imm = so + (64 * s_ + 8 * (mm >> 1)) * 64
                        s = 2 * cc + s_
                        if m == "k": dst = vr(wk(t, s) + 2 * mm, 2)
                        elif m == "v": dst = ar(wv(t, s) + 2 * mm, 2)
                        else: dst = vr(vA + (s_ * 2 + t) * 8 + 2 * mm, 2)
                        a.ds(f"ds_read_b64_tr_b16 {dst}, v{vB1 + sb + (mm & 1) * 2 + t} offset:{imm}")
        else:
            for d in range(4):
                for mm in range(4):
                    imm = so + (8 * (mm >> 1) + 2 * (mm & 1)) * 256
                    a.ds(f"ds_read_b64_tr_b16 {ar(wo(d, cc) + 2*mm, 2)}, v{vB2 + sb + d} offset:{imm}")
        a.wait_ds_all()
        if m == "q":
            for k in range(8):
                a.ds(f"ds_write_b128 v{vRing}, {vr(vA + 4*k, 4)} offset:{WQ_SLOT[cc]*8192 + k*1024}")
            a.wait_ds_all()
        if c + 5 < 16: issue(c + 5)
        if c == P.get('peek', 13) and peek: peek(a)
        if c == P.get("help_at", -1):
            lo, per = P["help"]
            a(f"s_lshl_b32 s{sT0}, s{sH}, 2\ns_add_u32 s{sT0}, s{sT0}, s{sW}\nv_lshlrev_b32 v10, 7, v0")
            for rep in range(P.get("help_rep", 2)):
                if rep: a(f"s_add_u32 s{sT0}, s{sT0}, {128 // P.get('help_rep', 2) + 1}\ns_and_b32 s{sT0}, s{sT0}, 127")
                a(f"s_mul_i32 s{sT1}, s{sT0}, {per*8192}\ns_add_u32 s{sT1}, s{sT1}, {lo*8192}")
                for k in range(per):
                    a(f"buffer_load_dword v11, v10, s[60:63], s{sT1} offen")
                    if k + 1 < per: a(f"s_add_u32 s{sT1}, s{sT1}, 8192")
    a("s_barrier")
    if staged: staged(a)
    a(f"""
    ds_write_b128 v{vM16}, v[112:115] offset:{RA_OFF}
    v_lshlrev_b32 v{vL8}, 3, v0
    s_waitcnt lgkmcnt(0)
    """)

def seg_offsets(a, w, P):
    a(f"""
    s_and_b32 s{sT0}, s{sStep}, 3
    s_lshl_b32 s{sT1}, s{sT0}, 18
    s_lshl_b32 s{sT2}, s{sH}, 7
    s_add_u32 s{sPst}, s{sT1}, s{sT2}
    s_add_u32 s{sPst}, s{sPst}, {PART + w*65536}
    s_lshl_b32 s{sT3}, s{sH}, 13
    s_add_u32 s{sPld}, s{sT1}, s{sT3}
    s_add_u32 s{sPld}, s{sPld}, {PART - MISC + (w&1)*4096}
    s_add_u32 s{sT0}, s{sStep}, 3
    s_and_b32 s{sT0}, s{sT0}, 3
    s_lshl_b32 s{sT1}, s{sT0}, 18
    s_mov_b32 s{sTag}, 0
    s_lshr_b32 s{sT2}, s{sH}, 3
    s_lshl_b32 s{sT2}, s{sT2}, 11
    s_and_b32 s{sT3}, s{sH}, 1
    s_lshl_b32 s{sT3}, s{sT3}, 9
    s_add_u32 s{sT2}, s{sT2}, s{sT3}
    s_bfe_u32 s{sT3}, s{sH}, 0x20001
    s_lshl_b32 s{sT3}, s{sT3}, 6
    s_add_u32 s{sT2}, s{sT2}, s{sT3}
    s_lshl_b32 s{sT1}, s{sT0}, 13
    s_add_u32 s{sMclr}, s{sT1}, s{sT2}
    s_add_u32 s{sMclr}, s{sMclr}, {MBUF + (w&1)*1024}
    s_add_u32 s{sT0}, s{sStep}, 1
    s_and_b32 s{sT0}, s{sT0}, 3
    s_lshl_b32 s{sT1}, s{sT0}, 13
    s_add_u32 s{sMpub}, s{sT1}, s{sT2}
    s_add_u32 s{sMpub}, s{sMpub}, {MBUF + (w&1)*1024}
    s_add_u32 s{sMpoll}, s{sT1}, {MBUF - MISC + w*2048}
    s_lshl_b32 s{sT0}, s{sStep}, 5
    s_add_u32 s{sT0}, s{sT0}, s{sH}
    s_lshl_b32 s{sT1}, s{sT0}, 13
    s_add_u32 s{sVx}, s{sT1}, {VIMG - MISC + w*2048}
    s_add_u32 s{sKx}, s{sT1}, {KIMG - MISC + 32*8192}
    s_lshl_b32 s{sT1}, s{sT0}, 12
    s_add_u32 s{sKm}, s{sT1}, {KMEM - MISC + w*1024}
    s_lshl_b32 s{sT1}, s{sT0}, 11
    s_add_u32 s{sVm}, s{sT1}, {VMEM + w*512}
    """)

sRP, sRM, sMprev, sCP1, sCP2, sCM1, sVmPrev = 76, 77, 78, 79, 80, 81, 82
sKb, sStage = 75, 74
sONE = 42
sB1M = 40
def init_incr(a, w):
    a(f"""
    s_mov_b32 s{sRP}, 0
    s_mov_b32 s{sRM}, 8192
    s_mov_b32 s{sCP1}, s{sPst}
    s_mov_b32 s{sCP2}, s{sPld}
    s_sub_u32 s{sCM1}, s{sMpub}, 8192
    s_mov_b32 s{sMprev}, s{sCM1}
    """)
NP = [1]
def advance(a, w):
    a(f"""
    s_add_u32 s{sVx}, s{sVx}, {32*8192}
    s_add_u32 s{sKx}, s{sKx}, {32*8192}
    s_add_u32 s{sKm}, s{sKm}, {32*4096}
    s_sub_u32 s{sMclr}, s{sMprev}, {(w&1)*1024}
    s_mov_b32 s{sMprev}, s{sMpub}
    s_add_u32 s{sRM}, s{sRM}, 8192
    s_and_b32 s{sRM}, s{sRM}, 0x7fff
    s_add_u32 s{sMpub}, s{sRM}, s{sCM1}
    s_add_u32 s{sStep}, s{sStep}, 1
    """)
    if NP[0] == 1: a(f"s_xor_b32 s{sTag}, s{sTag}, 1")
    else:
        a(f"""
        s_add_u32 s{sRP}, s{sRP}, 0x40000
        s_and_b32 s{sRP}, s{sRP}, {NP[0]*0x40000 - 1}
        s_add_u32 s{sPst}, s{sRP}, s{sCP1}
        s_add_u32 s{sPld}, s{sRP}, s{sCP2}
        s_bfe_u32 s{sTag}, s{sStep}, {0x10000 + NP[0].bit_length() - 1}
        """)

def korder(w):
    own = [2 * w, 2 * w + 1]
    rest = [(2 * w + 2 + k) % 8 for k in range(6)]
    seq = [(0, own[0]), (1, own[0]), (0, own[1]), (1, own[1])] + [(0, s) for s in rest] + [(1, s) for s in rest]
    return own, rest, seq

ABL = [""]; NT = [""]
def ring_fill(a, w, i):
    if "r" in ABL[0] and i >= NRING: return
    t, s = korder(w)[2][i]
    r = ringreg(i); imm = WQ_SLOT[s >> 1] * 8192 + ((s & 1) * 2 + t) * 2048
    a.ds(f"ds_read_b128 {vr(r,4)}, v{vRing} offset:{imm}", ("ring", i))
    a.ds(f"ds_read_b128 {vr(r+4,4)}, v{vRing} offset:{imm+1024}", ("ring", i))

def kx_dma(a, w, i):
    a(f"s_add_u32 m0, s{sKb}, {i*1024}")
    a(f"s_add_u32 s{sT0}, s{sKx}, {i*1024}")
    a.vm(f"buffer_load_dwordx4 v{vM16}, s[{sWS}:{sWS+3}], s{sT0} offen {NT[0]} lds", "kx")

class Stream:
    def __init__(self): self.ops = []; self.fill = {}
    def add(self, f, pre=None): self.ops.append((f, pre)); return len(self.ops) - 1
    def at(self, g, f): self.fill.setdefault(g, []).append(f)
    def emit(self):
        for g, (f, pre) in enumerate(self.ops):
            if pre: pre()
            f()
            for x in self.fill.pop(g, []): x()
        assert not self.fill, self.fill.keys()

def loop(a, w, st, P, diag=False):
    tag = f"{w}{'s' if st else 'f'}"
    WS = f"s[{sWS}:{sWS+3}]"
    smf = lambda d, A, B: a(f"v_smfmac_f32_16x16x64_bf16 {vr(d,4)}, {vr(A,4)}, {B}, v{vIDX}")
    mf = lambda d, A, B, c: a(f"v_mfma_f32_16x16x32_bf16 {vr(d,4)}, {vr(A,4)}, {vr(B,4)}, {c}")
    mf16 = lambda d, A, B, c: a(f"v_mfma_f32_16x16x16_bf16 {vr(d,4)}, {vr(A,2)}, {vr(B,2)}, {c}")
    I = lambda t: (lambda: a(t))
    Af = lambda s: vA + 4 * s
    q = lambda t: vACC + 8 * t
    k_ = lambda t: vACC + 8 * t + 4
    vacc = lambda t: (vVA0, vPM)[t]
    own, rest, seq = korder(w)
    ABL[0] = P.get("abl", ""); NP[0] = P.get("np", 1); NT[0] = P.get("nt", "nt")
    SL = P.get("stamps", ["start", "qkend", "xbar", "scores", "pv", "obar", "opend", "pub", "bdone"])
    def ST(n):
        if diag and n in SL:
            if P.get("trace"): a(f"s_memrealtime s[{sTS+2*SL.index(n)}:{sTS+2*SL.index(n)+1}]")
            else: stamp(a, SL.index(n), diag)
    vVM = vVA0 + 2
    def zero_acc():
        if w == 3:
            a(f"v_mov_b32 v124, -1\nv_lshrrev_b32 v125, 8, v{vL8}\nv_bfe_u32 v126, v{vL8}, 7, 1\nv_lshl_add_u32 v125, v125, 2, v126\nv_bfe_u32 v126, v{vL8}, 1, 6\nv_lshl_add_u32 v125, v125, 8, v126")
        for r in range(16): a(f"v_mov_b32 v{vACC+r}, 0")
        for t in range(2):
            for r in range(4): a(f"v_mov_b32 v{vacc(t)+r}, 0")
    def mwrite():
        for o in own:
            a.ds(f"ds_write_b128 v{vM16}, {vr(Af(o),4)} offset:{M_OFF + o*1024}", "mw")
    hook = P.get("hooks")
    if hook: hook["ready"](a, w, tag, True)
    vxl = [lambda: a.vm(f"buffer_load_dwordx4 {vr(vVX,4)}, v{vM16}, {WS}, s{sVx} offen {NT[0]}", "vx"),
           lambda: a.vm(f"buffer_load_dwordx4 {vr(vVX+4,4)}, v{vM16}, {WS}, s{sVx} offen offset:1024 {NT[0]}", "vx")]
    a(f"s_mov_b32 s{sKb}, {MISC+KX_OFF}\ns_lshl_b32 s{sKx}, s{sH}, 13\ns_add_u32 s{sKx}, s{sKx}, {KIMG - MISC}")
    kx_dma(a, w, 2 * w); kx_dma(a, w, 2 * w + 1)
    for r in range(8): a(f"v_mov_b32 v{Af(own[0])+r}, v{(16, 17, 18, 19, 12, 13, 14, 15)[r]}")
    a(f"s_mov_b32 s{sStep}, 0\ns_mov_b32 s{sKb}, {MISC+KX_OFF+8192}")
    seg_offsets(a, w, P)
    if P.get("kxA"): kx_dma(a, w, 2 * w); kx_dma(a, w, 2 * w + 1)
    a(f"s_mov_b32 s{sVmPrev}, s{sKm}\ns_sub_u32 s{sMclr}, s{sMclr}, {(w&1)*1024}")
    init_incr(a, w)
    if hook:
        a(f"v_mov_b32 v124, -1\nv_mov_b32 v125, -1\nv_mov_b32 v126, -1\nv_mov_b32 v127, -1\ns_add_u32 s{sT0}, s{sKm}, {62*32*4096}")
        a(f"buffer_store_dwordx4 v[124:127], v{vM16}, {WS}, s{sT0} offen sc1\ns_add_u32 s{sT0}, s{sT0}, {32*4096}")
        a(f"buffer_store_dwordx4 v[124:127], v{vM16}, {WS}, s{sT0} offen sc1")
    a(f"v_mov_b32 v{vVX}, -1\nv_mov_b32 v{vVX+1}, -1\nv_mov_b32 v{vVX+2}, -1\nv_mov_b32 v{vVX+3}, -1")
    a.ds(f"ds_write_b128 v{vOr}, {vr(vVX,4)} offset:{w*512}")
    for i in range(NRING): ring_fill(a, w, i)
    zero_acc()
    a(f"s_waitcnt vmcnt({2 if hook else 0})"); a.vmq = []
    a.wait_ds_all(True)
    LB = [Af(o) for o in own]
    loadB = lambda k: a(f"buffer_load_dwordx4 {vr(LB[k],4)}, v{vM16}, {WS}, s{sMpoll} offen offset:{k*1024} sc1")
    NS = P["depB"]
    def retryB():
        a.label(f"CH_RBRETRY_{tag}")
        loadB(0); loadB(1)
        if diag: a(f"s_add_u32 s{sTS+21}, s{sTS+21}, 1")
        a(f"s_add_u32 s{sCnt}, s{sCnt}, 1")
        a(f"s_cmp_gt_u32 s{sCnt}, {P['bound']}\ns_cbranch_scc1 CH_RBOK_{tag}\ns_branch CH_RB_{tag}")
    a(f"s_mov_b32 s{sCnt}, 0")
    for k in range(8): a(f"v_min_u32 v{LB[0]+k}, 0xfffffffe, v{LB[0]+k}")
    a.label(f"CH_RB_{tag}")
    ST("B_w0")
    a.dsq = []
    r_ = [LB[0] + k for k in range(8)]
    a(f"s_waitcnt vmcnt({2 * NS - 1})")
    a(f"v_max3_u32 v10, v{r_[0]}, v{r_[1]}, v{r_[2]}")
    a(f"v_max_u32 v10, v10, v{r_[3]}")
    a.ds(f"ds_write_b128 v{vM16}, {vr(LB[0],4)} offset:{M_OFF + own[0]*1024}", "mw")
    a(f"s_waitcnt vmcnt({2 * NS - 2})")
    a(f"v_max3_u32 v10, v10, v{r_[4]}, v{r_[5]}")
    a(f"v_max3_u32 v10, v10, v{r_[6]}, v{r_[7]}")
    a.ds(f"ds_write_b128 v{vM16}, {vr(LB[1],4)} offset:{M_OFF + own[1]*1024}", "mw")
    a(f"v_cmp_eq_u32 vcc, -1, v10")
    a(f"s_cbranch_vccnz CH_RBRETRY_{tag}" if not P.get("free") else "s_nop 0")
    a.label(f"CH_RBOK_{tag}")
    if diag:
        ST("bdone")
        a("s_waitcnt lgkmcnt(0)")
        a(f"s_cmp_eq_u32 s{sStep}, 0")
        a(f"s_cbranch_scc1 CH_NOACC_{tag}")
        for k in range(8):
            a(f"s_sub_u32 s{sT0}, s{sTS+2*k+2}, s{sTS+2*k}")
            a(f"s_add_u32 s{sTS+22+k}, s{sTS+22+k}, s{sT0}")
        if P.get("trace"):
            a(f"s_cmp_eq_u32 s{sStep}, {P['trace']}")
            for k, dst in enumerate((83, 84, 85, 86, 87, 88, 89, 100, 101)):
                a(f"s_cselect_b32 s{dst}, s{sTS+2*k}, s{dst}")
        a.label(f"CH_NOACC_{tag}")
        if w == 3 and P.get("steptime"):
            a(f"s_memrealtime s[{sT2}:{sT2+1}]\ns_lshl_b32 s{sT0}, s{sH}, 6\ns_add_u32 s{sT0}, s{sT0}, s{sStep}\ns_lshl_b32 s{sT0}, s{sT0}, 2\ns_add_u32 s{sT0}, s{sT0}, {DBG + 0x40000}\ns_waitcnt lgkmcnt(0)")
            a(f"v_mov_b32 v10, s{sT2}\nv_mov_b32 v11, 0\nbuffer_store_dword v10, v11, {WS}, s{sT0} offen")
            a(f"s_memtime s[{sT2}:{sT2+1}]\ns_add_u32 s{sT0}, s{sT0}, 0x10000\ns_waitcnt lgkmcnt(0)\nv_mov_b32 v10, s{sT2}\nbuffer_store_dword v10, v11, {WS}, s{sT0} offen")
    ST("start")
    a.vmq = ["stale"] * (2 * NS - 2) + (["dbg", "dbg"] if diag and w == 3 and P.get("steptime") else [])
    S = Stream()
    vs = [(t, s) for s in own + rest for t in range(2)]
    def vsm(S, pre=None):
        t, s = vs.pop(0)
        return S.add(lambda: smf(vacc(t), Af(s), ar(wv(t, s), 8)), pre)
    gq = {}
    aread = lambda s: a.ds(f"ds_read_b128 {vr(Af(s),4)}, v{vM16} offset:{M_OFF + s*1024}", ("A", s))
    NB = P["pre_bar"]
    def bar_and_reads():
        a.wait_ds("mw")
        ST("mbar0")
        a("s_barrier")
        ST("mbar1")
        for s in rest[:P["a_burst"]]: aread(s)
    xread = lambda sg: [a.ds(f"ds_read_b64_tr_b16 {vr(vXF+4*sg+2*p,2)}, v{vXr} offset:{(sg&1)*512 + p*256 + (sg>>1)*128}", ("X", sg)) for p in range(2)]
    for i in range(16):
        t, s = seq[i]
        def pre(i=i, s=s):
            a.wait_ds(("A", s))
            if i in (4, 7, 10, 13): ST(f"q{i}")
            a.wait_ds(("ring", i))
        if i == 4:
            for n in range(4): vsm(S)
        gq[i] = S.add(lambda t=t, s=s, i=i: smf(q(t), Af(s), vr(ringreg(i), 8)), pre)
        S.add(lambda t=t, s=s: smf(k_(t), Af(s), vr(wk(t, s), 8)))
    GB = P["pre_bar"] - 1
    S.at(GB, bar_and_reads)
    kxread = lambda kt, s: a.ds(f"ds_read_b128 {vr(kx(kt,s),4)}, v{vKx} offset:{(kt*4+s)*1024}", "kx")
    def half_fill(i, h):
        t, s = seq[i]
        r = ringreg(i) + 4 * h; imm = WQ_SLOT[s >> 1] * 8192 + ((s & 1) * 2 + t) * 2048 + h * 1024
        a.ds(f"ds_read_b128 {vr(r,4)}, v{vRing} offset:{imm}", ("ring", i))
    reads = [(GB + 1, lambda s=s: aread(s)) for s in rest[P["a_burst"]:]]
    ringr = [(gq[i - NRING], lambda i=i, h=h: half_fill(i, h)) for i in range(NRING, 16) for h in range(2)]
    npre = P["r_pre"]
    for n in range(npre): S.at(max(ringr[n][0], min(n + 1, GB)), ringr[n][1])
    if "r" not in ABL[0]: reads += ringr[npre:]
    if "k" not in ABL[0]: reads += [(gq[10 + n // 2], lambda n=n: kxread(n >> 2, n & 3)) for n in range(P["kx_in"])]
    g = GB + 1
    for (e, f) in reads:
        g = max(g, e)
        S.at(min(g, 35), f); g += 1
    def post(t, r0):
        return [I(f"v_add_f32 v{q(t)}, v{q(t)}, v{q(t)+2}"), I(f"v_add_f32 v{q(t)+1}, v{q(t)+1}, v{q(t)+3}"),
                I(f"v_add_f32 v{k_(t)}, v{k_(t)}, v{k_(t)+2}"), I(f"v_add_f32 v{k_(t)+1}, v{k_(t)+1}, v{k_(t)+3}"),
                I(f"v_cvt_pk_bf16_f32 v{r0}, v{q(t)}, v{q(t)+1}"), I(f"v_cvt_pk_bf16_f32 v{r0+1}, v{k_(t)}, v{k_(t)+1}"),
                lambda: a.ds(f"ds_write_b64 v{vXw}, {vr(r0,2)} offset:{t*128}", "xw")]
    p0 = post(0, vACC + 6)
    g0 = gq[10] + 2
    S.at(gq[10], lambda: a.nop(2)); S.at(gq[10] + 1, lambda: a.nop(2))
    g0 += P.get("p0off", 0)
    if "p" not in ABL[0] and not P.get("pboth"):
        for n in range(6): S.at(g0 + n, p0[n])
        if not P.get("xw2"): S.at(g0 + 5 + P.get("p0w", 0), p0[6])
    vONE = vACC
    if not P.get("one_late") and not P.get("pboth"):
        for n in range(4): S.at(g0 + 6 + n, I(f"v_mov_b32 v{vONE+n}, s{sONE}"))
    late = {}
    if P["jobs"] == "S" and "j" not in ABL[0]:
        jobs = [lambda: a.vm(f"buffer_store_dwordx4 {vr(vVX,4)}, v{vM16}, {WS}, s{sVmPrev} offen sc1", "exp"), vxl[0], vxl[1],
                lambda: kx_dma(a, w, 2 * w), lambda: kx_dma(a, w, 2 * w + 1)]
        if P.get("kxA"): jobs = jobs[:3] + [None] * 2
        if w == 3: jobs.append(lambda: a.vm(f"buffer_store_dword v124, v125, {WS}, s{sMclr} offen {st}", "clr"))
        if hook and w == P.get("fw", 0): jobs.append(lambda: hook["flag"](a))
        for n, jb in enumerate(jobs):
            if jb is None: continue
            g = P["j0"] + P["jstr"] * n + P["jw"] * w
            if n == 5: g = P["j0"] + P["jstr"] * (2 if w else 1) + P["jw"] * w + P["jstr"] // 2
            if g < 36: S.at(g, jb)
            else: late.setdefault(g - 36 + 2, []).append(jb)
    S.at(gq[12], I(f"s_add_u32 s{sMpoll}, s{sRM}, {MBUF - MISC + w*2048}"))
    if 35 not in S.fill: S.at(35, lambda: a.nop(1))
    S.emit()
    ST("qkend")
    T0, T1, Tm = vACC + 8, vACC + 12, vT
    def score(S, T, sg):
        A = {T0: kx(0, sg), T1: kx(1, sg), Tm: vXF + 4 * sg}[T]
        return S.add(lambda: mf(T, A, vXF + 4 * sg, "0" if sg == 0 else vr(T, 4)), lambda: a.wait_ds(("X", sg)))
    p1 = post(1, vACC + 4)
    S = Stream()
    if P.get("pboth"):
        a(f"v_pk_add_f32 {vr(q(0),2)}, {vr(q(0),2)}, {vr(q(0)+2,2)}\nv_pk_add_f32 {vr(k_(0),2)}, {vr(k_(0),2)}, {vr(k_(0)+2,2)}")
        p0[4](); p0[5]()
        if not P.get("xw2"): p0[6]()
        a.nop(2 if P.get("xw2") else 1)
    else: a.nop(6)
    a(f"v_pk_add_f32 {vr(q(1),2)}, {vr(q(1),2)}, {vr(q(1)+2,2)}\nv_pk_add_f32 {vr(k_(1),2)}, {vr(k_(1),2)}, {vr(k_(1)+2,2)}")
    for n in range(4, 6): p1[n]()
    if P.get("xw2"): a.ds(f"ds_write2_b64 v{vXw}, {vr(vACC+6,2)}, {vr(vACC+4,2)} offset0:0 offset1:16", "xw")
    else: p1[6]()
    for n in range(P["v_pre"]):
        g = vsm(S)
        if P["kx_in"] + n < 8: S.at(g, lambda n=n: kxread((P["kx_in"] + n) >> 2, (P["kx_in"] + n) & 3))
    assert P["kx_in"] + P["v_pre"] >= 8
    def xbar1():
        a.wait_ds("xw")
        a("s_barrier"); ST("xbar"); xread(0)
    g = vsm(S, xbar1)
    S.at(g, lambda: xread(1))
    S.at(vsm(S), lambda: xread(2)); S.at(vsm(S), lambda: xread(3))
    ones = list(range(4)) if P.get("one_late") or P.get("pboth") else []
    while vs:
        gl = vsm(S)
        if ones: S.at(gl, I(f"v_mov_b32 v{vONE+ones.pop(0)}, s{sONE}"))
    for g, l_ in late.items():
        for jb in l_: S.at(g, jb)
    S.at(gl, lambda: (a.wait_vm("stale"), a.wait_ds("kx"), ST("vdone")))
    m, t_ = vT, 11
    gs = [score(S, T, sg) for T in (T0, T1, Tm) for sg in range(4)]
    va = [I(f"v_add_f32 v{vacc(t)+k}, v{vacc(t)+k}, v{vacc(t)+k+2}") for t in range(2) for k in range(2)]
    for n in range(4): S.at(gs[n], lambda: a.nop(1))
    S.at(gs[4], va[0]); S.at(gs[4], va[1]); S.at(gs[5], va[2]); S.at(gs[5], va[3])
    S.at(gs[6], I(f"v_cvt_pk_bf16_f32 v{vVM}, v{vacc(0)}, v{vacc(0)+1}"))
    S.at(gs[7], I(f"v_cvt_pk_bf16_f32 v{vVM+1}, v{vacc(1)}, v{vacc(1)+1}"))
    S.at(gl, I(f"s_cmp_ge_u32 s{sStep}, 63\ns_cbranch_scc1 CH_DONE_{tag}"))
    S.at(gs[8], I(f"v_max3_f32 v10, v{T0}, v{T0+1}, v{T0+2}\nv_mov_b32 v{vPM+1}, 0\ns_nop 1"))
    S.at(gs[9], I(f"v_max_f32 v10, v10, v{T0+3}\nv_mov_b32 v{vPM+2}, 0\ns_nop 1"))
    S.at(gs[10], I(f"v_max3_f32 v10, v10, v{T1}, v{T1+1}"))
    S.at(gs[11], I(f"v_max3_f32 v10, v10, v{T1+2}, v{T1+3}"))
    S.emit()
    ST("scores")
    oacc = lambda d: vRING + 4 * d
    zq = list(range(16))
    z = lambda n: [a(f"v_mov_b32 v{vRING+zq.pop(0)}, 0") for _ in range(n)]
    z(7)
    a(f"v_max3_f32 v{m}, v10, v{Tm+2}, v{Tm+3}")
    a(f"v_mov_b32 v{t_}, v{m}")
    z(2)
    a(f"v_permlane32_swap_b32 v{m}, v{t_}")
    a(f"v_max_f32 v{m}, v{m}, v{t_}")
    a(f"v_mov_b32 v{t_}, v{m}")
    z(2)
    a(f"v_permlane16_swap_b32 v{m}, v{t_}")
    a(f"v_max_f32 v{m}, v{m}, v{t_}")
    a(f"v_mul_f32 v10, s{sC}, v{m}")
    pf = lambda r: a(f"v_pk_fma_f32 {vr(r,2)}, {vr(r,2)}, s[{sC}:{sC+1}], v[10:11] op_sel_hi:[1,1,0] neg_lo:[0,0,1] neg_hi:[0,0,1]")
    ex = lambda r: a(f"v_exp_f32 v{r}, v{r}")
    aX, aY, aL = vA, vA + 4, vA + 24
    vPX = vACC + 4
    pf(Tm + 2); pf(T0); ex(Tm + 2); ex(Tm + 3); pf(T0 + 2); pf(T1); pf(T1 + 2)
    a(f"v_cvt_pk_bf16_f32 v{vPM}, v{Tm+2}, v{Tm+3}")
    a(f"v_cvt_pk_bf16_f32 v{vPM+3}, v{Tm+2}, v{Tm+3}")
    ex(T0); ex(T0 + 1)
    mf16(aL, vONE, vPM, "0")
    ex(T0 + 2); ex(T0 + 3)
    mf16(aX, vVM, vPM, "0")
    ex(T1); ex(T1 + 1)
    mf16(aY, vVM, vPM + 2, "0")
    ex(T1 + 2); ex(T1 + 3)
    a(f"v_cvt_pk_bf16_f32 v{vPX}, v{T0}, v{T0+1}")
    a(f"v_cvt_pk_bf16_f32 v{vPX+1}, v{T0+2}, v{T0+3}")
    a(f"v_cvt_pk_bf16_f32 v{vPX+2}, v{T1}, v{T1+1}")
    a(f"v_cvt_pk_bf16_f32 v{vPX+3}, v{T1+2}, v{T1+3}")
    a.wait_vm("vx")
    a.nop(2 if "j" in ABL[0] else 1)
    mf(aL, vONE, vPX, vr(aL, 4)); z(2)
    mf(aX, vVX, vPX, vr(aX, 4)); z(2)
    mf(aY, vVX + 4, vPX, vr(aY, 4))
    ST("pv")
    z(1); a.nop(1)
    a(f"v_rcp_f32 v10, v{aL}")
    a.nop(3)
    vOW = vA + 8
    for r in range(4):
        if r == 2: a.nop(1)
        a(f"v_pk_mul_f32 {vr(aX+2*r,2)}, {vr(aX+2*r,2)}, v[10:11] op_sel_hi:[1,0]")
    for r in range(4):
        a(f"v_cvt_pk_bf16_f32 v{vOW+r}, v{aX+2*r}, v{aX+2*r+1}")
    if P.get("otag"): a(f"v_and_or_b32 v{vOW}, v{vOW}, -2, s{sTag}")
    a(f"s_not_b64 exec, s[{sB1M}:{sB1M+1}]")
    a.ds(f"ds_write_b128 v{vOr}, {vr(vOW,4)} offset:{w*512}", "ow")
    a("s_mov_b64 exec, -1")
    vOF = lambda s: vA + 12 + 4 * s
    a.nop(1)
    for r in range(4):
        a(f"v_mov_b32_dpp v{vOF(w)+r}, v{vOW+r} quad_perm:[0,1,0,1] row_mask:0xf bank_mask:0xf")
    a.nop(2)
    assert not zq
    S = Stream()
    orest = [(w + 1 + k) % 4 for k in range(3)]
    def obar():
        if not P.get("otag"): a.wait_ds_all()
        a("s_barrier")
        ST("obar")
        for s in orest: a.ds(f"ds_read_b128 {vr(vOF(s),4)}, v{vOr} offset:{s*512}", ("O", s))
        a(f"s_add_u32 s{sT0}, s{sPst}, 4096")
    XW = vXF + 4 * w
    sel = lambda d, f, dst=vVX: f"v_cndmask_b32 v{dst+d}, v{f}, v{XW+d}, s[{sB1M}:{sB1M+1}]"
    dpp = lambda d: f"v_mov_b32_dpp v{10+d}, v{vVM+d} quad_perm:[2,3,2,3] row_mask:0xf bank_mask:0xf"
    pack = [I(dpp(0) + "\n" + sel(0, vVM)), I(dpp(1) + "\n" + sel(1, vVM + 1)), I(sel(2, 10)), I(sel(3, 11))]
    for d in range(4):
        g = S.add(lambda d=d: smf(oacc(d), vOF(w), ar(wo(d, w), 8)), obar if d == P["o_pre"] else None)
        S.at(g, pack[d])
    if P["o_pre"] == 4: S.at(g, obar)
    vST = vRING + 16
    go = [S.add(lambda d=d, s=s: smf(oacc(d), vOF(s), ar(wo(d, s), 8)), lambda s=s: a.wait_ds(("O", s)))
          for (d, s) in ([(d, s) for s in orest for d in (0, 1)] + ([(d, s) for d in (2, 3) for s in orest] if P.get("dmaj") else [(d, s) for s in orest for d in (2, 3)]))]
    if P.get("otag"):
        f_ = [vOF(s_) for s_ in orest]
        ochk = [f"v_bitop3_b32 v10, v{f_[0]}, v{f_[1]}, s{sTag} bitop3:0x7e", f"v_bitop3_b32 v10, v10, v{f_[2]}, s{sTag} bitop3:0xf6",
                "v_and_b32 v10, 1, v10", "v_cmp_ne_u32 vcc, 0, v10"]
        S.ops[go[0]] = (S.ops[go[0]][0], lambda: (a.label(f"CH_OGO_{tag}"), a.wait_ds(("O", orest[0]))))
        S.at(go[2], I(ochk[0])); S.at(go[4], I(ochk[1])); S.at(go[5], I(ochk[2] + "\n" + ochk[3] + f"\ns_cbranch_vccnz CH_OREDO_{tag}"))
    cv = lambda d, k: I(f"v_cvt_pk_bf16_f32 v{vST+2*d+k}, v{oacc(d)+2*k}, v{oacc(d)+2*k+1}")
    tg = lambda dp: I(f"v_and_or_b32 v{vST+4*dp}, v{vST+4*dp}, -2, s{sTag}")
    pst = lambda dp: a.vm(f"buffer_store_dwordx4 {vr(vST+4*dp,4)}, v{vPst}, {WS}, s{sT0 if dp else sPst} offen {st}", "pst")
    if P.get("pst0", 0) == 0:
        S.at(go[6], lambda: a.nop(6)); S.at(go[6], cv(0, 0)); S.at(go[7], cv(0, 1)); S.at(go[8], tg(0)); S.at(go[9], cv(1, 0)); S.at(go[10], cv(1, 1))
        S.at(go[10], lambda: pst(0))
    elif P["pst0"] == 1:
        S.at(go[6], lambda: a.nop(6)); S.at(go[6], cv(0, 0)); S.at(go[6], cv(0, 1)); S.at(go[7], cv(1, 0)); S.at(go[7], cv(1, 1)); S.at(go[7], tg(0))
        S.at(go[7], lambda: pst(0))
    else:
        S.at(go[6], lambda: a.nop(6))
        for f in (cv(0, 0), cv(0, 1), cv(1, 0), cv(1, 1), tg(0), lambda: pst(0)): S.at(go[6], f)
    if P.get("dmaj"):
        S.at(go[9], lambda: a.nop(3)); S.at(go[10], lambda: a.nop(3)); S.at(go[10], cv(2, 0))
    S.emit()
    if P.get("dmaj"):
        cv(2, 1)(); tg(1)(); a.nop(6); cv(3, 0)(); cv(3, 1)(); pst(1)
    else:
        a.nop(7 if P.get('pst0', 0) else 6)
        cv(2, 0)(); cv(2, 1)(); cv(3, 0)(); cv(3, 1)(); tg(1)(); pst(1)
    ST("opend")
    LA = [Af(rest[k]) for k in range(4)]
    vRA, vRD = Af(rest[4]), Af(rest[5])
    def issueA():
        for k in range(4): a(f"buffer_load_dwordx4 {vr(LA[k],4)}, v{vM16}, {WS}, s{sPld} offen offset:{k*1024} sc1")
    def adv():
        a(f"s_mov_b32 s{sCnt}, 0\ns_mov_b32 s{sVmPrev}, s{sKm}")
        advance(a, w)
        if hook: hook["ready"](a, w, tag, False)
    def chores():
        zero_acc()
        a(f"v_xor_b32 v{vKx}, 8192, v{vKx}\ns_xor_b32 s{sKb}, s{sKb}, 8192")
    a(f"s_mov_b32 s{sCnt}, 0")
    if w < 2:
        a.ds(f"ds_read_b128 {vr(vRA,4)}, v{vM16} offset:{RA_OFF}", "ra")
        if w == 1: chores()
        a.nop(P["dlyA"][w])
        issueA()
        ST("issA")
        if w == 0: chores()
        for i in range(P["nrA"]): ring_fill(a, w, i)
        DA = P["depA"][w]
        for _ in range(DA - 1):
            a.nop(P["gapA"]); issueA()
        a.wait_ds("ra")
        a.label(f"CH_RA_{tag}")
        ny = 4 * (DA - 1)
        for k in range(4):
            a(f"s_waitcnt vmcnt({ny + 3 - k})")
            if k == 3:
                ST("A_w2")
                a(f"v_bitop3_b32 v11, v{LA[2]}, v{LA[3]}, s{sTag} bitop3:0x7e")
                a(f"v_bitop3_b32 v10, v10, v11, 1 bitop3:0xa8")
            if k == 1: a(f"v_bitop3_b32 v10, v{LA[0]}, v{LA[1]}, s{sTag} bitop3:0x7e")
            if k == 0 and DA > 1: continue
            if k == 1 and DA > 1: mf(vRD, LA[0], vRA, "0")
            if k == 2 and DA > 1: continue
            if k == 3 and DA > 1: mf(vRD, LA[2], vRA, vr(vRD, 4))
            mf(vRD, LA[k], vRA, "0" if k == 0 else vr(vRD, 4))
        a(f"v_cmp_ne_u32 vcc, 0, v10")
        a(f"s_cbranch_vccnz CH_RARETRY_{tag}" if not P.get("free") else "s_nop 0")
        a.label(f"CH_RAOK_{tag}")
        ST("A_ok")
        a.nop(6)
        a(f"v_permlane32_swap_b32 v{vRD}, v{vRD+2}")
        a(f"v_permlane32_swap_b32 v{vRD+1}, v{vRD+3}")
        a(f"s_mov_b64 exec, s[{sLO8}:{sLO8+1}]")
        a(f"v_pk_add_f32 {vr(vRD,2)}, {vr(vRD,2)}, {vr(vRD+2,2)}")
        a(f"v_cvt_pk_bf16_f32 v{vRD}, v{vRD}, v{vRD+1}")
        a(f"buffer_store_dword v{vRD}, v{vMpub}, {WS}, s{sMpub} offen {st}")
        a("s_mov_b64 exec, -1")
        ST("pub")
        if w == 0:
            for i in range(P["nrA"], NRING): ring_fill(a, w, i)
    else:
        chores()
        if P.get("kxA"):
            adv()
            for i in range(4): kx_dma(a, w, 4 * (w - 2) + i)
        for i in range(NRING): ring_fill(a, w, i)
    if w == 0 or (w > 1 and not P.get("kxA")): adv()
    a("s_barrier")
    a.nop(P["dlyB"])
    loadB(0); loadB(1)
    ST("issB")
    if w == 1: adv()
    for _ in range(NS - 1):
        a.nop(P["gapB"] if w != 1 else max(0, P["gapB"] - P["w1c"])); loadB(0); loadB(1)
    if w == 1:
        for i in range(P["nrA"], NRING): ring_fill(a, w, i)
    a.wait_ds_all()
    a.vmq = []
    a(f"s_branch CH_RB_{tag}")
    if w < 2:
        a.label(f"CH_RARETRY_{tag}")
        issueA()
        a(f"s_add_u32 s{sCnt}, s{sCnt}, 1")
        if diag: a(f"s_add_u32 s{sTS+20}, s{sTS+20}, 1")
        a(f"s_cmp_gt_u32 s{sCnt}, {P['bound']}")
        a(f"s_cbranch_scc1 CH_RAOK_{tag}")
        a(f"s_branch CH_RA_{tag}")
    retryB()
    if P.get("otag"):
        a.label(f"CH_OREDO_{tag}")
        a(f"s_mov_b32 s{sCnt}, 0")
        a.label(f"CH_OREDO1_{tag}")
        a.nop(8)
        for s_ in orest: a(f"ds_read_b128 {vr(vOF(s_),4)}, v{vOr} offset:{s_*512}")
        for r in range(16): a(f"v_mov_b32 v{vRING+r}, 0")
        a(f"s_add_u32 s{sCnt}, s{sCnt}, 1\ns_waitcnt lgkmcnt(0)")
        for t_ in ochk: a(t_)
        a(f"s_cmp_gt_u32 s{sCnt}, {P['bound']}\ns_cbranch_scc1 CH_OREDO2_{tag}\ns_cbranch_vccnz CH_OREDO1_{tag}")
        a(f"s_branch CH_OREDO3_{tag}")
        a.label(f"CH_OREDO2_{tag}")
        for s_ in orest: a(f"v_and_or_b32 v{vOF(s_)}, v{vOF(s_)}, -2, s{sTag}")
        a.nop(2)
        a.label(f"CH_OREDO3_{tag}")
        if diag: a(f"s_add_u32 s{sTS+21}, s{sTS+21}, 0x10000")
        for d in range(4): smf(oacc(d), vOF(w), ar(wo(d, w), 8))
        a(f"s_branch CH_OGO_{tag}")
    a.label(f"CH_DONE_{tag}")
    a.wait_ds_all(True)
    a.nop(5)
    for f in va: f()
    a(f"v_cvt_pk_bf16_f32 v{vVM}, v{vacc(0)}, v{vacc(0)+1}\nv_cvt_pk_bf16_f32 v{vVM+1}, v{vacc(1)}, v{vacc(1)+1}")
    a.nop(2)
    a(dpp(0)); a(dpp(1))
    for d, f in enumerate((vVM, vVM + 1, 10, 11)): a(sel(d, f, T0))
    a(f"buffer_store_dwordx4 {vr(T0,4)}, v{vM16}, {WS}, s{sKm} offen sc1")
    a.dsq = []; a.vmq = []
    if hook: hook["done"](a, w)
```

```python
from asm import *
from layout import *
import math, struct

sWS = 8
WS = f"s[{sWS}:{sWS+3}]"
DB = "s[4:7]"
sW = 17
sRole = 16
sDead = 37
sA, sB, sC_, sD = 32, 33, 34, 35
POLL_BOUND = 1 << 16
SLEEP = [2]
WVERD = [0]
EARLY = [1]
EXP = [None]
OUTF = ['']
HOLD = [0]
PREFETCH = [(48, 50, 58, 52)]

def fbits(x): return struct.unpack("<I", struct.pack("<f", x))[0]

def srd(a, d, ka, size):
    a(f"s_load_dwordx2 s[{d}:{d+1}], s[0:1], {KA[ka]}\ns_mov_b32 s{d+2}, {size}\ns_mov_b32 s{d+3}, 0x20000")

def poll_ge(a, load, vals, target, name, sleep=1, vtmp=None):
    L = a.newlabel("POLL_" + name); E = L + "_E"
    a(f"s_mov_b32 s{sD}, 0")
    a.label(L)
    a(f"s_cmp_lg_u32 s{sDead}, 0\ns_cbranch_scc1 {E}")
    a(load)
    a(f"s_add_u32 s{sD}, s{sD}, 1")
    a(f"s_cmp_gt_u32 s{sD}, {POLL_BOUND}\ns_cselect_b32 s{sDead}, 1, 0")
    a("s_waitcnt vmcnt(0)")
    v = vals[0]
    for k in range(1, len(vals)):
        a(f"v_min_u32 v{vtmp}, v{v}, v{vals[k]}"); v = vtmp
    a(f"v_cmp_gt_u32 vcc, {target}, v{v}")
    a(f"s_cbranch_vccz {E}")
    if sleep: a(f"s_sleep {sleep}")
    a(f"s_branch {L}")
    a.label(E)
    a.vmq = []

def flag_store(a, soff, sval, v0=2):
    a(f"v_mov_b32 v{v0}, {sval}\ns_mov_b64 exec, 1")
    a.vm(f"buffer_store_dword v{v0}, off, {WS}, {soff} sc1", "flag")
    a("s_mov_b64 exec, -1")

def layernorm(a, sTask, diag=False, local=None, after_loads=None, after_sum=None):
    srd(a, 60, "x", 2048 * 1024)
    a(f"""
    v_and_b32 v8, 7, v0
    v_lshrrev_b32 v9, 3, v0
    v_lshlrev_b32 v14, 10, v8
    v_lshl_add_u32 v14, v9, 4, v14
    s_lshl_b32 s27, s{sTask}, 13
    s_waitcnt lgkmcnt(0)
    """)
    R, F = 16, 48
    for s in range(8):
        a.vm(f"buffer_load_dwordx4 {vr(R+4*s,4)}, v14, s[60:63], s27 offen offset:{s*128}", ("ln", s))
    a(f"""
    v_lshrrev_b32 v15, 2, v9
    v_lshlrev_b32 v15, 11, v15
    v_and_b32 v9, 3, v9
    v_lshl_add_u32 v15, v9, 8, v15
    v_lshl_add_u32 v15, v8, 4, v15
    s_lshr_b32 s27, s{sTask}, 2
    s_lshl_b32 s27, s27, 15
    s_bfe_u32 s28, s{sTask}, 0x10001
    s_lshl_b32 s28, s28, 10
    s_add_u32 s27, s27, s28
    s_and_b32 s28, s{sTask}, 1
    s_lshl_b32 s28, s28, 7
    s_add_u32 s27, s27, s28
    s_add_u32 s27, s27, {XN}
    v_mov_b32 v10, 0
    v_mov_b32 v11, 0
    """)
    if after_loads: after_loads()
    for s in range(8):
        a.wait_vm(("ln", s))
        for k in range(4):
            r = R + 4 * s + k; f = F + 8 * s + 2 * k
            a(f"v_lshlrev_b32 v{f}, 16, v{r}\nv_and_b32 v{f+1}, 0xffff0000, v{r}")
            a(f"v_pk_add_f32 v[10:11], v[10:11], {vr(f,2)}")
    if diag: a("s_memrealtime s[72:73]")
    if after_sum: after_sum()
    def allred():
        a("v_add_f32 v10, v10, v11\ns_nop 1\nv_add_f32_dpp v10, v10, v10 row_ror:8 row_mask:0xf bank_mask:0xf")
        for op in ("v_permlane32_swap_b32", "v_permlane16_swap_b32"):
            a(f"v_mov_b32 v11, v10\ns_nop 1\n{op} v10, v11\nv_add_f32 v10, v10, v11")
    allred()
    a(f"v_mul_f32 v12, {fbits(1/512):#x}, v10\nv_mov_b32 v10, 0\nv_mov_b32 v11, 0")
    for k in range(32):
        f = F + 2 * k
        a(f"v_pk_add_f32 {vr(f,2)}, {vr(f,2)}, v[12:13] op_sel_hi:[1,0] neg_lo:[0,1] neg_hi:[0,1]")
        a(f"v_pk_fma_f32 v[10:11], {vr(f,2)}, {vr(f,2)}, v[10:11]")
    allred()
    a(f"v_mov_b32 v12, {fbits(1e-5):#x}\nv_fmac_f32 v12, {fbits(1/512):#x}, v10\nv_rsq_f32 v12, v12\ns_nop 0")
    for s in range(8):
        for k in range(4):
            f = F + 8 * s + 2 * k
            a(f"v_pk_mul_f32 {vr(f,2)}, {vr(f,2)}, v[12:13] op_sel_hi:[1,0]")
            a(f"v_cvt_pk_bf16_f32 v{R+4*s+k}, v{f}, v{f+1}")
        if local is None:
            a.vm(f"buffer_store_dwordx4 {vr(R+4*s,4)}, v15, {WS}, s27 offen sc1", "lnst")
            a(f"s_add_u32 s27, s27, 4096")
        else:
            if s == 0: a(f"s_and_b32 s27, s27, 0x7fff\ns_add_u32 s27, s27, {local}\nv_add_u32 v15, s27, v15")
            a.ds(f"ds_write_b128 v15, {vr(R+4*s,4)} offset:{s*4096}")
    if diag: a("s_memrealtime s[74:75]")

G1_XBUF = 98304
def gemm1(a, wait_init, verdict, sInit, diag=False):
    sSl, sJ, sKind, sRow, sOut, sN, sXs, sFl = 18, 19, 20, 21, 22, 23, 24, 25
    sSh, sXstep, sOstep, sEnd = 44, 45, 46, 47
    a(f"""
    s_lshr_b32 s{sSl}, s{sRole}, 2
    s_and_b32 s{sJ}, s{sRole}, 3
    s_mov_b32 s{sSh}, 0
    s_cmp_lt_u32 s{sRole}, 128
    s_cbranch_scc1 G1_MAP
    s_add_u32 s{sSl}, s{sSl}, 8
    s_cmp_ge_u32 s{sRole}, 160
    s_cbranch_scc1 G1_MAP
    s_lshr_b32 s{sSl}, s{sRole}, 1
    s_sub_u32 s{sSl}, s{sSl}, 32
    s_and_b32 s{sJ}, s{sRole}, 1
    s_mov_b32 s{sSh}, 1
    G1_MAP:
    s_lshr_b32 s{sXstep}, {4*32768}, s{sSh}
    s_sub_u32 s{sXstep}, s{sXstep}, {7*1024}
    s_lshr_b32 s{sOstep}, {4*32*8192}, s{sSh}
    s_lshl_b32 s{sEnd}, 16, s{sSh}
    s_lshr_b32 s{sKind}, s{sSl}, 4            ; 0 K, 1 V, 2 Q, 3 FFN1
    s_load_dwordx2 s[48:49], s[0:1], {KA['Wk']}
    s_load_dwordx2 s[50:51], s[0:1], {KA['Wv']}
    s_load_dwordx2 s[52:53], s[0:1], {KA['Wq']}
    s_load_dwordx2 s[54:55], s[0:1], {KA['w1']}
    s_load_dwordx2 s[56:57], s[0:1], {KA['b1']}
    s_load_dwordx2 s[58:59], s[0:1], {KA['Wo']}
    s_waitcnt lgkmcnt(0)
    s_mov_b32 s12, s48
    s_mov_b32 s13, s49
    s_mov_b32 s14, {512*4096*2}
    s_mov_b32 s{sRow}, 8192
    s_cmp_eq_u32 s{sKind}, 1
    s_cselect_b32 s12, s50, s12
    s_cselect_b32 s13, s51, s13
    s_cmp_eq_u32 s{sKind}, 2
    s_cselect_b32 s12, s52, s12
    s_cselect_b32 s13, s53, s13
    s_cmp_eq_u32 s{sKind}, 3
    s_cselect_b32 s12, s54, s12
    s_cselect_b32 s13, s55, s13
    s_cselect_b32 s14, {512*1792*2}, s14
    s_cselect_b32 s{sRow}, 3584, s{sRow}
    s_mov_b32 s15, 0x20000
    v_and_b32 v240, 15, v0
    v_lshrrev_b32 v241, 4, v0
    v_and_b32 v242, 3, v0
    v_bfe_u32 v243, v0, 2, 2
    v_lshrrev_b32 v4, 3, v0
    v_mul_lo_u32 v4, v4, s{sRow}
    v_and_b32 v5, 7, v0
    v_bfe_u32 v6, v0, 4, 1
    v_lshlrev_b32 v6, 1, v6
    v_xor_b32 v5, v5, v6
    v_xor_b32 v6, 4, v5
    s_and_b32 s{sA}, s{sSl}, 15
    s_lshl_b32 s{sA}, s{sA}, 9
    s_lshl_b32 s{sB}, s{sW}, 7
    s_add_u32 s{sA}, s{sA}, s{sB}
    v_add_u32 v4, s{sA}, v4
    v_lshl_add_u32 v244, v5, 4, v4
    v_lshl_add_u32 v245, v6, 4, v4
    v_lshl_add_u32 v4, v241, 3, v243
    v_lshlrev_b32 v4, 7, v4
    v_lshl_add_u32 v4, v242, 3, v4
    s_mul_i32 s{sA}, s{sW}, 24576
    v_add_u32 v4, s{sA}, v4
    v_lshrrev_b32 v5, 1, v243
    v_and_b32 v6, 1, v241
    v_lshl_add_u32 v5, v6, 1, v5
    """)
    for f in range(4):
        a(f"v_xor_b32 v6, {f}, v5\nv_lshl_add_u32 v{246+f}, v6, 5, v4")
    a(f"s_lshl_b32 s{sC_}, s{sRow}, 3\ns_mov_b32 s{sN}, 0")
    def issue(c):
        for i in range(8):
            a(f"s_add_u32 m0, s{sA}, {(c%3)*8192 + i*1024}\ns_nop 0")
            a.vm(f"buffer_load_dwordx4 v{244 + (i&1)}, s[12:15], s{sN} offen lds", ("w", c))
            a(f"s_add_u32 s{sN}, s{sN}, s{sC_}")
    def prefetch():
        if not PREFETCH[0]: return
        a(f"s_lshl_b32 s{sB}, s{sRole}, 2\ns_add_u32 s{sB}, s{sB}, s{sW}\ns_lshl_b32 s{sB}, s{sB}, 12\ns_add_u32 s{sD}, s{sB}, {896*4096}")
        a("v_lshlrev_b32 v13, 6, v0\ns_mov_b32 s42, 0x400000\ns_mov_b32 s43, 0x20000")
        for p in PREFETCH[0]:
            a(f"s_mov_b32 s40, s{p}\ns_mov_b32 s41, s{p+1}")
            a.vm(f"buffer_load_dword v252, v13, s[40:43], s{sB} offen", "pf")
            a.vm(f"buffer_load_dword v252, v13, s[40:43], s{sD} offen", "pf")
    sTask, sHave, sBit, sWd = 26, 31, 38, 39
    a(f"""
    s_mov_b32 s{sHave}, 0
    s_mov_b32 s{sTask}, s{sRole}
    s_and_b32 s{sB}, s{sRole}, 3
    s_cmp_eq_u32 s{sW}, s{sB}
    s_cbranch_scc1 G1_LN
    s_xor_b32 s{sB}, s{sB}, 2
    s_cmp_lg_u32 s{sW}, s{sB}
    s_cbranch_scc1 G1_NOLN
    s_and_b32 s{sB}, s{sRole}, 31
    s_cmp_ge_u32 s{sB}, 5
    s_cbranch_scc1 G1_NOLN
    s_lshr_b32 s{sTask}, s{sRole}, 5
    s_mul_i32 s{sTask}, s{sTask}, 5
    s_add_u32 s{sTask}, s{sTask}, s{sB}
    s_add_u32 s{sTask}, s{sTask}, 224
    s_cmp_ge_u32 s{sTask}, 256
    s_cbranch_scc1 G1_NOLN
    G1_LN:
    """)
    layernorm(a, sTask, diag, None, prefetch)
    a(f"s_mov_b32 s{sHave}, 1\ns_branch G1_LN1")
    a.label("G1_NOLN")
    prefetch()
    a.label("G1_LN1")
    def peek():
        a(f"v_mov_b32 v2, {D_INIT}")
        a.vm(f"buffer_load_dword v251, v2, {DB}, 0 offen sc1", "peek")
    def report():
        L = a.newlabel("LNREP")
        a(f"s_cmp_eq_u32 s{sHave}, 0\ns_cbranch_scc1 {L}")
        a(f"v_readfirstlane_b32 s{sB}, v251\ns_nop 3\ns_cmp_ge_u32 s{sB}, {2*NINIT}\ns_cselect_b32 s{sInit}, 1, s{sInit}")
        keep = list(a.vmq)
        wait_init(a, 2)
        if diag: a("s_memrealtime s[76:77]")
        a(f"s_lshl_b32 s{sB}, s{sTask}, 7\ns_add_u32 s{sB}, s{sB}, {LNF}")
        flag_store(a, f"s{sB}", 1, 2)
        a.vmq = keep
        a.label(L)
    a(f"s_cmp_ge_u32 s{sRole}, 188\ns_cbranch_scc1 G1_IDLE")
    if EXP[0]:
        kmin, n = EXP[0]
        a(f"s_cmp_lt_u32 s{sKind}, {kmin}\ns_cbranch_scc1 G1_EXP")
        peek(); a.wait_vm_all(True); report(); a(f"s_mov_b32 s{sHave}, 0")
        for _ in range(n): a("s_sleep 127")
        a.label("G1_EXP")
    a.vmq = []
    a(f"s_lshl_b32 s30, s{sJ}, 2\ns_add_u32 s30, s30, s{sW}")
    layernorm(a, 30, False, G1_XBUF, lambda: [peek()] + [issue(c) for c in range(3)], lambda: (a.wait_vm("peek"), report()))
    W = lambda f, s: 4 * (f * 16 + s)
    for c in range(8):
        a.wait_vm(("w", c))
        if c == WVERD[0]: verdict(a)
        for s_ in range(2):
            for f in range(4):
                for p in range(2):
                    a.ds(f"ds_read_b64_tr_b16 {ar(W(f, 2*c+s_) + 2*p, 2)}, v{246+f} offset:{(c%3)*8192 + (32*s_+4*p)*128}")
        a.wait_ds_all()
        if c + 3 < 8: issue(c + 3)
    if diag: a("s_memrealtime s[64:65]")
    vBias = 112
    for r in range(16): a(f"v_mov_b32 v{vBias+r}, 0")
    a(f"s_cmp_lg_u32 s{sKind}, 3\ns_cbranch_scc1 G1_NOBIAS")
    a(f"""
    s_mov_b32 s12, s56
    s_mov_b32 s13, s57
    s_mov_b32 s14, 3584
    s_and_b32 s{sA}, s{sSl}, 15
    s_lshl_b32 s{sA}, s{sA}, 9
    s_lshl_b32 s{sB}, s{sW}, 7
    s_add_u32 s{sA}, s{sA}, s{sB}
    v_lshlrev_b32 v4, 3, v241
    """)
    for f in range(4): a(f"buffer_load_dwordx2 {vr(8+2*f,2)}, v4, s[12:15], s{sA} offen offset:{f*32}")
    a("s_waitcnt vmcnt(0)")
    for f in range(4):
        for k in range(2):
            a(f"v_lshlrev_b32 v{vBias+4*f+2*k}, 16, v{8+2*f+k}\nv_and_b32 v{vBias+4*f+2*k+1}, 0xffff0000, v{8+2*f+k}")
    a.label("G1_NOBIAS")
    if diag: a("s_memtime s[96:97]")
    a(f"""
    v_lshlrev_b32 v4, 4, v0
    v_add_u32 v5, {G1_XBUF}, v4
    s_lshl_b32 s{sXs}, s{sJ}, 15
    s_lshl_b32 s{sA}, s{sW}, 13
    s_add_u32 s{sXs}, s{sXs}, s{sA}
    s_add_u32 s{sXs}, s{sXs}, {XN}
    s_lshl_b32 s{sFl}, s{sRole}, 7
    s_add_u32 s{sFl}, s{sFl}, {G1F}
    s_and_b32 s{sA}, s{sSl}, 15
    s_lshl_b32 s{sA}, s{sA}, 1
    s_lshr_b32 s{sB}, s{sW}, 1
    s_add_u32 s{sA}, s{sA}, s{sB}             ; head
    s_lshl_b32 s{sB}, s{sJ}, 5
    s_add_u32 s{sA}, s{sA}, s{sB}
    s_lshl_b32 s{sOut}, s{sA}, 13
    s_and_b32 s{sB}, s{sW}, 1
    """)
    sLb = 26
    a(f"s_lshl_b32 s{sLb}, s{sW}, 13")
    def xdma1(par, i):
        a(f"s_add_u32 m0, s{sLb}, {G1_XBUF + par*32768 + i*1024}")
        a(f"s_add_u32 s{sXs}, s{sXs}, {1024 if i else 's%d' % sXstep}")
        a.vm(f"buffer_load_dwordx4 v4, {WS}, s{sXs} offen lds", "x")
    a(f"s_add_u32 s{sXs}, s{sXs}, {7*1024}")
    a(f"s_cmp_eq_u32 s{sKind}, 1\ns_cbranch_scc1 G1_V\ns_cmp_eq_u32 s{sKind}, 3\ns_cbranch_scc1 G1_H")
    for kind in ("QK", "V", "H"):
        a.label(f"G1_{kind}")
        if kind == "QK":
            a(f"s_lshl_b32 s{sB}, s{sB}, 10\ns_add_u32 s{sOut}, s{sOut}, s{sB}")
            a(f"s_mov_b32 s{sB}, {QIMG}\ns_cmp_eq_u32 s{sKind}, 0\ns_cselect_b32 s{sB}, {KIMG}, s{sB}\ns_add_u32 s{sOut}, s{sOut}, s{sB}")
            step = f"s{sOstep}"
        elif kind == "V":
            a(f"s_lshl_b32 s{sB}, s{sB}, 12\ns_add_u32 s{sOut}, s{sOut}, s{sB}\ns_add_u32 s{sOut}, s{sOut}, {VIMG}")
            step = 4 * 32 * 8192
        else:
            a(f"s_and_b32 s{sA}, s{sSl}, 15\ns_lshl_b32 s{sA}, s{sA}, 2\ns_add_u32 s{sA}, s{sA}, s{sW}\ns_lshl_b32 s{sA}, s{sA}, 11")
            a(f"s_mul_i32 s{sB}, s{sJ}, {2*56*1024}\ns_add_u32 s{sOut}, s{sA}, s{sB}\ns_add_u32 s{sOut}, s{sOut}, {HIMG}")
            step = 4 * 2 * 56 * 1024
        acc = lambda par, mt, f: 128 + par * 32 + (mt * 4 + f) * 4
        vX = lambda s, mt: 16 + ((s % 3) * 2 + mt) * 4
        vS = 48
        def epilogue(par):
            jobs = []
            for n in range(4):
                if kind == "QK": mt, t = n >> 1, n & 1; srcs = (acc(par, mt, t), acc(par, mt, t + 2)); off = mt * 4096 + t * 2048
                elif kind == "V": srcs = (acc(par, 0, n), acc(par, 1, n)); off = n * 1024
                else: mt, t = n >> 1, n & 1; srcs = (acc(par, mt, 2 * t), acc(par, mt, 2 * t + 1)); off = mt * 56 * 1024 + t * 1024
                d = vS + 4 * n
                for h_ in range(2):
                    for k in range(2):
                        r = srcs[h_] + 2 * k
                        if kind == "H":
                            jobs.append(lambda r=r: a(f"v_max_f32 v{r}, 0, v{r}\nv_max_f32 v{r+1}, 0, v{r+1}"))
                            jobs.append(lambda r=r: a(f"v_mul_f32 v{r}, v{r}, v{r}\nv_mul_f32 v{r+1}, v{r+1}, v{r+1}"))
                            jobs.append(lambda r=r, d=d, h_=h_, k=k: a(f"v_cvt_pk_bf16_f32 v{d+2*h_+k}, v{r}, v{r+1}"))
                        else:
                            jobs.append(lambda r=r, d=d, h_=h_, k=k: a(f"v_cvt_pk_bf16_f32 v{d+2*h_+k}, v{r}, v{r+1}"))
                def st(d=d, off=off):
                    a(f"s_add_u32 s{sA}, s{sOut}, {off}")
                    a.vm(f"buffer_store_dwordx4 {vr(d,4)}, v4, {WS}, s{sA} offen sc1", "st")
                jobs.append(st)
            jobs.append(lambda: a(f"s_add_u32 s{sOut}, s{sOut}, {step}"))
            return jobs
        def publish(val):
            L = a.newlabel("G1F")
            a(f"s_cmp_lg_u32 s{sW}, 0\ns_cbranch_scc1 {L}")
            wait_init(a, 8)
            if val is None: a(f"s_sub_u32 s{sA}, s{sN}, 2\ns_max_u32 s{sA}, s{sA}, 1\ns_lshr_b32 s{sA}, s{sA}, s{sSh}"); val = f"s{sA}"
            flag_store(a, f"s{sFl}", val, 8)
            a.label(L)
        def segment(par, n):
            a("s_waitcnt vmcnt(4)" if n == 2 else "s_waitcnt vmcnt(0) lgkmcnt(0)"); a.vmq = []; a.dsq = []
            a("s_barrier")
            rd = lambda s: [a.ds(f"ds_read_b128 {vr(vX(s,mt),4)}, v5 offset:{par*32768 + s*2048 + mt*1024}", ("x", s)) for mt in range(2)]
            rd(0); rd(1)
            if n == 1: publish(1)
            if n == 2: publish(None)
            jobs = epilogue(1 - par) if n == 2 else []
            for s in range(16):
                if s + 2 < 16: rd(s + 2)
                a.wait_ds(("x", s))
                for mt in range(2):
                    for f in range(4):
                        d = acc(par, mt, f)
                        c = (vr(vBias + 4 * f, 4) if kind == "H" else "0") if s == 0 else vr(d, 4)
                        if kind == "V": a(f"v_mfma_f32_16x16x32_bf16 {vr(d,4)}, {vr(vX(s,mt),4)}, {ar(W(f,s),4)}, {c}")
                        else: a(f"v_mfma_f32_16x16x32_bf16 {vr(d,4)}, {ar(W(f,s),4)}, {vr(vX(s,mt),4)}, {c}")
                        if n and s < 8 and mt == 0 and f == 3: xdma1(1 - par, s)
                        elif jobs and s >= 8: jobs.pop(0)()
            assert not jobs
            if n == 1: a("s_waitcnt vmcnt(0)")
            a(f"s_add_u32 s{sN}, s{sN}, 1")
        a(f"s_mov_b32 s{sN}, 0")
        segment(0, 0)
        a.nop(8)
        for j in epilogue(0): j()
        if HOLD[0]:
            a("s_waitcnt vmcnt(0)\ns_barrier")
            publish(1)
        L = a.newlabel("G1LN")
        a(f"s_cmp_lg_u32 s{sW}, 0\ns_cbranch_scc1 {L}")
        wait_init(a, 8)
        a(f"v_lshrrev_b32 v8, 2, v0\ns_sub_u32 s{sA}, 11, s{sSh}\nv_lshlrev_b32 v8, s{sA}, v8\nv_and_b32 v9, 3, v0\nv_lshl_add_u32 v8, v9, 7, v8\ns_lshl_b32 s{sA}, s{sJ}, 9\ns_add_u32 s{sA}, s{sA}, {LNF}")
        poll_ge(a, f"buffer_load_dword v9, v8, {WS}, s{sA} offen sc1", [9], 1, "LN", sleep=2)
        if kind == "QK":
            a(f"s_cmp_eq_u32 s{sSh}, 0\ns_cbranch_scc1 {L}\ns_add_u32 s{sA}, s{sA}, {128*128}")
            poll_ge(a, f"buffer_load_dword v9, v8, {WS}, s{sA} offen sc1", [9], 1, "LN", sleep=2)
        if HOLD[0]:
            wait_init(a, 8)
            a(f"s_and_b32 s{sA}, s{sRole}, 31\ns_lshl_b32 s{sA}, s{sA}, 7\ns_add_u32 s{sA}, s{sA}, {CHF + 64}\nv_mov_b32 v8, 0")
            if HOLD[0] == 1:
                publish_now = a.newlabel("PUB")
            poll_ge(a, f"buffer_load_dword v9, v8, {WS}, s{sA} offen sc1", [9], 1, "STG", sleep=8)
        a.label(L)
        a("s_barrier")
        if diag: a("s_memrealtime s[66:67]")
        for i in range(8): xdma1(1, i)
        segment(1, 1)
        a.label(f"G1_LOOP_{kind}")
        segment(0, 2)
        segment(1, 2)
        a(f"s_cmp_lt_u32 s{sN}, s{sEnd}\ns_cbranch_scc1 G1_LOOP_{kind}")
        a.label(f"G1_END_{kind}")
        a.nop(8)
        for j in epilogue(1): j()
        a.wait_vm_all(True)
        a("s_barrier")
        L = a.newlabel("G1F")
        a(f"s_cmp_lg_u32 s{sW}, 0\ns_cbranch_scc1 {L}")
        flag_store(a, f"s{sFl}", 16, 8)
        a.label(L)
        a.vmq = []; a.dsq = []
        a("s_branch G1_DONE")
    a.label("G1_IDLE")
    peek()
    a.wait_vm_all(True)
    report()
    verdict(a)
    a.label("G1_DONE")

def attention(a, diag=False):
    sSeg, sQ, sKm, sVm, sO, sCh, sAt, sCnt = 18, 19, 20, 21, 22, 23, 24, 25
    sCC = 30
    sMask = 40
    c = (128 ** -0.5) * math.log2(math.e)
    a(f"""
    s_mov_b32 s{sCC}, {fbits(c):#x}
    s_mov_b32 s{sCC+1}, {fbits(c):#x}
    v_lshlrev_b32 v4, 4, v0
    v_and_b32 v5, 0x3d, v0
    v_lshlrev_b32 v5, 4, v5
    v_bfe_u32 v6, v0, 1, 1
    v_lshl_add_u32 v5, v6, 3, v5
    v_and_b32 v6, 15, v0
    v_lshrrev_b32 v7, 4, v0
    v_lshlrev_b32 v7, 2, v7
    """)
    for r in range(4):
        a(f"v_add_u32 v8, {r}, v7\nv_cmp_le_u32 s[{sMask+2*r}:{sMask+2*r+1}], v8, v6")
    a(f"""
    s_lshr_b32 s{sA}, s{sRole}, 1
    s_lshl_b32 s{sB}, s{sA}, 1
    s_and_b32 s{sC_}, s{sW}, 1
    s_add_u32 s{sB}, s{sB}, s{sC_}
    s_add_u32 s{sB}, s{sB}, 128
    s_lshl_b32 s{sA}, s{sA}, 2
    s_add_u32 s{sA}, s{sA}, s{sW}
    v_and_b32 v8, 1, v0
    v_lshl_add_u32 v8, v8, 6, s{sA}
    v_mov_b32 v9, s{sB}
    v_cmp_gt_u32 vcc, 2, v0
    s_mov_b32 s{sA}, {G1F}
    s_nop 0
    v_cndmask_b32 v8, v9, v8, vcc
    v_lshlrev_b32 v8, 7, v8
    """)
    poll_ge(a, f"buffer_load_dword v9, v8, {WS}, s{sA} offen sc1", [9], 16, "QKV")
    a(f"""
    s_mov_b32 s{sSeg}, s{sW}
    s_lshl_b32 s{sA}, s{sW}, 5
    s_add_u32 s{sA}, s{sA}, s{sRole}
    s_lshl_b32 s{sQ}, s{sA}, 13
    s_lshl_b32 s{sKm}, s{sA}, 12
    s_add_u32 s{sKm}, s{sKm}, {KMEM}
    s_lshl_b32 s{sVm}, s{sA}, 11
    s_add_u32 s{sVm}, s{sVm}, {VMEM}
    s_lshl_b32 s{sO}, s{sW}, 18
    s_lshl_b32 s{sB}, s{sRole}, 12
    s_add_u32 s{sO}, s{sO}, s{sB}
    s_add_u32 s{sO}, s{sO}, {OIMG}
    s_lshl_b32 s{sCh}, s{sRole}, 7
    s_add_u32 s{sCh}, s{sCh}, {CHF}
    s_lshl_b32 s{sAt}, s{sA}, 7
    s_add_u32 s{sAt}, s{sAt}, {ATF}
    s_mov_b32 s{sCnt}, 0
    v_mov_b32 v10, 0
    """)
    vQ, vK, vV, vKM, vVM = 16, 48, 80, 112, 128
    ONE = 136
    S = lambda qt, kt: 140 + (qt * 3 + kt) * 4
    PX = lambda qt: 164 + qt * 4
    PM = lambda qt: 172 + qt * 4
    L_ = lambda qt: 180 + qt * 4
    O = lambda qt, ft: 188 + (qt * 8 + ft) * 4
    for r in range(4): a(f"v_mov_b32 v{ONE+r}, 0x3f803f80")
    for qt in range(2): a(f"v_mov_b32 v{PM(qt)+1}, 0\nv_mov_b32 v{PM(qt)+2}, 0")
    mf = lambda d, A, B, c_: a(f"v_mfma_f32_16x16x32_bf16 {vr(d,4)}, {vr(A,4)}, {vr(B,4)}, {c_}")
    mf16 = lambda d, A, B, c_: a(f"v_mfma_f32_16x16x16_bf16 {vr(d,4)}, {vr(A,2)}, {vr(B,2)}, {c_}")
    if EARLY[0]:
        a(f"s_cmp_lt_u32 s{sW}, 2\ns_cbranch_scc1 AT_LOOP")
        for r in range(4): a(f"v_mov_b32 v{vK+r}, -1")
        for qt in range(2):
            a(f"s_add_u32 s{sA}, s{sO}, {15*4*2*128*1024 + qt*128*1024}")
            for i in range(4): a(f"buffer_store_dwordx4 {vr(vK,4)}, v4, {WS}, s{sA} offen offset:{i*1024} sc1")
        a.nop(2)
    a.label("AT_LOOP")
    for (base, img) in ((vK, KIMG), (vQ, QIMG), (vV, VIMG)):
        for hf in range(2):
            a(f"s_add_u32 s{sA}, s{sQ}, {img + hf*4096}")
            for i in range(4):
                a.vm(f"buffer_load_dwordx4 {vr(base+16*hf+4*i,4)}, v4, {WS}, s{sA} offen offset:{i*1024} sc1", ("in", base))
    a.wait_vm(("in", vQ))
    for (qt, kt) in ((0, 0), (1, 0), (1, 1)):
        for s in range(4):
            mf(S(qt, kt), vK + 16 * kt + 4 * s, vQ + 16 * qt + 4 * s, "0" if s == 0 else vr(S(qt, kt), 4))
    a(f"s_add_u32 s{sB}, s{sSeg}, 1")
    if EARLY[0] == 2: a(f"s_min_u32 s{sB}, s{sB}, 61")
    poll_ge(a, f"buffer_load_dword v9, v10, {WS}, s{sCh} offen sc1", [9], f"s{sB}", "CH", sleep=SLEEP[0])
    def kmload():
        for i in range(4): a.vm(f"buffer_load_dwordx4 {vr(vKM+4*i,4)}, v4, {WS}, s{sKm} offen offset:{i*1024} sc1", "km")
        for i in range(4): a.vm(f"buffer_load_dwordx2 {vr(vVM+2*i,2)}, v5, {WS}, s{sKm} offen offset:{i*1024} sc1", "vm")
    if diag: a("s_memrealtime s[72:73]")
    kmload()
    a("v_mov_b32 v11, 0xff800000")
    for (qt, kt) in ((0, 0), (1, 1)):
        for r in range(4):
            a(f"v_cndmask_b32 v{S(qt,kt)+r}, v11, v{S(qt,kt)+r}, s[{sMask+2*r}:{sMask+2*r+1}]")
    a(f"v_max3_f32 v12, v{S(0,0)}, v{S(0,0)+1}, v{S(0,0)+2}\nv_max_f32 v12, v12, v{S(0,0)+3}")
    a(f"v_max3_f32 v14, v{S(1,0)}, v{S(1,0)+1}, v{S(1,0)+2}\nv_max3_f32 v14, v14, v{S(1,0)+3}, v{S(1,1)}")
    a(f"v_max3_f32 v14, v14, v{S(1,1)+1}, v{S(1,1)+2}\nv_max_f32 v14, v14, v{S(1,1)+3}")
    if EARLY[0]:
        a(f"s_cmp_lt_u32 s{sSeg}, 62\ns_cbranch_scc1 AT_KMOK\ns_mov_b32 s{sD}, 0")
        a.label("AT_KMCHK")
        a("s_waitcnt vmcnt(0)")
        rs = list(range(vKM, vKM + 24))
        a(f"v_max3_u32 v13, v{rs[0]}, v{rs[1]}, v{rs[2]}\nv_max3_u32 v15, v{rs[3]}, v{rs[4]}, v{rs[5]}")
        for k in range(6, 22, 4): a(f"v_max3_u32 v13, v13, v{rs[k]}, v{rs[k+1]}\nv_max3_u32 v15, v15, v{rs[k+2]}, v{rs[k+3]}")
        a(f"v_max3_u32 v13, v13, v{rs[22]}, v{rs[23]}\nv_max_u32 v13, v13, v15\nv_cmp_eq_u32 vcc, -1, v13\ns_cbranch_vccz AT_KMOK")
        a(f"s_add_u32 s{sD}, s{sD}, 1\ns_cmp_gt_u32 s{sD}, {POLL_BOUND}\ns_cbranch_scc1 AT_KMOK")
        keep = list(a.vmq); kmload(); a.vmq = keep
        a("s_branch AT_KMCHK")
        a.label("AT_KMOK")
    a.wait_vm("km")
    for qt in range(2):
        for s in range(4):
            mf(S(qt, 2), vKM + 4 * s, vQ + 16 * qt + 4 * s, "0" if s == 0 else vr(S(qt, 2), 4))
    a.nop(8)
    for qt in range(2):
        a(f"v_max3_f32 v{12+2*qt}, v{12+2*qt}, v{S(qt,2)+2}, v{S(qt,2)+3}")
    for op in ("v_permlane32_swap_b32", "v_permlane16_swap_b32"):
        a(f"v_mov_b32 v13, v12\nv_mov_b32 v15, v14\ns_nop 0\n{op} v12, v13\n{op} v14, v15\nv_max_f32 v12, v12, v13\nv_max_f32 v14, v14, v15")
    a(f"v_mul_f32 v12, s{sCC}, v12\nv_mul_f32 v14, s{sCC}, v14")
    for qt in range(2):
        m = 12 + 2 * qt
        prs = [S(qt, 2) + 2, S(qt, 0), S(qt, 0) + 2] + ([S(qt, 1), S(qt, 1) + 2] if qt else [])
        for r in prs:
            a(f"v_pk_fma_f32 {vr(r,2)}, {vr(r,2)}, s[{sCC}:{sCC+1}], {vr(m,2)} op_sel_hi:[1,1,0] neg_lo:[0,0,1] neg_hi:[0,0,1]")
        for r in prs: a(f"v_exp_f32 v{r}, v{r}\nv_exp_f32 v{r+1}, v{r+1}")
        a.nop(1)
        a(f"v_cvt_pk_bf16_f32 v{PM(qt)}, v{prs[0]}, v{prs[0]+1}\nv_cvt_pk_bf16_f32 v{PM(qt)+3}, v{prs[0]}, v{prs[0]+1}")
        for k, r in enumerate(prs[1:]): a(f"v_cvt_pk_bf16_f32 v{PX(qt)+k}, v{r}, v{r+1}")
    a.wait_vm_all()
    a.nop(2)
    for qt in range(2):
        mf16(L_(qt), ONE, PM(qt), "0")
        for ft in range(8): mf16(O(qt, ft), vVM + 2 * (ft >> 1), PM(qt) + 2 * (ft & 1), "0")
        m2 = mf if qt else mf16
        m2(L_(qt), ONE, PX(qt), vr(L_(qt), 4))
        for ft in range(8): m2(O(qt, ft), vV + 4 * ft, PX(qt), vr(O(qt, ft), 4))
    for qt in range(2):
        if qt: a.nop(4)
        a(f"v_rcp_f32 v12, v{L_(qt)}")
        if qt: a(f"s_add_u32 s{sA}, s{sO}, {128*1024}")
        else: a.nop(1)
        for pr in range(4):
            d = vK + 16 * qt + 4 * pr
            for h_ in range(2):
                for k in range(2):
                    r = O(qt, 2 * pr + h_) + 2 * k
                    a(f"v_pk_mul_f32 {vr(r,2)}, {vr(r,2)}, v[12:13] op_sel_hi:[1,0]")
                    a(f"v_cvt_pk_bf16_f32 v{d+2*h_+k}, v{r}, v{r+1}")
            a.vm(f"buffer_store_dwordx4 {vr(d,4)}, v4, {WS}, s{sA if qt else sO} offen offset:{pr*1024} sc1", "o")
    a(f"s_add_u32 s{sCnt}, s{sCnt}, 1")
    if EARLY[0]: a(f"s_cmp_ge_u32 s{sSeg}, 62\ns_cbranch_scc1 AT_FLAG")
    a.wait_vm_all()
    a.label("AT_FLAG")
    if diag: a("s_memrealtime s[74:75]")
    flag_store(a, f"s{sAt}", f"s{sCnt}", 8)
    a(f"""
    s_add_u32 s{sQ}, s{sQ}, {4*32*8192}
    s_add_u32 s{sKm}, s{sKm}, {4*32*4096}
    s_add_u32 s{sVm}, s{sVm}, {4*32*2048}
    s_add_u32 s{sO}, s{sO}, {4*2*128*1024}
    s_add_u32 s{sSeg}, s{sSeg}, 4
    s_cmp_lt_u32 s{sSeg}, 64
    s_cbranch_scc1 AT_LOOP
    """)
    a.vmq = []; a.dsq = []

def gemm2(a, diag=False):
    sCs, sU, sO, sH_, sX, sN, sPar = 18, 19, 20, 21, 22, 23, 24
    srd(a, 12, "Wo", 4096 * 1024)
    srd(a, 48, "w2", 1792 * 1024)
    srd(a, 52, "x", 2048 * 1024)
    srd(a, 56, "out", 2048 * 1024)
    srd(a, 60, "b2", 1024)
    a(f"""
    s_and_b32 s{sCs}, s{sRole}, 15
    s_lshr_b32 s{sU}, s{sRole}, 4
    v_and_b32 v100, 15, v0
    v_lshrrev_b32 v101, 4, v0
    v_and_b32 v102, 3, v0
    v_bfe_u32 v103, v0, 2, 2
    v_lshrrev_b32 v4, 2, v0
    v_lshlrev_b32 v4, 10, v4
    v_lshl_add_u32 v4, v102, 4, v4
    s_lshl_b32 s{sA}, s{sCs}, 6
    v_add_u32 v104, s{sA}, v4
    v_lshl_add_u32 v4, v101, 2, v103
    v_lshlrev_b32 v4, 6, v4
    v_lshl_add_u32 v4, v102, 4, v4
    s_mul_i32 s{sA}, s{sW}, 32768
    v_add_u32 v105, s{sA}, v4
    s_waitcnt lgkmcnt(0)
    """)
    Wo_ = lambda s, T: ar(8 * s + 4 * T, 4)
    VW2 = 144
    W2_ = lambda s, T: vr(VW2 + 8 * s + 4 * T, 4)
    chunks = [("o", c, 8) for c in range(8)] + [("2", c, 8) for c in range(3)] + [("2", 3, 4)]
    a(f"s_lshl_b32 s{sN}, s{sW}, 20\ns_mul_i32 s{sB}, s{sW}, {448*1024}")
    def issue(n):
        m, c, cnt = chunks[n]
        for i in range(cnt):
            a(f"s_add_u32 m0, s{sA}, {(n%4)*8192 + i*1024}\ns_nop 0")
            so = sN if m == "o" else sB
            a.vm(f"buffer_load_dwordx4 v104, {'s[12:15]' if m == 'o' else 's[48:51]'}, s{so} offen lds", ("w", n))
            a(f"s_add_u32 s{so}, s{so}, {16*1024}")
    for n in range(4): issue(n)
    for n, (m, c, cnt) in enumerate(chunks):
        a.wait_vm(("w", n))
        for s_ in range(cnt // 2):
            for T in range(2):
                for p in range(2):
                    base = (8 * (4 * c + s_) + 4 * T + 2 * p)
                    dst = ar(base, 2) if m == "o" else vr(VW2 + base, 2)
                    a.ds(f"ds_read_b64_tr_b16 {dst}, v105 offset:{(n%4)*8192 + (32*s_+16*p)*64 + T*8}")
        a.wait_ds_all()
        if n + 4 < len(chunks): issue(n + 4)
    if diag: a("s_memrealtime s[68:69]")
    vB = 8
    a(f"""
    v_lshlrev_b32 v4, 4, v101
    s_lshl_b32 s{sA}, s{sCs}, 6
    buffer_load_dwordx4 v[16:19], v4, s[60:63], s{sA} offen
    v_lshl_add_u32 v6, v100, 10, v4
    v_add_u32 v6, s{sA}, v6
    v_lshlrev_b32 v4, 4, v0
    v_add_u32 v5, 131072, v4
    v_and_b32 v7, 7, v0
    v_lshlrev_b32 v7, 7, v7
    s_waitcnt vmcnt(0)
    """)
    for k in range(4): a(f"v_lshlrev_b32 v{vB+2*k}, 16, v{16+k}\nv_and_b32 v{vB+2*k+1}, 0xffff0000, v{16+k}")
    a(f"v_min_u32 v16, 27, v0\nv_lshlrev_b32 v16, 7, v16\ns_mov_b32 s{sA}, {G1F + 160*128}")
    poll_ge(a, f"buffer_load_dword v17, v16, {WS}, s{sA} offen sc1", [17], 16, "H")
    a(f"s_mov_b32 s{sPar}, 0")
    a("s_barrier")
    NR = 24
    vR = lambda k: 40 + 4 * (k % NR)
    AC = 24
    a.label("G2_LOOP")
    a(f"""
    s_mul_i32 s{sH_}, s{sU}, {56*1024}
    s_mul_i32 s{sA}, s{sW}, {14*1024}
    s_add_u32 s{sH_}, s{sH_}, s{sA}
    s_add_u32 s{sH_}, s{sH_}, {HIMG}
    s_lshl_b32 s{sO}, s{sU}, 17
    s_lshl_b32 s{sA}, s{sW}, 15
    s_add_u32 s{sO}, s{sO}, s{sA}
    s_add_u32 s{sO}, s{sO}, {OIMG}
    s_lshl_b32 s{sX}, s{sU}, 14
    """)
    a.vm(f"buffer_load_dwordx4 v[20:23], v6, s[52:55], s{sX} offen", "x")
    def ld(k, sbase, n):
        if n and n % 4 == 0: a(f"s_add_u32 s{sbase}, s{sbase}, 4096")
        a.vm(f"buffer_load_dwordx4 {vr(vR(k),4)}, v4, {WS}, s{sbase} offen offset:{(n%4)*1024} sc1", ("a", k))
    for n in range(14): ld(n, sH_, n)
    for n in range(14):
        a.wait_vm(("a", n))
        for T in range(2):
            a(f"v_mfma_f32_16x16x32_bf16 {vr(AC+4*T,4)}, {W2_(n,T)}, {vr(vR(n),4)}, {'0' if n == 0 else vr(AC+4*T,4)}")
    a(f"""
    s_lshr_b32 s{sB}, s{sU}, 1
    s_and_b32 s{sA}, s{sB}, 3
    s_lshl_b32 s{sA}, s{sA}, 12
    s_lshl_b32 s{sC_}, s{sW}, 10
    s_add_u32 s{sA}, s{sA}, s{sC_}
    s_add_u32 s{sA}, s{sA}, {ATF}
    s_lshr_b32 s{sB}, s{sB}, 2
    s_add_u32 s{sB}, s{sB}, 1
    """)
    poll_ge(a, f"buffer_load_dword v17, v7, {WS}, s{sA} offen sc1", [17], f"s{sB}", "AT", sleep=SLEEP[0])
    if diag: a("s_memrealtime s[72:73]")
    if EARLY[0]:
        for k in range(8): a(f"v_mov_b32 v{136+k}, v{AC+k}")
        a(f"s_mov_b32 s{sN}, 0")
        a.label("G2_OPART")
    for n in range(NR): ld(n, sO, n)
    for n in range(32):
        a.wait_vm(("a", n))
        for T in range(2):
            a(f"v_mfma_f32_16x16x32_bf16 {vr(AC+4*T,4)}, {Wo_(n,T)}, {vr(vR(n),4)}, {vr(AC+4*T,4)}")
        if n + NR < 32: ld(n + NR, sO, n + NR)
    a(f"s_lshl_b32 s{sA}, s{sW}, 11\ns_add_u32 s{sA}, s{sA}, s{sPar}\nv_add_u32 v16, s{sA}, v5")
    a.nop(6)
    if EARLY[0]:
        a(f"s_cmp_lt_u32 s{sU}, 124\ns_cbranch_scc1 G2_OOK\nv_cmp_u_f32 vcc, v{AC}, v{AC}\ns_cbranch_vccz G2_OOK")
        a(f"s_add_u32 s{sN}, s{sN}, 1\ns_cmp_gt_u32 s{sN}, 256\ns_cbranch_scc1 G2_OOK")
        for k in range(8): a(f"v_mov_b32 v{AC+k}, v{136+k}")
        a(f"s_sub_u32 s{sO}, s{sO}, {7*4096}\ns_branch G2_OPART")
        a.label("G2_OOK")
    if diag: a(f"s_memrealtime s[74:75]\ns_mov_b32 s76, s{sN}")
    a.ds(f"ds_write_b128 v16, {vr(AC,4)}")
    a.ds(f"ds_write_b128 v16, {vr(AC+4,4)} offset:1024")
    a.wait_ds_all()
    a("s_barrier")
    a(f"s_cmp_lg_u32 s{sW}, 0\ns_cbranch_scc1 G2_NEXT")
    for w_ in range(1, 4):
        a.ds(f"ds_read_b128 {vr(32+8*w_,4)}, v16 offset:{w_*2048}", ("r", w_))
        a.ds(f"ds_read_b128 {vr(36+8*w_,4)}, v16 offset:{w_*2048+1024}", ("r", w_))
    for k in range(4):
        a(f"v_lshlrev_b32 v32, 16, v{20+k}\nv_and_b32 v33, 0xffff0000, v{20+k}")
        a(f"v_pk_add_f32 {vr(AC+2*k,2)}, {vr(AC+2*k,2)}, {vr(vB+2*k,2)}")
        a(f"v_pk_add_f32 {vr(AC+2*k,2)}, {vr(AC+2*k,2)}, v[32:33]")
    for w_ in range(1, 4):
        a.wait_ds(("r", w_))
        for k in range(4): a(f"v_pk_add_f32 {vr(AC+2*k,2)}, {vr(AC+2*k,2)}, {vr(32+8*w_+2*k,2)}")
    for k in range(4): a(f"v_cvt_pk_bf16_f32 v{36+k}, v{AC+2*k}, v{AC+2*k+1}")
    a(f"buffer_store_dwordx4 v[36:39], v6, s[56:59], s{sX} offen {OUTF[0]}")
    a.label("G2_NEXT")
    a(f"""
    s_xor_b32 s{sPar}, s{sPar}, 8192
    s_add_u32 s{sU}, s{sU}, {NSETS}
    s_cmp_lt_u32 s{sU}, 128
    s_cbranch_scc1 G2_LOOP
    """)
    a.vmq = []; a.dsq = []
```

```python
from asm import *
from layout import *
import math

MISC = 131072
M_OFF = 0
X_OFF = 8192
KX_OFF = 16384
O_OFF = 13568
XS = 1088
sWS = 8
sTMP = 12
sH, sW, sStep = 16, 17, 18
sPst, sPld, sTag, sMpub, sMpoll, sMclr = 19, 20, 21, 22, 23, 24
sVx, sKx, sKm, sVm = 25, 26, 27, 28
sC = 30
sT0, sT1, sT2, sT3 = 32, 33, 34, 35
sCnt = 36
sLO8 = 38
sDBG = 40
sTS = 44
vIDX, vKx, vM16, vRing, vPst, vMpub, vXw, vXr, vOr = 1, 2, 3, 4, 5, 6, 7, 8, 9
vL8 = 0
vNEG = 10
vVA0 = 12
RA_OFF = 12544
vVX = 16
vPM = 24
vACC = 28
vA = 44
vRING = 76
vT = 124
vWK = 128
NRING = 6
WQ_SLOT = [2, 3, 1, 0]
def ringreg(i): return vRING + 8 * (i % NRING)
KXREG = [vRING + 8*4, vRING + 8*5, vRING + 0, vRING + 8]
def kx(kt, s): return KXREG[kt*2 + (s >> 1)] + 4 * (s & 1)
vXF = vRING + 16
def wv(t, s): return 8 * (t * 8 + s)
def wo(d, s): return 128 + 8 * (d * 4 + s)
def wk(t, s): return vWK + 8 * (t * 8 + s)

def wq_lds_imm(i):
    t, s = i >> 3, i & 7
    return WQ_SLOT[s >> 1] * 8192 + ((s & 1) * 2 + t) * 2048

def stamp(a, k, diag):
    if diag: a(f"s_memtime s[{sTS+2*k}:{sTS+2*k+1}]")

def prologue(a, P, diag=False):
    a(f"v_lshrrev_b32 v10, 6, v0\nv_and_b32 v0, 63, v0\nv_readfirstlane_b32 s{sW}, v10\ns_nop 3")
    prologue_a(a, P, True); prologue_b(a, P)

def prologue_a(a, P, dma):
    WNT[0] = P.get("wnt", "")
    a(f"""
    s_load_dwordx4 s[48:51], s[0:1], {KA['Wq']}
    s_load_dwordx4 s[52:55], s[0:1], {KA['Wv']}
    s_load_dwordx2 s[56:57], s[0:1], {KA['mem0']}
    """)
    a(f"""
    v_and_b32 v100, 15, v0            ; n
    v_lshrrev_b32 v101, 4, v0         ; g
    v_and_b32 v102, 3, v0             ; c
    v_bfe_u32 v103, v0, 2, 2          ; r''
    """)
    a(f"""
    s_lshl_b32 s{sT2}, s{sH}, 8
    s_lshl_b32 s{sT3}, s{sW}, 6
    s_add_u32 s{sT2}, s{sT2}, s{sT3}
    v_lshrrev_b32 v10, 2, v0
    """)
    for k in range(4):
        a(f"v_xor_b32 v11, {k & 2}, v10\nv_lshlrev_b32 v11, 13, v11\nv_xor_b32 v104, {2*(k&1)}, v102\nv_lshl_add_u32 v11, v104, 4, v11\nv_add_u32 v{vSQ+k}, s{sT2}, v11")
        a(f"v_mov_b32 v{vSRC+k}, v{vSQ+k}\nv_mov_b32 v{vSRC+4+k}, v{vSQ+k}")
    a(f"""
    s_lshl_b32 s{sB0}, s{sW}, 15
    s_lshl_b32 s{sB1}, s{sW}, 13
    s_add_u32 s{sB1}, s{sB1}, {MISC}
    s_mov_b32 s62, 0x400000
    s_mov_b32 s63, 0x20000
    s_getpc_b64 s[{sSub}:{sSub+1}]
    s_add_u32 s{sSub}, s{sSub}, 12
    s_addc_u32 s{sSub+1}, s{sSub+1}, 0
    s_branch CH_SUBE
    """)
    for i in range(8):
        a(f"s_mov_b32 m0, s64\ns_add_u32 s64, s64, 1024\nbuffer_load_dwordx4 v{vSRC+i}, s[60:63], s65 offen {WNT[0]} lds\ns_add_u32 s65, s65, s66")
    a(f"s_setpc_b64 s[{sRet}:{sRet+1}]")
    a.label("CH_SUBE")
    a("s_waitcnt lgkmcnt(0)")
    for c in range(4): w_issue(a, c)
    a(f"""
    v_and_b32 v10, 2, v0
    v_cmp_eq_u32 vcc, 0, v10
    v_mov_b32 v11, 0xeeee
    v_mov_b32 v104, 0x4444
    v_cndmask_b32 v{vIDX}, v11, v104, vcc
    v_lshlrev_b32 v10, 4, v0
    v_add_u32 v{vM16}, {MISC}, v10
    s_lshl_b32 s{sT0}, s{sW}, 15
    v_add_u32 v{vRing}, s{sT0}, v10
    v_lshrrev_b32 v11, 2, v0
    v_lshlrev_b32 v11, 1, v11
    v_and_b32 v104, 1, v0
    v_add_u32 v11, v11, v104
    v_lshlrev_b32 v11, 4, v11
    v_add_u32 v{vOr}, {MISC+O_OFF}, v11
    v_lshlrev_b32 v10, 14, v101
    v_lshrrev_b32 v11, 3, v100
    v_lshl_add_u32 v10, v11, 13, v10
    v_and_b32 v11, 7, v100
    v_lshl_add_u32 v{vPst}, v11, 4, v10
    v_lshlrev_b32 v10, 4, v102
    v_bfe_u32 v11, v0, 2, 1
    v_lshl_add_u32 v10, v11, 3, v10
    v_lshrrev_b32 v11, 1, v101
    v_lshl_add_u32 v10, v11, 2, v10
    v_and_b32 v11, 1, v101
    v_lshl_add_u32 v{vMpub}, v11, 8, v10
    v_add_u32 v{vKx}, {KX_OFF}, v{vM16}
    v_mul_u32_u24 v10, {XS}, v101
    v_lshl_add_u32 v10, v100, 3, v10
    s_lshl_b32 s{sT0}, s{sW}, 8
    s_add_u32 s{sT0}, s{sT0}, {MISC+X_OFF}
    v_add_u32 v{vXw}, s{sT0}, v10
    v_mul_u32_u24 v10, {XS}, v102
    v_lshrrev_b32 v11, 2, v0
    v_lshl_add_u32 v10, v11, 3, v10
    v_add_u32 v{vXr}, {MISC+X_OFF}, v10
    v_bfe_u32 v10, v100, 1, 2
    v_and_b32 v11, 1, v100
    v_lshlrev_b32 v11, 4, v11
    v_mov_b32 v104, 0x3f80
    v_lshlrev_b32 v104, v11, v104
    """)
    for k in range(4):
        a(f"v_cmp_eq_u32 vcc, {k}, v10\ns_nop 1\nv_cndmask_b32 v{112+k}, 0, v104, vcc")
    a(f"s_mov_b32 s{sLO8}, 0x00ff00ff\ns_mov_b32 s{sLO8+1}, 0x00ff00ff\ns_mov_b32 s{sB1M}, 0xcccccccc\ns_mov_b32 s{sB1M+1}, 0xcccccccc\ns_mov_b32 s{sONE}, 0x3f803f80")
    c = (128 ** -0.5) * math.log2(math.e)
    import struct
    cb = struct.unpack("<I", struct.pack("<f", c))[0]
    a(f"s_mov_b32 s{sC}, {cb:#x}\ns_mov_b32 s{sC+1}, {cb:#x}")
    a(f"""
    s_lshl_b32 s{sT2}, s{sH}, 17
    s_lshl_b32 s{sT3}, s{sW}, 8
    s_add_u32 s{sT2}, s{sT2}, s{sT3}
    v_and_b32 v105, 1, v101            ; g&1
    v_lshrrev_b32 v106, 1, v101        ; g>>1
    v_and_b32 v107, 1, v103            ; r&1
    v_lshrrev_b32 v108, 1, v103        ; r>>1
    v_lshlrev_b32 v10, 5, v105
    v_lshl_add_u32 v10, v106, 2, v10
    v_lshl_add_u32 v10, v108, 4, v10
    v_add_u32 v109, v10, v107
    v_lshlrev_b32 v10, 4, v105
    v_lshl_add_u32 v10, v106, 2, v10
    v_add_u32 v110, v10, v107
    """)
    for k in range(2):
        a(f"v_lshl_add_u32 v10, v105, 2, 0\nv_xor_b32 v10, v10, v100\nv_xor_b32 v10, {8*k}, v10\nv_lshlrev_b32 v11, 10, v101\nv_lshl_add_u32 v10, v10, 4, v11\nv_add_u32 v{vSO+k}, s{sT2}, v10")
    for mb in range(2):
        for t in range(2):
            a(f"v_add_u32 v10, {2*mb}, v109\nv_lshlrev_b32 v11, 1, v105\nv_xor_b32 v10, v10, v11\nv_lshlrev_b32 v10, 6, v10")
            a(f"v_xor_b32 v11, {t}, v108\nv_lshl_add_u32 v10, v11, 5, v10\nv_lshl_add_u32 v10, v102, 3, v10")
            a(f"v_add_u32 v{vB1+mb*2+t}, s{sB0}, v10\nv_add_u32 v{vB1+4+mb*2+t}, s{sB1}, v10")
    for d in range(4):
        a(f"v_lshl_add_u32 v11, v105, 1, v107\nv_xor_b32 v11, {d}, v11\nv_lshlrev_b32 v10, 8, v110\nv_lshl_add_u32 v10, v11, 6, v10")
        a(f"v_lshl_add_u32 v10, v108, 5, v10\nv_lshl_add_u32 v10, v102, 3, v10")
        a(f"v_add_u32 v{vB2+d}, s{sB0}, v10\nv_add_u32 v{vB2+4+d}, s{sB1}, v10")
    a(f"""
    s_mov_b32 s12, s56
    s_mov_b32 s13, s57
    s_mov_b32 s14, 8192
    s_mov_b32 s15, 0x20000
    v_lshrrev_b32 v10, 2, v100
    v_lshlrev_b32 v10, 1, v10
    v_and_b32 v11, 1, v0
    v_add_u32 v10, v10, v11            ; row
    v_lshlrev_b32 v10, 10, v10
    v_bfe_u32 v11, v0, 1, 1
    v_lshl_add_u32 v10, v11, 5, v10
    v_lshl_add_u32 v10, v101, 3, v10
    s_lshl_b32 s{sT2}, s{sW}, 8        ; ksteps 2w, 2w+1
    v_add_u32 v10, s{sT2}, v10
    buffer_load_dwordx2 v[16:17], v10, s[12:15], 0 offen
    buffer_load_dwordx2 v[18:19], v10, s[12:15], 0 offen offset:64
    buffer_load_dwordx2 v[12:13], v10, s[12:15], 0 offen offset:128
    buffer_load_dwordx2 v[14:15], v10, s[12:15], 0 offen offset:192
    """)

order = ["k"] * 4 + ["v"] * 4 + ["o"] * 4 + ["q"] * 4
srd = {"q": 60, "k": 64, "v": 68, "o": 72}
WNT = ['']
sB0, sB1 = 76, 77
sSub, sRet = 68, 70
vSRC, vSQ, vSO, vB1, vB2 = 76, 84, 88, 90, 116
def w_issue(a, c):
    m = order[c]; cc = c & 3; slot = c % 5
    if cc == 0:
        src = {"q": 48, "k": 50, "v": 52, "o": 54}[m]
        a(f"s_mov_b32 s60, s{src}\ns_mov_b32 s61, s{src+1}\ns_mov_b32 s65, 0")
        if c in (0, 8, 12): a(f"s_mov_b32 s66, {4096 if m == 'o' else 131072}")
        if c in (8, 12):
            for k in range(8): a(f"v_mov_b32 v{vSRC+k}, v{vSO + (k >> 2) if m == 'o' else vSQ + (k & 3)}")
    a(f"s_add_u32 s64, s{sB0}, {slot*8192}" if slot < 4 else f"s_mov_b32 s64, s{sB1}")
    a(f"s_swappc_b64 s[{sRet}:{sRet+1}], s[{sSub}:{sSub+1}]")
    a.vmq += [("w", c)] * 8

def prologue_b(a, P, first_chunk=None, peek=None):
    issue = lambda c: w_issue(a, c)
    a.vmq = [("w", c) for c in range(4) for _ in range(8)]
    for c in range(16):
        m = order[c]; cc = c & 3; slot = c % 5
        a.wait_vm(("w", c))
        if c == 0:
            if first_chunk: first_chunk(a)
            issue(4)
        so, sb = (slot * 8192, 0) if slot < 4 else (0, 4)
        if m != "o":
            for s_ in range(2):
                for t in range(2):
                    for mm in range(4):
                        imm = so + (64 * s_ + 8 * (mm >> 1)) * 64
                        s = 2 * cc + s_
                        if m == "k": dst = vr(wk(t, s) + 2 * mm, 2)
                        elif m == "v": dst = ar(wv(t, s) + 2 * mm, 2)
                        else: dst = vr(vA + (s_ * 2 + t) * 8 + 2 * mm, 2)
                        a.ds(f"ds_read_b64_tr_b16 {dst}, v{vB1 + sb + (mm & 1) * 2 + t} offset:{imm}")
        else:
            for d in range(4):
                for mm in range(4):
                    imm = so + (8 * (mm >> 1) + 2 * (mm & 1)) * 256
                    a.ds(f"ds_read_b64_tr_b16 {ar(wo(d, cc) + 2*mm, 2)}, v{vB2 + sb + d} offset:{imm}")
        a.wait_ds_all()
        if m == "q":
            for k in range(8):
                a.ds(f"ds_write_b128 v{vRing}, {vr(vA + 4*k, 4)} offset:{WQ_SLOT[cc]*8192 + k*1024}")
            a.wait_ds_all()
        if c + 5 < 16: issue(c + 5)
        if c == P.get('peek', 13) and peek: peek(a)
        if c == P.get("help_at", -1):
            lo, per = P["help"]
            a(f"s_lshl_b32 s{sT0}, s{sH}, 2\ns_add_u32 s{sT0}, s{sT0}, s{sW}\nv_lshlrev_b32 v10, 7, v0")
            for rep in range(P.get("help_rep", 2)):
                if rep: a(f"s_add_u32 s{sT0}, s{sT0}, {128 // P.get('help_rep', 2) + 1}\ns_and_b32 s{sT0}, s{sT0}, 127")
                a(f"s_mul_i32 s{sT1}, s{sT0}, {per*8192}\ns_add_u32 s{sT1}, s{sT1}, {lo*8192}")
                for k in range(per):
                    a(f"buffer_load_dword v11, v10, s[60:63], s{sT1} offen")
                    if k + 1 < per: a(f"s_add_u32 s{sT1}, s{sT1}, 8192")
    a("s_barrier")
    a(f"""
    ds_write_b128 v{vM16}, v[112:115] offset:{RA_OFF}
    v_lshlrev_b32 v{vL8}, 3, v0
    s_waitcnt lgkmcnt(0)
    """)

def seg_offsets(a, w, P):
    a(f"""
    s_and_b32 s{sT0}, s{sStep}, 3
    s_lshl_b32 s{sT1}, s{sT0}, 18
    s_lshl_b32 s{sT2}, s{sH}, 7
    s_add_u32 s{sPst}, s{sT1}, s{sT2}
    s_add_u32 s{sPst}, s{sPst}, {PART + w*65536}
    s_lshl_b32 s{sT3}, s{sH}, 13
    s_add_u32 s{sPld}, s{sT1}, s{sT3}
    s_add_u32 s{sPld}, s{sPld}, {PART - MISC + (w&1)*4096}
    s_add_u32 s{sT0}, s{sStep}, 3
    s_and_b32 s{sT0}, s{sT0}, 3
    s_lshl_b32 s{sT1}, s{sT0}, 18
    s_mov_b32 s{sTag}, 0
    s_lshr_b32 s{sT2}, s{sH}, 3
    s_lshl_b32 s{sT2}, s{sT2}, 11
    s_and_b32 s{sT3}, s{sH}, 1
    s_lshl_b32 s{sT3}, s{sT3}, 9
    s_add_u32 s{sT2}, s{sT2}, s{sT3}
    s_bfe_u32 s{sT3}, s{sH}, 0x20001
    s_lshl_b32 s{sT3}, s{sT3}, 6
    s_add_u32 s{sT2}, s{sT2}, s{sT3}
    s_lshl_b32 s{sT1}, s{sT0}, 13
    s_add_u32 s{sMclr}, s{sT1}, s{sT2}
    s_add_u32 s{sMclr}, s{sMclr}, {MBUF + (w&1)*1024}
    s_add_u32 s{sT0}, s{sStep}, 1
    s_and_b32 s{sT0}, s{sT0}, 3
    s_lshl_b32 s{sT1}, s{sT0}, 13
    s_add_u32 s{sMpub}, s{sT1}, s{sT2}
    s_add_u32 s{sMpub}, s{sMpub}, {MBUF + (w&1)*1024}
    s_add_u32 s{sMpoll}, s{sT1}, {MBUF - MISC + w*2048}
    s_lshl_b32 s{sT0}, s{sStep}, 5
    s_add_u32 s{sT0}, s{sT0}, s{sH}
    s_lshl_b32 s{sT1}, s{sT0}, 13
    s_add_u32 s{sVx}, s{sT1}, {VIMG - MISC + w*2048}
    s_add_u32 s{sKx}, s{sT1}, {KIMG - MISC + 32*8192}
    s_lshl_b32 s{sT1}, s{sT0}, 12
    s_add_u32 s{sKm}, s{sT1}, {KMEM - MISC + w*1024}
    s_lshl_b32 s{sT1}, s{sT0}, 11
    s_add_u32 s{sVm}, s{sT1}, {VMEM + w*512}
    """)

sRP, sRM, sMprev, sCP1, sCP2, sCM1, sVmPrev = 76, 77, 78, 79, 80, 81, 82
sKb, sStage = 75, 74
sONE = 42
sB1M = 40
def init_incr(a, w):
    a(f"""
    s_mov_b32 s{sRP}, 0
    s_mov_b32 s{sRM}, 8192
    s_mov_b32 s{sCP1}, s{sPst}
    s_mov_b32 s{sCP2}, s{sPld}
    s_sub_u32 s{sCM1}, s{sMpub}, 8192
    s_mov_b32 s{sMprev}, s{sCM1}
    """)
NP = [1]
def advance(a, w):
    a(f"""
    s_add_u32 s{sVx}, s{sVx}, {32*8192}
    s_add_u32 s{sKx}, s{sKx}, {32*8192}
    s_add_u32 s{sKm}, s{sKm}, {32*4096}
    s_sub_u32 s{sMclr}, s{sMprev}, {(w&1)*1024}
    s_mov_b32 s{sMprev}, s{sMpub}
    s_add_u32 s{sRM}, s{sRM}, 8192
    s_and_b32 s{sRM}, s{sRM}, 0x7fff
    s_add_u32 s{sMpub}, s{sRM}, s{sCM1}
    s_add_u32 s{sStep}, s{sStep}, 1
    """)
    if NP[0] == 1: a(f"s_xor_b32 s{sTag}, s{sTag}, 1")
    else:
        a(f"""
        s_add_u32 s{sRP}, s{sRP}, 0x40000
        s_and_b32 s{sRP}, s{sRP}, {NP[0]*0x40000 - 1}
        s_add_u32 s{sPst}, s{sRP}, s{sCP1}
        s_add_u32 s{sPld}, s{sRP}, s{sCP2}
        s_bfe_u32 s{sTag}, s{sStep}, {0x10000 + NP[0].bit_length() - 1}
        """)

def korder(w):
    own = [2 * w, 2 * w + 1]
    rest = [(2 * w + 2 + k) % 8 for k in range(6)]
    seq = [(0, own[0]), (1, own[0]), (0, own[1]), (1, own[1])] + [(0, s) for s in rest] + [(1, s) for s in rest]
    return own, rest, seq

ABL = [""]; NT = [""]
def ring_fill(a, w, i):
    if "r" in ABL[0] and i >= NRING: return
    t, s = korder(w)[2][i]
    r = ringreg(i); imm = WQ_SLOT[s >> 1] * 8192 + ((s & 1) * 2 + t) * 2048
    a.ds(f"ds_read_b128 {vr(r,4)}, v{vRing} offset:{imm}", ("ring", i))
    a.ds(f"ds_read_b128 {vr(r+4,4)}, v{vRing} offset:{imm+1024}", ("ring", i))

def kx_dma(a, w, i):
    a(f"s_add_u32 m0, s{sKb}, {i*1024}")
    a(f"s_add_u32 s{sT0}, s{sKx}, {i*1024}")
    a.vm(f"buffer_load_dwordx4 v{vM16}, s[{sWS}:{sWS+3}], s{sT0} offen {NT[0]} lds", "kx")

class Stream:
    def __init__(self): self.ops = []; self.fill = {}
    def add(self, f, pre=None): self.ops.append((f, pre)); return len(self.ops) - 1
    def at(self, g, f): self.fill.setdefault(g, []).append(f)
    def emit(self):
        for g, (f, pre) in enumerate(self.ops):
            if pre: pre()
            f()
            for x in self.fill.pop(g, []): x()
        assert not self.fill, self.fill.keys()

def loop(a, w, st, P, diag=False):
    tag = f"{w}{'s' if st else 'f'}"
    WS = f"s[{sWS}:{sWS+3}]"
    smf = lambda d, A, B: a(f"v_smfmac_f32_16x16x64_bf16 {vr(d,4)}, {vr(A,4)}, {B}, v{vIDX}")
    mf = lambda d, A, B, c: a(f"v_mfma_f32_16x16x32_bf16 {vr(d,4)}, {vr(A,4)}, {vr(B,4)}, {c}")
    mf16 = lambda d, A, B, c: a(f"v_mfma_f32_16x16x16_bf16 {vr(d,4)}, {vr(A,2)}, {vr(B,2)}, {c}")
    I = lambda t: (lambda: a(t))
    Af = lambda s: vA + 4 * s
    q = lambda t: vACC + 8 * t
    k_ = lambda t: vACC + 8 * t + 4
    vacc = lambda t: (vVA0, vPM)[t]
    own, rest, seq = korder(w)
    ABL[0] = P.get("abl", ""); NP[0] = P.get("np", 1); NT[0] = P.get("nt", "nt")
    SL = P.get("stamps", ["start", "qkend", "xbar", "scores", "pv", "obar", "opend", "pub", "bdone"])
    def ST(n):
        if diag and n in SL:
            if P.get("trace"): a(f"s_memrealtime s[{sTS+2*SL.index(n)}:{sTS+2*SL.index(n)+1}]")
            else: stamp(a, SL.index(n), diag)
    vVM = vVA0 + 2
    def zero_acc():
        if w == 3:
            a(f"v_mov_b32 v124, -1\nv_lshrrev_b32 v125, 8, v{vL8}\nv_bfe_u32 v126, v{vL8}, 7, 1\nv_lshl_add_u32 v125, v125, 2, v126\nv_bfe_u32 v126, v{vL8}, 1, 6\nv_lshl_add_u32 v125, v125, 8, v126")
        for r in range(16): a(f"v_mov_b32 v{vACC+r}, 0")
        for t in range(2):
            for r in range(4): a(f"v_mov_b32 v{vacc(t)+r}, 0")
    def mwrite():
        for o in own:
            a.ds(f"ds_write_b128 v{vM16}, {vr(Af(o),4)} offset:{M_OFF + o*1024}", "mw")
    hook = P.get("hooks")
    if hook: hook["ready"](a, w, tag, True)
    vxl = [lambda: a.vm(f"buffer_load_dwordx4 {vr(vVX,4)}, v{vM16}, {WS}, s{sVx} offen {NT[0]}", "vx"),
           lambda: a.vm(f"buffer_load_dwordx4 {vr(vVX+4,4)}, v{vM16}, {WS}, s{sVx} offen offset:1024 {NT[0]}", "vx")]
    a(f"s_mov_b32 s{sKb}, {MISC+KX_OFF}\ns_lshl_b32 s{sKx}, s{sH}, 13\ns_add_u32 s{sKx}, s{sKx}, {KIMG - MISC}")
    kx_dma(a, w, 2 * w); kx_dma(a, w, 2 * w + 1)
    for r in range(8): a(f"v_mov_b32 v{Af(own[0])+r}, v{(16, 17, 18, 19, 12, 13, 14, 15)[r]}")
    a(f"s_mov_b32 s{sStep}, 0\ns_mov_b32 s{sKb}, {MISC+KX_OFF+8192}")
    seg_offsets(a, w, P)
    if P.get("kxA"): kx_dma(a, w, 2 * w); kx_dma(a, w, 2 * w + 1)
    a(f"s_mov_b32 s{sVmPrev}, s{sKm}\ns_sub_u32 s{sMclr}, s{sMclr}, {(w&1)*1024}")
    init_incr(a, w)
    if hook:
        a(f"v_mov_b32 v124, -1\nv_mov_b32 v125, -1\nv_mov_b32 v126, -1\nv_mov_b32 v127, -1\ns_add_u32 s{sT0}, s{sKm}, {62*32*4096}")
        a(f"buffer_store_dwordx4 v[124:127], v{vM16}, {WS}, s{sT0} offen sc1\ns_add_u32 s{sT0}, s{sT0}, {32*4096}")
        a(f"buffer_store_dwordx4 v[124:127], v{vM16}, {WS}, s{sT0} offen sc1")
    a(f"v_mov_b32 v{vVX}, -1\nv_mov_b32 v{vVX+1}, -1\nv_mov_b32 v{vVX+2}, -1\nv_mov_b32 v{vVX+3}, -1")
    a.ds(f"ds_write_b128 v{vOr}, {vr(vVX,4)} offset:{w*512}")
    for i in range(NRING): ring_fill(a, w, i)
    zero_acc()
    a(f"s_waitcnt vmcnt({2 if hook else 0})"); a.vmq = []
    a.wait_ds_all(True)
    LB = [Af(o) for o in own]
    loadB = lambda k: a(f"buffer_load_dwordx4 {vr(LB[k],4)}, v{vM16}, {WS}, s{sMpoll} offen offset:{k*1024} sc1")
    NS = P["depB"]
    def retryB():
        a.label(f"CH_RBRETRY_{tag}")
        loadB(0); loadB(1)
        if diag: a(f"s_add_u32 s{sTS+21}, s{sTS+21}, 1")
        a(f"s_add_u32 s{sCnt}, s{sCnt}, 1")
        a(f"s_cmp_gt_u32 s{sCnt}, {P['bound']}\ns_cbranch_scc1 CH_RBOK_{tag}\ns_branch CH_RB_{tag}")
    a(f"s_mov_b32 s{sCnt}, 0")
    for k in range(8): a(f"v_min_u32 v{LB[0]+k}, 0xfffffffe, v{LB[0]+k}")
    a.label(f"CH_RB_{tag}")
    ST("B_w0")
    a.dsq = []
    r_ = [LB[0] + k for k in range(8)]
    a(f"s_waitcnt vmcnt({2 * NS - 1})")
    a(f"v_max3_u32 v10, v{r_[0]}, v{r_[1]}, v{r_[2]}")
    a(f"v_max_u32 v10, v10, v{r_[3]}")
    a.ds(f"ds_write_b128 v{vM16}, {vr(LB[0],4)} offset:{M_OFF + own[0]*1024}", "mw")
    a(f"s_waitcnt vmcnt({2 * NS - 2})")
    a(f"v_max3_u32 v10, v10, v{r_[4]}, v{r_[5]}")
    a(f"v_max3_u32 v10, v10, v{r_[6]}, v{r_[7]}")
    a.ds(f"ds_write_b128 v{vM16}, {vr(LB[1],4)} offset:{M_OFF + own[1]*1024}", "mw")
    a(f"v_cmp_eq_u32 vcc, -1, v10")
    a(f"s_cbranch_vccnz CH_RBRETRY_{tag}" if not P.get("free") else "s_nop 0")
    a.label(f"CH_RBOK_{tag}")
    if diag:
        ST("bdone")
        a("s_waitcnt lgkmcnt(0)")
        a(f"s_cmp_eq_u32 s{sStep}, 0")
        a(f"s_cbranch_scc1 CH_NOACC_{tag}")
        for k in range(8):
            a(f"s_sub_u32 s{sT0}, s{sTS+2*k+2}, s{sTS+2*k}")
            a(f"s_add_u32 s{sTS+22+k}, s{sTS+22+k}, s{sT0}")
        if P.get("trace"):
            a(f"s_cmp_eq_u32 s{sStep}, {P['trace']}")
            for k, dst in enumerate((83, 84, 85, 86, 87, 88, 89, 100, 101)):
                a(f"s_cselect_b32 s{dst}, s{sTS+2*k}, s{dst}")
        a.label(f"CH_NOACC_{tag}")
        if w == 3 and P.get("steptime"):
            a(f"s_memrealtime s[{sT2}:{sT2+1}]\ns_lshl_b32 s{sT0}, s{sH}, 6\ns_add_u32 s{sT0}, s{sT0}, s{sStep}\ns_lshl_b32 s{sT0}, s{sT0}, 2\ns_add_u32 s{sT0}, s{sT0}, {DBG + 0x40000}\ns_waitcnt lgkmcnt(0)")
            a(f"v_mov_b32 v10, s{sT2}\nv_mov_b32 v11, 0\nbuffer_store_dword v10, v11, {WS}, s{sT0} offen")
            a(f"s_memtime s[{sT2}:{sT2+1}]\ns_add_u32 s{sT0}, s{sT0}, 0x10000\ns_waitcnt lgkmcnt(0)\nv_mov_b32 v10, s{sT2}\nbuffer_store_dword v10, v11, {WS}, s{sT0} offen")
    ST("start")
    a.vmq = ["stale"] * (2 * NS - 2) + (["dbg", "dbg"] if diag and w == 3 and P.get("steptime") else [])
    S = Stream()
    vs = [(t, s) for s in own + rest for t in range(2)]
    def vsm(S, pre=None):
        t, s = vs.pop(0)
        return S.add(lambda: smf(vacc(t), Af(s), ar(wv(t, s), 8)), pre)
    gq = {}
    aread = lambda s: a.ds(f"ds_read_b128 {vr(Af(s),4)}, v{vM16} offset:{M_OFF + s*1024}", ("A", s))
    NB = P["pre_bar"]
    def bar_and_reads():
        a.wait_ds("mw")
        ST("mbar0")
        a("s_barrier")
        ST("mbar1")
        for s in rest[:P["a_burst"]]: aread(s)
    xread = lambda sg: [a.ds(f"ds_read_b64_tr_b16 {vr(vXF+4*sg+2*p,2)}, v{vXr} offset:{(sg&1)*512 + p*256 + (sg>>1)*128}", ("X", sg)) for p in range(2)]
    for i in range(16):
        t, s = seq[i]
        def pre(i=i, s=s):
            a.wait_ds(("A", s))
            if i in (4, 7, 10, 13): ST(f"q{i}")
            a.wait_ds(("ring", i))
        if i == 4:
            for n in range(4): vsm(S)
        gq[i] = S.add(lambda t=t, s=s, i=i: smf(q(t), Af(s), vr(ringreg(i), 8)), pre)
        S.add(lambda t=t, s=s: smf(k_(t), Af(s), vr(wk(t, s), 8)))
    GB = P["pre_bar"] - 1
    S.at(GB, bar_and_reads)
    kxread = lambda kt, s: a.ds(f"ds_read_b128 {vr(kx(kt,s),4)}, v{vKx} offset:{(kt*4+s)*1024}", "kx")
    def half_fill(i, h):
        t, s = seq[i]
        r = ringreg(i) + 4 * h; imm = WQ_SLOT[s >> 1] * 8192 + ((s & 1) * 2 + t) * 2048 + h * 1024
        a.ds(f"ds_read_b128 {vr(r,4)}, v{vRing} offset:{imm}", ("ring", i))
    reads = [(GB + 1, lambda s=s: aread(s)) for s in rest[P["a_burst"]:]]
    ringr = [(gq[i - NRING], lambda i=i, h=h: half_fill(i, h)) for i in range(NRING, 16) for h in range(2)]
    npre = P["r_pre"]
    for n in range(npre): S.at(max(ringr[n][0], min(n + 1, GB)), ringr[n][1])
    if "r" not in ABL[0]: reads += ringr[npre:]
    if "k" not in ABL[0]: reads += [(gq[10 + n // 2], lambda n=n: kxread(n >> 2, n & 3)) for n in range(P["kx_in"])]
    g = GB + 1
    for (e, f) in reads:
        g = max(g, e)
        S.at(min(g, 35), f); g += 1
    def post(t, r0):
        return [I(f"v_add_f32 v{q(t)}, v{q(t)}, v{q(t)+2}"), I(f"v_add_f32 v{q(t)+1}, v{q(t)+1}, v{q(t)+3}"),
                I(f"v_add_f32 v{k_(t)}, v{k_(t)}, v{k_(t)+2}"), I(f"v_add_f32 v{k_(t)+1}, v{k_(t)+1}, v{k_(t)+3}"),
                I(f"v_cvt_pk_bf16_f32 v{r0}, v{q(t)}, v{q(t)+1}"), I(f"v_cvt_pk_bf16_f32 v{r0+1}, v{k_(t)}, v{k_(t)+1}"),
                lambda: a.ds(f"ds_write_b64 v{vXw}, {vr(r0,2)} offset:{t*128}", "xw")]
    p0 = post(0, vACC + 6)
    g0 = gq[10] + 2
    S.at(gq[10], lambda: a.nop(2)); S.at(gq[10] + 1, lambda: a.nop(2))
    g0 += P.get("p0off", 0)
    if "p" not in ABL[0] and not P.get("pboth"):
        for n in range(6): S.at(g0 + n, p0[n])
        if not P.get("xw2"): S.at(g0 + 5 + P.get("p0w", 0), p0[6])
    vONE = vACC
    if not P.get("one_late") and not P.get("pboth"):
        for n in range(4): S.at(g0 + 6 + n, I(f"v_mov_b32 v{vONE+n}, s{sONE}"))
    late = {}
    if P["jobs"] == "S" and "j" not in ABL[0]:
        jobs = [lambda: a.vm(f"buffer_store_dwordx4 {vr(vVX,4)}, v{vM16}, {WS}, s{sVmPrev} offen sc1", "exp"), vxl[0], vxl[1],
                lambda: kx_dma(a, w, 2 * w), lambda: kx_dma(a, w, 2 * w + 1)]
        if P.get("kxA"): jobs = jobs[:3] + [None] * 2
        if w == 3: jobs.append(lambda: a.vm(f"buffer_store_dword v124, v125, {WS}, s{sMclr} offen {st}", "clr"))
        if hook and w == P.get("fw", 0): jobs.append(lambda: hook["flag"](a))
        if hook and w == 2: S.at(P["j0"] + P["jw"] * w + P["jstr"] // 2, lambda: hook["look"](a))
        for n, jb in enumerate(jobs):
            if jb is None: continue
            g = P["j0"] + P["jstr"] * n + P["jw"] * w
            if n == 5: g = P["j0"] + P["jstr"] * (2 if w else 1) + P["jw"] * w + P["jstr"] // 2
            if n == 6: g = P["j0"] + P["jstr"] + P["jw"] * w + P["jstr"] // 2
            if g < 36: S.at(g, jb)
            else: late.setdefault(g - 36 + 2, []).append(jb)
    S.at(gq[12], I(f"s_add_u32 s{sMpoll}, s{sRM}, {MBUF - MISC + w*2048}"))
    if 35 not in S.fill: S.at(35, lambda: a.nop(1))
    S.emit()
    ST("qkend")
    T0, T1, Tm = vACC + 8, vACC + 12, vT
    def score(S, T, sg):
        A = {T0: kx(0, sg), T1: kx(1, sg), Tm: vXF + 4 * sg}[T]
        return S.add(lambda: mf(T, A, vXF + 4 * sg, "0" if sg == 0 else vr(T, 4)), lambda: a.wait_ds(("X", sg)))
    p1 = post(1, vACC + 4)
    S = Stream()
    if P.get("pboth"):
        a(f"v_pk_add_f32 {vr(q(0),2)}, {vr(q(0),2)}, {vr(q(0)+2,2)}\nv_pk_add_f32 {vr(k_(0),2)}, {vr(k_(0),2)}, {vr(k_(0)+2,2)}")
        p0[4](); p0[5]()
        if not P.get("xw2"): p0[6]()
        a.nop(2 if P.get("xw2") else 1)
    else: a.nop(6)
    a(f"v_pk_add_f32 {vr(q(1),2)}, {vr(q(1),2)}, {vr(q(1)+2,2)}\nv_pk_add_f32 {vr(k_(1),2)}, {vr(k_(1),2)}, {vr(k_(1)+2,2)}")
    for n in range(4, 6): p1[n]()
    if P.get("xw2"): a.ds(f"ds_write2_b64 v{vXw}, {vr(vACC+6,2)}, {vr(vACC+4,2)} offset0:0 offset1:16", "xw")
    else: p1[6]()
    for n in range(P["v_pre"]):
        g = vsm(S)
        if P["kx_in"] + n < 8: S.at(g, lambda n=n: kxread((P["kx_in"] + n) >> 2, (P["kx_in"] + n) & 3))
    assert P["kx_in"] + P["v_pre"] >= 8
    def xbar1():
        a.wait_ds("xw")
        a("s_barrier"); ST("xbar"); xread(0)
    g = vsm(S, xbar1)
    S.at(g, lambda: xread(1))
    S.at(vsm(S), lambda: xread(2)); S.at(vsm(S), lambda: xread(3))
    ones = list(range(4)) if P.get("one_late") or P.get("pboth") else []
    while vs:
        gl = vsm(S)
        if ones: S.at(gl, I(f"v_mov_b32 v{vONE+ones.pop(0)}, s{sONE}"))
    for g, l_ in late.items():
        for jb in l_: S.at(g, jb)
    S.at(gl, lambda: (a.wait_vm("stale"), a.wait_ds("kx"), ST("vdone")))
    m, t_ = vT, 11
    gs = [score(S, T, sg) for T in (T0, T1, Tm) for sg in range(4)]
    va = [I(f"v_add_f32 v{vacc(t)+k}, v{vacc(t)+k}, v{vacc(t)+k+2}") for t in range(2) for k in range(2)]
    for n in range(4): S.at(gs[n], lambda: a.nop(1))
    S.at(gs[4], va[0]); S.at(gs[4], va[1]); S.at(gs[5], va[2]); S.at(gs[5], va[3])
    S.at(gs[6], I(f"v_cvt_pk_bf16_f32 v{vVM}, v{vacc(0)}, v{vacc(0)+1}"))
    S.at(gs[7], I(f"v_cvt_pk_bf16_f32 v{vVM+1}, v{vacc(1)}, v{vacc(1)+1}"))
    S.at(gl, I(f"s_cmp_ge_u32 s{sStep}, 63\ns_cbranch_scc1 CH_DONE_{tag}"))
    S.at(gs[8], I(f"v_max3_f32 v10, v{T0}, v{T0+1}, v{T0+2}\nv_mov_b32 v{vPM+1}, 0\ns_nop 1"))
    S.at(gs[9], I(f"v_max_f32 v10, v10, v{T0+3}\nv_mov_b32 v{vPM+2}, 0\ns_nop 1"))
    S.at(gs[10], I(f"v_max3_f32 v10, v10, v{T1}, v{T1+1}"))
    S.at(gs[11], I(f"v_max3_f32 v10, v10, v{T1+2}, v{T1+3}"))
    S.emit()
    ST("scores")
    oacc = lambda d: vRING + 4 * d
    zq = list(range(16))
    z = lambda n: [a(f"v_mov_b32 v{vRING+zq.pop(0)}, 0") for _ in range(n)]
    z(7)
    a(f"v_max3_f32 v{m}, v10, v{Tm+2}, v{Tm+3}")
    a(f"v_mov_b32 v{t_}, v{m}")
    z(2)
    a(f"v_permlane32_swap_b32 v{m}, v{t_}")
    a(f"v_max_f32 v{m}, v{m}, v{t_}")
    a(f"v_mov_b32 v{t_}, v{m}")
    z(2)
    a(f"v_permlane16_swap_b32 v{m}, v{t_}")
    a(f"v_max_f32 v{m}, v{m}, v{t_}")
    a(f"v_mul_f32 v10, s{sC}, v{m}")
    pf = lambda r: a(f"v_pk_fma_f32 {vr(r,2)}, {vr(r,2)}, s[{sC}:{sC+1}], v[10:11] op_sel_hi:[1,1,0] neg_lo:[0,0,1] neg_hi:[0,0,1]")
    ex = lambda r: a(f"v_exp_f32 v{r}, v{r}")
    aX, aY, aL = vA, vA + 4, vA + 24
    vPX = vACC + 4
    pf(Tm + 2); pf(T0); ex(Tm + 2); ex(Tm + 3); pf(T0 + 2); pf(T1); pf(T1 + 2)
    a(f"v_cvt_pk_bf16_f32 v{vPM}, v{Tm+2}, v{Tm+3}")
    a(f"v_cvt_pk_bf16_f32 v{vPM+3}, v{Tm+2}, v{Tm+3}")
    ex(T0); ex(T0 + 1)
    mf16(aL, vONE, vPM, "0")
    ex(T0 + 2); ex(T0 + 3)
    mf16(aX, vVM, vPM, "0")
    ex(T1); ex(T1 + 1)
    mf16(aY, vVM, vPM + 2, "0")
    ex(T1 + 2); ex(T1 + 3)
    a(f"v_cvt_pk_bf16_f32 v{vPX}, v{T0}, v{T0+1}")
    a(f"v_cvt_pk_bf16_f32 v{vPX+1}, v{T0+2}, v{T0+3}")
    a(f"v_cvt_pk_bf16_f32 v{vPX+2}, v{T1}, v{T1+1}")
    a(f"v_cvt_pk_bf16_f32 v{vPX+3}, v{T1+2}, v{T1+3}")
    a.wait_vm("vx")
    a.nop(2 if "j" in ABL[0] else 1)
    mf(aL, vONE, vPX, vr(aL, 4)); z(2)
    mf(aX, vVX, vPX, vr(aX, 4)); z(2)
    mf(aY, vVX + 4, vPX, vr(aY, 4))
    ST("pv")
    z(1); a.nop(1)
    a(f"v_rcp_f32 v10, v{aL}")
    a.nop(3)
    vOW = vA + 8
    for r in range(4):
        if r == 2: a.nop(1)
        a(f"v_pk_mul_f32 {vr(aX+2*r,2)}, {vr(aX+2*r,2)}, v[10:11] op_sel_hi:[1,0]")
    for r in range(4):
        a(f"v_cvt_pk_bf16_f32 v{vOW+r}, v{aX+2*r}, v{aX+2*r+1}")
    if P.get("otag"): a(f"v_and_or_b32 v{vOW}, v{vOW}, -2, s{sTag}")
    a(f"s_not_b64 exec, s[{sB1M}:{sB1M+1}]")
    a.ds(f"ds_write_b128 v{vOr}, {vr(vOW,4)} offset:{w*512}", "ow")
    a("s_mov_b64 exec, -1")
    vOF = lambda s: vA + 12 + 4 * s
    a.nop(1)
    for r in range(4):
        a(f"v_mov_b32_dpp v{vOF(w)+r}, v{vOW+r} quad_perm:[0,1,0,1] row_mask:0xf bank_mask:0xf")
    a.nop(2)
    assert not zq
    S = Stream()
    orest = [(w + 1 + k) % 4 for k in range(3)]
    def obar():
        if not P.get("otag"): a.wait_ds_all()
        a("s_barrier")
        ST("obar")
        for s in orest: a.ds(f"ds_read_b128 {vr(vOF(s),4)}, v{vOr} offset:{s*512}", ("O", s))
        a(f"s_add_u32 s{sT0}, s{sPst}, 4096")
    XW = vXF + 4 * w
    sel = lambda d, f, dst=vVX: f"v_cndmask_b32 v{dst+d}, v{f}, v{XW+d}, s[{sB1M}:{sB1M+1}]"
    dpp = lambda d: f"v_mov_b32_dpp v{10+d}, v{vVM+d} quad_perm:[2,3,2,3] row_mask:0xf bank_mask:0xf"
    pack = [I(dpp(0) + "\n" + sel(0, vVM)), I(dpp(1) + "\n" + sel(1, vVM + 1)), I(sel(2, 10)), I(sel(3, 11))]
    for d in range(4):
        g = S.add(lambda d=d: smf(oacc(d), vOF(w), ar(wo(d, w), 8)), obar if d == P["o_pre"] else None)
        S.at(g, pack[d])
    if P["o_pre"] == 4: S.at(g, obar)
    vST = vRING + 16
    go = [S.add(lambda d=d, s=s: smf(oacc(d), vOF(s), ar(wo(d, s), 8)), lambda s=s: a.wait_ds(("O", s)))
          for (d, s) in ([(d, s) for s in orest for d in (0, 1)] + ([(d, s) for d in (2, 3) for s in orest] if P.get("dmaj") else [(d, s) for s in orest for d in (2, 3)]))]
    if P.get("otag"):
        f_ = [vOF(s_) for s_ in orest]
        ochk = [f"v_bitop3_b32 v10, v{f_[0]}, v{f_[1]}, s{sTag} bitop3:0x7e", f"v_bitop3_b32 v10, v10, v{f_[2]}, s{sTag} bitop3:0xf6",
                "v_and_b32 v10, 1, v10", "v_cmp_ne_u32 vcc, 0, v10"]
        S.ops[go[0]] = (S.ops[go[0]][0], lambda: (a.label(f"CH_OGO_{tag}"), a.wait_ds(("O", orest[0]))))
        S.at(go[2], I(ochk[0])); S.at(go[4], I(ochk[1])); S.at(go[5], I(ochk[2] + "\n" + ochk[3] + f"\ns_cbranch_vccnz CH_OREDO_{tag}"))
    cv = lambda d, k: I(f"v_cvt_pk_bf16_f32 v{vST+2*d+k}, v{oacc(d)+2*k}, v{oacc(d)+2*k+1}")
    tg = lambda dp: I(f"v_and_or_b32 v{vST+4*dp}, v{vST+4*dp}, -2, s{sTag}")
    pst = lambda dp: a.vm(f"buffer_store_dwordx4 {vr(vST+4*dp,4)}, v{vPst}, {WS}, s{sT0 if dp else sPst} offen {st}", "pst")
    if P.get("pst0", 0) == 0:
        S.at(go[6], lambda: a.nop(6)); S.at(go[6], cv(0, 0)); S.at(go[7], cv(0, 1)); S.at(go[8], tg(0)); S.at(go[9], cv(1, 0)); S.at(go[10], cv(1, 1))
        S.at(go[10], lambda: pst(0))
    elif P["pst0"] == 1:
        S.at(go[6], lambda: a.nop(6)); S.at(go[6], cv(0, 0)); S.at(go[6], cv(0, 1)); S.at(go[7], cv(1, 0)); S.at(go[7], cv(1, 1)); S.at(go[7], tg(0))
        S.at(go[7], lambda: pst(0))
    else:
        S.at(go[6], lambda: a.nop(6))
        for f in (cv(0, 0), cv(0, 1), cv(1, 0), cv(1, 1), tg(0), lambda: pst(0)): S.at(go[6], f)
    if P.get("dmaj"):
        S.at(go[9], lambda: a.nop(3)); S.at(go[10], lambda: a.nop(3)); S.at(go[10], cv(2, 0))
    S.emit()
    if P.get("dmaj"):
        cv(2, 1)(); tg(1)(); a.nop(6); cv(3, 0)(); cv(3, 1)(); pst(1)
    else:
        a.nop(7 if P.get('pst0', 0) else 6)
        cv(2, 0)(); cv(2, 1)(); cv(3, 0)(); cv(3, 1)(); tg(1)(); pst(1)
    ST("opend")
    LA = [Af(rest[k]) for k in range(4)]
    vRA, vRD = Af(rest[4]), Af(rest[5])
    def issueA():
        for k in range(4): a(f"buffer_load_dwordx4 {vr(LA[k],4)}, v{vM16}, {WS}, s{sPld} offen offset:{k*1024} sc1")
    def adv():
        a(f"s_mov_b32 s{sCnt}, 0\ns_mov_b32 s{sVmPrev}, s{sKm}")
        advance(a, w)
        if hook: hook["ready"](a, w, tag, False)
    def chores():
        zero_acc()
        a(f"v_xor_b32 v{vKx}, 8192, v{vKx}\ns_xor_b32 s{sKb}, s{sKb}, 8192")
    a(f"s_mov_b32 s{sCnt}, 0")
    if w < 2:
        a.ds(f"ds_read_b128 {vr(vRA,4)}, v{vM16} offset:{RA_OFF}", "ra")
        if w == 1: chores()
        a.nop(P["dlyA"][w])
        issueA()
        ST("issA")
        if w == 0: chores()
        for i in range(P["nrA"]): ring_fill(a, w, i)
        DA = P["depA"][w]
        for _ in range(DA - 1):
            a.nop(P["gapA"]); issueA()
        a.wait_ds("ra")
        a.label(f"CH_RA_{tag}")
        ny = 4 * (DA - 1)
        for k in range(4):
            a(f"s_waitcnt vmcnt({ny + 3 - k})")
            if k == 3:
                ST("A_w2")
                a(f"v_bitop3_b32 v11, v{LA[2]}, v{LA[3]}, s{sTag} bitop3:0x7e")
                a(f"v_bitop3_b32 v10, v10, v11, 1 bitop3:0xa8")
            if k == 1: a(f"v_bitop3_b32 v10, v{LA[0]}, v{LA[1]}, s{sTag} bitop3:0x7e")
            if k == 0 and DA > 1: continue
            if k == 1 and DA > 1: mf(vRD, LA[0], vRA, "0")
            if k == 2 and DA > 1: continue
            if k == 3 and DA > 1: mf(vRD, LA[2], vRA, vr(vRD, 4))
            mf(vRD, LA[k], vRA, "0" if k == 0 else vr(vRD, 4))
        a(f"v_cmp_ne_u32 vcc, 0, v10")
        a(f"s_cbranch_vccnz CH_RARETRY_{tag}" if not P.get("free") else "s_nop 0")
        a.label(f"CH_RAOK_{tag}")
        ST("A_ok")
        a.nop(6)
        a(f"v_permlane32_swap_b32 v{vRD}, v{vRD+2}")
        a(f"v_permlane32_swap_b32 v{vRD+1}, v{vRD+3}")
        a(f"s_mov_b64 exec, s[{sLO8}:{sLO8+1}]")
        a(f"v_pk_add_f32 {vr(vRD,2)}, {vr(vRD,2)}, {vr(vRD+2,2)}")
        a(f"v_cvt_pk_bf16_f32 v{vRD}, v{vRD}, v{vRD+1}")
        a(f"buffer_store_dword v{vRD}, v{vMpub}, {WS}, s{sMpub} offen {st}")
        a("s_mov_b64 exec, -1")
        ST("pub")
        if w == 0:
            for i in range(P["nrA"], NRING): ring_fill(a, w, i)
    else:
        chores()
        if P.get("kxA"):
            adv()
            for i in range(4): kx_dma(a, w, 4 * (w - 2) + i)
        for i in range(NRING): ring_fill(a, w, i)
    if w == 0 or (w > 1 and not P.get("kxA")): adv()
    a("s_barrier")
    a.nop(P["dlyB"])
    loadB(0); loadB(1)
    ST("issB")
    if w == 1: adv()
    for _ in range(NS - 1):
        a.nop(P["gapB"] if w != 1 else max(0, P["gapB"] - P["w1c"])); loadB(0); loadB(1)
    if w == 1:
        for i in range(P["nrA"], NRING): ring_fill(a, w, i)
    a.wait_ds_all()
    a.vmq = []
    a(f"s_branch CH_RB_{tag}")
    if w < 2:
        a.label(f"CH_RARETRY_{tag}")
        issueA()
        a(f"s_add_u32 s{sCnt}, s{sCnt}, 1")
        if diag: a(f"s_add_u32 s{sTS+20}, s{sTS+20}, 1")
        a(f"s_cmp_gt_u32 s{sCnt}, {P['bound']}")
        a(f"s_cbranch_scc1 CH_RAOK_{tag}")
        a(f"s_branch CH_RA_{tag}")
    retryB()
    if P.get("otag"):
        a.label(f"CH_OREDO_{tag}")
        a(f"s_mov_b32 s{sCnt}, 0")
        a.label(f"CH_OREDO1_{tag}")
        a.nop(8)
        for s_ in orest: a(f"ds_read_b128 {vr(vOF(s_),4)}, v{vOr} offset:{s_*512}")
        for r in range(16): a(f"v_mov_b32 v{vRING+r}, 0")
        a(f"s_add_u32 s{sCnt}, s{sCnt}, 1\ns_waitcnt lgkmcnt(0)")
        for t_ in ochk: a(t_)
        a(f"s_cmp_gt_u32 s{sCnt}, {P['bound']}\ns_cbranch_scc1 CH_OREDO2_{tag}\ns_cbranch_vccnz CH_OREDO1_{tag}")
        a(f"s_branch CH_OREDO3_{tag}")
        a.label(f"CH_OREDO2_{tag}")
        for s_ in orest: a(f"v_and_or_b32 v{vOF(s_)}, v{vOF(s_)}, -2, s{sTag}")
        a.nop(2)
        a.label(f"CH_OREDO3_{tag}")
        if diag: a(f"s_add_u32 s{sTS+21}, s{sTS+21}, 0x10000")
        for d in range(4): smf(oacc(d), vOF(w), ar(wo(d, w), 8))
        a(f"s_branch CH_OGO_{tag}")
    a.label(f"CH_DONE_{tag}")
    a.wait_ds_all(True)
    a.nop(5)
    for f in va: f()
    a(f"v_cvt_pk_bf16_f32 v{vVM}, v{vacc(0)}, v{vacc(0)+1}\nv_cvt_pk_bf16_f32 v{vVM+1}, v{vacc(1)}, v{vacc(1)+1}")
    a.nop(2)
    a(dpp(0)); a(dpp(1))
    for d, f in enumerate((vVM, vVM + 1, 10, 11)): a(sel(d, f, T0))
    a(f"buffer_store_dwordx4 {vr(T0,4)}, v{vM16}, {WS}, s{sKm} offen sc1")
    a.dsq = []; a.vmq = []
    if hook: hook["done"](a, w)
```

```python
import sys
from asm import *
from layout import *
import chain as C
import workers as Wk
NAME = "parallel_sum__memory_aug_recurrent_mem_tr__dense_activation_squared_relu__prompt"
CH = dict(pre_bar=4, v_0=0, v_pre=3, o_pre=2, dlyA=(56, 56), pboth=1, dlyB=12, w1c=12, pst0=1, pbar=1, nrA=3, bound=1 << 16, depA=(2, 2), depB=2, gapA=24, gapB=16, x0=0, xw_only=1, jbar=1, jobs='S', j0=4, jstr=9, jw=2, a_burst=2, r_pre=2, kx_in=5, nt='', pf0=(52, 54, 48))
sDB = 4
sInit, sReady, sMode, sXcc, sTent = 84, 85, 86, 87, 83
sCounted, sLost = 29, 79
sA, sB, sC_, sD = Wk.sA, Wk.sB, Wk.sC_, Wk.sD
WS = Wk.WS
DB = f"s[{sDB}:{sDB+3}]"
ROLE_LDS = 163840 - 16
MODE_BOUND = 2000

def wait_init(a, v=2):
    L = a.newlabel("INIT")
    a(f"s_cmp_lg_u32 s{sInit}, 0\ns_cbranch_scc1 {L}")
    a(f"v_mov_b32 v{v}, {D_INIT}")
    Wk.poll_ge(a, f"buffer_load_dword v{v+1}, v{v}, {DB}, 0 offen sc1", [v + 1], 2 * NINIT, "INIT", sleep=4)
    a(f"s_mov_b32 s{sInit}, 1")
    a.label(L)

def atomic(a, op, off, val, dst, cmp=None):
    a(f"s_mov_b64 exec, 1\nv_mov_b32 v20, {val}\nv_mov_b32 v22, {off}")
    if cmp is not None:
        a(f"v_mov_b32 v21, {cmp}\nbuffer_atomic_cmpswap v[20:21], v22, {DB}, 0 offen sc0")
    else:
        a(f"buffer_atomic_{op} v20, v22, {DB}, 0 offen sc0")
    a(f"s_waitcnt vmcnt(0)\nv_readfirstlane_b32 s{dst}, v20\ns_mov_b64 exec, -1\ns_nop 3")

def claim(a, name, sRes, sOff):
    a.label(f"CLAIM_{name}")
    a(f"s_lshl_b32 s{sC_}, 1, s{sA}")
    atomic(a, "or", f"s{sOff}", f"s{sC_}", sB)
    a.label(f"CLAIM_{name}_R")
    a(f"s_and_b32 s{sD}, s{sB}, s{sC_}\ns_or_b32 s{sB}, s{sB}, s{sC_}\ns_mov_b32 s{sRes}, s{sA}")
    a(f"s_cmp_eq_u32 s{sD}, 0\ns_cbranch_scc1 CLAIM_{name}_E")
    a(f"s_mov_b32 s{sRes}, -1\ns_cmp_eq_u32 s{sB}, -1\ns_cbranch_scc1 CLAIM_{name}_E")
    a(f"s_ff0_i32_b32 s{sA}, s{sB}\ns_branch CLAIM_{name}")
    a.label(f"CLAIM_{name}_E")

def bcast(a, s):
    L = a.newlabel("BC")
    a(f"v_mov_b32 v22, {ROLE_LDS}")
    a(f"s_cmp_lg_u32 s{Wk.sW}, 0\ns_cbranch_scc1 {L}\nv_mov_b32 v20, s{s}\nds_write_b32 v22, v20\ns_waitcnt lgkmcnt(0)")
    a.label(L)
    a(f"s_barrier\nds_read_b32 v20, v22\ns_waitcnt lgkmcnt(0)\nv_readfirstlane_b32 s{s}, v20\ns_barrier")

def gen(P=CH, diag=False, force_slow=False):
    a = Asm()
    def mark(a, word, neg=False):
        if not P.get("marks"): return
        a(f"s_memrealtime s[98:99]\ns_waitcnt lgkmcnt(0)")
        if neg: a("s_not_b32 s98, s98")
        a(f"s_mov_b64 exec, 1\nv_mov_b32 v10, s98\nv_mov_b32 v11, {4*word}\nbuffer_atomic_umax v10, v11, {DB}, 0 offen\ns_mov_b64 exec, -1")
    Wk.SLEEP[0] = P.get('sleep', 1); Wk.PREFETCH[0] = P.get('pf', ()); Wk.EXP[0] = P.get('exp'); Wk.EARLY[0] = P.get('early', 2); Wk.HOLD[0] = P.get('hold', 0); Wk.OUTF[0] = P.get('outf', 'sc1')
    sR = Wk.sRole
    a(f"""
    s_cmp_ge_u32 s2, 256
    s_cbranch_scc1 L_END
    s_load_dwordx2 s[{Wk.sWS}:{Wk.sWS+1}], s[0:1], {KA['ws']}
    s_load_dwordx2 s[{sDB}:{sDB+1}], s[0:1], {KA['dbg']}
    s_getreg_b32 s{sXcc}, hwreg(HW_REG_XCC_ID, 0, 4)
    s_mov_b32 s{Wk.sWS+2}, {WS_BYTES}
    s_mov_b32 s{Wk.sWS+3}, 0x20000
    s_mov_b32 s{sDB+2}, 256
    s_mov_b32 s{sDB+3}, 0x20000
    s_mov_b32 s{Wk.sDead}, 0
    s_mov_b32 s{sInit}, 0
    s_mov_b32 s82, 0
    s_mov_b32 s{sLost}, 0
    v_mov_b32 v250, 0
    v_lshrrev_b32 v1, 6, v0
    v_lshlrev_b32 v8, 4, v0
    v_readfirstlane_b32 s{Wk.sW}, v1
    v_and_b32 v0, 63, v0
    v_mov_b32 v12, -1
    v_mov_b32 v13, -1
    v_mov_b32 v14, -1
    v_mov_b32 v15, -1
    """)
    if diag: a("s_memrealtime s[90:91]")
    CX = 9 if force_slow else P.get('cx', 3)
    sOff, sTry, sDie, sWord, sSpec = 18, 19, 80, 81, 82
    def declare(a):
        L = a.newlabel("DECL")
        a(f"s_cmp_lg_u32 s{sB}, -1\ns_cbranch_scc1 {L}")
        a(f"s_mov_b64 exec, 1\nv_mov_b32 v20, 1\nv_mov_b32 v21, 0\nv_mov_b32 v22, {D_MODE}\nbuffer_atomic_cmpswap v[20:21], v22, {DB}, 0 offen\ns_mov_b64 exec, -1")
        a.label(L)
    a(f"""
    s_bfe_u32 s{sR}, s2, 0x50003
    s_waitcnt lgkmcnt(0)
    """)
    if P.get("marks"):
        a(f"s_cmp_lg_u32 s{Wk.sW}, 0\ns_cbranch_scc1 L_MK0\ns_and_b32 s3, s2, 15\ns_cmp_lg_u32 s3, 0\ns_cbranch_scc1 L_MK0")
        mark(a, 4, True)
        a.label("L_MK0")
    a(f"""
    s_mov_b32 s{sTent}, s{sR}
    s_add_u32 s{sDie}, s{sXcc}, {(15 - CX) % 8}
    s_and_b32 s{sDie}, s{sDie}, 7
    s_min_u32 s{sDie}, s{sDie}, 6
    s_lshl_b32 s{sWord}, s{sDie}, 2
    s_add_u32 s{sWord}, s{sWord}, {D_WM}
    s_cmp_eq_u32 s{sXcc}, {CX}
    s_cselect_b32 s{sWord}, {D_MASK}, s{sWord}
    s_and_b32 s3, s2, 0x87
    s_cmp_lg_u32 s3, 0
    s_cbranch_scc1 L_I3
    s_xor_b32 s3, s{Wk.sW}, s{sTent}
    s_bitcmp1_b32 s3, 0
    s_cbranch_scc0 L_I3
    """)
    a(f"s_lshr_b32 s{sA}, s2, 3")
    a(f"s_lshr_b32 s3, s{Wk.sW}, 1\ns_lshl_b32 s{sA}, s{sA}, 1\ns_add_u32 s{sA}, s{sA}, s3\nv_lshlrev_b32 v9, 4, v0")
    a(f"s_lshl_b32 s3, s{sA}, 13\ns_add_u32 s3, s3, {PART}")
    for k in range(8):
        a(f"buffer_store_dwordx4 v[12:15], v9, {WS}, s3 offen offset:{(k&3)*1024} sc1")
        if k == 3: a("s_add_u32 s3, s3, 4096")
    a(f"""
    s_lshl_b32 s3, s{sA}, 10
    s_add_u32 s3, s3, {MBUF}
    buffer_store_dwordx4 v[12:15], v9, {WS}, s3 offen sc1
    s_mul_i32 s3, s{sA}, 2560
    s_add_u32 s3, s3, {FLG}
    v_mov_b32 v16, 0
    v_mov_b32 v17, 0
    v_mov_b32 v18, 0
    v_mov_b32 v19, 0
    buffer_store_dwordx4 v[16:19], v9, {WS}, s3 offen sc1
    buffer_store_dwordx4 v[16:19], v9, {WS}, s3 offen offset:1024 sc1
    s_mov_b64 exec, 0xffffffff
    buffer_store_dwordx4 v[16:19], v9, {WS}, s3 offen offset:2048 sc1
    s_mov_b64 exec, -1
    s_waitcnt vmcnt(0)
    s_mov_b64 exec, 1
    v_mov_b32 v20, 1
    v_mov_b32 v22, {D_INIT}
    buffer_atomic_add v20, v22, {DB}, 0 offen
    s_mov_b64 exec, -1
    L_I3:
    s_cmp_lg_u32 s{Wk.sW}, 0
    s_cbranch_scc1 L_I2
    s_mov_b64 exec, 1
    s_lshl_b32 s3, 1, s{sTent}
    v_mov_b32 v250, s3
    v_mov_b32 v22, s{sWord}
    buffer_atomic_or v250, v22, {DB}, 0 offen sc0
    s_mov_b64 exec, -1
    L_I2:
    s_cmp_lg_u32 s{sXcc}, {CX}
    s_cbranch_scc1 L_NOSPEC
    s_mov_b32 s{sSpec}, 1
    s_branch L_CHAIN
    L_CLOST:
    s_waitcnt vmcnt(0)
    s_cmp_lg_u32 s{Wk.sW}, 0
    s_cbranch_scc1 L_ROLE
    s_mov_b32 s{sA}, s{sTent}
    s_mov_b32 s{sOff}, {D_MASK}
    """)
    claim(a, "A", sR, sOff)
    a(f"s_cmp_eq_u32 s{sR}, -1\ns_cbranch_scc1 L_WCLAIM")
    declare(a)
    a("s_branch L_ROLE")
    a.label("L_NOSPEC")
    if P.get("pf0"):
        a(f"s_xor_b32 s3, s{Wk.sW}, s{sTent}\ns_bitcmp1_b32 s3, 0\ns_cbranch_scc0 L_PF")
        a(f"s_load_dwordx4 s[48:51], s[0:1], {KA['Wq']}\ns_load_dwordx4 s[52:55], s[0:1], {KA['Wv']}\ns_mov_b32 s42, 0x400000\ns_mov_b32 s43, 0x20000")
        a(f"v_lshlrev_b32 v13, 7, v0\ns_lshr_b32 s3, s{Wk.sW}, 1\ns_add_u32 s3, s3, s2\ns_and_b32 s3, s3, 255\ns_lshl_b32 s3, s3, 14\ns_add_u32 s44, s3, 8192\ns_waitcnt lgkmcnt(0)")
        for p in P["pf0"]:
            a(f"s_mov_b32 s40, s{p}\ns_mov_b32 s41, s{p+1}\nbuffer_load_dword v252, v13, s[40:43], s3 offen\nbuffer_load_dword v252, v13, s[40:43], s44 offen")
        a.label("L_PF")
    a(f"s_lshl_b32 s{sR}, s{sDie}, 5\ns_add_u32 s{sR}, s{sR}, s{sTent}\ns_mov_b32 s{sSpec}, 1\ns_branch L_WORK")
    a.label("L_WLOST")
    a("s_waitcnt vmcnt(0) lgkmcnt(0)")
    a(f"s_cmp_lg_u32 s{Wk.sW}, 0\ns_cbranch_scc1 L_ROLE2")
    a.label("L_WCLAIM")
    a(f"s_mov_b32 s{sOff}, s{sDie}\ns_mov_b32 s{sTry}, 0\ns_mov_b32 s{sA}, s{sTent}")
    a.label("L_WNEXT")
    a(f"s_cmp_ge_u32 s{sOff}, 7\ns_cselect_b32 s{sB}, 7, 0\ns_sub_u32 s{sOff}, s{sOff}, s{sB}")
    a(f"s_cmp_ge_u32 s{sOff}, 7\ns_cselect_b32 s{sB}, 7, 0\ns_sub_u32 s{sOff}, s{sOff}, s{sB}")
    a(f"s_lshl_b32 s{sOff}, s{sOff}, 2\ns_add_u32 s{sOff}, s{sOff}, {D_WM}")
    claim(a, "W", sR, sOff)
    a(f"s_sub_u32 s{sOff}, s{sOff}, {D_WM}\ns_lshr_b32 s{sOff}, s{sOff}, 2")
    a(f"s_cmp_eq_u32 s{sR}, -1\ns_cbranch_scc0 L_WGOT")
    a(f"s_add_u32 s{sOff}, s{sOff}, 1\ns_add_u32 s{sTry}, s{sTry}, 1\ns_mov_b32 s{sA}, 0\ns_cmp_lt_u32 s{sTry}, 7\ns_cbranch_scc1 L_WNEXT")
    atomic(a, "cmpswap", D_MODE, 2, sB, cmp=0)
    a(f"s_mov_b32 s{sA}, 0\ns_mov_b32 s{sOff}, {D_MASK}")
    claim(a, "B", sR, sOff)
    a("s_branch L_ROLE")
    a.label("L_WGOT")
    a(f"s_lshl_b32 s{sOff}, s{sOff}, 5\ns_add_u32 s{sR}, s{sR}, s{sOff}\ns_add_u32 s{sR}, s{sR}, 32")
    def verdict(a):
        L = a.newlabel("VERD")
        a(f"s_cmp_eq_u32 s{sSpec}, 0\ns_cbranch_scc1 {L}\ns_mov_b32 s{sSpec}, 0")
        a(f"v_readfirstlane_b32 s{sB}, v250\ns_nop 3\ns_lshr_b32 s{sB}, s{sB}, s{sTent}\ns_and_b32 s{sB}, s{sB}, 1")
        bcast(a, sB)
        a(f"s_cmp_lg_u32 s{sB}, 0\ns_cbranch_scc1 L_WLOST")
        a.label(L)
    a.label("L_ROLE")
    a.label("L_ROLE2")
    bcast(a, sR)
    a(f"s_cmp_lt_u32 s{sR}, 32\ns_cbranch_scc1 L_CHAIN")
    a(f"s_cmp_eq_u32 s{sR}, -1\ns_cbranch_scc1 L_FIN")
    a(f"s_waitcnt vmcnt(0)\ns_sub_u32 s{sR}, s{sR}, 32")
    a.label("L_WORK")
    if diag: a("s_memrealtime s[70:71]\ns_waitcnt lgkmcnt(0)\ns_mov_b32 s100, s70\ns_add_u32 s101, s16, 32")
    if diag: a("s_mov_b32 s64, 0\ns_mov_b32 s66, 0\ns_mov_b32 s68, 0\ns_mov_b32 s72, 0")
    Wk.gemm1(a, wait_init, verdict, sInit, diag)
    if diag: a("s_memtime s[78:79]")
    if P.get("marks"):
        a(f"s_cmp_lg_u32 s{Wk.sW}, 0\ns_cbranch_scc1 L_MK2\ns_and_b32 s3, s{sR}, 7\ns_cmp_lg_u32 s3, 0\ns_cbranch_scc1 L_MK2")
        mark(a, 8)
        a.label("L_MK2")
    if diag: a("s_memrealtime s[92:93]")
    wait_init(a)
    a(f"s_cmp_ge_u32 s{sR}, 192\ns_cbranch_scc1 L_FIN\ns_cmp_lt_u32 s{sR}, 160\ns_cbranch_scc1 L_G2\ns_sub_u32 s{sR}, s{sR}, 160")
    Wk.attention(a, diag)
    a("s_branch L_FIN")
    a.label("L_G2")
    Wk.gemm2(a, diag)
    if P.get("marks"):
        a(f"s_waitcnt vmcnt(0)\ns_cmp_lg_u32 s{Wk.sW}, 0\ns_cbranch_scc1 L_FIN")
        mark(a, 9)
    a("s_branch L_FIN")
    a.label("L_CHAIN")
    if diag: a("s_memrealtime s[70:71]\ns_waitcnt lgkmcnt(0)\ns_mov_b32 s100, s70\ns_mov_b32 s101, s16")
    def first_chunk(a):
        L = a.newlabel("CV")
        a(f"s_cmp_eq_u32 s{sSpec}, 0\ns_cbranch_scc1 {L}\ns_mov_b32 s{sSpec}, 0\ns_cmp_lg_u32 s{Wk.sW}, 0\ns_cbranch_scc1 {L}_B")
        a(f"v_readfirstlane_b32 s{sB}, v250\ns_lshl_b32 s3, 1, s{sTent}\ns_nop 2\ns_and_b32 s{sLost}, s{sB}, s3\ns_or_b32 s{sB}, s{sB}, s3")
        a(f"s_cmp_lg_u32 s{sLost}, 0\ns_cbranch_scc1 {L}_B")
        declare(a)
        a.label(L + "_B")
        bcast(a, sLost)
        a(f"s_cmp_lg_u32 s{sLost}, 0\ns_cbranch_scc1 L_CLOST")
        a.label(L)
    sChf, sG1 = 88, 89
    def g1addr(a, lane):
        a(f"v_and_b32 v11, 3, {lane}\nv_bfe_u32 v10, {lane}, 2, 1\nv_lshlrev_b32 v10, 13, v10\nv_lshl_add_u32 v10, v11, 7, v10")
    def set_ready(a, v):
        for perm in ("quad_perm:[1,0,3,2]", "quad_perm:[2,3,0,1]", "row_half_mirror"):
            a(f"s_nop 1\nv_min_u32_dpp v{v}, v{v}, v{v} {perm} row_mask:0xf bank_mask:0xf")
        a(f"s_nop 0\nv_readfirstlane_b32 s{sReady}, v{v}\ns_nop 3\ns_lshl_b32 s{sReady}, s{sReady}, 2")
    def peek(a):
        a(f"s_lshl_b32 s{sChf}, s{C.sH}, 7\ns_add_u32 s{sChf}, s{sChf}, {CHF}")
        a(f"s_lshr_b32 s{sG1}, s{C.sH}, 1\ns_lshl_b32 s{sG1}, s{sG1}, 9\ns_add_u32 s{sG1}, s{sG1}, {G1F}")
        g1addr(a, "v0")
        a(f"v_mov_b32 v24, 0\nbuffer_load_dwordx2 v[26:27], v24, {DB}, 0 offen sc1\nbuffer_load_dword v25, v10, {WS}, s{sG1} offen sc1")
    C.prologue_a(a, P, True)
    C.prologue_b(a, P, first_chunk, peek)
    a(f"s_waitcnt vmcnt(0)\nv_readfirstlane_b32 s{sMode}, v26\nv_readfirstlane_b32 s3, v27")
    set_ready(a, 25)
    a(f"s_cmp_ge_u32 s3, {2 * NINIT}\ns_cselect_b32 s{sInit}, 1, s{sInit}\ns_cselect_b32 s{sReady}, s{sReady}, 0")
    wait_init(a, 10)
    if P.get("hold"):
        a(f"s_cmp_lg_u32 s{Wk.sW}, 0\ns_cbranch_scc1 L_STG\ns_add_u32 s3, s{sChf}, 64")
        Wk.flag_store(a, "s3", 1, 10)
        a.label("L_STG")
    a(f"s_cmp_lg_u32 s{sMode}, 0\ns_cbranch_scc1 L_MODEOK\nv_mov_b32 v10, {D_MODE}")
    Wk.poll_ge(a, f"buffer_load_dword v11, v10, {DB}, 0 offen sc1", [11], 1, "MODE")
    a(f"v_readfirstlane_b32 s{sMode}, v11\ns_nop 3")
    a.label("L_MODEOK")
    if P.get("marks"):
        a(f"s_cmp_lg_u32 s{Wk.sW}, 1\ns_cbranch_scc1 L_MK1")
        mark(a, 5); mark(a, 6, True)
        a.label("L_MK1")
    if diag:
        for k in range(20, 30): a(f"s_mov_b32 s{C.sTS+k}, 0")
        a("s_memrealtime s[92:93]\ns_memtime s[96:97]")
    stubs = []
    sPend = 29
    def ready(a, w, tag, first):
        if not first and w != 2: return
        L = a.newlabel("RDY")
        if first: a(f"s_mov_b32 s{C.sStep}, 0\ns_mov_b32 s{sPend}, 0")
        else:
            a(f"s_cmp_eq_u32 s{sPend}, 0\ns_cbranch_scc1 {L}_P\ns_mov_b32 s{sPend}, 0")
            set_ready(a, C.vMpub)
            a.label(L + "_P")
        a(f"s_add_u32 s{C.sT0}, s{C.sStep}, 1\ns_min_u32 s{C.sT0}, s{C.sT0}, 63\ns_cmp_ge_u32 s{C.sT0}, s{sReady}\ns_cbranch_scc1 {L}_S")
        a.label(L)
        stubs.append((L, first))
    def look(a):
        L = a.newlabel("LOOK")
        a(f"s_add_u32 s{C.sT0}, s{C.sStep}, 6\ns_min_u32 s{C.sT0}, s{C.sT0}, 63\ns_cmp_lt_u32 s{C.sT0}, s{sReady}\ns_cbranch_scc1 {L}")
        a(f"v_lshrrev_b32 v10, 3, v{C.vL8}")
        g1addr(a, "v10")
        a(f"buffer_load_dword v{C.vMpub}, v10, {WS}, s{sG1} offen sc1\ns_mov_b32 s{sPend}, 1")
        a.label(L)
    def flag(a):
        if P.get("noflag"): return
        if P.get("marks"):
            L = a.newlabel("MK")
            a(f"s_and_b32 s{C.sT0}, s{C.sStep}, 15\ns_cmp_lg_u32 s{C.sT0}, 1\ns_cbranch_scc1 {L}\ns_cmp_lg_u32 s{C.sH}, 5\ns_cbranch_scc1 {L}")
            a(f"s_memrealtime s[98:99]\ns_lshr_b32 s{C.sT0}, s{C.sStep}, 4\ns_lshl_b32 s{C.sT0}, s{C.sT0}, 2\ns_add_u32 s{C.sT0}, s{C.sT0}, 40\ns_waitcnt lgkmcnt(0)")
            a(f"s_mov_b64 exec, 1\nv_mov_b32 v10, s98\nv_mov_b32 v11, s{C.sT0}\nbuffer_store_dword v10, v11, {DB}, 0 offen\ns_mov_b64 exec, -1")
            a.label(L)
        FL = a.newlabel("FLAG")
        FE = P.get("fevery", 4)
        a(f"s_and_b32 s{C.sT0}, s{C.sStep}, {FE-1}\ns_cmp_ge_u32 s{C.sStep}, 58\ns_cselect_b32 s{C.sT0}, {1 % FE}, s{C.sT0}\ns_cmp_lg_u32 s{C.sT0}, {1 % FE}\ns_cbranch_scc1 {FL}")
        a(f"s_sub_u32 s{C.sT0}, s{C.sStep}, 1\ns_max_i32 s{C.sT0}, s{C.sT0}, 0")
        if P.get("early", 1): a(f"s_cmp_eq_u32 s{C.sStep}, 63\ns_cselect_b32 s{C.sT0}, 63, s{C.sT0}")
        Wk.flag_store(a, f"s{sChf}", f"s{C.sT0}", 10); a.vmq.pop()
        a.label(FL)
    def done(a, w):
        a("s_barrier" if P.get("early", 1) else "s_waitcnt vmcnt(0)\ns_barrier")
        if w == 0: Wk.flag_store(a, f"s{sChf}", 64, 10)
        if w == 1: mark(a, 7)
        a.vmq = []
        a("s_branch L_FIN")
        for L, first in stubs:
            a.label(L + "_S")
            a(f"s_add_u32 s{C.sT0}, s{C.sStep}, 1\ns_min_u32 s{C.sT0}, s{C.sT0}, 63\ns_lshr_b32 s{C.sT0}, s{C.sT0}, 2\ns_add_u32 s{C.sT0}, s{C.sT0}, 1")
            a(f"v_lshrrev_b32 v10, 3, v{C.vL8}")
            g1addr(a, "v10")
            Wk.poll_ge(a, f"buffer_load_dword v11, v10, {WS}, s{sG1} offen sc1", [11], f"s{C.sT0}", "KV", sleep=0)
            set_ready(a, 11)
            a(f"s_branch {L}")
        stubs.clear()
    P = dict(P, hooks=dict(ready=ready, flag=flag, done=done, look=look))
    a(f"s_cmp_eq_u32 s{sMode}, 1\ns_cbranch_scc0 L_SLOW")
    for st in ("", "sc1"):
        if st: a.label("L_SLOW")
        t = "s" if st else "f"
        for w in range(1, 4): a(f"s_cmp_eq_u32 s{C.sW}, {w}\ns_cbranch_scc1 CH_W{w}{t}")
        for w in range(4):
            a.label(f"CH_W{w}{t}")
            C.loop(a, w, st, P, diag)
    a.label("L_FIN")
    if diag:
        a("s_memrealtime s[94:95]\ns_memtime s[98:99]\ns_waitcnt lgkmcnt(0)")
        a(f"s_lshl_b32 s3, s2, 2\ns_add_u32 s3, s3, s{Wk.sW}\ns_lshl_b32 s3, s3, 7\ns_add_u32 s3, s3, {DBG}")
        vals = [C.sTS + 20 + k for k in range(10)] + [90, 92, 94, 96, 98, sR, sXcc, Wk.sDead, 100, 101, 72, 74, 76, 78]
        for i, sg in enumerate(vals):
            a(f"v_mov_b32 v20, s{sg}\nv_mov_b32 v21, {4*i}\nbuffer_store_dword v20, v21, {WS}, s3 offen")
    a("s_waitcnt vmcnt(0)")
    a.label("L_END")
    return a.text()

def wrap(body):
    ref = open(f"cdna_kernels/{NAME}.s.ref").read().split("\n")
    head = [l for l in ref if l.startswith(";") and "@launch" not in l]
    return "\n".join(head) + f"""
; @launch grid=(256,1,1) block=(256,1,1) lds=163840
.amdgcn_target "amdgcn-amd-amdhsa--gfx950"
.text
.globl {NAME}_kernel
.p2align 8
.type {NAME}_kernel,@function
{NAME}_kernel:
{body}s_endpgm
.section .rodata,"a"
.p2align 6
.amdhsa_kernel {NAME}_kernel
  .amdhsa_next_free_vgpr 512
  .amdhsa_next_free_sgpr 102
  .amdhsa_accum_offset 256
  .amdhsa_group_segment_fixed_size 0
  .amdhsa_kernarg_size 120
  .amdhsa_user_sgpr_count 2
  .amdhsa_user_sgpr_kernarg_segment_ptr 1
  .amdhsa_system_sgpr_workgroup_id_x 1
.end_amdhsa_kernel
"""
if __name__ == "__main__":
    import ast
    P = dict(CH)
    if len(sys.argv) > 2: P.update(ast.literal_eval(sys.argv[2]))
    t = gen(P)
    hz = check(t)
    for h in hz[:12]: print(h)
    out = sys.argv[1] if len(sys.argv) > 1 else f"cdna_kernels/{NAME}.s"
    open(out, "w").write(wrap(t))
    print("lines", len(t.split("\n")), "hazards", len(hz))
```

```python
from asm import *
from layout import *
import math

MISC = 131072
M_OFF = 0
X_OFF = 8192
KX_OFF = 16384
O_OFF = 13568
XS = 1088
sWS = 8
sTMP = 12
sH, sW, sStep = 16, 17, 18
sPst, sPld, sTag, sMpub, sMpoll, sMclr = 19, 20, 21, 22, 23, 24
sVx, sKx, sKm, sVm = 25, 26, 27, 28
sC = 30
sT0, sT1, sT2, sT3 = 32, 33, 34, 35
sCnt = 36
sLO8 = 38
sDBG = 40
sTS = 44
vIDX, vKx, vM16, vRing, vPst, vMpub, vXw, vXr, vOr = 1, 2, 3, 4, 5, 6, 7, 8, 9
vL8 = 0
vNEG = 10
vVA0 = 12
RA_OFF = 12544
vVX = 16
vPM = 24
vACC = 28
vA = 44
vRING = 76
vT = 124
vWK = 128
NRING = 6
WQ_SLOT = [2, 3, 1, 0]
def ringreg(i): return vRING + 8 * (i % NRING)
KXREG = [vRING + 8*4, vRING + 8*5, vRING + 0, vRING + 8]
def kx(kt, s): return KXREG[kt*2 + (s >> 1)] + 4 * (s & 1)
vXF = vRING + 16
def wv(t, s): return 8 * (t * 8 + s)
def wo(d, s): return 128 + 8 * (d * 4 + s)
def wk(t, s): return vWK + 8 * (t * 8 + s)

def wq_lds_imm(i):
    t, s = i >> 3, i & 7
    return WQ_SLOT[s >> 1] * 8192 + ((s & 1) * 2 + t) * 2048

def stamp(a, k, diag):
    if diag: a(f"s_memtime s[{sTS+2*k}:{sTS+2*k+1}]")

def prologue(a, P, diag=False):
    a(f"v_lshrrev_b32 v10, 6, v0\nv_and_b32 v0, 63, v0\nv_readfirstlane_b32 s{sW}, v10\ns_nop 3")
    prologue_a(a, P, True); prologue_b(a, P)

def prologue_a(a, P, dma):
    WNT[0] = P.get("wnt", "")
    a(f"""
    s_load_dwordx4 s[48:51], s[0:1], {KA['Wq']}
    s_load_dwordx4 s[52:55], s[0:1], {KA['Wv']}
    s_load_dwordx2 s[56:57], s[0:1], {KA['mem0']}
    """)
    a(f"""
    v_and_b32 v100, 15, v0            ; n
    v_lshrrev_b32 v101, 4, v0         ; g
    v_and_b32 v102, 3, v0             ; c
    v_bfe_u32 v103, v0, 2, 2          ; r''
    """)
    a(f"""
    s_lshl_b32 s{sT2}, s{sH}, 8
    s_lshl_b32 s{sT3}, s{sW}, 6
    s_add_u32 s{sT2}, s{sT2}, s{sT3}
    v_lshrrev_b32 v10, 2, v0
    """)
    for k in range(4):
        a(f"v_xor_b32 v11, {k & 2}, v10\nv_lshlrev_b32 v11, 13, v11\nv_xor_b32 v104, {2*(k&1)}, v102\nv_lshl_add_u32 v11, v104, 4, v11\nv_add_u32 v{vSQ+k}, s{sT2}, v11")
        a(f"v_mov_b32 v{vSRC+k}, v{vSQ+k}\nv_mov_b32 v{vSRC+4+k}, v{vSQ+k}")
    a(f"""
    s_lshl_b32 s{sB0}, s{sW}, 15
    s_lshl_b32 s{sB1}, s{sW}, 13
    s_add_u32 s{sB1}, s{sB1}, {MISC}
    s_mov_b32 s62, 0x400000
    s_mov_b32 s63, 0x20000
    s_getpc_b64 s[{sSub}:{sSub+1}]
    s_add_u32 s{sSub}, s{sSub}, 12
    s_addc_u32 s{sSub+1}, s{sSub+1}, 0
    s_branch CH_SUBE
    """)
    for i in range(8):
        a(f"s_mov_b32 m0, s64\ns_add_u32 s64, s64, 1024\nbuffer_load_dwordx4 v{vSRC+i}, s[60:63], s65 offen {WNT[0]} lds\ns_add_u32 s65, s65, s66")
    a(f"s_setpc_b64 s[{sRet}:{sRet+1}]")
    a.label("CH_SUBE")
    a("s_waitcnt lgkmcnt(0)")
    for c in range(4 if P.get('cverd', 0) == 0 else 5): w_issue(a, c)
    a(f"""
    v_and_b32 v10, 2, v0
    v_cmp_eq_u32 vcc, 0, v10
    v_mov_b32 v11, 0xeeee
    v_mov_b32 v104, 0x4444
    v_cndmask_b32 v{vIDX}, v11, v104, vcc
    v_lshlrev_b32 v10, 4, v0
    v_add_u32 v{vM16}, {MISC}, v10
    s_lshl_b32 s{sT0}, s{sW}, 15
    v_add_u32 v{vRing}, s{sT0}, v10
    v_lshrrev_b32 v11, 2, v0
    v_lshlrev_b32 v11, 1, v11
    v_and_b32 v104, 1, v0
    v_add_u32 v11, v11, v104
    v_lshlrev_b32 v11, 4, v11
    v_add_u32 v{vOr}, {MISC+O_OFF}, v11
    v_lshlrev_b32 v10, 14, v101
    v_lshrrev_b32 v11, 3, v100
    v_lshl_add_u32 v10, v11, 13, v10
    v_and_b32 v11, 7, v100
    v_lshl_add_u32 v{vPst}, v11, 4, v10
    v_lshlrev_b32 v10, 4, v102
    v_bfe_u32 v11, v0, 2, 1
    v_lshl_add_u32 v10, v11, 3, v10
    v_lshrrev_b32 v11, 1, v101
    v_lshl_add_u32 v10, v11, 2, v10
    v_and_b32 v11, 1, v101
    v_lshl_add_u32 v{vMpub}, v11, 8, v10
    v_add_u32 v{vKx}, {KX_OFF}, v{vM16}
    v_mul_u32_u24 v10, {XS}, v101
    v_lshl_add_u32 v10, v100, 3, v10
    s_lshl_b32 s{sT0}, s{sW}, 8
    s_add_u32 s{sT0}, s{sT0}, {MISC+X_OFF}
    v_add_u32 v{vXw}, s{sT0}, v10
    v_mul_u32_u24 v10, {XS}, v102
    v_lshrrev_b32 v11, 2, v0
    v_lshl_add_u32 v10, v11, 3, v10
    v_add_u32 v{vXr}, {MISC+X_OFF}, v10
    v_bfe_u32 v10, v100, 1, 2
    v_and_b32 v11, 1, v100
    v_lshlrev_b32 v11, 4, v11
    v_mov_b32 v104, 0x3f80
    v_lshlrev_b32 v104, v11, v104
    """)
    for k in range(4):
        a(f"v_cmp_eq_u32 vcc, {k}, v10\ns_nop 1\nv_cndmask_b32 v{112+k}, 0, v104, vcc")
    a(f"s_mov_b32 s{sLO8}, 0x00ff00ff\ns_mov_b32 s{sLO8+1}, 0x00ff00ff\ns_mov_b32 s{sB1M}, 0xcccccccc\ns_mov_b32 s{sB1M+1}, 0xcccccccc\ns_mov_b32 s{sONE}, 0x3f803f80")
    c = (128 ** -0.5) * math.log2(math.e)
    import struct
    cb = struct.unpack("<I", struct.pack("<f", c))[0]
    a(f"s_mov_b32 s{sC}, {cb:#x}\ns_mov_b32 s{sC+1}, {cb:#x}")
    a(f"""
    s_lshl_b32 s{sT2}, s{sH}, 17
    s_lshl_b32 s{sT3}, s{sW}, 8
    s_add_u32 s{sT2}, s{sT2}, s{sT3}
    v_and_b32 v105, 1, v101            ; g&1
    v_lshrrev_b32 v106, 1, v101        ; g>>1
    v_and_b32 v107, 1, v103            ; r&1
    v_lshrrev_b32 v108, 1, v103        ; r>>1
    v_lshlrev_b32 v10, 5, v105
    v_lshl_add_u32 v10, v106, 2, v10
    v_lshl_add_u32 v10, v108, 4, v10
    v_add_u32 v109, v10, v107
    v_lshlrev_b32 v10, 4, v105
    v_lshl_add_u32 v10, v106, 2, v10
    v_add_u32 v110, v10, v107
    """)
    for k in range(2):
        a(f"v_lshl_add_u32 v10, v105, 2, 0\nv_xor_b32 v10, v10, v100\nv_xor_b32 v10, {8*k}, v10\nv_lshlrev_b32 v11, 10, v101\nv_lshl_add_u32 v10, v10, 4, v11\nv_add_u32 v{vSO+k}, s{sT2}, v10")
    for mb in range(2):
        for t in range(2):
            a(f"v_add_u32 v10, {2*mb}, v109\nv_lshlrev_b32 v11, 1, v105\nv_xor_b32 v10, v10, v11\nv_lshlrev_b32 v10, 6, v10")
            a(f"v_xor_b32 v11, {t}, v108\nv_lshl_add_u32 v10, v11, 5, v10\nv_lshl_add_u32 v10, v102, 3, v10")
            a(f"v_add_u32 v{vB1+mb*2+t}, s{sB0}, v10\nv_add_u32 v{vB1+4+mb*2+t}, s{sB1}, v10")
    for d in range(4):
        a(f"v_lshl_add_u32 v11, v105, 1, v107\nv_xor_b32 v11, {d}, v11\nv_lshlrev_b32 v10, 8, v110\nv_lshl_add_u32 v10, v11, 6, v10")
        a(f"v_lshl_add_u32 v10, v108, 5, v10\nv_lshl_add_u32 v10, v102, 3, v10")
        a(f"v_add_u32 v{vB2+d}, s{sB0}, v10\nv_add_u32 v{vB2+4+d}, s{sB1}, v10")
    a(f"""
    s_mov_b32 s12, s56
    s_mov_b32 s13, s57
    s_mov_b32 s14, 8192
    s_mov_b32 s15, 0x20000
    v_lshrrev_b32 v10, 2, v100
    v_lshlrev_b32 v10, 1, v10
    v_and_b32 v11, 1, v0
    v_add_u32 v10, v10, v11            ; row
    v_lshlrev_b32 v10, 10, v10
    v_bfe_u32 v11, v0, 1, 1
    v_lshl_add_u32 v10, v11, 5, v10
    v_lshl_add_u32 v10, v101, 3, v10
    s_lshl_b32 s{sT2}, s{sW}, 8        ; ksteps 2w, 2w+1
    v_add_u32 v10, s{sT2}, v10
    buffer_load_dwordx2 v[16:17], v10, s[12:15], 0 offen
    buffer_load_dwordx2 v[18:19], v10, s[12:15], 0 offen offset:64
    buffer_load_dwordx2 v[12:13], v10, s[12:15], 0 offen offset:128
    buffer_load_dwordx2 v[14:15], v10, s[12:15], 0 offen offset:192
    """)

order = ["k"] * 4 + ["v"] * 4 + ["o"] * 4 + ["q"] * 4
srd = {"q": 60, "k": 64, "v": 68, "o": 72}
WNT = ['']
sB0, sB1 = 76, 77
sSub, sRet = 68, 70
vSRC, vSQ, vSO, vB1, vB2 = 76, 84, 88, 90, 116
def w_issue(a, c):
    m = order[c]; cc = c & 3; slot = c % 5
    if cc == 0:
        src = {"q": 48, "k": 50, "v": 52, "o": 54}[m]
        a(f"s_mov_b32 s60, s{src}\ns_mov_b32 s61, s{src+1}\ns_mov_b32 s65, 0")
        if c in (0, 8, 12): a(f"s_mov_b32 s66, {4096 if m == 'o' else 131072}")
        if c in (8, 12):
            for k in range(8): a(f"v_mov_b32 v{vSRC+k}, v{vSO + (k >> 2) if m == 'o' else vSQ + (k & 3)}")
    a(f"s_add_u32 s64, s{sB0}, {slot*8192}" if slot < 4 else f"s_mov_b32 s64, s{sB1}")
    a(f"s_swappc_b64 s[{sRet}:{sRet+1}], s[{sSub}:{sSub+1}]")
    a.vmq += [("w", c)] * 8

def prologue_b(a, P, first_chunk=None, peek=None):
    issue = lambda c: w_issue(a, c)
    CV = P.get("cverd", 0)
    a.vmq = [("w", c) for c in range(4 if CV == 0 else 5) for _ in range(8)]
    for c in range(16):
        m = order[c]; cc = c & 3; slot = c % 5
        a.wait_vm(("w", c))
        if c == 0:
            if first_chunk: first_chunk(a, 0, CV == 0)
            if CV == 0: issue(4)
        so, sb = (slot * 8192, 0) if slot < 4 else (0, 4)
        if m != "o":
            for s_ in range(2):
                for t in range(2):
                    for mm in range(4):
                        imm = so + (64 * s_ + 8 * (mm >> 1)) * 64
                        s = 2 * cc + s_
                        if m == "k": dst = vr(wk(t, s) + 2 * mm, 2)
                        elif m == "v": dst = ar(wv(t, s) + 2 * mm, 2)
                        else: dst = vr(vA + (s_ * 2 + t) * 8 + 2 * mm, 2)
                        a.ds(f"ds_read_b64_tr_b16 {dst}, v{vB1 + sb + (mm & 1) * 2 + t} offset:{imm}")
        else:
            for d in range(4):
                for mm in range(4):
                    imm = so + (8 * (mm >> 1) + 2 * (mm & 1)) * 256
                    a.ds(f"ds_read_b64_tr_b16 {ar(wo(d, cc) + 2*mm, 2)}, v{vB2 + sb + d} offset:{imm}")
        a.wait_ds_all()
        if m == "q":
            for k in range(8):
                a.ds(f"ds_write_b128 v{vRing}, {vr(vA + 4*k, 4)} offset:{WQ_SLOT[cc]*8192 + k*1024}")
            a.wait_ds_all()
        if CV and c == CV and first_chunk: first_chunk(a, 1, True)
        if c + 5 < 16: issue(c + 5)
        if c == P.get('peek', 13) and peek: peek(a)
        if c == P.get("help_at", -1):
            lo, per = P["help"]
            a(f"s_lshl_b32 s{sT0}, s{sH}, 2\ns_add_u32 s{sT0}, s{sT0}, s{sW}\nv_lshlrev_b32 v10, 7, v0")
            for rep in range(P.get("help_rep", 2)):
                if rep: a(f"s_add_u32 s{sT0}, s{sT0}, {128 // P.get('help_rep', 2) + 1}\ns_and_b32 s{sT0}, s{sT0}, 127")
                a(f"s_mul_i32 s{sT1}, s{sT0}, {per*8192}\ns_add_u32 s{sT1}, s{sT1}, {lo*8192}")
                for k in range(per):
                    a(f"buffer_load_dword v11, v10, s[60:63], s{sT1} offen")
                    if k + 1 < per: a(f"s_add_u32 s{sT1}, s{sT1}, 8192")
    a("s_barrier")
    a(f"""
    ds_write_b128 v{vM16}, v[112:115] offset:{RA_OFF}
    v_lshlrev_b32 v{vL8}, 3, v0
    s_waitcnt lgkmcnt(0)
    """)

def seg_offsets(a, w, P):
    a(f"""
    s_and_b32 s{sT0}, s{sStep}, 3
    s_lshl_b32 s{sT1}, s{sT0}, 18
    s_lshl_b32 s{sT2}, s{sH}, 7
    s_add_u32 s{sPst}, s{sT1}, s{sT2}
    s_add_u32 s{sPst}, s{sPst}, {PART + w*65536}
    s_lshl_b32 s{sT3}, s{sH}, 13
    s_add_u32 s{sPld}, s{sT1}, s{sT3}
    s_add_u32 s{sPld}, s{sPld}, {PART - MISC + (w&1)*4096}
    s_add_u32 s{sT0}, s{sStep}, 3
    s_and_b32 s{sT0}, s{sT0}, 3
    s_lshl_b32 s{sT1}, s{sT0}, 18
    s_mov_b32 s{sTag}, 0
    s_lshr_b32 s{sT2}, s{sH}, 3
    s_lshl_b32 s{sT2}, s{sT2}, 11
    s_and_b32 s{sT3}, s{sH}, 1
    s_lshl_b32 s{sT3}, s{sT3}, 9
    s_add_u32 s{sT2}, s{sT2}, s{sT3}
    s_bfe_u32 s{sT3}, s{sH}, 0x20001
    s_lshl_b32 s{sT3}, s{sT3}, 6
    s_add_u32 s{sT2}, s{sT2}, s{sT3}
    s_lshl_b32 s{sT1}, s{sT0}, 13
    s_add_u32 s{sMclr}, s{sT1}, s{sT2}
    s_add_u32 s{sMclr}, s{sMclr}, {MBUF + (w&1)*1024}
    s_add_u32 s{sT0}, s{sStep}, 1
    s_and_b32 s{sT0}, s{sT0}, 3
    s_lshl_b32 s{sT1}, s{sT0}, 13
    s_add_u32 s{sMpub}, s{sT1}, s{sT2}
    s_add_u32 s{sMpub}, s{sMpub}, {MBUF + (w&1)*1024}
    s_add_u32 s{sMpoll}, s{sT1}, {MBUF - MISC + w*2048}
    s_lshl_b32 s{sT0}, s{sStep}, 5
    s_add_u32 s{sT0}, s{sT0}, s{sH}
    s_lshl_b32 s{sT1}, s{sT0}, 13
    s_add_u32 s{sVx}, s{sT1}, {VIMG - MISC + w*2048}
    s_add_u32 s{sKx}, s{sT1}, {KIMG - MISC + 32*8192}
    s_lshl_b32 s{sT1}, s{sT0}, 12
    s_add_u32 s{sKm}, s{sT1}, {KMEM - MISC + w*1024}
    s_lshl_b32 s{sT1}, s{sT0}, 11
    s_add_u32 s{sVm}, s{sT1}, {VMEM + w*512}
    """)

sRP, sRM, sMprev, sCP1, sCP2, sCM1, sVmPrev = 76, 77, 78, 79, 80, 81, 82
sKb, sStage = 75, 74
sONE = 42
sB1M = 40
def init_incr(a, w):
    a(f"""
    s_mov_b32 s{sRP}, 0
    s_mov_b32 s{sRM}, 8192
    s_mov_b32 s{sCP1}, s{sPst}
    s_mov_b32 s{sCP2}, s{sPld}
    s_sub_u32 s{sCM1}, s{sMpub}, 8192
    s_mov_b32 s{sMprev}, s{sCM1}
    """)
NP = [1]
def advance(a, w):
    a(f"""
    s_add_u32 s{sVx}, s{sVx}, {32*8192}
    s_add_u32 s{sKx}, s{sKx}, {32*8192}
    s_add_u32 s{sKm}, s{sKm}, {32*4096}
    s_sub_u32 s{sMclr}, s{sMprev}, {(w&1)*1024}
    s_mov_b32 s{sMprev}, s{sMpub}
    s_add_u32 s{sRM}, s{sRM}, 8192
    s_and_b32 s{sRM}, s{sRM}, 0x7fff
    s_add_u32 s{sMpub}, s{sRM}, s{sCM1}
    s_add_u32 s{sStep}, s{sStep}, 1
    """)
    if NP[0] == 1: a(f"s_xor_b32 s{sTag}, s{sTag}, 1")
    else:
        a(f"""
        s_add_u32 s{sRP}, s{sRP}, 0x40000
        s_and_b32 s{sRP}, s{sRP}, {NP[0]*0x40000 - 1}
        s_add_u32 s{sPst}, s{sRP}, s{sCP1}
        s_add_u32 s{sPld}, s{sRP}, s{sCP2}
        s_bfe_u32 s{sTag}, s{sStep}, {0x10000 + NP[0].bit_length() - 1}
        """)

def korder(w):
    own = [2 * w, 2 * w + 1]
    rest = [(2 * w + 2 + k) % 8 for k in range(6)]
    seq = [(0, own[0]), (1, own[0]), (0, own[1]), (1, own[1])] + [(0, s) for s in rest] + [(1, s) for s in rest]
    return own, rest, seq

ABL = [""]; NT = [""]
def ring_fill(a, w, i):
    if "r" in ABL[0] and i >= NRING: return
    t, s = korder(w)[2][i]
    r = ringreg(i); imm = WQ_SLOT[s >> 1] * 8192 + ((s & 1) * 2 + t) * 2048
    a.ds(f"ds_read_b128 {vr(r,4)}, v{vRing} offset:{imm}", ("ring", i))
    a.ds(f"ds_read_b128 {vr(r+4,4)}, v{vRing} offset:{imm+1024}", ("ring", i))

def kx_dma(a, w, i):
    a(f"s_add_u32 m0, s{sKb}, {i*1024}")
    a(f"s_add_u32 s{sT0}, s{sKx}, {i*1024}")
    a.vm(f"buffer_load_dwordx4 v{vM16}, s[{sWS}:{sWS+3}], s{sT0} offen {NT[0]} lds", "kx")

class Stream:
    def __init__(self): self.ops = []; self.fill = {}
    def add(self, f, pre=None): self.ops.append((f, pre)); return len(self.ops) - 1
    def at(self, g, f): self.fill.setdefault(g, []).append(f)
    def emit(self):
        for g, (f, pre) in enumerate(self.ops):
            if pre: pre()
            f()
            for x in self.fill.pop(g, []): x()
        assert not self.fill, self.fill.keys()

def loop(a, w, st, P, diag=False):
    tag = f"{w}{'s' if st else 'f'}"
    WS = f"s[{sWS}:{sWS+3}]"
    smf = lambda d, A, B: a(f"v_smfmac_f32_16x16x64_bf16 {vr(d,4)}, {vr(A,4)}, {B}, v{vIDX}")
    mf = lambda d, A, B, c: a(f"v_mfma_f32_16x16x32_bf16 {vr(d,4)}, {vr(A,4)}, {vr(B,4)}, {c}")
    mf16 = lambda d, A, B, c: a(f"v_mfma_f32_16x16x16_bf16 {vr(d,4)}, {vr(A,2)}, {vr(B,2)}, {c}")
    I = lambda t: (lambda: a(t))
    Af = lambda s: vA + 4 * s
    q = lambda t: vACC + 8 * t
    k_ = lambda t: vACC + 8 * t + 4
    vacc = lambda t: (vVA0, vPM)[t]
    own, rest, seq = korder(w)
    ABL[0] = P.get("abl", ""); NP[0] = P.get("np", 1); NT[0] = P.get("nt", "nt")
    SL = P.get("stamps", ["start", "qkend", "xbar", "scores", "pv", "obar", "opend", "pub", "bdone"])
    def ST(n):
        if diag and n in SL:
            if P.get("trace"): a(f"s_memrealtime s[{sTS+2*SL.index(n)}:{sTS+2*SL.index(n)+1}]")
            else: stamp(a, SL.index(n), diag)
    vVM = vVA0 + 2
    def zero_acc():
        if w == 3:
            a(f"v_mov_b32 v124, -1\nv_lshrrev_b32 v125, 8, v{vL8}\nv_bfe_u32 v126, v{vL8}, 7, 1\nv_lshl_add_u32 v125, v125, 2, v126\nv_bfe_u32 v126, v{vL8}, 1, 6\nv_lshl_add_u32 v125, v125, 8, v126")
        for r in range(16): a(f"v_mov_b32 v{vACC+r}, 0")
        for t in range(2):
            for r in range(4): a(f"v_mov_b32 v{vacc(t)+r}, 0")
    def mwrite():
        for o in own:
            a.ds(f"ds_write_b128 v{vM16}, {vr(Af(o),4)} offset:{M_OFF + o*1024}", "mw")
    hook = P.get("hooks")
    if hook: hook["ready"](a, w, tag, True)
    vxl = [lambda: a.vm(f"buffer_load_dwordx4 {vr(vVX,4)}, v{vM16}, {WS}, s{sVx} offen {NT[0]}", "vx"),
           lambda: a.vm(f"buffer_load_dwordx4 {vr(vVX+4,4)}, v{vM16}, {WS}, s{sVx} offen offset:1024 {NT[0]}", "vx")]
    a(f"s_mov_b32 s{sKb}, {MISC+KX_OFF}\ns_lshl_b32 s{sKx}, s{sH}, 13\ns_add_u32 s{sKx}, s{sKx}, {KIMG - MISC}")
    kx_dma(a, w, 2 * w); kx_dma(a, w, 2 * w + 1)
    for r in range(8): a(f"v_mov_b32 v{Af(own[0])+r}, v{(16, 17, 18, 19, 12, 13, 14, 15)[r]}")
    a(f"s_mov_b32 s{sStep}, 0\ns_mov_b32 s{sKb}, {MISC+KX_OFF+8192}")
    seg_offsets(a, w, P)
    if P.get("kxA"): kx_dma(a, w, 2 * w); kx_dma(a, w, 2 * w + 1)
    a(f"s_mov_b32 s{sVmPrev}, s{sKm}\ns_sub_u32 s{sMclr}, s{sMclr}, {(w&1)*1024}")
    init_incr(a, w)
    if hook:
        a(f"v_mov_b32 v124, -1\nv_mov_b32 v125, -1\nv_mov_b32 v126, -1\nv_mov_b32 v127, -1\ns_add_u32 s{sT0}, s{sKm}, {62*32*4096}")
        a(f"buffer_store_dwordx4 v[124:127], v{vM16}, {WS}, s{sT0} offen sc1\ns_add_u32 s{sT0}, s{sT0}, {32*4096}")
        a(f"buffer_store_dwordx4 v[124:127], v{vM16}, {WS}, s{sT0} offen sc1")
    a(f"v_mov_b32 v{vVX}, -1\nv_mov_b32 v{vVX+1}, -1\nv_mov_b32 v{vVX+2}, -1\nv_mov_b32 v{vVX+3}, -1")
    a.ds(f"ds_write_b128 v{vOr}, {vr(vVX,4)} offset:{w*512}")
    for i in range(NRING): ring_fill(a, w, i)
    zero_acc()
    a(f"s_waitcnt vmcnt({2 if hook else 0})"); a.vmq = []
    a.wait_ds_all(True)
    LB = [Af(o) for o in own]
    loadB = lambda k: a(f"buffer_load_dwordx4 {vr(LB[k],4)}, v{vM16}, {WS}, s{sMpoll} offen offset:{k*1024} sc1")
    NS = P["depB"]
    def retryB():
        a.label(f"CH_RBRETRY_{tag}")
        loadB(0); loadB(1)
        if diag: a(f"s_add_u32 s{sTS+21}, s{sTS+21}, 1")
        a(f"s_add_u32 s{sCnt}, s{sCnt}, 1")
        a(f"s_cmp_gt_u32 s{sCnt}, {P['bound']}\ns_cbranch_scc1 CH_RBOK_{tag}\ns_branch CH_RB_{tag}")
    a(f"s_mov_b32 s{sCnt}, 0")
    for k in range(8): a(f"v_min_u32 v{LB[0]+k}, 0xfffffffe, v{LB[0]+k}")
    a.label(f"CH_RB_{tag}")
    ST("B_w0")
    a.dsq = []
    r_ = [LB[0] + k for k in range(8)]
    a(f"s_waitcnt vmcnt({2 * NS - 1})")
    a(f"v_max3_u32 v10, v{r_[0]}, v{r_[1]}, v{r_[2]}")
    a(f"v_max_u32 v10, v10, v{r_[3]}")
    a.ds(f"ds_write_b128 v{vM16}, {vr(LB[0],4)} offset:{M_OFF + own[0]*1024}", "mw")
    a(f"s_waitcnt vmcnt({2 * NS - 2})")
    a(f"v_max3_u32 v10, v10, v{r_[4]}, v{r_[5]}")
    a(f"v_max3_u32 v10, v10, v{r_[6]}, v{r_[7]}")
    a.ds(f"ds_write_b128 v{vM16}, {vr(LB[1],4)} offset:{M_OFF + own[1]*1024}", "mw")
    a(f"v_cmp_eq_u32 vcc, -1, v10")
    a(f"s_cbranch_vccnz CH_RBRETRY_{tag}" if not P.get("free") else "s_nop 0")
    a.label(f"CH_RBOK_{tag}")
    if diag:
        ST("bdone")
        a("s_waitcnt lgkmcnt(0)")
        a(f"s_cmp_eq_u32 s{sStep}, 0")
        a(f"s_cbranch_scc1 CH_NOACC_{tag}")
        for k in range(8):
            a(f"s_sub_u32 s{sT0}, s{sTS+2*k+2}, s{sTS+2*k}")
            a(f"s_add_u32 s{sTS+22+k}, s{sTS+22+k}, s{sT0}")
        if P.get("trace"):
            a(f"s_cmp_eq_u32 s{sStep}, {P['trace']}")
            for k, dst in enumerate((83, 84, 85, 86, 87, 88, 89, 100, 101)):
                a(f"s_cselect_b32 s{dst}, s{sTS+2*k}, s{dst}")
        a.label(f"CH_NOACC_{tag}")
        if w == 3 and P.get("steptime"):
            a(f"s_memrealtime s[{sT2}:{sT2+1}]\ns_lshl_b32 s{sT0}, s{sH}, 6\ns_add_u32 s{sT0}, s{sT0}, s{sStep}\ns_lshl_b32 s{sT0}, s{sT0}, 2\ns_add_u32 s{sT0}, s{sT0}, {DBG + 0x40000}\ns_waitcnt lgkmcnt(0)")
            a(f"v_mov_b32 v10, s{sT2}\nv_mov_b32 v11, 0\nbuffer_store_dword v10, v11, {WS}, s{sT0} offen")
            a(f"s_memtime s[{sT2}:{sT2+1}]\ns_add_u32 s{sT0}, s{sT0}, 0x10000\ns_waitcnt lgkmcnt(0)\nv_mov_b32 v10, s{sT2}\nbuffer_store_dword v10, v11, {WS}, s{sT0} offen")
    ST("start")
    a.vmq = ["stale"] * (2 * NS - 2) + (["dbg", "dbg"] if diag and w == 3 and P.get("steptime") else [])
    S = Stream()
    vs = [(t, s) for s in own + rest for t in range(2)]
    def vsm(S, pre=None):
        t, s = vs.pop(0)
        return S.add(lambda: smf(vacc(t), Af(s), ar(wv(t, s), 8)), pre)
    gq = {}
    aread = lambda s: a.ds(f"ds_read_b128 {vr(Af(s),4)}, v{vM16} offset:{M_OFF + s*1024}", ("A", s))
    NB = P["pre_bar"]
    def bar_and_reads():
        a.wait_ds("mw")
        ST("mbar0")
        a("s_barrier")
        ST("mbar1")
        for s in rest[:P["a_burst"]]: aread(s)
    xread = lambda sg: [a.ds(f"ds_read_b64_tr_b16 {vr(vXF+4*sg+2*p,2)}, v{vXr} offset:{(sg&1)*512 + p*256 + (sg>>1)*128}", ("X", sg)) for p in range(2)]
    for i in range(16):
        t, s = seq[i]
        def pre(i=i, s=s):
            a.wait_ds(("A", s))
            if i in (4, 7, 10, 13): ST(f"q{i}")
            a.wait_ds(("ring", i))
        if i == 4:
            for n in range(4): vsm(S)
        gq[i] = S.add(lambda t=t, s=s, i=i: smf(q(t), Af(s), vr(ringreg(i), 8)), pre)
        S.add(lambda t=t, s=s: smf(k_(t), Af(s), vr(wk(t, s), 8)))
    GB = P["pre_bar"] - 1
    S.at(GB, bar_and_reads)
    kxread = lambda kt, s: a.ds(f"ds_read_b128 {vr(kx(kt,s),4)}, v{vKx} offset:{(kt*4+s)*1024}", "kx")
    def half_fill(i, h):
        t, s = seq[i]
        r = ringreg(i) + 4 * h; imm = WQ_SLOT[s >> 1] * 8192 + ((s & 1) * 2 + t) * 2048 + h * 1024
        a.ds(f"ds_read_b128 {vr(r,4)}, v{vRing} offset:{imm}", ("ring", i))
    reads = [(GB + 1, lambda s=s: aread(s)) for s in rest[P["a_burst"]:]]
    ringr = [(gq[i - NRING], lambda i=i, h=h: half_fill(i, h)) for i in range(NRING, 16) for h in range(2)]
    npre = P["r_pre"]
    for n in range(npre): S.at(max(ringr[n][0], min(n + 1, GB)), ringr[n][1])
    if "r" not in ABL[0]: reads += ringr[npre:]
    if "k" not in ABL[0]: reads += [(gq[10 + n // 2], lambda n=n: kxread(n >> 2, n & 3)) for n in range(P["kx_in"])]
    g = GB + 1
    for (e, f) in reads:
        g = max(g, e)
        S.at(min(g, 35), f); g += 1
    def post(t, r0):
        return [I(f"v_add_f32 v{q(t)}, v{q(t)}, v{q(t)+2}"), I(f"v_add_f32 v{q(t)+1}, v{q(t)+1}, v{q(t)+3}"),
                I(f"v_add_f32 v{k_(t)}, v{k_(t)}, v{k_(t)+2}"), I(f"v_add_f32 v{k_(t)+1}, v{k_(t)+1}, v{k_(t)+3}"),
                I(f"v_cvt_pk_bf16_f32 v{r0}, v{q(t)}, v{q(t)+1}"), I(f"v_cvt_pk_bf16_f32 v{r0+1}, v{k_(t)}, v{k_(t)+1}"),
                lambda: a.ds(f"ds_write_b64 v{vXw}, {vr(r0,2)} offset:{t*128}", "xw")]
    p0 = post(0, vACC + 6)
    g0 = gq[10] + 2
    S.at(gq[10], lambda: a.nop(2)); S.at(gq[10] + 1, lambda: a.nop(2))
    g0 += P.get("p0off", 0)
    if "p" not in ABL[0] and not P.get("pboth"):
        for n in range(6): S.at(g0 + n, p0[n])
        if not P.get("xw2"): S.at(g0 + 5 + P.get("p0w", 0), p0[6])
    vONE = vACC
    if not P.get("one_late") and not P.get("pboth"):
        for n in range(4): S.at(g0 + 6 + n, I(f"v_mov_b32 v{vONE+n}, s{sONE}"))
    late = {}
    if P["jobs"] == "S" and "j" not in ABL[0]:
        jobs = [lambda: a.vm(f"buffer_store_dwordx4 {vr(vVX,4)}, v{vM16}, {WS}, s{sVmPrev} offen sc1", "exp"), vxl[0], vxl[1],
                lambda: kx_dma(a, w, 2 * w), lambda: kx_dma(a, w, 2 * w + 1)]
        if P.get("kxA"): jobs = jobs[:3] + [None] * 2
        if w == 3: jobs.append(lambda: a.vm(f"buffer_store_dword v124, v125, {WS}, s{sMclr} offen {st}", "clr"))
        if hook and w == P.get("fw", 0): jobs.append(lambda: hook["flag"](a))
        if hook and w == 2: S.at(P["j0"] + P["jw"] * w + P["jstr"] // 2, lambda: hook["look"](a))
        for n, jb in enumerate(jobs):
            if jb is None: continue
            g = P["j0"] + P["jstr"] * n + P["jw"] * w
            if n == 5: g = P["j0"] + P["jstr"] * (2 if w else 1) + P["jw"] * w + P["jstr"] // 2
            if n == 6: g = P["j0"] + P["jstr"] + P["jw"] * w + P["jstr"] // 2
            if g < 36: S.at(g, jb)
            else: late.setdefault(g - 36 + 2, []).append(jb)
    S.at(gq[12], I(f"s_add_u32 s{sMpoll}, s{sRM}, {MBUF - MISC + w*2048}"))
    if 35 not in S.fill: S.at(35, lambda: a.nop(1))
    S.emit()
    ST("qkend")
    T0, T1, Tm = vACC + 8, vACC + 12, vT
    def score(S, T, sg):
        A = {T0: kx(0, sg), T1: kx(1, sg), Tm: vXF + 4 * sg}[T]
        return S.add(lambda: mf(T, A, vXF + 4 * sg, "0" if sg == 0 else vr(T, 4)), lambda: a.wait_ds(("X", sg)))
    p1 = post(1, vACC + 4)
    S = Stream()
    if P.get("pboth"):
        a(f"v_pk_add_f32 {vr(q(0),2)}, {vr(q(0),2)}, {vr(q(0)+2,2)}\nv_pk_add_f32 {vr(k_(0),2)}, {vr(k_(0),2)}, {vr(k_(0)+2,2)}")
        p0[4](); p0[5]()
        if not P.get("xw2"): p0[6]()
        a.nop(2 if P.get("xw2") else 1)
    else: a.nop(6)
    a(f"v_pk_add_f32 {vr(q(1),2)}, {vr(q(1),2)}, {vr(q(1)+2,2)}\nv_pk_add_f32 {vr(k_(1),2)}, {vr(k_(1),2)}, {vr(k_(1)+2,2)}")
    for n in range(4, 6): p1[n]()
    if P.get("xw2"): a.ds(f"ds_write2_b64 v{vXw}, {vr(vACC+6,2)}, {vr(vACC+4,2)} offset0:0 offset1:16", "xw")
    else: p1[6]()
    for n in range(P["v_pre"]):
        g = vsm(S)
        if P["kx_in"] + n < 8: S.at(g, lambda n=n: kxread((P["kx_in"] + n) >> 2, (P["kx_in"] + n) & 3))
    assert P["kx_in"] + P["v_pre"] >= 8
    def xbar1():
        a.wait_ds("xw")
        a("s_barrier"); ST("xbar"); xread(0)
    g = vsm(S, xbar1)
    S.at(g, lambda: xread(1))
    S.at(vsm(S), lambda: xread(2)); S.at(vsm(S), lambda: xread(3))
    ones = list(range(4)) if P.get("one_late") or P.get("pboth") else []
    while vs:
        gl = vsm(S)
        if ones: S.at(gl, I(f"v_mov_b32 v{vONE+ones.pop(0)}, s{sONE}"))
    for g, l_ in late.items():
        for jb in l_: S.at(g, jb)
    S.at(gl, lambda: (a.wait_vm("stale"), a.wait_ds("kx"), ST("vdone")))
    m, t_ = vT, 11
    gs = [score(S, T, sg) for T in (T0, T1, Tm) for sg in range(4)]
    va = [I(f"v_add_f32 v{vacc(t)+k}, v{vacc(t)+k}, v{vacc(t)+k+2}") for t in range(2) for k in range(2)]
    for n in range(4): S.at(gs[n], lambda: a.nop(1))
    S.at(gs[4], va[0]); S.at(gs[4], va[1]); S.at(gs[5], va[2]); S.at(gs[5], va[3])
    S.at(gs[6], I(f"v_cvt_pk_bf16_f32 v{vVM}, v{vacc(0)}, v{vacc(0)+1}"))
    S.at(gs[7], I(f"v_cvt_pk_bf16_f32 v{vVM+1}, v{vacc(1)}, v{vacc(1)+1}"))
    S.at(gl, I(f"s_cmp_ge_u32 s{sStep}, 63\ns_cbranch_scc1 CH_DONE_{tag}"))
    S.at(gs[8], I(f"v_max3_f32 v10, v{T0}, v{T0+1}, v{T0+2}\nv_mov_b32 v{vPM+1}, 0\ns_nop 1"))
    S.at(gs[9], I(f"v_max_f32 v10, v10, v{T0+3}\nv_mov_b32 v{vPM+2}, 0\ns_nop 1"))
    S.at(gs[10], I(f"v_max3_f32 v10, v10, v{T1}, v{T1+1}"))
    S.at(gs[11], I(f"v_max3_f32 v10, v10, v{T1+2}, v{T1+3}"))
    S.emit()
    ST("scores")
    oacc = lambda d: vRING + 4 * d
    zq = list(range(16))
    z = lambda n: [a(f"v_mov_b32 v{vRING+zq.pop(0)}, 0") for _ in range(n)]
    z(7)
    a(f"v_max3_f32 v{m}, v10, v{Tm+2}, v{Tm+3}")
    a(f"v_mov_b32 v{t_}, v{m}")
    z(2)
    a(f"v_permlane32_swap_b32 v{m}, v{t_}")
    a(f"v_max_f32 v{m}, v{m}, v{t_}")
    a(f"v_mov_b32 v{t_}, v{m}")
    z(2)
    a(f"v_permlane16_swap_b32 v{m}, v{t_}")
    a(f"v_max_f32 v{m}, v{m}, v{t_}")
    a(f"v_mul_f32 v10, s{sC}, v{m}")
    pf = lambda r: a(f"v_pk_fma_f32 {vr(r,2)}, {vr(r,2)}, s[{sC}:{sC+1}], v[10:11] op_sel_hi:[1,1,0] neg_lo:[0,0,1] neg_hi:[0,0,1]")
    ex = lambda r: a(f"v_exp_f32 v{r}, v{r}")
    aX, aY, aL = vA, vA + 4, vA + 24
    vPX = vACC + 4
    pf(Tm + 2); pf(T0); ex(Tm + 2); ex(Tm + 3); pf(T0 + 2); pf(T1); pf(T1 + 2)
    a(f"v_cvt_pk_bf16_f32 v{vPM}, v{Tm+2}, v{Tm+3}")
    a(f"v_cvt_pk_bf16_f32 v{vPM+3}, v{Tm+2}, v{Tm+3}")
    ex(T0); ex(T0 + 1)
    mf16(aL, vONE, vPM, "0")
    ex(T0 + 2); ex(T0 + 3)
    mf16(aX, vVM, vPM, "0")
    ex(T1); ex(T1 + 1)
    mf16(aY, vVM, vPM + 2, "0")
    ex(T1 + 2); ex(T1 + 3)
    a(f"v_cvt_pk_bf16_f32 v{vPX}, v{T0}, v{T0+1}")
    a(f"v_cvt_pk_bf16_f32 v{vPX+1}, v{T0+2}, v{T0+3}")
    a(f"v_cvt_pk_bf16_f32 v{vPX+2}, v{T1}, v{T1+1}")
    a(f"v_cvt_pk_bf16_f32 v{vPX+3}, v{T1+2}, v{T1+3}")
    a.wait_vm("vx")
    a.nop(2 if "j" in ABL[0] else 1)
    mf(aL, vONE, vPX, vr(aL, 4)); z(2)
    mf(aX, vVX, vPX, vr(aX, 4)); z(2)
    mf(aY, vVX + 4, vPX, vr(aY, 4))
    ST("pv")
    z(1); a.nop(1)
    a(f"v_rcp_f32 v10, v{aL}")
    a.nop(3)
    vOW = vA + 8
    for r in range(4):
        if r == 2: a.nop(1)
        a(f"v_pk_mul_f32 {vr(aX+2*r,2)}, {vr(aX+2*r,2)}, v[10:11] op_sel_hi:[1,0]")
    for r in range(4):
        a(f"v_cvt_pk_bf16_f32 v{vOW+r}, v{aX+2*r}, v{aX+2*r+1}")
    if P.get("otag"): a(f"v_and_or_b32 v{vOW}, v{vOW}, -2, s{sTag}")
    a(f"s_not_b64 exec, s[{sB1M}:{sB1M+1}]")
    a.ds(f"ds_write_b128 v{vOr}, {vr(vOW,4)} offset:{w*512}", "ow")
    a("s_mov_b64 exec, -1")
    vOF = lambda s: vA + 12 + 4 * s
    a.nop(1)
    for r in range(4):
        a(f"v_mov_b32_dpp v{vOF(w)+r}, v{vOW+r} quad_perm:[0,1,0,1] row_mask:0xf bank_mask:0xf")
    a.nop(2)
    assert not zq
    S = Stream()
    orest = [(w + 1 + k) % 4 for k in range(3)]
    def obar():
        if not P.get("otag"): a.wait_ds_all()
        a("s_barrier")
        ST("obar")
        for s in orest: a.ds(f"ds_read_b128 {vr(vOF(s),4)}, v{vOr} offset:{s*512}", ("O", s))
        a(f"s_add_u32 s{sT0}, s{sPst}, 4096")
    XW = vXF + 4 * w
    sel = lambda d, f, dst=vVX: f"v_cndmask_b32 v{dst+d}, v{f}, v{XW+d}, s[{sB1M}:{sB1M+1}]"
    dpp = lambda d: f"v_mov_b32_dpp v{10+d}, v{vVM+d} quad_perm:[2,3,2,3] row_mask:0xf bank_mask:0xf"
    pack = [I(dpp(0) + "\n" + sel(0, vVM)), I(dpp(1) + "\n" + sel(1, vVM + 1)), I(sel(2, 10)), I(sel(3, 11))]
    for d in range(4):
        g = S.add(lambda d=d: smf(oacc(d), vOF(w), ar(wo(d, w), 8)), obar if d == P["o_pre"] else None)
        S.at(g, pack[d])
    if P["o_pre"] == 4: S.at(g, obar)
    vST = vRING + 16
    go = [S.add(lambda d=d, s=s: smf(oacc(d), vOF(s), ar(wo(d, s), 8)), lambda s=s: a.wait_ds(("O", s)))
          for (d, s) in ([(d, s) for s in orest for d in (0, 1)] + ([(d, s) for d in (2, 3) for s in orest] if P.get("dmaj") else [(d, s) for s in orest for d in (2, 3)]))]
    if P.get("otag"):
        f_ = [vOF(s_) for s_ in orest]
        ochk = [f"v_bitop3_b32 v10, v{f_[0]}, v{f_[1]}, s{sTag} bitop3:0x7e", f"v_bitop3_b32 v10, v10, v{f_[2]}, s{sTag} bitop3:0xf6",
                "v_and_b32 v10, 1, v10", "v_cmp_ne_u32 vcc, 0, v10"]
        S.ops[go[0]] = (S.ops[go[0]][0], lambda: (a.label(f"CH_OGO_{tag}"), a.wait_ds(("O", orest[0]))))
        S.at(go[2], I(ochk[0])); S.at(go[4], I(ochk[1])); S.at(go[5], I(ochk[2] + "\n" + ochk[3] + f"\ns_cbranch_vccnz CH_OREDO_{tag}"))
    cv = lambda d, k: I(f"v_cvt_pk_bf16_f32 v{vST+2*d+k}, v{oacc(d)+2*k}, v{oacc(d)+2*k+1}")
    tg = lambda dp: I(f"v_and_or_b32 v{vST+4*dp}, v{vST+4*dp}, -2, s{sTag}")
    pst = lambda dp: a.vm(f"buffer_store_dwordx4 {vr(vST+4*dp,4)}, v{vPst}, {WS}, s{sT0 if dp else sPst} offen {st}", "pst")
    if P.get("pst0", 0) == 0:
        S.at(go[6], lambda: a.nop(6)); S.at(go[6], cv(0, 0)); S.at(go[7], cv(0, 1)); S.at(go[8], tg(0)); S.at(go[9], cv(1, 0)); S.at(go[10], cv(1, 1))
        S.at(go[10], lambda: pst(0))
    elif P["pst0"] == 1:
        S.at(go[6], lambda: a.nop(6)); S.at(go[6], cv(0, 0)); S.at(go[6], cv(0, 1)); S.at(go[7], cv(1, 0)); S.at(go[7], cv(1, 1)); S.at(go[7], tg(0))
        S.at(go[7], lambda: pst(0))
    else:
        S.at(go[6], lambda: a.nop(6))
        for f in (cv(0, 0), cv(0, 1), cv(1, 0), cv(1, 1), tg(0), lambda: pst(0)): S.at(go[6], f)
    if P.get("dmaj"):
        S.at(go[9], lambda: a.nop(3)); S.at(go[10], lambda: a.nop(3)); S.at(go[10], cv(2, 0))
    S.emit()
    if P.get("dmaj"):
        cv(2, 1)(); tg(1)(); a.nop(6); cv(3, 0)(); cv(3, 1)(); pst(1)
    else:
        a.nop(7 if P.get('pst0', 0) else 6)
        cv(2, 0)(); cv(2, 1)(); cv(3, 0)(); cv(3, 1)(); tg(1)(); pst(1)
    ST("opend")
    LA = [Af(rest[k]) for k in range(4)]
    vRA, vRD = Af(rest[4]), Af(rest[5])
    def issueA():
        for k in range(4): a(f"buffer_load_dwordx4 {vr(LA[k],4)}, v{vM16}, {WS}, s{sPld} offen offset:{k*1024} sc1")
    def adv():
        a(f"s_mov_b32 s{sCnt}, 0\ns_mov_b32 s{sVmPrev}, s{sKm}")
        advance(a, w)
        if hook: hook["ready"](a, w, tag, False)
    def chores():
        zero_acc()
        a(f"v_xor_b32 v{vKx}, 8192, v{vKx}\ns_xor_b32 s{sKb}, s{sKb}, 8192")
    a(f"s_mov_b32 s{sCnt}, 0")
    if w < 2:
        a.ds(f"ds_read_b128 {vr(vRA,4)}, v{vM16} offset:{RA_OFF}", "ra")
        if w == 1: chores()
        a.nop(P["dlyA"][w])
        issueA()
        ST("issA")
        if w == 0: chores()
        for i in range(P["nrA"]): ring_fill(a, w, i)
        DA = P["depA"][w]
        for _ in range(DA - 1):
            a.nop(P["gapA"]); issueA()
        a.wait_ds("ra")
        a.label(f"CH_RA_{tag}")
        ny = 4 * (DA - 1)
        for k in range(4):
            a(f"s_waitcnt vmcnt({ny + 3 - k})")
            if k == 3:
                ST("A_w2")
                a(f"v_bitop3_b32 v11, v{LA[2]}, v{LA[3]}, s{sTag} bitop3:0x7e")
                a(f"v_bitop3_b32 v10, v10, v11, 1 bitop3:0xa8")
            if k == 1: a(f"v_bitop3_b32 v10, v{LA[0]}, v{LA[1]}, s{sTag} bitop3:0x7e")
            if k == 0 and DA > 1: continue
            if k == 1 and DA > 1: mf(vRD, LA[0], vRA, "0")
            if k == 2 and DA > 1: continue
            if k == 3 and DA > 1: mf(vRD, LA[2], vRA, vr(vRD, 4))
            mf(vRD, LA[k], vRA, "0" if k == 0 else vr(vRD, 4))
        a(f"v_cmp_ne_u32 vcc, 0, v10")
        a(f"s_cbranch_vccnz CH_RARETRY_{tag}" if not P.get("free") else "s_nop 0")
        a.label(f"CH_RAOK_{tag}")
        ST("A_ok")
        a.nop(6)
        a(f"v_permlane32_swap_b32 v{vRD}, v{vRD+2}")
        a(f"v_permlane32_swap_b32 v{vRD+1}, v{vRD+3}")
        a(f"s_mov_b64 exec, s[{sLO8}:{sLO8+1}]")
        a(f"v_pk_add_f32 {vr(vRD,2)}, {vr(vRD,2)}, {vr(vRD+2,2)}")
        a(f"v_cvt_pk_bf16_f32 v{vRD}, v{vRD}, v{vRD+1}")
        a(f"buffer_store_dword v{vRD}, v{vMpub}, {WS}, s{sMpub} offen {st}")
        a("s_mov_b64 exec, -1")
        ST("pub")
        if w == 0:
            for i in range(P["nrA"], NRING): ring_fill(a, w, i)
    else:
        chores()
        if P.get("kxA"):
            adv()
            for i in range(4): kx_dma(a, w, 4 * (w - 2) + i)
        for i in range(NRING): ring_fill(a, w, i)
    if w == 0 or (w > 1 and not P.get("kxA")): adv()
    a("s_barrier")
    a.nop(P["dlyB"])
    loadB(0); loadB(1)
    ST("issB")
    if w == 1: adv()
    for _ in range(NS - 1):
        a.nop(P["gapB"] if w != 1 else max(0, P["gapB"] - P["w1c"])); loadB(0); loadB(1)
    if w == 1:
        for i in range(P["nrA"], NRING): ring_fill(a, w, i)
    a.wait_ds_all()
    a.vmq = []
    a(f"s_branch CH_RB_{tag}")
    if w < 2:
        a.label(f"CH_RARETRY_{tag}")
        issueA()
        a(f"s_add_u32 s{sCnt}, s{sCnt}, 1")
        if diag: a(f"s_add_u32 s{sTS+20}, s{sTS+20}, 1")
        a(f"s_cmp_gt_u32 s{sCnt}, {P['bound']}")
        a(f"s_cbranch_scc1 CH_RAOK_{tag}")
        a(f"s_branch CH_RA_{tag}")
    retryB()
    if P.get("otag"):
        a.label(f"CH_OREDO_{tag}")
        a(f"s_mov_b32 s{sCnt}, 0")
        a.label(f"CH_OREDO1_{tag}")
        a.nop(8)
        for s_ in orest: a(f"ds_read_b128 {vr(vOF(s_),4)}, v{vOr} offset:{s_*512}")
        for r in range(16): a(f"v_mov_b32 v{vRING+r}, 0")
        a(f"s_add_u32 s{sCnt}, s{sCnt}, 1\ns_waitcnt lgkmcnt(0)")
        for t_ in ochk: a(t_)
        a(f"s_cmp_gt_u32 s{sCnt}, {P['bound']}\ns_cbranch_scc1 CH_OREDO2_{tag}\ns_cbranch_vccnz CH_OREDO1_{tag}")
        a(f"s_branch CH_OREDO3_{tag}")
        a.label(f"CH_OREDO2_{tag}")
        for s_ in orest: a(f"v_and_or_b32 v{vOF(s_)}, v{vOF(s_)}, -2, s{sTag}")
        a.nop(2)
        a.label(f"CH_OREDO3_{tag}")
        if diag: a(f"s_add_u32 s{sTS+21}, s{sTS+21}, 0x10000")
        for d in range(4): smf(oacc(d), vOF(w), ar(wo(d, w), 8))
        a(f"s_branch CH_OGO_{tag}")
    a.label(f"CH_DONE_{tag}")
    a.wait_ds_all(True)
    a.nop(5)
    for f in va: f()
    a(f"v_cvt_pk_bf16_f32 v{vVM}, v{vacc(0)}, v{vacc(0)+1}\nv_cvt_pk_bf16_f32 v{vVM+1}, v{vacc(1)}, v{vacc(1)+1}")
    a.nop(2)
    a(dpp(0)); a(dpp(1))
    for d, f in enumerate((vVM, vVM + 1, 10, 11)): a(sel(d, f, T0))
    a(f"buffer_store_dwordx4 {vr(T0,4)}, v{vM16}, {WS}, s{sKm} offen sc1")
    a.dsq = []; a.vmq = []
    if hook: hook["done"](a, w)
```

```python
import sys
from asm import *
from layout import *
import chain as C
import workers as Wk
NAME = "parallel_sum__memory_aug_recurrent_mem_tr__dense_activation_squared_relu__prompt"
CH = dict(pre_bar=4, v_0=0, v_pre=3, o_pre=2, dlyA=(56, 56), pboth=1, dlyB=12, w1c=12, pst0=1, pbar=1, nrA=3, bound=1 << 16, depA=(2, 2), depB=2, gapA=24, gapB=16, x0=0, xw_only=1, jbar=1, jobs='S', j0=4, jstr=9, jw=2, a_burst=2, r_pre=2, kx_in=5, nt='', pf0=(52, 54, 48))
sDB = 4
sInit, sReady, sMode, sXcc, sTent = 84, 85, 86, 87, 83
sCounted, sLost = 29, 79
sA, sB, sC_, sD = Wk.sA, Wk.sB, Wk.sC_, Wk.sD
WS = Wk.WS
DB = f"s[{sDB}:{sDB+3}]"
ROLE_LDS = 163840 - 16
MODE_BOUND = 2000

def wait_init(a, v=2):
    L = a.newlabel("INIT")
    a(f"s_cmp_lg_u32 s{sInit}, 0\ns_cbranch_scc1 {L}")
    a(f"v_mov_b32 v{v}, {D_INIT}")
    Wk.poll_ge(a, f"buffer_load_dword v{v+1}, v{v}, {DB}, 0 offen sc1", [v + 1], 2 * NINIT, "INIT", sleep=4)
    a(f"s_mov_b32 s{sInit}, 1")
    a.label(L)

def atomic(a, op, off, val, dst, cmp=None):
    a(f"s_mov_b64 exec, 1\nv_mov_b32 v20, {val}\nv_mov_b32 v22, {off}")
    if cmp is not None:
        a(f"v_mov_b32 v21, {cmp}\nbuffer_atomic_cmpswap v[20:21], v22, {DB}, 0 offen sc0")
    else:
        a(f"buffer_atomic_{op} v20, v22, {DB}, 0 offen sc0")
    a(f"s_waitcnt vmcnt(0)\nv_readfirstlane_b32 s{dst}, v20\ns_mov_b64 exec, -1\ns_nop 3")

def claim(a, name, sRes, sOff):
    a.label(f"CLAIM_{name}")
    a(f"s_lshl_b32 s{sC_}, 1, s{sA}")
    atomic(a, "or", f"s{sOff}", f"s{sC_}", sB)
    a.label(f"CLAIM_{name}_R")
    a(f"s_and_b32 s{sD}, s{sB}, s{sC_}\ns_or_b32 s{sB}, s{sB}, s{sC_}\ns_mov_b32 s{sRes}, s{sA}")
    a(f"s_cmp_eq_u32 s{sD}, 0\ns_cbranch_scc1 CLAIM_{name}_E")
    a(f"s_mov_b32 s{sRes}, -1\ns_cmp_eq_u32 s{sB}, -1\ns_cbranch_scc1 CLAIM_{name}_E")
    a(f"s_ff0_i32_b32 s{sA}, s{sB}\ns_branch CLAIM_{name}")
    a.label(f"CLAIM_{name}_E")

def bcast(a, s):
    L = a.newlabel("BC")
    a(f"v_mov_b32 v22, {ROLE_LDS}")
    a(f"s_cmp_lg_u32 s{Wk.sW}, 0\ns_cbranch_scc1 {L}\nv_mov_b32 v20, s{s}\nds_write_b32 v22, v20\ns_waitcnt lgkmcnt(0)")
    a.label(L)
    a(f"s_barrier\nds_read_b32 v20, v22\ns_waitcnt lgkmcnt(0)\nv_readfirstlane_b32 s{s}, v20\ns_barrier")

def gen(P=CH, diag=False, force_slow=False):
    a = Asm()
    def mark(a, word, neg=False):
        if not P.get("marks"): return
        a(f"s_memrealtime s[98:99]\ns_waitcnt lgkmcnt(0)")
        if neg: a("s_not_b32 s98, s98")
        a(f"s_mov_b64 exec, 1\nv_mov_b32 v10, s98\nv_mov_b32 v11, {4*word}\nbuffer_atomic_umax v10, v11, {DB}, 0 offen\ns_mov_b64 exec, -1")
    Wk.SLEEP[0] = P.get('sleep', 1); Wk.PREFETCH[0] = P.get('pf', ()); Wk.EXP[0] = P.get('exp'); Wk.EARLY[0] = P.get('early', 2); Wk.WVERD[0] = P.get('wverd', 0); Wk.HOLD[0] = P.get('hold', 0); Wk.OUTF[0] = P.get('outf', 'sc1')
    sR = Wk.sRole
    a(f"""
    s_cmp_ge_u32 s2, 256
    s_cbranch_scc1 L_END
    s_load_dwordx2 s[{Wk.sWS}:{Wk.sWS+1}], s[0:1], {KA['ws']}
    s_load_dwordx2 s[{sDB}:{sDB+1}], s[0:1], {KA['dbg']}
    s_getreg_b32 s{sXcc}, hwreg(HW_REG_XCC_ID, 0, 4)
    s_mov_b32 s{Wk.sWS+2}, {WS_BYTES}
    s_mov_b32 s{Wk.sWS+3}, 0x20000
    s_mov_b32 s{sDB+2}, 256
    s_mov_b32 s{sDB+3}, 0x20000
    s_mov_b32 s{Wk.sDead}, 0
    s_mov_b32 s{sInit}, 0
    s_mov_b32 s82, 0
    s_mov_b32 s{sLost}, 0
    v_mov_b32 v250, 0
    v_lshrrev_b32 v1, 6, v0
    v_lshlrev_b32 v8, 4, v0
    v_readfirstlane_b32 s{Wk.sW}, v1
    v_and_b32 v0, 63, v0
    v_mov_b32 v12, -1
    v_mov_b32 v13, -1
    v_mov_b32 v14, -1
    v_mov_b32 v15, -1
    """)
    if diag: a("s_memrealtime s[90:91]")
    CX = 9 if force_slow else P.get('cx', 3)
    sOff, sTry, sDie, sWord, sSpec = 18, 19, 80, 81, 82
    def declare(a):
        L = a.newlabel("DECL")
        a(f"s_cmp_lg_u32 s{sB}, -1\ns_cbranch_scc1 {L}")
        a(f"s_mov_b64 exec, 1\nv_mov_b32 v20, 1\nv_mov_b32 v21, 0\nv_mov_b32 v22, {D_MODE}\nbuffer_atomic_cmpswap v[20:21], v22, {DB}, 0 offen\ns_mov_b64 exec, -1")
        a.label(L)
    a(f"""
    s_bfe_u32 s{sR}, s2, 0x50003
    s_waitcnt lgkmcnt(0)
    """)
    if P.get("marks"):
        a(f"s_cmp_lg_u32 s{Wk.sW}, 0\ns_cbranch_scc1 L_MK0\ns_and_b32 s3, s2, 15\ns_cmp_lg_u32 s3, 0\ns_cbranch_scc1 L_MK0")
        mark(a, 4, True)
        a.label("L_MK0")
    a(f"""
    s_mov_b32 s{sTent}, s{sR}
    s_add_u32 s{sDie}, s{sXcc}, {(15 - CX) % 8}
    s_and_b32 s{sDie}, s{sDie}, 7
    s_min_u32 s{sDie}, s{sDie}, 6
    s_lshl_b32 s{sWord}, s{sDie}, 2
    s_add_u32 s{sWord}, s{sWord}, {D_WM}
    s_cmp_eq_u32 s{sXcc}, {CX}
    s_cselect_b32 s{sWord}, {D_MASK}, s{sWord}
    s_and_b32 s3, s2, 0x87
    s_cmp_lg_u32 s3, 0
    s_cbranch_scc1 L_I3
    s_xor_b32 s3, s{Wk.sW}, s{sTent}
    s_bitcmp1_b32 s3, 0
    s_cbranch_scc0 L_I3
    """)
    a(f"s_lshr_b32 s{sA}, s2, 3")
    a(f"s_lshr_b32 s3, s{Wk.sW}, 1\ns_lshl_b32 s{sA}, s{sA}, 1\ns_add_u32 s{sA}, s{sA}, s3\nv_lshlrev_b32 v9, 4, v0")
    a(f"s_lshl_b32 s3, s{sA}, 13\ns_add_u32 s3, s3, {PART}")
    for k in range(8):
        a(f"buffer_store_dwordx4 v[12:15], v9, {WS}, s3 offen offset:{(k&3)*1024} sc1")
        if k == 3: a("s_add_u32 s3, s3, 4096")
    a(f"""
    s_lshl_b32 s3, s{sA}, 10
    s_add_u32 s3, s3, {MBUF}
    buffer_store_dwordx4 v[12:15], v9, {WS}, s3 offen sc1
    s_mul_i32 s3, s{sA}, 2560
    s_add_u32 s3, s3, {FLG}
    v_mov_b32 v16, 0
    v_mov_b32 v17, 0
    v_mov_b32 v18, 0
    v_mov_b32 v19, 0
    buffer_store_dwordx4 v[16:19], v9, {WS}, s3 offen sc1
    buffer_store_dwordx4 v[16:19], v9, {WS}, s3 offen offset:1024 sc1
    s_mov_b64 exec, 0xffffffff
    buffer_store_dwordx4 v[16:19], v9, {WS}, s3 offen offset:2048 sc1
    s_mov_b64 exec, -1
    s_waitcnt vmcnt(0)
    s_mov_b64 exec, 1
    v_mov_b32 v20, 1
    v_mov_b32 v22, {D_INIT}
    buffer_atomic_add v20, v22, {DB}, 0 offen
    s_mov_b64 exec, -1
    L_I3:
    s_cmp_lg_u32 s{Wk.sW}, 0
    s_cbranch_scc1 L_I2
    s_mov_b64 exec, 1
    s_lshl_b32 s3, 1, s{sTent}
    v_mov_b32 v250, s3
    v_mov_b32 v22, s{sWord}
    buffer_atomic_or v250, v22, {DB}, 0 offen sc0
    s_mov_b64 exec, -1
    L_I2:
    s_cmp_lg_u32 s{sXcc}, {CX}
    s_cbranch_scc1 L_NOSPEC
    s_mov_b32 s{sSpec}, 1
    s_branch L_CHAIN
    L_CLOST:
    s_waitcnt vmcnt(0)
    s_cmp_lg_u32 s{Wk.sW}, 0
    s_cbranch_scc1 L_ROLE
    s_mov_b32 s{sA}, s{sTent}
    s_mov_b32 s{sOff}, {D_MASK}
    """)
    claim(a, "A", sR, sOff)
    a(f"s_cmp_eq_u32 s{sR}, -1\ns_cbranch_scc1 L_WCLAIM")
    declare(a)
    a("s_branch L_ROLE")
    a.label("L_NOSPEC")
    if P.get("pf0"):
        a(f"s_xor_b32 s3, s{Wk.sW}, s{sTent}\ns_bitcmp1_b32 s3, 0\ns_cbranch_scc0 L_PF")
        a(f"s_load_dwordx4 s[48:51], s[0:1], {KA['Wq']}\ns_load_dwordx4 s[52:55], s[0:1], {KA['Wv']}\ns_mov_b32 s42, 0x400000\ns_mov_b32 s43, 0x20000")
        a(f"v_lshlrev_b32 v13, 7, v0\ns_lshr_b32 s3, s{Wk.sW}, 1\ns_add_u32 s3, s3, s2\ns_and_b32 s3, s3, 255\ns_lshl_b32 s3, s3, 14\ns_add_u32 s44, s3, 8192\ns_waitcnt lgkmcnt(0)")
        for p in P["pf0"]:
            a(f"s_mov_b32 s40, s{p}\ns_mov_b32 s41, s{p+1}\nbuffer_load_dword v252, v13, s[40:43], s3 offen\nbuffer_load_dword v252, v13, s[40:43], s44 offen")
        a.label("L_PF")
    a(f"s_lshl_b32 s{sR}, s{sDie}, 5\ns_add_u32 s{sR}, s{sR}, s{sTent}\ns_mov_b32 s{sSpec}, 1\ns_branch L_WORK")
    a.label("L_WLOST")
    a("s_waitcnt vmcnt(0) lgkmcnt(0)")
    a(f"s_cmp_lg_u32 s{Wk.sW}, 0\ns_cbranch_scc1 L_ROLE2")
    a.label("L_WCLAIM")
    a(f"s_mov_b32 s{sOff}, s{sDie}\ns_mov_b32 s{sTry}, 0\ns_mov_b32 s{sA}, s{sTent}")
    a.label("L_WNEXT")
    a(f"s_cmp_ge_u32 s{sOff}, 7\ns_cselect_b32 s{sB}, 7, 0\ns_sub_u32 s{sOff}, s{sOff}, s{sB}")
    a(f"s_cmp_ge_u32 s{sOff}, 7\ns_cselect_b32 s{sB}, 7, 0\ns_sub_u32 s{sOff}, s{sOff}, s{sB}")
    a(f"s_lshl_b32 s{sOff}, s{sOff}, 2\ns_add_u32 s{sOff}, s{sOff}, {D_WM}")
    claim(a, "W", sR, sOff)
    a(f"s_sub_u32 s{sOff}, s{sOff}, {D_WM}\ns_lshr_b32 s{sOff}, s{sOff}, 2")
    a(f"s_cmp_eq_u32 s{sR}, -1\ns_cbranch_scc0 L_WGOT")
    a(f"s_add_u32 s{sOff}, s{sOff}, 1\ns_add_u32 s{sTry}, s{sTry}, 1\ns_mov_b32 s{sA}, 0\ns_cmp_lt_u32 s{sTry}, 7\ns_cbranch_scc1 L_WNEXT")
    atomic(a, "cmpswap", D_MODE, 2, sB, cmp=0)
    a(f"s_mov_b32 s{sA}, 0\ns_mov_b32 s{sOff}, {D_MASK}")
    claim(a, "B", sR, sOff)
    a("s_branch L_ROLE")
    a.label("L_WGOT")
    a(f"s_lshl_b32 s{sOff}, s{sOff}, 5\ns_add_u32 s{sR}, s{sR}, s{sOff}\ns_add_u32 s{sR}, s{sR}, 32")
    def verdict(a):
        L = a.newlabel("VERD")
        a(f"s_cmp_eq_u32 s{sSpec}, 0\ns_cbranch_scc1 {L}\ns_mov_b32 s{sSpec}, 0")
        a(f"v_readfirstlane_b32 s{sB}, v250\ns_nop 3\ns_lshr_b32 s{sB}, s{sB}, s{sTent}\ns_and_b32 s{sB}, s{sB}, 1")
        bcast(a, sB)
        a(f"s_cmp_lg_u32 s{sB}, 0\ns_cbranch_scc1 L_WLOST")
        a.label(L)
    a.label("L_ROLE")
    a.label("L_ROLE2")
    bcast(a, sR)
    a(f"s_cmp_lt_u32 s{sR}, 32\ns_cbranch_scc1 L_CHAIN")
    a(f"s_cmp_eq_u32 s{sR}, -1\ns_cbranch_scc1 L_FIN")
    a(f"s_waitcnt vmcnt(0)\ns_sub_u32 s{sR}, s{sR}, 32")
    a.label("L_WORK")
    if diag: a("s_memrealtime s[70:71]\ns_waitcnt lgkmcnt(0)\ns_mov_b32 s100, s70\ns_add_u32 s101, s16, 32")
    if diag: a("s_mov_b32 s64, 0\ns_mov_b32 s66, 0\ns_mov_b32 s68, 0\ns_mov_b32 s72, 0")
    Wk.gemm1(a, wait_init, verdict, sInit, diag)
    if diag: a("s_memtime s[78:79]")
    if P.get("marks"):
        a(f"s_cmp_lg_u32 s{Wk.sW}, 0\ns_cbranch_scc1 L_MK2\ns_and_b32 s3, s{sR}, 7\ns_cmp_lg_u32 s3, 0\ns_cbranch_scc1 L_MK2")
        mark(a, 8)
        a.label("L_MK2")
    if diag: a("s_memrealtime s[92:93]")
    wait_init(a)
    a(f"s_cmp_ge_u32 s{sR}, 192\ns_cbranch_scc1 L_FIN\ns_cmp_lt_u32 s{sR}, 160\ns_cbranch_scc1 L_G2\ns_sub_u32 s{sR}, s{sR}, 160")
    Wk.attention(a, diag)
    a("s_branch L_FIN")
    a.label("L_G2")
    Wk.gemm2(a, diag)
    if P.get("marks"):
        a(f"s_waitcnt vmcnt(0)\ns_cmp_lg_u32 s{Wk.sW}, 0\ns_cbranch_scc1 L_FIN")
        mark(a, 9)
    a("s_branch L_FIN")
    a.label("L_CHAIN")
    if diag: a("s_memrealtime s[70:71]\ns_waitcnt lgkmcnt(0)\ns_mov_b32 s100, s70\ns_mov_b32 s101, s16")
    def first_chunk(a, part, share):
        L = a.newlabel("CV")
        a(f"s_cmp_eq_u32 s{sSpec}, 0\ns_cbranch_scc1 {L}")
        if part == 0:
            a(f"s_cmp_lg_u32 s{Wk.sW}, 0\ns_cbranch_scc1 {L}_B")
            a(f"v_readfirstlane_b32 s{sB}, v250\ns_lshl_b32 s3, 1, s{sTent}\ns_nop 2\ns_and_b32 s{sLost}, s{sB}, s3\ns_or_b32 s{sB}, s{sB}, s3")
            a(f"s_cmp_lg_u32 s{sLost}, 0\ns_cbranch_scc1 {L}_B")
            declare(a)
            a.label(L + "_B")
        if share:
            a(f"s_mov_b32 s{sSpec}, 0")
            if part: a("s_barrier")
            bcast(a, sLost)
            a(f"s_cmp_lg_u32 s{sLost}, 0\ns_cbranch_scc1 L_CLOST")
        a.label(L)
    sChf, sG1 = 88, 89
    def g1addr(a, lane):
        a(f"v_and_b32 v11, 3, {lane}\nv_bfe_u32 v10, {lane}, 2, 1\nv_lshlrev_b32 v10, 13, v10\nv_lshl_add_u32 v10, v11, 7, v10")
    def set_ready(a, v):
        for perm in ("quad_perm:[1,0,3,2]", "quad_perm:[2,3,0,1]", "row_half_mirror"):
            a(f"s_nop 1\nv_min_u32_dpp v{v}, v{v}, v{v} {perm} row_mask:0xf bank_mask:0xf")
        a(f"s_nop 0\nv_readfirstlane_b32 s{sReady}, v{v}\ns_nop 3\ns_lshl_b32 s{sReady}, s{sReady}, 2")
    def peek(a):
        a(f"s_lshl_b32 s{sChf}, s{C.sH}, 7\ns_add_u32 s{sChf}, s{sChf}, {CHF}")
        a(f"s_lshr_b32 s{sG1}, s{C.sH}, 1\ns_lshl_b32 s{sG1}, s{sG1}, 9\ns_add_u32 s{sG1}, s{sG1}, {G1F}")
        g1addr(a, "v0")
        a(f"v_mov_b32 v24, 0\nbuffer_load_dwordx2 v[26:27], v24, {DB}, 0 offen sc1\nbuffer_load_dword v25, v10, {WS}, s{sG1} offen sc1")
    C.prologue_a(a, P, True)
    C.prologue_b(a, P, first_chunk, peek)
    a(f"s_waitcnt vmcnt(0)\nv_readfirstlane_b32 s{sMode}, v26\nv_readfirstlane_b32 s3, v27")
    set_ready(a, 25)
    a(f"s_cmp_ge_u32 s3, {2 * NINIT}\ns_cselect_b32 s{sInit}, 1, s{sInit}\ns_cselect_b32 s{sReady}, s{sReady}, 0")
    wait_init(a, 10)
    if P.get("hold"):
        a(f"s_cmp_lg_u32 s{Wk.sW}, 0\ns_cbranch_scc1 L_STG\ns_add_u32 s3, s{sChf}, 64")
        Wk.flag_store(a, "s3", 1, 10)
        a.label("L_STG")
    a(f"s_cmp_lg_u32 s{sMode}, 0\ns_cbranch_scc1 L_MODEOK\nv_mov_b32 v10, {D_MODE}")
    Wk.poll_ge(a, f"buffer_load_dword v11, v10, {DB}, 0 offen sc1", [11], 1, "MODE")
    a(f"v_readfirstlane_b32 s{sMode}, v11\ns_nop 3")
    a.label("L_MODEOK")
    if P.get("marks"):
        a(f"s_cmp_lg_u32 s{Wk.sW}, 1\ns_cbranch_scc1 L_MK1")
        mark(a, 5); mark(a, 6, True)
        a.label("L_MK1")
    if diag:
        for k in range(20, 30): a(f"s_mov_b32 s{C.sTS+k}, 0")
        a("s_memrealtime s[92:93]\ns_memtime s[96:97]")
    stubs = []
    sPend = 29
    def ready(a, w, tag, first):
        if not first and w != 2: return
        L = a.newlabel("RDY")
        if first: a(f"s_mov_b32 s{C.sStep}, 0\ns_mov_b32 s{sPend}, 0")
        else:
            a(f"s_cmp_eq_u32 s{sPend}, 0\ns_cbranch_scc1 {L}_P\ns_mov_b32 s{sPend}, 0")
            set_ready(a, C.vMpub)
            a.label(L + "_P")
        a(f"s_add_u32 s{C.sT0}, s{C.sStep}, 1\ns_min_u32 s{C.sT0}, s{C.sT0}, 63\ns_cmp_ge_u32 s{C.sT0}, s{sReady}\ns_cbranch_scc1 {L}_S")
        a.label(L)
        stubs.append((L, first))
    def look(a):
        L = a.newlabel("LOOK")
        a(f"s_add_u32 s{C.sT0}, s{C.sStep}, 6\ns_min_u32 s{C.sT0}, s{C.sT0}, 63\ns_cmp_lt_u32 s{C.sT0}, s{sReady}\ns_cbranch_scc1 {L}")
        a(f"v_lshrrev_b32 v10, 3, v{C.vL8}")
        g1addr(a, "v10")
        a(f"buffer_load_dword v{C.vMpub}, v10, {WS}, s{sG1} offen sc1\ns_mov_b32 s{sPend}, 1")
        a.label(L)
    def flag(a):
        if P.get("noflag"): return
        if P.get("marks"):
            L = a.newlabel("MK")
            a(f"s_and_b32 s{C.sT0}, s{C.sStep}, 15\ns_cmp_lg_u32 s{C.sT0}, 1\ns_cbranch_scc1 {L}\ns_cmp_lg_u32 s{C.sH}, 5\ns_cbranch_scc1 {L}")
            a(f"s_memrealtime s[98:99]\ns_lshr_b32 s{C.sT0}, s{C.sStep}, 4\ns_lshl_b32 s{C.sT0}, s{C.sT0}, 2\ns_add_u32 s{C.sT0}, s{C.sT0}, 40\ns_waitcnt lgkmcnt(0)")
            a(f"s_mov_b64 exec, 1\nv_mov_b32 v10, s98\nv_mov_b32 v11, s{C.sT0}\nbuffer_store_dword v10, v11, {DB}, 0 offen\ns_mov_b64 exec, -1")
            a.label(L)
        FL = a.newlabel("FLAG")
        FE = P.get("fevery", 4)
        a(f"s_and_b32 s{C.sT0}, s{C.sStep}, {FE-1}\ns_cmp_ge_u32 s{C.sStep}, 58\ns_cselect_b32 s{C.sT0}, {1 % FE}, s{C.sT0}\ns_cmp_lg_u32 s{C.sT0}, {1 % FE}\ns_cbranch_scc1 {FL}")
        a(f"s_sub_u32 s{C.sT0}, s{C.sStep}, 1\ns_max_i32 s{C.sT0}, s{C.sT0}, 0")
        if P.get("early", 1): a(f"s_cmp_eq_u32 s{C.sStep}, 63\ns_cselect_b32 s{C.sT0}, 63, s{C.sT0}")
        Wk.flag_store(a, f"s{sChf}", f"s{C.sT0}", 10); a.vmq.pop()
        a.label(FL)
    def done(a, w):
        a("s_barrier" if P.get("early", 1) else "s_waitcnt vmcnt(0)\ns_barrier")
        if w == 0: Wk.flag_store(a, f"s{sChf}", 64, 10)
        if w == 1: mark(a, 7)
        a.vmq = []
        a("s_branch L_FIN")
        for L, first in stubs:
            a.label(L + "_S")
            a(f"s_add_u32 s{C.sT0}, s{C.sStep}, 1\ns_min_u32 s{C.sT0}, s{C.sT0}, 63\ns_lshr_b32 s{C.sT0}, s{C.sT0}, 2\ns_add_u32 s{C.sT0}, s{C.sT0}, 1")
            a(f"v_lshrrev_b32 v10, 3, v{C.vL8}")
            g1addr(a, "v10")
            Wk.poll_ge(a, f"buffer_load_dword v11, v10, {WS}, s{sG1} offen sc1", [11], f"s{C.sT0}", "KV", sleep=0)
            set_ready(a, 11)
            a(f"s_branch {L}")
        stubs.clear()
    P = dict(P, hooks=dict(ready=ready, flag=flag, done=done, look=look))
    a(f"s_cmp_eq_u32 s{sMode}, 1\ns_cbranch_scc0 L_SLOW")
    for st in ("", "sc1"):
        if st: a.label("L_SLOW")
        t = "s" if st else "f"
        for w in range(1, 4): a(f"s_cmp_eq_u32 s{C.sW}, {w}\ns_cbranch_scc1 CH_W{w}{t}")
        for w in range(4):
            a.label(f"CH_W{w}{t}")
            C.loop(a, w, st, P, diag)
    a.label("L_FIN")
    if diag:
        a("s_memrealtime s[94:95]\ns_memtime s[98:99]\ns_waitcnt lgkmcnt(0)")
        a(f"s_lshl_b32 s3, s2, 2\ns_add_u32 s3, s3, s{Wk.sW}\ns_lshl_b32 s3, s3, 7\ns_add_u32 s3, s3, {DBG}")
        vals = [C.sTS + 20 + k for k in range(10)] + [90, 92, 94, 96, 98, sR, sXcc, Wk.sDead, 100, 101, 72, 74, 76, 78]
        for i, sg in enumerate(vals):
            a(f"v_mov_b32 v20, s{sg}\nv_mov_b32 v21, {4*i}\nbuffer_store_dword v20, v21, {WS}, s3 offen")
    a("s_waitcnt vmcnt(0)")
    a.label("L_END")
    return a.text()

def wrap(body):
    ref = open(f"cdna_kernels/{NAME}.s.ref").read().split("\n")
    head = [l for l in ref if l.startswith(";") and "@launch" not in l]
    return "\n".join(head) + f"""
; @launch grid=(256,1,1) block=(256,1,1) lds=163840
.amdgcn_target "amdgcn-amd-amdhsa--gfx950"
.text
.globl {NAME}_kernel
.p2align 8
.type {NAME}_kernel,@function
{NAME}_kernel:
{body}s_endpgm
.section .rodata,"a"
.p2align 6
.amdhsa_kernel {NAME}_kernel
  .amdhsa_next_free_vgpr 512
  .amdhsa_next_free_sgpr 102
  .amdhsa_accum_offset 256
  .amdhsa_group_segment_fixed_size 0
  .amdhsa_kernarg_size 120
  .amdhsa_user_sgpr_count 2
  .amdhsa_user_sgpr_kernarg_segment_ptr 1
  .amdhsa_system_sgpr_workgroup_id_x 1
.end_amdhsa_kernel
"""
if __name__ == "__main__":
    import ast
    P = dict(CH)
    if len(sys.argv) > 2: P.update(ast.literal_eval(sys.argv[2]))
    t = gen(P)
    hz = check(t)
    for h in hz[:12]: print(h)
    out = sys.argv[1] if len(sys.argv) > 1 else f"cdna_kernels/{NAME}.s"
    open(out, "w").write(wrap(t))
    print("lines", len(t.split("\n")), "hazards", len(hz))
```

```python
from asm import *
from layout import *
import math

MISC = 131072
M_OFF = 0
X_OFF = 8192
KX_OFF = 16384
O_OFF = 13568
XS = 1088
sWS = 8
sTMP = 12
sH, sW, sStep = 16, 17, 18
sPst, sPld, sTag, sMpub, sMpoll, sMclr = 19, 20, 21, 22, 23, 24
sVx, sKx, sKm, sVm = 25, 26, 27, 28
sC = 30
sT0, sT1, sT2, sT3 = 32, 33, 34, 35
sCnt = 36
sLO8 = 38
sDBG = 40
sTS = 44
vIDX, vKx, vM16, vRing, vPst, vMpub, vXw, vXr, vOr = 1, 2, 3, 4, 5, 6, 7, 8, 9
vL8 = 0
vNEG = 10
vVA0 = 12
RA_OFF = 12544
vVX = 16
vPM = 24
vACC = 28
vA = 44
vRING = 76
vT = 124
vWK = 128
NRING = 6
WQ_SLOT = [2, 3, 1, 0]
def ringreg(i): return vRING + 8 * (i % NRING)
KXREG = [vRING + 8*4, vRING + 8*5, vRING + 0, vRING + 8]
def kx(kt, s): return KXREG[kt*2 + (s >> 1)] + 4 * (s & 1)
vXF = vRING + 16
def wv(t, s): return 8 * (t * 8 + s)
def wo(d, s): return 128 + 8 * (d * 4 + s)
def wk(t, s): return vWK + 8 * (t * 8 + s)

def wq_lds_imm(i):
    t, s = i >> 3, i & 7
    return WQ_SLOT[s >> 1] * 8192 + ((s & 1) * 2 + t) * 2048

def stamp(a, k, diag):
    if diag: a(f"s_memtime s[{sTS+2*k}:{sTS+2*k+1}]")

def prologue(a, P, diag=False):
    a(f"v_lshrrev_b32 v10, 6, v0\nv_and_b32 v0, 63, v0\nv_readfirstlane_b32 s{sW}, v10\ns_nop 3")
    prologue_a(a, P, True); prologue_b(a, P)

def prologue_a(a, P, dma):
    WNT[0] = P.get("wnt", "")
    a(f"""
    s_load_dwordx4 s[48:51], s[0:1], {KA['Wq']}
    s_load_dwordx4 s[52:55], s[0:1], {KA['Wv']}
    s_load_dwordx2 s[56:57], s[0:1], {KA['mem0']}
    """)
    a(f"""
    v_and_b32 v100, 15, v0            ; n
    v_lshrrev_b32 v101, 4, v0         ; g
    v_and_b32 v102, 3, v0             ; c
    v_bfe_u32 v103, v0, 2, 2          ; r''
    """)
    a(f"""
    s_lshl_b32 s{sT2}, s{sH}, 8
    s_lshl_b32 s{sT3}, s{sW}, 6
    s_add_u32 s{sT2}, s{sT2}, s{sT3}
    v_lshrrev_b32 v10, 2, v0
    """)
    for k in range(4):
        a(f"v_xor_b32 v11, {k & 2}, v10\nv_lshlrev_b32 v11, 13, v11\nv_xor_b32 v104, {2*(k&1)}, v102\nv_lshl_add_u32 v11, v104, 4, v11\nv_add_u32 v{vSQ+k}, s{sT2}, v11")
        a(f"v_mov_b32 v{vSRC+k}, v{vSQ+k}\nv_mov_b32 v{vSRC+4+k}, v{vSQ+k}")
    a(f"""
    s_lshl_b32 s{sB0}, s{sW}, 15
    s_lshl_b32 s{sB1}, s{sW}, 13
    s_add_u32 s{sB1}, s{sB1}, {MISC}
    s_mov_b32 s62, 0x400000
    s_mov_b32 s63, 0x20000
    s_getpc_b64 s[{sSub}:{sSub+1}]
    s_add_u32 s{sSub}, s{sSub}, 12
    s_addc_u32 s{sSub+1}, s{sSub+1}, 0
    s_branch CH_SUBE
    """)
    for i in range(8):
        a(f"s_mov_b32 m0, s64\ns_add_u32 s64, s64, 1024\nbuffer_load_dwordx4 v{vSRC+i}, s[60:63], s65 offen {WNT[0]} lds\ns_add_u32 s65, s65, s66")
    a(f"s_setpc_b64 s[{sRet}:{sRet+1}]")
    a.label("CH_SUBE")
    a("s_waitcnt lgkmcnt(0)")
    for c in range(4 if P.get('cverd', 0) == 0 else 5): w_issue(a, c)
    a(f"""
    v_and_b32 v10, 2, v0
    v_cmp_eq_u32 vcc, 0, v10
    v_mov_b32 v11, 0xeeee
    v_mov_b32 v104, 0x4444
    v_cndmask_b32 v{vIDX}, v11, v104, vcc
    v_lshlrev_b32 v10, 4, v0
    v_add_u32 v{vM16}, {MISC}, v10
    s_lshl_b32 s{sT0}, s{sW}, 15
    v_add_u32 v{vRing}, s{sT0}, v10
    v_lshrrev_b32 v11, 2, v0
    v_lshlrev_b32 v11, 1, v11
    v_and_b32 v104, 1, v0
    v_add_u32 v11, v11, v104
    v_lshlrev_b32 v11, 4, v11
    v_add_u32 v{vOr}, {MISC+O_OFF}, v11
    v_lshlrev_b32 v10, 14, v101
    v_lshrrev_b32 v11, 3, v100
    v_lshl_add_u32 v10, v11, 13, v10
    v_and_b32 v11, 7, v100
    v_lshl_add_u32 v{vPst}, v11, 4, v10
    v_lshlrev_b32 v10, 4, v102
    v_bfe_u32 v11, v0, 2, 1
    v_lshl_add_u32 v10, v11, 3, v10
    v_lshrrev_b32 v11, 1, v101
    v_lshl_add_u32 v10, v11, 2, v10
    v_and_b32 v11, 1, v101
    v_lshl_add_u32 v{vMpub}, v11, 8, v10
    v_add_u32 v{vKx}, {KX_OFF}, v{vM16}
    v_mul_u32_u24 v10, {XS}, v101
    v_lshl_add_u32 v10, v100, 3, v10
    s_lshl_b32 s{sT0}, s{sW}, 8
    s_add_u32 s{sT0}, s{sT0}, {MISC+X_OFF}
    v_add_u32 v{vXw}, s{sT0}, v10
    v_mul_u32_u24 v10, {XS}, v102
    v_lshrrev_b32 v11, 2, v0
    v_lshl_add_u32 v10, v11, 3, v10
    v_add_u32 v{vXr}, {MISC+X_OFF}, v10
    v_bfe_u32 v10, v100, 1, 2
    v_and_b32 v11, 1, v100
    v_lshlrev_b32 v11, 4, v11
    v_mov_b32 v104, 0x3f80
    v_lshlrev_b32 v104, v11, v104
    """)
    for k in range(4):
        a(f"v_cmp_eq_u32 vcc, {k}, v10\ns_nop 1\nv_cndmask_b32 v{112+k}, 0, v104, vcc")
    a(f"s_mov_b32 s{sLO8}, 0x00ff00ff\ns_mov_b32 s{sLO8+1}, 0x00ff00ff\ns_mov_b32 s{sB1M}, 0xcccccccc\ns_mov_b32 s{sB1M+1}, 0xcccccccc\ns_mov_b32 s{sONE}, 0x3f803f80")
    c = (128 ** -0.5) * math.log2(math.e)
    import struct
    cb = struct.unpack("<I", struct.pack("<f", c))[0]
    a(f"s_mov_b32 s{sC}, {cb:#x}\ns_mov_b32 s{sC+1}, {cb:#x}")
    a(f"""
    s_lshl_b32 s{sT2}, s{sH}, 17
    s_lshl_b32 s{sT3}, s{sW}, 8
    s_add_u32 s{sT2}, s{sT2}, s{sT3}
    v_and_b32 v105, 1, v101            ; g&1
    v_lshrrev_b32 v106, 1, v101        ; g>>1
    v_and_b32 v107, 1, v103            ; r&1
    v_lshrrev_b32 v108, 1, v103        ; r>>1
    v_lshlrev_b32 v10, 5, v105
    v_lshl_add_u32 v10, v106, 2, v10
    v_lshl_add_u32 v10, v108, 4, v10
    v_add_u32 v109, v10, v107
    v_lshlrev_b32 v10, 4, v105
    v_lshl_add_u32 v10, v106, 2, v10
    v_add_u32 v110, v10, v107
    """)
    for k in range(2):
        a(f"v_lshl_add_u32 v10, v105, 2, 0\nv_xor_b32 v10, v10, v100\nv_xor_b32 v10, {8*k}, v10\nv_lshlrev_b32 v11, 10, v101\nv_lshl_add_u32 v10, v10, 4, v11\nv_add_u32 v{vSO+k}, s{sT2}, v10")
    for mb in range(2):
        for t in range(2):
            a(f"v_add_u32 v10, {2*mb}, v109\nv_lshlrev_b32 v11, 1, v105\nv_xor_b32 v10, v10, v11\nv_lshlrev_b32 v10, 6, v10")
            a(f"v_xor_b32 v11, {t}, v108\nv_lshl_add_u32 v10, v11, 5, v10\nv_lshl_add_u32 v10, v102, 3, v10")
            a(f"v_add_u32 v{vB1+mb*2+t}, s{sB0}, v10\nv_add_u32 v{vB1+4+mb*2+t}, s{sB1}, v10")
    for d in range(4):
        a(f"v_lshl_add_u32 v11, v105, 1, v107\nv_xor_b32 v11, {d}, v11\nv_lshlrev_b32 v10, 8, v110\nv_lshl_add_u32 v10, v11, 6, v10")
        a(f"v_lshl_add_u32 v10, v108, 5, v10\nv_lshl_add_u32 v10, v102, 3, v10")
        a(f"v_add_u32 v{vB2+d}, s{sB0}, v10\nv_add_u32 v{vB2+4+d}, s{sB1}, v10")
    a(f"""
    s_mov_b32 s12, s56
    s_mov_b32 s13, s57
    s_mov_b32 s14, 8192
    s_mov_b32 s15, 0x20000
    v_lshrrev_b32 v10, 2, v100
    v_lshlrev_b32 v10, 1, v10
    v_and_b32 v11, 1, v0
    v_add_u32 v10, v10, v11            ; row
    v_lshlrev_b32 v10, 10, v10
    v_bfe_u32 v11, v0, 1, 1
    v_lshl_add_u32 v10, v11, 5, v10
    v_lshl_add_u32 v10, v101, 3, v10
    s_lshl_b32 s{sT2}, s{sW}, 8        ; ksteps 2w, 2w+1
    v_add_u32 v10, s{sT2}, v10
    buffer_load_dwordx2 v[16:17], v10, s[12:15], 0 offen
    buffer_load_dwordx2 v[18:19], v10, s[12:15], 0 offen offset:64
    buffer_load_dwordx2 v[12:13], v10, s[12:15], 0 offen offset:128
    buffer_load_dwordx2 v[14:15], v10, s[12:15], 0 offen offset:192
    """)

order = ["k"] * 4 + ["v"] * 4 + ["o"] * 4 + ["q"] * 4
srd = {"q": 60, "k": 64, "v": 68, "o": 72}
WNT = ['']
sB0, sB1 = 76, 77
sSub, sRet = 68, 70
vSRC, vSQ, vSO, vB1, vB2 = 76, 84, 88, 90, 116
def w_issue(a, c):
    m = order[c]; cc = c & 3; slot = c % 5
    if cc == 0:
        src = {"q": 48, "k": 50, "v": 52, "o": 54}[m]
        a(f"s_mov_b32 s60, s{src}\ns_mov_b32 s61, s{src+1}\ns_mov_b32 s65, 0")
        if c in (0, 8, 12): a(f"s_mov_b32 s66, {4096 if m == 'o' else 131072}")
        if c in (8, 12):
            for k in range(8): a(f"v_mov_b32 v{vSRC+k}, v{vSO + (k >> 2) if m == 'o' else vSQ + (k & 3)}")
    a(f"s_add_u32 s64, s{sB0}, {slot*8192}" if slot < 4 else f"s_mov_b32 s64, s{sB1}")
    a(f"s_swappc_b64 s[{sRet}:{sRet+1}], s[{sSub}:{sSub+1}]")
    a.vmq += [("w", c)] * 8

def prologue_b(a, P, first_chunk=None, peek=None):
    issue = lambda c: w_issue(a, c)
    CV = P.get("cverd", 0)
    a.vmq = [("w", c) for c in range(4 if CV == 0 else 5) for _ in range(8)]
    for c in range(16):
        m = order[c]; cc = c & 3; slot = c % 5
        a.wait_vm(("w", c))
        if c == 0:
            if first_chunk: first_chunk(a, 0, CV == 0)
            if CV == 0: issue(4)
        so, sb = (slot * 8192, 0) if slot < 4 else (0, 4)
        if m != "o":
            for s_ in range(2):
                for t in range(2):
                    for mm in range(4):
                        imm = so + (64 * s_ + 8 * (mm >> 1)) * 64
                        s = 2 * cc + s_
                        if m == "k": dst = vr(wk(t, s) + 2 * mm, 2)
                        elif m == "v": dst = ar(wv(t, s) + 2 * mm, 2)
                        else: dst = vr(vA + (s_ * 2 + t) * 8 + 2 * mm, 2)
                        a.ds(f"ds_read_b64_tr_b16 {dst}, v{vB1 + sb + (mm & 1) * 2 + t} offset:{imm}")
        else:
            for d in range(4):
                for mm in range(4):
                    imm = so + (8 * (mm >> 1) + 2 * (mm & 1)) * 256
                    a.ds(f"ds_read_b64_tr_b16 {ar(wo(d, cc) + 2*mm, 2)}, v{vB2 + sb + d} offset:{imm}")
        a.wait_ds_all()
        if m == "q":
            for k in range(8):
                a.ds(f"ds_write_b128 v{vRing}, {vr(vA + 4*k, 4)} offset:{WQ_SLOT[cc]*8192 + k*1024}")
            a.wait_ds_all()
        if CV and c == CV and first_chunk: first_chunk(a, 1, True)
        if c + 5 < 16: issue(c + 5)
        if c == P.get('peek', 13) and peek: peek(a)
        if c == P.get("help_at", -1):
            lo, per = P["help"]
            a(f"s_lshl_b32 s{sT0}, s{sH}, 2\ns_add_u32 s{sT0}, s{sT0}, s{sW}\nv_lshlrev_b32 v10, 7, v0")
            for rep in range(P.get("help_rep", 2)):
                if rep: a(f"s_add_u32 s{sT0}, s{sT0}, {128 // P.get('help_rep', 2) + 1}\ns_and_b32 s{sT0}, s{sT0}, 127")
                a(f"s_mul_i32 s{sT1}, s{sT0}, {per*8192}\ns_add_u32 s{sT1}, s{sT1}, {lo*8192}")
                for k in range(per):
                    a(f"buffer_load_dword v11, v10, s[60:63], s{sT1} offen")
                    if k + 1 < per: a(f"s_add_u32 s{sT1}, s{sT1}, 8192")
    a("s_barrier")
    a(f"""
    ds_write_b128 v{vM16}, v[112:115] offset:{RA_OFF}
    v_lshlrev_b32 v{vL8}, 3, v0
    s_waitcnt lgkmcnt(0)
    """)

def seg_offsets(a, w, P):
    a(f"""
    s_and_b32 s{sT0}, s{sStep}, 3
    s_lshl_b32 s{sT1}, s{sT0}, 18
    s_lshl_b32 s{sT2}, s{sH}, 7
    s_add_u32 s{sPst}, s{sT1}, s{sT2}
    s_add_u32 s{sPst}, s{sPst}, {PART + w*65536}
    s_lshl_b32 s{sT3}, s{sH}, 13
    s_add_u32 s{sPld}, s{sT1}, s{sT3}
    s_add_u32 s{sPld}, s{sPld}, {PART - MISC + (w&1)*4096}
    s_add_u32 s{sT0}, s{sStep}, 3
    s_and_b32 s{sT0}, s{sT0}, 3
    s_lshl_b32 s{sT1}, s{sT0}, 18
    s_mov_b32 s{sTag}, 0
    s_lshr_b32 s{sT2}, s{sH}, 3
    s_lshl_b32 s{sT2}, s{sT2}, 11
    s_and_b32 s{sT3}, s{sH}, 1
    s_lshl_b32 s{sT3}, s{sT3}, 9
    s_add_u32 s{sT2}, s{sT2}, s{sT3}
    s_bfe_u32 s{sT3}, s{sH}, 0x20001
    s_lshl_b32 s{sT3}, s{sT3}, 6
    s_add_u32 s{sT2}, s{sT2}, s{sT3}
    s_lshl_b32 s{sT1}, s{sT0}, 13
    s_add_u32 s{sMclr}, s{sT1}, s{sT2}
    s_add_u32 s{sMclr}, s{sMclr}, {MBUF + (w&1)*1024}
    s_add_u32 s{sT0}, s{sStep}, 1
    s_and_b32 s{sT0}, s{sT0}, 3
    s_lshl_b32 s{sT1}, s{sT0}, 13
    s_add_u32 s{sMpub}, s{sT1}, s{sT2}
    s_add_u32 s{sMpub}, s{sMpub}, {MBUF + (w&1)*1024}
    s_add_u32 s{sMpoll}, s{sT1}, {MBUF - MISC + w*2048}
    s_lshl_b32 s{sT0}, s{sStep}, 5
    s_add_u32 s{sT0}, s{sT0}, s{sH}
    s_lshl_b32 s{sT1}, s{sT0}, 13
    s_add_u32 s{sVx}, s{sT1}, {VIMG - MISC + w*2048}
    s_add_u32 s{sKx}, s{sT1}, {KIMG - MISC + 32*8192}
    s_lshl_b32 s{sT1}, s{sT0}, 12
    s_add_u32 s{sKm}, s{sT1}, {KMEM - MISC + w*1024}
    s_lshl_b32 s{sT1}, s{sT0}, 11
    s_add_u32 s{sVm}, s{sT1}, {VMEM + w*512}
    """)

sRP, sRM, sMprev, sCP1, sCP2, sCM1, sVmPrev = 76, 77, 78, 79, 80, 81, 82
sKb, sStage = 75, 74
sONE = 42
sB1M = 40
def init_incr(a, w):
    a(f"""
    s_mov_b32 s{sRP}, 0
    s_mov_b32 s{sRM}, 8192
    s_mov_b32 s{sCP1}, s{sPst}
    s_mov_b32 s{sCP2}, s{sPld}
    s_sub_u32 s{sCM1}, s{sMpub}, 8192
    s_mov_b32 s{sMprev}, s{sCM1}
    """)
NP = [1]
def advance(a, w):
    a(f"""
    s_add_u32 s{sVx}, s{sVx}, {32*8192}
    s_add_u32 s{sKx}, s{sKx}, {32*8192}
    s_add_u32 s{sKm}, s{sKm}, {32*4096}
    s_sub_u32 s{sMclr}, s{sMprev}, {(w&1)*1024}
    s_mov_b32 s{sMprev}, s{sMpub}
    s_add_u32 s{sRM}, s{sRM}, 8192
    s_and_b32 s{sRM}, s{sRM}, 0x7fff
    s_add_u32 s{sMpub}, s{sRM}, s{sCM1}
    s_add_u32 s{sStep}, s{sStep}, 1
    """)
    if NP[0] == 1: a(f"s_xor_b32 s{sTag}, s{sTag}, 1")
    else:
        a(f"""
        s_add_u32 s{sRP}, s{sRP}, 0x40000
        s_and_b32 s{sRP}, s{sRP}, {NP[0]*0x40000 - 1}
        s_add_u32 s{sPst}, s{sRP}, s{sCP1}
        s_add_u32 s{sPld}, s{sRP}, s{sCP2}
        s_bfe_u32 s{sTag}, s{sStep}, {0x10000 + NP[0].bit_length() - 1}
        """)

def korder(w):
    own = [2 * w, 2 * w + 1]
    rest = [(2 * w + 2 + k) % 8 for k in range(6)]
    seq = [(0, own[0]), (1, own[0]), (0, own[1]), (1, own[1])] + [(0, s) for s in rest] + [(1, s) for s in rest]
    return own, rest, seq

ABL = [""]; NT = [""]
def ring_fill(a, w, i):
    if "r" in ABL[0] and i >= NRING: return
    t, s = korder(w)[2][i]
    r = ringreg(i); imm = WQ_SLOT[s >> 1] * 8192 + ((s & 1) * 2 + t) * 2048
    a.ds(f"ds_read_b128 {vr(r,4)}, v{vRing} offset:{imm}", ("ring", i))
    a.ds(f"ds_read_b128 {vr(r+4,4)}, v{vRing} offset:{imm+1024}", ("ring", i))

def kx_dma(a, w, i):
    a(f"s_add_u32 m0, s{sKb}, {i*1024}")
    a(f"s_add_u32 s{sT0}, s{sKx}, {i*1024}")
    a.vm(f"buffer_load_dwordx4 v{vM16}, s[{sWS}:{sWS+3}], s{sT0} offen {NT[0]} lds", "kx")

class Stream:
    def __init__(self): self.ops = []; self.fill = {}
    def add(self, f, pre=None): self.ops.append((f, pre)); return len(self.ops) - 1
    def at(self, g, f): self.fill.setdefault(g, []).append(f)
    def emit(self):
        for g, (f, pre) in enumerate(self.ops):
            if pre: pre()
            f()
            for x in self.fill.pop(g, []): x()
        assert not self.fill, self.fill.keys()

def loop(a, w, st, P, diag=False):
    tag = f"{w}{'s' if st else 'f'}"
    WS = f"s[{sWS}:{sWS+3}]"
    smf = lambda d, A, B: a(f"v_smfmac_f32_16x16x64_bf16 {vr(d,4)}, {vr(A,4)}, {B}, v{vIDX}")
    mf = lambda d, A, B, c: a(f"v_mfma_f32_16x16x32_bf16 {vr(d,4)}, {vr(A,4)}, {vr(B,4)}, {c}")
    mf16 = lambda d, A, B, c: a(f"v_mfma_f32_16x16x16_bf16 {vr(d,4)}, {vr(A,2)}, {vr(B,2)}, {c}")
    I = lambda t: (lambda: a(t))
    Af = lambda s: vA + 4 * s
    q = lambda t: vACC + 8 * t
    k_ = lambda t: vACC + 8 * t + 4
    vacc = lambda t: (vVA0, vPM)[t]
    own, rest, seq = korder(w)
    ABL[0] = P.get("abl", ""); NP[0] = P.get("np", 1); NT[0] = P.get("nt", "nt")
    SL = P.get("stamps", ["start", "qkend", "xbar", "scores", "pv", "obar", "opend", "pub", "bdone"])
    def ST(n):
        if diag and n in SL:
            if P.get("trace"): a(f"s_memrealtime s[{sTS+2*SL.index(n)}:{sTS+2*SL.index(n)+1}]")
            else: stamp(a, SL.index(n), diag)
    vVM = vVA0 + 2
    def zero_acc():
        if w == 3:
            a(f"v_mov_b32 v124, -1\nv_lshrrev_b32 v125, 8, v{vL8}\nv_bfe_u32 v126, v{vL8}, 7, 1\nv_lshl_add_u32 v125, v125, 2, v126\nv_bfe_u32 v126, v{vL8}, 1, 6\nv_lshl_add_u32 v125, v125, 8, v126")
        for r in range(16): a(f"v_mov_b32 v{vACC+r}, 0")
        for t in range(2):
            for r in range(4): a(f"v_mov_b32 v{vacc(t)+r}, 0")
    def mwrite():
        for o in own:
            a.ds(f"ds_write_b128 v{vM16}, {vr(Af(o),4)} offset:{M_OFF + o*1024}", "mw")
    hook = P.get("hooks")
    if hook: hook["ready"](a, w, tag, True)
    vxl = [lambda: a.vm(f"buffer_load_dwordx4 {vr(vVX,4)}, v{vM16}, {WS}, s{sVx} offen {NT[0]}", "vx"),
           lambda: a.vm(f"buffer_load_dwordx4 {vr(vVX+4,4)}, v{vM16}, {WS}, s{sVx} offen offset:1024 {NT[0]}", "vx")]
    a(f"s_mov_b32 s{sKb}, {MISC+KX_OFF}\ns_lshl_b32 s{sKx}, s{sH}, 13\ns_add_u32 s{sKx}, s{sKx}, {KIMG - MISC}")
    kx_dma(a, w, 2 * w); kx_dma(a, w, 2 * w + 1)
    for r in range(8): a(f"v_mov_b32 v{Af(own[0])+r}, v{(16, 17, 18, 19, 12, 13, 14, 15)[r]}")
    a(f"s_mov_b32 s{sStep}, 0\ns_mov_b32 s{sKb}, {MISC+KX_OFF+8192}")
    seg_offsets(a, w, P)
    if P.get("kxA"): kx_dma(a, w, 2 * w); kx_dma(a, w, 2 * w + 1)
    a(f"s_mov_b32 s{sVmPrev}, s{sKm}\ns_sub_u32 s{sMclr}, s{sMclr}, {(w&1)*1024}")
    init_incr(a, w)
    a(f"v_mov_b32 v{vVX}, -1\nv_mov_b32 v{vVX+1}, -1\nv_mov_b32 v{vVX+2}, -1\nv_mov_b32 v{vVX+3}, -1")
    a.ds(f"ds_write_b128 v{vOr}, {vr(vVX,4)} offset:{w*512}")
    for i in range(NRING): ring_fill(a, w, i)
    zero_acc()
    a(f"s_waitcnt vmcnt(0)"); a.vmq = []
    a.wait_ds_all(True)
    LB = [Af(o) for o in own]
    loadB = lambda k: a(f"buffer_load_dwordx4 {vr(LB[k],4)}, v{vM16}, {WS}, s{sMpoll} offen offset:{k*1024} sc1")
    NS = P["depB"]
    def retryB():
        a.label(f"CH_RBRETRY_{tag}")
        loadB(0); loadB(1)
        if diag: a(f"s_add_u32 s{sTS+21}, s{sTS+21}, 1")
        a(f"s_add_u32 s{sCnt}, s{sCnt}, 1")
        a(f"s_cmp_gt_u32 s{sCnt}, {P['bound']}\ns_cbranch_scc1 CH_RBOK_{tag}\ns_branch CH_RB_{tag}")
    a(f"s_mov_b32 s{sCnt}, 0")
    for k in range(8): a(f"v_min_u32 v{LB[0]+k}, 0xfffffffe, v{LB[0]+k}")
    a.label(f"CH_RB_{tag}")
    ST("B_w0")
    a.dsq = []
    r_ = [LB[0] + k for k in range(8)]
    a(f"s_waitcnt vmcnt({2 * NS - 1})")
    a(f"v_max3_u32 v10, v{r_[0]}, v{r_[1]}, v{r_[2]}")
    a(f"v_max_u32 v10, v10, v{r_[3]}")
    a.ds(f"ds_write_b128 v{vM16}, {vr(LB[0],4)} offset:{M_OFF + own[0]*1024}", "mw")
    a(f"s_waitcnt vmcnt({2 * NS - 2})")
    a(f"v_max3_u32 v10, v10, v{r_[4]}, v{r_[5]}")
    a(f"v_max3_u32 v10, v10, v{r_[6]}, v{r_[7]}")
    a.ds(f"ds_write_b128 v{vM16}, {vr(LB[1],4)} offset:{M_OFF + own[1]*1024}", "mw")
    a(f"v_cmp_eq_u32 vcc, -1, v10")
    a(f"s_cbranch_vccnz CH_RBRETRY_{tag}" if not P.get("free") else "s_nop 0")
    a.label(f"CH_RBOK_{tag}")
    if diag:
        ST("bdone")
        a("s_waitcnt lgkmcnt(0)")
        a(f"s_cmp_eq_u32 s{sStep}, 0")
        a(f"s_cbranch_scc1 CH_NOACC_{tag}")
        for k in range(8):
            a(f"s_sub_u32 s{sT0}, s{sTS+2*k+2}, s{sTS+2*k}")
            a(f"s_add_u32 s{sTS+22+k}, s{sTS+22+k}, s{sT0}")
        if P.get("trace"):
            a(f"s_cmp_eq_u32 s{sStep}, {P['trace']}")
            for k, dst in enumerate((83, 84, 85, 86, 87, 88, 89, 100, 101)):
                a(f"s_cselect_b32 s{dst}, s{sTS+2*k}, s{dst}")
        a.label(f"CH_NOACC_{tag}")
        if w == 3 and P.get("steptime"):
            a(f"s_memrealtime s[{sT2}:{sT2+1}]\ns_lshl_b32 s{sT0}, s{sH}, 6\ns_add_u32 s{sT0}, s{sT0}, s{sStep}\ns_lshl_b32 s{sT0}, s{sT0}, 2\ns_add_u32 s{sT0}, s{sT0}, {DBG + 0x40000}\ns_waitcnt lgkmcnt(0)")
            a(f"v_mov_b32 v10, s{sT2}\nv_mov_b32 v11, 0\nbuffer_store_dword v10, v11, {WS}, s{sT0} offen")
            a(f"s_memtime s[{sT2}:{sT2+1}]\ns_add_u32 s{sT0}, s{sT0}, 0x10000\ns_waitcnt lgkmcnt(0)\nv_mov_b32 v10, s{sT2}\nbuffer_store_dword v10, v11, {WS}, s{sT0} offen")
    ST("start")
    a.vmq = ["stale"] * (2 * NS - 2) + (["dbg", "dbg"] if diag and w == 3 and P.get("steptime") else [])
    S = Stream()
    vs = [(t, s) for s in own + rest for t in range(2)]
    def vsm(S, pre=None):
        t, s = vs.pop(0)
        return S.add(lambda: smf(vacc(t), Af(s), ar(wv(t, s), 8)), pre)
    gq = {}
    aread = lambda s: a.ds(f"ds_read_b128 {vr(Af(s),4)}, v{vM16} offset:{M_OFF + s*1024}", ("A", s))
    NB = P["pre_bar"]
    def bar_and_reads():
        a.wait_ds("mw")
        ST("mbar0")
        a("s_barrier")
        ST("mbar1")
        for s in rest[:P["a_burst"]]: aread(s)
    xread = lambda sg: [a.ds(f"ds_read_b64_tr_b16 {vr(vXF+4*sg+2*p,2)}, v{vXr} offset:{(sg&1)*512 + p*256 + (sg>>1)*128}", ("X", sg)) for p in range(2)]
    for i in range(16):
        t, s = seq[i]
        def pre(i=i, s=s):
            a.wait_ds(("A", s))
            if i in (4, 7, 10, 13): ST(f"q{i}")
            a.wait_ds(("ring", i))
        if i == 4:
            for n in range(4): vsm(S)
        gq[i] = S.add(lambda t=t, s=s, i=i: smf(q(t), Af(s), vr(ringreg(i), 8)), pre)
        S.add(lambda t=t, s=s: smf(k_(t), Af(s), vr(wk(t, s), 8)))
    GB = P["pre_bar"] - 1
    S.at(GB, bar_and_reads)
    kxread = lambda kt, s: a.ds(f"ds_read_b128 {vr(kx(kt,s),4)}, v{vKx} offset:{(kt*4+s)*1024}", "kx")
    def half_fill(i, h):
        t, s = seq[i]
        r = ringreg(i) + 4 * h; imm = WQ_SLOT[s >> 1] * 8192 + ((s & 1) * 2 + t) * 2048 + h * 1024
        a.ds(f"ds_read_b128 {vr(r,4)}, v{vRing} offset:{imm}", ("ring", i))
    reads = [(GB + 1, lambda s=s: aread(s)) for s in rest[P["a_burst"]:]]
    ringr = [(gq[i - NRING], lambda i=i, h=h: half_fill(i, h)) for i in range(NRING, 16) for h in range(2)]
    npre = P["r_pre"]
    for n in range(npre): S.at(max(ringr[n][0], min(n + 1, GB)), ringr[n][1])
    if "r" not in ABL[0]: reads += ringr[npre:]
    if "k" not in ABL[0]: reads += [(gq[10 + n // 2], lambda n=n: kxread(n >> 2, n & 3)) for n in range(P["kx_in"])]
    g = GB + 1
    for (e, f) in reads:
        g = max(g, e)
        S.at(min(g, 35), f); g += 1
    def post(t, r0):
        return [I(f"v_add_f32 v{q(t)}, v{q(t)}, v{q(t)+2}"), I(f"v_add_f32 v{q(t)+1}, v{q(t)+1}, v{q(t)+3}"),
                I(f"v_add_f32 v{k_(t)}, v{k_(t)}, v{k_(t)+2}"), I(f"v_add_f32 v{k_(t)+1}, v{k_(t)+1}, v{k_(t)+3}"),
                I(f"v_cvt_pk_bf16_f32 v{r0}, v{q(t)}, v{q(t)+1}"), I(f"v_cvt_pk_bf16_f32 v{r0+1}, v{k_(t)}, v{k_(t)+1}"),
                lambda: a.ds(f"ds_write_b64 v{vXw}, {vr(r0,2)} offset:{t*128}", "xw")]
    p0 = post(0, vACC + 6)
    g0 = gq[10] + 2
    S.at(gq[10], lambda: a.nop(2)); S.at(gq[10] + 1, lambda: a.nop(2))
    g0 += P.get("p0off", 0)
    if "p" not in ABL[0] and not P.get("pboth"):
        for n in range(6): S.at(g0 + n, p0[n])
        if not P.get("xw2"): S.at(g0 + 5 + P.get("p0w", 0), p0[6])
    vONE = vACC
    if not P.get("one_late") and not P.get("pboth"):
        for n in range(4): S.at(g0 + 6 + n, I(f"v_mov_b32 v{vONE+n}, s{sONE}"))
    late = {}
    if P["jobs"] == "S" and "j" not in ABL[0]:
        jobs = [lambda: a.vm(f"buffer_store_dwordx4 {vr(vVX,4)}, v{vM16}, {WS}, s{sVmPrev} offen sc1", "exp"), vxl[0], vxl[1],
                lambda: kx_dma(a, w, 2 * w), lambda: kx_dma(a, w, 2 * w + 1)]
        if P.get("kxA"): jobs = jobs[:3] + [None] * 2
        if w == 3: jobs.append(lambda: a.vm(f"buffer_store_dword v124, v125, {WS}, s{sMclr} offen {st}", "clr"))
        if hook and w == P.get("fw", 0): jobs.append(lambda: hook["flag"](a))
        if hook and w == 2: S.at(P["j0"] + P["jw"] * w + P["jstr"] // 2, lambda: hook["look"](a))
        for n, jb in enumerate(jobs):
            if jb is None: continue
            g = P["j0"] + P["jstr"] * n + P["jw"] * w
            if n == 5: g = P["j0"] + P["jstr"] * (2 if w else 1) + P["jw"] * w + P["jstr"] // 2
            if n == 6: g = P["j0"] + P["jstr"] + P["jw"] * w + P["jstr"] // 2
            if g < 36: S.at(g, jb)
            else: late.setdefault(g - 36 + 2, []).append(jb)
    S.at(gq[12], I(f"s_add_u32 s{sMpoll}, s{sRM}, {MBUF - MISC + w*2048}"))
    if 35 not in S.fill: S.at(35, lambda: a.nop(1))
    S.emit()
    ST("qkend")
    T0, T1, Tm = vACC + 8, vACC + 12, vT
    def score(S, T, sg):
        A = {T0: kx(0, sg), T1: kx(1, sg), Tm: vXF + 4 * sg}[T]
        return S.add(lambda: mf(T, A, vXF + 4 * sg, "0" if sg == 0 else vr(T, 4)), lambda: a.wait_ds(("X", sg)))
    p1 = post(1, vACC + 4)
    S = Stream()
    if P.get("pboth"):
        a(f"v_pk_add_f32 {vr(q(0),2)}, {vr(q(0),2)}, {vr(q(0)+2,2)}\nv_pk_add_f32 {vr(k_(0),2)}, {vr(k_(0),2)}, {vr(k_(0)+2,2)}")
        p0[4](); p0[5]()
        if not P.get("xw2"): p0[6]()
        a.nop(2 if P.get("xw2") else 1)
    else: a.nop(6)
    a(f"v_pk_add_f32 {vr(q(1),2)}, {vr(q(1),2)}, {vr(q(1)+2,2)}\nv_pk_add_f32 {vr(k_(1),2)}, {vr(k_(1),2)}, {vr(k_(1)+2,2)}")
    for n in range(4, 6): p1[n]()
    if P.get("xw2"): a.ds(f"ds_write2_b64 v{vXw}, {vr(vACC+6,2)}, {vr(vACC+4,2)} offset0:0 offset1:16", "xw")
    else: p1[6]()
    for n in range(P["v_pre"]):
        g = vsm(S)
        if P["kx_in"] + n < 8: S.at(g, lambda n=n: kxread((P["kx_in"] + n) >> 2, (P["kx_in"] + n) & 3))
    assert P["kx_in"] + P["v_pre"] >= 8
    def xbar1():
        a.wait_ds("xw")
        a("s_barrier"); ST("xbar"); xread(0)
    g = vsm(S, xbar1)
    S.at(g, lambda: xread(1))
    S.at(vsm(S), lambda: xread(2)); S.at(vsm(S), lambda: xread(3))
    ones = list(range(4)) if P.get("one_late") or P.get("pboth") else []
    while vs:
        gl = vsm(S)
        if ones: S.at(gl, I(f"v_mov_b32 v{vONE+ones.pop(0)}, s{sONE}"))
    for g, l_ in late.items():
        for jb in l_: S.at(g, jb)
    S.at(gl, lambda: (a.wait_vm("stale"), a.wait_ds("kx"), ST("vdone")))
    m, t_ = vT, 11
    gs = [score(S, T, sg) for T in (T0, T1, Tm) for sg in range(4)]
    va = [I(f"v_add_f32 v{vacc(t)+k}, v{vacc(t)+k}, v{vacc(t)+k+2}") for t in range(2) for k in range(2)]
    for n in range(4): S.at(gs[n], lambda: a.nop(1))
    S.at(gs[4], va[0]); S.at(gs[4], va[1]); S.at(gs[5], va[2]); S.at(gs[5], va[3])
    S.at(gs[6], I(f"v_cvt_pk_bf16_f32 v{vVM}, v{vacc(0)}, v{vacc(0)+1}"))
    S.at(gs[7], I(f"v_cvt_pk_bf16_f32 v{vVM+1}, v{vacc(1)}, v{vacc(1)+1}"))
    S.at(gl, I(f"s_cmp_ge_u32 s{sStep}, 63\ns_cbranch_scc1 CH_DONE_{tag}"))
    S.at(gs[8], I(f"v_max3_f32 v10, v{T0}, v{T0+1}, v{T0+2}\nv_mov_b32 v{vPM+1}, 0\ns_nop 1"))
    S.at(gs[9], I(f"v_max_f32 v10, v10, v{T0+3}\nv_mov_b32 v{vPM+2}, 0\ns_nop 1"))
    S.at(gs[10], I(f"v_max3_f32 v10, v10, v{T1}, v{T1+1}"))
    S.at(gs[11], I(f"v_max3_f32 v10, v10, v{T1+2}, v{T1+3}"))
    S.emit()
    ST("scores")
    oacc = lambda d: vRING + 4 * d
    zq = list(range(16))
    z = lambda n: [a(f"v_mov_b32 v{vRING+zq.pop(0)}, 0") for _ in range(n)]
    z(7)
    a(f"v_max3_f32 v{m}, v10, v{Tm+2}, v{Tm+3}")
    a(f"v_mov_b32 v{t_}, v{m}")
    z(2)
    a(f"v_permlane32_swap_b32 v{m}, v{t_}")
    a(f"v_max_f32 v{m}, v{m}, v{t_}")
    a(f"v_mov_b32 v{t_}, v{m}")
    z(2)
    a(f"v_permlane16_swap_b32 v{m}, v{t_}")
    a(f"v_max_f32 v{m}, v{m}, v{t_}")
    a(f"v_mul_f32 v10, s{sC}, v{m}")
    pf = lambda r: a(f"v_pk_fma_f32 {vr(r,2)}, {vr(r,2)}, s[{sC}:{sC+1}], v[10:11] op_sel_hi:[1,1,0] neg_lo:[0,0,1] neg_hi:[0,0,1]")
    ex = lambda r: a(f"v_exp_f32 v{r}, v{r}")
    aX, aY, aL = vA, vA + 4, vA + 24
    vPX = vACC + 4
    pf(Tm + 2); pf(T0); ex(Tm + 2); ex(Tm + 3); pf(T0 + 2); pf(T1); pf(T1 + 2)
    a(f"v_cvt_pk_bf16_f32 v{vPM}, v{Tm+2}, v{Tm+3}")
    a(f"v_cvt_pk_bf16_f32 v{vPM+3}, v{Tm+2}, v{Tm+3}")
    ex(T0); ex(T0 + 1)
    mf16(aL, vONE, vPM, "0")
    ex(T0 + 2); ex(T0 + 3)
    mf16(aX, vVM, vPM, "0")
    ex(T1); ex(T1 + 1)
    mf16(aY, vVM, vPM + 2, "0")
    ex(T1 + 2); ex(T1 + 3)
    a(f"v_cvt_pk_bf16_f32 v{vPX}, v{T0}, v{T0+1}")
    a(f"v_cvt_pk_bf16_f32 v{vPX+1}, v{T0+2}, v{T0+3}")
    a(f"v_cvt_pk_bf16_f32 v{vPX+2}, v{T1}, v{T1+1}")
    a(f"v_cvt_pk_bf16_f32 v{vPX+3}, v{T1+2}, v{T1+3}")
    a.wait_vm("vx")
    a.nop(2 if "j" in ABL[0] else 1)
    mf(aL, vONE, vPX, vr(aL, 4)); z(2)
    mf(aX, vVX, vPX, vr(aX, 4)); z(2)
    mf(aY, vVX + 4, vPX, vr(aY, 4))
    ST("pv")
    z(1); a.nop(1)
    a(f"v_rcp_f32 v10, v{aL}")
    a.nop(3)
    vOW = vA + 8
    for r in range(4):
        if r == 2: a.nop(1)
        a(f"v_pk_mul_f32 {vr(aX+2*r,2)}, {vr(aX+2*r,2)}, v[10:11] op_sel_hi:[1,0]")
    for r in range(4):
        a(f"v_cvt_pk_bf16_f32 v{vOW+r}, v{aX+2*r}, v{aX+2*r+1}")
    if P.get("otag"): a(f"v_and_or_b32 v{vOW}, v{vOW}, -2, s{sTag}")
    a(f"s_not_b64 exec, s[{sB1M}:{sB1M+1}]")
    a.ds(f"ds_write_b128 v{vOr}, {vr(vOW,4)} offset:{w*512}", "ow")
    a("s_mov_b64 exec, -1")
    vOF = lambda s: vA + 12 + 4 * s
    a.nop(1)
    for r in range(4):
        a(f"v_mov_b32_dpp v{vOF(w)+r}, v{vOW+r} quad_perm:[0,1,0,1] row_mask:0xf bank_mask:0xf")
    a.nop(2)
    assert not zq
    S = Stream()
    orest = [(w + 1 + k) % 4 for k in range(3)]
    def obar():
        if not P.get("otag"): a.wait_ds_all()
        a("s_barrier")
        ST("obar")
        for s in orest: a.ds(f"ds_read_b128 {vr(vOF(s),4)}, v{vOr} offset:{s*512}", ("O", s))
        a(f"s_add_u32 s{sT0}, s{sPst}, 4096")
    XW = vXF + 4 * w
    sel = lambda d, f, dst=vVX: f"v_cndmask_b32 v{dst+d}, v{f}, v{XW+d}, s[{sB1M}:{sB1M+1}]"
    dpp = lambda d: f"v_mov_b32_dpp v{10+d}, v{vVM+d} quad_perm:[2,3,2,3] row_mask:0xf bank_mask:0xf"
    pack = [I(dpp(0) + "\n" + sel(0, vVM)), I(dpp(1) + "\n" + sel(1, vVM + 1)), I(sel(2, 10)), I(sel(3, 11))]
    for d in range(4):
        g = S.add(lambda d=d: smf(oacc(d), vOF(w), ar(wo(d, w), 8)), obar if d == P["o_pre"] else None)
        S.at(g, pack[d])
    if P["o_pre"] == 4: S.at(g, obar)
    vST = vRING + 16
    go = [S.add(lambda d=d, s=s: smf(oacc(d), vOF(s), ar(wo(d, s), 8)), lambda s=s: a.wait_ds(("O", s)))
          for (d, s) in ([(d, s) for s in orest for d in (0, 1)] + ([(d, s) for d in (2, 3) for s in orest] if P.get("dmaj") else [(d, s) for s in orest for d in (2, 3)]))]
    if P.get("otag"):
        f_ = [vOF(s_) for s_ in orest]
        ochk = [f"v_bitop3_b32 v10, v{f_[0]}, v{f_[1]}, s{sTag} bitop3:0x7e", f"v_bitop3_b32 v10, v10, v{f_[2]}, s{sTag} bitop3:0xf6",
                "v_and_b32 v10, 1, v10", "v_cmp_ne_u32 vcc, 0, v10"]
        S.ops[go[0]] = (S.ops[go[0]][0], lambda: (a.label(f"CH_OGO_{tag}"), a.wait_ds(("O", orest[0]))))
        S.at(go[2], I(ochk[0])); S.at(go[4], I(ochk[1])); S.at(go[5], I(ochk[2] + "\n" + ochk[3] + f"\ns_cbranch_vccnz CH_OREDO_{tag}"))
    cv = lambda d, k: I(f"v_cvt_pk_bf16_f32 v{vST+2*d+k}, v{oacc(d)+2*k}, v{oacc(d)+2*k+1}")
    tg = lambda dp: I(f"v_and_or_b32 v{vST+4*dp}, v{vST+4*dp}, -2, s{sTag}")
    pst = lambda dp: a.vm(f"buffer_store_dwordx4 {vr(vST+4*dp,4)}, v{vPst}, {WS}, s{sT0 if dp else sPst} offen {st}", "pst")
    if P.get("pst0", 0) == 0:
        S.at(go[6], lambda: a.nop(6)); S.at(go[6], cv(0, 0)); S.at(go[7], cv(0, 1)); S.at(go[8], tg(0)); S.at(go[9], cv(1, 0)); S.at(go[10], cv(1, 1))
        S.at(go[10], lambda: pst(0))
    elif P["pst0"] == 1:
        S.at(go[6], lambda: a.nop(6)); S.at(go[6], cv(0, 0)); S.at(go[6], cv(0, 1)); S.at(go[7], cv(1, 0)); S.at(go[7], cv(1, 1)); S.at(go[7], tg(0))
        S.at(go[7], lambda: pst(0))
    else:
        S.at(go[6], lambda: a.nop(6))
        for f in (cv(0, 0), cv(0, 1), cv(1, 0), cv(1, 1), tg(0), lambda: pst(0)): S.at(go[6], f)
    if P.get("dmaj"):
        S.at(go[9], lambda: a.nop(3)); S.at(go[10], lambda: a.nop(3)); S.at(go[10], cv(2, 0))
    S.emit()
    if P.get("dmaj"):
        cv(2, 1)(); tg(1)(); a.nop(6); cv(3, 0)(); cv(3, 1)(); pst(1)
    else:
        a.nop(7 if P.get('pst0', 0) else 6)
        cv(2, 0)(); cv(2, 1)(); cv(3, 0)(); cv(3, 1)(); tg(1)(); pst(1)
    ST("opend")
    LA = [Af(rest[k]) for k in range(4)]
    vRA, vRD = Af(rest[4]), Af(rest[5])
    def issueA():
        for k in range(4): a(f"buffer_load_dwordx4 {vr(LA[k],4)}, v{vM16}, {WS}, s{sPld} offen offset:{k*1024} sc1")
    def adv():
        a(f"s_mov_b32 s{sCnt}, 0\ns_mov_b32 s{sVmPrev}, s{sKm}")
        advance(a, w)
        if hook: hook["ready"](a, w, tag, False)
    def chores():
        zero_acc()
        a(f"v_xor_b32 v{vKx}, 8192, v{vKx}\ns_xor_b32 s{sKb}, s{sKb}, 8192")
    a(f"s_mov_b32 s{sCnt}, 0")
    if w < 2:
        a.ds(f"ds_read_b128 {vr(vRA,4)}, v{vM16} offset:{RA_OFF}", "ra")
        if w == 1: chores()
        a.nop(P["dlyA"][w])
        issueA()
        ST("issA")
        if w == 0: chores()
        for i in range(P["nrA"]): ring_fill(a, w, i)
        DA = P["depA"][w]
        for _ in range(DA - 1):
            a.nop(P["gapA"]); issueA()
        a.wait_ds("ra")
        a.label(f"CH_RA_{tag}")
        ny = 4 * (DA - 1)
        for k in range(4):
            a(f"s_waitcnt vmcnt({ny + 3 - k})")
            if k == 3:
                ST("A_w2")
                a(f"v_bitop3_b32 v11, v{LA[2]}, v{LA[3]}, s{sTag} bitop3:0x7e")
                a(f"v_bitop3_b32 v10, v10, v11, 1 bitop3:0xa8")
            if k == 1: a(f"v_bitop3_b32 v10, v{LA[0]}, v{LA[1]}, s{sTag} bitop3:0x7e")
            if k == 0 and DA > 1: continue
            if k == 1 and DA > 1: mf(vRD, LA[0], vRA, "0")
            if k == 2 and DA > 1: continue
            if k == 3 and DA > 1: mf(vRD, LA[2], vRA, vr(vRD, 4))
            mf(vRD, LA[k], vRA, "0" if k == 0 else vr(vRD, 4))
        a(f"v_cmp_ne_u32 vcc, 0, v10")
        a(f"s_cbranch_vccnz CH_RARETRY_{tag}" if not P.get("free") else "s_nop 0")
        a.label(f"CH_RAOK_{tag}")
        ST("A_ok")
        a.nop(6)
        a(f"v_permlane32_swap_b32 v{vRD}, v{vRD+2}")
        a(f"v_permlane32_swap_b32 v{vRD+1}, v{vRD+3}")
        a(f"s_mov_b64 exec, s[{sLO8}:{sLO8+1}]")
        a(f"v_pk_add_f32 {vr(vRD,2)}, {vr(vRD,2)}, {vr(vRD+2,2)}")
        a(f"v_cvt_pk_bf16_f32 v{vRD}, v{vRD}, v{vRD+1}")
        a(f"buffer_store_dword v{vRD}, v{vMpub}, {WS}, s{sMpub} offen {st}")
        a("s_mov_b64 exec, -1")
        ST("pub")
        if w == 0:
            for i in range(P["nrA"], NRING): ring_fill(a, w, i)
    else:
        chores()
        if P.get("kxA"):
            adv()
            for i in range(4): kx_dma(a, w, 4 * (w - 2) + i)
        for i in range(NRING): ring_fill(a, w, i)
    if w == 0 or (w > 1 and not P.get("kxA")): adv()
    a("s_barrier")
    a.nop(P["dlyB"])
    loadB(0); loadB(1)
    ST("issB")
    if w == 1: adv()
    for _ in range(NS - 1):
        a.nop(P["gapB"] if w != 1 else max(0, P["gapB"] - P["w1c"])); loadB(0); loadB(1)
    if w == 1:
        for i in range(P["nrA"], NRING): ring_fill(a, w, i)
    a.wait_ds_all()
    a.vmq = []
    a(f"s_branch CH_RB_{tag}")
    if w < 2:
        a.label(f"CH_RARETRY_{tag}")
        issueA()
        a(f"s_add_u32 s{sCnt}, s{sCnt}, 1")
        if diag: a(f"s_add_u32 s{sTS+20}, s{sTS+20}, 1")
        a(f"s_cmp_gt_u32 s{sCnt}, {P['bound']}")
        a(f"s_cbranch_scc1 CH_RAOK_{tag}")
        a(f"s_branch CH_RA_{tag}")
    retryB()
    if P.get("otag"):
        a.label(f"CH_OREDO_{tag}")
        a(f"s_mov_b32 s{sCnt}, 0")
        a.label(f"CH_OREDO1_{tag}")
        a.nop(8)
        for s_ in orest: a(f"ds_read_b128 {vr(vOF(s_),4)}, v{vOr} offset:{s_*512}")
        for r in range(16): a(f"v_mov_b32 v{vRING+r}, 0")
        a(f"s_add_u32 s{sCnt}, s{sCnt}, 1\ns_waitcnt lgkmcnt(0)")
        for t_ in ochk: a(t_)
        a(f"s_cmp_gt_u32 s{sCnt}, {P['bound']}\ns_cbranch_scc1 CH_OREDO2_{tag}\ns_cbranch_vccnz CH_OREDO1_{tag}")
        a(f"s_branch CH_OREDO3_{tag}")
        a.label(f"CH_OREDO2_{tag}")
        for s_ in orest: a(f"v_and_or_b32 v{vOF(s_)}, v{vOF(s_)}, -2, s{sTag}")
        a.nop(2)
        a.label(f"CH_OREDO3_{tag}")
        if diag: a(f"s_add_u32 s{sTS+21}, s{sTS+21}, 0x10000")
        for d in range(4): smf(oacc(d), vOF(w), ar(wo(d, w), 8))
        a(f"s_branch CH_OGO_{tag}")
    a.label(f"CH_DONE_{tag}")
    a.wait_ds_all(True)
    a.nop(5)
    for f in va: f()
    a(f"v_cvt_pk_bf16_f32 v{vVM}, v{vacc(0)}, v{vacc(0)+1}\nv_cvt_pk_bf16_f32 v{vVM+1}, v{vacc(1)}, v{vacc(1)+1}")
    a.nop(2)
    a(dpp(0)); a(dpp(1))
    for d, f in enumerate((vVM, vVM + 1, 10, 11)): a(sel(d, f, T0))
    a(f"buffer_store_dwordx4 {vr(T0,4)}, v{vM16}, {WS}, s{sKm} offen sc1")
    a.dsq = []; a.vmq = []
    if hook: hook["done"](a, w)
```

```python
from asm import *
from layout import *
import math, struct

sWS = 8
WS = f"s[{sWS}:{sWS+3}]"
DB = "s[4:7]"
sW = 17
sRole = 16
sDead = 37
sA, sB, sC_, sD = 32, 33, 34, 35
POLL_BOUND = 1 << 16
SLEEP = [2]
WVERD = [0]
EARLY = [1]
EXP = [None]
OUTF = ['']
HOLD = [0]
PREFETCH = [(48, 50, 58, 52)]

def fbits(x): return struct.unpack("<I", struct.pack("<f", x))[0]

def srd(a, d, ka, size):
    a(f"s_load_dwordx2 s[{d}:{d+1}], s[0:1], {KA[ka]}\ns_mov_b32 s{d+2}, {size}\ns_mov_b32 s{d+3}, 0x20000")

def poll_ge(a, load, vals, target, name, sleep=1, vtmp=None):
    L = a.newlabel("POLL_" + name); E = L + "_E"
    a(f"s_mov_b32 s{sD}, 0")
    a.label(L)
    a(f"s_cmp_lg_u32 s{sDead}, 0\ns_cbranch_scc1 {E}")
    a(load)
    a(f"s_add_u32 s{sD}, s{sD}, 1")
    a(f"s_cmp_gt_u32 s{sD}, {POLL_BOUND}\ns_cselect_b32 s{sDead}, 1, 0")
    a("s_waitcnt vmcnt(0)")
    v = vals[0]
    for k in range(1, len(vals)):
        a(f"v_min_u32 v{vtmp}, v{v}, v{vals[k]}"); v = vtmp
    a(f"v_cmp_gt_u32 vcc, {target}, v{v}")
    a(f"s_cbranch_vccz {E}")
    if sleep: a(f"s_sleep {sleep}")
    a(f"s_branch {L}")
    a.label(E)
    a.vmq = []

def flag_store(a, soff, sval, v0=2):
    a(f"v_mov_b32 v{v0}, {sval}\ns_mov_b64 exec, 1")
    a.vm(f"buffer_store_dword v{v0}, off, {WS}, {soff} sc1", "flag")
    a("s_mov_b64 exec, -1")

def layernorm(a, sTask, diag=False, local=None, after_loads=None, after_sum=None):
    srd(a, 60, "x", 2048 * 1024)
    a(f"""
    v_and_b32 v8, 7, v0
    v_lshrrev_b32 v9, 3, v0
    v_lshlrev_b32 v14, 10, v8
    v_lshl_add_u32 v14, v9, 4, v14
    s_lshl_b32 s27, s{sTask}, 13
    s_waitcnt lgkmcnt(0)
    """)
    R, F = 16, 48
    for s in range(8):
        a.vm(f"buffer_load_dwordx4 {vr(R+4*s,4)}, v14, s[60:63], s27 offen offset:{s*128}", ("ln", s))
    a(f"""
    v_lshrrev_b32 v15, 2, v9
    v_lshlrev_b32 v15, 11, v15
    v_and_b32 v9, 3, v9
    v_lshl_add_u32 v15, v9, 8, v15
    v_lshl_add_u32 v15, v8, 4, v15
    s_lshr_b32 s27, s{sTask}, 2
    s_lshl_b32 s27, s27, 15
    s_bfe_u32 s28, s{sTask}, 0x10001
    s_lshl_b32 s28, s28, 10
    s_add_u32 s27, s27, s28
    s_and_b32 s28, s{sTask}, 1
    s_lshl_b32 s28, s28, 7
    s_add_u32 s27, s27, s28
    s_add_u32 s27, s27, {XN}
    v_mov_b32 v10, 0
    v_mov_b32 v11, 0
    """)
    if after_loads: after_loads()
    for s in range(8):
        a.wait_vm(("ln", s))
        for k in range(4):
            r = R + 4 * s + k; f = F + 8 * s + 2 * k
            a(f"v_lshlrev_b32 v{f}, 16, v{r}\nv_and_b32 v{f+1}, 0xffff0000, v{r}")
            a(f"v_pk_add_f32 v[10:11], v[10:11], {vr(f,2)}")
    if diag: a("s_memrealtime s[72:73]")
    if after_sum: after_sum()
    def allred():
        a("v_add_f32 v10, v10, v11\ns_nop 1\nv_add_f32_dpp v10, v10, v10 row_ror:8 row_mask:0xf bank_mask:0xf")
        for op in ("v_permlane32_swap_b32", "v_permlane16_swap_b32"):
            a(f"v_mov_b32 v11, v10\ns_nop 1\n{op} v10, v11\nv_add_f32 v10, v10, v11")
    allred()
    a(f"v_mul_f32 v12, {fbits(1/512):#x}, v10\nv_mov_b32 v10, 0\nv_mov_b32 v11, 0")
    for k in range(32):
        f = F + 2 * k
        a(f"v_pk_add_f32 {vr(f,2)}, {vr(f,2)}, v[12:13] op_sel_hi:[1,0] neg_lo:[0,1] neg_hi:[0,1]")
        a(f"v_pk_fma_f32 v[10:11], {vr(f,2)}, {vr(f,2)}, v[10:11]")
    allred()
    a(f"v_mov_b32 v12, {fbits(1e-5):#x}\nv_fmac_f32 v12, {fbits(1/512):#x}, v10\nv_rsq_f32 v12, v12\ns_nop 0")
    for s in range(8):
        for k in range(4):
            f = F + 8 * s + 2 * k
            a(f"v_pk_mul_f32 {vr(f,2)}, {vr(f,2)}, v[12:13] op_sel_hi:[1,0]")
            a(f"v_cvt_pk_bf16_f32 v{R+4*s+k}, v{f}, v{f+1}")
        if local is None:
            a.vm(f"buffer_store_dwordx4 {vr(R+4*s,4)}, v15, {WS}, s27 offen sc1", "lnst")
            a(f"s_add_u32 s27, s27, 4096")
        else:
            if s == 0: a(f"s_and_b32 s27, s27, 0x7fff\ns_add_u32 s27, s27, {local}\nv_add_u32 v15, s27, v15")
            a.ds(f"ds_write_b128 v15, {vr(R+4*s,4)} offset:{s*4096}")
    if diag: a("s_memrealtime s[74:75]")

G1_XBUF = 98304
def gemm1(a, wait_init, verdict, sInit, diag=False):
    sSl, sJ, sKind, sRow, sOut, sN, sXs, sFl = 18, 19, 20, 21, 22, 23, 24, 25
    sSh, sXstep, sOstep, sEnd = 44, 45, 46, 47
    a(f"""
    s_lshr_b32 s{sSl}, s{sRole}, 2
    s_and_b32 s{sJ}, s{sRole}, 3
    s_mov_b32 s{sSh}, 0
    s_cmp_lt_u32 s{sRole}, 128
    s_cbranch_scc1 G1_MAP
    s_add_u32 s{sSl}, s{sSl}, 8
    s_cmp_ge_u32 s{sRole}, 160
    s_cbranch_scc1 G1_MAP
    s_lshr_b32 s{sSl}, s{sRole}, 1
    s_sub_u32 s{sSl}, s{sSl}, 32
    s_and_b32 s{sJ}, s{sRole}, 1
    s_mov_b32 s{sSh}, 1
    G1_MAP:
    s_lshr_b32 s{sXstep}, {4*32768}, s{sSh}
    s_sub_u32 s{sXstep}, s{sXstep}, {7*1024}
    s_lshr_b32 s{sOstep}, {4*32*8192}, s{sSh}
    s_lshl_b32 s{sEnd}, 16, s{sSh}
    s_lshr_b32 s{sKind}, s{sSl}, 4            ; 0 K, 1 V, 2 Q, 3 FFN1
    s_load_dwordx2 s[48:49], s[0:1], {KA['Wk']}
    s_load_dwordx2 s[50:51], s[0:1], {KA['Wv']}
    s_load_dwordx2 s[52:53], s[0:1], {KA['Wq']}
    s_load_dwordx2 s[54:55], s[0:1], {KA['w1']}
    s_load_dwordx2 s[56:57], s[0:1], {KA['b1']}
    s_load_dwordx2 s[58:59], s[0:1], {KA['Wo']}
    s_waitcnt lgkmcnt(0)
    s_mov_b32 s12, s48
    s_mov_b32 s13, s49
    s_mov_b32 s14, {512*4096*2}
    s_mov_b32 s{sRow}, 8192
    s_cmp_eq_u32 s{sKind}, 1
    s_cselect_b32 s12, s50, s12
    s_cselect_b32 s13, s51, s13
    s_cmp_eq_u32 s{sKind}, 2
    s_cselect_b32 s12, s52, s12
    s_cselect_b32 s13, s53, s13
    s_cmp_eq_u32 s{sKind}, 3
    s_cselect_b32 s12, s54, s12
    s_cselect_b32 s13, s55, s13
    s_cselect_b32 s14, {512*1792*2}, s14
    s_cselect_b32 s{sRow}, 3584, s{sRow}
    s_mov_b32 s15, 0x20000
    v_and_b32 v240, 15, v0
    v_lshrrev_b32 v241, 4, v0
    v_and_b32 v242, 3, v0
    v_bfe_u32 v243, v0, 2, 2
    v_lshrrev_b32 v4, 3, v0
    v_mul_lo_u32 v4, v4, s{sRow}
    v_and_b32 v5, 7, v0
    v_bfe_u32 v6, v0, 4, 1
    v_lshlrev_b32 v6, 1, v6
    v_xor_b32 v5, v5, v6
    v_xor_b32 v6, 4, v5
    s_and_b32 s{sA}, s{sSl}, 15
    s_lshl_b32 s{sA}, s{sA}, 9
    s_lshl_b32 s{sB}, s{sW}, 7
    s_add_u32 s{sA}, s{sA}, s{sB}
    v_add_u32 v4, s{sA}, v4
    v_lshl_add_u32 v244, v5, 4, v4
    v_lshl_add_u32 v245, v6, 4, v4
    v_lshl_add_u32 v4, v241, 3, v243
    v_lshlrev_b32 v4, 7, v4
    v_lshl_add_u32 v4, v242, 3, v4
    s_mul_i32 s{sA}, s{sW}, 24576
    v_add_u32 v4, s{sA}, v4
    v_lshrrev_b32 v5, 1, v243
    v_and_b32 v6, 1, v241
    v_lshl_add_u32 v5, v6, 1, v5
    """)
    for f in range(4):
        a(f"v_xor_b32 v6, {f}, v5\nv_lshl_add_u32 v{246+f}, v6, 5, v4")
    a(f"s_lshl_b32 s{sC_}, s{sRow}, 3\ns_mov_b32 s{sN}, 0")
    def issue(c):
        for i in range(8):
            a(f"s_add_u32 m0, s{sA}, {(c%3)*8192 + i*1024}\ns_nop 0")
            a.vm(f"buffer_load_dwordx4 v{244 + (i&1)}, s[12:15], s{sN} offen lds", ("w", c))
            a(f"s_add_u32 s{sN}, s{sN}, s{sC_}")
    def prefetch():
        if not PREFETCH[0]: return
        a(f"s_lshl_b32 s{sB}, s{sRole}, 2\ns_add_u32 s{sB}, s{sB}, s{sW}\ns_lshl_b32 s{sB}, s{sB}, 12\ns_add_u32 s{sD}, s{sB}, {896*4096}")
        a("v_lshlrev_b32 v13, 6, v0\ns_mov_b32 s42, 0x400000\ns_mov_b32 s43, 0x20000")
        for p in PREFETCH[0]:
            a(f"s_mov_b32 s40, s{p}\ns_mov_b32 s41, s{p+1}")
            a.vm(f"buffer_load_dword v252, v13, s[40:43], s{sB} offen", "pf")
            a.vm(f"buffer_load_dword v252, v13, s[40:43], s{sD} offen", "pf")
    sTask, sHave, sBit, sWd = 26, 31, 38, 39
    a(f"""
    s_mov_b32 s{sHave}, 0
    s_mov_b32 s{sTask}, s{sRole}
    s_and_b32 s{sB}, s{sRole}, 3
    s_cmp_eq_u32 s{sW}, s{sB}
    s_cbranch_scc1 G1_LN
    s_xor_b32 s{sB}, s{sB}, 2
    s_cmp_lg_u32 s{sW}, s{sB}
    s_cbranch_scc1 G1_NOLN
    s_and_b32 s{sB}, s{sRole}, 31
    s_cmp_ge_u32 s{sB}, 5
    s_cbranch_scc1 G1_NOLN
    s_lshr_b32 s{sTask}, s{sRole}, 5
    s_mul_i32 s{sTask}, s{sTask}, 5
    s_add_u32 s{sTask}, s{sTask}, s{sB}
    s_add_u32 s{sTask}, s{sTask}, 224
    s_cmp_ge_u32 s{sTask}, 256
    s_cbranch_scc1 G1_NOLN
    G1_LN:
    """)
    layernorm(a, sTask, diag, None, prefetch)
    a(f"s_mov_b32 s{sHave}, 1\ns_branch G1_LN1")
    a.label("G1_NOLN")
    prefetch()
    a.label("G1_LN1")
    def peek():
        a(f"v_mov_b32 v2, {D_INIT}")
        a.vm(f"buffer_load_dword v251, v2, {DB}, 0 offen sc1", "peek")
    def report():
        L = a.newlabel("LNREP")
        a(f"s_cmp_eq_u32 s{sHave}, 0\ns_cbranch_scc1 {L}")
        a(f"v_readfirstlane_b32 s{sB}, v251\ns_nop 3\ns_cmp_ge_u32 s{sB}, {2*NINIT}\ns_cselect_b32 s{sInit}, 1, s{sInit}")
        keep = list(a.vmq)
        wait_init(a, 2)
        if diag: a("s_memrealtime s[76:77]")
        a(f"s_lshl_b32 s{sB}, s{sTask}, 7\ns_add_u32 s{sB}, s{sB}, {LNF}")
        flag_store(a, f"s{sB}", 1, 2)
        a.vmq = keep
        a.label(L)
    a(f"s_cmp_ge_u32 s{sRole}, 188\ns_cbranch_scc1 G1_IDLE")
    if EXP[0]:
        kmin, n = EXP[0]
        a(f"s_cmp_lt_u32 s{sKind}, {kmin}\ns_cbranch_scc1 G1_EXP")
        peek(); a.wait_vm_all(True); report(); a(f"s_mov_b32 s{sHave}, 0")
        for _ in range(n): a("s_sleep 127")
        a.label("G1_EXP")
    a.vmq = []
    a(f"s_lshl_b32 s30, s{sJ}, 2\ns_add_u32 s30, s30, s{sW}")
    layernorm(a, 30, False, G1_XBUF, lambda: [peek()] + [issue(c) for c in range(3)], lambda: (a.wait_vm("peek"), report()))
    W = lambda f, s: 4 * (f * 16 + s)
    for c in range(8):
        a.wait_vm(("w", c))
        if c == WVERD[0]: verdict(a)
        for s_ in range(2):
            for f in range(4):
                for p in range(2):
                    a.ds(f"ds_read_b64_tr_b16 {ar(W(f, 2*c+s_) + 2*p, 2)}, v{246+f} offset:{(c%3)*8192 + (32*s_+4*p)*128}")
        a.wait_ds_all()
        if c + 3 < 8: issue(c + 3)
    if diag: a("s_memrealtime s[64:65]")
    vBias = 112
    for r in range(16): a(f"v_mov_b32 v{vBias+r}, 0")
    a(f"s_cmp_lg_u32 s{sKind}, 3\ns_cbranch_scc1 G1_NOBIAS")
    a(f"""
    s_mov_b32 s12, s56
    s_mov_b32 s13, s57
    s_mov_b32 s14, 3584
    s_and_b32 s{sA}, s{sSl}, 15
    s_lshl_b32 s{sA}, s{sA}, 9
    s_lshl_b32 s{sB}, s{sW}, 7
    s_add_u32 s{sA}, s{sA}, s{sB}
    v_lshlrev_b32 v4, 3, v241
    """)
    for f in range(4): a(f"buffer_load_dwordx2 {vr(8+2*f,2)}, v4, s[12:15], s{sA} offen offset:{f*32}")
    a("s_waitcnt vmcnt(0)")
    for f in range(4):
        for k in range(2):
            a(f"v_lshlrev_b32 v{vBias+4*f+2*k}, 16, v{8+2*f+k}\nv_and_b32 v{vBias+4*f+2*k+1}, 0xffff0000, v{8+2*f+k}")
    a.label("G1_NOBIAS")
    if diag: a("s_memtime s[96:97]")
    a(f"""
    v_lshlrev_b32 v4, 4, v0
    v_add_u32 v5, {G1_XBUF}, v4
    s_lshl_b32 s{sXs}, s{sJ}, 15
    s_lshl_b32 s{sA}, s{sW}, 13
    s_add_u32 s{sXs}, s{sXs}, s{sA}
    s_add_u32 s{sXs}, s{sXs}, {XN}
    s_lshl_b32 s{sFl}, s{sRole}, 7
    s_add_u32 s{sFl}, s{sFl}, {G1F}
    s_and_b32 s{sA}, s{sSl}, 15
    s_lshl_b32 s{sA}, s{sA}, 1
    s_lshr_b32 s{sB}, s{sW}, 1
    s_add_u32 s{sA}, s{sA}, s{sB}             ; head
    s_lshl_b32 s{sB}, s{sJ}, 5
    s_add_u32 s{sA}, s{sA}, s{sB}
    s_lshl_b32 s{sOut}, s{sA}, 13
    s_and_b32 s{sB}, s{sW}, 1
    """)
    sLb = 26
    a(f"s_lshl_b32 s{sLb}, s{sW}, 13")
    def xdma1(par, i):
        a(f"s_add_u32 m0, s{sLb}, {G1_XBUF + par*32768 + i*1024}")
        a(f"s_add_u32 s{sXs}, s{sXs}, {1024 if i else 's%d' % sXstep}")
        a.vm(f"buffer_load_dwordx4 v4, {WS}, s{sXs} offen lds", "x")
    a(f"s_add_u32 s{sXs}, s{sXs}, {7*1024}")
    a(f"s_cmp_eq_u32 s{sKind}, 1\ns_cbranch_scc1 G1_V\ns_cmp_eq_u32 s{sKind}, 3\ns_cbranch_scc1 G1_H")
    for kind in ("QK", "V", "H"):
        a.label(f"G1_{kind}")
        if kind == "QK":
            a(f"s_lshl_b32 s{sB}, s{sB}, 10\ns_add_u32 s{sOut}, s{sOut}, s{sB}")
            a(f"s_mov_b32 s{sB}, {QIMG}\ns_cmp_eq_u32 s{sKind}, 0\ns_cselect_b32 s{sB}, {KIMG}, s{sB}\ns_add_u32 s{sOut}, s{sOut}, s{sB}")
            step = f"s{sOstep}"
        elif kind == "V":
            a(f"s_lshl_b32 s{sB}, s{sB}, 12\ns_add_u32 s{sOut}, s{sOut}, s{sB}\ns_add_u32 s{sOut}, s{sOut}, {VIMG}")
            step = 4 * 32 * 8192
        else:
            a(f"s_and_b32 s{sA}, s{sSl}, 15\ns_lshl_b32 s{sA}, s{sA}, 2\ns_add_u32 s{sA}, s{sA}, s{sW}\ns_lshl_b32 s{sA}, s{sA}, 11")
            a(f"s_mul_i32 s{sB}, s{sJ}, {2*56*1024}\ns_add_u32 s{sOut}, s{sA}, s{sB}\ns_add_u32 s{sOut}, s{sOut}, {HIMG}")
            step = 4 * 2 * 56 * 1024
        acc = lambda par, mt, f: 128 + par * 32 + (mt * 4 + f) * 4
        vX = lambda s, mt: 16 + ((s % 3) * 2 + mt) * 4
        vS = 48
        def epilogue(par):
            jobs = []
            for n in range(4):
                if kind == "QK": mt, t = n >> 1, n & 1; srcs = (acc(par, mt, t), acc(par, mt, t + 2)); off = mt * 4096 + t * 2048
                elif kind == "V": srcs = (acc(par, 0, n), acc(par, 1, n)); off = n * 1024
                else: mt, t = n >> 1, n & 1; srcs = (acc(par, mt, 2 * t), acc(par, mt, 2 * t + 1)); off = mt * 56 * 1024 + t * 1024
                d = vS + 4 * n
                for h_ in range(2):
                    for k in range(2):
                        r = srcs[h_] + 2 * k
                        if kind == "H":
                            jobs.append(lambda r=r: a(f"v_max_f32 v{r}, 0, v{r}\nv_max_f32 v{r+1}, 0, v{r+1}"))
                            jobs.append(lambda r=r: a(f"v_mul_f32 v{r}, v{r}, v{r}\nv_mul_f32 v{r+1}, v{r+1}, v{r+1}"))
                            jobs.append(lambda r=r, d=d, h_=h_, k=k: a(f"v_cvt_pk_bf16_f32 v{d+2*h_+k}, v{r}, v{r+1}"))
                        else:
                            jobs.append(lambda r=r, d=d, h_=h_, k=k: a(f"v_cvt_pk_bf16_f32 v{d+2*h_+k}, v{r}, v{r+1}"))
                def st(d=d, off=off):
                    a(f"s_add_u32 s{sA}, s{sOut}, {off}")
                    a.vm(f"buffer_store_dwordx4 {vr(d,4)}, v4, {WS}, s{sA} offen sc1", "st")
                jobs.append(st)
            jobs.append(lambda: a(f"s_add_u32 s{sOut}, s{sOut}, {step}"))
            return jobs
        def publish(val):
            L = a.newlabel("G1F")
            a(f"s_cmp_lg_u32 s{sW}, 0\ns_cbranch_scc1 {L}")
            wait_init(a, 8)
            if val is None: a(f"s_sub_u32 s{sA}, s{sN}, 2\ns_max_u32 s{sA}, s{sA}, 1\ns_lshr_b32 s{sA}, s{sA}, s{sSh}"); val = f"s{sA}"
            flag_store(a, f"s{sFl}", val, 8)
            a.label(L)
        def segment(par, n):
            a("s_waitcnt vmcnt(4)" if n == 2 else "s_waitcnt vmcnt(0) lgkmcnt(0)"); a.vmq = []; a.dsq = []
            a("s_barrier")
            rd = lambda s: [a.ds(f"ds_read_b128 {vr(vX(s,mt),4)}, v5 offset:{par*32768 + s*2048 + mt*1024}", ("x", s)) for mt in range(2)]
            rd(0); rd(1)
            if n == 1: publish(1)
            if n == 2: publish(None)
            jobs = epilogue(1 - par) if n == 2 else []
            for s in range(16):
                if s + 2 < 16: rd(s + 2)
                a.wait_ds(("x", s))
                for mt in range(2):
                    for f in range(4):
                        d = acc(par, mt, f)
                        c = (vr(vBias + 4 * f, 4) if kind == "H" else "0") if s == 0 else vr(d, 4)
                        if kind == "V": a(f"v_mfma_f32_16x16x32_bf16 {vr(d,4)}, {vr(vX(s,mt),4)}, {ar(W(f,s),4)}, {c}")
                        else: a(f"v_mfma_f32_16x16x32_bf16 {vr(d,4)}, {ar(W(f,s),4)}, {vr(vX(s,mt),4)}, {c}")
                        if n and s < 8 and mt == 0 and f == 3: xdma1(1 - par, s)
                        elif jobs and s >= 8: jobs.pop(0)()
            assert not jobs
            if n == 1: a("s_waitcnt vmcnt(0)")
            a(f"s_add_u32 s{sN}, s{sN}, 1")
        a(f"s_mov_b32 s{sN}, 0")
        segment(0, 0)
        a.nop(8)
        for j in epilogue(0): j()
        if HOLD[0]:
            a("s_waitcnt vmcnt(0)\ns_barrier")
            publish(1)
        L = a.newlabel("G1LN")
        a(f"s_cmp_lg_u32 s{sW}, 0\ns_cbranch_scc1 {L}")
        wait_init(a, 8)
        a(f"v_lshrrev_b32 v8, 2, v0\ns_sub_u32 s{sA}, 11, s{sSh}\nv_lshlrev_b32 v8, s{sA}, v8\nv_and_b32 v9, 3, v0\nv_lshl_add_u32 v8, v9, 7, v8\ns_lshl_b32 s{sA}, s{sJ}, 9\ns_add_u32 s{sA}, s{sA}, {LNF}")
        poll_ge(a, f"buffer_load_dword v9, v8, {WS}, s{sA} offen sc1", [9], 1, "LN", sleep=2)
        if kind == "QK":
            a(f"s_cmp_eq_u32 s{sSh}, 0\ns_cbranch_scc1 {L}\ns_add_u32 s{sA}, s{sA}, {128*128}")
            poll_ge(a, f"buffer_load_dword v9, v8, {WS}, s{sA} offen sc1", [9], 1, "LN", sleep=2)
        if HOLD[0]:
            wait_init(a, 8)
            a(f"s_and_b32 s{sA}, s{sRole}, 31\ns_lshl_b32 s{sA}, s{sA}, 7\ns_add_u32 s{sA}, s{sA}, {CHF + 64}\nv_mov_b32 v8, 0")
            if HOLD[0] == 1:
                publish_now = a.newlabel("PUB")
            poll_ge(a, f"buffer_load_dword v9, v8, {WS}, s{sA} offen sc1", [9], 1, "STG", sleep=8)
        a.label(L)
        a("s_barrier")
        if diag: a("s_memrealtime s[66:67]")
        for i in range(8): xdma1(1, i)
        segment(1, 1)
        a.label(f"G1_LOOP_{kind}")
        segment(0, 2)
        segment(1, 2)
        a(f"s_cmp_lt_u32 s{sN}, s{sEnd}\ns_cbranch_scc1 G1_LOOP_{kind}")
        a.label(f"G1_END_{kind}")
        a.nop(8)
        for j in epilogue(1): j()
        a.wait_vm_all(True)
        a("s_barrier")
        L = a.newlabel("G1F")
        a(f"s_cmp_lg_u32 s{sW}, 0\ns_cbranch_scc1 {L}")
        flag_store(a, f"s{sFl}", 16, 8)
        a.label(L)
        a.vmq = []; a.dsq = []
        a("s_branch G1_DONE")
    a.label("G1_IDLE")
    peek()
    a.wait_vm_all(True)
    report()
    verdict(a)
    a.label("G1_DONE")

def attention(a, diag=False):
    sSeg, sQ, sKm, sVm, sO, sCh, sAt, sCnt = 18, 19, 20, 21, 22, 23, 24, 25
    sCC = 30
    sMask = 40
    c = (128 ** -0.5) * math.log2(math.e)
    a(f"""
    s_mov_b32 s{sCC}, {fbits(c):#x}
    s_mov_b32 s{sCC+1}, {fbits(c):#x}
    v_lshlrev_b32 v4, 4, v0
    v_and_b32 v5, 0x3d, v0
    v_lshlrev_b32 v5, 4, v5
    v_bfe_u32 v6, v0, 1, 1
    v_lshl_add_u32 v5, v6, 3, v5
    v_and_b32 v6, 15, v0
    v_lshrrev_b32 v7, 4, v0
    v_lshlrev_b32 v7, 2, v7
    """)
    for r in range(4):
        a(f"v_add_u32 v8, {r}, v7\nv_cmp_le_u32 s[{sMask+2*r}:{sMask+2*r+1}], v8, v6")
    a(f"""
    s_lshr_b32 s{sA}, s{sRole}, 1
    s_lshl_b32 s{sB}, s{sA}, 1
    s_and_b32 s{sC_}, s{sW}, 1
    s_add_u32 s{sB}, s{sB}, s{sC_}
    s_add_u32 s{sB}, s{sB}, 128
    s_lshl_b32 s{sA}, s{sA}, 2
    s_add_u32 s{sA}, s{sA}, s{sW}
    v_and_b32 v8, 1, v0
    v_lshl_add_u32 v8, v8, 6, s{sA}
    v_mov_b32 v9, s{sB}
    v_cmp_gt_u32 vcc, 2, v0
    s_mov_b32 s{sA}, {G1F}
    s_nop 0
    v_cndmask_b32 v8, v9, v8, vcc
    v_lshlrev_b32 v8, 7, v8
    """)
    poll_ge(a, f"buffer_load_dword v9, v8, {WS}, s{sA} offen sc1", [9], 16, "QKV")
    a(f"""
    s_mov_b32 s{sSeg}, s{sW}
    s_lshl_b32 s{sA}, s{sW}, 5
    s_add_u32 s{sA}, s{sA}, s{sRole}
    s_lshl_b32 s{sQ}, s{sA}, 13
    s_lshl_b32 s{sKm}, s{sA}, 12
    s_add_u32 s{sKm}, s{sKm}, {KMEM}
    s_lshl_b32 s{sVm}, s{sA}, 11
    s_add_u32 s{sVm}, s{sVm}, {VMEM}
    s_lshl_b32 s{sO}, s{sW}, 18
    s_lshl_b32 s{sB}, s{sRole}, 12
    s_add_u32 s{sO}, s{sO}, s{sB}
    s_add_u32 s{sO}, s{sO}, {OIMG}
    s_lshl_b32 s{sCh}, s{sRole}, 7
    s_add_u32 s{sCh}, s{sCh}, {CHF}
    s_lshl_b32 s{sAt}, s{sA}, 7
    s_add_u32 s{sAt}, s{sAt}, {ATF}
    s_mov_b32 s{sCnt}, 0
    v_mov_b32 v10, 0
    """)
    vQ, vK, vV, vKM, vVM = 16, 48, 80, 112, 128
    ONE = 136
    S = lambda qt, kt: 140 + (qt * 3 + kt) * 4
    PX = lambda qt: 164 + qt * 4
    PM = lambda qt: 172 + qt * 4
    L_ = lambda qt: 180 + qt * 4
    O = lambda qt, ft: 188 + (qt * 8 + ft) * 4
    for r in range(4): a(f"v_mov_b32 v{ONE+r}, 0x3f803f80")
    for qt in range(2): a(f"v_mov_b32 v{PM(qt)+1}, 0\nv_mov_b32 v{PM(qt)+2}, 0")
    mf = lambda d, A, B, c_: a(f"v_mfma_f32_16x16x32_bf16 {vr(d,4)}, {vr(A,4)}, {vr(B,4)}, {c_}")
    mf16 = lambda d, A, B, c_: a(f"v_mfma_f32_16x16x16_bf16 {vr(d,4)}, {vr(A,2)}, {vr(B,2)}, {c_}")
    if EARLY[0]:
        for r in range(4): a(f"v_mov_b32 v{vK+r}, -1")
        for qt in range(2):
            a(f"s_add_u32 s{sA}, s{sO}, {15*4*2*128*1024 + qt*128*1024}")
            for i in range(4): a(f"buffer_store_dwordx4 {vr(vK,4)}, v4, {WS}, s{sA} offen offset:{i*1024} sc1")
        a.nop(2)
    a.label("AT_LOOP")
    for (base, img) in ((vK, KIMG), (vQ, QIMG), (vV, VIMG)):
        for hf in range(2):
            a(f"s_add_u32 s{sA}, s{sQ}, {img + hf*4096}")
            for i in range(4):
                a.vm(f"buffer_load_dwordx4 {vr(base+16*hf+4*i,4)}, v4, {WS}, s{sA} offen offset:{i*1024} sc1", ("in", base))
    a.wait_vm(("in", vQ))
    for (qt, kt) in ((0, 0), (1, 0), (1, 1)):
        for s in range(4):
            mf(S(qt, kt), vK + 16 * kt + 4 * s, vQ + 16 * qt + 4 * s, "0" if s == 0 else vr(S(qt, kt), 4))
    a(f"s_add_u32 s{sB}, s{sSeg}, 1")
    if EARLY[0] == 2: a(f"s_min_u32 s{sB}, s{sB}, 61")
    poll_ge(a, f"buffer_load_dword v9, v10, {WS}, s{sCh} offen sc1", [9], f"s{sB}", "CH", sleep=SLEEP[0])
    def kmload():
        for i in range(4): a.vm(f"buffer_load_dwordx4 {vr(vKM+4*i,4)}, v4, {WS}, s{sKm} offen offset:{i*1024} sc1", "km")
        for i in range(4): a.vm(f"buffer_load_dwordx2 {vr(vVM+2*i,2)}, v5, {WS}, s{sKm} offen offset:{i*1024} sc1", "vm")
    if diag: a("s_memrealtime s[72:73]")
    kmload()
    a("v_mov_b32 v11, 0xff800000")
    for (qt, kt) in ((0, 0), (1, 1)):
        for r in range(4):
            a(f"v_cndmask_b32 v{S(qt,kt)+r}, v11, v{S(qt,kt)+r}, s[{sMask+2*r}:{sMask+2*r+1}]")
    a(f"v_max3_f32 v12, v{S(0,0)}, v{S(0,0)+1}, v{S(0,0)+2}\nv_max_f32 v12, v12, v{S(0,0)+3}")
    a(f"v_max3_f32 v14, v{S(1,0)}, v{S(1,0)+1}, v{S(1,0)+2}\nv_max3_f32 v14, v14, v{S(1,0)+3}, v{S(1,1)}")
    a(f"v_max3_f32 v14, v14, v{S(1,1)+1}, v{S(1,1)+2}\nv_max_f32 v14, v14, v{S(1,1)+3}")
    if EARLY[0]:
        a(f"s_cmp_lt_u32 s{sSeg}, {EFROM}\ns_cbranch_scc1 AT_KMOK\ns_mov_b32 s{sD}, 0")
        a.label("AT_KMCHK")
        a("s_waitcnt vmcnt(0)")
        rs = list(range(vKM, vKM + 24))
        a(f"v_max3_u32 v13, v{rs[0]}, v{rs[1]}, v{rs[2]}\nv_max3_u32 v15, v{rs[3]}, v{rs[4]}, v{rs[5]}")
        for k in range(6, 22, 4): a(f"v_max3_u32 v13, v13, v{rs[k]}, v{rs[k+1]}\nv_max3_u32 v15, v15, v{rs[k+2]}, v{rs[k+3]}")
        a(f"v_max3_u32 v13, v13, v{rs[22]}, v{rs[23]}\nv_max_u32 v13, v13, v15\nv_cmp_eq_u32 vcc, -1, v13\ns_cbranch_vccz AT_KMOK")
        a(f"s_add_u32 s{sD}, s{sD}, 1\ns_cmp_gt_u32 s{sD}, {POLL_BOUND}\ns_cbranch_scc1 AT_KMOK")
        keep = list(a.vmq); kmload(); a.vmq = keep
        a("s_branch AT_KMCHK")
        a.label("AT_KMOK")
    a.wait_vm("km")
    for qt in range(2):
        for s in range(4):
            mf(S(qt, 2), vKM + 4 * s, vQ + 16 * qt + 4 * s, "0" if s == 0 else vr(S(qt, 2), 4))
    a.nop(8)
    for qt in range(2):
        a(f"v_max3_f32 v{12+2*qt}, v{12+2*qt}, v{S(qt,2)+2}, v{S(qt,2)+3}")
    for op in ("v_permlane32_swap_b32", "v_permlane16_swap_b32"):
        a(f"v_mov_b32 v13, v12\nv_mov_b32 v15, v14\ns_nop 0\n{op} v12, v13\n{op} v14, v15\nv_max_f32 v12, v12, v13\nv_max_f32 v14, v14, v15")
    a(f"v_mul_f32 v12, s{sCC}, v12\nv_mul_f32 v14, s{sCC}, v14")
    for qt in range(2):
        m = 12 + 2 * qt
        prs = [S(qt, 2) + 2, S(qt, 0), S(qt, 0) + 2] + ([S(qt, 1), S(qt, 1) + 2] if qt else [])
        for r in prs:
            a(f"v_pk_fma_f32 {vr(r,2)}, {vr(r,2)}, s[{sCC}:{sCC+1}], {vr(m,2)} op_sel_hi:[1,1,0] neg_lo:[0,0,1] neg_hi:[0,0,1]")
        for r in prs: a(f"v_exp_f32 v{r}, v{r}\nv_exp_f32 v{r+1}, v{r+1}")
        a.nop(1)
        a(f"v_cvt_pk_bf16_f32 v{PM(qt)}, v{prs[0]}, v{prs[0]+1}\nv_cvt_pk_bf16_f32 v{PM(qt)+3}, v{prs[0]}, v{prs[0]+1}")
        for k, r in enumerate(prs[1:]): a(f"v_cvt_pk_bf16_f32 v{PX(qt)+k}, v{r}, v{r+1}")
    a.wait_vm_all()
    a.nop(2)
    for qt in range(2):
        mf16(L_(qt), ONE, PM(qt), "0")
        for ft in range(8): mf16(O(qt, ft), vVM + 2 * (ft >> 1), PM(qt) + 2 * (ft & 1), "0")
        m2 = mf if qt else mf16
        m2(L_(qt), ONE, PX(qt), vr(L_(qt), 4))
        for ft in range(8): m2(O(qt, ft), vV + 4 * ft, PX(qt), vr(O(qt, ft), 4))
    for qt in range(2):
        if qt: a.nop(4)
        a(f"v_rcp_f32 v12, v{L_(qt)}")
        if qt: a(f"s_add_u32 s{sA}, s{sO}, {128*1024}")
        else: a.nop(1)
        for pr in range(4):
            d = vK + 16 * qt + 4 * pr
            for h_ in range(2):
                for k in range(2):
                    r = O(qt, 2 * pr + h_) + 2 * k
                    a(f"v_pk_mul_f32 {vr(r,2)}, {vr(r,2)}, v[12:13] op_sel_hi:[1,0]")
                    a(f"v_cvt_pk_bf16_f32 v{d+2*h_+k}, v{r}, v{r+1}")
            a.vm(f"buffer_store_dwordx4 {vr(d,4)}, v4, {WS}, s{sA if qt else sO} offen offset:{pr*1024} sc1", "o")
    a(f"s_add_u32 s{sCnt}, s{sCnt}, 1")
    if EARLY[0]: a(f"s_cmp_ge_u32 s{sSeg}, 60\ns_cbranch_scc1 AT_FLAG")
    a.wait_vm_all()
    a.label("AT_FLAG")
    if diag: a("s_memrealtime s[74:75]")
    flag_store(a, f"s{sAt}", f"s{sCnt}", 8)
    a(f"""
    s_add_u32 s{sQ}, s{sQ}, {4*32*8192}
    s_add_u32 s{sKm}, s{sKm}, {4*32*4096}
    s_add_u32 s{sVm}, s{sVm}, {4*32*2048}
    s_add_u32 s{sO}, s{sO}, {4*2*128*1024}
    s_add_u32 s{sSeg}, s{sSeg}, 4
    s_cmp_lt_u32 s{sSeg}, 64
    s_cbranch_scc1 AT_LOOP
    """)
    a.vmq = []; a.dsq = []

def gemm2(a, diag=False):
    sCs, sU, sO, sH_, sX, sN, sPar, sLo, sLast = 18, 19, 20, 21, 22, 23, 24, 26, 25
    srd(a, 12, "Wo", 4096 * 1024)
    srd(a, 48, "w2", 1792 * 1024)
    srd(a, 52, "x", 2048 * 1024)
    srd(a, 56, "out", 2048 * 1024)
    srd(a, 60, "b2", 1024)
    a(f"""
    s_and_b32 s{sCs}, s{sRole}, 15
    s_lshr_b32 s{sU}, s{sRole}, 4
    v_and_b32 v100, 15, v0
    v_lshrrev_b32 v101, 4, v0
    v_and_b32 v102, 3, v0
    v_bfe_u32 v103, v0, 2, 2
    v_lshrrev_b32 v4, 2, v0
    v_lshlrev_b32 v4, 10, v4
    v_lshl_add_u32 v4, v102, 4, v4
    s_lshl_b32 s{sA}, s{sCs}, 6
    v_add_u32 v104, s{sA}, v4
    v_lshl_add_u32 v4, v101, 2, v103
    v_lshlrev_b32 v4, 6, v4
    v_lshl_add_u32 v4, v102, 4, v4
    s_mul_i32 s{sA}, s{sW}, 32768
    v_add_u32 v105, s{sA}, v4
    s_waitcnt lgkmcnt(0)
    """)
    Wo_ = lambda s, T: ar(8 * s + 4 * T, 4)
    VW2 = 144
    W2_ = lambda s, T: vr(VW2 + 8 * s + 4 * T, 4)
    chunks = [("o", c, 8) for c in range(8)] + [("2", c, 8) for c in range(3)] + [("2", 3, 4)]
    a(f"s_lshl_b32 s{sN}, s{sW}, 20\ns_mul_i32 s{sB}, s{sW}, {448*1024}")
    def issue(n):
        m, c, cnt = chunks[n]
        for i in range(cnt):
            a(f"s_add_u32 m0, s{sA}, {(n%4)*8192 + i*1024}\ns_nop 0")
            so = sN if m == "o" else sB
            a.vm(f"buffer_load_dwordx4 v104, {'s[12:15]' if m == 'o' else 's[48:51]'}, s{so} offen lds", ("w", n))
            a(f"s_add_u32 s{so}, s{so}, {16*1024}")
    for n in range(4): issue(n)
    for n, (m, c, cnt) in enumerate(chunks):
        a.wait_vm(("w", n))
        for s_ in range(cnt // 2):
            for T in range(2):
                for p in range(2):
                    base = (8 * (4 * c + s_) + 4 * T + 2 * p)
                    dst = ar(base, 2) if m == "o" else vr(VW2 + base, 2)
                    a.ds(f"ds_read_b64_tr_b16 {dst}, v105 offset:{(n%4)*8192 + (32*s_+16*p)*64 + T*8}")
        a.wait_ds_all()
        if n + 4 < len(chunks): issue(n + 4)
    if diag: a("s_memrealtime s[68:69]")
    vB = 8
    a(f"""
    v_lshlrev_b32 v4, 4, v101
    s_lshl_b32 s{sA}, s{sCs}, 6
    buffer_load_dwordx4 v[16:19], v4, s[60:63], s{sA} offen
    v_and_b32 v7, 7, v0
    v_lshl_add_u32 v6, v7, 10, v4
    v_add_u32 v6, s{sA}, v6
    v_lshlrev_b32 v5, 4, v0
    v_add_u32 v5, 131072, v5
    v_lshl_add_u32 v4, v101, 4, v7
    v_lshlrev_b32 v4, 4, v4
    v_lshrrev_b32 v3, 3, v100
    v_lshl_add_u32 v4, v3, 10, v4
    v_lshlrev_b32 v7, 7, v7
    s_mov_b32 s{sLo}, 0x00ff00ff
    s_mov_b32 s{sLo+1}, 0x00ff00ff
    s_waitcnt vmcnt(0)
    """)
    for k in range(4): a(f"v_lshlrev_b32 v{vB+2*k}, 16, v{16+k}\nv_and_b32 v{vB+2*k+1}, 0xffff0000, v{16+k}")
    a(f"v_min_u32 v16, 27, v0\nv_lshlrev_b32 v16, 7, v16\ns_mov_b32 s{sA}, {G1F + 160*128}")
    poll_ge(a, f"buffer_load_dword v17, v16, {WS}, s{sA} offen sc1", [17], 16, "H")
    a(f"s_mov_b32 s{sPar}, 0")
    a("s_barrier")
    vR = lambda k: 64 + 4 * k
    AC, AO = 24, 128
    def ld(n, sbase):
        if n and n % 2 == 0: a(f"s_add_u32 s{sbase}, s{sbase}, 4096")
        a.vm(f"buffer_load_dwordx4 {vr(vR(n),4)}, v4, {WS}, s{sbase} offen offset:{(n%2)*2048} sc1", ("a", n))
    def mm(n, Wf, first):
        a.wait_vm(("a", n))
        for par, acc in ((0, AC), (1, AO)):
            for T in range(2):
                a(f"v_mfma_f32_16x16x32_bf16 {vr(acc+4*T,4)}, {Wf(2*n+par,T)}, {vr(vR(n),4)}, {'0' if first else vr(acc+4*T,4)}")
    def hpart(su):
        a(f"""
        s_lshr_b32 s{sB}, s{su}, 1
        s_and_b32 s{sC_}, s{su}, 1
        s_lshl_b32 s{sC_}, s{sC_}, 7
        s_mul_i32 s{sH_}, s{sB}, {56*1024}
        s_mul_i32 s{sA}, s{sW}, {14*1024}
        s_add_u32 s{sH_}, s{sH_}, s{sA}
        s_add_u32 s{sH_}, s{sH_}, s{sC_}
        s_add_u32 s{sH_}, s{sH_}, {HIMG}
        """)
        for n in range(7): ld(n, sH_)
        for n in range(7): mm(n, W2_, n == 0)
        a.nop(8)
    NFULL = 256 // NSETS
    a(f"s_add_u32 s{sLast}, s{sU}, {NFULL*NSETS}\ns_cmp_ge_u32 s{sLast}, 256\ns_cselect_b32 s{sB}, {NSETS}, 0\ns_sub_u32 s{sLast}, s{sLast}, s{sB}")
    hpart(sLast)
    for k in range(8): a(f"v_mov_b32 v{56+k}, v{AC+k}\nv_mov_b32 v{136+k}, v{AO+k}")
    a.label("G2_LOOP")
    a(f"s_lshl_b32 s{sX}, s{sU}, 13")
    a(f"buffer_load_dwordx4 v[20:23], v6, s[52:55], s{sX} offen")
    a(f"s_cmp_lg_u32 s{sU}, s{sLast}\ns_cbranch_scc1 G2_H")
    for k in range(8): a(f"v_mov_b32 v{AC+k}, v{56+k}\nv_mov_b32 v{AO+k}, v{136+k}")
    a("s_branch G2_HE")
    a.label("G2_H")
    hpart(sU)
    a.label("G2_HE")
    a(f"""
    s_lshr_b32 s{sB}, s{sU}, 1
    s_and_b32 s{sC_}, s{sU}, 1
    s_lshl_b32 s{sC_}, s{sC_}, 7
    s_lshl_b32 s{sO}, s{sB}, 17
    s_lshl_b32 s{sA}, s{sW}, 15
    s_add_u32 s{sO}, s{sO}, s{sA}
    s_add_u32 s{sO}, s{sO}, s{sC_}
    s_add_u32 s{sO}, s{sO}, {OIMG}
    """)
    a(f"""
    s_lshr_b32 s{sB}, s{sU}, 2
    s_and_b32 s{sA}, s{sB}, 3
    s_lshl_b32 s{sA}, s{sA}, 12
    s_lshl_b32 s{sC_}, s{sW}, 10
    s_add_u32 s{sA}, s{sA}, s{sC_}
    s_add_u32 s{sA}, s{sA}, {ATF}
    s_lshr_b32 s{sB}, s{sB}, 2
    s_add_u32 s{sB}, s{sB}, 1
    """)
    if EARLY[0]:
        for k in range(8): a(f"v_mov_b32 v{40+k}, v{AC+k}\nv_mov_b32 v{48+k}, v{AO+k}")
    poll_ge(a, f"buffer_load_dword v17, v7, {WS}, s{sA} offen sc1", [17], f"s{sB}", "AT", sleep=SLEEP[0])
    if diag: a("s_memrealtime s[72:73]")
    a(f"s_mov_b32 s{sN}, 0")
    a.label("G2_OPART")
    for n in range(16): ld(n, sO)
    for n in range(16): mm(n, Wo_, False)
    a(f"s_lshl_b32 s{sA}, s{sW}, 11\ns_add_u32 s{sA}, s{sA}, s{sPar}\nv_add_u32 v16, s{sA}, v5")
    a.nop(6)
    if EARLY[0]:
        a(f"s_cmp_lt_u32 s{sU}, 240\ns_cbranch_scc1 G2_OOK\nv_cmp_u_f32 vcc, v{AC}, v{AC}\ns_cbranch_vccz G2_OOK")
        a(f"s_add_u32 s{sN}, s{sN}, 1\ns_cmp_gt_u32 s{sN}, 256\ns_cbranch_scc1 G2_OOK")
        for k in range(8): a(f"v_mov_b32 v{AC+k}, v{40+k}\nv_mov_b32 v{AO+k}, v{48+k}")
        a(f"s_sub_u32 s{sO}, s{sO}, {7*4096}\ns_branch G2_OPART")
        a.label("G2_OOK")
    for k in range(8): a(f"v_add_f32_dpp v{AC+k}, v{AO+k}, v{AC+k} row_ror:8 row_mask:0xf bank_mask:0xf")
    if diag: a(f"s_memrealtime s[74:75]\ns_mov_b32 s76, s{sN}")
    a.ds(f"ds_write_b128 v16, {vr(AC,4)}")
    a.ds(f"ds_write_b128 v16, {vr(AC+4,4)} offset:1024")
    a.wait_ds_all()
    a("s_barrier")
    a(f"s_cmp_lg_u32 s{sW}, 0\ns_cbranch_scc1 G2_NEXT")
    for w_ in range(1, 4):
        a.ds(f"ds_read_b128 {vr(56+8*w_,4)}, v16 offset:{w_*2048}", ("r", w_))
        a.ds(f"ds_read_b128 {vr(60+8*w_,4)}, v16 offset:{w_*2048+1024}", ("r", w_))
    for k in range(4):
        a(f"v_lshlrev_b32 v32, 16, v{20+k}\nv_and_b32 v33, 0xffff0000, v{20+k}")
        a(f"v_pk_add_f32 {vr(AC+2*k,2)}, {vr(AC+2*k,2)}, {vr(vB+2*k,2)}")
        a(f"v_pk_add_f32 {vr(AC+2*k,2)}, {vr(AC+2*k,2)}, v[32:33]")
    for w_ in range(1, 4):
        a.wait_ds(("r", w_))
        for k in range(4): a(f"v_pk_add_f32 {vr(AC+2*k,2)}, {vr(AC+2*k,2)}, {vr(56+8*w_+2*k,2)}")
    for k in range(4): a(f"v_cvt_pk_bf16_f32 v{36+k}, v{AC+2*k}, v{AC+2*k+1}")
    a(f"s_mov_b64 exec, s[{sLo}:{sLo+1}]\nbuffer_store_dwordx4 v[36:39], v6, s[56:59], s{sX} offen {OUTF[0]}\ns_mov_b64 exec, -1")
    a.label("G2_NEXT")
    a(f"""
    s_xor_b32 s{sPar}, s{sPar}, 8192
    s_add_u32 s{sU}, s{sU}, {NSETS}
    s_cmp_lt_u32 s{sU}, 256
    s_cbranch_scc1 G2_LOOP
    """)
    a.vmq = []; a.dsq = []
```

```python
import sys
from asm import *
from layout import *
import chain as C
import workers as Wk
NAME = "parallel_sum__memory_aug_recurrent_mem_tr__dense_activation_squared_relu__prompt"
CH = dict(pre_bar=4, v_0=0, v_pre=3, o_pre=2, dlyA=(56, 56), pboth=1, dlyB=12, w1c=12, pst0=1, pbar=1, nrA=3, bound=1 << 16, depA=(2, 2), depB=2, gapA=24, gapB=16, x0=0, xw_only=1, jbar=1, jobs='S', j0=4, jstr=9, jw=2, a_burst=2, r_pre=2, kx_in=5, nt='', pf0=(50, 52, 54, 48), cverd=4)
sDB = 4
sInit, sReady, sMode, sXcc, sTent = 84, 85, 86, 87, 83
sCounted, sLost = 29, 79
sA, sB, sC_, sD = Wk.sA, Wk.sB, Wk.sC_, Wk.sD
WS = Wk.WS
DB = f"s[{sDB}:{sDB+3}]"
ROLE_LDS = 163840 - 16
MODE_BOUND = 2000

def wait_init(a, v=2):
    L = a.newlabel("INIT")
    a(f"s_cmp_lg_u32 s{sInit}, 0\ns_cbranch_scc1 {L}")
    a(f"v_mov_b32 v{v}, {D_INIT}")
    Wk.poll_ge(a, f"buffer_load_dword v{v+1}, v{v}, {DB}, 0 offen sc1", [v + 1], 2 * NINIT, "INIT", sleep=4)
    a(f"s_mov_b32 s{sInit}, 1")
    a.label(L)

def atomic(a, op, off, val, dst, cmp=None):
    a(f"s_mov_b64 exec, 1\nv_mov_b32 v20, {val}\nv_mov_b32 v22, {off}")
    if cmp is not None:
        a(f"v_mov_b32 v21, {cmp}\nbuffer_atomic_cmpswap v[20:21], v22, {DB}, 0 offen sc0")
    else:
        a(f"buffer_atomic_{op} v20, v22, {DB}, 0 offen sc0")
    a(f"s_waitcnt vmcnt(0)\nv_readfirstlane_b32 s{dst}, v20\ns_mov_b64 exec, -1\ns_nop 3")

def claim(a, name, sRes, sOff):
    a.label(f"CLAIM_{name}")
    a(f"s_lshl_b32 s{sC_}, 1, s{sA}")
    atomic(a, "or", f"s{sOff}", f"s{sC_}", sB)
    a.label(f"CLAIM_{name}_R")
    a(f"s_and_b32 s{sD}, s{sB}, s{sC_}\ns_or_b32 s{sB}, s{sB}, s{sC_}\ns_mov_b32 s{sRes}, s{sA}")
    a(f"s_cmp_eq_u32 s{sD}, 0\ns_cbranch_scc1 CLAIM_{name}_E")
    a(f"s_mov_b32 s{sRes}, -1\ns_cmp_eq_u32 s{sB}, -1\ns_cbranch_scc1 CLAIM_{name}_E")
    a(f"s_ff0_i32_b32 s{sA}, s{sB}\ns_branch CLAIM_{name}")
    a.label(f"CLAIM_{name}_E")

def bcast(a, s):
    L = a.newlabel("BC")
    a(f"v_mov_b32 v22, {ROLE_LDS}")
    a(f"s_cmp_lg_u32 s{Wk.sW}, 0\ns_cbranch_scc1 {L}\nv_mov_b32 v20, s{s}\nds_write_b32 v22, v20\ns_waitcnt lgkmcnt(0)")
    a.label(L)
    a(f"s_barrier\nds_read_b32 v20, v22\ns_waitcnt lgkmcnt(0)\nv_readfirstlane_b32 s{s}, v20\ns_barrier")

def gen(P=CH, diag=False, force_slow=False):
    a = Asm()
    def mark(a, word, neg=False):
        if not P.get("marks"): return
        a(f"s_memrealtime s[98:99]\ns_waitcnt lgkmcnt(0)")
        if neg: a("s_not_b32 s98, s98")
        a(f"s_mov_b64 exec, 1\nv_mov_b32 v10, s98\nv_mov_b32 v11, {4*word}\nbuffer_atomic_umax v10, v11, {DB}, 0 offen\ns_mov_b64 exec, -1")
    Wk.SLEEP[0] = P.get('sleep', 1); Wk.PREFETCH[0] = P.get('pf', ()); Wk.EXP[0] = P.get('exp'); Wk.EARLY[0] = P.get('early', 2); Wk.WVERD[0] = P.get('wverd', 0); Wk.HOLD[0] = P.get('hold', 0); Wk.OUTF[0] = P.get('outf', 'sc1')
    sR = Wk.sRole
    a(f"""
    s_cmp_ge_u32 s2, 256
    s_cbranch_scc1 L_END
    s_load_dwordx2 s[{Wk.sWS}:{Wk.sWS+1}], s[0:1], {KA['ws']}
    s_load_dwordx2 s[{sDB}:{sDB+1}], s[0:1], {KA['dbg']}
    s_getreg_b32 s{sXcc}, hwreg(HW_REG_XCC_ID, 0, 4)
    s_mov_b32 s{Wk.sWS+2}, {WS_BYTES}
    s_mov_b32 s{Wk.sWS+3}, 0x20000
    s_mov_b32 s{sDB+2}, 256
    s_mov_b32 s{sDB+3}, 0x20000
    s_mov_b32 s{Wk.sDead}, 0
    s_mov_b32 s{sInit}, 0
    s_mov_b32 s82, 0
    s_mov_b32 s{sLost}, 0
    v_mov_b32 v250, 0
    v_lshrrev_b32 v1, 6, v0
    v_lshlrev_b32 v8, 4, v0
    v_readfirstlane_b32 s{Wk.sW}, v1
    v_and_b32 v0, 63, v0
    v_mov_b32 v12, -1
    v_mov_b32 v13, -1
    v_mov_b32 v14, -1
    v_mov_b32 v15, -1
    """)
    if diag: a("s_memrealtime s[90:91]")
    CX = 9 if force_slow else P.get('cx', 3)
    sOff, sTry, sDie, sWord, sSpec = 18, 19, 80, 81, 82
    def declare(a):
        L = a.newlabel("DECL")
        a(f"s_cmp_lg_u32 s{sB}, -1\ns_cbranch_scc1 {L}")
        a(f"s_mov_b64 exec, 1\nv_mov_b32 v20, 1\nv_mov_b32 v21, 0\nv_mov_b32 v22, {D_MODE}\nbuffer_atomic_cmpswap v[20:21], v22, {DB}, 0 offen\ns_mov_b64 exec, -1")
        a.label(L)
    a(f"""
    s_bfe_u32 s{sR}, s2, 0x50003
    s_waitcnt lgkmcnt(0)
    """)
    if P.get("marks"):
        a(f"s_cmp_lg_u32 s{Wk.sW}, 0\ns_cbranch_scc1 L_MK0\ns_and_b32 s3, s2, 15\ns_cmp_lg_u32 s3, 0\ns_cbranch_scc1 L_MK0")
        mark(a, 4, True)
        a.label("L_MK0")
    a(f"""
    s_mov_b32 s{sTent}, s{sR}
    s_add_u32 s{sDie}, s{sXcc}, {(15 - CX) % 8}
    s_and_b32 s{sDie}, s{sDie}, 7
    s_min_u32 s{sDie}, s{sDie}, 6
    s_lshl_b32 s{sWord}, s{sDie}, 2
    s_add_u32 s{sWord}, s{sWord}, {D_WM}
    s_cmp_eq_u32 s{sXcc}, {CX}
    s_cselect_b32 s{sWord}, {D_MASK}, s{sWord}
    s_and_b32 s3, s2, 0x87
    s_cmp_lg_u32 s3, 0
    s_cbranch_scc1 L_I3
    s_xor_b32 s3, s{Wk.sW}, s{sTent}
    s_bitcmp1_b32 s3, 0
    s_cbranch_scc0 L_I3
    """)
    a(f"s_lshr_b32 s{sA}, s2, 3")
    a(f"s_lshr_b32 s3, s{Wk.sW}, 1\ns_lshl_b32 s{sA}, s{sA}, 1\ns_add_u32 s{sA}, s{sA}, s3\nv_lshlrev_b32 v9, 4, v0")
    a(f"s_lshl_b32 s3, s{sA}, 13\ns_add_u32 s3, s3, {PART}")
    for k in range(8):
        a(f"buffer_store_dwordx4 v[12:15], v9, {WS}, s3 offen offset:{(k&3)*1024} sc1")
        if k == 3: a("s_add_u32 s3, s3, 4096")
    a(f"""
    s_lshl_b32 s3, s{sA}, 10
    s_add_u32 s3, s3, {MBUF}
    buffer_store_dwordx4 v[12:15], v9, {WS}, s3 offen sc1
    s_mul_i32 s3, s{sA}, 2560
    s_add_u32 s3, s3, {FLG}
    v_mov_b32 v16, 0
    v_mov_b32 v17, 0
    v_mov_b32 v18, 0
    v_mov_b32 v19, 0
    buffer_store_dwordx4 v[16:19], v9, {WS}, s3 offen sc1
    buffer_store_dwordx4 v[16:19], v9, {WS}, s3 offen offset:1024 sc1
    s_mov_b64 exec, 0xffffffff
    buffer_store_dwordx4 v[16:19], v9, {WS}, s3 offen offset:2048 sc1
    s_mov_b64 exec, -1
    s_waitcnt vmcnt(0)
    s_mov_b64 exec, 1
    v_mov_b32 v20, 1
    v_mov_b32 v22, {D_INIT}
    buffer_atomic_add v20, v22, {DB}, 0 offen
    s_mov_b64 exec, -1
    L_I3:
    s_cmp_lg_u32 s{Wk.sW}, 0
    s_cbranch_scc1 L_I2
    s_mov_b64 exec, 1
    s_lshl_b32 s3, 1, s{sTent}
    v_mov_b32 v250, s3
    v_mov_b32 v22, s{sWord}
    buffer_atomic_or v250, v22, {DB}, 0 offen sc0
    s_mov_b64 exec, -1
    L_I2:
    s_cmp_lg_u32 s{sXcc}, {CX}
    s_cbranch_scc1 L_NOSPEC
    s_mov_b32 s{sSpec}, 1
    s_branch L_CHAIN
    L_CLOST:
    s_waitcnt vmcnt(0)
    s_cmp_lg_u32 s{Wk.sW}, 0
    s_cbranch_scc1 L_ROLE
    s_mov_b32 s{sA}, s{sTent}
    s_mov_b32 s{sOff}, {D_MASK}
    """)
    claim(a, "A", sR, sOff)
    a(f"s_cmp_eq_u32 s{sR}, -1\ns_cbranch_scc1 L_WCLAIM")
    declare(a)
    a("s_branch L_ROLE")
    a.label("L_NOSPEC")
    if P.get("pf0"):
        a(f"s_xor_b32 s3, s{Wk.sW}, s{sTent}\ns_bitcmp1_b32 s3, 0\ns_cbranch_scc0 L_PF")
        a(f"s_load_dwordx4 s[48:51], s[0:1], {KA['Wq']}\ns_load_dwordx4 s[52:55], s[0:1], {KA['Wv']}\ns_mov_b32 s42, 0x400000\ns_mov_b32 s43, 0x20000")
        a(f"v_lshlrev_b32 v13, 7, v0\ns_lshr_b32 s3, s{Wk.sW}, 1\ns_add_u32 s3, s3, s2\ns_and_b32 s3, s3, 255\ns_lshl_b32 s3, s3, 14\ns_add_u32 s44, s3, 8192\ns_waitcnt lgkmcnt(0)")
        for p in P["pf0"]:
            a(f"s_mov_b32 s40, s{p}\ns_mov_b32 s41, s{p+1}\nbuffer_load_dword v252, v13, s[40:43], s3 offen\nbuffer_load_dword v252, v13, s[40:43], s44 offen")
        a.label("L_PF")
    a(f"s_lshl_b32 s{sR}, s{sDie}, 5\ns_add_u32 s{sR}, s{sR}, s{sTent}\ns_mov_b32 s{sSpec}, 1\ns_branch L_WORK")
    a.label("L_WLOST")
    a("s_waitcnt vmcnt(0) lgkmcnt(0)")
    a(f"s_cmp_lg_u32 s{Wk.sW}, 0\ns_cbranch_scc1 L_ROLE2")
    a.label("L_WCLAIM")
    a(f"s_mov_b32 s{sOff}, s{sDie}\ns_mov_b32 s{sTry}, 0\ns_mov_b32 s{sA}, s{sTent}")
    a.label("L_WNEXT")
    a(f"s_cmp_ge_u32 s{sOff}, 7\ns_cselect_b32 s{sB}, 7, 0\ns_sub_u32 s{sOff}, s{sOff}, s{sB}")
    a(f"s_cmp_ge_u32 s{sOff}, 7\ns_cselect_b32 s{sB}, 7, 0\ns_sub_u32 s{sOff}, s{sOff}, s{sB}")
    a(f"s_lshl_b32 s{sOff}, s{sOff}, 2\ns_add_u32 s{sOff}, s{sOff}, {D_WM}")
    claim(a, "W", sR, sOff)
    a(f"s_sub_u32 s{sOff}, s{sOff}, {D_WM}\ns_lshr_b32 s{sOff}, s{sOff}, 2")
    a(f"s_cmp_eq_u32 s{sR}, -1\ns_cbranch_scc0 L_WGOT")
    a(f"s_add_u32 s{sOff}, s{sOff}, 1\ns_add_u32 s{sTry}, s{sTry}, 1\ns_mov_b32 s{sA}, 0\ns_cmp_lt_u32 s{sTry}, 7\ns_cbranch_scc1 L_WNEXT")
    atomic(a, "cmpswap", D_MODE, 2, sB, cmp=0)
    a(f"s_mov_b32 s{sA}, 0\ns_mov_b32 s{sOff}, {D_MASK}")
    claim(a, "B", sR, sOff)
    a("s_branch L_ROLE")
    a.label("L_WGOT")
    a(f"s_lshl_b32 s{sOff}, s{sOff}, 5\ns_add_u32 s{sR}, s{sR}, s{sOff}\ns_add_u32 s{sR}, s{sR}, 32")
    def verdict(a):
        L = a.newlabel("VERD")
        a(f"s_cmp_eq_u32 s{sSpec}, 0\ns_cbranch_scc1 {L}\ns_mov_b32 s{sSpec}, 0")
        a(f"v_readfirstlane_b32 s{sB}, v250\ns_nop 3\ns_lshr_b32 s{sB}, s{sB}, s{sTent}\ns_and_b32 s{sB}, s{sB}, 1")
        bcast(a, sB)
        a(f"s_cmp_lg_u32 s{sB}, 0\ns_cbranch_scc1 L_WLOST")
        a.label(L)
    a.label("L_ROLE")
    a.label("L_ROLE2")
    bcast(a, sR)
    a(f"s_cmp_lt_u32 s{sR}, 32\ns_cbranch_scc1 L_CHAIN")
    a(f"s_cmp_eq_u32 s{sR}, -1\ns_cbranch_scc1 L_FIN")
    a(f"s_waitcnt vmcnt(0)\ns_sub_u32 s{sR}, s{sR}, 32")
    a.label("L_WORK")
    if diag: a("s_memrealtime s[70:71]\ns_waitcnt lgkmcnt(0)\ns_mov_b32 s100, s70\ns_add_u32 s101, s16, 32")
    if diag: a("s_mov_b32 s64, 0\ns_mov_b32 s66, 0\ns_mov_b32 s68, 0\ns_mov_b32 s72, 0")
    Wk.gemm1(a, wait_init, verdict, sInit, diag)
    if diag: a("s_memtime s[78:79]")
    if P.get("marks"):
        a(f"s_cmp_lg_u32 s{Wk.sW}, 0\ns_cbranch_scc1 L_MK2\ns_and_b32 s3, s{sR}, 7\ns_cmp_lg_u32 s3, 0\ns_cbranch_scc1 L_MK2")
        mark(a, 8)
        a.label("L_MK2")
    if diag: a("s_memrealtime s[92:93]")
    wait_init(a)
    a(f"s_cmp_ge_u32 s{sR}, 192\ns_cbranch_scc1 L_FIN\ns_cmp_lt_u32 s{sR}, 160\ns_cbranch_scc1 L_G2\ns_sub_u32 s{sR}, s{sR}, 160")
    Wk.attention(a, diag)
    a("s_branch L_FIN")
    a.label("L_G2")
    Wk.gemm2(a, diag)
    if P.get("marks"):
        a(f"s_waitcnt vmcnt(0)\ns_cmp_lg_u32 s{Wk.sW}, 0\ns_cbranch_scc1 L_FIN")
        mark(a, 9)
    a("s_branch L_FIN")
    a.label("L_CHAIN")
    if diag: a("s_memrealtime s[70:71]\ns_waitcnt lgkmcnt(0)\ns_mov_b32 s100, s70\ns_mov_b32 s101, s16")
    def first_chunk(a, part, share):
        L = a.newlabel("CV")
        a(f"s_cmp_eq_u32 s{sSpec}, 0\ns_cbranch_scc1 {L}")
        if part == 0:
            a(f"s_cmp_lg_u32 s{Wk.sW}, 0\ns_cbranch_scc1 {L}_B")
            a(f"v_readfirstlane_b32 s{sB}, v250\ns_lshl_b32 s3, 1, s{sTent}\ns_nop 2\ns_and_b32 s{sLost}, s{sB}, s3\ns_or_b32 s{sB}, s{sB}, s3")
            a(f"s_cmp_lg_u32 s{sLost}, 0\ns_cbranch_scc1 {L}_B")
            declare(a)
            a.label(L + "_B")
        if share:
            a(f"s_mov_b32 s{sSpec}, 0")
            if part: a("s_barrier")
            bcast(a, sLost)
            a(f"s_cmp_lg_u32 s{sLost}, 0\ns_cbranch_scc1 L_CLOST")
        a.label(L)
    sChf, sG1 = 88, 89
    def g1addr(a, lane):
        a(f"v_and_b32 v11, 3, {lane}\nv_bfe_u32 v10, {lane}, 2, 1\nv_lshlrev_b32 v10, 13, v10\nv_lshl_add_u32 v10, v11, 7, v10")
    def set_ready(a, v):
        for perm in ("quad_perm:[1,0,3,2]", "quad_perm:[2,3,0,1]", "row_half_mirror"):
            a(f"s_nop 1\nv_min_u32_dpp v{v}, v{v}, v{v} {perm} row_mask:0xf bank_mask:0xf")
        a(f"s_nop 0\nv_readfirstlane_b32 s{sReady}, v{v}\ns_nop 3\ns_lshl_b32 s{sReady}, s{sReady}, 2")
    def peek(a):
        a(f"s_lshl_b32 s{sChf}, s{C.sH}, 7\ns_add_u32 s{sChf}, s{sChf}, {CHF}")
        a(f"s_lshr_b32 s{sG1}, s{C.sH}, 1\ns_lshl_b32 s{sG1}, s{sG1}, 9\ns_add_u32 s{sG1}, s{sG1}, {G1F}")
        a(f"v_mov_b32 v124, -1\nv_mov_b32 v125, -1\nv_mov_b32 v126, -1\nv_mov_b32 v127, -1")
        a(f"s_lshl_b32 s3, s{C.sH}, 2\ns_add_u32 s3, s3, s{Wk.sW}\ns_lshl_b32 s3, s3, 10\ns_add_u32 s3, s3, {KMEM - C.MISC + EFROM*32*4096}")
        for sg in range(EFROM, 64):
            a(f"buffer_store_dwordx4 v[124:127], v{C.vM16}, {WS}, s3 offen sc1\ns_add_u32 s3, s3, {32*4096}")
        g1addr(a, "v0")
        a(f"v_mov_b32 v24, 0\nbuffer_load_dwordx2 v[26:27], v24, {DB}, 0 offen sc1\nbuffer_load_dword v25, v10, {WS}, s{sG1} offen sc1")
    C.prologue_a(a, P, True)
    C.prologue_b(a, P, first_chunk, peek)
    a(f"s_waitcnt vmcnt(0)\nv_readfirstlane_b32 s{sMode}, v26\nv_readfirstlane_b32 s3, v27")
    set_ready(a, 25)
    a(f"s_cmp_ge_u32 s3, {2 * NINIT}\ns_cselect_b32 s{sInit}, 1, s{sInit}\ns_cselect_b32 s{sReady}, s{sReady}, 0")
    wait_init(a, 10)
    if P.get("hold"):
        a(f"s_cmp_lg_u32 s{Wk.sW}, 0\ns_cbranch_scc1 L_STG\ns_add_u32 s3, s{sChf}, 64")
        Wk.flag_store(a, "s3", 1, 10)
        a.label("L_STG")
    a(f"s_cmp_lg_u32 s{sMode}, 0\ns_cbranch_scc1 L_MODEOK\nv_mov_b32 v10, {D_MODE}")
    Wk.poll_ge(a, f"buffer_load_dword v11, v10, {DB}, 0 offen sc1", [11], 1, "MODE")
    a(f"v_readfirstlane_b32 s{sMode}, v11\ns_nop 3")
    a.label("L_MODEOK")
    if P.get("marks"):
        a(f"s_cmp_lg_u32 s{Wk.sW}, 1\ns_cbranch_scc1 L_MK1")
        mark(a, 5); mark(a, 6, True)
        a.label("L_MK1")
    if diag:
        for k in range(20, 30): a(f"s_mov_b32 s{C.sTS+k}, 0")
        a("s_memrealtime s[92:93]\ns_memtime s[96:97]")
    stubs = []
    sPend = 29
    def ready(a, w, tag, first):
        if not first and w != 2: return
        L = a.newlabel("RDY")
        if first: a(f"s_mov_b32 s{C.sStep}, 0\ns_mov_b32 s{sPend}, 0")
        else:
            a(f"s_cmp_eq_u32 s{sPend}, 0\ns_cbranch_scc1 {L}_P\ns_mov_b32 s{sPend}, 0")
            set_ready(a, C.vMpub)
            a.label(L + "_P")
        a(f"s_add_u32 s{C.sT0}, s{C.sStep}, 1\ns_min_u32 s{C.sT0}, s{C.sT0}, 63\ns_cmp_ge_u32 s{C.sT0}, s{sReady}\ns_cbranch_scc1 {L}_S")
        a.label(L)
        stubs.append((L, first))
    def look(a):
        L = a.newlabel("LOOK")
        a(f"s_add_u32 s{C.sT0}, s{C.sStep}, 6\ns_min_u32 s{C.sT0}, s{C.sT0}, 63\ns_cmp_lt_u32 s{C.sT0}, s{sReady}\ns_cbranch_scc1 {L}")
        a(f"v_lshrrev_b32 v10, 3, v{C.vL8}")
        g1addr(a, "v10")
        a(f"buffer_load_dword v{C.vMpub}, v10, {WS}, s{sG1} offen sc1\ns_mov_b32 s{sPend}, 1")
        a.label(L)
    def flag(a):
        if P.get("noflag"): return
        if P.get("marks"):
            L = a.newlabel("MK")
            a(f"s_and_b32 s{C.sT0}, s{C.sStep}, 15\ns_cmp_lg_u32 s{C.sT0}, 1\ns_cbranch_scc1 {L}\ns_cmp_lg_u32 s{C.sH}, 5\ns_cbranch_scc1 {L}")
            a(f"s_memrealtime s[98:99]\ns_lshr_b32 s{C.sT0}, s{C.sStep}, 4\ns_lshl_b32 s{C.sT0}, s{C.sT0}, 2\ns_add_u32 s{C.sT0}, s{C.sT0}, 40\ns_waitcnt lgkmcnt(0)")
            a(f"s_mov_b64 exec, 1\nv_mov_b32 v10, s98\nv_mov_b32 v11, s{C.sT0}\nbuffer_store_dword v10, v11, {DB}, 0 offen\ns_mov_b64 exec, -1")
            a.label(L)
        FL = a.newlabel("FLAG")
        FE = P.get("fevery", 4)
        a(f"s_and_b32 s{C.sT0}, s{C.sStep}, {FE-1}\ns_cmp_ge_u32 s{C.sStep}, {P.get('fall', 56)}\ns_cselect_b32 s{C.sT0}, {1 % FE}, s{C.sT0}\ns_cmp_lg_u32 s{C.sT0}, {1 % FE}\ns_cbranch_scc1 {FL}")
        a(f"s_sub_u32 s{C.sT0}, s{C.sStep}, 1\ns_max_i32 s{C.sT0}, s{C.sT0}, 0")
        if P.get("early", 1): a(f"s_cmp_gt_u32 s{C.sStep}, {EFROM}\ns_cselect_b32 s{C.sT0}, s{C.sStep}, s{C.sT0}")
        Wk.flag_store(a, f"s{sChf}", f"s{C.sT0}", 10); a.vmq.pop()
        a.label(FL)
    def done(a, w):
        a("s_barrier" if P.get("early", 1) else "s_waitcnt vmcnt(0)\ns_barrier")
        if w == 0: Wk.flag_store(a, f"s{sChf}", 64, 10)
        if w == 1: mark(a, 7)
        a.vmq = []
        a("s_branch L_FIN")
        for L, first in stubs:
            a.label(L + "_S")
            a(f"s_add_u32 s{C.sT0}, s{C.sStep}, 1\ns_min_u32 s{C.sT0}, s{C.sT0}, 63\ns_lshr_b32 s{C.sT0}, s{C.sT0}, 2\ns_add_u32 s{C.sT0}, s{C.sT0}, 1")
            a(f"v_lshrrev_b32 v10, 3, v{C.vL8}")
            g1addr(a, "v10")
            Wk.poll_ge(a, f"buffer_load_dword v11, v10, {WS}, s{sG1} offen sc1", [11], f"s{C.sT0}", "KV", sleep=0)
            set_ready(a, 11)
            a(f"s_branch {L}")
        stubs.clear()
    P = dict(P, hooks=dict(ready=ready, flag=flag, done=done, look=look))
    a(f"s_cmp_eq_u32 s{sMode}, 1\ns_cbranch_scc0 L_SLOW")
    for st in ("", "sc1"):
        if st: a.label("L_SLOW")
        t = "s" if st else "f"
        for w in range(1, 4): a(f"s_cmp_eq_u32 s{C.sW}, {w}\ns_cbranch_scc1 CH_W{w}{t}")
        for w in range(4):
            a.label(f"CH_W{w}{t}")
            C.loop(a, w, st, P, diag)
    a.label("L_FIN")
    if diag:
        a("s_memrealtime s[94:95]\ns_memtime s[98:99]\ns_waitcnt lgkmcnt(0)")
        a(f"s_lshl_b32 s3, s2, 2\ns_add_u32 s3, s3, s{Wk.sW}\ns_lshl_b32 s3, s3, 7\ns_add_u32 s3, s3, {DBG}")
        vals = [C.sTS + 20 + k for k in range(10)] + [90, 92, 94, 96, 98, sR, sXcc, Wk.sDead, 100, 101, 72, 74, 76, 78]
        for i, sg in enumerate(vals):
            a(f"v_mov_b32 v20, s{sg}\nv_mov_b32 v21, {4*i}\nbuffer_store_dword v20, v21, {WS}, s3 offen")
    a("s_waitcnt vmcnt(0)")
    a.label("L_END")
    return a.text()

def wrap(body):
    ref = open(f"cdna_kernels/{NAME}.s.ref").read().split("\n")
    head = [l for l in ref if l.startswith(";") and "@launch" not in l]
    return "\n".join(head) + f"""
; @launch grid=(256,1,1) block=(256,1,1) lds=163840
.amdgcn_target "amdgcn-amd-amdhsa--gfx950"
.text
.globl {NAME}_kernel
.p2align 8
.type {NAME}_kernel,@function
{NAME}_kernel:
{body}s_endpgm
.section .rodata,"a"
.p2align 6
.amdhsa_kernel {NAME}_kernel
  .amdhsa_next_free_vgpr 512
  .amdhsa_next_free_sgpr 102
  .amdhsa_accum_offset 256
  .amdhsa_group_segment_fixed_size 0
  .amdhsa_kernarg_size 120
  .amdhsa_user_sgpr_count 2
  .amdhsa_user_sgpr_kernarg_segment_ptr 1
  .amdhsa_system_sgpr_workgroup_id_x 1
.end_amdhsa_kernel
"""
if __name__ == "__main__":
    import ast
    P = dict(CH)
    if len(sys.argv) > 2: P.update(ast.literal_eval(sys.argv[2]))
    t = gen(P)
    hz = check(t)
    for h in hz[:12]: print(h)
    out = sys.argv[1] if len(sys.argv) > 1 else f"cdna_kernels/{NAME}.s"
    open(out, "w").write(wrap(t))
    print("lines", len(t.split("\n")), "hazards", len(hz))
```

```python
from asm import *
from layout import *
import math

MISC = 131072
M_OFF = 0
X_OFF = 8192
KX_OFF = 16384
O_OFF = 13568
XS = 1088
sWS = 8
sTMP = 12
sH, sW, sStep = 16, 17, 18
sPst, sPld, sTag, sMpub, sMpoll, sMclr = 19, 20, 21, 22, 23, 24
sVx, sKx, sKm, sVm = 25, 26, 27, 28
sC = 30
sT0, sT1, sT2, sT3 = 32, 33, 34, 35
sCnt = 36
sLO8 = 38
sDBG = 40
sTS = 44
vIDX, vKx, vM16, vRing, vPst, vMpub, vXw, vXr, vOr = 1, 2, 3, 4, 5, 6, 7, 8, 9
vL8 = 0
vNEG = 10
vVA0 = 12
RA_OFF = 12544
vVX = 16
vPM = 24
vACC = 28
vA = 44
vRING = 76
vT = 124
vWK = 128
NRING = 6
WQ_SLOT = [2, 3, 1, 0]
def ringreg(i): return vRING + 8 * (i % NRING)
KXREG = [vRING + 8*4, vRING + 8*5, vRING + 0, vRING + 8]
def kx(kt, s): return KXREG[kt*2 + (s >> 1)] + 4 * (s & 1)
vXF = vRING + 16
def wv(t, s): return 8 * (t * 8 + s)
def wo(d, s): return 128 + 8 * (d * 4 + s)
def wk(t, s): return vWK + 8 * (t * 8 + s)

def wq_lds_imm(i):
    t, s = i >> 3, i & 7
    return WQ_SLOT[s >> 1] * 8192 + ((s & 1) * 2 + t) * 2048

def stamp(a, k, diag):
    if diag: a(f"s_memtime s[{sTS+2*k}:{sTS+2*k+1}]")

def prologue(a, P, diag=False):
    a(f"v_lshrrev_b32 v10, 6, v0\nv_and_b32 v0, 63, v0\nv_readfirstlane_b32 s{sW}, v10\ns_nop 3")
    prologue_a(a, P, True); prologue_b(a, P)

def prologue_a(a, P, dma):
    WNT[0] = P.get("wnt", "")
    a(f"""
    s_load_dwordx4 s[48:51], s[0:1], {KA['Wq']}
    s_load_dwordx4 s[52:55], s[0:1], {KA['Wv']}
    s_load_dwordx2 s[56:57], s[0:1], {KA['mem0']}
    """)
    a(f"""
    v_and_b32 v100, 15, v0            ; n
    v_lshrrev_b32 v101, 4, v0         ; g
    v_and_b32 v102, 3, v0             ; c
    v_bfe_u32 v103, v0, 2, 2          ; r''
    """)
    a(f"""
    s_lshl_b32 s{sT2}, s{sH}, 8
    s_lshl_b32 s{sT3}, s{sW}, 6
    s_add_u32 s{sT2}, s{sT2}, s{sT3}
    v_lshrrev_b32 v10, 2, v0
    """)
    for k in range(4):
        a(f"v_xor_b32 v11, {k & 2}, v10\nv_lshlrev_b32 v11, 13, v11\nv_xor_b32 v104, {2*(k&1)}, v102\nv_lshl_add_u32 v11, v104, 4, v11\nv_add_u32 v{vSQ+k}, s{sT2}, v11")
        a(f"v_mov_b32 v{vSRC+k}, v{vSQ+k}\nv_mov_b32 v{vSRC+4+k}, v{vSQ+k}")
    a(f"""
    s_lshl_b32 s{sB0}, s{sW}, 15
    s_lshl_b32 s{sB1}, s{sW}, 13
    s_add_u32 s{sB1}, s{sB1}, {MISC}
    s_mov_b32 s62, 0x400000
    s_mov_b32 s63, 0x20000
    s_getpc_b64 s[{sSub}:{sSub+1}]
    s_add_u32 s{sSub}, s{sSub}, 12
    s_addc_u32 s{sSub+1}, s{sSub+1}, 0
    s_branch CH_SUBE
    """)
    for i in range(8):
        a(f"s_mov_b32 m0, s64\ns_add_u32 s64, s64, 1024\nbuffer_load_dwordx4 v{vSRC+i}, s[60:63], s65 offen {WNT[0]} lds\ns_add_u32 s65, s65, s66")
    a(f"s_setpc_b64 s[{sRet}:{sRet+1}]")
    a.label("CH_SUBE")
    a("s_waitcnt lgkmcnt(0)")
    for c in range(4 if P.get('cverd', 0) == 0 else 5): w_issue(a, c)
    a(f"""
    v_and_b32 v10, 2, v0
    v_cmp_eq_u32 vcc, 0, v10
    v_mov_b32 v11, 0xeeee
    v_mov_b32 v104, 0x4444
    v_cndmask_b32 v{vIDX}, v11, v104, vcc
    v_lshlrev_b32 v10, 4, v0
    v_add_u32 v{vM16}, {MISC}, v10
    s_lshl_b32 s{sT0}, s{sW}, 15
    v_add_u32 v{vRing}, s{sT0}, v10
    v_lshrrev_b32 v11, 2, v0
    v_lshlrev_b32 v11, 1, v11
    v_and_b32 v104, 1, v0
    v_add_u32 v11, v11, v104
    v_lshlrev_b32 v11, 4, v11
    v_add_u32 v{vOr}, {MISC+O_OFF}, v11
    v_lshlrev_b32 v10, 14, v101
    v_lshrrev_b32 v11, 3, v100
    v_lshl_add_u32 v10, v11, 13, v10
    v_and_b32 v11, 7, v100
    v_lshl_add_u32 v{vPst}, v11, 4, v10
    v_lshlrev_b32 v10, 4, v102
    v_bfe_u32 v11, v0, 2, 1
    v_lshl_add_u32 v10, v11, 3, v10
    v_lshrrev_b32 v11, 1, v101
    v_lshl_add_u32 v10, v11, 2, v10
    v_and_b32 v11, 1, v101
    v_lshl_add_u32 v{vMpub}, v11, 8, v10
    v_add_u32 v{vKx}, {KX_OFF}, v{vM16}
    v_mul_u32_u24 v10, {XS}, v101
    v_lshl_add_u32 v10, v100, 3, v10
    s_lshl_b32 s{sT0}, s{sW}, 8
    s_add_u32 s{sT0}, s{sT0}, {MISC+X_OFF}
    v_add_u32 v{vXw}, s{sT0}, v10
    v_mul_u32_u24 v10, {XS}, v102
    v_lshrrev_b32 v11, 2, v0
    v_lshl_add_u32 v10, v11, 3, v10
    v_add_u32 v{vXr}, {MISC+X_OFF}, v10
    v_bfe_u32 v10, v100, 1, 2
    v_and_b32 v11, 1, v100
    v_lshlrev_b32 v11, 4, v11
    v_mov_b32 v104, 0x3f80
    v_lshlrev_b32 v104, v11, v104
    """)
    for k in range(4):
        a(f"v_cmp_eq_u32 vcc, {k}, v10\ns_nop 1\nv_cndmask_b32 v{112+k}, 0, v104, vcc")
    a(f"s_mov_b32 s{sLO8}, 0x00ff00ff\ns_mov_b32 s{sLO8+1}, 0x00ff00ff\ns_mov_b32 s{sB1M}, 0xcccccccc\ns_mov_b32 s{sB1M+1}, 0xcccccccc\ns_mov_b32 s{sONE}, 0x3f803f80")
    c = (128 ** -0.5) * math.log2(math.e)
    import struct
    cb = struct.unpack("<I", struct.pack("<f", c))[0]
    a(f"s_mov_b32 s{sC}, {cb:#x}\ns_mov_b32 s{sC+1}, {cb:#x}")
    a(f"""
    s_lshl_b32 s{sT2}, s{sH}, 17
    s_lshl_b32 s{sT3}, s{sW}, 8
    s_add_u32 s{sT2}, s{sT2}, s{sT3}
    v_and_b32 v105, 1, v101            ; g&1
    v_lshrrev_b32 v106, 1, v101        ; g>>1
    v_and_b32 v107, 1, v103            ; r&1
    v_lshrrev_b32 v108, 1, v103        ; r>>1
    v_lshlrev_b32 v10, 5, v105
    v_lshl_add_u32 v10, v106, 2, v10
    v_lshl_add_u32 v10, v108, 4, v10
    v_add_u32 v109, v10, v107
    v_lshlrev_b32 v10, 4, v105
    v_lshl_add_u32 v10, v106, 2, v10
    v_add_u32 v110, v10, v107
    """)
    for k in range(2):
        a(f"v_lshl_add_u32 v10, v105, 2, 0\nv_xor_b32 v10, v10, v100\nv_xor_b32 v10, {8*k}, v10\nv_lshlrev_b32 v11, 10, v101\nv_lshl_add_u32 v10, v10, 4, v11\nv_add_u32 v{vSO+k}, s{sT2}, v10")
    for mb in range(2):
        for t in range(2):
            a(f"v_add_u32 v10, {2*mb}, v109\nv_lshlrev_b32 v11, 1, v105\nv_xor_b32 v10, v10, v11\nv_lshlrev_b32 v10, 6, v10")
            a(f"v_xor_b32 v11, {t}, v108\nv_lshl_add_u32 v10, v11, 5, v10\nv_lshl_add_u32 v10, v102, 3, v10")
            a(f"v_add_u32 v{vB1+mb*2+t}, s{sB0}, v10\nv_add_u32 v{vB1+4+mb*2+t}, s{sB1}, v10")
    for d in range(4):
        a(f"v_lshl_add_u32 v11, v105, 1, v107\nv_xor_b32 v11, {d}, v11\nv_lshlrev_b32 v10, 8, v110\nv_lshl_add_u32 v10, v11, 6, v10")
        a(f"v_lshl_add_u32 v10, v108, 5, v10\nv_lshl_add_u32 v10, v102, 3, v10")
        a(f"v_add_u32 v{vB2+d}, s{sB0}, v10\nv_add_u32 v{vB2+4+d}, s{sB1}, v10")
    a(f"""
    s_mov_b32 s12, s56
    s_mov_b32 s13, s57
    s_mov_b32 s14, 8192
    s_mov_b32 s15, 0x20000
    v_lshrrev_b32 v10, 2, v100
    v_lshlrev_b32 v10, 1, v10
    v_and_b32 v11, 1, v0
    v_add_u32 v10, v10, v11            ; row
    v_lshlrev_b32 v10, 10, v10
    v_bfe_u32 v11, v0, 1, 1
    v_lshl_add_u32 v10, v11, 5, v10
    v_lshl_add_u32 v10, v101, 3, v10
    s_lshl_b32 s{sT2}, s{sW}, 8        ; ksteps 2w, 2w+1
    v_add_u32 v10, s{sT2}, v10
    buffer_load_dwordx2 v[16:17], v10, s[12:15], 0 offen
    buffer_load_dwordx2 v[18:19], v10, s[12:15], 0 offen offset:64
    buffer_load_dwordx2 v[12:13], v10, s[12:15], 0 offen offset:128
    buffer_load_dwordx2 v[14:15], v10, s[12:15], 0 offen offset:192
    """)

order = ["k"] * 4 + ["v"] * 4 + ["o"] * 4 + ["q"] * 4
srd = {"q": 60, "k": 64, "v": 68, "o": 72}
WNT = ['']
sB0, sB1 = 76, 77
sSub, sRet = 68, 70
vSRC, vSQ, vSO, vB1, vB2 = 76, 84, 88, 90, 116
def w_issue(a, c):
    m = order[c]; cc = c & 3; slot = c % 5
    if cc == 0:
        src = {"q": 48, "k": 50, "v": 52, "o": 54}[m]
        a(f"s_mov_b32 s60, s{src}\ns_mov_b32 s61, s{src+1}\ns_mov_b32 s65, 0")
        if c in (0, 8, 12): a(f"s_mov_b32 s66, {4096 if m == 'o' else 131072}")
        if c in (8, 12):
            for k in range(8): a(f"v_mov_b32 v{vSRC+k}, v{vSO + (k >> 2) if m == 'o' else vSQ + (k & 3)}")
    a(f"s_add_u32 s64, s{sB0}, {slot*8192}" if slot < 4 else f"s_mov_b32 s64, s{sB1}")
    a(f"s_swappc_b64 s[{sRet}:{sRet+1}], s[{sSub}:{sSub+1}]")
    a.vmq += [("w", c)] * 8

def prologue_b(a, P, first_chunk=None, peek=None):
    issue = lambda c: w_issue(a, c)
    CV = P.get("cverd", 0)
    a.vmq = [("w", c) for c in range(4 if CV == 0 else 5) for _ in range(8)]
    for c in range(16):
        m = order[c]; cc = c & 3; slot = c % 5
        a.wait_vm(("w", c))
        if c == 0:
            if first_chunk: first_chunk(a, 0, CV == 0)
            if CV == 0: issue(4)
        so, sb = (slot * 8192, 0) if slot < 4 else (0, 4)
        if m != "o":
            for s_ in range(2):
                for t in range(2):
                    for mm in range(4):
                        imm = so + (64 * s_ + 8 * (mm >> 1)) * 64
                        s = 2 * cc + s_
                        if m == "k": dst = vr(wk(t, s) + 2 * mm, 2)
                        elif m == "v": dst = ar(wv(t, s) + 2 * mm, 2)
                        else: dst = vr(vA + (s_ * 2 + t) * 8 + 2 * mm, 2)
                        a.ds(f"ds_read_b64_tr_b16 {dst}, v{vB1 + sb + (mm & 1) * 2 + t} offset:{imm}")
        else:
            for d in range(4):
                for mm in range(4):
                    imm = so + (8 * (mm >> 1) + 2 * (mm & 1)) * 256
                    a.ds(f"ds_read_b64_tr_b16 {ar(wo(d, cc) + 2*mm, 2)}, v{vB2 + sb + d} offset:{imm}")
        a.wait_ds_all()
        if m == "q":
            for k in range(8):
                a.ds(f"ds_write_b128 v{vRing}, {vr(vA + 4*k, 4)} offset:{WQ_SLOT[cc]*8192 + k*1024}")
            a.wait_ds_all()
        if CV and c == CV and first_chunk: first_chunk(a, 1, True)
        if c + 5 < 16: issue(c + 5)
        if c == P.get('peek', 13) and peek: peek(a)
        if c == P.get("help_at", -1):
            lo, per = P["help"]
            a(f"s_lshl_b32 s{sT0}, s{sH}, 2\ns_add_u32 s{sT0}, s{sT0}, s{sW}\nv_lshlrev_b32 v10, 7, v0")
            for rep in range(P.get("help_rep", 2)):
                if rep: a(f"s_add_u32 s{sT0}, s{sT0}, {128 // P.get('help_rep', 2) + 1}\ns_and_b32 s{sT0}, s{sT0}, 127")
                a(f"s_mul_i32 s{sT1}, s{sT0}, {per*8192}\ns_add_u32 s{sT1}, s{sT1}, {lo*8192}")
                for k in range(per):
                    a(f"buffer_load_dword v11, v10, s[60:63], s{sT1} offen")
                    if k + 1 < per: a(f"s_add_u32 s{sT1}, s{sT1}, 8192")
    a("s_barrier")
    a(f"""
    ds_write_b128 v{vM16}, v[112:115] offset:{RA_OFF}
    v_lshlrev_b32 v{vL8}, 3, v0
    s_waitcnt lgkmcnt(0)
    """)

def seg_offsets(a, w, P):
    a(f"""
    s_and_b32 s{sT0}, s{sStep}, 3
    s_lshl_b32 s{sT1}, s{sT0}, 18
    s_lshl_b32 s{sT2}, s{sH}, 7
    s_add_u32 s{sPst}, s{sT1}, s{sT2}
    s_add_u32 s{sPst}, s{sPst}, {PART + w*65536}
    s_lshl_b32 s{sT3}, s{sH}, 13
    s_add_u32 s{sPld}, s{sT1}, s{sT3}
    s_add_u32 s{sPld}, s{sPld}, {PART - MISC + (w&1)*4096}
    s_add_u32 s{sT0}, s{sStep}, 3
    s_and_b32 s{sT0}, s{sT0}, 3
    s_lshl_b32 s{sT1}, s{sT0}, 18
    s_mov_b32 s{sTag}, 0
    s_lshr_b32 s{sT2}, s{sH}, 3
    s_lshl_b32 s{sT2}, s{sT2}, 11
    s_and_b32 s{sT3}, s{sH}, 1
    s_lshl_b32 s{sT3}, s{sT3}, 9
    s_add_u32 s{sT2}, s{sT2}, s{sT3}
    s_bfe_u32 s{sT3}, s{sH}, 0x20001
    s_lshl_b32 s{sT3}, s{sT3}, 6
    s_add_u32 s{sT2}, s{sT2}, s{sT3}
    s_lshl_b32 s{sT1}, s{sT0}, 13
    s_add_u32 s{sMclr}, s{sT1}, s{sT2}
    s_add_u32 s{sMclr}, s{sMclr}, {MBUF + (w&1)*1024}
    s_add_u32 s{sT0}, s{sStep}, 1
    s_and_b32 s{sT0}, s{sT0}, 3
    s_lshl_b32 s{sT1}, s{sT0}, 13
    s_add_u32 s{sMpub}, s{sT1}, s{sT2}
    s_add_u32 s{sMpub}, s{sMpub}, {MBUF + (w&1)*1024}
    s_add_u32 s{sMpoll}, s{sT1}, {MBUF - MISC + w*2048}
    s_lshl_b32 s{sT0}, s{sStep}, 5
    s_add_u32 s{sT0}, s{sT0}, s{sH}
    s_lshl_b32 s{sT1}, s{sT0}, 13
    s_add_u32 s{sVx}, s{sT1}, {VIMG - MISC + w*2048}
    s_add_u32 s{sKx}, s{sT1}, {KIMG - MISC + 32*8192}
    s_lshl_b32 s{sT1}, s{sT0}, 12
    s_add_u32 s{sKm}, s{sT1}, {KMEM - MISC + w*1024}
    s_lshl_b32 s{sT1}, s{sT0}, 11
    s_add_u32 s{sVm}, s{sT1}, {VMEM + w*512}
    """)

sRP, sRM, sMprev, sCP1, sCP2, sCM1, sVmPrev = 76, 77, 78, 79, 80, 81, 82
sKb, sStage = 75, 74
sONE = 42
sB1M = 40
def init_incr(a, w):
    a(f"""
    s_mov_b32 s{sRP}, 0
    s_mov_b32 s{sRM}, 8192
    s_mov_b32 s{sCP1}, s{sPst}
    s_mov_b32 s{sCP2}, s{sPld}
    s_sub_u32 s{sCM1}, s{sMpub}, 8192
    s_mov_b32 s{sMprev}, s{sCM1}
    """)
NP = [1]
def advance(a, w):
    a(f"""
    s_add_u32 s{sVx}, s{sVx}, {32*8192}
    s_add_u32 s{sKx}, s{sKx}, {32*8192}
    s_add_u32 s{sKm}, s{sKm}, {32*4096}
    s_sub_u32 s{sMclr}, s{sMprev}, {(w&1)*1024}
    s_mov_b32 s{sMprev}, s{sMpub}
    s_add_u32 s{sRM}, s{sRM}, 8192
    s_and_b32 s{sRM}, s{sRM}, 0x7fff
    s_add_u32 s{sMpub}, s{sRM}, s{sCM1}
    s_add_u32 s{sStep}, s{sStep}, 1
    """)
    if NP[0] == 1: a(f"s_xor_b32 s{sTag}, s{sTag}, 1")
    else:
        a(f"""
        s_add_u32 s{sRP}, s{sRP}, 0x40000
        s_and_b32 s{sRP}, s{sRP}, {NP[0]*0x40000 - 1}
        s_add_u32 s{sPst}, s{sRP}, s{sCP1}
        s_add_u32 s{sPld}, s{sRP}, s{sCP2}
        s_bfe_u32 s{sTag}, s{sStep}, {0x10000 + NP[0].bit_length() - 1}
        """)

def korder(w):
    own = [2 * w, 2 * w + 1]
    rest = [(2 * w + 2 + k) % 8 for k in range(6)]
    seq = [(0, own[0]), (1, own[0]), (0, own[1]), (1, own[1])] + [(0, s) for s in rest] + [(1, s) for s in rest]
    return own, rest, seq

ABL = [""]; NT = [""]
def ring_fill(a, w, i):
    if "r" in ABL[0] and i >= NRING: return
    t, s = korder(w)[2][i]
    r = ringreg(i); imm = WQ_SLOT[s >> 1] * 8192 + ((s & 1) * 2 + t) * 2048
    a.ds(f"ds_read_b128 {vr(r,4)}, v{vRing} offset:{imm}", ("ring", i))
    a.ds(f"ds_read_b128 {vr(r+4,4)}, v{vRing} offset:{imm+1024}", ("ring", i))

def kx_dma(a, w, i):
    a(f"s_add_u32 m0, s{sKb}, {i*1024}")
    a(f"s_add_u32 s{sT0}, s{sKx}, {i*1024}")
    a.vm(f"buffer_load_dwordx4 v{vM16}, s[{sWS}:{sWS+3}], s{sT0} offen {NT[0]} lds", "kx")

class Stream:
    def __init__(self): self.ops = []; self.fill = {}
    def add(self, f, pre=None): self.ops.append((f, pre)); return len(self.ops) - 1
    def at(self, g, f): self.fill.setdefault(g, []).append(f)
    def emit(self):
        for g, (f, pre) in enumerate(self.ops):
            if pre: pre()
            f()
            for x in self.fill.pop(g, []): x()
        assert not self.fill, self.fill.keys()

def loop(a, w, st, P, diag=False):
    tag = f"{w}{'s' if st else 'f'}"
    WS = f"s[{sWS}:{sWS+3}]"
    smf = lambda d, A, B: a(f"v_smfmac_f32_16x16x64_bf16 {vr(d,4)}, {vr(A,4)}, {B}, v{vIDX}")
    mf = lambda d, A, B, c: a(f"v_mfma_f32_16x16x32_bf16 {vr(d,4)}, {vr(A,4)}, {vr(B,4)}, {c}")
    mf16 = lambda d, A, B, c: a(f"v_mfma_f32_16x16x16_bf16 {vr(d,4)}, {vr(A,2)}, {vr(B,2)}, {c}")
    I = lambda t: (lambda: a(t))
    Af = lambda s: vA + 4 * s
    q = lambda t: vACC + 8 * t
    k_ = lambda t: vACC + 8 * t + 4
    vacc = lambda t: (vVA0, vPM)[t]
    own, rest, seq = korder(w)
    ABL[0] = P.get("abl", ""); NP[0] = P.get("np", 1); NT[0] = P.get("nt", "nt")
    SL = P.get("stamps", ["start", "qkend", "xbar", "scores", "pv", "obar", "opend", "pub", "bdone"])
    def ST(n):
        if diag and n in SL:
            if P.get("trace"): a(f"s_memrealtime s[{sTS+2*SL.index(n)}:{sTS+2*SL.index(n)+1}]")
            else: stamp(a, SL.index(n), diag)
    vVM = vVA0 + 2
    def zero_acc():
        if w == 3:
            a(f"v_mov_b32 v124, -1\nv_lshrrev_b32 v125, 8, v{vL8}\nv_bfe_u32 v126, v{vL8}, 7, 1\nv_lshl_add_u32 v125, v125, 2, v126\nv_bfe_u32 v126, v{vL8}, 1, 6\nv_lshl_add_u32 v125, v125, 8, v126")
        for r in range(16): a(f"v_mov_b32 v{vACC+r}, 0")
        for t in range(2):
            for r in range(4): a(f"v_mov_b32 v{vacc(t)+r}, 0")
    def mwrite():
        for o in own:
            a.ds(f"ds_write_b128 v{vM16}, {vr(Af(o),4)} offset:{M_OFF + o*1024}", "mw")
    hook = P.get("hooks")
    if hook: hook["ready"](a, w, tag, True)
    vxl = [lambda: a.vm(f"buffer_load_dwordx4 {vr(vVX,4)}, v{vM16}, {WS}, s{sVx} offen {NT[0]}", "vx"),
           lambda: a.vm(f"buffer_load_dwordx4 {vr(vVX+4,4)}, v{vM16}, {WS}, s{sVx} offen offset:1024 {NT[0]}", "vx")]
    a(f"s_mov_b32 s{sKb}, {MISC+KX_OFF}\ns_lshl_b32 s{sKx}, s{sH}, 13\ns_add_u32 s{sKx}, s{sKx}, {KIMG - MISC}")
    kx_dma(a, w, 2 * w); kx_dma(a, w, 2 * w + 1)
    for r in range(8): a(f"v_mov_b32 v{Af(own[0])+r}, v{(16, 17, 18, 19, 12, 13, 14, 15)[r]}")
    a(f"s_mov_b32 s{sStep}, 0\ns_mov_b32 s{sKb}, {MISC+KX_OFF+8192}")
    seg_offsets(a, w, P)
    if P.get("kxA"): kx_dma(a, w, 2 * w); kx_dma(a, w, 2 * w + 1)
    a(f"s_mov_b32 s{sVmPrev}, s{sKm}\ns_sub_u32 s{sMclr}, s{sMclr}, {(w&1)*1024}")
    init_incr(a, w)
    a(f"v_mov_b32 v{vVX}, -1\nv_mov_b32 v{vVX+1}, -1\nv_mov_b32 v{vVX+2}, -1\nv_mov_b32 v{vVX+3}, -1")
    a.ds(f"ds_write_b128 v{vOr}, {vr(vVX,4)} offset:{w*512}")
    for i in range(NRING): ring_fill(a, w, i)
    zero_acc()
    a(f"s_waitcnt vmcnt(0)"); a.vmq = []
    a.wait_ds_all(True)
    LB = [Af(o) for o in own]
    loadB = lambda k: a(f"buffer_load_dwordx4 {vr(LB[k],4)}, v{vM16}, {WS}, s{sMpoll} offen offset:{k*1024} sc1")
    NS = P["depB"]
    def retryB():
        a.label(f"CH_RBRETRY_{tag}")
        loadB(0); loadB(1)
        if diag: a(f"s_add_u32 s{sTS+21}, s{sTS+21}, 1")
        a(f"s_add_u32 s{sCnt}, s{sCnt}, 1")
        a(f"s_cmp_gt_u32 s{sCnt}, {P['bound']}\ns_cbranch_scc1 CH_RBOK_{tag}\ns_branch CH_RB_{tag}")
    a(f"s_mov_b32 s{sCnt}, 0")
    for k in range(8): a(f"v_min_u32 v{LB[0]+k}, 0xfffffffe, v{LB[0]+k}")
    a.label(f"CH_RB_{tag}")
    ST("B_w0")
    a.dsq = []
    r_ = [LB[0] + k for k in range(8)]
    a(f"s_waitcnt vmcnt({2 * NS - 1})")
    a(f"v_max3_u32 v10, v{r_[0]}, v{r_[1]}, v{r_[2]}")
    a(f"v_max_u32 v10, v10, v{r_[3]}")
    a.ds(f"ds_write_b128 v{vM16}, {vr(LB[0],4)} offset:{M_OFF + own[0]*1024}", "mw")
    a(f"s_waitcnt vmcnt({2 * NS - 2})")
    a(f"v_max3_u32 v10, v10, v{r_[4]}, v{r_[5]}")
    a(f"v_max3_u32 v10, v10, v{r_[6]}, v{r_[7]}")
    a.ds(f"ds_write_b128 v{vM16}, {vr(LB[1],4)} offset:{M_OFF + own[1]*1024}", "mw")
    a(f"v_cmp_eq_u32 vcc, -1, v10")
    a(f"s_cbranch_vccnz CH_RBRETRY_{tag}" if not P.get("free") else "s_nop 0")
    a.label(f"CH_RBOK_{tag}")
    if diag:
        ST("bdone")
        a("s_waitcnt lgkmcnt(0)")
        a(f"s_cmp_eq_u32 s{sStep}, 0")
        a(f"s_cbranch_scc1 CH_NOACC_{tag}")
        for k in range(8):
            a(f"s_sub_u32 s{sT0}, s{sTS+2*k+2}, s{sTS+2*k}")
            a(f"s_add_u32 s{sTS+22+k}, s{sTS+22+k}, s{sT0}")
        if P.get("trace"):
            a(f"s_cmp_eq_u32 s{sStep}, {P['trace']}")
            for k, dst in enumerate((83, 84, 85, 86, 87, 88, 89, 100, 101)):
                a(f"s_cselect_b32 s{dst}, s{sTS+2*k}, s{dst}")
        a.label(f"CH_NOACC_{tag}")
        if w == 3 and P.get("steptime"):
            a(f"s_memrealtime s[{sT2}:{sT2+1}]\ns_lshl_b32 s{sT0}, s{sH}, 6\ns_add_u32 s{sT0}, s{sT0}, s{sStep}\ns_lshl_b32 s{sT0}, s{sT0}, 2\ns_add_u32 s{sT0}, s{sT0}, {DBG + 0x40000}\ns_waitcnt lgkmcnt(0)")
            a(f"v_mov_b32 v10, s{sT2}\nv_mov_b32 v11, 0\nbuffer_store_dword v10, v11, {WS}, s{sT0} offen")
            a(f"s_memtime s[{sT2}:{sT2+1}]\ns_add_u32 s{sT0}, s{sT0}, 0x10000\ns_waitcnt lgkmcnt(0)\nv_mov_b32 v10, s{sT2}\nbuffer_store_dword v10, v11, {WS}, s{sT0} offen")
    ST("start")
    a.vmq = ["stale"] * (2 * NS - 2) + (["dbg", "dbg"] if diag and w == 3 and P.get("steptime") else [])
    S = Stream()
    vs = [(t, s) for s in own + rest for t in range(2)]
    def vsm(S, pre=None):
        t, s = vs.pop(0)
        return S.add(lambda: smf(vacc(t), Af(s), ar(wv(t, s), 8)), pre)
    gq = {}
    aread = lambda s: a.ds(f"ds_read_b128 {vr(Af(s),4)}, v{vM16} offset:{M_OFF + s*1024}", ("A", s))
    NB = P["pre_bar"]
    def bar_and_reads():
        a.wait_ds("mw")
        ST("mbar0")
        a("s_barrier")
        ST("mbar1")
        for s in rest[:P["a_burst"]]: aread(s)
    xread = lambda sg: [a.ds(f"ds_read_b64_tr_b16 {vr(vXF+4*sg+2*p,2)}, v{vXr} offset:{(sg&1)*512 + p*256 + (sg>>1)*128}", ("X", sg)) for p in range(2)]
    for i in range(16):
        t, s = seq[i]
        def pre(i=i, s=s):
            a.wait_ds(("A", s))
            if i in (4, 7, 10, 13): ST(f"q{i}")
            a.wait_ds(("ring", i))
        if i == 4:
            for n in range(4): vsm(S)
        gq[i] = S.add(lambda t=t, s=s, i=i: smf(q(t), Af(s), vr(ringreg(i), 8)), pre)
        S.add(lambda t=t, s=s: smf(k_(t), Af(s), vr(wk(t, s), 8)))
    GB = P["pre_bar"] - 1
    S.at(GB, bar_and_reads)
    kxread = lambda kt, s: a.ds(f"ds_read_b128 {vr(kx(kt,s),4)}, v{vKx} offset:{(kt*4+s)*1024}", "kx")
    def half_fill(i, h):
        t, s = seq[i]
        r = ringreg(i) + 4 * h; imm = WQ_SLOT[s >> 1] * 8192 + ((s & 1) * 2 + t) * 2048 + h * 1024
        a.ds(f"ds_read_b128 {vr(r,4)}, v{vRing} offset:{imm}", ("ring", i))
    reads = [(GB + 1, lambda s=s: aread(s)) for s in rest[P["a_burst"]:]]
    ringr = [(gq[i - NRING], lambda i=i, h=h: half_fill(i, h)) for i in range(NRING, 16) for h in range(2)]
    npre = P["r_pre"]
    for n in range(npre): S.at(max(ringr[n][0], min(n + 1, GB)), ringr[n][1])
    if "r" not in ABL[0]: reads += ringr[npre:]
    if "k" not in ABL[0]: reads += [(gq[10 + n // 2], lambda n=n: kxread(n >> 2, n & 3)) for n in range(P["kx_in"])]
    g = GB + 1
    for (e, f) in reads:
        g = max(g, e)
        S.at(min(g, 35), f); g += 1
    def post(t, r0):
        return [I(f"v_add_f32 v{q(t)}, v{q(t)}, v{q(t)+2}"), I(f"v_add_f32 v{q(t)+1}, v{q(t)+1}, v{q(t)+3}"),
                I(f"v_add_f32 v{k_(t)}, v{k_(t)}, v{k_(t)+2}"), I(f"v_add_f32 v{k_(t)+1}, v{k_(t)+1}, v{k_(t)+3}"),
                I(f"v_cvt_pk_bf16_f32 v{r0}, v{q(t)}, v{q(t)+1}"), I(f"v_cvt_pk_bf16_f32 v{r0+1}, v{k_(t)}, v{k_(t)+1}"),
                lambda: a.ds(f"ds_write_b64 v{vXw}, {vr(r0,2)} offset:{t*128}", "xw")]
    p0 = post(0, vACC + 6)
    g0 = gq[10] + 2
    S.at(gq[10], lambda: a.nop(2)); S.at(gq[10] + 1, lambda: a.nop(2))
    g0 += P.get("p0off", 0)
    if "p" not in ABL[0] and not P.get("pboth"):
        for n in range(6): S.at(g0 + n, p0[n])
        if not P.get("xw2"): S.at(g0 + 5 + P.get("p0w", 0), p0[6])
    vONE = vACC
    if not P.get("one_late") and not P.get("pboth"):
        for n in range(4): S.at(g0 + 6 + n, I(f"v_mov_b32 v{vONE+n}, s{sONE}"))
    late = {}
    if P["jobs"] == "S" and "j" not in ABL[0]:
        jobs = [lambda: a.vm(f"buffer_store_dwordx4 {vr(vVX,4)}, v{vM16}, {WS}, s{sVmPrev} offen sc1", "exp"), vxl[0], vxl[1],
                lambda: kx_dma(a, w, 2 * w), lambda: kx_dma(a, w, 2 * w + 1)]
        if P.get("kxA"): jobs = jobs[:3] + [None] * 2
        if w == 3: jobs.append(lambda: a.vm(f"buffer_store_dword v124, v125, {WS}, s{sMclr} offen {st}", "clr"))
        if hook and w == P.get("fw", 0): jobs.append(lambda: hook["flag"](a))
        if hook and w == 2: S.at(P["j0"] + P["jw"] * w + P["jstr"] // 2, lambda: hook["look"](a))
        for n, jb in enumerate(jobs):
            if jb is None: continue
            g = P["j0"] + P["jstr"] * n + P["jw"] * w
            if n == 5: g = P["j0"] + P["jstr"] * (2 if w else 1) + P["jw"] * w + P["jstr"] // 2
            if n == 6: g = P["j0"] + P["jstr"] + P["jw"] * w + P["jstr"] // 2
            if g < 36: S.at(g, jb)
            else: late.setdefault(g - 36 + 2, []).append(jb)
    S.at(gq[12], I(f"s_add_u32 s{sMpoll}, s{sRM}, {MBUF - MISC + w*2048}"))
    if 35 not in S.fill: S.at(35, lambda: a.nop(1))
    S.emit()
    ST("qkend")
    T0, T1, Tm = vACC + 8, vACC + 12, vT
    def score(S, T, sg):
        A = {T0: kx(0, sg), T1: kx(1, sg), Tm: vXF + 4 * sg}[T]
        return S.add(lambda: mf(T, A, vXF + 4 * sg, "0" if sg == 0 else vr(T, 4)), lambda: a.wait_ds(("X", sg)))
    p1 = post(1, vACC + 4)
    S = Stream()
    if P.get("pboth"):
        a(f"v_pk_add_f32 {vr(q(0),2)}, {vr(q(0),2)}, {vr(q(0)+2,2)}\nv_pk_add_f32 {vr(k_(0),2)}, {vr(k_(0),2)}, {vr(k_(0)+2,2)}")
        p0[4](); p0[5]()
        if not P.get("xw2"): p0[6]()
        a.nop(2 if P.get("xw2") else 1)
    else: a.nop(6)
    a(f"v_pk_add_f32 {vr(q(1),2)}, {vr(q(1),2)}, {vr(q(1)+2,2)}\nv_pk_add_f32 {vr(k_(1),2)}, {vr(k_(1),2)}, {vr(k_(1)+2,2)}")
    for n in range(4, 6): p1[n]()
    if P.get("xw2"): a.ds(f"ds_write2_b64 v{vXw}, {vr(vACC+6,2)}, {vr(vACC+4,2)} offset0:0 offset1:16", "xw")
    else: p1[6]()
    for n in range(P["v_pre"]):
        g = vsm(S)
        if P["kx_in"] + n < 8: S.at(g, lambda n=n: kxread((P["kx_in"] + n) >> 2, (P["kx_in"] + n) & 3))
    assert P["kx_in"] + P["v_pre"] >= 8
    def xbar1():
        a.wait_ds("xw")
        a("s_barrier"); ST("xbar"); xread(0)
    g = vsm(S, xbar1)
    S.at(g, lambda: xread(1))
    S.at(vsm(S), lambda: xread(2)); S.at(vsm(S), lambda: xread(3))
    ones = list(range(4)) if P.get("one_late") or P.get("pboth") else []
    while vs:
        gl = vsm(S)
        if ones: S.at(gl, I(f"v_mov_b32 v{vONE+ones.pop(0)}, s{sONE}"))
    for g, l_ in late.items():
        for jb in l_: S.at(g, jb)
    S.at(gl, lambda: (a.wait_vm("stale"), a.wait_ds("kx"), ST("vdone")))
    m, t_ = vT, 11
    gs = [score(S, T, sg) for T in (T0, T1, Tm) for sg in range(4)]
    va = [I(f"v_add_f32 v{vacc(t)+k}, v{vacc(t)+k}, v{vacc(t)+k+2}") for t in range(2) for k in range(2)]
    for n in range(4): S.at(gs[n], lambda: a.nop(1))
    S.at(gs[4], va[0]); S.at(gs[4], va[1]); S.at(gs[5], va[2]); S.at(gs[5], va[3])
    S.at(gs[6], I(f"v_cvt_pk_bf16_f32 v{vVM}, v{vacc(0)}, v{vacc(0)+1}"))
    S.at(gs[7], I(f"v_cvt_pk_bf16_f32 v{vVM+1}, v{vacc(1)}, v{vacc(1)+1}"))
    S.at(gl, I(f"s_cmp_ge_u32 s{sStep}, 63\ns_cbranch_scc1 CH_DONE_{tag}"))
    S.at(gs[8], I(f"v_max3_f32 v10, v{T0}, v{T0+1}, v{T0+2}\nv_mov_b32 v{vPM+1}, 0\ns_nop 1"))
    S.at(gs[9], I(f"v_max_f32 v10, v10, v{T0+3}\nv_mov_b32 v{vPM+2}, 0\ns_nop 1"))
    S.at(gs[10], I(f"v_max3_f32 v10, v10, v{T1}, v{T1+1}"))
    S.at(gs[11], I(f"v_max3_f32 v10, v10, v{T1+2}, v{T1+3}"))
    S.emit()
    ST("scores")
    oacc = lambda d: vRING + 4 * d
    zq = list(range(16))
    z = lambda n: [a(f"v_mov_b32 v{vRING+zq.pop(0)}, 0") for _ in range(n)]
    z(7)
    a(f"v_max3_f32 v{m}, v10, v{Tm+2}, v{Tm+3}")
    a(f"v_mov_b32 v{t_}, v{m}")
    z(2)
    a(f"v_permlane32_swap_b32 v{m}, v{t_}")
    a(f"v_max_f32 v{m}, v{m}, v{t_}")
    a(f"v_mov_b32 v{t_}, v{m}")
    z(2)
    a(f"v_permlane16_swap_b32 v{m}, v{t_}")
    a(f"v_max_f32 v{m}, v{m}, v{t_}")
    a(f"v_mul_f32 v10, s{sC}, v{m}")
    pf = lambda r: a(f"v_pk_fma_f32 {vr(r,2)}, {vr(r,2)}, s[{sC}:{sC+1}], v[10:11] op_sel_hi:[1,1,0] neg_lo:[0,0,1] neg_hi:[0,0,1]")
    ex = lambda r: a(f"v_exp_f32 v{r}, v{r}")
    aX, aY, aL = vA, vA + 4, vA + 24
    vPX = vACC + 4
    pf(Tm + 2); pf(T0); ex(Tm + 2); ex(Tm + 3); pf(T0 + 2); pf(T1); pf(T1 + 2)
    a(f"v_cvt_pk_bf16_f32 v{vPM}, v{Tm+2}, v{Tm+3}")
    a(f"v_cvt_pk_bf16_f32 v{vPM+3}, v{Tm+2}, v{Tm+3}")
    ex(T0); ex(T0 + 1)
    mf16(aL, vONE, vPM, "0")
    ex(T0 + 2); ex(T0 + 3)
    mf16(aX, vVM, vPM, "0")
    ex(T1); ex(T1 + 1)
    mf16(aY, vVM, vPM + 2, "0")
    ex(T1 + 2); ex(T1 + 3)
    a(f"v_cvt_pk_bf16_f32 v{vPX}, v{T0}, v{T0+1}")
    a(f"v_cvt_pk_bf16_f32 v{vPX+1}, v{T0+2}, v{T0+3}")
    a(f"v_cvt_pk_bf16_f32 v{vPX+2}, v{T1}, v{T1+1}")
    a(f"v_cvt_pk_bf16_f32 v{vPX+3}, v{T1+2}, v{T1+3}")
    a.wait_vm("vx")
    a.nop(2 if "j" in ABL[0] else 1)
    mf(aL, vONE, vPX, vr(aL, 4)); z(2)
    mf(aX, vVX, vPX, vr(aX, 4)); z(2)
    mf(aY, vVX + 4, vPX, vr(aY, 4))
    ST("pv")
    z(1); a.nop(1)
    a(f"v_rcp_f32 v10, v{aL}")
    a.nop(3)
    vOW = vA + 8
    for r in range(4):
        if r == 2: a.nop(1)
        a(f"v_pk_mul_f32 {vr(aX+2*r,2)}, {vr(aX+2*r,2)}, v[10:11] op_sel_hi:[1,0]")
    for r in range(4):
        a(f"v_cvt_pk_bf16_f32 v{vOW+r}, v{aX+2*r}, v{aX+2*r+1}")
    if P.get("otag"): a(f"v_and_or_b32 v{vOW}, v{vOW}, -2, s{sTag}")
    a(f"s_not_b64 exec, s[{sB1M}:{sB1M+1}]")
    a.ds(f"ds_write_b128 v{vOr}, {vr(vOW,4)} offset:{w*512}", "ow")
    a("s_mov_b64 exec, -1")
    vOF = lambda s: vA + 12 + 4 * s
    a.nop(1)
    for r in range(4):
        a(f"v_mov_b32_dpp v{vOF(w)+r}, v{vOW+r} quad_perm:[0,1,0,1] row_mask:0xf bank_mask:0xf")
    a.nop(2)
    assert not zq
    S = Stream()
    orest = [(w + 1 + k) % 4 for k in range(3)]
    def obar():
        if not P.get("otag"): a.wait_ds_all()
        a("s_barrier")
        ST("obar")
        for s in orest: a.ds(f"ds_read_b128 {vr(vOF(s),4)}, v{vOr} offset:{s*512}", ("O", s))
        a(f"s_add_u32 s{sT0}, s{sPst}, 4096")
    XW = vXF + 4 * w
    sel = lambda d, f, dst=vVX: f"v_cndmask_b32 v{dst+d}, v{f}, v{XW+d}, s[{sB1M}:{sB1M+1}]"
    dpp = lambda d: f"v_mov_b32_dpp v{10+d}, v{vVM+d} quad_perm:[2,3,2,3] row_mask:0xf bank_mask:0xf"
    pack = [I(dpp(0) + "\n" + sel(0, vVM)), I(dpp(1) + "\n" + sel(1, vVM + 1)), I(sel(2, 10)), I(sel(3, 11))]
    for d in range(4):
        g = S.add(lambda d=d: smf(oacc(d), vOF(w), ar(wo(d, w), 8)), obar if d == P["o_pre"] else None)
        S.at(g, pack[d])
    if P["o_pre"] == 4: S.at(g, obar)
    vST = vRING + 16
    go = [S.add(lambda d=d, s=s: smf(oacc(d), vOF(s), ar(wo(d, s), 8)), lambda s=s: a.wait_ds(("O", s)))
          for (d, s) in ([(d, s) for s in orest for d in (0, 1)] + ([(d, s) for d in (2, 3) for s in orest] if P.get("dmaj") else [(d, s) for s in orest for d in (2, 3)]))]
    if P.get("otag"):
        f_ = [vOF(s_) for s_ in orest]
        ochk = [f"v_bitop3_b32 v10, v{f_[0]}, v{f_[1]}, s{sTag} bitop3:0x7e", f"v_bitop3_b32 v10, v10, v{f_[2]}, s{sTag} bitop3:0xf6",
                "v_and_b32 v10, 1, v10", "v_cmp_ne_u32 vcc, 0, v10"]
        S.ops[go[0]] = (S.ops[go[0]][0], lambda: (a.label(f"CH_OGO_{tag}"), a.wait_ds(("O", orest[0]))))
        S.at(go[2], I(ochk[0])); S.at(go[4], I(ochk[1])); S.at(go[5], I(ochk[2] + "\n" + ochk[3] + f"\ns_cbranch_vccnz CH_OREDO_{tag}"))
    cv = lambda d, k: I(f"v_cvt_pk_bf16_f32 v{vST+2*d+k}, v{oacc(d)+2*k}, v{oacc(d)+2*k+1}")
    tg = lambda dp: I(f"v_and_or_b32 v{vST+4*dp}, v{vST+4*dp}, -2, s{sTag}")
    pst = lambda dp: a.vm(f"buffer_store_dwordx4 {vr(vST+4*dp,4)}, v{vPst}, {WS}, s{sT0 if dp else sPst} offen {st}", "pst")
    if P.get("pst0", 0) == 0:
        S.at(go[6], lambda: a.nop(6)); S.at(go[6], cv(0, 0)); S.at(go[7], cv(0, 1)); S.at(go[8], tg(0)); S.at(go[9], cv(1, 0)); S.at(go[10], cv(1, 1))
        S.at(go[10], lambda: pst(0))
    elif P["pst0"] == 1:
        S.at(go[6], lambda: a.nop(6)); S.at(go[6], cv(0, 0)); S.at(go[6], cv(0, 1)); S.at(go[7], cv(1, 0)); S.at(go[7], cv(1, 1)); S.at(go[7], tg(0))
        S.at(go[7], lambda: pst(0))
    else:
        S.at(go[6], lambda: a.nop(6))
        for f in (cv(0, 0), cv(0, 1), cv(1, 0), cv(1, 1), tg(0), lambda: pst(0)): S.at(go[6], f)
    if P.get("dmaj"):
        S.at(go[9], lambda: a.nop(3)); S.at(go[10], lambda: a.nop(3)); S.at(go[10], cv(2, 0))
    S.emit()
    if P.get("dmaj"):
        cv(2, 1)(); tg(1)(); a.nop(6); cv(3, 0)(); cv(3, 1)(); pst(1)
    else:
        a.nop(7 if P.get('pst0', 0) else 6)
        cv(2, 0)(); cv(2, 1)(); cv(3, 0)(); cv(3, 1)(); tg(1)(); pst(1)
    ST("opend")
    LA = [Af(rest[k]) for k in range(4)]
    vRA, vRD = Af(rest[4]), Af(rest[5])
    def issueA():
        for k in range(4): a(f"buffer_load_dwordx4 {vr(LA[k],4)}, v{vM16}, {WS}, s{sPld} offen offset:{k*1024} sc1")
    def adv():
        a(f"s_mov_b32 s{sCnt}, 0\ns_mov_b32 s{sVmPrev}, s{sKm}")
        advance(a, w)
        if hook: hook["ready"](a, w, tag, False)
    def chores():
        zero_acc()
        a(f"v_xor_b32 v{vKx}, 8192, v{vKx}\ns_xor_b32 s{sKb}, s{sKb}, 8192")
    a(f"s_mov_b32 s{sCnt}, 0")
    if w < 2:
        a.ds(f"ds_read_b128 {vr(vRA,4)}, v{vM16} offset:{RA_OFF}", "ra")
        if w == 1: chores()
        a.nop(P["dlyA"][w])
        issueA()
        ST("issA")
        if w == 0: chores()
        for i in range(P["nrA"]): ring_fill(a, w, i)
        DA = P["depA"][w]
        for _ in range(DA - 1):
            a.nop(P["gapA"]); issueA()
        a.wait_ds("ra")
        a.label(f"CH_RA_{tag}")
        ny = 4 * (DA - 1)
        for k in range(4):
            a(f"s_waitcnt vmcnt({ny + 3 - k})")
            if k == 3: ST("A_w2")
            a(f"v_xor_b32 v10, s{sTag}, v{LA[0]}" if k == 0 else f"v_bitop3_b32 v10, v10, v{LA[k]}, s{sTag} bitop3:0xf6")
            mf(vRD, LA[k], vRA, "0" if k == 0 else vr(vRD, 4))
        a(f"v_and_b32 v10, 1, v10\nv_cmp_ne_u32 vcc, 0, v10")
        a(f"s_cbranch_vccnz CH_RARETRY_{tag}" if not P.get("free") else "s_nop 0")
        a.label(f"CH_RAOK_{tag}")
        ST("A_ok")
        a.nop(5)
        a(f"v_permlane32_swap_b32 v{vRD}, v{vRD+2}")
        a(f"v_permlane32_swap_b32 v{vRD+1}, v{vRD+3}")
        a(f"s_mov_b64 exec, s[{sLO8}:{sLO8+1}]")
        a(f"v_pk_add_f32 {vr(vRD,2)}, {vr(vRD,2)}, {vr(vRD+2,2)}")
        a(f"v_cvt_pk_bf16_f32 v{vRD}, v{vRD}, v{vRD+1}")
        a(f"buffer_store_dword v{vRD}, v{vMpub}, {WS}, s{sMpub} offen {st}")
        a("s_mov_b64 exec, -1")
        ST("pub")
        if w == 0:
            for i in range(P["nrA"], NRING): ring_fill(a, w, i)
    else:
        chores()
        if P.get("kxA"):
            adv()
            for i in range(4): kx_dma(a, w, 4 * (w - 2) + i)
        for i in range(NRING): ring_fill(a, w, i)
    if w == 0 or (w > 1 and not P.get("kxA")): adv()
    a("s_barrier")
    a.nop(P["dlyB"])
    loadB(0); loadB(1)
    ST("issB")
    if w == 1: adv()
    for _ in range(NS - 1):
        a.nop(P["gapB"] if w != 1 else max(0, P["gapB"] - P["w1c"])); loadB(0); loadB(1)
    if w == 1:
        for i in range(P["nrA"], NRING): ring_fill(a, w, i)
    a.wait_ds_all()
    a.vmq = []
    a(f"s_branch CH_RB_{tag}")
    if w < 2:
        a.label(f"CH_RARETRY_{tag}")
        issueA()
        a(f"s_add_u32 s{sCnt}, s{sCnt}, 1")
        if diag: a(f"s_add_u32 s{sTS+20}, s{sTS+20}, 1")
        a(f"s_cmp_gt_u32 s{sCnt}, {P['bound']}")
        a(f"s_cbranch_scc1 CH_RAOK_{tag}")
        a(f"s_branch CH_RA_{tag}")
    retryB()
    if P.get("otag"):
        a.label(f"CH_OREDO_{tag}")
        a(f"s_mov_b32 s{sCnt}, 0")
        a.label(f"CH_OREDO1_{tag}")
        a.nop(8)
        for s_ in orest: a(f"ds_read_b128 {vr(vOF(s_),4)}, v{vOr} offset:{s_*512}")
        for r in range(16): a(f"v_mov_b32 v{vRING+r}, 0")
        a(f"s_add_u32 s{sCnt}, s{sCnt}, 1\ns_waitcnt lgkmcnt(0)")
        for t_ in ochk: a(t_)
        a(f"s_cmp_gt_u32 s{sCnt}, {P['bound']}\ns_cbranch_scc1 CH_OREDO2_{tag}\ns_cbranch_vccnz CH_OREDO1_{tag}")
        a(f"s_branch CH_OREDO3_{tag}")
        a.label(f"CH_OREDO2_{tag}")
        for s_ in orest: a(f"v_and_or_b32 v{vOF(s_)}, v{vOF(s_)}, -2, s{sTag}")
        a.nop(2)
        a.label(f"CH_OREDO3_{tag}")
        if diag: a(f"s_add_u32 s{sTS+21}, s{sTS+21}, 0x10000")
        for d in range(4): smf(oacc(d), vOF(w), ar(wo(d, w), 8))
        a(f"s_branch CH_OGO_{tag}")
    a.label(f"CH_DONE_{tag}")
    a.wait_ds_all(True)
    a.nop(5)
    for f in va: f()
    a(f"v_cvt_pk_bf16_f32 v{vVM}, v{vacc(0)}, v{vacc(0)+1}\nv_cvt_pk_bf16_f32 v{vVM+1}, v{vacc(1)}, v{vacc(1)+1}")
    a.nop(2)
    a(dpp(0)); a(dpp(1))
    for d, f in enumerate((vVM, vVM + 1, 10, 11)): a(sel(d, f, T0))
    a(f"buffer_store_dwordx4 {vr(T0,4)}, v{vM16}, {WS}, s{sKm} offen sc1")
    a.dsq = []; a.vmq = []
    if hook: hook["done"](a, w)
```

```python
import sys
from asm import *
from layout import *
import chain as C
import workers as Wk
NAME = "parallel_sum__memory_aug_recurrent_mem_tr__dense_activation_squared_relu__prompt"
CH = dict(pre_bar=4, v_0=0, v_pre=3, o_pre=2, dlyA=(56, 56), pboth=1, dlyB=12, w1c=12, pst0=1, pbar=1, nrA=3, bound=1 << 16, depA=(2, 2), depB=2, gapA=24, gapB=16, x0=0, xw_only=1, jbar=1, jobs='S', j0=4, jstr=9, jw=2, a_burst=2, r_pre=2, kx_in=5, nt='', pf0=(50, 52, 54, 48), cverd=4)
sDB = 4
sInit, sReady, sMode, sXcc, sTent = 84, 85, 86, 87, 83
sCounted, sLost = 29, 79
sA, sB, sC_, sD = Wk.sA, Wk.sB, Wk.sC_, Wk.sD
WS = Wk.WS
DB = f"s[{sDB}:{sDB+3}]"
ROLE_LDS = 163840 - 16
MODE_BOUND = 2000

def wait_init(a, v=2):
    L = a.newlabel("INIT")
    a(f"s_cmp_lg_u32 s{sInit}, 0\ns_cbranch_scc1 {L}")
    a(f"v_mov_b32 v{v}, {D_INIT}")
    Wk.poll_ge(a, f"buffer_load_dword v{v+1}, v{v}, {DB}, 0 offen sc1", [v + 1], 2 * NINIT, "INIT", sleep=4)
    a(f"s_mov_b32 s{sInit}, 1")
    a.label(L)

def atomic(a, op, off, val, dst, cmp=None):
    a(f"s_mov_b64 exec, 1\nv_mov_b32 v20, {val}\nv_mov_b32 v22, {off}")
    if cmp is not None:
        a(f"v_mov_b32 v21, {cmp}\nbuffer_atomic_cmpswap v[20:21], v22, {DB}, 0 offen sc0")
    else:
        a(f"buffer_atomic_{op} v20, v22, {DB}, 0 offen sc0")
    a(f"s_waitcnt vmcnt(0)\nv_readfirstlane_b32 s{dst}, v20\ns_mov_b64 exec, -1\ns_nop 3")

def claim(a, name, sRes, sOff):
    a.label(f"CLAIM_{name}")
    a(f"s_lshl_b32 s{sC_}, 1, s{sA}")
    atomic(a, "or", f"s{sOff}", f"s{sC_}", sB)
    a.label(f"CLAIM_{name}_R")
    a(f"s_and_b32 s{sD}, s{sB}, s{sC_}\ns_or_b32 s{sB}, s{sB}, s{sC_}\ns_mov_b32 s{sRes}, s{sA}")
    a(f"s_cmp_eq_u32 s{sD}, 0\ns_cbranch_scc1 CLAIM_{name}_E")
    a(f"s_mov_b32 s{sRes}, -1\ns_cmp_eq_u32 s{sB}, -1\ns_cbranch_scc1 CLAIM_{name}_E")
    a(f"s_ff0_i32_b32 s{sA}, s{sB}\ns_branch CLAIM_{name}")
    a.label(f"CLAIM_{name}_E")

def bcast(a, s):
    L = a.newlabel("BC")
    a(f"v_mov_b32 v22, {ROLE_LDS}")
    a(f"s_cmp_lg_u32 s{Wk.sW}, 0\ns_cbranch_scc1 {L}\nv_mov_b32 v20, s{s}\nds_write_b32 v22, v20\ns_waitcnt lgkmcnt(0)")
    a.label(L)
    a(f"s_barrier\nds_read_b32 v20, v22\ns_waitcnt lgkmcnt(0)\nv_readfirstlane_b32 s{s}, v20\ns_barrier")

def gen(P=CH, diag=False, force_slow=False):
    a = Asm()
    def mark(a, word, neg=False):
        if not P.get("marks"): return
        a(f"s_memrealtime s[98:99]\ns_waitcnt lgkmcnt(0)")
        if neg: a("s_not_b32 s98, s98")
        a(f"s_mov_b64 exec, 1\nv_mov_b32 v10, s98\nv_mov_b32 v11, {4*word}\nbuffer_atomic_umax v10, v11, {DB}, 0 offen\ns_mov_b64 exec, -1")
    Wk.SLEEP[0] = P.get('sleep', 1); Wk.PREFETCH[0] = P.get('pf', ()); Wk.EXP[0] = P.get('exp'); Wk.EARLY[0] = P.get('early', 2); Wk.WVERD[0] = P.get('wverd', 0); Wk.HOLD[0] = P.get('hold', 0); Wk.OUTF[0] = P.get('outf', 'sc1')
    sR = Wk.sRole
    a(f"""
    s_cmp_ge_u32 s2, 256
    s_cbranch_scc1 L_END
    s_load_dwordx2 s[{Wk.sWS}:{Wk.sWS+1}], s[0:1], {KA['ws']}
    s_load_dwordx2 s[{sDB}:{sDB+1}], s[0:1], {KA['dbg']}
    s_getreg_b32 s{sXcc}, hwreg(HW_REG_XCC_ID, 0, 4)
    s_mov_b32 s{Wk.sWS+2}, {WS_BYTES}
    s_mov_b32 s{Wk.sWS+3}, 0x20000
    s_mov_b32 s{sDB+2}, 256
    s_mov_b32 s{sDB+3}, 0x20000
    s_mov_b32 s{Wk.sDead}, 0
    s_mov_b32 s{sInit}, 0
    s_mov_b32 s82, 0
    s_mov_b32 s{sLost}, 0
    v_mov_b32 v250, 0
    v_lshrrev_b32 v1, 6, v0
    v_lshlrev_b32 v8, 4, v0
    v_readfirstlane_b32 s{Wk.sW}, v1
    v_and_b32 v0, 63, v0
    v_mov_b32 v12, -1
    v_mov_b32 v13, -1
    v_mov_b32 v14, -1
    v_mov_b32 v15, -1
    """)
    if diag: a("s_memrealtime s[90:91]")
    CX = 9 if force_slow else P.get('cx', 3)
    sOff, sTry, sDie, sWord, sSpec = 18, 19, 80, 81, 82
    def declare(a):
        L = a.newlabel("DECL")
        a(f"s_cmp_lg_u32 s{sB}, -1\ns_cbranch_scc1 {L}")
        a(f"s_mov_b64 exec, 1\nv_mov_b32 v20, 1\nv_mov_b32 v21, 0\nv_mov_b32 v22, {D_MODE}\nbuffer_atomic_cmpswap v[20:21], v22, {DB}, 0 offen\ns_mov_b64 exec, -1")
        a.label(L)
    a(f"""
    s_bfe_u32 s{sR}, s2, 0x50003
    s_waitcnt lgkmcnt(0)
    """)
    if P.get("marks"):
        a(f"s_cmp_lg_u32 s{Wk.sW}, 0\ns_cbranch_scc1 L_MK0\ns_and_b32 s3, s2, 15\ns_cmp_lg_u32 s3, 0\ns_cbranch_scc1 L_MK0")
        mark(a, 4, True)
        a.label("L_MK0")
    a(f"""
    s_mov_b32 s{sTent}, s{sR}
    s_add_u32 s{sDie}, s{sXcc}, {(15 - CX) % 8}
    s_and_b32 s{sDie}, s{sDie}, 7
    s_min_u32 s{sDie}, s{sDie}, 6
    s_lshl_b32 s{sWord}, s{sDie}, 2
    s_add_u32 s{sWord}, s{sWord}, {D_WM}
    s_cmp_eq_u32 s{sXcc}, {CX}
    s_cselect_b32 s{sWord}, {D_MASK}, s{sWord}
    s_and_b32 s3, s2, 0x87
    s_cmp_lg_u32 s3, 0
    s_cbranch_scc1 L_I3
    s_xor_b32 s3, s{Wk.sW}, s{sTent}
    s_bitcmp1_b32 s3, 0
    s_cbranch_scc0 L_I3
    """)
    a(f"s_lshr_b32 s{sA}, s2, 3")
    a(f"s_lshr_b32 s3, s{Wk.sW}, 1\ns_lshl_b32 s{sA}, s{sA}, 1\ns_add_u32 s{sA}, s{sA}, s3\nv_lshlrev_b32 v9, 4, v0")
    a(f"s_lshl_b32 s3, s{sA}, 13\ns_add_u32 s3, s3, {PART}")
    for k in range(8):
        a(f"buffer_store_dwordx4 v[12:15], v9, {WS}, s3 offen offset:{(k&3)*1024} sc1")
        if k == 3: a("s_add_u32 s3, s3, 4096")
    a(f"""
    s_lshl_b32 s3, s{sA}, 10
    s_add_u32 s3, s3, {MBUF}
    buffer_store_dwordx4 v[12:15], v9, {WS}, s3 offen sc1
    s_mul_i32 s3, s{sA}, 2560
    s_add_u32 s3, s3, {FLG}
    v_mov_b32 v16, 0
    v_mov_b32 v17, 0
    v_mov_b32 v18, 0
    v_mov_b32 v19, 0
    buffer_store_dwordx4 v[16:19], v9, {WS}, s3 offen sc1
    buffer_store_dwordx4 v[16:19], v9, {WS}, s3 offen offset:1024 sc1
    s_mov_b64 exec, 0xffffffff
    buffer_store_dwordx4 v[16:19], v9, {WS}, s3 offen offset:2048 sc1
    s_mov_b64 exec, -1
    s_waitcnt vmcnt(0)
    s_mov_b64 exec, 1
    v_mov_b32 v20, 1
    v_mov_b32 v22, {D_INIT}
    buffer_atomic_add v20, v22, {DB}, 0 offen
    s_mov_b64 exec, -1
    L_I3:
    s_cmp_lg_u32 s{Wk.sW}, 0
    s_cbranch_scc1 L_I2
    s_mov_b64 exec, 1
    s_lshl_b32 s3, 1, s{sTent}
    v_mov_b32 v250, s3
    v_mov_b32 v22, s{sWord}
    buffer_atomic_or v250, v22, {DB}, 0 offen sc0
    s_mov_b64 exec, -1
    L_I2:
    s_cmp_lg_u32 s{sXcc}, {CX}
    s_cbranch_scc1 L_NOSPEC
    s_mov_b32 s{sSpec}, 1
    s_branch L_CHAIN
    L_CLOST:
    s_waitcnt vmcnt(0)
    s_cmp_lg_u32 s{Wk.sW}, 0
    s_cbranch_scc1 L_ROLE
    s_mov_b32 s{sA}, s{sTent}
    s_mov_b32 s{sOff}, {D_MASK}
    """)
    claim(a, "A", sR, sOff)
    a(f"s_cmp_eq_u32 s{sR}, -1\ns_cbranch_scc1 L_WCLAIM")
    declare(a)
    a("s_branch L_ROLE")
    a.label("L_NOSPEC")
    if P.get("pf0"):
        a(f"s_xor_b32 s3, s{Wk.sW}, s{sTent}\ns_bitcmp1_b32 s3, 0\ns_cbranch_scc0 L_PF")
        a(f"s_load_dwordx4 s[48:51], s[0:1], {KA['Wq']}\ns_load_dwordx4 s[52:55], s[0:1], {KA['Wv']}\ns_mov_b32 s42, 0x400000\ns_mov_b32 s43, 0x20000")
        a(f"v_lshlrev_b32 v13, 7, v0\ns_lshr_b32 s3, s{Wk.sW}, 1\ns_add_u32 s3, s3, s2\ns_and_b32 s3, s3, 255\ns_lshl_b32 s3, s3, 14\ns_add_u32 s44, s3, 8192\ns_waitcnt lgkmcnt(0)")
        for p in P["pf0"]:
            a(f"s_mov_b32 s40, s{p}\ns_mov_b32 s41, s{p+1}\nbuffer_load_dword v252, v13, s[40:43], s3 offen\nbuffer_load_dword v252, v13, s[40:43], s44 offen")
        a.label("L_PF")
    a(f"s_lshl_b32 s{sR}, s{sDie}, 5\ns_add_u32 s{sR}, s{sR}, s{sTent}\ns_mov_b32 s{sSpec}, 1\ns_branch L_WORK")
    a.label("L_WLOST")
    a("s_waitcnt vmcnt(0) lgkmcnt(0)")
    a(f"s_cmp_lg_u32 s{Wk.sW}, 0\ns_cbranch_scc1 L_ROLE2")
    a.label("L_WCLAIM")
    a(f"s_mov_b32 s{sOff}, s{sDie}\ns_mov_b32 s{sTry}, 0\ns_mov_b32 s{sA}, s{sTent}")
    a.label("L_WNEXT")
    a(f"s_cmp_ge_u32 s{sOff}, 7\ns_cselect_b32 s{sB}, 7, 0\ns_sub_u32 s{sOff}, s{sOff}, s{sB}")
    a(f"s_cmp_ge_u32 s{sOff}, 7\ns_cselect_b32 s{sB}, 7, 0\ns_sub_u32 s{sOff}, s{sOff}, s{sB}")
    a(f"s_lshl_b32 s{sOff}, s{sOff}, 2\ns_add_u32 s{sOff}, s{sOff}, {D_WM}")
    claim(a, "W", sR, sOff)
    a(f"s_sub_u32 s{sOff}, s{sOff}, {D_WM}\ns_lshr_b32 s{sOff}, s{sOff}, 2")
    a(f"s_cmp_eq_u32 s{sR}, -1\ns_cbranch_scc0 L_WGOT")
    a(f"s_add_u32 s{sOff}, s{sOff}, 1\ns_add_u32 s{sTry}, s{sTry}, 1\ns_mov_b32 s{sA}, 0\ns_cmp_lt_u32 s{sTry}, 7\ns_cbranch_scc1 L_WNEXT")
    atomic(a, "cmpswap", D_MODE, 2, sB, cmp=0)
    a(f"s_mov_b32 s{sA}, 0\ns_mov_b32 s{sOff}, {D_MASK}")
    claim(a, "B", sR, sOff)
    a("s_branch L_ROLE")
    a.label("L_WGOT")
    a(f"s_lshl_b32 s{sOff}, s{sOff}, 5\ns_add_u32 s{sR}, s{sR}, s{sOff}\ns_add_u32 s{sR}, s{sR}, 32")
    def verdict(a):
        L = a.newlabel("VERD")
        a(f"s_cmp_eq_u32 s{sSpec}, 0\ns_cbranch_scc1 {L}\ns_mov_b32 s{sSpec}, 0")
        a(f"v_readfirstlane_b32 s{sB}, v250\ns_nop 3\ns_lshr_b32 s{sB}, s{sB}, s{sTent}\ns_and_b32 s{sB}, s{sB}, 1")
        bcast(a, sB)
        a(f"s_cmp_lg_u32 s{sB}, 0\ns_cbranch_scc1 L_WLOST")
        a.label(L)
    a.label("L_ROLE")
    a.label("L_ROLE2")
    bcast(a, sR)
    a(f"s_cmp_lt_u32 s{sR}, 32\ns_cbranch_scc1 L_CHAIN")
    a(f"s_cmp_eq_u32 s{sR}, -1\ns_cbranch_scc1 L_FIN")
    a(f"s_waitcnt vmcnt(0)\ns_sub_u32 s{sR}, s{sR}, 32")
    a.label("L_WORK")
    if P.get("wpf"):
        a("s_getpc_b64 s[66:67]\nv_lshlrev_b32 v10, 7, v0")
        a(f"s_lshl_b32 s3, s{Wk.sW}, 13\nv_add_u32 v10, s3, v10\nv_min_u32 v10, {P['wpf']}, v10\nglobal_load_dword v252, v10, s[66:67]")
    if diag: a("s_memrealtime s[70:71]\ns_waitcnt lgkmcnt(0)\ns_mov_b32 s100, s70\ns_add_u32 s101, s16, 32")
    if diag: a("s_mov_b32 s64, 0\ns_mov_b32 s66, 0\ns_mov_b32 s68, 0\ns_mov_b32 s72, 0")
    Wk.gemm1(a, wait_init, verdict, sInit, diag)
    if diag: a("s_memtime s[78:79]")
    if P.get("marks"):
        a(f"s_cmp_lg_u32 s{Wk.sW}, 0\ns_cbranch_scc1 L_MK2\ns_and_b32 s3, s{sR}, 7\ns_cmp_lg_u32 s3, 0\ns_cbranch_scc1 L_MK2")
        mark(a, 8)
        a.label("L_MK2")
    if diag: a("s_memrealtime s[92:93]")
    wait_init(a)
    a(f"s_cmp_ge_u32 s{sR}, 192\ns_cbranch_scc1 L_FIN\ns_cmp_lt_u32 s{sR}, 160\ns_cbranch_scc1 L_G2\ns_sub_u32 s{sR}, s{sR}, 160")
    Wk.attention(a, diag)
    a("s_branch L_FIN")
    a.label("L_G2")
    Wk.gemm2(a, diag)
    if P.get("marks"):
        a(f"s_waitcnt vmcnt(0)\ns_cmp_lg_u32 s{Wk.sW}, 0\ns_cbranch_scc1 L_FIN")
        mark(a, 9)
    a("s_branch L_FIN")
    a.label("L_CHAIN")
    if diag: a("s_memrealtime s[70:71]\ns_waitcnt lgkmcnt(0)\ns_mov_b32 s100, s70\ns_mov_b32 s101, s16")
    if P.get("cpf"):
        a("s_getpc_b64 s[66:67]\nv_lshlrev_b32 v10, 7, v0")
        a(f"s_lshl_b32 s3, s{Wk.sW}, 13\nv_add_u32 v10, s3, v10\nv_min_u32 v10, {P['cpf']}, v10\nglobal_load_dword v98, v10, s[66:67]")
    def first_chunk(a, part, share):
        L = a.newlabel("CV")
        a(f"s_cmp_eq_u32 s{sSpec}, 0\ns_cbranch_scc1 {L}")
        if part == 0:
            a(f"s_cmp_lg_u32 s{Wk.sW}, 0\ns_cbranch_scc1 {L}_B")
            a(f"v_readfirstlane_b32 s{sB}, v250\ns_lshl_b32 s3, 1, s{sTent}\ns_nop 2\ns_and_b32 s{sLost}, s{sB}, s3\ns_or_b32 s{sB}, s{sB}, s3")
            a(f"s_cmp_lg_u32 s{sLost}, 0\ns_cbranch_scc1 {L}_B")
            declare(a)
            a.label(L + "_B")
        if share:
            a(f"s_mov_b32 s{sSpec}, 0")
            if part: a("s_barrier")
            bcast(a, sLost)
            a(f"s_cmp_lg_u32 s{sLost}, 0\ns_cbranch_scc1 L_CLOST")
        a.label(L)
    sChf, sG1 = 88, 89
    def g1addr(a, lane):
        a(f"v_and_b32 v11, 3, {lane}\nv_bfe_u32 v10, {lane}, 2, 1\nv_lshlrev_b32 v10, 13, v10\nv_lshl_add_u32 v10, v11, 7, v10")
    def set_ready(a, v):
        for perm in ("quad_perm:[1,0,3,2]", "quad_perm:[2,3,0,1]", "row_half_mirror"):
            a(f"s_nop 1\nv_min_u32_dpp v{v}, v{v}, v{v} {perm} row_mask:0xf bank_mask:0xf")
        a(f"s_nop 0\nv_readfirstlane_b32 s{sReady}, v{v}\ns_nop 3\ns_lshl_b32 s{sReady}, s{sReady}, 2")
    def peek(a):
        a(f"s_lshl_b32 s{sChf}, s{C.sH}, 7\ns_add_u32 s{sChf}, s{sChf}, {CHF}")
        a(f"s_lshr_b32 s{sG1}, s{C.sH}, 1\ns_lshl_b32 s{sG1}, s{sG1}, 9\ns_add_u32 s{sG1}, s{sG1}, {G1F}")
        a(f"v_mov_b32 v124, -1\nv_mov_b32 v125, -1\nv_mov_b32 v126, -1\nv_mov_b32 v127, -1")
        a(f"s_lshl_b32 s3, s{C.sH}, 2\ns_add_u32 s3, s3, s{Wk.sW}\ns_lshl_b32 s3, s3, 10\ns_add_u32 s3, s3, {KMEM - C.MISC + EFROM*32*4096}")
        for sg in range(EFROM, 64):
            a(f"buffer_store_dwordx4 v[124:127], v{C.vM16}, {WS}, s3 offen sc1\ns_add_u32 s3, s3, {32*4096}")
        g1addr(a, "v0")
        a(f"v_mov_b32 v24, 0\nbuffer_load_dwordx2 v[26:27], v24, {DB}, 0 offen sc1\nbuffer_load_dword v25, v10, {WS}, s{sG1} offen sc1")
    C.prologue_a(a, P, True)
    C.prologue_b(a, P, first_chunk, peek)
    a(f"s_waitcnt vmcnt(0)\nv_readfirstlane_b32 s{sMode}, v26\nv_readfirstlane_b32 s3, v27")
    set_ready(a, 25)
    a(f"s_cmp_ge_u32 s3, {2 * NINIT}\ns_cselect_b32 s{sInit}, 1, s{sInit}\ns_cselect_b32 s{sReady}, s{sReady}, 0")
    wait_init(a, 10)
    if P.get("hold"):
        a(f"s_cmp_lg_u32 s{Wk.sW}, 0\ns_cbranch_scc1 L_STG\ns_add_u32 s3, s{sChf}, 64")
        Wk.flag_store(a, "s3", 1, 10)
        a.label("L_STG")
    a(f"s_cmp_lg_u32 s{sMode}, 0\ns_cbranch_scc1 L_MODEOK\nv_mov_b32 v10, {D_MODE}")
    Wk.poll_ge(a, f"buffer_load_dword v11, v10, {DB}, 0 offen sc1", [11], 1, "MODE")
    a(f"v_readfirstlane_b32 s{sMode}, v11\ns_nop 3")
    a.label("L_MODEOK")
    if P.get("marks"):
        a(f"s_cmp_lg_u32 s{Wk.sW}, 1\ns_cbranch_scc1 L_MK1")
        mark(a, 5); mark(a, 6, True)
        a.label("L_MK1")
    if diag:
        for k in range(20, 30): a(f"s_mov_b32 s{C.sTS+k}, 0")
        a("s_memrealtime s[92:93]\ns_memtime s[96:97]")
    stubs = []
    sPend = 29
    def ready(a, w, tag, first):
        if not first and w != 2: return
        L = a.newlabel("RDY")
        if first: a(f"s_mov_b32 s{C.sStep}, 0\ns_mov_b32 s{sPend}, 0")
        else:
            a(f"s_cmp_eq_u32 s{sPend}, 0\ns_cbranch_scc1 {L}_P\ns_mov_b32 s{sPend}, 0")
            set_ready(a, C.vMpub)
            a.label(L + "_P")
        a(f"s_add_u32 s{C.sT0}, s{C.sStep}, 1\ns_min_u32 s{C.sT0}, s{C.sT0}, 63\ns_cmp_ge_u32 s{C.sT0}, s{sReady}\ns_cbranch_scc1 {L}_S")
        a.label(L)
        stubs.append((L, first))
    def look(a):
        L = a.newlabel("LOOK")
        a(f"s_add_u32 s{C.sT0}, s{C.sStep}, 6\ns_min_u32 s{C.sT0}, s{C.sT0}, 63\ns_cmp_lt_u32 s{C.sT0}, s{sReady}\ns_cbranch_scc1 {L}")
        a(f"v_lshrrev_b32 v10, 3, v{C.vL8}")
        g1addr(a, "v10")
        a(f"buffer_load_dword v{C.vMpub}, v10, {WS}, s{sG1} offen sc1\ns_mov_b32 s{sPend}, 1")
        a.label(L)
    def flag(a):
        if P.get("noflag"): return
        if P.get("marks"):
            L = a.newlabel("MK")
            a(f"s_and_b32 s{C.sT0}, s{C.sStep}, 15\ns_cmp_lg_u32 s{C.sT0}, 1\ns_cbranch_scc1 {L}\ns_cmp_lg_u32 s{C.sH}, 5\ns_cbranch_scc1 {L}")
            a(f"s_memrealtime s[98:99]\ns_lshr_b32 s{C.sT0}, s{C.sStep}, 4\ns_lshl_b32 s{C.sT0}, s{C.sT0}, 2\ns_add_u32 s{C.sT0}, s{C.sT0}, 40\ns_waitcnt lgkmcnt(0)")
            a(f"s_mov_b64 exec, 1\nv_mov_b32 v10, s98\nv_mov_b32 v11, s{C.sT0}\nbuffer_store_dword v10, v11, {DB}, 0 offen\ns_mov_b64 exec, -1")
            a.label(L)
        FL = a.newlabel("FLAG")
        FE = P.get("fevery", 4)
        a(f"s_and_b32 s{C.sT0}, s{C.sStep}, {FE-1}\ns_cmp_ge_u32 s{C.sStep}, {P.get('fall', 56)}\ns_cselect_b32 s{C.sT0}, {1 % FE}, s{C.sT0}\ns_cmp_lg_u32 s{C.sT0}, {1 % FE}\ns_cbranch_scc1 {FL}")
        a(f"s_sub_u32 s{C.sT0}, s{C.sStep}, 1\ns_max_i32 s{C.sT0}, s{C.sT0}, 0")
        if P.get("early", 1): a(f"s_cmp_gt_u32 s{C.sStep}, {EFROM}\ns_cselect_b32 s{C.sT0}, s{C.sStep}, s{C.sT0}")
        Wk.flag_store(a, f"s{sChf}", f"s{C.sT0}", 10); a.vmq.pop()
        a.label(FL)
    def done(a, w):
        a("s_barrier" if P.get("early", 1) else "s_waitcnt vmcnt(0)\ns_barrier")
        if w == 0: Wk.flag_store(a, f"s{sChf}", 64, 10)
        if w == 1: mark(a, 7)
        a.vmq = []
        a("s_branch L_FIN")
        for L, first in stubs:
            a.label(L + "_S")
            a(f"s_add_u32 s{C.sT0}, s{C.sStep}, 1\ns_min_u32 s{C.sT0}, s{C.sT0}, 63\ns_lshr_b32 s{C.sT0}, s{C.sT0}, 2\ns_add_u32 s{C.sT0}, s{C.sT0}, 1")
            a(f"v_lshrrev_b32 v10, 3, v{C.vL8}")
            g1addr(a, "v10")
            Wk.poll_ge(a, f"buffer_load_dword v11, v10, {WS}, s{sG1} offen sc1", [11], f"s{C.sT0}", "KV", sleep=0)
            set_ready(a, 11)
            a(f"s_branch {L}")
        stubs.clear()
    P = dict(P, hooks=dict(ready=ready, flag=flag, done=done, look=look))
    a(f"s_cmp_eq_u32 s{sMode}, 1\ns_cbranch_scc0 L_SLOW")
    for st in ("", "sc1"):
        if st: a.label("L_SLOW")
        t = "s" if st else "f"
        for w in range(1, 4): a(f"s_cmp_eq_u32 s{C.sW}, {w}\ns_cbranch_scc1 CH_W{w}{t}")
        for w in range(4):
            a.label(f"CH_W{w}{t}")
            C.loop(a, w, st, P, diag)
    a.label("L_FIN")
    if diag:
        a("s_memrealtime s[94:95]\ns_memtime s[98:99]\ns_waitcnt lgkmcnt(0)")
        a(f"s_lshl_b32 s3, s2, 2\ns_add_u32 s3, s3, s{Wk.sW}\ns_lshl_b32 s3, s3, 7\ns_add_u32 s3, s3, {DBG}")
        vals = [C.sTS + 20 + k for k in range(10)] + [90, 92, 94, 96, 98, sR, sXcc, Wk.sDead, 100, 101, 72, 74, 76, 78]
        for i, sg in enumerate(vals):
            a(f"v_mov_b32 v20, s{sg}\nv_mov_b32 v21, {4*i}\nbuffer_store_dword v20, v21, {WS}, s3 offen")
    a("s_waitcnt vmcnt(0)")
    a.label("L_END")
    return a.text()

def wrap(body):
    ref = open(f"cdna_kernels/{NAME}.s.ref").read().split("\n")
    head = [l for l in ref if l.startswith(";") and "@launch" not in l]
    return "\n".join(head) + f"""
; @launch grid=(256,1,1) block=(256,1,1) lds=163840
.amdgcn_target "amdgcn-amd-amdhsa--gfx950"
.text
.globl {NAME}_kernel
.p2align 8
.type {NAME}_kernel,@function
{NAME}_kernel:
{body}s_endpgm
.section .rodata,"a"
.p2align 6
.amdhsa_kernel {NAME}_kernel
  .amdhsa_next_free_vgpr 512
  .amdhsa_next_free_sgpr 102
  .amdhsa_accum_offset 256
  .amdhsa_group_segment_fixed_size 0
  .amdhsa_kernarg_size 120
  .amdhsa_user_sgpr_count 2
  .amdhsa_user_sgpr_kernarg_segment_ptr 1
  .amdhsa_system_sgpr_workgroup_id_x 1
.end_amdhsa_kernel
"""
if __name__ == "__main__":
    import ast
    P = dict(CH)
    if len(sys.argv) > 2: P.update(ast.literal_eval(sys.argv[2]))
    t = gen(P)
    hz = check(t)
    for h in hz[:12]: print(h)
    out = sys.argv[1] if len(sys.argv) > 1 else f"cdna_kernels/{NAME}.s"
    open(out, "w").write(wrap(t))
    print("lines", len(t.split("\n")), "hazards", len(hz))
```

```python
from asm import *
from layout import *
import math

MISC = 131072
M_OFF = 0
X_OFF = 8192
KX_OFF = 16384
O_OFF = 13568
XS = 1088
sWS = 8
sTMP = 12
sH, sW, sStep = 16, 17, 18
sPst, sPld, sTag, sMpub, sMpoll, sMclr = 19, 20, 21, 22, 23, 24
sVx, sKx, sKm, sVm = 25, 26, 27, 28
sC = 30
sT0, sT1, sT2, sT3 = 32, 33, 34, 35
sCnt = 36
sLO8 = 38
sDBG = 40
sTS = 44
vIDX, vKx, vM16, vRing, vPst, vMpub, vXw, vXr, vOr = 1, 2, 3, 4, 5, 6, 7, 8, 9
vL8 = 0
vNEG = 10
vVA0 = 12
RA_OFF = 12544
vVX = 16
vPM = 24
vACC = 28
vA = 44
vRING = 76
vT = 124
vWK = 128
NRING = 6
WQ_SLOT = [2, 3, 1, 0]
def ringreg(i): return vRING + 8 * (i % NRING)
KXREG = [vRING + 8*4, vRING + 8*5, vRING + 0, vRING + 8]
def kx(kt, s): return KXREG[kt*2 + (s >> 1)] + 4 * (s & 1)
vXF = vRING + 16
def wv(t, s): return 8 * (t * 8 + s)
def wo(d, s): return 128 + 8 * (d * 4 + s)
def wk(t, s): return vWK + 8 * (t * 8 + s)

def wq_lds_imm(i):
    t, s = i >> 3, i & 7
    return WQ_SLOT[s >> 1] * 8192 + ((s & 1) * 2 + t) * 2048

def stamp(a, k, diag):
    if diag: a(f"s_memtime s[{sTS+2*k}:{sTS+2*k+1}]")

def prologue(a, P, diag=False):
    a(f"v_lshrrev_b32 v10, 6, v0\nv_and_b32 v0, 63, v0\nv_readfirstlane_b32 s{sW}, v10\ns_nop 3")
    prologue_a(a, P, True); prologue_b(a, P)

def prologue_a(a, P, dma):
    WNT[0] = P.get("wnt", "")
    WQ_SLOT[:] = [2, 3, 0, 1] if P.get("qpre") else [2, 3, 1, 0]
    a(f"""
    s_load_dwordx4 s[48:51], s[0:1], {KA['Wq']}
    s_load_dwordx4 s[52:55], s[0:1], {KA['Wv']}
    s_load_dwordx2 s[56:57], s[0:1], {KA['mem0']}
    """)
    a(f"""
    v_and_b32 v100, 15, v0            ; n
    v_lshrrev_b32 v101, 4, v0         ; g
    v_and_b32 v102, 3, v0             ; c
    v_bfe_u32 v103, v0, 2, 2          ; r''
    """)
    a(f"""
    s_lshl_b32 s{sT2}, s{sH}, 8
    s_lshl_b32 s{sT3}, s{sW}, 6
    s_add_u32 s{sT2}, s{sT2}, s{sT3}
    v_lshrrev_b32 v10, 2, v0
    """)
    for k in range(4):
        a(f"v_xor_b32 v11, {k & 2}, v10\nv_lshlrev_b32 v11, 13, v11\nv_xor_b32 v104, {2*(k&1)}, v102\nv_lshl_add_u32 v11, v104, 4, v11\nv_add_u32 v{vSQ+k}, s{sT2}, v11")
        a(f"v_mov_b32 v{vSRC+k}, v{vSQ+k}\nv_mov_b32 v{vSRC+4+k}, v{vSQ+k}")
    a(f"""
    s_lshl_b32 s{sB0}, s{sW}, 15
    s_lshl_b32 s{sB1}, s{sW}, 13
    s_add_u32 s{sB1}, s{sB1}, {MISC}
    s_mov_b32 s62, 0x400000
    s_mov_b32 s63, 0x20000
    s_getpc_b64 s[{sSub}:{sSub+1}]
    s_add_u32 s{sSub}, s{sSub}, 12
    s_addc_u32 s{sSub+1}, s{sSub+1}, 0
    s_branch CH_SUBE
    """)
    for i in range(8):
        a(f"s_mov_b32 m0, s64\ns_add_u32 s64, s64, 1024\nbuffer_load_dwordx4 v{vSRC+i}, s[60:63], s65 offen {WNT[0]} lds\ns_add_u32 s65, s65, s66")
    a(f"s_setpc_b64 s[{sRet}:{sRet+1}]")
    a.label("CH_SUBE")
    a("s_waitcnt lgkmcnt(0)")
    for c in range(4 if P.get('cverd', 0) == 0 else 5): w_issue(a, c)
    a(f"""
    v_and_b32 v10, 2, v0
    v_cmp_eq_u32 vcc, 0, v10
    v_mov_b32 v11, 0xeeee
    v_mov_b32 v104, 0x4444
    v_cndmask_b32 v{vIDX}, v11, v104, vcc
    v_lshlrev_b32 v10, 4, v0
    v_add_u32 v{vM16}, {MISC}, v10
    s_lshl_b32 s{sT0}, s{sW}, 15
    v_add_u32 v{vRing}, s{sT0}, v10
    v_lshrrev_b32 v11, 2, v0
    v_lshlrev_b32 v11, 1, v11
    v_and_b32 v104, 1, v0
    v_add_u32 v11, v11, v104
    v_lshlrev_b32 v11, 4, v11
    v_add_u32 v{vOr}, {MISC+O_OFF}, v11
    v_lshlrev_b32 v10, 14, v101
    v_lshrrev_b32 v11, 3, v100
    v_lshl_add_u32 v10, v11, 13, v10
    v_and_b32 v11, 7, v100
    v_lshl_add_u32 v{vPst}, v11, 4, v10
    v_lshlrev_b32 v10, 4, v102
    v_bfe_u32 v11, v0, 2, 1
    v_lshl_add_u32 v10, v11, 3, v10
    v_lshrrev_b32 v11, 1, v101
    v_lshl_add_u32 v10, v11, 2, v10
    v_and_b32 v11, 1, v101
    v_lshl_add_u32 v{vMpub}, v11, 8, v10
    v_add_u32 v{vKx}, {KX_OFF}, v{vM16}
    v_mul_u32_u24 v10, {XS}, v101
    v_lshl_add_u32 v10, v100, 3, v10
    s_lshl_b32 s{sT0}, s{sW}, 8
    s_add_u32 s{sT0}, s{sT0}, {MISC+X_OFF}
    v_add_u32 v{vXw}, s{sT0}, v10
    v_mul_u32_u24 v10, {XS}, v102
    v_lshrrev_b32 v11, 2, v0
    v_lshl_add_u32 v10, v11, 3, v10
    v_add_u32 v{vXr}, {MISC+X_OFF}, v10
    v_bfe_u32 v10, v100, 1, 2
    v_and_b32 v11, 1, v100
    v_lshlrev_b32 v11, 4, v11
    v_mov_b32 v104, 0x3f80
    v_lshlrev_b32 v104, v11, v104
    """)
    for k in range(4):
        a(f"v_cmp_eq_u32 vcc, {k}, v10\ns_nop 1\nv_cndmask_b32 v{112+k}, 0, v104, vcc")
    a(f"s_mov_b32 s{sLO8}, 0x00ff00ff\ns_mov_b32 s{sLO8+1}, 0x00ff00ff\ns_mov_b32 s{sB1M}, 0xcccccccc\ns_mov_b32 s{sB1M+1}, 0xcccccccc\ns_mov_b32 s{sONE}, 0x3f803f80")
    c = (128 ** -0.5) * math.log2(math.e)
    import struct
    cb = struct.unpack("<I", struct.pack("<f", c))[0]
    a(f"s_mov_b32 s{sC}, {cb:#x}\ns_mov_b32 s{sC+1}, {cb:#x}")
    a(f"""
    s_lshl_b32 s{sT2}, s{sH}, 17
    s_lshl_b32 s{sT3}, s{sW}, 8
    s_add_u32 s{sT2}, s{sT2}, s{sT3}
    v_and_b32 v105, 1, v101            ; g&1
    v_lshrrev_b32 v106, 1, v101        ; g>>1
    v_and_b32 v107, 1, v103            ; r&1
    v_lshrrev_b32 v108, 1, v103        ; r>>1
    v_lshlrev_b32 v10, 5, v105
    v_lshl_add_u32 v10, v106, 2, v10
    v_lshl_add_u32 v10, v108, 4, v10
    v_add_u32 v109, v10, v107
    v_lshlrev_b32 v10, 4, v105
    v_lshl_add_u32 v10, v106, 2, v10
    v_add_u32 v110, v10, v107
    """)
    for k in range(2):
        a(f"v_lshl_add_u32 v10, v105, 2, 0\nv_xor_b32 v10, v10, v100\nv_xor_b32 v10, {8*k}, v10\nv_lshlrev_b32 v11, 10, v101\nv_lshl_add_u32 v10, v10, 4, v11\nv_add_u32 v{vSO+k}, s{sT2}, v10")
    for mb in range(2):
        for t in range(2):
            a(f"v_add_u32 v10, {2*mb}, v109\nv_lshlrev_b32 v11, 1, v105\nv_xor_b32 v10, v10, v11\nv_lshlrev_b32 v10, 6, v10")
            a(f"v_xor_b32 v11, {t}, v108\nv_lshl_add_u32 v10, v11, 5, v10\nv_lshl_add_u32 v10, v102, 3, v10")
            a(f"v_add_u32 v{vB1+mb*2+t}, s{sB0}, v10\nv_add_u32 v{vB1+4+mb*2+t}, s{sB1}, v10")
    for d in range(4):
        a(f"v_lshl_add_u32 v11, v105, 1, v107\nv_xor_b32 v11, {d}, v11\nv_lshlrev_b32 v10, 8, v110\nv_lshl_add_u32 v10, v11, 6, v10")
        a(f"v_lshl_add_u32 v10, v108, 5, v10\nv_lshl_add_u32 v10, v102, 3, v10")
        a(f"v_add_u32 v{vB2+d}, s{sB0}, v10\nv_add_u32 v{vB2+4+d}, s{sB1}, v10")
    a(f"""
    s_mov_b32 s12, s56
    s_mov_b32 s13, s57
    s_mov_b32 s14, 8192
    s_mov_b32 s15, 0x20000
    v_lshrrev_b32 v10, 2, v100
    v_lshlrev_b32 v10, 1, v10
    v_and_b32 v11, 1, v0
    v_add_u32 v10, v10, v11            ; row
    v_lshlrev_b32 v10, 10, v10
    v_bfe_u32 v11, v0, 1, 1
    v_lshl_add_u32 v10, v11, 5, v10
    v_lshl_add_u32 v10, v101, 3, v10
    s_lshl_b32 s{sT2}, s{sW}, 8        ; ksteps 2w, 2w+1
    v_add_u32 v10, s{sT2}, v10
    buffer_load_dwordx2 v[16:17], v10, s[12:15], 0 offen
    buffer_load_dwordx2 v[18:19], v10, s[12:15], 0 offen offset:64
    buffer_load_dwordx2 v[12:13], v10, s[12:15], 0 offen offset:128
    buffer_load_dwordx2 v[14:15], v10, s[12:15], 0 offen offset:192
    """)

order = ["k"] * 4 + ["v"] * 4 + ["o"] * 4 + ["q"] * 4
srd = {"q": 60, "k": 64, "v": 68, "o": 72}
WNT = ['']
sB0, sB1 = 76, 77
sSub, sRet = 68, 70
vSRC, vSQ, vSO, vB1, vB2 = 76, 84, 88, 90, 116
def w_issue(a, c):
    m = order[c]; cc = c & 3; slot = c % 5
    if cc == 0:
        src = {"q": 48, "k": 50, "v": 52, "o": 54}[m]
        a(f"s_mov_b32 s60, s{src}\ns_mov_b32 s61, s{src+1}\ns_mov_b32 s65, 0")
        if c in (0, 8, 12): a(f"s_mov_b32 s66, {4096 if m == 'o' else 131072}")
        if c in (8, 12):
            for k in range(8): a(f"v_mov_b32 v{vSRC+k}, v{vSO + (k >> 2) if m == 'o' else vSQ + (k & 3)}")
    a(f"s_add_u32 s64, s{sB0}, {slot*8192}" if slot < 4 else f"s_mov_b32 s64, s{sB1}")
    a(f"s_swappc_b64 s[{sRet}:{sRet+1}], s[{sSub}:{sSub+1}]")
    a.vmq += [("w", c)] * 8

def prologue_b(a, P, first_chunk=None, peek=None):
    issue = lambda c: w_issue(a, c)
    CV = P.get("cverd", 0)
    a.vmq = [("w", c) for c in range(4 if CV == 0 else 5) for _ in range(8)]
    for c in range(16):
        m = order[c]; cc = c & 3; slot = c % 5
        a.wait_vm(("w", c))
        if c == 0:
            if first_chunk: first_chunk(a, 0, CV == 0)
            if CV == 0: issue(4)
        so, sb = (slot * 8192, 0) if slot < 4 else (0, 4)
        if m == "q" and P.get("qpre"):
            if c == P.get('peek', 13) and peek: peek(a)
            continue
        if m != "o":
            for s_ in range(2):
                for t in range(2):
                    for mm in range(4):
                        imm = so + (64 * s_ + 8 * (mm >> 1)) * 64
                        s = 2 * cc + s_
                        if m == "k": dst = vr(wk(t, s) + 2 * mm, 2)
                        elif m == "v": dst = ar(wv(t, s) + 2 * mm, 2)
                        else: dst = vr(vA + (s_ * 2 + t) * 8 + 2 * mm, 2)
                        a.ds(f"ds_read_b64_tr_b16 {dst}, v{vB1 + sb + (mm & 1) * 2 + t} offset:{imm}")
        else:
            for d in range(4):
                for mm in range(4):
                    imm = so + (8 * (mm >> 1) + 2 * (mm & 1)) * 256
                    a.ds(f"ds_read_b64_tr_b16 {ar(wo(d, cc) + 2*mm, 2)}, v{vB2 + sb + d} offset:{imm}")
        a.wait_ds_all()
        if m == "q":
            for k in range(8):
                a.ds(f"ds_write_b128 v{vRing}, {vr(vA + 4*k, 4)} offset:{WQ_SLOT[cc]*8192 + k*1024}")
            a.wait_ds_all()
        if CV and c == CV and first_chunk: first_chunk(a, 1, True)
        if P.get("qpre"):
            if c == 6: P["qpre"][0](a)
            if c + 5 < 12: issue(c + 5)
            if c == 10:
                P["qpre"][1](a)
                a(f"s_mov_b32 s60, s{sWS}\ns_mov_b32 s61, s{sWS+1}\ns_mov_b32 s62, {WS_BYTES}\ns_mov_b32 s66, 1024")
                a(f"s_lshl_b32 s65, s{sH}, 2\ns_add_u32 s65, s65, s{sW}\ns_lshl_b32 s65, s65, 15\ns_add_u32 s65, s65, {WQP - MISC}")
                for k in range(8): a(f"v_mov_b32 v{vSRC+k}, v{vM16}")
            for cq in {10: (0, 1, 2), 11: (3,)}.get(c, ()):
                a(f"s_add_u32 s64, s{sB0}, {WQ_SLOT[cq]*8192}\ns_swappc_b64 s[{sRet}:{sRet+1}], s[{sSub}:{sSub+1}]")
                a.vmq += [("w", 12 + cq)] * 8
        elif c + 5 < 16: issue(c + 5)
        if c == P.get('peek', 13) and peek: peek(a)
        if c == P.get("help_at", -1):
            lo, per = P["help"]
            a(f"s_lshl_b32 s{sT0}, s{sH}, 2\ns_add_u32 s{sT0}, s{sT0}, s{sW}\nv_lshlrev_b32 v10, 7, v0")
            for rep in range(P.get("help_rep", 2)):
                if rep: a(f"s_add_u32 s{sT0}, s{sT0}, {128 // P.get('help_rep', 2) + 1}\ns_and_b32 s{sT0}, s{sT0}, 127")
                a(f"s_mul_i32 s{sT1}, s{sT0}, {per*8192}\ns_add_u32 s{sT1}, s{sT1}, {lo*8192}")
                for k in range(per):
                    a(f"buffer_load_dword v11, v10, s[60:63], s{sT1} offen")
                    if k + 1 < per: a(f"s_add_u32 s{sT1}, s{sT1}, 8192")
    a("s_barrier")
    a(f"""
    ds_write_b128 v{vM16}, v[112:115] offset:{RA_OFF}
    v_lshlrev_b32 v{vL8}, 3, v0
    s_waitcnt lgkmcnt(0)
    """)

def qprep(a, sHd, finish):
    a(f"""
    s_load_dwordx2 s[60:61], s[0:1], {KA['Wq']}
    s_mov_b32 s62, 0x400000
    s_mov_b32 s63, 0x20000
    v_lshrrev_b32 v101, 4, v0
    v_and_b32 v102, 3, v0
    v_bfe_u32 v103, v0, 2, 2
    s_lshl_b32 s{sT2}, s{sHd}, 8
    s_lshl_b32 s{sT3}, s{sW}, 6
    s_add_u32 s{sT2}, s{sT2}, s{sT3}
    v_lshrrev_b32 v10, 2, v0
    s_lshl_b32 s{sB0}, s{sW}, 15
    s_mov_b32 s64, s{sB0}
    s_mov_b32 s65, 0
    """)
    for k in range(4):
        a(f"v_xor_b32 v11, {k & 2}, v10\nv_lshlrev_b32 v11, 13, v11\nv_xor_b32 v104, {2*(k&1)}, v102\nv_lshl_add_u32 v11, v104, 4, v11\nv_add_u32 v{vSQ+k}, s{sT2}, v11")
    a("s_waitcnt lgkmcnt(0)")
    a.vmq = []
    for c in range(4):
        for i in range(8):
            a("s_mov_b32 m0, s64\ns_add_u32 s64, s64, 1024")
            a.vm(f"buffer_load_dwordx4 v{vSQ+(i&3)}, s[60:63], s65 offen lds", ("w", c))
            a("s_add_u32 s65, s65, 131072")
    a(f"""
    v_and_b32 v105, 1, v101
    v_lshrrev_b32 v106, 1, v101
    v_and_b32 v107, 1, v103
    v_lshrrev_b32 v108, 1, v103
    v_lshlrev_b32 v10, 5, v105
    v_lshl_add_u32 v10, v106, 2, v10
    v_lshl_add_u32 v10, v108, 4, v10
    v_add_u32 v109, v10, v107
    v_lshlrev_b32 v110, 4, v0
    s_lshl_b32 s65, s{sHd}, 2
    s_add_u32 s65, s65, s{sW}
    s_lshl_b32 s65, s65, 15
    s_add_u32 s65, s65, {WQP}
    """)
    for mb in range(2):
        for t in range(2):
            a(f"v_add_u32 v10, {2*mb}, v109\nv_lshlrev_b32 v11, 1, v105\nv_xor_b32 v10, v10, v11\nv_lshlrev_b32 v10, 6, v10")
            a(f"v_xor_b32 v11, {t}, v108\nv_lshl_add_u32 v10, v11, 5, v10\nv_lshl_add_u32 v10, v102, 3, v10\nv_add_u32 v{vB1+mb*2+t}, s{sB0}, v10")
    for c in range(4):
        a.wait_vm(("w", c))
        R = 112 + 32 * c
        for s_ in range(2):
            for t in range(2):
                for mm in range(4):
                    a.ds(f"ds_read_b64_tr_b16 {vr(R + (s_*2+t)*8 + 2*mm, 2)}, v{vB1 + (mm&1)*2 + t} offset:{c*8192 + (64*s_ + 8*(mm>>1))*64}")
        a.wait_ds_all()
        for k in range(8):
            a.vm(f"buffer_store_dwordx4 {vr(R + 4*k, 4)}, v110, s[{sWS}:{sWS+3}], s65 offen offset:{(k&3)*1024} sc1", "st")
            if k & 3 == 3: a("s_add_u32 s65, s65, 4096")
    a.wait_vm_all()
    a("s_barrier")
    finish(a)

def seg_offsets(a, w, P):
    a(f"""
    s_and_b32 s{sT0}, s{sStep}, 3
    s_lshl_b32 s{sT1}, s{sT0}, 18
    s_lshl_b32 s{sT2}, s{sH}, 7
    s_add_u32 s{sPst}, s{sT1}, s{sT2}
    s_add_u32 s{sPst}, s{sPst}, {PART + w*65536}
    s_lshl_b32 s{sT3}, s{sH}, 13
    s_add_u32 s{sPld}, s{sT1}, s{sT3}
    s_add_u32 s{sPld}, s{sPld}, {PART - MISC + (w&1)*4096}
    s_add_u32 s{sT0}, s{sStep}, 3
    s_and_b32 s{sT0}, s{sT0}, 3
    s_lshl_b32 s{sT1}, s{sT0}, 18
    s_mov_b32 s{sTag}, 0
    s_lshr_b32 s{sT2}, s{sH}, 3
    s_lshl_b32 s{sT2}, s{sT2}, 11
    s_and_b32 s{sT3}, s{sH}, 1
    s_lshl_b32 s{sT3}, s{sT3}, 9
    s_add_u32 s{sT2}, s{sT2}, s{sT3}
    s_bfe_u32 s{sT3}, s{sH}, 0x20001
    s_lshl_b32 s{sT3}, s{sT3}, 6
    s_add_u32 s{sT2}, s{sT2}, s{sT3}
    s_lshl_b32 s{sT1}, s{sT0}, 13
    s_add_u32 s{sMclr}, s{sT1}, s{sT2}
    s_add_u32 s{sMclr}, s{sMclr}, {MBUF + (w&1)*1024}
    s_add_u32 s{sT0}, s{sStep}, 1
    s_and_b32 s{sT0}, s{sT0}, 3
    s_lshl_b32 s{sT1}, s{sT0}, 13
    s_add_u32 s{sMpub}, s{sT1}, s{sT2}
    s_add_u32 s{sMpub}, s{sMpub}, {MBUF + (w&1)*1024}
    s_add_u32 s{sMpoll}, s{sT1}, {MBUF - MISC + w*2048}
    s_lshl_b32 s{sT0}, s{sStep}, 5
    s_add_u32 s{sT0}, s{sT0}, s{sH}
    s_lshl_b32 s{sT1}, s{sT0}, 13
    s_add_u32 s{sVx}, s{sT1}, {VIMG - MISC + w*2048}
    s_add_u32 s{sKx}, s{sT1}, {KIMG - MISC + 32*8192}
    s_lshl_b32 s{sT1}, s{sT0}, 12
    s_add_u32 s{sKm}, s{sT1}, {KMEM - MISC + w*1024}
    s_lshl_b32 s{sT1}, s{sT0}, 11
    s_add_u32 s{sVm}, s{sT1}, {VMEM + w*512}
    """)

sRP, sRM, sMprev, sCP1, sCP2, sCM1, sVmPrev = 76, 77, 78, 79, 80, 81, 82
sKb, sStage = 75, 74
sONE = 42
sB1M = 40
def init_incr(a, w):
    a(f"""
    s_mov_b32 s{sRP}, 0
    s_mov_b32 s{sRM}, 8192
    s_mov_b32 s{sCP1}, s{sPst}
    s_mov_b32 s{sCP2}, s{sPld}
    s_sub_u32 s{sCM1}, s{sMpub}, 8192
    s_mov_b32 s{sMprev}, s{sCM1}
    """)
NP = [1]
def advance(a, w):
    a(f"""
    s_add_u32 s{sVx}, s{sVx}, {32*8192}
    s_add_u32 s{sKx}, s{sKx}, {32*8192}
    s_add_u32 s{sKm}, s{sKm}, {32*4096}
    s_sub_u32 s{sMclr}, s{sMprev}, {(w&1)*1024}
    s_mov_b32 s{sMprev}, s{sMpub}
    s_add_u32 s{sRM}, s{sRM}, 8192
    s_and_b32 s{sRM}, s{sRM}, 0x7fff
    s_add_u32 s{sMpub}, s{sRM}, s{sCM1}
    s_add_u32 s{sStep}, s{sStep}, 1
    """)
    if NP[0] == 1: a(f"s_xor_b32 s{sTag}, s{sTag}, 1")
    else:
        a(f"""
        s_add_u32 s{sRP}, s{sRP}, 0x40000
        s_and_b32 s{sRP}, s{sRP}, {NP[0]*0x40000 - 1}
        s_add_u32 s{sPst}, s{sRP}, s{sCP1}
        s_add_u32 s{sPld}, s{sRP}, s{sCP2}
        s_bfe_u32 s{sTag}, s{sStep}, {0x10000 + NP[0].bit_length() - 1}
        """)

def korder(w):
    own = [2 * w, 2 * w + 1]
    rest = [(2 * w + 2 + k) % 8 for k in range(6)]
    seq = [(0, own[0]), (1, own[0]), (0, own[1]), (1, own[1])] + [(0, s) for s in rest] + [(1, s) for s in rest]
    return own, rest, seq

ABL = [""]; NT = [""]
def ring_fill(a, w, i):
    if "r" in ABL[0] and i >= NRING: return
    t, s = korder(w)[2][i]
    r = ringreg(i); imm = WQ_SLOT[s >> 1] * 8192 + ((s & 1) * 2 + t) * 2048
    a.ds(f"ds_read_b128 {vr(r,4)}, v{vRing} offset:{imm}", ("ring", i))
    a.ds(f"ds_read_b128 {vr(r+4,4)}, v{vRing} offset:{imm+1024}", ("ring", i))

def kx_dma(a, w, i):
    a(f"s_add_u32 m0, s{sKb}, {i*1024}")
    a(f"s_add_u32 s{sT0}, s{sKx}, {i*1024}")
    a.vm(f"buffer_load_dwordx4 v{vM16}, s[{sWS}:{sWS+3}], s{sT0} offen {NT[0]} lds", "kx")

class Stream:
    def __init__(self): self.ops = []; self.fill = {}
    def add(self, f, pre=None): self.ops.append((f, pre)); return len(self.ops) - 1
    def at(self, g, f): self.fill.setdefault(g, []).append(f)
    def emit(self):
        for g, (f, pre) in enumerate(self.ops):
            if pre: pre()
            f()
            for x in self.fill.pop(g, []): x()
        assert not self.fill, self.fill.keys()

def loop(a, w, st, P, diag=False):
    tag = f"{w}{'s' if st else 'f'}"
    WS = f"s[{sWS}:{sWS+3}]"
    smf = lambda d, A, B: a(f"v_smfmac_f32_16x16x64_bf16 {vr(d,4)}, {vr(A,4)}, {B}, v{vIDX}")
    mf = lambda d, A, B, c: a(f"v_mfma_f32_16x16x32_bf16 {vr(d,4)}, {vr(A,4)}, {vr(B,4)}, {c}")
    mf16 = lambda d, A, B, c: a(f"v_mfma_f32_16x16x16_bf16 {vr(d,4)}, {vr(A,2)}, {vr(B,2)}, {c}")
    I = lambda t: (lambda: a(t))
    Af = lambda s: vA + 4 * s
    q = lambda t: vACC + 8 * t
    k_ = lambda t: vACC + 8 * t + 4
    vacc = lambda t: (vVA0, vPM)[t]
    own, rest, seq = korder(w)
    ABL[0] = P.get("abl", ""); NP[0] = P.get("np", 1); NT[0] = P.get("nt", "nt")
    SL = P.get("stamps", ["start", "qkend", "xbar", "scores", "pv", "obar", "opend", "pub", "bdone"])
    def ST(n):
        if diag and n in SL:
            if P.get("trace"): a(f"s_memrealtime s[{sTS+2*SL.index(n)}:{sTS+2*SL.index(n)+1}]")
            else: stamp(a, SL.index(n), diag)
    vVM = vVA0 + 2
    def zero_acc():
        if w == 3:
            a(f"v_mov_b32 v124, -1\nv_lshrrev_b32 v125, 8, v{vL8}\nv_bfe_u32 v126, v{vL8}, 7, 1\nv_lshl_add_u32 v125, v125, 2, v126\nv_bfe_u32 v126, v{vL8}, 1, 6\nv_lshl_add_u32 v125, v125, 8, v126")
        for r in range(16): a(f"v_mov_b32 v{vACC+r}, 0")
        for t in range(2):
            for r in range(4): a(f"v_mov_b32 v{vacc(t)+r}, 0")
    def mwrite():
        for o in own:
            a.ds(f"ds_write_b128 v{vM16}, {vr(Af(o),4)} offset:{M_OFF + o*1024}", "mw")
    hook = P.get("hooks")
    if hook: hook["ready"](a, w, tag, True)
    vxl = [lambda: a.vm(f"buffer_load_dwordx4 {vr(vVX,4)}, v{vM16}, {WS}, s{sVx} offen {NT[0]}", "vx"),
           lambda: a.vm(f"buffer_load_dwordx4 {vr(vVX+4,4)}, v{vM16}, {WS}, s{sVx} offen offset:1024 {NT[0]}", "vx")]
    a(f"s_mov_b32 s{sKb}, {MISC+KX_OFF}\ns_lshl_b32 s{sKx}, s{sH}, 13\ns_add_u32 s{sKx}, s{sKx}, {KIMG - MISC}")
    kx_dma(a, w, 2 * w); kx_dma(a, w, 2 * w + 1)
    for r in range(8): a(f"v_mov_b32 v{Af(own[0])+r}, v{(16, 17, 18, 19, 12, 13, 14, 15)[r]}")
    a(f"s_mov_b32 s{sStep}, 0\ns_mov_b32 s{sKb}, {MISC+KX_OFF+8192}")
    seg_offsets(a, w, P)
    if P.get("kxA"): kx_dma(a, w, 2 * w); kx_dma(a, w, 2 * w + 1)
    a(f"s_mov_b32 s{sVmPrev}, s{sKm}\ns_sub_u32 s{sMclr}, s{sMclr}, {(w&1)*1024}")
    init_incr(a, w)
    a(f"v_mov_b32 v{vVX}, -1\nv_mov_b32 v{vVX+1}, -1\nv_mov_b32 v{vVX+2}, -1\nv_mov_b32 v{vVX+3}, -1")
    a.ds(f"ds_write_b128 v{vOr}, {vr(vVX,4)} offset:{w*512}")
    for i in range(NRING): ring_fill(a, w, i)
    zero_acc()
    a(f"s_waitcnt vmcnt(0)"); a.vmq = []
    a.wait_ds_all(True)
    LB = [Af(o) for o in own]
    loadB = lambda k: a(f"buffer_load_dwordx4 {vr(LB[k],4)}, v{vM16}, {WS}, s{sMpoll} offen offset:{k*1024} sc1")
    NS = P["depB"]
    def retryB():
        a.label(f"CH_RBRETRY_{tag}")
        loadB(0); loadB(1)
        if diag: a(f"s_add_u32 s{sTS+21}, s{sTS+21}, 1")
        a(f"s_add_u32 s{sCnt}, s{sCnt}, 1")
        a(f"s_cmp_gt_u32 s{sCnt}, {P['bound']}\ns_cbranch_scc1 CH_RBOK_{tag}\ns_branch CH_RB_{tag}")
    a(f"s_mov_b32 s{sCnt}, 0")
    for k in range(8): a(f"v_min_u32 v{LB[0]+k}, 0xfffffffe, v{LB[0]+k}")
    a.label(f"CH_RB_{tag}")
    ST("B_w0")
    a.dsq = []
    r_ = [LB[0] + k for k in range(8)]
    a(f"s_waitcnt vmcnt({2 * NS - 1})")
    a(f"v_max3_u32 v10, v{r_[0]}, v{r_[1]}, v{r_[2]}")
    a(f"v_max_u32 v10, v10, v{r_[3]}")
    a.ds(f"ds_write_b128 v{vM16}, {vr(LB[0],4)} offset:{M_OFF + own[0]*1024}", "mw")
    a(f"s_waitcnt vmcnt({2 * NS - 2})")
    a(f"v_max3_u32 v10, v10, v{r_[4]}, v{r_[5]}")
    a(f"v_max3_u32 v10, v10, v{r_[6]}, v{r_[7]}")
    a.ds(f"ds_write_b128 v{vM16}, {vr(LB[1],4)} offset:{M_OFF + own[1]*1024}", "mw")
    a(f"v_cmp_eq_u32 vcc, -1, v10")
    a(f"s_cbranch_vccnz CH_RBRETRY_{tag}" if not P.get("free") else "s_nop 0")
    a.label(f"CH_RBOK_{tag}")
    if diag:
        ST("bdone")
        a("s_waitcnt lgkmcnt(0)")
        a(f"s_cmp_eq_u32 s{sStep}, 0")
        a(f"s_cbranch_scc1 CH_NOACC_{tag}")
        for k in range(8):
            a(f"s_sub_u32 s{sT0}, s{sTS+2*k+2}, s{sTS+2*k}")
            a(f"s_add_u32 s{sTS+22+k}, s{sTS+22+k}, s{sT0}")
        if P.get("trace"):
            a(f"s_cmp_eq_u32 s{sStep}, {P['trace']}")
            for k, dst in enumerate((83, 84, 85, 86, 87, 88, 89, 100, 101)):
                a(f"s_cselect_b32 s{dst}, s{sTS+2*k}, s{dst}")
        a.label(f"CH_NOACC_{tag}")
        if w == 3 and P.get("steptime"):
            a(f"s_memrealtime s[{sT2}:{sT2+1}]\ns_lshl_b32 s{sT0}, s{sH}, 6\ns_add_u32 s{sT0}, s{sT0}, s{sStep}\ns_lshl_b32 s{sT0}, s{sT0}, 2\ns_add_u32 s{sT0}, s{sT0}, {DBG + 0x40000}\ns_waitcnt lgkmcnt(0)")
            a(f"v_mov_b32 v10, s{sT2}\nv_mov_b32 v11, 0\nbuffer_store_dword v10, v11, {WS}, s{sT0} offen")
            a(f"s_memtime s[{sT2}:{sT2+1}]\ns_add_u32 s{sT0}, s{sT0}, 0x10000\ns_waitcnt lgkmcnt(0)\nv_mov_b32 v10, s{sT2}\nbuffer_store_dword v10, v11, {WS}, s{sT0} offen")
    ST("start")
    a.vmq = ["stale"] * (2 * NS - 2) + (["dbg", "dbg"] if diag and w == 3 and P.get("steptime") else [])
    S = Stream()
    vs = [(t, s) for s in own + rest for t in range(2)]
    def vsm(S, pre=None):
        t, s = vs.pop(0)
        return S.add(lambda: smf(vacc(t), Af(s), ar(wv(t, s), 8)), pre)
    gq = {}
    aread = lambda s: a.ds(f"ds_read_b128 {vr(Af(s),4)}, v{vM16} offset:{M_OFF + s*1024}", ("A", s))
    NB = P["pre_bar"]
    def bar_and_reads():
        a.wait_ds("mw")
        ST("mbar0")
        a("s_barrier")
        ST("mbar1")
        for s in rest[:P["a_burst"]]: aread(s)
    xread = lambda sg: [a.ds(f"ds_read_b64_tr_b16 {vr(vXF+4*sg+2*p,2)}, v{vXr} offset:{(sg&1)*512 + p*256 + (sg>>1)*128}", ("X", sg)) for p in range(2)]
    for i in range(16):
        t, s = seq[i]
        def pre(i=i, s=s):
            a.wait_ds(("A", s))
            if i in (4, 7, 10, 13): ST(f"q{i}")
            a.wait_ds(("ring", i))
        if i == 4:
            for n in range(4): vsm(S)
        gq[i] = S.add(lambda t=t, s=s, i=i: smf(q(t), Af(s), vr(ringreg(i), 8)), pre)
        S.add(lambda t=t, s=s: smf(k_(t), Af(s), vr(wk(t, s), 8)))
    GB = P["pre_bar"] - 1
    S.at(GB, bar_and_reads)
    kxread = lambda kt, s: a.ds(f"ds_read_b128 {vr(kx(kt,s),4)}, v{vKx} offset:{(kt*4+s)*1024}", "kx")
    def half_fill(i, h):
        t, s = seq[i]
        r = ringreg(i) + 4 * h; imm = WQ_SLOT[s >> 1] * 8192 + ((s & 1) * 2 + t) * 2048 + h * 1024
        a.ds(f"ds_read_b128 {vr(r,4)}, v{vRing} offset:{imm}", ("ring", i))
    reads = [(GB + 1, lambda s=s: aread(s)) for s in rest[P["a_burst"]:]]
    ringr = [(gq[i - NRING], lambda i=i, h=h: half_fill(i, h)) for i in range(NRING, 16) for h in range(2)]
    npre = P["r_pre"]
    for n in range(npre): S.at(max(ringr[n][0], min(n + 1, GB)), ringr[n][1])
    if "r" not in ABL[0]: reads += ringr[npre:]
    if "k" not in ABL[0]: reads += [(gq[10 + n // 2], lambda n=n: kxread(n >> 2, n & 3)) for n in range(P["kx_in"])]
    g = GB + 1
    for (e, f) in reads:
        g = max(g, e)
        S.at(min(g, 35), f); g += 1
    def post(t, r0):
        return [I(f"v_add_f32 v{q(t)}, v{q(t)}, v{q(t)+2}"), I(f"v_add_f32 v{q(t)+1}, v{q(t)+1}, v{q(t)+3}"),
                I(f"v_add_f32 v{k_(t)}, v{k_(t)}, v{k_(t)+2}"), I(f"v_add_f32 v{k_(t)+1}, v{k_(t)+1}, v{k_(t)+3}"),
                I(f"v_cvt_pk_bf16_f32 v{r0}, v{q(t)}, v{q(t)+1}"), I(f"v_cvt_pk_bf16_f32 v{r0+1}, v{k_(t)}, v{k_(t)+1}"),
                lambda: a.ds(f"ds_write_b64 v{vXw}, {vr(r0,2)} offset:{t*128}", "xw")]
    p0 = post(0, vACC + 6)
    g0 = gq[10] + 2
    S.at(gq[10], lambda: a.nop(2)); S.at(gq[10] + 1, lambda: a.nop(2))
    g0 += P.get("p0off", 0)
    if "p" not in ABL[0] and not P.get("pboth"):
        for n in range(6): S.at(g0 + n, p0[n])
        if not P.get("xw2"): S.at(g0 + 5 + P.get("p0w", 0), p0[6])
    vONE = vACC
    if not P.get("one_late") and not P.get("pboth"):
        for n in range(4): S.at(g0 + 6 + n, I(f"v_mov_b32 v{vONE+n}, s{sONE}"))
    late = {}
    if P["jobs"] == "S" and "j" not in ABL[0]:
        jobs = [lambda: a.vm(f"buffer_store_dwordx4 {vr(vVX,4)}, v{vM16}, {WS}, s{sVmPrev} offen sc1", "exp"), vxl[0], vxl[1],
                lambda: kx_dma(a, w, 2 * w), lambda: kx_dma(a, w, 2 * w + 1)]
        if P.get("kxA"): jobs = jobs[:3] + [None] * 2
        if w == 3: jobs.append(lambda: a.vm(f"buffer_store_dword v124, v125, {WS}, s{sMclr} offen {st}", "clr"))
        if hook and w == P.get("fw", 0): jobs.append(lambda: hook["flag"](a))
        if hook and w == 2: S.at(P["j0"] + P["jw"] * w + P["jstr"] // 2, lambda: hook["look"](a))
        for n, jb in enumerate(jobs):
            if jb is None: continue
            g = P["j0"] + P["jstr"] * n + P["jw"] * w
            if n == 5: g = P["j0"] + P["jstr"] * (2 if w else 1) + P["jw"] * w + P["jstr"] // 2
            if n == 6: g = P["j0"] + P["jstr"] + P["jw"] * w + P["jstr"] // 2
            if g < 36: S.at(g, jb)
            else: late.setdefault(g - 36 + 2, []).append(jb)
    S.at(gq[12], I(f"s_add_u32 s{sMpoll}, s{sRM}, {MBUF - MISC + w*2048}"))
    if 35 not in S.fill: S.at(35, lambda: a.nop(1))
    S.emit()
    ST("qkend")
    T0, T1, Tm = vACC + 8, vACC + 12, vT
    def score(S, T, sg):
        A = {T0: kx(0, sg), T1: kx(1, sg), Tm: vXF + 4 * sg}[T]
        return S.add(lambda: mf(T, A, vXF + 4 * sg, "0" if sg == 0 else vr(T, 4)), lambda: a.wait_ds(("X", sg)))
    p1 = post(1, vACC + 4)
    S = Stream()
    if P.get("pboth"):
        a(f"v_pk_add_f32 {vr(q(0),2)}, {vr(q(0),2)}, {vr(q(0)+2,2)}\nv_pk_add_f32 {vr(k_(0),2)}, {vr(k_(0),2)}, {vr(k_(0)+2,2)}")
        p0[4](); p0[5]()
        if not P.get("xw2"): p0[6]()
        a.nop(2 if P.get("xw2") else 1)
    else: a.nop(6)
    a(f"v_pk_add_f32 {vr(q(1),2)}, {vr(q(1),2)}, {vr(q(1)+2,2)}\nv_pk_add_f32 {vr(k_(1),2)}, {vr(k_(1),2)}, {vr(k_(1)+2,2)}")
    for n in range(4, 6): p1[n]()
    if P.get("xw2"): a.ds(f"ds_write2_b64 v{vXw}, {vr(vACC+6,2)}, {vr(vACC+4,2)} offset0:0 offset1:16", "xw")
    else: p1[6]()
    for n in range(P["v_pre"]):
        g = vsm(S)
        if P["kx_in"] + n < 8: S.at(g, lambda n=n: kxread((P["kx_in"] + n) >> 2, (P["kx_in"] + n) & 3))
    assert P["kx_in"] + P["v_pre"] >= 8
    def xbar1():
        a.wait_ds("xw")
        a("s_barrier"); ST("xbar"); xread(0)
    g = vsm(S, xbar1)
    S.at(g, lambda: xread(1))
    S.at(vsm(S), lambda: xread(2)); S.at(vsm(S), lambda: xread(3))
    ones = list(range(4)) if P.get("one_late") or P.get("pboth") else []
    while vs:
        gl = vsm(S)
        if ones: S.at(gl, I(f"v_mov_b32 v{vONE+ones.pop(0)}, s{sONE}"))
    for g, l_ in late.items():
        for jb in l_: S.at(g, jb)
    S.at(gl, lambda: (a.wait_vm("stale"), a.wait_ds("kx"), ST("vdone")))
    m, t_ = vT, 11
    gs = [score(S, T, sg) for T in (T0, T1, Tm) for sg in range(4)]
    va = [I(f"v_add_f32 v{vacc(t)+k}, v{vacc(t)+k}, v{vacc(t)+k+2}") for t in range(2) for k in range(2)]
    for n in range(4): S.at(gs[n], lambda: a.nop(1))
    S.at(gs[4], va[0]); S.at(gs[4], va[1]); S.at(gs[5], va[2]); S.at(gs[5], va[3])
    S.at(gs[6], I(f"v_cvt_pk_bf16_f32 v{vVM}, v{vacc(0)}, v{vacc(0)+1}"))
    S.at(gs[7], I(f"v_cvt_pk_bf16_f32 v{vVM+1}, v{vacc(1)}, v{vacc(1)+1}"))
    S.at(gl, I(f"s_cmp_ge_u32 s{sStep}, 63\ns_cbranch_scc1 CH_DONE_{tag}"))
    S.at(gs[8], I(f"v_max3_f32 v10, v{T0}, v{T0+1}, v{T0+2}\nv_mov_b32 v{vPM+1}, 0\ns_nop 1"))
    S.at(gs[9], I(f"v_max_f32 v10, v10, v{T0+3}\nv_mov_b32 v{vPM+2}, 0\ns_nop 1"))
    S.at(gs[10], I(f"v_max3_f32 v10, v10, v{T1}, v{T1+1}"))
    S.at(gs[11], I(f"v_max3_f32 v10, v10, v{T1+2}, v{T1+3}"))
    S.emit()
    ST("scores")
    oacc = lambda d: vRING + 4 * d
    zq = list(range(16))
    z = lambda n: [a(f"v_mov_b32 v{vRING+zq.pop(0)}, 0") for _ in range(n)]
    z(7)
    a(f"v_max3_f32 v{m}, v10, v{Tm+2}, v{Tm+3}")
    a(f"v_mov_b32 v{t_}, v{m}")
    z(2)
    a(f"v_permlane32_swap_b32 v{m}, v{t_}")
    a(f"v_max_f32 v{m}, v{m}, v{t_}")
    a(f"v_mov_b32 v{t_}, v{m}")
    z(2)
    a(f"v_permlane16_swap_b32 v{m}, v{t_}")
    a(f"v_max_f32 v{m}, v{m}, v{t_}")
    a(f"v_mul_f32 v10, s{sC}, v{m}")
    pf = lambda r: a(f"v_pk_fma_f32 {vr(r,2)}, {vr(r,2)}, s[{sC}:{sC+1}], v[10:11] op_sel_hi:[1,1,0] neg_lo:[0,0,1] neg_hi:[0,0,1]")
    ex = lambda r: a(f"v_exp_f32 v{r}, v{r}")
    aX, aY, aL = vA, vA + 4, vA + 24
    vPX = vACC + 4
    pf(Tm + 2); pf(T0); ex(Tm + 2); ex(Tm + 3); pf(T0 + 2); pf(T1); pf(T1 + 2)
    a(f"v_cvt_pk_bf16_f32 v{vPM}, v{Tm+2}, v{Tm+3}")
    a(f"v_cvt_pk_bf16_f32 v{vPM+3}, v{Tm+2}, v{Tm+3}")
    ex(T0); ex(T0 + 1)
    mf16(aL, vONE, vPM, "0")
    ex(T0 + 2); ex(T0 + 3)
    mf16(aX, vVM, vPM, "0")
    ex(T1); ex(T1 + 1)
    mf16(aY, vVM, vPM + 2, "0")
    ex(T1 + 2); ex(T1 + 3)
    a(f"v_cvt_pk_bf16_f32 v{vPX}, v{T0}, v{T0+1}")
    a(f"v_cvt_pk_bf16_f32 v{vPX+1}, v{T0+2}, v{T0+3}")
    a(f"v_cvt_pk_bf16_f32 v{vPX+2}, v{T1}, v{T1+1}")
    a(f"v_cvt_pk_bf16_f32 v{vPX+3}, v{T1+2}, v{T1+3}")
    a.wait_vm("vx")
    a.nop(2 if "j" in ABL[0] else 1)
    mf(aL, vONE, vPX, vr(aL, 4)); z(2)
    mf(aX, vVX, vPX, vr(aX, 4)); z(2)
    mf(aY, vVX + 4, vPX, vr(aY, 4))
    ST("pv")
    z(1); a.nop(1)
    a(f"v_rcp_f32 v10, v{aL}")
    a.nop(3)
    vOW = vA + 8
    for r in range(4):
        if r == 2: a.nop(1)
        a(f"v_pk_mul_f32 {vr(aX+2*r,2)}, {vr(aX+2*r,2)}, v[10:11] op_sel_hi:[1,0]")
    for r in range(4):
        a(f"v_cvt_pk_bf16_f32 v{vOW+r}, v{aX+2*r}, v{aX+2*r+1}")
    if P.get("otag"): a(f"v_and_or_b32 v{vOW}, v{vOW}, -2, s{sTag}")
    a(f"s_not_b64 exec, s[{sB1M}:{sB1M+1}]")
    a.ds(f"ds_write_b128 v{vOr}, {vr(vOW,4)} offset:{w*512}", "ow")
    a("s_mov_b64 exec, -1")
    vOF = lambda s: vA + 12 + 4 * s
    a.nop(1)
    for r in range(4):
        a(f"v_mov_b32_dpp v{vOF(w)+r}, v{vOW+r} quad_perm:[0,1,0,1] row_mask:0xf bank_mask:0xf")
    a.nop(2)
    assert not zq
    S = Stream()
    orest = [(w + 1 + k) % 4 for k in range(3)]
    def obar():
        if not P.get("otag"): a.wait_ds_all()
        a("s_barrier")
        ST("obar")
        for s in orest: a.ds(f"ds_read_b128 {vr(vOF(s),4)}, v{vOr} offset:{s*512}", ("O", s))
        a(f"s_add_u32 s{sT0}, s{sPst}, 4096")
    XW = vXF + 4 * w
    sel = lambda d, f, dst=vVX: f"v_cndmask_b32 v{dst+d}, v{f}, v{XW+d}, s[{sB1M}:{sB1M+1}]"
    dpp = lambda d: f"v_mov_b32_dpp v{10+d}, v{vVM+d} quad_perm:[2,3,2,3] row_mask:0xf bank_mask:0xf"
    pack = [I(dpp(0) + "\n" + sel(0, vVM)), I(dpp(1) + "\n" + sel(1, vVM + 1)), I(sel(2, 10)), I(sel(3, 11))]
    for d in range(4):
        g = S.add(lambda d=d: smf(oacc(d), vOF(w), ar(wo(d, w), 8)), obar if d == P["o_pre"] else None)
        S.at(g, pack[d])
    if P["o_pre"] == 4: S.at(g, obar)
    vST = vRING + 16
    go = [S.add(lambda d=d, s=s: smf(oacc(d), vOF(s), ar(wo(d, s), 8)), lambda s=s: a.wait_ds(("O", s)))
          for (d, s) in ([(d, s) for s in orest for d in (0, 1)] + ([(d, s) for d in (2, 3) for s in orest] if P.get("dmaj") else [(d, s) for s in orest for d in (2, 3)]))]
    if P.get("otag"):
        f_ = [vOF(s_) for s_ in orest]
        ochk = [f"v_bitop3_b32 v10, v{f_[0]}, v{f_[1]}, s{sTag} bitop3:0x7e", f"v_bitop3_b32 v10, v10, v{f_[2]}, s{sTag} bitop3:0xf6",
                "v_and_b32 v10, 1, v10", "v_cmp_ne_u32 vcc, 0, v10"]
        S.ops[go[0]] = (S.ops[go[0]][0], lambda: (a.label(f"CH_OGO_{tag}"), a.wait_ds(("O", orest[0]))))
        S.at(go[2], I(ochk[0])); S.at(go[4], I(ochk[1])); S.at(go[5], I(ochk[2] + "\n" + ochk[3] + f"\ns_cbranch_vccnz CH_OREDO_{tag}"))
    cv = lambda d, k: I(f"v_cvt_pk_bf16_f32 v{vST+2*d+k}, v{oacc(d)+2*k}, v{oacc(d)+2*k+1}")
    tg = lambda dp: I(f"v_and_or_b32 v{vST+4*dp}, v{vST+4*dp}, -2, s{sTag}")
    pst = lambda dp: a.vm(f"buffer_store_dwordx4 {vr(vST+4*dp,4)}, v{vPst}, {WS}, s{sT0 if dp else sPst} offen {st}", "pst")
    if P.get("pst0", 0) == 0:
        S.at(go[6], lambda: a.nop(6)); S.at(go[6], cv(0, 0)); S.at(go[7], cv(0, 1)); S.at(go[8], tg(0)); S.at(go[9], cv(1, 0)); S.at(go[10], cv(1, 1))
        S.at(go[10], lambda: pst(0))
    elif P["pst0"] == 1:
        S.at(go[6], lambda: a.nop(6)); S.at(go[6], cv(0, 0)); S.at(go[6], cv(0, 1)); S.at(go[7], cv(1, 0)); S.at(go[7], cv(1, 1)); S.at(go[7], tg(0))
        S.at(go[7], lambda: pst(0))
    else:
        S.at(go[6], lambda: a.nop(6))
        for f in (cv(0, 0), cv(0, 1), cv(1, 0), cv(1, 1), tg(0), lambda: pst(0)): S.at(go[6], f)
    if P.get("dmaj"):
        S.at(go[9], lambda: a.nop(3)); S.at(go[10], lambda: a.nop(3)); S.at(go[10], cv(2, 0))
    S.emit()
    if P.get("dmaj"):
        cv(2, 1)(); tg(1)(); a.nop(6); cv(3, 0)(); cv(3, 1)(); pst(1)
    else:
        a.nop(7 if P.get('pst0', 0) else 6)
        cv(2, 0)(); cv(2, 1)(); cv(3, 0)(); cv(3, 1)(); tg(1)(); pst(1)
    ST("opend")
    LA = [Af(rest[k]) for k in range(4)]
    vRA, vRD = Af(rest[4]), Af(rest[5])
    def issueA():
        for k in range(4): a(f"buffer_load_dwordx4 {vr(LA[k],4)}, v{vM16}, {WS}, s{sPld} offen offset:{k*1024} sc1")
    def adv():
        a(f"s_mov_b32 s{sCnt}, 0\ns_mov_b32 s{sVmPrev}, s{sKm}")
        advance(a, w)
        if hook: hook["ready"](a, w, tag, False)
    def chores():
        zero_acc()
        a(f"v_xor_b32 v{vKx}, 8192, v{vKx}\ns_xor_b32 s{sKb}, s{sKb}, 8192")
    a(f"s_mov_b32 s{sCnt}, 0")
    if w < 2:
        a.ds(f"ds_read_b128 {vr(vRA,4)}, v{vM16} offset:{RA_OFF}", "ra")
        if w == 1: chores()
        a.nop(P["dlyA"][w])
        issueA()
        ST("issA")
        if w == 0: chores()
        for i in range(P["nrA"]): ring_fill(a, w, i)
        DA = P["depA"][w]
        for _ in range(DA - 1):
            a.nop(P["gapA"]); issueA()
        a.wait_ds("ra")
        a.label(f"CH_RA_{tag}")
        ny = 4 * (DA - 1)
        for k in range(4):
            a(f"s_waitcnt vmcnt({ny + 3 - k})")
            if k == 3: ST("A_w2")
            a(f"v_xor_b32 v10, s{sTag}, v{LA[0]}" if k == 0 else f"v_bitop3_b32 v10, v10, v{LA[k]}, s{sTag} bitop3:0xf6")
            mf(vRD, LA[k], vRA, "0" if k == 0 else vr(vRD, 4))
        a(f"v_and_b32 v10, 1, v10\nv_cmp_ne_u32 vcc, 0, v10")
        a(f"s_cbranch_vccnz CH_RARETRY_{tag}" if not P.get("free") else "s_nop 0")
        a.label(f"CH_RAOK_{tag}")
        ST("A_ok")
        a.nop(5)
        a(f"v_permlane32_swap_b32 v{vRD}, v{vRD+2}")
        a(f"v_permlane32_swap_b32 v{vRD+1}, v{vRD+3}")
        a(f"s_mov_b64 exec, s[{sLO8}:{sLO8+1}]")
        a(f"v_pk_add_f32 {vr(vRD,2)}, {vr(vRD,2)}, {vr(vRD+2,2)}")
        a(f"v_cvt_pk_bf16_f32 v{vRD}, v{vRD}, v{vRD+1}")
        a(f"buffer_store_dword v{vRD}, v{vMpub}, {WS}, s{sMpub} offen {st}")
        a("s_mov_b64 exec, -1")
        ST("pub")
        if w == 0:
            for i in range(P["nrA"], NRING): ring_fill(a, w, i)
    else:
        chores()
        if P.get("kxA"):
            adv()
            for i in range(4): kx_dma(a, w, 4 * (w - 2) + i)
        for i in range(NRING): ring_fill(a, w, i)
    if w == 0 or (w > 1 and not P.get("kxA")): adv()
    a("s_barrier")
    a.nop(P["dlyB"])
    loadB(0); loadB(1)
    ST("issB")
    if w == 1: adv()
    for _ in range(NS - 1):
        a.nop(P["gapB"] if w != 1 else max(0, P["gapB"] - P["w1c"])); loadB(0); loadB(1)
    if w == 1:
        for i in range(P["nrA"], NRING): ring_fill(a, w, i)
    a.wait_ds_all()
    a.vmq = []
    a(f"s_branch CH_RB_{tag}")
    if w < 2:
        a.label(f"CH_RARETRY_{tag}")
        issueA()
        a(f"s_add_u32 s{sCnt}, s{sCnt}, 1")
        if diag: a(f"s_add_u32 s{sTS+20}, s{sTS+20}, 1")
        a(f"s_cmp_gt_u32 s{sCnt}, {P['bound']}")
        a(f"s_cbranch_scc1 CH_RAOK_{tag}")
        a(f"s_branch CH_RA_{tag}")
    retryB()
    if P.get("otag"):
        a.label(f"CH_OREDO_{tag}")
        a(f"s_mov_b32 s{sCnt}, 0")
        a.label(f"CH_OREDO1_{tag}")
        a.nop(8)
        for s_ in orest: a(f"ds_read_b128 {vr(vOF(s_),4)}, v{vOr} offset:{s_*512}")
        for r in range(16): a(f"v_mov_b32 v{vRING+r}, 0")
        a(f"s_add_u32 s{sCnt}, s{sCnt}, 1\ns_waitcnt lgkmcnt(0)")
        for t_ in ochk: a(t_)
        a(f"s_cmp_gt_u32 s{sCnt}, {P['bound']}\ns_cbranch_scc1 CH_OREDO2_{tag}\ns_cbranch_vccnz CH_OREDO1_{tag}")
        a(f"s_branch CH_OREDO3_{tag}")
        a.label(f"CH_OREDO2_{tag}")
        for s_ in orest: a(f"v_and_or_b32 v{vOF(s_)}, v{vOF(s_)}, -2, s{sTag}")
        a.nop(2)
        a.label(f"CH_OREDO3_{tag}")
        if diag: a(f"s_add_u32 s{sTS+21}, s{sTS+21}, 0x10000")
        for d in range(4): smf(oacc(d), vOF(w), ar(wo(d, w), 8))
        a(f"s_branch CH_OGO_{tag}")
    a.label(f"CH_DONE_{tag}")
    a.wait_ds_all(True)
    a.nop(5)
    for f in va: f()
    a(f"v_cvt_pk_bf16_f32 v{vVM}, v{vacc(0)}, v{vacc(0)+1}\nv_cvt_pk_bf16_f32 v{vVM+1}, v{vacc(1)}, v{vacc(1)+1}")
    a.nop(2)
    a(dpp(0)); a(dpp(1))
    for d, f in enumerate((vVM, vVM + 1, 10, 11)): a(sel(d, f, T0))
    a(f"buffer_store_dwordx4 {vr(T0,4)}, v{vM16}, {WS}, s{sKm} offen sc1")
    a.dsq = []; a.vmq = []
    if hook: hook["done"](a, w)
```

```python
from asm import *
from layout import *
import math, struct

sWS = 8
WS = f"s[{sWS}:{sWS+3}]"
DB = "s[4:7]"
sW = 17
sRole = 16
sDead = 37
sA, sB, sC_, sD = 32, 33, 34, 35
POLL_BOUND = 1 << 16
SLEEP = [2]
WVERD = [0]
EARLY = [1]
OUTF = ['']
HOLD = [0]
PREFETCH = [(48, 50, 58, 52)]

def fbits(x): return struct.unpack("<I", struct.pack("<f", x))[0]

def srd(a, d, ka, size):
    a(f"s_load_dwordx2 s[{d}:{d+1}], s[0:1], {KA[ka]}\ns_mov_b32 s{d+2}, {size}\ns_mov_b32 s{d+3}, 0x20000")

def poll_ge(a, load, vals, target, name, sleep=1, vtmp=None):
    L = a.newlabel("POLL_" + name); E = L + "_E"
    a(f"s_mov_b32 s{sD}, 0")
    a.label(L)
    a(f"s_cmp_lg_u32 s{sDead}, 0\ns_cbranch_scc1 {E}")
    a(load)
    a(f"s_add_u32 s{sD}, s{sD}, 1")
    a(f"s_cmp_gt_u32 s{sD}, {POLL_BOUND}\ns_cselect_b32 s{sDead}, 1, 0")
    a("s_waitcnt vmcnt(0)")
    v = vals[0]
    for k in range(1, len(vals)):
        a(f"v_min_u32 v{vtmp}, v{v}, v{vals[k]}"); v = vtmp
    a(f"v_cmp_gt_u32 vcc, {target}, v{v}")
    a(f"s_cbranch_vccz {E}")
    if sleep: a(f"s_sleep {sleep}")
    a(f"s_branch {L}")
    a.label(E)
    a.vmq = []

def flag_store(a, soff, sval, v0=2):
    a(f"v_mov_b32 v{v0}, {sval}\ns_mov_b64 exec, 1")
    a.vm(f"buffer_store_dword v{v0}, off, {WS}, {soff} sc1", "flag")
    a("s_mov_b64 exec, -1")

def layernorm(a, sTask, diag=False, local=None, after_loads=None, after_sum=None):
    srd(a, 60, "x", 2048 * 1024)
    a(f"""
    v_and_b32 v8, 7, v0
    v_lshrrev_b32 v9, 3, v0
    v_lshlrev_b32 v14, 10, v8
    v_lshl_add_u32 v14, v9, 4, v14
    s_lshl_b32 s27, s{sTask}, 13
    s_waitcnt lgkmcnt(0)
    """)
    R, F = 16, 48
    for s in range(8):
        a.vm(f"buffer_load_dwordx4 {vr(R+4*s,4)}, v14, s[60:63], s27 offen offset:{s*128}", ("ln", s))
    a(f"""
    v_lshrrev_b32 v15, 2, v9
    v_lshlrev_b32 v15, 11, v15
    v_and_b32 v9, 3, v9
    v_lshl_add_u32 v15, v9, 8, v15
    v_lshl_add_u32 v15, v8, 4, v15
    s_lshr_b32 s27, s{sTask}, 2
    s_lshl_b32 s27, s27, 15
    s_bfe_u32 s28, s{sTask}, 0x10001
    s_lshl_b32 s28, s28, 10
    s_add_u32 s27, s27, s28
    s_and_b32 s28, s{sTask}, 1
    s_lshl_b32 s28, s28, 7
    s_add_u32 s27, s27, s28
    s_add_u32 s27, s27, {XN}
    v_mov_b32 v10, 0
    v_mov_b32 v11, 0
    """)
    if after_loads: after_loads()
    for s in range(8):
        a.wait_vm(("ln", s))
        for k in range(4):
            r = R + 4 * s + k; f = F + 8 * s + 2 * k
            a(f"v_lshlrev_b32 v{f}, 16, v{r}\nv_and_b32 v{f+1}, 0xffff0000, v{r}")
            a(f"v_pk_add_f32 v[10:11], v[10:11], {vr(f,2)}")
    if diag: a("s_memrealtime s[72:73]")
    if after_sum: after_sum()
    def allred():
        a("v_add_f32 v10, v10, v11\ns_nop 1\nv_add_f32_dpp v10, v10, v10 row_ror:8 row_mask:0xf bank_mask:0xf")
        for op in ("v_permlane32_swap_b32", "v_permlane16_swap_b32"):
            a(f"v_mov_b32 v11, v10\ns_nop 1\n{op} v10, v11\nv_add_f32 v10, v10, v11")
    allred()
    a(f"v_mul_f32 v12, {fbits(1/512):#x}, v10\nv_mov_b32 v10, 0\nv_mov_b32 v11, 0")
    for k in range(32):
        f = F + 2 * k
        a(f"v_pk_add_f32 {vr(f,2)}, {vr(f,2)}, v[12:13] op_sel_hi:[1,0] neg_lo:[0,1] neg_hi:[0,1]")
        a(f"v_pk_fma_f32 v[10:11], {vr(f,2)}, {vr(f,2)}, v[10:11]")
    allred()
    a(f"v_mov_b32 v12, {fbits(1e-5):#x}\nv_fmac_f32 v12, {fbits(1/512):#x}, v10\nv_rsq_f32 v12, v12\ns_nop 0")
    for s in range(8):
        for k in range(4):
            f = F + 8 * s + 2 * k
            a(f"v_pk_mul_f32 {vr(f,2)}, {vr(f,2)}, v[12:13] op_sel_hi:[1,0]")
            a(f"v_cvt_pk_bf16_f32 v{R+4*s+k}, v{f}, v{f+1}")
        if local is None:
            a.vm(f"buffer_store_dwordx4 {vr(R+4*s,4)}, v15, {WS}, s27 offen sc1", "lnst")
            a(f"s_add_u32 s27, s27, 4096")
        else:
            if s == 0: a(f"s_and_b32 s27, s27, 0x7fff\ns_add_u32 s27, s27, {local}\nv_add_u32 v15, s27, v15")
            a.ds(f"ds_write_b128 v15, {vr(R+4*s,4)} offset:{s*4096}")
    if diag: a("s_memrealtime s[74:75]")

G1_XBUF = 98304
def gemm1(a, wait_init, verdict, sInit, diag=False):
    sSl, sJ, sKind, sRow, sOut, sN, sXs, sFl = 18, 19, 20, 21, 22, 23, 24, 25
    sSh, sXstep, sOstep, sEnd = 44, 45, 46, 47
    a(f"""
    s_lshr_b32 s{sSl}, s{sRole}, 2
    s_and_b32 s{sJ}, s{sRole}, 3
    s_mov_b32 s{sSh}, 0
    s_cmp_lt_u32 s{sRole}, 128
    s_cbranch_scc1 G1_MAP
    s_add_u32 s{sSl}, s{sSl}, 8
    s_cmp_ge_u32 s{sRole}, 160
    s_cbranch_scc1 G1_MAP
    s_lshr_b32 s{sSl}, s{sRole}, 1
    s_sub_u32 s{sSl}, s{sSl}, 32
    s_and_b32 s{sJ}, s{sRole}, 1
    s_mov_b32 s{sSh}, 1
    G1_MAP:
    s_lshr_b32 s{sXstep}, {4*32768}, s{sSh}
    s_sub_u32 s{sXstep}, s{sXstep}, {7*1024}
    s_lshr_b32 s{sOstep}, {4*32*8192}, s{sSh}
    s_lshl_b32 s{sEnd}, 16, s{sSh}
    s_lshr_b32 s{sKind}, s{sSl}, 4            ; 0 K, 1 V, 2 Q, 3 FFN1
    s_load_dwordx2 s[48:49], s[0:1], {KA['Wk']}
    s_load_dwordx2 s[50:51], s[0:1], {KA['Wv']}
    s_load_dwordx2 s[52:53], s[0:1], {KA['Wq']}
    s_load_dwordx2 s[54:55], s[0:1], {KA['w1']}
    s_load_dwordx2 s[56:57], s[0:1], {KA['b1']}
    s_load_dwordx2 s[58:59], s[0:1], {KA['Wo']}
    s_waitcnt lgkmcnt(0)
    s_mov_b32 s12, s48
    s_mov_b32 s13, s49
    s_mov_b32 s14, {512*4096*2}
    s_mov_b32 s{sRow}, 8192
    s_cmp_eq_u32 s{sKind}, 1
    s_cselect_b32 s12, s50, s12
    s_cselect_b32 s13, s51, s13
    s_cmp_eq_u32 s{sKind}, 2
    s_cselect_b32 s12, s52, s12
    s_cselect_b32 s13, s53, s13
    s_cmp_eq_u32 s{sKind}, 3
    s_cselect_b32 s12, s54, s12
    s_cselect_b32 s13, s55, s13
    s_cselect_b32 s14, {512*1792*2}, s14
    s_cselect_b32 s{sRow}, 3584, s{sRow}
    s_mov_b32 s15, 0x20000
    v_and_b32 v240, 15, v0
    v_lshrrev_b32 v241, 4, v0
    v_and_b32 v242, 3, v0
    v_bfe_u32 v243, v0, 2, 2
    v_lshrrev_b32 v4, 3, v0
    v_mul_lo_u32 v4, v4, s{sRow}
    v_and_b32 v5, 7, v0
    v_bfe_u32 v6, v0, 4, 1
    v_lshlrev_b32 v6, 1, v6
    v_xor_b32 v5, v5, v6
    v_xor_b32 v6, 4, v5
    s_and_b32 s{sA}, s{sSl}, 15
    s_lshl_b32 s{sA}, s{sA}, 9
    s_lshl_b32 s{sB}, s{sW}, 7
    s_add_u32 s{sA}, s{sA}, s{sB}
    v_add_u32 v4, s{sA}, v4
    v_lshl_add_u32 v244, v5, 4, v4
    v_lshl_add_u32 v245, v6, 4, v4
    v_lshl_add_u32 v4, v241, 3, v243
    v_lshlrev_b32 v4, 7, v4
    v_lshl_add_u32 v4, v242, 3, v4
    s_mul_i32 s{sA}, s{sW}, 24576
    v_add_u32 v4, s{sA}, v4
    v_lshrrev_b32 v5, 1, v243
    v_and_b32 v6, 1, v241
    v_lshl_add_u32 v5, v6, 1, v5
    """)
    for f in range(4):
        a(f"v_xor_b32 v6, {f}, v5\nv_lshl_add_u32 v{246+f}, v6, 5, v4")
    a(f"s_lshl_b32 s{sC_}, s{sRow}, 3\ns_mov_b32 s{sN}, 0")
    def issue(c):
        for i in range(8):
            a(f"s_add_u32 m0, s{sA}, {(c%3)*8192 + i*1024}\ns_nop 0")
            a.vm(f"buffer_load_dwordx4 v{244 + (i&1)}, s[12:15], s{sN} offen lds", ("w", c))
            a(f"s_add_u32 s{sN}, s{sN}, s{sC_}")
    def prefetch():
        if not PREFETCH[0]: return
        a(f"s_lshl_b32 s{sB}, s{sRole}, 2\ns_add_u32 s{sB}, s{sB}, s{sW}\ns_lshl_b32 s{sB}, s{sB}, 12\ns_add_u32 s{sD}, s{sB}, {896*4096}")
        a("v_lshlrev_b32 v13, 6, v0\ns_mov_b32 s42, 0x400000\ns_mov_b32 s43, 0x20000")
        for p in PREFETCH[0]:
            a(f"s_mov_b32 s40, s{p}\ns_mov_b32 s41, s{p+1}")
            a.vm(f"buffer_load_dword v252, v13, s[40:43], s{sB} offen", "pf")
            a.vm(f"buffer_load_dword v252, v13, s[40:43], s{sD} offen", "pf")
    sTask, sHave = 26, 31
    a(f"""
    s_mov_b32 s{sHave}, 0
    s_cmp_lt_u32 s{sRole}, 192
    s_cbranch_scc1 G1_LN0
    s_mul_i32 s{sTask}, s{sRole}, 3
    s_add_u32 s{sTask}, s{sTask}, s{sW}
    s_sub_u32 s{sTask}, s{sTask}, {192*3 - 160}
    s_cmp_lt_u32 s{sW}, 3
    s_cbranch_scc1 G1_LN
    s_branch G1_NOLN
    G1_LN0:
    s_and_b32 s{sB}, s{sRole}, 3
    s_cmp_lg_u32 s{sW}, s{sB}
    s_cbranch_scc1 G1_NOLN
    s_mov_b32 s{sTask}, s{sRole}
    s_cmp_lt_u32 s{sRole}, 144
    s_cbranch_scc1 G1_LN
    s_sub_u32 s{sTask}, s{sRole}, 16
    s_and_b32 s{sB}, s{sRole}, 0xf0
    s_cmp_lg_u32 s{sB}, 160
    s_cbranch_scc1 G1_NOLN
    G1_LN:
    """)
    layernorm(a, sTask, diag, None, prefetch)
    a(f"s_mov_b32 s{sHave}, 1\ns_branch G1_LN1")
    a.label("G1_NOLN")
    prefetch()
    a.label("G1_LN1")
    def peek():
        a(f"v_mov_b32 v2, {D_INIT}")
        a.vm(f"buffer_load_dword v251, v2, {DB}, 0 offen sc1", "peek")
    def report():
        L = a.newlabel("LNREP")
        a(f"s_cmp_eq_u32 s{sHave}, 0\ns_cbranch_scc1 {L}")
        a(f"v_readfirstlane_b32 s{sB}, v251\ns_nop 3\ns_cmp_ge_u32 s{sB}, {2*NINIT}\ns_cselect_b32 s{sInit}, 1, s{sInit}")
        keep = list(a.vmq)
        wait_init(a, 2)
        if diag: a("s_memrealtime s[76:77]")
        a(f"s_lshl_b32 s{sB}, s{sTask}, 7\ns_add_u32 s{sB}, s{sB}, {LNF}")
        flag_store(a, f"s{sB}", 1, 2)
        a.vmq = keep
        a.label(L)
    a(f"s_cmp_ge_u32 s{sRole}, 188\ns_cbranch_scc1 G1_IDLE")
    a.vmq = []
    a(f"s_lshl_b32 s30, s{sJ}, 2\ns_add_u32 s30, s30, s{sW}")
    layernorm(a, 30, False, G1_XBUF, lambda: [peek()] + [issue(c) for c in range(3)], lambda: (a.wait_vm("peek"), report()))
    W = lambda f, s: 4 * (f * 16 + s)
    for c in range(8):
        a.wait_vm(("w", c))
        if c == WVERD[0]: verdict(a)
        for s_ in range(2):
            for f in range(4):
                for p in range(2):
                    a.ds(f"ds_read_b64_tr_b16 {ar(W(f, 2*c+s_) + 2*p, 2)}, v{246+f} offset:{(c%3)*8192 + (32*s_+4*p)*128}")
        a.wait_ds_all()
        if c + 3 < 8: issue(c + 3)
    if diag: a("s_memrealtime s[64:65]")
    vBias = 112
    for r in range(16): a(f"v_mov_b32 v{vBias+r}, 0")
    a(f"s_cmp_lg_u32 s{sKind}, 3\ns_cbranch_scc1 G1_NOBIAS")
    a(f"""
    s_mov_b32 s12, s56
    s_mov_b32 s13, s57
    s_mov_b32 s14, 3584
    s_and_b32 s{sA}, s{sSl}, 15
    s_lshl_b32 s{sA}, s{sA}, 9
    s_lshl_b32 s{sB}, s{sW}, 7
    s_add_u32 s{sA}, s{sA}, s{sB}
    v_lshlrev_b32 v4, 3, v241
    """)
    for f in range(4): a(f"buffer_load_dwordx2 {vr(8+2*f,2)}, v4, s[12:15], s{sA} offen offset:{f*32}")
    a("s_waitcnt vmcnt(0)")
    for f in range(4):
        for k in range(2):
            a(f"v_lshlrev_b32 v{vBias+4*f+2*k}, 16, v{8+2*f+k}\nv_and_b32 v{vBias+4*f+2*k+1}, 0xffff0000, v{8+2*f+k}")
    a.label("G1_NOBIAS")
    if diag: a("s_memtime s[96:97]")
    a(f"""
    v_lshlrev_b32 v4, 4, v0
    v_add_u32 v5, {G1_XBUF}, v4
    s_lshl_b32 s{sXs}, s{sJ}, 15
    s_lshl_b32 s{sA}, s{sW}, 13
    s_add_u32 s{sXs}, s{sXs}, s{sA}
    s_add_u32 s{sXs}, s{sXs}, {XN}
    s_lshl_b32 s{sFl}, s{sRole}, 7
    s_add_u32 s{sFl}, s{sFl}, {G1F}
    s_and_b32 s{sA}, s{sSl}, 15
    s_lshl_b32 s{sA}, s{sA}, 1
    s_lshr_b32 s{sB}, s{sW}, 1
    s_add_u32 s{sA}, s{sA}, s{sB}             ; head
    s_lshl_b32 s{sB}, s{sJ}, 5
    s_add_u32 s{sA}, s{sA}, s{sB}
    s_lshl_b32 s{sOut}, s{sA}, 13
    s_and_b32 s{sB}, s{sW}, 1
    """)
    sLb = 26
    a(f"s_lshl_b32 s{sLb}, s{sW}, 13")
    def xdma1(par, i):
        a(f"s_add_u32 m0, s{sLb}, {G1_XBUF + par*32768 + i*1024}")
        a(f"s_add_u32 s{sXs}, s{sXs}, {1024 if i else 's%d' % sXstep}")
        a.vm(f"buffer_load_dwordx4 v4, {WS}, s{sXs} offen lds", "x")
    a(f"s_add_u32 s{sXs}, s{sXs}, {7*1024}")
    a(f"s_cmp_eq_u32 s{sKind}, 1\ns_cbranch_scc1 G1_V\ns_cmp_eq_u32 s{sKind}, 3\ns_cbranch_scc1 G1_H")
    for kind in ("QK", "V", "H"):
        a.label(f"G1_{kind}")
        if kind == "QK":
            a(f"s_lshl_b32 s{sB}, s{sB}, 10\ns_add_u32 s{sOut}, s{sOut}, s{sB}")
            a(f"s_mov_b32 s{sB}, {QIMG}\ns_cmp_eq_u32 s{sKind}, 0\ns_cselect_b32 s{sB}, {KIMG}, s{sB}\ns_add_u32 s{sOut}, s{sOut}, s{sB}")
            step = f"s{sOstep}"
        elif kind == "V":
            a(f"s_lshl_b32 s{sB}, s{sB}, 12\ns_add_u32 s{sOut}, s{sOut}, s{sB}\ns_add_u32 s{sOut}, s{sOut}, {VIMG}")
            step = 4 * 32 * 8192
        else:
            a(f"s_and_b32 s{sA}, s{sSl}, 15\ns_lshl_b32 s{sA}, s{sA}, 2\ns_add_u32 s{sA}, s{sA}, s{sW}\ns_lshl_b32 s{sA}, s{sA}, 11")
            a(f"s_mul_i32 s{sB}, s{sJ}, {2*56*1024}\ns_add_u32 s{sOut}, s{sA}, s{sB}\ns_add_u32 s{sOut}, s{sOut}, {HIMG}")
            step = 4 * 2 * 56 * 1024
        acc = lambda par, mt, f: 128 + par * 32 + (mt * 4 + f) * 4
        vX = lambda s, mt: 16 + ((s % 3) * 2 + mt) * 4
        vS = 48
        def epilogue(par):
            jobs = []
            for n in range(4):
                if kind == "QK": mt, t = n >> 1, n & 1; srcs = (acc(par, mt, t), acc(par, mt, t + 2)); off = mt * 4096 + t * 2048
                elif kind == "V": srcs = (acc(par, 0, n), acc(par, 1, n)); off = n * 1024
                else: mt, t = n >> 1, n & 1; srcs = (acc(par, mt, 2 * t), acc(par, mt, 2 * t + 1)); off = mt * 56 * 1024 + t * 1024
                d = vS + 4 * n
                for h_ in range(2):
                    for k in range(2):
                        r = srcs[h_] + 2 * k
                        if kind == "H":
                            jobs.append(lambda r=r: a(f"v_max_f32 v{r}, 0, v{r}\nv_max_f32 v{r+1}, 0, v{r+1}"))
                            jobs.append(lambda r=r: a(f"v_mul_f32 v{r}, v{r}, v{r}\nv_mul_f32 v{r+1}, v{r+1}, v{r+1}"))
                            jobs.append(lambda r=r, d=d, h_=h_, k=k: a(f"v_cvt_pk_bf16_f32 v{d+2*h_+k}, v{r}, v{r+1}"))
                        else:
                            jobs.append(lambda r=r, d=d, h_=h_, k=k: a(f"v_cvt_pk_bf16_f32 v{d+2*h_+k}, v{r}, v{r+1}"))
                def st(d=d, off=off):
                    a(f"s_add_u32 s{sA}, s{sOut}, {off}")
                    a.vm(f"buffer_store_dwordx4 {vr(d,4)}, v4, {WS}, s{sA} offen sc1", "st")
                jobs.append(st)
            jobs.append(lambda: a(f"s_add_u32 s{sOut}, s{sOut}, {step}"))
            return jobs
        def publish(val):
            L = a.newlabel("G1F")
            a(f"s_cmp_lg_u32 s{sW}, 0\ns_cbranch_scc1 {L}")
            wait_init(a, 8)
            if val is None: a(f"s_sub_u32 s{sA}, s{sN}, 2\ns_max_u32 s{sA}, s{sA}, 1\ns_lshr_b32 s{sA}, s{sA}, s{sSh}"); val = f"s{sA}"
            flag_store(a, f"s{sFl}", val, 8)
            a.label(L)
        def segment(par, n):
            a("s_waitcnt vmcnt(4)" if n == 2 else "s_waitcnt vmcnt(0) lgkmcnt(0)"); a.vmq = []; a.dsq = []
            a("s_barrier")
            rd = lambda s: [a.ds(f"ds_read_b128 {vr(vX(s,mt),4)}, v5 offset:{par*32768 + s*2048 + mt*1024}", ("x", s)) for mt in range(2)]
            rd(0); rd(1)
            if n == 1: publish(1)
            if n == 2: publish(None)
            jobs = epilogue(1 - par) if n == 2 else []
            for s in range(16):
                if s + 2 < 16: rd(s + 2)
                a.wait_ds(("x", s))
                for mt in range(2):
                    for f in range(4):
                        d = acc(par, mt, f)
                        c = (vr(vBias + 4 * f, 4) if kind == "H" else "0") if s == 0 else vr(d, 4)
                        if kind == "V": a(f"v_mfma_f32_16x16x32_bf16 {vr(d,4)}, {vr(vX(s,mt),4)}, {ar(W(f,s),4)}, {c}")
                        else: a(f"v_mfma_f32_16x16x32_bf16 {vr(d,4)}, {ar(W(f,s),4)}, {vr(vX(s,mt),4)}, {c}")
                        if n and s < 8 and mt == 0 and f == 3: xdma1(1 - par, s)
                        elif jobs and s >= 8: jobs.pop(0)()
            assert not jobs
            if n == 1: a("s_waitcnt vmcnt(0)")
            a(f"s_add_u32 s{sN}, s{sN}, 1")
        a(f"s_mov_b32 s{sN}, 0")
        segment(0, 0)
        a.nop(8)
        for j in epilogue(0): j()
        if HOLD[0]:
            a("s_waitcnt vmcnt(0)\ns_barrier")
            publish(1)
        L = a.newlabel("G1LN")
        a(f"s_cmp_lg_u32 s{sW}, 0\ns_cbranch_scc1 {L}")
        wait_init(a, 8)
        a(f"v_lshrrev_b32 v8, 2, v0\ns_sub_u32 s{sA}, 11, s{sSh}\nv_lshlrev_b32 v8, s{sA}, v8\nv_and_b32 v9, 3, v0\nv_lshl_add_u32 v8, v9, 7, v8\ns_lshl_b32 s{sA}, s{sJ}, 9\ns_add_u32 s{sA}, s{sA}, {LNF}")
        poll_ge(a, f"buffer_load_dword v9, v8, {WS}, s{sA} offen sc1", [9], 1, "LN", sleep=2)
        if kind == "QK":
            a(f"s_cmp_eq_u32 s{sSh}, 0\ns_cbranch_scc1 {L}\ns_add_u32 s{sA}, s{sA}, {128*128}")
            poll_ge(a, f"buffer_load_dword v9, v8, {WS}, s{sA} offen sc1", [9], 1, "LN", sleep=2)
        if HOLD[0]:
            wait_init(a, 8)
            a(f"s_and_b32 s{sA}, s{sRole}, 31\ns_lshl_b32 s{sA}, s{sA}, 7\ns_add_u32 s{sA}, s{sA}, {CHF + 64}\nv_mov_b32 v8, 0")
            if HOLD[0] == 1:
                publish_now = a.newlabel("PUB")
            poll_ge(a, f"buffer_load_dword v9, v8, {WS}, s{sA} offen sc1", [9], 1, "STG", sleep=8)
        a.label(L)
        a("s_barrier")
        if diag: a("s_memrealtime s[66:67]")
        for i in range(8): xdma1(1, i)
        segment(1, 1)
        a.label(f"G1_LOOP_{kind}")
        segment(0, 2)
        segment(1, 2)
        a(f"s_cmp_lt_u32 s{sN}, s{sEnd}\ns_cbranch_scc1 G1_LOOP_{kind}")
        a.label(f"G1_END_{kind}")
        a.nop(8)
        for j in epilogue(1): j()
        a.wait_vm_all(True)
        a("s_barrier")
        L = a.newlabel("G1F")
        a(f"s_cmp_lg_u32 s{sW}, 0\ns_cbranch_scc1 {L}")
        flag_store(a, f"s{sFl}", 16, 8)
        a.label(L)
        a.vmq = []; a.dsq = []
        a("s_branch G1_DONE")
    a.label("G1_IDLE")
    peek()
    a.wait_vm_all(True)
    report()
    verdict(a)
    a.label("G1_DONE")

def attention(a, diag=False):
    sSeg, sQ, sKm, sVm, sO, sCh, sAt, sCnt = 18, 19, 20, 21, 22, 23, 24, 25
    sCC = 30
    sMask = 40
    c = (128 ** -0.5) * math.log2(math.e)
    a(f"""
    s_mov_b32 s{sCC}, {fbits(c):#x}
    s_mov_b32 s{sCC+1}, {fbits(c):#x}
    v_lshlrev_b32 v4, 4, v0
    v_and_b32 v5, 0x3d, v0
    v_lshlrev_b32 v5, 4, v5
    v_bfe_u32 v6, v0, 1, 1
    v_lshl_add_u32 v5, v6, 3, v5
    v_and_b32 v6, 15, v0
    v_lshrrev_b32 v7, 4, v0
    v_lshlrev_b32 v7, 2, v7
    """)
    for r in range(4):
        a(f"v_add_u32 v8, {r}, v7\nv_cmp_le_u32 s[{sMask+2*r}:{sMask+2*r+1}], v8, v6")
    a(f"""
    s_lshr_b32 s{sA}, s{sRole}, 1
    s_lshl_b32 s{sB}, s{sA}, 1
    s_and_b32 s{sC_}, s{sW}, 1
    s_add_u32 s{sB}, s{sB}, s{sC_}
    s_add_u32 s{sB}, s{sB}, 128
    s_lshl_b32 s{sA}, s{sA}, 2
    s_add_u32 s{sA}, s{sA}, s{sW}
    v_and_b32 v8, 1, v0
    v_lshl_add_u32 v8, v8, 6, s{sA}
    v_mov_b32 v9, s{sB}
    v_cmp_gt_u32 vcc, 2, v0
    s_mov_b32 s{sA}, {G1F}
    s_nop 0
    v_cndmask_b32 v8, v9, v8, vcc
    v_lshlrev_b32 v8, 7, v8
    """)
    poll_ge(a, f"buffer_load_dword v9, v8, {WS}, s{sA} offen sc1", [9], 16, "QKV")
    a(f"""
    s_mov_b32 s{sSeg}, s{sW}
    s_lshl_b32 s{sA}, s{sW}, 5
    s_add_u32 s{sA}, s{sA}, s{sRole}
    s_lshl_b32 s{sQ}, s{sA}, 13
    s_lshl_b32 s{sKm}, s{sA}, 12
    s_add_u32 s{sKm}, s{sKm}, {KMEM}
    s_lshl_b32 s{sVm}, s{sA}, 11
    s_add_u32 s{sVm}, s{sVm}, {VMEM}
    s_lshl_b32 s{sO}, s{sW}, 18
    s_lshl_b32 s{sB}, s{sRole}, 12
    s_add_u32 s{sO}, s{sO}, s{sB}
    s_add_u32 s{sO}, s{sO}, {OIMG}
    s_lshl_b32 s{sCh}, s{sRole}, 7
    s_add_u32 s{sCh}, s{sCh}, {CHF}
    s_lshl_b32 s{sAt}, s{sA}, 7
    s_add_u32 s{sAt}, s{sAt}, {ATF}
    s_mov_b32 s{sCnt}, 0
    v_mov_b32 v10, 0
    """)
    vQ, vK, vV, vKM, vVM = 16, 48, 80, 112, 128
    ONE = 136
    S = lambda qt, kt: 140 + (qt * 3 + kt) * 4
    PX = lambda qt: 164 + qt * 4
    PM = lambda qt: 172 + qt * 4
    L_ = lambda qt: 180 + qt * 4
    O = lambda qt, ft: 188 + (qt * 8 + ft) * 4
    for r in range(4): a(f"v_mov_b32 v{ONE+r}, 0x3f803f80")
    for qt in range(2): a(f"v_mov_b32 v{PM(qt)+1}, 0\nv_mov_b32 v{PM(qt)+2}, 0")
    mf = lambda d, A, B, c_: a(f"v_mfma_f32_16x16x32_bf16 {vr(d,4)}, {vr(A,4)}, {vr(B,4)}, {c_}")
    mf16 = lambda d, A, B, c_: a(f"v_mfma_f32_16x16x16_bf16 {vr(d,4)}, {vr(A,2)}, {vr(B,2)}, {c_}")
    if EARLY[0]:
        for r in range(4): a(f"v_mov_b32 v{vK+r}, -1")
        for qt in range(2):
            a(f"s_add_u32 s{sA}, s{sO}, {15*4*2*128*1024 + qt*128*1024}")
            for i in range(4): a(f"buffer_store_dwordx4 {vr(vK,4)}, v4, {WS}, s{sA} offen offset:{i*1024} sc1")
        a.nop(2)
    a.label("AT_LOOP")
    for (base, img) in ((vK, KIMG), (vQ, QIMG), (vV, VIMG)):
        for hf in range(2):
            a(f"s_add_u32 s{sA}, s{sQ}, {img + hf*4096}")
            for i in range(4):
                a.vm(f"buffer_load_dwordx4 {vr(base+16*hf+4*i,4)}, v4, {WS}, s{sA} offen offset:{i*1024} sc1", ("in", base))
    a.wait_vm(("in", vQ))
    for (qt, kt) in ((0, 0), (1, 0), (1, 1)):
        for s in range(4):
            mf(S(qt, kt), vK + 16 * kt + 4 * s, vQ + 16 * qt + 4 * s, "0" if s == 0 else vr(S(qt, kt), 4))
    a(f"s_add_u32 s{sB}, s{sSeg}, 1")
    if EARLY[0] == 2: a(f"s_min_u32 s{sB}, s{sB}, 61")
    poll_ge(a, f"buffer_load_dword v9, v10, {WS}, s{sCh} offen sc1", [9], f"s{sB}", "CH", sleep=SLEEP[0])
    def kmload():
        for i in range(4): a.vm(f"buffer_load_dwordx4 {vr(vKM+4*i,4)}, v4, {WS}, s{sKm} offen offset:{i*1024} sc1", "km")
        for i in range(4): a.vm(f"buffer_load_dwordx2 {vr(vVM+2*i,2)}, v5, {WS}, s{sKm} offen offset:{i*1024} sc1", "vm")
    if diag: a("s_memrealtime s[72:73]")
    kmload()
    a("v_mov_b32 v11, 0xff800000")
    for (qt, kt) in ((0, 0), (1, 1)):
        for r in range(4):
            a(f"v_cndmask_b32 v{S(qt,kt)+r}, v11, v{S(qt,kt)+r}, s[{sMask+2*r}:{sMask+2*r+1}]")
    a(f"v_max3_f32 v12, v{S(0,0)}, v{S(0,0)+1}, v{S(0,0)+2}\nv_max_f32 v12, v12, v{S(0,0)+3}")
    a(f"v_max3_f32 v14, v{S(1,0)}, v{S(1,0)+1}, v{S(1,0)+2}\nv_max3_f32 v14, v14, v{S(1,0)+3}, v{S(1,1)}")
    a(f"v_max3_f32 v14, v14, v{S(1,1)+1}, v{S(1,1)+2}\nv_max_f32 v14, v14, v{S(1,1)+3}")
    if EARLY[0]:
        a(f"s_cmp_lt_u32 s{sSeg}, {EFROM}\ns_cbranch_scc1 AT_KMOK\ns_mov_b32 s{sD}, 0")
        a.label("AT_KMCHK")
        a("s_waitcnt vmcnt(0)")
        rs = list(range(vKM, vKM + 24))
        a(f"v_max3_u32 v13, v{rs[0]}, v{rs[1]}, v{rs[2]}\nv_max3_u32 v15, v{rs[3]}, v{rs[4]}, v{rs[5]}")
        for k in range(6, 22, 4): a(f"v_max3_u32 v13, v13, v{rs[k]}, v{rs[k+1]}\nv_max3_u32 v15, v15, v{rs[k+2]}, v{rs[k+3]}")
        a(f"v_max3_u32 v13, v13, v{rs[22]}, v{rs[23]}\nv_max_u32 v13, v13, v15\nv_cmp_eq_u32 vcc, -1, v13\ns_cbranch_vccz AT_KMOK")
        a(f"s_add_u32 s{sD}, s{sD}, 1\ns_cmp_gt_u32 s{sD}, {POLL_BOUND}\ns_cbranch_scc1 AT_KMOK")
        keep = list(a.vmq); kmload(); a.vmq = keep
        a("s_branch AT_KMCHK")
        a.label("AT_KMOK")
    a.wait_vm("km")
    for qt in range(2):
        for s in range(4):
            mf(S(qt, 2), vKM + 4 * s, vQ + 16 * qt + 4 * s, "0" if s == 0 else vr(S(qt, 2), 4))
    a.nop(8)
    for qt in range(2):
        a(f"v_max3_f32 v{12+2*qt}, v{12+2*qt}, v{S(qt,2)+2}, v{S(qt,2)+3}")
    for op in ("v_permlane32_swap_b32", "v_permlane16_swap_b32"):
        a(f"v_mov_b32 v13, v12\nv_mov_b32 v15, v14\ns_nop 0\n{op} v12, v13\n{op} v14, v15\nv_max_f32 v12, v12, v13\nv_max_f32 v14, v14, v15")
    a(f"v_mul_f32 v12, s{sCC}, v12\nv_mul_f32 v14, s{sCC}, v14")
    for qt in range(2):
        m = 12 + 2 * qt
        prs = [S(qt, 2) + 2, S(qt, 0), S(qt, 0) + 2] + ([S(qt, 1), S(qt, 1) + 2] if qt else [])
        for r in prs:
            a(f"v_pk_fma_f32 {vr(r,2)}, {vr(r,2)}, s[{sCC}:{sCC+1}], {vr(m,2)} op_sel_hi:[1,1,0] neg_lo:[0,0,1] neg_hi:[0,0,1]")
        for r in prs: a(f"v_exp_f32 v{r}, v{r}\nv_exp_f32 v{r+1}, v{r+1}")
        a.nop(1)
        a(f"v_cvt_pk_bf16_f32 v{PM(qt)}, v{prs[0]}, v{prs[0]+1}\nv_cvt_pk_bf16_f32 v{PM(qt)+3}, v{prs[0]}, v{prs[0]+1}")
        for k, r in enumerate(prs[1:]): a(f"v_cvt_pk_bf16_f32 v{PX(qt)+k}, v{r}, v{r+1}")
    a.wait_vm_all()
    a.nop(2)
    for qt in range(2):
        mf16(L_(qt), ONE, PM(qt), "0")
        for ft in range(8): mf16(O(qt, ft), vVM + 2 * (ft >> 1), PM(qt) + 2 * (ft & 1), "0")
        m2 = mf if qt else mf16
        m2(L_(qt), ONE, PX(qt), vr(L_(qt), 4))
        for ft in range(8): m2(O(qt, ft), vV + 4 * ft, PX(qt), vr(O(qt, ft), 4))
    for qt in range(2):
        if qt: a.nop(4)
        a(f"v_rcp_f32 v12, v{L_(qt)}")
        if qt: a(f"s_add_u32 s{sA}, s{sO}, {128*1024}")
        else: a.nop(1)
        for pr in range(4):
            d = vK + 16 * qt + 4 * pr
            for h_ in range(2):
                for k in range(2):
                    r = O(qt, 2 * pr + h_) + 2 * k
                    a(f"v_pk_mul_f32 {vr(r,2)}, {vr(r,2)}, v[12:13] op_sel_hi:[1,0]")
                    a(f"v_cvt_pk_bf16_f32 v{d+2*h_+k}, v{r}, v{r+1}")
            a.vm(f"buffer_store_dwordx4 {vr(d,4)}, v4, {WS}, s{sA if qt else sO} offen offset:{pr*1024} sc1", "o")
    a(f"s_add_u32 s{sCnt}, s{sCnt}, 1")
    if EARLY[0]: a(f"s_cmp_ge_u32 s{sSeg}, 60\ns_cbranch_scc1 AT_FLAG")
    a.wait_vm_all()
    a.label("AT_FLAG")
    if diag: a("s_memrealtime s[74:75]")
    flag_store(a, f"s{sAt}", f"s{sCnt}", 8)
    a(f"""
    s_add_u32 s{sQ}, s{sQ}, {4*32*8192}
    s_add_u32 s{sKm}, s{sKm}, {4*32*4096}
    s_add_u32 s{sVm}, s{sVm}, {4*32*2048}
    s_add_u32 s{sO}, s{sO}, {4*2*128*1024}
    s_add_u32 s{sSeg}, s{sSeg}, 4
    s_cmp_lt_u32 s{sSeg}, 64
    s_cbranch_scc1 AT_LOOP
    """)
    a.vmq = []; a.dsq = []

def gemm2(a, diag=False):
    sCs, sU, sO, sH_, sX, sN, sPar, sLo, sLast = 18, 19, 20, 21, 22, 23, 24, 26, 25
    srd(a, 12, "Wo", 4096 * 1024)
    srd(a, 48, "w2", 1792 * 1024)
    srd(a, 52, "x", 2048 * 1024)
    srd(a, 56, "out", 2048 * 1024)
    srd(a, 60, "b2", 1024)
    a(f"""
    s_and_b32 s{sCs}, s{sRole}, 15
    s_lshr_b32 s{sU}, s{sRole}, 4
    v_and_b32 v100, 15, v0
    v_lshrrev_b32 v101, 4, v0
    v_and_b32 v102, 3, v0
    v_bfe_u32 v103, v0, 2, 2
    v_lshrrev_b32 v4, 2, v0
    v_lshlrev_b32 v4, 10, v4
    v_lshl_add_u32 v4, v102, 4, v4
    s_lshl_b32 s{sA}, s{sCs}, 6
    v_add_u32 v104, s{sA}, v4
    v_lshl_add_u32 v4, v101, 2, v103
    v_lshlrev_b32 v4, 6, v4
    v_lshl_add_u32 v4, v102, 4, v4
    s_mul_i32 s{sA}, s{sW}, 32768
    v_add_u32 v105, s{sA}, v4
    s_waitcnt lgkmcnt(0)
    """)
    Wo_ = lambda s, T: ar(8 * s + 4 * T, 4)
    VW2 = 144
    W2_ = lambda s, T: vr(VW2 + 8 * s + 4 * T, 4)
    chunks = [("o", c, 8) for c in range(8)] + [("2", c, 8) for c in range(3)] + [("2", 3, 4)]
    a(f"s_lshl_b32 s{sN}, s{sW}, 20\ns_mul_i32 s{sB}, s{sW}, {448*1024}")
    def issue(n):
        m, c, cnt = chunks[n]
        for i in range(cnt):
            a(f"s_add_u32 m0, s{sA}, {(n%4)*8192 + i*1024}\ns_nop 0")
            so = sN if m == "o" else sB
            a.vm(f"buffer_load_dwordx4 v104, {'s[12:15]' if m == 'o' else 's[48:51]'}, s{so} offen lds", ("w", n))
            a(f"s_add_u32 s{so}, s{so}, {16*1024}")
    for n in range(4): issue(n)
    for n, (m, c, cnt) in enumerate(chunks):
        a.wait_vm(("w", n))
        for s_ in range(cnt // 2):
            for T in range(2):
                for p in range(2):
                    base = (8 * (4 * c + s_) + 4 * T + 2 * p)
                    dst = ar(base, 2) if m == "o" else vr(VW2 + base, 2)
                    a.ds(f"ds_read_b64_tr_b16 {dst}, v105 offset:{(n%4)*8192 + (32*s_+16*p)*64 + T*8}")
        a.wait_ds_all()
        if n + 4 < len(chunks): issue(n + 4)
    if diag: a("s_memrealtime s[68:69]")
    vB = 8
    a(f"""
    v_lshlrev_b32 v4, 4, v101
    s_lshl_b32 s{sA}, s{sCs}, 6
    buffer_load_dwordx4 v[16:19], v4, s[60:63], s{sA} offen
    v_and_b32 v7, 7, v0
    v_lshl_add_u32 v6, v7, 10, v4
    v_add_u32 v6, s{sA}, v6
    v_lshlrev_b32 v5, 4, v0
    v_add_u32 v5, 131072, v5
    v_lshl_add_u32 v4, v101, 4, v7
    v_lshlrev_b32 v4, 4, v4
    v_lshrrev_b32 v3, 3, v100
    v_lshl_add_u32 v4, v3, 10, v4
    v_lshlrev_b32 v7, 7, v7
    s_mov_b32 s{sLo}, 0x00ff00ff
    s_mov_b32 s{sLo+1}, 0x00ff00ff
    s_waitcnt vmcnt(0)
    """)
    for k in range(4): a(f"v_lshlrev_b32 v{vB+2*k}, 16, v{16+k}\nv_and_b32 v{vB+2*k+1}, 0xffff0000, v{16+k}")
    a(f"v_min_u32 v16, 27, v0\nv_lshlrev_b32 v16, 7, v16\ns_mov_b32 s{sA}, {G1F + 160*128}")
    poll_ge(a, f"buffer_load_dword v17, v16, {WS}, s{sA} offen sc1", [17], 16, "H")
    a(f"s_mov_b32 s{sPar}, 0")
    a("s_barrier")
    vR = lambda k: 64 + 4 * k
    AC, AO = 24, 128
    def ld(n, sbase):
        if n and n % 2 == 0: a(f"s_add_u32 s{sbase}, s{sbase}, 4096")
        a.vm(f"buffer_load_dwordx4 {vr(vR(n),4)}, v4, {WS}, s{sbase} offen offset:{(n%2)*2048} sc1", ("a", n))
    def mm(n, Wf, first):
        a.wait_vm(("a", n))
        for par, acc in ((0, AC), (1, AO)):
            for T in range(2):
                a(f"v_mfma_f32_16x16x32_bf16 {vr(acc+4*T,4)}, {Wf(2*n+par,T)}, {vr(vR(n),4)}, {'0' if first else vr(acc+4*T,4)}")
    def hpart(su):
        a(f"""
        s_lshr_b32 s{sB}, s{su}, 1
        s_and_b32 s{sC_}, s{su}, 1
        s_lshl_b32 s{sC_}, s{sC_}, 7
        s_mul_i32 s{sH_}, s{sB}, {56*1024}
        s_mul_i32 s{sA}, s{sW}, {14*1024}
        s_add_u32 s{sH_}, s{sH_}, s{sA}
        s_add_u32 s{sH_}, s{sH_}, s{sC_}
        s_add_u32 s{sH_}, s{sH_}, {HIMG}
        """)
        for n in range(7): ld(n, sH_)
        for n in range(7): mm(n, W2_, n == 0)
        a.nop(8)
    NFULL = 256 // NSETS
    a(f"s_add_u32 s{sLast}, s{sU}, {NFULL*NSETS}\ns_cmp_ge_u32 s{sLast}, 256\ns_cselect_b32 s{sB}, {NSETS}, 0\ns_sub_u32 s{sLast}, s{sLast}, s{sB}")
    hpart(sLast)
    for k in range(8): a(f"v_mov_b32 v{56+k}, v{AC+k}\nv_mov_b32 v{136+k}, v{AO+k}")
    a.label("G2_LOOP")
    a(f"s_lshl_b32 s{sX}, s{sU}, 13")
    a(f"buffer_load_dwordx4 v[20:23], v6, s[52:55], s{sX} offen")
    a(f"s_cmp_lg_u32 s{sU}, s{sLast}\ns_cbranch_scc1 G2_H")
    for k in range(8): a(f"v_mov_b32 v{AC+k}, v{56+k}\nv_mov_b32 v{AO+k}, v{136+k}")
    a("s_branch G2_HE")
    a.label("G2_H")
    hpart(sU)
    a.label("G2_HE")
    a(f"""
    s_lshr_b32 s{sB}, s{sU}, 1
    s_and_b32 s{sC_}, s{sU}, 1
    s_lshl_b32 s{sC_}, s{sC_}, 7
    s_lshl_b32 s{sO}, s{sB}, 17
    s_lshl_b32 s{sA}, s{sW}, 15
    s_add_u32 s{sO}, s{sO}, s{sA}
    s_add_u32 s{sO}, s{sO}, s{sC_}
    s_add_u32 s{sO}, s{sO}, {OIMG}
    """)
    a(f"""
    s_lshr_b32 s{sB}, s{sU}, 2
    s_and_b32 s{sA}, s{sB}, 3
    s_lshl_b32 s{sA}, s{sA}, 12
    s_lshl_b32 s{sC_}, s{sW}, 10
    s_add_u32 s{sA}, s{sA}, s{sC_}
    s_add_u32 s{sA}, s{sA}, {ATF}
    s_lshr_b32 s{sB}, s{sB}, 2
    s_add_u32 s{sB}, s{sB}, 1
    """)
    if EARLY[0]:
        for k in range(8): a(f"v_mov_b32 v{40+k}, v{AC+k}\nv_mov_b32 v{48+k}, v{AO+k}")
    poll_ge(a, f"buffer_load_dword v17, v7, {WS}, s{sA} offen sc1", [17], f"s{sB}", "AT", sleep=SLEEP[0])
    if diag: a("s_memrealtime s[72:73]")
    a(f"s_mov_b32 s{sN}, 0")
    a.label("G2_OPART")
    for n in range(16): ld(n, sO)
    for n in range(16): mm(n, Wo_, False)
    a(f"s_lshl_b32 s{sA}, s{sW}, 11\ns_add_u32 s{sA}, s{sA}, s{sPar}\nv_add_u32 v16, s{sA}, v5")
    a.nop(6)
    if EARLY[0]:
        a(f"s_cmp_lt_u32 s{sU}, 240\ns_cbranch_scc1 G2_OOK\nv_cmp_u_f32 vcc, v{AC}, v{AC}\ns_cbranch_vccz G2_OOK")
        a(f"s_add_u32 s{sN}, s{sN}, 1\ns_cmp_gt_u32 s{sN}, 256\ns_cbranch_scc1 G2_OOK")
        for k in range(8): a(f"v_mov_b32 v{AC+k}, v{40+k}\nv_mov_b32 v{AO+k}, v{48+k}")
        a(f"s_sub_u32 s{sO}, s{sO}, {7*4096}\ns_branch G2_OPART")
        a.label("G2_OOK")
    for k in range(8): a(f"v_add_f32_dpp v{AC+k}, v{AO+k}, v{AC+k} row_ror:8 row_mask:0xf bank_mask:0xf")
    if diag: a(f"s_memrealtime s[74:75]\ns_mov_b32 s76, s{sN}")
    a.ds(f"ds_write_b128 v16, {vr(AC,4)}")
    a.ds(f"ds_write_b128 v16, {vr(AC+4,4)} offset:1024")
    a.wait_ds_all()
    a("s_barrier")
    a(f"s_cmp_lg_u32 s{sW}, 0\ns_cbranch_scc1 G2_NEXT")
    for w_ in range(1, 4):
        a.ds(f"ds_read_b128 {vr(56+8*w_,4)}, v16 offset:{w_*2048}", ("r", w_))
        a.ds(f"ds_read_b128 {vr(60+8*w_,4)}, v16 offset:{w_*2048+1024}", ("r", w_))
    for k in range(4):
        a(f"v_lshlrev_b32 v32, 16, v{20+k}\nv_and_b32 v33, 0xffff0000, v{20+k}")
        a(f"v_pk_add_f32 {vr(AC+2*k,2)}, {vr(AC+2*k,2)}, {vr(vB+2*k,2)}")
        a(f"v_pk_add_f32 {vr(AC+2*k,2)}, {vr(AC+2*k,2)}, v[32:33]")
    for w_ in range(1, 4):
        a.wait_ds(("r", w_))
        for k in range(4): a(f"v_pk_add_f32 {vr(AC+2*k,2)}, {vr(AC+2*k,2)}, {vr(56+8*w_+2*k,2)}")
    for k in range(4): a(f"v_cvt_pk_bf16_f32 v{36+k}, v{AC+2*k}, v{AC+2*k+1}")
    a(f"s_mov_b64 exec, s[{sLo}:{sLo+1}]\nbuffer_store_dwordx4 v[36:39], v6, s[56:59], s{sX} offen {OUTF[0]}\ns_mov_b64 exec, -1")
    a.label("G2_NEXT")
    a(f"""
    s_xor_b32 s{sPar}, s{sPar}, 8192
    s_add_u32 s{sU}, s{sU}, {NSETS}
    s_cmp_lt_u32 s{sU}, 256
    s_cbranch_scc1 G2_LOOP
    """)
    a.vmq = []; a.dsq = []
```

```python
import sys
from asm import *
from layout import *
import os, importlib
C = importlib.import_module(os.environ.get("CHAINMOD", "chain"))
import workers as Wk
NAME = "parallel_sum__memory_aug_recurrent_mem_tr__dense_activation_squared_relu__prompt"
CH = dict(pre_bar=4, v_0=0, v_pre=3, o_pre=2, dlyA=(32, 44), st4=1, pboth=1, dlyB=16, w1c=20, pst0=1, pbar=1, nrA=3, bound=1 << 16, depA=(2, 2), depB=2, gapA=24, gapB=16, x0=0, xw_only=1, jbar=1, jobs='S', j0=4, jstr=10, jw=2, a_burst=2, r_pre=2, kx_in=5, nt='', pf0=(50, 52, 54, 48), cverd=4)
sDB = 4
sInit, sReady, sMode, sXcc, sTent = 84, 85, 86, 87, 83
sCounted, sLost = 29, 79
sA, sB, sC_, sD = Wk.sA, Wk.sB, Wk.sC_, Wk.sD
WS = Wk.WS
DB = f"s[{sDB}:{sDB+3}]"
ROLE_LDS = 163840 - 16
MODE_BOUND = 2000

def wait_init(a, v=2):
    L = a.newlabel("INIT")
    a(f"s_cmp_lg_u32 s{sInit}, 0\ns_cbranch_scc1 {L}")
    a(f"v_mov_b32 v{v}, {D_INIT}")
    Wk.poll_ge(a, f"buffer_load_dword v{v+1}, v{v}, {DB}, 0 offen sc1", [v + 1], 2 * NINIT, "INIT", sleep=4)
    a(f"s_mov_b32 s{sInit}, 1")
    a.label(L)

def atomic(a, op, off, val, dst, cmp=None):
    a(f"s_mov_b64 exec, 1\nv_mov_b32 v20, {val}\nv_mov_b32 v22, {off}")
    if cmp is not None:
        a(f"v_mov_b32 v21, {cmp}\nbuffer_atomic_cmpswap v[20:21], v22, {DB}, 0 offen sc0")
    else:
        a(f"buffer_atomic_{op} v20, v22, {DB}, 0 offen sc0")
    a(f"s_waitcnt vmcnt(0)\nv_readfirstlane_b32 s{dst}, v20\ns_mov_b64 exec, -1\ns_nop 3")

def claim(a, name, sRes, sOff):
    a.label(f"CLAIM_{name}")
    a(f"s_lshl_b32 s{sC_}, 1, s{sA}")
    atomic(a, "or", f"s{sOff}", f"s{sC_}", sB)
    a.label(f"CLAIM_{name}_R")
    a(f"s_and_b32 s{sD}, s{sB}, s{sC_}\ns_or_b32 s{sB}, s{sB}, s{sC_}\ns_mov_b32 s{sRes}, s{sA}")
    a(f"s_cmp_eq_u32 s{sD}, 0\ns_cbranch_scc1 CLAIM_{name}_E")
    a(f"s_mov_b32 s{sRes}, -1\ns_cmp_eq_u32 s{sB}, -1\ns_cbranch_scc1 CLAIM_{name}_E")
    a(f"s_ff0_i32_b32 s{sA}, s{sB}\ns_branch CLAIM_{name}")
    a.label(f"CLAIM_{name}_E")

def bcast(a, s):
    L = a.newlabel("BC")
    a(f"v_mov_b32 v22, {ROLE_LDS}")
    a(f"s_cmp_lg_u32 s{Wk.sW}, 0\ns_cbranch_scc1 {L}\nv_mov_b32 v20, s{s}\nds_write_b32 v22, v20\ns_waitcnt lgkmcnt(0)")
    a.label(L)
    a(f"s_barrier\nds_read_b32 v20, v22\ns_waitcnt lgkmcnt(0)\nv_readfirstlane_b32 s{s}, v20\ns_barrier")

def gen(P=CH, diag=False, force_slow=False):
    a = Asm()
    def mark(a, word, neg=False):
        if not P.get("marks"): return
        a(f"s_memrealtime s[98:99]\ns_waitcnt lgkmcnt(0)")
        if neg: a("s_not_b32 s98, s98")
        a(f"s_mov_b64 exec, 1\nv_mov_b32 v10, s98\nv_mov_b32 v11, {4*word}\nbuffer_atomic_umax v10, v11, {DB}, 0 offen\ns_mov_b64 exec, -1")
    Wk.SLEEP[0] = P.get('sleep', 1); Wk.PREFETCH[0] = P.get('pf', ());  Wk.EARLY[0] = P.get('early', 2); Wk.WVERD[0] = P.get('wverd', 0); Wk.QLATE[0] = P.get('qlate', 0); Wk.HOLD[0] = P.get('hold', 0); Wk.OUTF[0] = P.get('outf', 'sc1')
    sR = Wk.sRole
    a(f"""
    s_cmp_ge_u32 s2, 256
    s_cbranch_scc1 L_END
    s_load_dwordx2 s[{Wk.sWS}:{Wk.sWS+1}], s[0:1], {KA['ws']}
    s_load_dwordx2 s[{sDB}:{sDB+1}], s[0:1], {KA['dbg']}
    s_getreg_b32 s{sXcc}, hwreg(HW_REG_XCC_ID, 0, 4)
    s_mov_b32 s{Wk.sWS+2}, {WS_BYTES}
    s_mov_b32 s{Wk.sWS+3}, 0x20000
    s_mov_b32 s{sDB+2}, 256
    s_mov_b32 s{sDB+3}, 0x20000
    s_mov_b32 s{Wk.sDead}, 0
    s_mov_b32 s{sInit}, 0
    s_mov_b32 s82, 0
    s_mov_b32 s{sLost}, 0
    v_mov_b32 v250, 0
    v_lshrrev_b32 v1, 6, v0
    v_lshlrev_b32 v8, 4, v0
    v_readfirstlane_b32 s{Wk.sW}, v1
    v_and_b32 v0, 63, v0
    v_mov_b32 v12, -1
    v_mov_b32 v13, -1
    v_mov_b32 v14, -1
    v_mov_b32 v15, -1
    """)
    if diag: a("s_memrealtime s[90:91]")
    CX = 9 if force_slow else P.get('cx', 3)
    sOff, sTry, sDie, sWord, sSpec = 18, 19, 80, 81, 82
    def declare(a):
        L = a.newlabel("DECL")
        a(f"s_cmp_lg_u32 s{sB}, -1\ns_cbranch_scc1 {L}")
        a(f"s_mov_b64 exec, 1\nv_mov_b32 v20, 1\nv_mov_b32 v21, 0\nv_mov_b32 v22, {D_MODE}\nbuffer_atomic_cmpswap v[20:21], v22, {DB}, 0 offen\ns_mov_b64 exec, -1")
        a.label(L)
    a(f"""
    s_bfe_u32 s{sR}, s2, 0x50003
    s_waitcnt lgkmcnt(0)
    """)
    if P.get("marks"):
        a(f"s_cmp_lg_u32 s{Wk.sW}, 0\ns_cbranch_scc1 L_MK0\ns_and_b32 s3, s2, 15\ns_cmp_lg_u32 s3, 0\ns_cbranch_scc1 L_MK0")
        mark(a, 4, True)
        a.label("L_MK0")
    a(f"""
    s_mov_b32 s{sTent}, s{sR}
    s_add_u32 s{sDie}, s{sXcc}, {(15 - CX) % 8}
    s_and_b32 s{sDie}, s{sDie}, 7
    s_min_u32 s{sDie}, s{sDie}, 6
    s_lshl_b32 s{sWord}, s{sDie}, 2
    s_add_u32 s{sWord}, s{sWord}, {D_WM}
    s_cmp_eq_u32 s{sXcc}, {CX}
    s_cselect_b32 s{sWord}, {D_MASK}, s{sWord}
    s_and_b32 s3, s2, 0x87
    s_cmp_lg_u32 s3, 0
    s_cbranch_scc1 L_I3
    s_xor_b32 s3, s{Wk.sW}, s{sTent}
    s_bitcmp1_b32 s3, 0
    s_cbranch_scc0 L_I3
    """)
    a(f"s_lshr_b32 s{sA}, s2, 3")
    a(f"s_lshr_b32 s3, s{Wk.sW}, 1\ns_lshl_b32 s{sA}, s{sA}, 1\ns_add_u32 s{sA}, s{sA}, s3\nv_lshlrev_b32 v9, 4, v0")
    a(f"s_lshl_b32 s3, s{sA}, 13\ns_add_u32 s3, s3, {PART}")
    for k in range(8):
        a(f"buffer_store_dwordx4 v[12:15], v9, {WS}, s3 offen offset:{(k&3)*1024} sc1")
        if k == 3: a("s_add_u32 s3, s3, 4096")
    a(f"""
    s_lshl_b32 s3, s{sA}, 10
    s_add_u32 s3, s3, {MBUF}
    buffer_store_dwordx4 v[12:15], v9, {WS}, s3 offen sc1
    s_mul_i32 s3, s{sA}, 2560
    s_add_u32 s3, s3, {FLG}
    v_mov_b32 v16, 0
    v_mov_b32 v17, 0
    v_mov_b32 v18, 0
    v_mov_b32 v19, 0
    buffer_store_dwordx4 v[16:19], v9, {WS}, s3 offen sc1
    buffer_store_dwordx4 v[16:19], v9, {WS}, s3 offen offset:1024 sc1
    s_mov_b64 exec, 0xffffffff
    buffer_store_dwordx4 v[16:19], v9, {WS}, s3 offen offset:2048 sc1
    s_mov_b64 exec, -1
    s_waitcnt vmcnt(0)
    s_mov_b64 exec, 1
    v_mov_b32 v20, 1
    v_mov_b32 v22, {D_INIT}
    buffer_atomic_add v20, v22, {DB}, 0 offen
    s_mov_b64 exec, -1
    L_I3:
    s_cmp_lg_u32 s{Wk.sW}, 0
    s_cbranch_scc1 L_I2
    s_mov_b64 exec, 1
    s_lshl_b32 s3, 1, s{sTent}
    v_mov_b32 v250, s3
    v_mov_b32 v22, s{sWord}
    buffer_atomic_or v250, v22, {DB}, 0 offen sc0
    s_mov_b64 exec, -1
    L_I2:
    s_cmp_lg_u32 s{sXcc}, {CX}
    s_cbranch_scc1 L_NOSPEC
    s_mov_b32 s{sSpec}, 1
    s_branch L_CHAIN
    L_CLOST:
    s_waitcnt vmcnt(0)
    s_cmp_lg_u32 s{Wk.sW}, 0
    s_cbranch_scc1 L_ROLE
    s_mov_b32 s{sA}, s{sTent}
    s_mov_b32 s{sOff}, {D_MASK}
    """)
    claim(a, "A", sR, sOff)
    a(f"s_cmp_eq_u32 s{sR}, -1\ns_cbranch_scc1 L_WCLAIM")
    declare(a)
    a("s_branch L_ROLE")
    a.label("L_NOSPEC")
    if P.get("pf0"):
        a(f"s_xor_b32 s3, s{Wk.sW}, s{sTent}\ns_bitcmp1_b32 s3, 0\ns_cbranch_scc0 L_PF")
        a(f"s_lshr_b32 s3, s{sDie}, 1\ns_lshl_b32 s3, s3, 1\ns_lshr_b32 s44, s{sTent}, 4\ns_add_u32 s3, s3, s44\ns_cmp_eq_u32 s3, 5\ns_cbranch_scc1 L_PF")
        a(f"s_load_dwordx4 s[48:51], s[0:1], {KA['Wq']}\ns_load_dwordx4 s[52:55], s[0:1], {KA['Wv']}\ns_mov_b32 s42, 0x400000\ns_mov_b32 s43, 0x20000")
        a(f"v_lshlrev_b32 v13, 7, v0\ns_lshr_b32 s3, s{Wk.sW}, 1\ns_add_u32 s3, s3, s2\ns_and_b32 s3, s3, 255\ns_lshl_b32 s3, s3, 14\ns_add_u32 s44, s3, 8192\ns_waitcnt lgkmcnt(0)")
        for p in P["pf0"]:
            a(f"s_mov_b32 s40, s{p}\ns_mov_b32 s41, s{p+1}\nbuffer_load_dword v252, v13, s[40:43], s3 offen\nbuffer_load_dword v252, v13, s[40:43], s44 offen")
        a.label("L_PF")
    a(f"s_lshl_b32 s{sR}, s{sDie}, 5\ns_add_u32 s{sR}, s{sR}, s{sTent}\ns_mov_b32 s{sSpec}, 1\ns_branch L_WORK")
    a.label("L_WLOST")
    a("s_waitcnt vmcnt(0) lgkmcnt(0)")
    a(f"s_cmp_lg_u32 s{Wk.sW}, 0\ns_cbranch_scc1 L_ROLE2")
    a.label("L_WCLAIM")
    a(f"s_mov_b32 s{sOff}, s{sDie}\ns_mov_b32 s{sTry}, 0\ns_mov_b32 s{sA}, s{sTent}")
    a.label("L_WNEXT")
    a(f"s_cmp_ge_u32 s{sOff}, 7\ns_cselect_b32 s{sB}, 7, 0\ns_sub_u32 s{sOff}, s{sOff}, s{sB}")
    a(f"s_cmp_ge_u32 s{sOff}, 7\ns_cselect_b32 s{sB}, 7, 0\ns_sub_u32 s{sOff}, s{sOff}, s{sB}")
    a(f"s_lshl_b32 s{sOff}, s{sOff}, 2\ns_add_u32 s{sOff}, s{sOff}, {D_WM}")
    claim(a, "W", sR, sOff)
    a(f"s_sub_u32 s{sOff}, s{sOff}, {D_WM}\ns_lshr_b32 s{sOff}, s{sOff}, 2")
    a(f"s_cmp_eq_u32 s{sR}, -1\ns_cbranch_scc0 L_WGOT")
    a(f"s_add_u32 s{sOff}, s{sOff}, 1\ns_add_u32 s{sTry}, s{sTry}, 1\ns_mov_b32 s{sA}, 0\ns_cmp_lt_u32 s{sTry}, 7\ns_cbranch_scc1 L_WNEXT")
    atomic(a, "cmpswap", D_MODE, 2, sB, cmp=0)
    a(f"s_mov_b32 s{sA}, 0\ns_mov_b32 s{sOff}, {D_MASK}")
    claim(a, "B", sR, sOff)
    a("s_branch L_ROLE")
    a.label("L_WGOT")
    a(f"s_lshl_b32 s{sOff}, s{sOff}, 5\ns_add_u32 s{sR}, s{sR}, s{sOff}\ns_add_u32 s{sR}, s{sR}, 32")
    def verdict(a):
        L = a.newlabel("VERD")
        a(f"s_cmp_eq_u32 s{sSpec}, 0\ns_cbranch_scc1 {L}\ns_mov_b32 s{sSpec}, 0")
        a(f"v_readfirstlane_b32 s{sB}, v250\ns_nop 3\ns_lshr_b32 s{sB}, s{sB}, s{sTent}\ns_and_b32 s{sB}, s{sB}, 1")
        bcast(a, sB)
        a(f"s_cmp_lg_u32 s{sB}, 0\ns_cbranch_scc1 L_WLOST")
        a.label(L)
    a.label("L_ROLE")
    a.label("L_ROLE2")
    bcast(a, sR)
    a(f"s_cmp_lt_u32 s{sR}, 32\ns_cbranch_scc1 L_CHAIN")
    a(f"s_cmp_eq_u32 s{sR}, -1\ns_cbranch_scc1 L_FIN")
    a(f"s_waitcnt vmcnt(0)\ns_sub_u32 s{sR}, s{sR}, 32")
    a.label("L_WORK")
    if P.get("wpf"):
        a("s_getpc_b64 s[66:67]\nv_lshlrev_b32 v10, 7, v0")
        a(f"s_lshl_b32 s3, s{Wk.sW}, 13\nv_add_u32 v10, s3, v10\nv_min_u32 v10, {P['wpf']}, v10\nglobal_load_dword v252, v10, s[66:67]")
    if diag: a("s_memrealtime s[70:71]\ns_waitcnt lgkmcnt(0)\ns_mov_b32 s100, s70\ns_add_u32 s101, s16, 32")
    if diag: a("s_mov_b32 s64, 0\ns_mov_b32 s66, 0\ns_mov_b32 s68, 0\ns_mov_b32 s72, 0")
    if P.get("qp", 0):
        a(f"s_sub_u32 s3, s{sR}, 128\ns_and_b32 s3, s3, 0xffffffd0\ns_cmp_lg_u32 s3, 16\ns_cbranch_scc1 L_G1")
        a(f"s_and_b32 s18, s{sR}, 15\ns_lshr_b32 s3, s{sR}, 1\ns_and_b32 s3, s3, 16\ns_add_u32 s18, s18, s3")
        def qdone(a):
            a(f"s_cmp_lg_u32 s{Wk.sW}, 0\ns_cbranch_scc1 L_G1")
            a(f"s_lshl_b32 s3, 1, s18\ns_mov_b64 exec, 1\nv_mov_b32 v2, s3\nbuffer_atomic_or v2, off, {DB}, 0 offset:{D_QP}\ns_mov_b64 exec, -1")
            if diag: a("s_memrealtime s[40:41]\ns_waitcnt lgkmcnt(0)\ns_mov_b32 s100, s40")
        C.qprep(a, 18, qdone)
        a.label("L_G1")
    Wk.gemm1(a, wait_init, verdict, sInit, diag)
    if diag: a("s_memtime s[78:79]")
    if P.get("marks"):
        a(f"s_cmp_lg_u32 s{Wk.sW}, 0\ns_cbranch_scc1 L_MK2\ns_and_b32 s3, s{sR}, 7\ns_cmp_lg_u32 s3, 0\ns_cbranch_scc1 L_MK2")
        mark(a, 8)
        a.label("L_MK2")
    if diag: a("s_memrealtime s[92:93]")
    wait_init(a)
    a(f"s_cmp_ge_u32 s{sR}, 192\ns_cbranch_scc1 L_FIN\ns_cmp_lt_u32 s{sR}, 160\ns_cbranch_scc1 L_G2\ns_sub_u32 s{sR}, s{sR}, 160")
    Wk.attention(a, diag)
    a("s_branch L_FIN")
    a.label("L_G2")
    Wk.gemm2(a, diag)
    if P.get("marks"):
        a(f"s_waitcnt vmcnt(0)\ns_cmp_lg_u32 s{Wk.sW}, 0\ns_cbranch_scc1 L_FIN")
        mark(a, 9)
    a("s_branch L_FIN")
    a.label("L_CHAIN")
    if diag: a("s_memrealtime s[70:71]\ns_waitcnt lgkmcnt(0)\ns_mov_b32 s100, s70\ns_mov_b32 s101, s16")
    if P.get("cpf"):
        a("s_getpc_b64 s[66:67]\nv_lshlrev_b32 v10, 7, v0")
        a(f"s_lshl_b32 s3, s{Wk.sW}, 13\nv_add_u32 v10, s3, v10\nv_min_u32 v10, {P['cpf']}, v10\nglobal_load_dword v98, v10, s[66:67]")
    def first_chunk(a, part, share):
        L = a.newlabel("CV")
        a(f"s_cmp_eq_u32 s{sSpec}, 0\ns_cbranch_scc1 {L}")
        if part == 0:
            a(f"s_cmp_lg_u32 s{Wk.sW}, 0\ns_cbranch_scc1 {L}_B")
            a(f"v_readfirstlane_b32 s{sB}, v250\ns_lshl_b32 s3, 1, s{sTent}\ns_nop 2\ns_and_b32 s{sLost}, s{sB}, s3\ns_or_b32 s{sB}, s{sB}, s3")
            a(f"s_cmp_lg_u32 s{sLost}, 0\ns_cbranch_scc1 {L}_B")
            declare(a)
            a.label(L + "_B")
        if share:
            a(f"s_mov_b32 s{sSpec}, 0")
            if part: a("s_barrier")
            bcast(a, sLost)
            a(f"s_cmp_lg_u32 s{sLost}, 0\ns_cbranch_scc1 L_CLOST")
        a.label(L)
    sChf, sG1 = 88, 89
    def g1addr(a, lane):
        a(f"v_and_b32 v11, 3, {lane}\nv_bfe_u32 v10, {lane}, 2, 1\nv_lshlrev_b32 v10, 13, v10\nv_lshl_add_u32 v10, v11, 7, v10")
    def set_ready(a, v):
        for perm in ("quad_perm:[1,0,3,2]", "quad_perm:[2,3,0,1]", "row_half_mirror"):
            a(f"s_nop 1\nv_min_u32_dpp v{v}, v{v}, v{v} {perm} row_mask:0xf bank_mask:0xf")
        a(f"s_nop 0\nv_readfirstlane_b32 s{sReady}, v{v}\ns_nop 3\ns_lshl_b32 s{sReady}, s{sReady}, 2")
    def peek(a):
        a(f"s_lshl_b32 s{sChf}, s{C.sH}, 7\ns_add_u32 s{sChf}, s{sChf}, {CHF}")
        a(f"s_lshr_b32 s{sG1}, s{C.sH}, 1\ns_lshl_b32 s{sG1}, s{sG1}, 9\ns_add_u32 s{sG1}, s{sG1}, {G1F}")
        a(f"v_mov_b32 v124, -1\nv_mov_b32 v125, -1\nv_mov_b32 v126, -1\nv_mov_b32 v127, -1")
        a(f"s_lshl_b32 s3, s{C.sH}, 2\ns_add_u32 s3, s3, s{Wk.sW}\ns_lshl_b32 s3, s3, 10\ns_add_u32 s3, s3, {KMEM - C.MISC + EFROM*32*4096}")
        for sg in range(EFROM, 64):
            a(f"buffer_store_dwordx4 v[124:127], v{C.vM16}, {WS}, s3 offen sc1\ns_add_u32 s3, s3, {32*4096}")
        g1addr(a, "v0")
        a(f"v_mov_b32 v24, 0\nbuffer_load_dwordx2 v[26:27], v24, {DB}, 0 offen sc1\nbuffer_load_dword v25, v10, {WS}, s{sG1} offen sc1")
    def qlook(a):
        a(f"buffer_load_dword v29, off, {DB}, 0 offset:{D_QP} sc1")
    def qwait(a):
        keep = list(a.vmq)
        a(f"s_mov_b32 s{sD}, 0")
        a.label("L_QW")
        a(f"v_readfirstlane_b32 s{sB}, v29\ns_nop 3\ns_bitcmp1_b32 s{sB}, s{C.sH}\ns_cbranch_scc1 L_QOK")
        a(f"s_add_u32 s{sD}, s{sD}, 1\ns_cmp_gt_u32 s{sD}, {Wk.POLL_BOUND}\ns_cbranch_scc1 L_QOK\ns_sleep 2")
        a(f"buffer_load_dword v29, off, {DB}, 0 offset:{D_QP} sc1\ns_waitcnt vmcnt(0)\ns_branch L_QW")
        a.label("L_QOK")
        a.vmq = keep
    if P.get("qp", 0): P = dict(P, qpre=(qlook, qwait))
    C.prologue_a(a, P, True)
    C.prologue_b(a, P, first_chunk, peek)
    a(f"s_waitcnt vmcnt(0)\nv_readfirstlane_b32 s{sMode}, v26\nv_readfirstlane_b32 s3, v27")
    set_ready(a, 25)
    a(f"s_cmp_ge_u32 s3, {2 * NINIT}\ns_cselect_b32 s{sInit}, 1, s{sInit}\ns_cselect_b32 s{sReady}, s{sReady}, 0")
    wait_init(a, 10)
    if P.get("hold"):
        a(f"s_cmp_lg_u32 s{Wk.sW}, 0\ns_cbranch_scc1 L_STG\ns_add_u32 s3, s{sChf}, 64")
        Wk.flag_store(a, "s3", 1, 10)
        a.label("L_STG")
    a(f"s_cmp_lg_u32 s{sMode}, 0\ns_cbranch_scc1 L_MODEOK\nv_mov_b32 v10, {D_MODE}")
    Wk.poll_ge(a, f"buffer_load_dword v11, v10, {DB}, 0 offen sc1", [11], 1, "MODE")
    a(f"v_readfirstlane_b32 s{sMode}, v11\ns_nop 3")
    a.label("L_MODEOK")
    if P.get("marks"):
        a(f"s_cmp_lg_u32 s{Wk.sW}, 1\ns_cbranch_scc1 L_MK1")
        mark(a, 5); mark(a, 6, True)
        a.label("L_MK1")
    if diag:
        for k in range(20, 30): a(f"s_mov_b32 s{C.sTS+k}, 0")
        a("s_memrealtime s[92:93]\ns_memtime s[96:97]")
    stubs = []
    sPend = 29
    def ready(a, w, tag, first):
        if not first and w != 2: return
        L = a.newlabel("RDY")
        if first: a(f"s_mov_b32 s{C.sStep}, 0\ns_mov_b32 s{sPend}, 0")
        else:
            a(f"s_cmp_eq_u32 s{sPend}, 0\ns_cbranch_scc1 {L}_P\ns_mov_b32 s{sPend}, 0")
            set_ready(a, C.vMpub)
            a.label(L + "_P")
        a(f"s_add_u32 s{C.sT0}, s{C.sStep}, 1\ns_min_u32 s{C.sT0}, s{C.sT0}, 63\ns_cmp_ge_u32 s{C.sT0}, s{sReady}\ns_cbranch_scc1 {L}_S")
        a.label(L)
        stubs.append((L, first))
    def look(a):
        L = a.newlabel("LOOK")
        a(f"s_add_u32 s{C.sT0}, s{C.sStep}, 6\ns_min_u32 s{C.sT0}, s{C.sT0}, 63\ns_cmp_lt_u32 s{C.sT0}, s{sReady}\ns_cbranch_scc1 {L}")
        a(f"v_lshrrev_b32 v10, 3, v{C.vL8}")
        g1addr(a, "v10")
        a(f"buffer_load_dword v{C.vMpub}, v10, {WS}, s{sG1} offen sc1\ns_mov_b32 s{sPend}, 1")
        a.label(L)
    def flag(a):
        if P.get("noflag"): return
        if P.get("marks"):
            L = a.newlabel("MK")
            a(f"s_and_b32 s{C.sT0}, s{C.sStep}, 15\ns_cmp_lg_u32 s{C.sT0}, 1\ns_cbranch_scc1 {L}\ns_cmp_lg_u32 s{C.sH}, 5\ns_cbranch_scc1 {L}")
            a(f"s_memrealtime s[98:99]\ns_lshr_b32 s{C.sT0}, s{C.sStep}, 4\ns_lshl_b32 s{C.sT0}, s{C.sT0}, 2\ns_add_u32 s{C.sT0}, s{C.sT0}, 40\ns_waitcnt lgkmcnt(0)")
            a(f"s_mov_b64 exec, 1\nv_mov_b32 v10, s98\nv_mov_b32 v11, s{C.sT0}\nbuffer_store_dword v10, v11, {DB}, 0 offen\ns_mov_b64 exec, -1")
            a.label(L)
        FL = a.newlabel("FLAG")
        FE = P.get("fevery", 4)
        a(f"s_and_b32 s{C.sT0}, s{C.sStep}, {FE-1}\ns_cmp_ge_u32 s{C.sStep}, {P.get('fall', 56)}\ns_cselect_b32 s{C.sT0}, {1 % FE}, s{C.sT0}\ns_cmp_lg_u32 s{C.sT0}, {1 % FE}\ns_cbranch_scc1 {FL}")
        a(f"s_sub_u32 s{C.sT0}, s{C.sStep}, 1\ns_max_i32 s{C.sT0}, s{C.sT0}, 0")
        if P.get("early", 1): a(f"s_cmp_gt_u32 s{C.sStep}, {EFROM}\ns_cselect_b32 s{C.sT0}, s{C.sStep}, s{C.sT0}")
        Wk.flag_store(a, f"s{sChf}", f"s{C.sT0}", 10); a.vmq.pop()
        a.label(FL)
    def done(a, w):
        a("s_barrier" if P.get("early", 1) else "s_waitcnt vmcnt(0)\ns_barrier")
        if w == 0: Wk.flag_store(a, f"s{sChf}", 64, 10)
        if w == 1: mark(a, 7)
        a.vmq = []
        a("s_branch L_FIN")
        for L, first in stubs:
            a.label(L + "_S")
            a(f"s_add_u32 s{C.sT0}, s{C.sStep}, 1\ns_min_u32 s{C.sT0}, s{C.sT0}, 63\ns_lshr_b32 s{C.sT0}, s{C.sT0}, 2\ns_add_u32 s{C.sT0}, s{C.sT0}, 1")
            a(f"v_lshrrev_b32 v10, 3, v{C.vL8}")
            g1addr(a, "v10")
            Wk.poll_ge(a, f"buffer_load_dword v11, v10, {WS}, s{sG1} offen sc1", [11], f"s{C.sT0}", "KV", sleep=0)
            set_ready(a, 11)
            a(f"s_branch {L}")
        stubs.clear()
    P = dict(P, hooks=dict(ready=ready, flag=flag, done=done, look=look))
    a(f"s_cmp_eq_u32 s{sMode}, 1\ns_cbranch_scc0 L_SLOW")
    for st in ("", "sc1"):
        if st: a.label("L_SLOW")
        t = "s" if st else "f"
        for w in range(1, 4): a(f"s_cmp_eq_u32 s{C.sW}, {w}\ns_cbranch_scc1 CH_W{w}{t}")
        for w in range(4):
            a.label(f"CH_W{w}{t}")
            C.loop(a, w, st, P, diag)
    a.label("L_FIN")
    if diag:
        a("s_memrealtime s[94:95]\ns_memtime s[98:99]\ns_waitcnt lgkmcnt(0)")
        a(f"s_lshl_b32 s3, s2, 2\ns_add_u32 s3, s3, s{Wk.sW}\ns_lshl_b32 s3, s3, 7\ns_add_u32 s3, s3, {DBG}")
        vals = [C.sTS + 20 + k for k in range(10)] + [90, 92, 94, 96, 98, sR, sXcc, Wk.sDead, 100, 101, 72, 74, 76, 78]
        for i, sg in enumerate(vals):
            a(f"v_mov_b32 v20, s{sg}\nv_mov_b32 v21, {4*i}\nbuffer_store_dword v20, v21, {WS}, s3 offen")
    a("s_waitcnt vmcnt(0)")
    a.label("L_END")
    return a.text()

def wrap(body):
    ref = open(f"cdna_kernels/{NAME}.s.ref").read().split("\n")
    head = [l for l in ref if l.startswith(";") and "@launch" not in l]
    return "\n".join(head) + f"""
; @launch grid=(256,1,1) block=(256,1,1) lds=163840
.amdgcn_target "amdgcn-amd-amdhsa--gfx950"
.text
.globl {NAME}_kernel
.p2align 8
.type {NAME}_kernel,@function
{NAME}_kernel:
{body}s_endpgm
.section .rodata,"a"
.p2align 6
.amdhsa_kernel {NAME}_kernel
  .amdhsa_next_free_vgpr 512
  .amdhsa_next_free_sgpr 102
  .amdhsa_accum_offset 256
  .amdhsa_group_segment_fixed_size 0
  .amdhsa_kernarg_size 120
  .amdhsa_user_sgpr_count 2
  .amdhsa_user_sgpr_kernarg_segment_ptr 1
  .amdhsa_system_sgpr_workgroup_id_x 1
.end_amdhsa_kernel
"""
if __name__ == "__main__":
    import ast
    P = dict(CH)
    if len(sys.argv) > 2: P.update(ast.literal_eval(sys.argv[2]))
    t = gen(P)
    hz = check(t)
    for h in hz[:12]: print(h)
    out = sys.argv[1] if len(sys.argv) > 1 else f"cdna_kernels/{NAME}.s"
    open(out, "w").write(wrap(t))
    print("lines", len(t.split("\n")), "hazards", len(hz))
```

```python
from asm import *
from layout import *
import math

MISC = 131072
M_OFF = 0
X_OFF = 8192
KX_OFF = 16384
O_OFF = 13568
XS = 1088
sWS = 8
sTMP = 12
sH, sW, sStep = 16, 17, 18
sPst, sPld, sTag, sMpub, sMpoll, sMclr = 19, 20, 21, 22, 23, 24
sVx, sKx, sKm, sVm = 25, 26, 27, 28
sC = 30
sT0, sT1, sT2, sT3 = 32, 33, 34, 35
sCnt = 36
sLO8 = 38
sDBG = 40
sTS = 44
vIDX, vKx, vM16, vRing, vPst, vMpub, vXw, vXr, vOr = 1, 2, 3, 4, 5, 6, 7, 8, 9
vL8 = 0
vNEG = 10
vVA0 = 12
RA_OFF = 12544
vVX = 16
vPM = 24
vACC = 28
vA = 44
vRING = 76
vT = 124
vWK = 128
NRING = 6
WQ_SLOT = [2, 3, 1, 0]
def ringreg(i): return vRING + 8 * (i % NRING)
KXREG = [vRING + 8*4, vRING + 8*5, vRING + 0, vRING + 8]
def kx(kt, s): return KXREG[kt*2 + (s >> 1)] + 4 * (s & 1)
vXF = vRING + 16
def wv(t, s): return 8 * (t * 8 + s)
def wo(d, s): return 128 + 8 * (d * 4 + s)
def wk(t, s): return vWK + 8 * (t * 8 + s)

def wq_lds_imm(i):
    t, s = i >> 3, i & 7
    return WQ_SLOT[s >> 1] * 8192 + ((s & 1) * 2 + t) * 2048

def stamp(a, k, diag):
    if diag: a(f"s_memtime s[{sTS+2*k}:{sTS+2*k+1}]")

def prologue(a, P, diag=False):
    a(f"v_lshrrev_b32 v10, 6, v0\nv_and_b32 v0, 63, v0\nv_readfirstlane_b32 s{sW}, v10\ns_nop 3")
    prologue_a(a, P, True); prologue_b(a, P)

def prologue_a(a, P, dma):
    WNT[0] = P.get("wnt", "")
    order[:] = [x for x in P.get("order", "kvoq") for _ in range(4)]
    WQ_SLOT[:] = [2, 3, 0, 1] if P.get("qpre") else [2, 3, 1, 0]
    a(f"""
    s_load_dwordx4 s[48:51], s[0:1], {KA['Wq']}
    s_load_dwordx4 s[52:55], s[0:1], {KA['Wv']}
    s_load_dwordx2 s[56:57], s[0:1], {KA['mem0']}
    """)
    a(f"""
    v_and_b32 v100, 15, v0            ; n
    v_lshrrev_b32 v101, 4, v0         ; g
    v_and_b32 v102, 3, v0             ; c
    v_bfe_u32 v103, v0, 2, 2          ; r''
    """)
    a(f"""
    s_lshl_b32 s{sT2}, s{sH}, 8
    s_lshl_b32 s{sT3}, s{sW}, 6
    s_add_u32 s{sT2}, s{sT2}, s{sT3}
    v_lshrrev_b32 v10, 2, v0
    """)
    for k in range(4):
        a(f"v_xor_b32 v11, {k & 2}, v10\nv_lshlrev_b32 v11, 13, v11\nv_xor_b32 v104, {2*(k&1)}, v102\nv_lshl_add_u32 v11, v104, 4, v11\nv_add_u32 v{vSQ+k}, s{sT2}, v11")
        a(f"v_mov_b32 v{vSRC+k}, v{vSQ+k}\nv_mov_b32 v{vSRC+4+k}, v{vSQ+k}")
    a(f"s_lshl_b32 s{sT2}, s{sH}, 17\ns_lshl_b32 s{sT3}, s{sW}, 8\ns_add_u32 s{sT2}, s{sT2}, s{sT3}\nv_and_b32 v105, 1, v101")
    for k in range(2):
        a(f"v_lshl_add_u32 v10, v105, 2, 0\nv_xor_b32 v10, v10, v100\nv_xor_b32 v10, {8*k}, v10\nv_lshlrev_b32 v11, 10, v101\nv_lshl_add_u32 v10, v10, 4, v11\nv_add_u32 v{vSO+k}, s{sT2}, v10")
    a(f"""
    s_lshl_b32 s{sB0}, s{sW}, 15
    s_lshl_b32 s{sB1}, s{sW}, 13
    s_add_u32 s{sB1}, s{sB1}, {MISC}
    s_mov_b32 s62, 0x400000
    s_mov_b32 s63, 0x20000
    s_getpc_b64 s[{sSub}:{sSub+1}]
    s_add_u32 s{sSub}, s{sSub}, 12
    s_addc_u32 s{sSub+1}, s{sSub+1}, 0
    s_branch CH_SUBE
    """)
    for i in range(8):
        a(f"s_mov_b32 m0, s64\ns_add_u32 s64, s64, 1024\nbuffer_load_dwordx4 v{vSRC+i}, s[60:63], s65 offen {WNT[0]} lds\ns_add_u32 s65, s65, s66")
    a(f"s_setpc_b64 s[{sRet}:{sRet+1}]")
    a.label("CH_SUBE")
    a("s_waitcnt lgkmcnt(0)")
    for c in range(4 if P.get('cverd', 0) == 0 else 5): w_issue(a, c)
    a(f"""
    v_and_b32 v10, 2, v0
    v_cmp_eq_u32 vcc, 0, v10
    v_mov_b32 v11, 0xeeee
    v_mov_b32 v104, 0x4444
    v_cndmask_b32 v{vIDX}, v11, v104, vcc
    v_lshlrev_b32 v10, 4, v0
    v_add_u32 v{vM16}, {MISC}, v10
    s_lshl_b32 s{sT0}, s{sW}, 15
    v_add_u32 v{vRing}, s{sT0}, v10
    v_lshrrev_b32 v11, 2, v0
    v_lshlrev_b32 v11, 1, v11
    v_and_b32 v104, 1, v0
    v_add_u32 v11, v11, v104
    v_lshlrev_b32 v11, 4, v11
    v_add_u32 v{vOr}, {MISC+O_OFF}, v11
    v_lshlrev_b32 v10, 14, v101
    v_lshrrev_b32 v11, 3, v100
    v_lshl_add_u32 v10, v11, 13, v10
    v_and_b32 v11, 7, v100
    v_lshl_add_u32 v{vPst}, v11, 4, v10
    v_lshlrev_b32 v10, 4, v102
    v_bfe_u32 v11, v0, 2, 1
    v_lshl_add_u32 v10, v11, 3, v10
    v_lshrrev_b32 v11, 1, v101
    v_lshl_add_u32 v10, v11, 2, v10
    v_and_b32 v11, 1, v101
    v_lshl_add_u32 v{vMpub}, v11, 8, v10
    v_add_u32 v{vKx}, {KX_OFF}, v{vM16}
    v_mul_u32_u24 v10, {XS}, v101
    v_lshl_add_u32 v10, v100, 3, v10
    s_lshl_b32 s{sT0}, s{sW}, 8
    s_add_u32 s{sT0}, s{sT0}, {MISC+X_OFF}
    v_add_u32 v{vXw}, s{sT0}, v10
    v_mul_u32_u24 v10, {XS}, v102
    v_lshrrev_b32 v11, 2, v0
    v_lshl_add_u32 v10, v11, 3, v10
    v_add_u32 v{vXr}, {MISC+X_OFF}, v10
    v_bfe_u32 v10, v100, 1, 2
    v_and_b32 v11, 1, v100
    v_lshlrev_b32 v11, 4, v11
    v_mov_b32 v104, 0x3f80
    v_lshlrev_b32 v104, v11, v104
    """)
    for k in range(4):
        a(f"v_cmp_eq_u32 vcc, {k}, v10\ns_nop 1\nv_cndmask_b32 v{112+k}, 0, v104, vcc")
    a(f"s_mov_b32 s{sLO8}, 0x00ff00ff\ns_mov_b32 s{sLO8+1}, 0x00ff00ff\ns_mov_b32 s{sB1M}, 0xcccccccc\ns_mov_b32 s{sB1M+1}, 0xcccccccc\ns_mov_b32 s{sONE}, 0x3f803f80")
    c = (128 ** -0.5) * math.log2(math.e)
    import struct
    cb = struct.unpack("<I", struct.pack("<f", c))[0]
    a(f"s_mov_b32 s{sC}, {cb:#x}\ns_mov_b32 s{sC+1}, {cb:#x}")
    a(f"""
    s_lshl_b32 s{sT2}, s{sH}, 17
    s_lshl_b32 s{sT3}, s{sW}, 8
    s_add_u32 s{sT2}, s{sT2}, s{sT3}
    v_and_b32 v105, 1, v101            ; g&1
    v_lshrrev_b32 v106, 1, v101        ; g>>1
    v_and_b32 v107, 1, v103            ; r&1
    v_lshrrev_b32 v108, 1, v103        ; r>>1
    v_lshlrev_b32 v10, 5, v105
    v_lshl_add_u32 v10, v106, 2, v10
    v_lshl_add_u32 v10, v108, 4, v10
    v_add_u32 v109, v10, v107
    v_lshlrev_b32 v10, 4, v105
    v_lshl_add_u32 v10, v106, 2, v10
    v_add_u32 v110, v10, v107
    """)
    for mb in range(2):
        for t in range(2):
            a(f"v_add_u32 v10, {2*mb}, v109\nv_lshlrev_b32 v11, 1, v105\nv_xor_b32 v10, v10, v11\nv_lshlrev_b32 v10, 6, v10")
            a(f"v_xor_b32 v11, {t}, v108\nv_lshl_add_u32 v10, v11, 5, v10\nv_lshl_add_u32 v10, v102, 3, v10")
            a(f"v_add_u32 v{vB1+mb*2+t}, s{sB0}, v10\nv_add_u32 v{vB1+4+mb*2+t}, s{sB1}, v10")
    for d in range(4):
        a(f"v_lshl_add_u32 v11, v105, 1, v107\nv_xor_b32 v11, {d}, v11\nv_lshlrev_b32 v10, 8, v110\nv_lshl_add_u32 v10, v11, 6, v10")
        a(f"v_lshl_add_u32 v10, v108, 5, v10\nv_lshl_add_u32 v10, v102, 3, v10")
        a(f"v_add_u32 v{vB2+d}, s{sB0}, v10\nv_add_u32 v{vB2+4+d}, s{sB1}, v10")
    a(f"""
    s_mov_b32 s12, s56
    s_mov_b32 s13, s57
    s_mov_b32 s14, 8192
    s_mov_b32 s15, 0x20000
    v_lshrrev_b32 v10, 2, v100
    v_lshlrev_b32 v10, 1, v10
    v_and_b32 v11, 1, v0
    v_add_u32 v10, v10, v11            ; row
    v_lshlrev_b32 v10, 10, v10
    v_bfe_u32 v11, v0, 1, 1
    v_lshl_add_u32 v10, v11, 5, v10
    v_lshl_add_u32 v10, v101, 3, v10
    s_lshl_b32 s{sT2}, s{sW}, 8        ; ksteps 2w, 2w+1
    v_add_u32 v10, s{sT2}, v10
    buffer_load_dwordx2 v[16:17], v10, s[12:15], 0 offen
    buffer_load_dwordx2 v[18:19], v10, s[12:15], 0 offen offset:64
    buffer_load_dwordx2 v[12:13], v10, s[12:15], 0 offen offset:128
    buffer_load_dwordx2 v[14:15], v10, s[12:15], 0 offen offset:192
    """)

order = ["k"] * 4 + ["v"] * 4 + ["o"] * 4 + ["q"] * 4
srd = {"q": 60, "k": 64, "v": 68, "o": 72}
WNT = ['']
sB0, sB1 = 76, 77
sSub, sRet = 68, 70
vSRC, vSQ, vSO, vB1, vB2 = 76, 84, 88, 90, 116
def w_issue(a, c):
    m = order[c]; cc = c & 3; slot = c % 5
    if cc == 0:
        src = {"q": 48, "k": 50, "v": 52, "o": 54}[m]
        a(f"s_mov_b32 s60, s{src}\ns_mov_b32 s61, s{src+1}\ns_mov_b32 s65, 0")
        change = c == 0 or (order[c - 1] == "o") != (m == "o")
        if change: a(f"s_mov_b32 s66, {4096 if m == 'o' else 131072}")
        if change and (c or m == "o"):
            for k in range(8): a(f"v_mov_b32 v{vSRC+k}, v{vSO + (k >> 2) if m == 'o' else vSQ + (k & 3)}")
    a(f"s_add_u32 s64, s{sB0}, {slot*8192}" if slot < 4 else f"s_mov_b32 s64, s{sB1}")
    a(f"s_swappc_b64 s[{sRet}:{sRet+1}], s[{sSub}:{sSub+1}]")
    a.vmq += [("w", c)] * 8

def prologue_b(a, P, first_chunk=None, peek=None):
    issue = lambda c: w_issue(a, c)
    CV = P.get("cverd", 0)
    a.vmq = [("w", c) for c in range(4 if CV == 0 else 5) for _ in range(8)]
    for c in range(16):
        m = order[c]; cc = c & 3; slot = c % 5
        a.wait_vm(("w", c))
        if c == 0:
            if first_chunk: first_chunk(a, 0, CV == 0)
            if CV == 0: issue(4)
        so, sb = (slot * 8192, 0) if slot < 4 else (0, 4)
        if m == "q" and P.get("qpre"):
            if c == P.get('peek', 13) and peek: peek(a)
            continue
        if m != "o":
            for s_ in range(2):
                for t in range(2):
                    for mm in range(4):
                        imm = so + (64 * s_ + 8 * (mm >> 1)) * 64
                        s = 2 * cc + s_
                        if m == "k": dst = vr(wk(t, s) + 2 * mm, 2)
                        elif m == "v": dst = ar(wv(t, s) + 2 * mm, 2)
                        else: dst = vr(vA + (s_ * 2 + t) * 8 + 2 * mm, 2)
                        a.ds(f"ds_read_b64_tr_b16 {dst}, v{vB1 + sb + (mm & 1) * 2 + t} offset:{imm}")
        else:
            for d in range(4):
                for mm in range(4):
                    imm = so + (8 * (mm >> 1) + 2 * (mm & 1)) * 256
                    a.ds(f"ds_read_b64_tr_b16 {ar(wo(d, cc) + 2*mm, 2)}, v{vB2 + sb + d} offset:{imm}")
        a.wait_ds_all()
        if m == "q":
            for k in range(8):
                a.ds(f"ds_write_b128 v{vRing}, {vr(vA + 4*k, 4)} offset:{WQ_SLOT[cc]*8192 + k*1024}")
            a.wait_ds_all()
        if CV and c == CV and first_chunk: first_chunk(a, 1, True)
        if P.get("qpre"):
            if c == 6: P["qpre"][0](a)
            if c + 5 < 12: issue(c + 5)
            if c == 10:
                P["qpre"][1](a)
                a(f"s_mov_b32 s60, s{sWS}\ns_mov_b32 s61, s{sWS+1}\ns_mov_b32 s62, {WS_BYTES}\ns_mov_b32 s66, 1024")
                a(f"s_lshl_b32 s65, s{sH}, 2\ns_add_u32 s65, s65, s{sW}\ns_lshl_b32 s65, s65, 15\ns_add_u32 s65, s65, {WQP - MISC}")
                for k in range(8): a(f"v_mov_b32 v{vSRC+k}, v{vM16}")
            for cq in {10: (0, 1, 2), 11: (3,)}.get(c, ()):
                a(f"s_add_u32 s64, s{sB0}, {WQ_SLOT[cq]*8192}\ns_swappc_b64 s[{sRet}:{sRet+1}], s[{sSub}:{sSub+1}]")
                a.vmq += [("w", 12 + cq)] * 8
        elif c + 5 < 16: issue(c + 5)
        if c == P.get('peek', 13) and peek: peek(a)
        if c == P.get("help_at", -1):
            lo, per = P["help"]
            a(f"s_lshl_b32 s{sT0}, s{sH}, 2\ns_add_u32 s{sT0}, s{sT0}, s{sW}\nv_lshlrev_b32 v10, 7, v0")
            for rep in range(P.get("help_rep", 2)):
                if rep: a(f"s_add_u32 s{sT0}, s{sT0}, {128 // P.get('help_rep', 2) + 1}\ns_and_b32 s{sT0}, s{sT0}, 127")
                a(f"s_mul_i32 s{sT1}, s{sT0}, {per*8192}\ns_add_u32 s{sT1}, s{sT1}, {lo*8192}")
                for k in range(per):
                    a(f"buffer_load_dword v11, v10, s[60:63], s{sT1} offen")
                    if k + 1 < per: a(f"s_add_u32 s{sT1}, s{sT1}, 8192")
    a("s_barrier")
    a(f"""
    ds_write_b128 v{vM16}, v[112:115] offset:{RA_OFF}
    v_lshlrev_b32 v{vL8}, 3, v0
    s_waitcnt lgkmcnt(0)
    """)

def qprep(a, sHd, finish):
    a(f"""
    s_load_dwordx2 s[60:61], s[0:1], {KA['Wq']}
    s_mov_b32 s62, 0x400000
    s_mov_b32 s63, 0x20000
    v_lshrrev_b32 v101, 4, v0
    v_and_b32 v102, 3, v0
    v_bfe_u32 v103, v0, 2, 2
    s_lshl_b32 s{sT2}, s{sHd}, 8
    s_lshl_b32 s{sT3}, s{sW}, 6
    s_add_u32 s{sT2}, s{sT2}, s{sT3}
    v_lshrrev_b32 v10, 2, v0
    s_lshl_b32 s{sB0}, s{sW}, 15
    s_mov_b32 s64, s{sB0}
    s_mov_b32 s65, 0
    """)
    for k in range(4):
        a(f"v_xor_b32 v11, {k & 2}, v10\nv_lshlrev_b32 v11, 13, v11\nv_xor_b32 v104, {2*(k&1)}, v102\nv_lshl_add_u32 v11, v104, 4, v11\nv_add_u32 v{vSQ+k}, s{sT2}, v11")
    a("s_waitcnt lgkmcnt(0)")
    a.vmq = []
    for c in range(4):
        for i in range(8):
            a("s_mov_b32 m0, s64\ns_add_u32 s64, s64, 1024")
            a.vm(f"buffer_load_dwordx4 v{vSQ+(i&3)}, s[60:63], s65 offen lds", ("w", c))
            a("s_add_u32 s65, s65, 131072")
    a(f"""
    v_and_b32 v105, 1, v101
    v_lshrrev_b32 v106, 1, v101
    v_and_b32 v107, 1, v103
    v_lshrrev_b32 v108, 1, v103
    v_lshlrev_b32 v10, 5, v105
    v_lshl_add_u32 v10, v106, 2, v10
    v_lshl_add_u32 v10, v108, 4, v10
    v_add_u32 v109, v10, v107
    v_lshlrev_b32 v110, 4, v0
    s_lshl_b32 s65, s{sHd}, 2
    s_add_u32 s65, s65, s{sW}
    s_lshl_b32 s65, s65, 15
    s_add_u32 s65, s65, {WQP}
    """)
    for mb in range(2):
        for t in range(2):
            a(f"v_add_u32 v10, {2*mb}, v109\nv_lshlrev_b32 v11, 1, v105\nv_xor_b32 v10, v10, v11\nv_lshlrev_b32 v10, 6, v10")
            a(f"v_xor_b32 v11, {t}, v108\nv_lshl_add_u32 v10, v11, 5, v10\nv_lshl_add_u32 v10, v102, 3, v10\nv_add_u32 v{vB1+mb*2+t}, s{sB0}, v10")
    for c in range(4):
        a.wait_vm(("w", c))
        R = 112 + 32 * c
        for s_ in range(2):
            for t in range(2):
                for mm in range(4):
                    a.ds(f"ds_read_b64_tr_b16 {vr(R + (s_*2+t)*8 + 2*mm, 2)}, v{vB1 + (mm&1)*2 + t} offset:{c*8192 + (64*s_ + 8*(mm>>1))*64}")
        a.wait_ds_all()
        for k in range(8):
            a.vm(f"buffer_store_dwordx4 {vr(R + 4*k, 4)}, v110, s[{sWS}:{sWS+3}], s65 offen offset:{(k&3)*1024} sc1", "st")
            if k & 3 == 3: a("s_add_u32 s65, s65, 4096")
    a.wait_vm_all()
    a("s_barrier")
    finish(a)

def seg_offsets(a, w, P):
    a(f"""
    s_and_b32 s{sT0}, s{sStep}, 3
    s_lshl_b32 s{sT1}, s{sT0}, 18
    s_lshl_b32 s{sT2}, s{sH}, 7
    s_add_u32 s{sPst}, s{sT1}, s{sT2}
    s_add_u32 s{sPst}, s{sPst}, {PART + w*65536}
    s_lshl_b32 s{sT3}, s{sH}, 13
    s_add_u32 s{sPld}, s{sT1}, s{sT3}
    s_add_u32 s{sPld}, s{sPld}, {PART - MISC + (w&1)*4096}
    s_add_u32 s{sT0}, s{sStep}, 3
    s_and_b32 s{sT0}, s{sT0}, 3
    s_lshl_b32 s{sT1}, s{sT0}, 18
    s_mov_b32 s{sTag}, 0
    s_lshr_b32 s{sT2}, s{sH}, 3
    s_lshl_b32 s{sT2}, s{sT2}, 11
    s_and_b32 s{sT3}, s{sH}, 1
    s_lshl_b32 s{sT3}, s{sT3}, 9
    s_add_u32 s{sT2}, s{sT2}, s{sT3}
    s_bfe_u32 s{sT3}, s{sH}, 0x20001
    s_lshl_b32 s{sT3}, s{sT3}, 6
    s_add_u32 s{sT2}, s{sT2}, s{sT3}
    s_lshl_b32 s{sT1}, s{sT0}, 13
    s_add_u32 s{sMclr}, s{sT1}, s{sT2}
    s_add_u32 s{sMclr}, s{sMclr}, {MBUF + (w&1)*1024}
    s_add_u32 s{sT0}, s{sStep}, 1
    s_and_b32 s{sT0}, s{sT0}, 3
    s_lshl_b32 s{sT1}, s{sT0}, 13
    s_add_u32 s{sMpub}, s{sT1}, s{sT2}
    s_add_u32 s{sMpub}, s{sMpub}, {MBUF + (w&1)*1024}
    s_add_u32 s{sMpoll}, s{sT1}, {MBUF - MISC + w*2048}
    s_lshl_b32 s{sT0}, s{sStep}, 5
    s_add_u32 s{sT0}, s{sT0}, s{sH}
    s_lshl_b32 s{sT1}, s{sT0}, 13
    s_add_u32 s{sVx}, s{sT1}, {VIMG - MISC + w*2048}
    s_add_u32 s{sKx}, s{sT1}, {KIMG - MISC + 32*8192}
    s_lshl_b32 s{sT1}, s{sT0}, 12
    s_add_u32 s{sKm}, s{sT1}, {KMEM - MISC + w*1024}
    s_lshl_b32 s{sT1}, s{sT0}, 11
    s_add_u32 s{sVm}, s{sT1}, {VMEM + w*512}
    """)

sRP, sRM, sMprev, sCP1, sCP2, sCM1, sVmPrev = 76, 77, 78, 79, 80, 81, 82
sKb, sStage = 75, 74
sONE = 42
sB1M = 40
def init_incr(a, w):
    a(f"""
    s_mov_b32 s{sRP}, 0
    s_mov_b32 s{sRM}, 8192
    s_mov_b32 s{sCP1}, s{sPst}
    s_mov_b32 s{sCP2}, s{sPld}
    s_sub_u32 s{sCM1}, s{sMpub}, 8192
    s_mov_b32 s{sMprev}, s{sCM1}
    """)
NP = [1]
def advance(a, w):
    a(f"""
    s_add_u32 s{sVx}, s{sVx}, {32*8192}
    s_add_u32 s{sKx}, s{sKx}, {32*8192}
    s_add_u32 s{sKm}, s{sKm}, {32*4096}
    s_sub_u32 s{sMclr}, s{sMprev}, {(w&1)*1024}
    s_mov_b32 s{sMprev}, s{sMpub}
    s_add_u32 s{sRM}, s{sRM}, 8192
    s_and_b32 s{sRM}, s{sRM}, 0x7fff
    s_add_u32 s{sMpub}, s{sRM}, s{sCM1}
    s_add_u32 s{sStep}, s{sStep}, 1
    """)
    if NP[0] == 1: a(f"s_xor_b32 s{sTag}, s{sTag}, 1")
    else:
        a(f"""
        s_add_u32 s{sRP}, s{sRP}, 0x40000
        s_and_b32 s{sRP}, s{sRP}, {NP[0]*0x40000 - 1}
        s_add_u32 s{sPst}, s{sRP}, s{sCP1}
        s_add_u32 s{sPld}, s{sRP}, s{sCP2}
        s_bfe_u32 s{sTag}, s{sStep}, {0x10000 + NP[0].bit_length() - 1}
        """)

def korder(w):
    own = [2 * w, 2 * w + 1]
    rest = [(2 * w + 2 + k) % 8 for k in range(6)]
    seq = [(0, own[0]), (1, own[0]), (0, own[1]), (1, own[1])] + [(0, s) for s in rest] + [(1, s) for s in rest]
    return own, rest, seq

ABL = [""]; NT = [""]
def ring_fill(a, w, i):
    if "r" in ABL[0] and i >= NRING: return
    t, s = korder(w)[2][i]
    r = ringreg(i); imm = WQ_SLOT[s >> 1] * 8192 + ((s & 1) * 2 + t) * 2048
    a.ds(f"ds_read_b128 {vr(r,4)}, v{vRing} offset:{imm}", ("ring", i))
    a.ds(f"ds_read_b128 {vr(r+4,4)}, v{vRing} offset:{imm+1024}", ("ring", i))

def kx_dma(a, w, i):
    a(f"s_add_u32 m0, s{sKb}, {i*1024}")
    a(f"s_add_u32 s{sT0}, s{sKx}, {i*1024}")
    a.vm(f"buffer_load_dwordx4 v{vM16}, s[{sWS}:{sWS+3}], s{sT0} offen {NT[0]} lds", "kx")

class Stream:
    def __init__(self): self.ops = []; self.fill = {}
    def add(self, f, pre=None): self.ops.append((f, pre)); return len(self.ops) - 1
    def at(self, g, f): self.fill.setdefault(g, []).append(f)
    def emit(self):
        for g, (f, pre) in enumerate(self.ops):
            if pre: pre()
            f()
            for x in self.fill.pop(g, []): x()
        assert not self.fill, self.fill.keys()

def loop(a, w, st, P, diag=False):
    tag = f"{w}{'s' if st else 'f'}"
    WS = f"s[{sWS}:{sWS+3}]"
    smf = lambda d, A, B: a(f"v_smfmac_f32_16x16x64_bf16 {vr(d,4)}, {vr(A,4)}, {B}, v{vIDX}")
    mf = lambda d, A, B, c: a(f"v_mfma_f32_16x16x32_bf16 {vr(d,4)}, {vr(A,4)}, {vr(B,4)}, {c}")
    mf16 = lambda d, A, B, c: a(f"v_mfma_f32_16x16x16_bf16 {vr(d,4)}, {vr(A,2)}, {vr(B,2)}, {c}")
    I = lambda t: (lambda: a(t))
    Af = lambda s: vA + 4 * s
    q = lambda t: vACC + 8 * t
    k_ = lambda t: vACC + 8 * t + 4
    vacc = lambda t: (vVA0, vPM)[t]
    own, rest, seq = korder(w)
    ABL[0] = P.get("abl", ""); NP[0] = P.get("np", 1); NT[0] = P.get("nt", "nt")
    SL = P.get("stamps", ["start", "qkend", "xbar", "scores", "pv", "obar", "opend", "pub", "bdone"])
    def ST(n):
        if diag and n in SL:
            if P.get("trace"): a(f"s_memrealtime s[{sTS+2*SL.index(n)}:{sTS+2*SL.index(n)+1}]")
            else: stamp(a, SL.index(n), diag)
    vVM = vVA0 + 2
    def zero_acc():
        if w == 3:
            a(f"v_mov_b32 v124, -1\nv_lshrrev_b32 v125, 8, v{vL8}\nv_bfe_u32 v126, v{vL8}, 7, 1\nv_lshl_add_u32 v125, v125, 2, v126\nv_bfe_u32 v126, v{vL8}, 1, 6\nv_lshl_add_u32 v125, v125, 8, v126")
        for r in range(16): a(f"v_mov_b32 v{vACC+r}, 0")
        for t in range(2):
            for r in range(4): a(f"v_mov_b32 v{vacc(t)+r}, 0")
    def mwrite():
        for o in own:
            a.ds(f"ds_write_b128 v{vM16}, {vr(Af(o),4)} offset:{M_OFF + o*1024}", "mw")
    hook = P.get("hooks")
    if hook: hook["ready"](a, w, tag, True)
    vxl = [lambda: a.vm(f"buffer_load_dwordx4 {vr(vVX,4)}, v{vM16}, {WS}, s{sVx} offen {NT[0]}", "vx"),
           lambda: a.vm(f"buffer_load_dwordx4 {vr(vVX+4,4)}, v{vM16}, {WS}, s{sVx} offen offset:1024 {NT[0]}", "vx")]
    a(f"s_mov_b32 s{sKb}, {MISC+KX_OFF}\ns_lshl_b32 s{sKx}, s{sH}, 13\ns_add_u32 s{sKx}, s{sKx}, {KIMG - MISC}")
    kx_dma(a, w, 2 * w); kx_dma(a, w, 2 * w + 1)
    for r in range(8): a(f"v_mov_b32 v{Af(own[0])+r}, v{(16, 17, 18, 19, 12, 13, 14, 15)[r]}")
    a(f"s_mov_b32 s{sStep}, 0\ns_mov_b32 s{sKb}, {MISC+KX_OFF+8192}")
    seg_offsets(a, w, P)
    if P.get("kxA"): kx_dma(a, w, 2 * w); kx_dma(a, w, 2 * w + 1)
    a(f"s_mov_b32 s{sVmPrev}, s{sKm}\ns_sub_u32 s{sMclr}, s{sMclr}, {(w&1)*1024}")
    init_incr(a, w)
    a(f"v_mov_b32 v{vVX}, -1\nv_mov_b32 v{vVX+1}, -1\nv_mov_b32 v{vVX+2}, -1\nv_mov_b32 v{vVX+3}, -1")
    a.ds(f"ds_write_b128 v{vOr}, {vr(vVX,4)} offset:{w*512}")
    for i in range(NRING): ring_fill(a, w, i)
    zero_acc()
    a(f"s_waitcnt vmcnt(0)"); a.vmq = []
    a.wait_ds_all(True)
    LB = [Af(o) for o in own]
    loadB = lambda k: a(f"buffer_load_dwordx4 {vr(LB[k],4)}, v{vM16}, {WS}, s{sMpoll} offen offset:{k*1024} sc1")
    NS = P["depB"]
    def retryB():
        a.label(f"CH_RBRETRY_{tag}")
        loadB(0); loadB(1)
        if diag: a(f"s_add_u32 s{sTS+21}, s{sTS+21}, 1")
        a(f"s_add_u32 s{sCnt}, s{sCnt}, 1")
        a(f"s_cmp_gt_u32 s{sCnt}, {P['bound']}\ns_cbranch_scc1 CH_RBOK_{tag}\ns_branch CH_RB_{tag}")
    a(f"s_mov_b32 s{sCnt}, 0")
    for k in range(8): a(f"v_min_u32 v{LB[0]+k}, 0xfffffffe, v{LB[0]+k}")
    a.label(f"CH_RB_{tag}")
    ST("B_w0")
    a.dsq = []
    r_ = [LB[0] + k for k in range(8)]
    a(f"s_waitcnt vmcnt({2 * NS - 1})")
    a(f"v_max3_u32 v10, v{r_[0]}, v{r_[1]}, v{r_[2]}")
    a(f"v_max_u32 v10, v10, v{r_[3]}")
    a.ds(f"ds_write_b128 v{vM16}, {vr(LB[0],4)} offset:{M_OFF + own[0]*1024}", "mw")
    a(f"s_waitcnt vmcnt({2 * NS - 2})")
    a(f"v_max3_u32 v10, v10, v{r_[4]}, v{r_[5]}")
    a(f"v_max3_u32 v10, v10, v{r_[6]}, v{r_[7]}")
    a.ds(f"ds_write_b128 v{vM16}, {vr(LB[1],4)} offset:{M_OFF + own[1]*1024}", "mw")
    a(f"v_cmp_eq_u32 vcc, -1, v10")
    a(f"s_cbranch_vccnz CH_RBRETRY_{tag}" if not P.get("free") else "s_nop 0")
    a.label(f"CH_RBOK_{tag}")
    if diag:
        ST("bdone")
        a("s_waitcnt lgkmcnt(0)")
        a(f"s_cmp_eq_u32 s{sStep}, 0")
        a(f"s_cbranch_scc1 CH_NOACC_{tag}")
        for k in range(8):
            a(f"s_sub_u32 s{sT0}, s{sTS+2*k+2}, s{sTS+2*k}")
            a(f"s_add_u32 s{sTS+22+k}, s{sTS+22+k}, s{sT0}")
        if P.get("trace"):
            a(f"s_cmp_eq_u32 s{sStep}, {P['trace']}")
            for k, dst in enumerate((83, 84, 85, 86, 87, 88, 89, 100, 101)):
                a(f"s_cselect_b32 s{dst}, s{sTS+2*k}, s{dst}")
        a.label(f"CH_NOACC_{tag}")
        if w == 3 and P.get("steptime"):
            a(f"s_memrealtime s[{sT2}:{sT2+1}]\ns_lshl_b32 s{sT0}, s{sH}, 6\ns_add_u32 s{sT0}, s{sT0}, s{sStep}\ns_lshl_b32 s{sT0}, s{sT0}, 2\ns_add_u32 s{sT0}, s{sT0}, {DBG + 0x40000}\ns_waitcnt lgkmcnt(0)")
            a(f"v_mov_b32 v10, s{sT2}\nv_mov_b32 v11, 0\nbuffer_store_dword v10, v11, {WS}, s{sT0} offen")
            a(f"s_memtime s[{sT2}:{sT2+1}]\ns_add_u32 s{sT0}, s{sT0}, 0x10000\ns_waitcnt lgkmcnt(0)\nv_mov_b32 v10, s{sT2}\nbuffer_store_dword v10, v11, {WS}, s{sT0} offen")
    ST("start")
    a.vmq = ["stale"] * (2 * NS - 2) + (["dbg", "dbg"] if diag and w == 3 and P.get("steptime") else [])
    S = Stream()
    vs = [(t, s) for s in own + rest for t in range(2)]
    def vsm(S, pre=None):
        t, s = vs.pop(0)
        return S.add(lambda: smf(vacc(t), Af(s), ar(wv(t, s), 8)), pre)
    gq = {}
    aread = lambda s: a.ds(f"ds_read_b128 {vr(Af(s),4)}, v{vM16} offset:{M_OFF + s*1024}", ("A", s))
    NB = P["pre_bar"]
    def bar_and_reads():
        a.wait_ds("mw")
        ST("mbar0")
        a("s_barrier")
        ST("mbar1")
        for s in rest[:P["a_burst"]]: aread(s)
    xread = lambda sg: [a.ds(f"ds_read_b64_tr_b16 {vr(vXF+4*sg+2*p,2)}, v{vXr} offset:{(sg&1)*512 + p*256 + (sg>>1)*128}", ("X", sg)) for p in range(2)]
    for i in range(16):
        t, s = seq[i]
        def pre(i=i, s=s):
            a.wait_ds(("A", s))
            if i in (4, 7, 10, 13): ST(f"q{i}")
            a.wait_ds(("ring", i))
        if i == 4:
            for n in range(4): vsm(S)
        gq[i] = S.add(lambda t=t, s=s, i=i: smf(q(t), Af(s), vr(ringreg(i), 8)), pre)
        S.add(lambda t=t, s=s: smf(k_(t), Af(s), vr(wk(t, s), 8)))
    GB = P["pre_bar"] - 1
    S.at(GB, bar_and_reads)
    kxread = lambda kt, s: a.ds(f"ds_read_b128 {vr(kx(kt,s),4)}, v{vKx} offset:{(kt*4+s)*1024}", "kx")
    def half_fill(i, h):
        t, s = seq[i]
        r = ringreg(i) + 4 * h; imm = WQ_SLOT[s >> 1] * 8192 + ((s & 1) * 2 + t) * 2048 + h * 1024
        a.ds(f"ds_read_b128 {vr(r,4)}, v{vRing} offset:{imm}", ("ring", i))
    reads = [(GB + 1, lambda s=s: aread(s)) for s in rest[P["a_burst"]:]]
    ringr = [(gq[i - NRING], lambda i=i, h=h: half_fill(i, h)) for i in range(NRING, 16) for h in range(2)]
    npre = P["r_pre"]
    for n in range(npre): S.at(max(ringr[n][0], min(n + 1, GB)), ringr[n][1])
    if "r" not in ABL[0]: reads += ringr[npre:]
    if "k" not in ABL[0]: reads += [(gq[10 + n // 2], lambda n=n: kxread(n >> 2, n & 3)) for n in range(P["kx_in"])]
    g = GB + 1
    for (e, f) in reads:
        g = max(g, e)
        S.at(min(g, 35), f); g += 1
    def post(t, r0):
        return [I(f"v_add_f32 v{q(t)}, v{q(t)}, v{q(t)+2}"), I(f"v_add_f32 v{q(t)+1}, v{q(t)+1}, v{q(t)+3}"),
                I(f"v_add_f32 v{k_(t)}, v{k_(t)}, v{k_(t)+2}"), I(f"v_add_f32 v{k_(t)+1}, v{k_(t)+1}, v{k_(t)+3}"),
                I(f"v_cvt_pk_bf16_f32 v{r0}, v{q(t)}, v{q(t)+1}"), I(f"v_cvt_pk_bf16_f32 v{r0+1}, v{k_(t)}, v{k_(t)+1}"),
                lambda: a.ds(f"ds_write_b64 v{vXw}, {vr(r0,2)} offset:{t*128}", "xw")]
    p0 = post(0, vACC + 6)
    g0 = gq[10] + 2
    S.at(gq[10], lambda: a.nop(2)); S.at(gq[10] + 1, lambda: a.nop(2))
    g0 += P.get("p0off", 0)
    if "p" not in ABL[0] and not P.get("pboth"):
        for n in range(6): S.at(g0 + n, p0[n])
        if not P.get("xw2"): S.at(g0 + 5 + P.get("p0w", 0), p0[6])
    vONE = vACC
    if not P.get("one_late") and not P.get("pboth"):
        for n in range(4): S.at(g0 + 6 + n, I(f"v_mov_b32 v{vONE+n}, s{sONE}"))
    late = {}
    if P["jobs"] == "S" and "j" not in ABL[0]:
        jobs = [lambda: a.vm(f"buffer_store_dwordx4 {vr(vVX,4)}, v{vM16}, {WS}, s{sVmPrev} offen sc1", "exp"), vxl[0], vxl[1],
                lambda: kx_dma(a, w, 2 * w), lambda: kx_dma(a, w, 2 * w + 1)]
        if P.get("kxA"): jobs = jobs[:3] + [None] * 2
        if w == 3: jobs.append(lambda: a.vm(f"buffer_store_dword v124, v125, {WS}, s{sMclr} offen {st}", "clr"))
        if hook and w == P.get("fw", 0): jobs.append(lambda: hook["flag"](a))
        if hook and w == 2: S.at(P["j0"] + P["jw"] * w + P["jstr"] // 2, lambda: hook["look"](a))
        for n, jb in enumerate(jobs):
            if jb is None: continue
            g = P["j0"] + P["jstr"] * n + P["jw"] * w
            if n == 5: g = P["j0"] + P["jstr"] * (2 if w else 1) + P["jw"] * w + P["jstr"] // 2
            if n == 6: g = P["j0"] + P["jstr"] + P["jw"] * w + P["jstr"] // 2
            if g < 36: S.at(g, jb)
            else: late.setdefault(g - 36 + 2, []).append(jb)
    S.at(gq[12], I(f"s_add_u32 s{sMpoll}, s{sRM}, {MBUF - MISC + w*2048}"))
    if 35 not in S.fill: S.at(35, lambda: a.nop(1))
    S.emit()
    ST("qkend")
    T0, T1, Tm = vACC + 8, vACC + 12, vT
    def score(S, T, sg):
        A = {T0: kx(0, sg), T1: kx(1, sg), Tm: vXF + 4 * sg}[T]
        return S.add(lambda: mf(T, A, vXF + 4 * sg, "0" if sg == 0 else vr(T, 4)), lambda: a.wait_ds(("X", sg)))
    p1 = post(1, vACC + 4)
    S = Stream()
    if P.get("pboth"):
        a(f"v_pk_add_f32 {vr(q(0),2)}, {vr(q(0),2)}, {vr(q(0)+2,2)}\nv_pk_add_f32 {vr(k_(0),2)}, {vr(k_(0),2)}, {vr(k_(0)+2,2)}")
        p0[4](); p0[5]()
        if not P.get("xw2"): p0[6]()
        a.nop(2 if P.get("xw2") else 1)
    else: a.nop(6)
    a(f"v_pk_add_f32 {vr(q(1),2)}, {vr(q(1),2)}, {vr(q(1)+2,2)}\nv_pk_add_f32 {vr(k_(1),2)}, {vr(k_(1),2)}, {vr(k_(1)+2,2)}")
    for n in range(4, 6): p1[n]()
    if P.get("xw2"): a.ds(f"ds_write2_b64 v{vXw}, {vr(vACC+6,2)}, {vr(vACC+4,2)} offset0:0 offset1:16", "xw")
    else: p1[6]()
    for n in range(P["v_pre"]):
        g = vsm(S)
        if P["kx_in"] + n < 8: S.at(g, lambda n=n: kxread((P["kx_in"] + n) >> 2, (P["kx_in"] + n) & 3))
    assert P["kx_in"] + P["v_pre"] >= 8
    def xbar1():
        a.wait_ds("xw")
        a("s_barrier"); ST("xbar"); xread(0)
    g = vsm(S, xbar1)
    S.at(g, lambda: xread(1))
    S.at(vsm(S), lambda: xread(2)); S.at(vsm(S), lambda: xread(3))
    ones = list(range(4)) if P.get("one_late") or P.get("pboth") else []
    while vs:
        gl = vsm(S)
        if ones: S.at(gl, I(f"v_mov_b32 v{vONE+ones.pop(0)}, s{sONE}"))
    for g, l_ in late.items():
        for jb in l_: S.at(g, jb)
    S.at(gl, lambda: (a.wait_vm("stale"), a.wait_ds("kx"), ST("vdone")))
    m, t_ = vT, 11
    gs = [score(S, T, sg) for T in (T0, T1, Tm) for sg in range(4)]
    va = [I(f"v_add_f32 v{vacc(t)+k}, v{vacc(t)+k}, v{vacc(t)+k+2}") for t in range(2) for k in range(2)]
    for n in range(4): S.at(gs[n], lambda: a.nop(1))
    S.at(gs[4], va[0]); S.at(gs[4], va[1]); S.at(gs[5], va[2]); S.at(gs[5], va[3])
    S.at(gs[6], I(f"v_cvt_pk_bf16_f32 v{vVM}, v{vacc(0)}, v{vacc(0)+1}"))
    S.at(gs[7], I(f"v_cvt_pk_bf16_f32 v{vVM+1}, v{vacc(1)}, v{vacc(1)+1}"))
    S.at(gl, I(f"s_cmp_ge_u32 s{sStep}, 63\ns_cbranch_scc1 CH_DONE_{tag}"))
    S.at(gs[8], I(f"v_max3_f32 v10, v{T0}, v{T0+1}, v{T0+2}\nv_mov_b32 v{vPM+1}, 0\ns_nop 1"))
    S.at(gs[9], I(f"v_max_f32 v10, v10, v{T0+3}\nv_mov_b32 v{vPM+2}, 0\ns_nop 1"))
    S.at(gs[10], I(f"v_max3_f32 v10, v10, v{T1}, v{T1+1}"))
    S.at(gs[11], I(f"v_max3_f32 v10, v10, v{T1+2}, v{T1+3}"))
    S.emit()
    ST("scores")
    oacc = lambda d: vRING + 4 * d
    zq = list(range(16))
    z = lambda n: [a(f"v_mov_b32 v{vRING+zq.pop(0)}, 0") for _ in range(n)]
    z(7)
    a(f"v_max3_f32 v{m}, v10, v{Tm+2}, v{Tm+3}")
    a(f"v_mov_b32 v{t_}, v{m}")
    z(2)
    a(f"v_permlane32_swap_b32 v{m}, v{t_}")
    a(f"v_max_f32 v{m}, v{m}, v{t_}")
    a(f"v_mov_b32 v{t_}, v{m}")
    z(2)
    a(f"v_permlane16_swap_b32 v{m}, v{t_}")
    a(f"v_max_f32 v{m}, v{m}, v{t_}")
    a(f"v_mul_f32 v10, s{sC}, v{m}")
    pf = lambda r: a(f"v_pk_fma_f32 {vr(r,2)}, {vr(r,2)}, s[{sC}:{sC+1}], v[10:11] op_sel_hi:[1,1,0] neg_lo:[0,0,1] neg_hi:[0,0,1]")
    ex = lambda r: a(f"v_exp_f32 v{r}, v{r}")
    aX, aY, aL = vA, vA + 4, vA + 24
    vPX = vACC + 4
    pf(Tm + 2); pf(T0); ex(Tm + 2); ex(Tm + 3); pf(T0 + 2); pf(T1); pf(T1 + 2)
    a(f"v_cvt_pk_bf16_f32 v{vPM}, v{Tm+2}, v{Tm+3}")
    a(f"v_cvt_pk_bf16_f32 v{vPM+3}, v{Tm+2}, v{Tm+3}")
    ex(T0); ex(T0 + 1)
    mf16(aL, vONE, vPM, "0")
    ex(T0 + 2); ex(T0 + 3)
    mf16(aX, vVM, vPM, "0")
    ex(T1); ex(T1 + 1)
    mf16(aY, vVM, vPM + 2, "0")
    ex(T1 + 2); ex(T1 + 3)
    a(f"v_cvt_pk_bf16_f32 v{vPX}, v{T0}, v{T0+1}")
    a(f"v_cvt_pk_bf16_f32 v{vPX+1}, v{T0+2}, v{T0+3}")
    a(f"v_cvt_pk_bf16_f32 v{vPX+2}, v{T1}, v{T1+1}")
    a(f"v_cvt_pk_bf16_f32 v{vPX+3}, v{T1+2}, v{T1+3}")
    a.wait_vm("vx")
    a.nop(2 if "j" in ABL[0] else 1)
    mf(aL, vONE, vPX, vr(aL, 4)); z(2)
    mf(aX, vVX, vPX, vr(aX, 4)); z(2)
    mf(aY, vVX + 4, vPX, vr(aY, 4))
    ST("pv")
    z(1); a.nop(1)
    a(f"v_rcp_f32 v10, v{aL}")
    a.nop(3)
    vOW = vA + 8
    for r in range(4):
        if r == 2: a.nop(1)
        a(f"v_pk_mul_f32 {vr(aX+2*r,2)}, {vr(aX+2*r,2)}, v[10:11] op_sel_hi:[1,0]")
    for r in range(4):
        a(f"v_cvt_pk_bf16_f32 v{vOW+r}, v{aX+2*r}, v{aX+2*r+1}")
    if P.get("otag"): a(f"v_and_or_b32 v{vOW}, v{vOW}, -2, s{sTag}")
    a(f"s_not_b64 exec, s[{sB1M}:{sB1M+1}]")
    a.ds(f"ds_write_b128 v{vOr}, {vr(vOW,4)} offset:{w*512}", "ow")
    a("s_mov_b64 exec, -1")
    vOF = lambda s: vA + 12 + 4 * s
    a.nop(1)
    for r in range(4):
        a(f"v_mov_b32_dpp v{vOF(w)+r}, v{vOW+r} quad_perm:[0,1,0,1] row_mask:0xf bank_mask:0xf")
    a.nop(2)
    assert not zq
    S = Stream()
    orest = [(w + 1 + k) % 4 for k in range(3)]
    def obar():
        if not P.get("otag"): a.wait_ds_all()
        a("s_barrier")
        ST("obar")
        for s in orest: a.ds(f"ds_read_b128 {vr(vOF(s),4)}, v{vOr} offset:{s*512}", ("O", s))
        a(f"s_add_u32 s{sT0}, s{sPst}, 4096")
    XW = vXF + 4 * w
    sel = lambda d, f, dst=vVX: f"v_cndmask_b32 v{dst+d}, v{f}, v{XW+d}, s[{sB1M}:{sB1M+1}]"
    dpp = lambda d: f"v_mov_b32_dpp v{10+d}, v{vVM+d} quad_perm:[2,3,2,3] row_mask:0xf bank_mask:0xf"
    pack = [I(dpp(0) + "\n" + sel(0, vVM)), I(dpp(1) + "\n" + sel(1, vVM + 1)), I(sel(2, 10)), I(sel(3, 11))]
    for d in range(4):
        g = S.add(lambda d=d: smf(oacc(d), vOF(w), ar(wo(d, w), 8)), obar if d == P["o_pre"] else None)
        S.at(g, pack[d])
    if P["o_pre"] == 4: S.at(g, obar)
    vST = vRING + 16
    go = [S.add(lambda d=d, s=s: smf(oacc(d), vOF(s), ar(wo(d, s), 8)), lambda s=s: a.wait_ds(("O", s)))
          for (d, s) in ([(d, s) for s in orest for d in (0, 1)] + ([(d, s) for d in (2, 3) for s in orest] if P.get("dmaj") else [(d, s) for s in orest for d in (2, 3)]))]
    if P.get("otag"):
        f_ = [vOF(s_) for s_ in orest]
        ochk = [f"v_bitop3_b32 v10, v{f_[0]}, v{f_[1]}, s{sTag} bitop3:0x7e", f"v_bitop3_b32 v10, v10, v{f_[2]}, s{sTag} bitop3:0xf6",
                "v_and_b32 v10, 1, v10", "v_cmp_ne_u32 vcc, 0, v10"]
        S.ops[go[0]] = (S.ops[go[0]][0], lambda: (a.label(f"CH_OGO_{tag}"), a.wait_ds(("O", orest[0]))))
        S.at(go[2], I(ochk[0])); S.at(go[4], I(ochk[1])); S.at(go[5], I(ochk[2] + "\n" + ochk[3] + f"\ns_cbranch_vccnz CH_OREDO_{tag}"))
    cv = lambda d, k: I(f"v_cvt_pk_bf16_f32 v{vST+2*d+k}, v{oacc(d)+2*k}, v{oacc(d)+2*k+1}")
    tg = lambda dp: I(f"v_and_or_b32 v{vST+4*dp}, v{vST+4*dp}, -2, s{sTag}")
    pst = lambda dp: a.vm(f"buffer_store_dwordx4 {vr(vST+4*dp,4)}, v{vPst}, {WS}, s{sT0 if dp else sPst} offen {st}", "pst")
    if P.get("pst0", 0) == 0:
        S.at(go[6], lambda: a.nop(6)); S.at(go[6], cv(0, 0)); S.at(go[7], cv(0, 1)); S.at(go[8], tg(0)); S.at(go[9], cv(1, 0)); S.at(go[10], cv(1, 1))
        S.at(go[10], lambda: pst(0))
    elif P["pst0"] == 1:
        S.at(go[6], lambda: a.nop(6)); S.at(go[6], cv(0, 0)); S.at(go[6], cv(0, 1)); S.at(go[7], cv(1, 0)); S.at(go[7], cv(1, 1)); S.at(go[7], tg(0))
        S.at(go[7], lambda: pst(0))
    else:
        S.at(go[6], lambda: a.nop(6))
        for f in (cv(0, 0), cv(0, 1), cv(1, 0), cv(1, 1), tg(0), lambda: pst(0)): S.at(go[6], f)
    if P.get("dmaj"):
        S.at(go[9], lambda: a.nop(3)); S.at(go[10], lambda: a.nop(3)); S.at(go[10], cv(2, 0))
    S.emit()
    if P.get("dmaj"):
        cv(2, 1)(); tg(1)(); a.nop(6); cv(3, 0)(); cv(3, 1)(); pst(1)
    else:
        a.nop(7 if P.get('pst0', 0) else 6)
        cv(2, 0)(); cv(2, 1)(); cv(3, 0)(); cv(3, 1)(); tg(1)(); pst(1)
    ST("opend")
    LA = [Af(rest[k]) for k in range(4)]
    vRA, vRD = Af(rest[4]), Af(rest[5])
    def issueA():
        for k in range(4): a(f"buffer_load_dwordx4 {vr(LA[k],4)}, v{vM16}, {WS}, s{sPld} offen offset:{k*1024} sc1")
    def adv():
        a(f"s_mov_b32 s{sCnt}, 0\ns_mov_b32 s{sVmPrev}, s{sKm}")
        advance(a, w)
        if hook: hook["ready"](a, w, tag, False)
    def chores():
        zero_acc()
        a(f"v_xor_b32 v{vKx}, 8192, v{vKx}\ns_xor_b32 s{sKb}, s{sKb}, 8192")
    a(f"s_mov_b32 s{sCnt}, 0")
    if w < 2:
        a.ds(f"ds_read_b128 {vr(vRA,4)}, v{vM16} offset:{RA_OFF}", "ra")
        if w == 1: chores()
        a.nop(P["dlyA"][w])
        issueA()
        ST("issA")
        if w == 0: chores()
        for i in range(P["nrA"]): ring_fill(a, w, i)
        DA = P["depA"][w]
        for _ in range(DA - 1):
            a.nop(P["gapA"]); issueA()
        a.wait_ds("ra")
        a.label(f"CH_RA_{tag}")
        ny = 4 * (DA - 1)
        for k in range(4):
            a(f"s_waitcnt vmcnt({ny + 3 - k})")
            if k == 3: ST("A_w2")
            a(f"v_xor_b32 v10, s{sTag}, v{LA[0]}" if k == 0 else f"v_bitop3_b32 v10, v10, v{LA[k]}, s{sTag} bitop3:0xf6")
            mf(vRD, LA[k], vRA, "0" if k == 0 else vr(vRD, 4))
        a(f"v_and_b32 v10, 1, v10\nv_cmp_ne_u32 vcc, 0, v10")
        a(f"s_cbranch_vccnz CH_RARETRY_{tag}" if not P.get("free") else "s_nop 0")
        a.label(f"CH_RAOK_{tag}")
        ST("A_ok")
        a.nop(5)
        a(f"v_permlane32_swap_b32 v{vRD}, v{vRD+2}")
        a(f"v_permlane32_swap_b32 v{vRD+1}, v{vRD+3}")
        a(f"s_mov_b64 exec, s[{sLO8}:{sLO8+1}]")
        a(f"v_pk_add_f32 {vr(vRD,2)}, {vr(vRD,2)}, {vr(vRD+2,2)}")
        a(f"v_cvt_pk_bf16_f32 v{vRD}, v{vRD}, v{vRD+1}")
        a(f"buffer_store_dword v{vRD}, v{vMpub}, {WS}, s{sMpub} offen {st}")
        a("s_mov_b64 exec, -1")
        ST("pub")
        if w == 0:
            for i in range(P["nrA"], NRING): ring_fill(a, w, i)
    else:
        chores()
        if P.get("kxA"):
            adv()
            for i in range(4): kx_dma(a, w, 4 * (w - 2) + i)
        for i in range(NRING): ring_fill(a, w, i)
    if w == 0 or (w > 1 and not P.get("kxA")): adv()
    a("s_barrier")
    a.nop(P["dlyB"])
    loadB(0); loadB(1)
    ST("issB")
    if w == 1: adv()
    for _ in range(NS - 1):
        a.nop(P["gapB"] if w != 1 else max(0, P["gapB"] - P["w1c"])); loadB(0); loadB(1)
    if w == 1:
        for i in range(P["nrA"], NRING): ring_fill(a, w, i)
    a.wait_ds_all()
    a.vmq = []
    a(f"s_branch CH_RB_{tag}")
    if w < 2:
        a.label(f"CH_RARETRY_{tag}")
        issueA()
        a(f"s_add_u32 s{sCnt}, s{sCnt}, 1")
        if diag: a(f"s_add_u32 s{sTS+20}, s{sTS+20}, 1")
        a(f"s_cmp_gt_u32 s{sCnt}, {P['bound']}")
        a(f"s_cbranch_scc1 CH_RAOK_{tag}")
        a(f"s_branch CH_RA_{tag}")
    retryB()
    if P.get("otag"):
        a.label(f"CH_OREDO_{tag}")
        a(f"s_mov_b32 s{sCnt}, 0")
        a.label(f"CH_OREDO1_{tag}")
        a.nop(8)
        for s_ in orest: a(f"ds_read_b128 {vr(vOF(s_),4)}, v{vOr} offset:{s_*512}")
        for r in range(16): a(f"v_mov_b32 v{vRING+r}, 0")
        a(f"s_add_u32 s{sCnt}, s{sCnt}, 1\ns_waitcnt lgkmcnt(0)")
        for t_ in ochk: a(t_)
        a(f"s_cmp_gt_u32 s{sCnt}, {P['bound']}\ns_cbranch_scc1 CH_OREDO2_{tag}\ns_cbranch_vccnz CH_OREDO1_{tag}")
        a(f"s_branch CH_OREDO3_{tag}")
        a.label(f"CH_OREDO2_{tag}")
        for s_ in orest: a(f"v_and_or_b32 v{vOF(s_)}, v{vOF(s_)}, -2, s{sTag}")
        a.nop(2)
        a.label(f"CH_OREDO3_{tag}")
        if diag: a(f"s_add_u32 s{sTS+21}, s{sTS+21}, 0x10000")
        for d in range(4): smf(oacc(d), vOF(w), ar(wo(d, w), 8))
        a(f"s_branch CH_OGO_{tag}")
    a.label(f"CH_DONE_{tag}")
    a.wait_ds_all(True)
    a.nop(5)
    for f in va: f()
    a(f"v_cvt_pk_bf16_f32 v{vVM}, v{vacc(0)}, v{vacc(0)+1}\nv_cvt_pk_bf16_f32 v{vVM+1}, v{vacc(1)}, v{vacc(1)+1}")
    a.nop(2)
    a(dpp(0)); a(dpp(1))
    for d, f in enumerate((vVM, vVM + 1, 10, 11)): a(sel(d, f, T0))
    a(f"buffer_store_dwordx4 {vr(T0,4)}, v{vM16}, {WS}, s{sKm} offen sc1")
    a.dsq = []; a.vmq = []
    if hook: hook["done"](a, w)
```

```python
from asm import *
from layout import *
import math, struct

sWS = 8
WS = f"s[{sWS}:{sWS+3}]"
DB = "s[4:7]"
sW = 17
sRole = 16
sDead = 37
sA, sB, sC_, sD = 32, 33, 34, 35
POLL_BOUND = 1 << 16
SLEEP = [2]
QLATE = [0]
WVERD = [0]
EARLY = [1]
OUTF = ['']
HOLD = [0]
PREFETCH = [(48, 50, 58, 52)]

def fbits(x): return struct.unpack("<I", struct.pack("<f", x))[0]

def srd(a, d, ka, size):
    a(f"s_load_dwordx2 s[{d}:{d+1}], s[0:1], {KA[ka]}\ns_mov_b32 s{d+2}, {size}\ns_mov_b32 s{d+3}, 0x20000")

def poll_ge(a, load, vals, target, name, sleep=1, vtmp=None):
    L = a.newlabel("POLL_" + name); E = L + "_E"
    a(f"s_mov_b32 s{sD}, 0")
    a.label(L)
    a(f"s_cmp_lg_u32 s{sDead}, 0\ns_cbranch_scc1 {E}")
    a(load)
    a(f"s_add_u32 s{sD}, s{sD}, 1")
    a(f"s_cmp_gt_u32 s{sD}, {POLL_BOUND}\ns_cselect_b32 s{sDead}, 1, 0")
    a("s_waitcnt vmcnt(0)")
    v = vals[0]
    for k in range(1, len(vals)):
        a(f"v_min_u32 v{vtmp}, v{v}, v{vals[k]}"); v = vtmp
    a(f"v_cmp_gt_u32 vcc, {target}, v{v}")
    a(f"s_cbranch_vccz {E}")
    if sleep: a(f"s_sleep {sleep}")
    a(f"s_branch {L}")
    a.label(E)
    a.vmq = []

def flag_store(a, soff, sval, v0=2):
    a(f"v_mov_b32 v{v0}, {sval}\ns_mov_b64 exec, 1")
    a.vm(f"buffer_store_dword v{v0}, off, {WS}, {soff} sc1", "flag")
    a("s_mov_b64 exec, -1")

def layernorm(a, sTask, diag=False, local=None, after_loads=None, after_sum=None):
    srd(a, 60, "x", 2048 * 1024)
    a(f"""
    v_and_b32 v8, 7, v0
    v_lshrrev_b32 v9, 3, v0
    v_lshlrev_b32 v14, 10, v8
    v_lshl_add_u32 v14, v9, 4, v14
    s_lshl_b32 s27, s{sTask}, 13
    s_waitcnt lgkmcnt(0)
    """)
    R, F = 16, 48
    for s in range(8):
        a.vm(f"buffer_load_dwordx4 {vr(R+4*s,4)}, v14, s[60:63], s27 offen offset:{s*128}", ("ln", s))
    a(f"""
    v_lshrrev_b32 v15, 2, v9
    v_lshlrev_b32 v15, 11, v15
    v_and_b32 v9, 3, v9
    v_lshl_add_u32 v15, v9, 8, v15
    v_lshl_add_u32 v15, v8, 4, v15
    s_lshr_b32 s27, s{sTask}, 2
    s_lshl_b32 s27, s27, 15
    s_bfe_u32 s28, s{sTask}, 0x10001
    s_lshl_b32 s28, s28, 10
    s_add_u32 s27, s27, s28
    s_and_b32 s28, s{sTask}, 1
    s_lshl_b32 s28, s28, 7
    s_add_u32 s27, s27, s28
    s_add_u32 s27, s27, {XN}
    v_mov_b32 v10, 0
    v_mov_b32 v11, 0
    """)
    if after_loads: after_loads()
    for s in range(8):
        a.wait_vm(("ln", s))
        for k in range(4):
            r = R + 4 * s + k; f = F + 8 * s + 2 * k
            a(f"v_lshlrev_b32 v{f}, 16, v{r}\nv_and_b32 v{f+1}, 0xffff0000, v{r}")
            a(f"v_pk_add_f32 v[10:11], v[10:11], {vr(f,2)}")
    if diag: a("s_memrealtime s[72:73]")
    if after_sum: after_sum()
    def allred():
        a("v_add_f32 v10, v10, v11\ns_nop 1\nv_add_f32_dpp v10, v10, v10 row_ror:8 row_mask:0xf bank_mask:0xf")
        for op in ("v_permlane32_swap_b32", "v_permlane16_swap_b32"):
            a(f"v_mov_b32 v11, v10\ns_nop 1\n{op} v10, v11\nv_add_f32 v10, v10, v11")
    allred()
    a(f"v_mul_f32 v12, {fbits(1/512):#x}, v10\nv_mov_b32 v10, 0\nv_mov_b32 v11, 0")
    for k in range(32):
        f = F + 2 * k
        a(f"v_pk_add_f32 {vr(f,2)}, {vr(f,2)}, v[12:13] op_sel_hi:[1,0] neg_lo:[0,1] neg_hi:[0,1]")
        a(f"v_pk_fma_f32 v[10:11], {vr(f,2)}, {vr(f,2)}, v[10:11]")
    allred()
    a(f"v_mov_b32 v12, {fbits(1e-5):#x}\nv_fmac_f32 v12, {fbits(1/512):#x}, v10\nv_rsq_f32 v12, v12\ns_nop 0")
    for s in range(8):
        for k in range(4):
            f = F + 8 * s + 2 * k
            a(f"v_pk_mul_f32 {vr(f,2)}, {vr(f,2)}, v[12:13] op_sel_hi:[1,0]")
            a(f"v_cvt_pk_bf16_f32 v{R+4*s+k}, v{f}, v{f+1}")
        if local is None:
            a.vm(f"buffer_store_dwordx4 {vr(R+4*s,4)}, v15, {WS}, s27 offen sc1", "lnst")
            a(f"s_add_u32 s27, s27, 4096")
        else:
            if s == 0: a(f"s_and_b32 s27, s27, 0x7fff\ns_add_u32 s27, s27, {local}\nv_add_u32 v15, s27, v15")
            a.ds(f"ds_write_b128 v15, {vr(R+4*s,4)} offset:{s*4096}")
    if diag: a("s_memrealtime s[74:75]")

G1_XBUF = 98304
def gemm1(a, wait_init, verdict, sInit, diag=False):
    sSl, sJ, sKind, sRow, sOut, sN, sXs, sFl = 18, 19, 20, 21, 22, 23, 24, 25
    sSh, sXstep, sOstep, sEnd = 44, 45, 46, 47
    a(f"""
    s_lshr_b32 s{sSl}, s{sRole}, 2
    s_and_b32 s{sJ}, s{sRole}, 3
    s_mov_b32 s{sSh}, 0
    s_cmp_lt_u32 s{sRole}, 128
    s_cbranch_scc1 G1_MAP
    s_add_u32 s{sSl}, s{sSl}, 8
    s_cmp_ge_u32 s{sRole}, 160
    s_cbranch_scc1 G1_MAP
    s_lshr_b32 s{sSl}, s{sRole}, 1
    s_sub_u32 s{sSl}, s{sSl}, 32
    s_and_b32 s{sJ}, s{sRole}, 1
    s_mov_b32 s{sSh}, 1
    G1_MAP:
    s_lshr_b32 s{sXstep}, {4*32768}, s{sSh}
    s_sub_u32 s{sXstep}, s{sXstep}, {7*1024}
    s_lshr_b32 s{sOstep}, {4*32*8192}, s{sSh}
    s_lshl_b32 s{sEnd}, 16, s{sSh}
    s_lshr_b32 s{sKind}, s{sSl}, 4            ; 0 K, 1 V, 2 Q, 3 FFN1
    s_load_dwordx2 s[48:49], s[0:1], {KA['Wk']}
    s_load_dwordx2 s[50:51], s[0:1], {KA['Wv']}
    s_load_dwordx2 s[52:53], s[0:1], {KA['Wq']}
    s_load_dwordx2 s[54:55], s[0:1], {KA['w1']}
    s_load_dwordx2 s[56:57], s[0:1], {KA['b1']}
    s_load_dwordx2 s[58:59], s[0:1], {KA['Wo']}
    s_waitcnt lgkmcnt(0)
    s_mov_b32 s12, s48
    s_mov_b32 s13, s49
    s_mov_b32 s14, {512*4096*2}
    s_mov_b32 s{sRow}, 8192
    s_cmp_eq_u32 s{sKind}, 1
    s_cselect_b32 s12, s50, s12
    s_cselect_b32 s13, s51, s13
    s_cmp_eq_u32 s{sKind}, 2
    s_cselect_b32 s12, s52, s12
    s_cselect_b32 s13, s53, s13
    s_cmp_eq_u32 s{sKind}, 3
    s_cselect_b32 s12, s54, s12
    s_cselect_b32 s13, s55, s13
    s_cselect_b32 s14, {512*1792*2}, s14
    s_cselect_b32 s{sRow}, 3584, s{sRow}
    s_mov_b32 s15, 0x20000
    v_and_b32 v240, 15, v0
    v_lshrrev_b32 v241, 4, v0
    v_and_b32 v242, 3, v0
    v_bfe_u32 v243, v0, 2, 2
    v_lshrrev_b32 v4, 3, v0
    v_mul_lo_u32 v4, v4, s{sRow}
    v_and_b32 v5, 7, v0
    v_bfe_u32 v6, v0, 4, 1
    v_lshlrev_b32 v6, 1, v6
    v_xor_b32 v5, v5, v6
    v_xor_b32 v6, 4, v5
    s_and_b32 s{sA}, s{sSl}, 15
    s_lshl_b32 s{sA}, s{sA}, 9
    s_lshl_b32 s{sB}, s{sW}, 7
    s_add_u32 s{sA}, s{sA}, s{sB}
    v_add_u32 v4, s{sA}, v4
    v_lshl_add_u32 v244, v5, 4, v4
    v_lshl_add_u32 v245, v6, 4, v4
    v_lshl_add_u32 v4, v241, 3, v243
    v_lshlrev_b32 v4, 7, v4
    v_lshl_add_u32 v4, v242, 3, v4
    s_mul_i32 s{sA}, s{sW}, 24576
    v_add_u32 v4, s{sA}, v4
    v_lshrrev_b32 v5, 1, v243
    v_and_b32 v6, 1, v241
    v_lshl_add_u32 v5, v6, 1, v5
    """)
    for f in range(4):
        a(f"v_xor_b32 v6, {f}, v5\nv_lshl_add_u32 v{246+f}, v6, 5, v4")
    a(f"s_lshl_b32 s{sC_}, s{sRow}, 3\ns_mov_b32 s{sN}, 0")
    def issue(c):
        for i in range(8):
            a(f"s_add_u32 m0, s{sA}, {(c%3)*8192 + i*1024}\ns_nop 0")
            a.vm(f"buffer_load_dwordx4 v{244 + (i&1)}, s[12:15], s{sN} offen lds", ("w", c))
            a(f"s_add_u32 s{sN}, s{sN}, s{sC_}")
    def prefetch():
        if not PREFETCH[0]: return
        a(f"s_lshl_b32 s{sB}, s{sRole}, 2\ns_add_u32 s{sB}, s{sB}, s{sW}\ns_lshl_b32 s{sB}, s{sB}, 12\ns_add_u32 s{sD}, s{sB}, {896*4096}")
        a("v_lshlrev_b32 v13, 6, v0\ns_mov_b32 s42, 0x400000\ns_mov_b32 s43, 0x20000")
        for p in PREFETCH[0]:
            a(f"s_mov_b32 s40, s{p}\ns_mov_b32 s41, s{p+1}")
            a.vm(f"buffer_load_dword v252, v13, s[40:43], s{sB} offen", "pf")
            a.vm(f"buffer_load_dword v252, v13, s[40:43], s{sD} offen", "pf")
    sTask, sHave = 26, 31
    a(f"""
    s_mov_b32 s{sHave}, 0
    s_cmp_lt_u32 s{sRole}, 192
    s_cbranch_scc1 G1_LN0
    s_mul_i32 s{sTask}, s{sRole}, 3
    s_add_u32 s{sTask}, s{sTask}, s{sW}
    s_sub_u32 s{sTask}, s{sTask}, {192*3 - 160}
    s_cmp_lt_u32 s{sW}, 3
    s_cbranch_scc1 G1_LN
    s_branch G1_NOLN
    G1_LN0:
    s_and_b32 s{sB}, s{sRole}, 3
    s_cmp_lg_u32 s{sW}, s{sB}
    s_cbranch_scc1 G1_NOLN
    s_mov_b32 s{sTask}, s{sRole}
    s_cmp_lt_u32 s{sRole}, 144
    s_cbranch_scc1 G1_LN
    s_sub_u32 s{sTask}, s{sRole}, 16
    s_and_b32 s{sB}, s{sRole}, 0xf0
    s_cmp_lg_u32 s{sB}, 160
    s_cbranch_scc1 G1_NOLN
    G1_LN:
    """)
    layernorm(a, sTask, diag, None, prefetch)
    a(f"s_mov_b32 s{sHave}, 1\ns_branch G1_LN1")
    a.label("G1_NOLN")
    prefetch()
    a.label("G1_LN1")
    def peek():
        a(f"v_mov_b32 v2, {D_INIT}")
        a.vm(f"buffer_load_dword v251, v2, {DB}, 0 offen sc1", "peek")
    def report():
        L = a.newlabel("LNREP")
        a(f"s_cmp_eq_u32 s{sHave}, 0\ns_cbranch_scc1 {L}")
        a(f"v_readfirstlane_b32 s{sB}, v251\ns_nop 3\ns_cmp_ge_u32 s{sB}, {2*NINIT}\ns_cselect_b32 s{sInit}, 1, s{sInit}")
        keep = list(a.vmq)
        wait_init(a, 2)
        if diag: a("s_memrealtime s[76:77]")
        a(f"s_lshl_b32 s{sB}, s{sTask}, 7\ns_add_u32 s{sB}, s{sB}, {LNF}")
        flag_store(a, f"s{sB}", 1, 2)
        a.vmq = keep
        a.label(L)
    a(f"s_cmp_ge_u32 s{sRole}, 188\ns_cbranch_scc1 G1_IDLE")
    if QLATE[0]:
        a(f"s_cmp_lt_u32 s{sKind}, 2\ns_cbranch_scc1 G1_GO")
        peek(); a.wait_vm_all(True); report(); a(f"s_mov_b32 s{sHave}, 0")
        verdict(a)
        wait_init(a, 2)
        a(f"s_and_b32 s{sB}, s{sRole}, 63\ns_lshl_b32 s{sB}, s{sB}, 7\ns_add_u32 s{sB}, s{sB}, {G1F}")
        poll_ge(a, f"buffer_load_dword v2, off, {WS}, s{sB} sc1", [2], QLATE[0], "QL", sleep=16)
        a.label("G1_GO")
    a.vmq = []
    a(f"s_lshl_b32 s30, s{sJ}, 2\ns_add_u32 s30, s30, s{sW}")
    layernorm(a, 30, False, G1_XBUF, lambda: [peek()] + [issue(c) for c in range(3)], lambda: (a.wait_vm("peek"), report()))
    W = lambda f, s: 4 * (f * 16 + s)
    for c in range(8):
        a.wait_vm(("w", c))
        if c == WVERD[0]: verdict(a)
        for s_ in range(2):
            for f in range(4):
                for p in range(2):
                    a.ds(f"ds_read_b64_tr_b16 {ar(W(f, 2*c+s_) + 2*p, 2)}, v{246+f} offset:{(c%3)*8192 + (32*s_+4*p)*128}")
        a.wait_ds_all()
        if c + 3 < 8: issue(c + 3)
    if diag: a("s_memrealtime s[64:65]")
    vBias = 112
    for r in range(16): a(f"v_mov_b32 v{vBias+r}, 0")
    a(f"s_cmp_lg_u32 s{sKind}, 3\ns_cbranch_scc1 G1_NOBIAS")
    a(f"""
    s_mov_b32 s12, s56
    s_mov_b32 s13, s57
    s_mov_b32 s14, 3584
    s_and_b32 s{sA}, s{sSl}, 15
    s_lshl_b32 s{sA}, s{sA}, 9
    s_lshl_b32 s{sB}, s{sW}, 7
    s_add_u32 s{sA}, s{sA}, s{sB}
    v_lshlrev_b32 v4, 3, v241
    """)
    for f in range(4): a(f"buffer_load_dwordx2 {vr(8+2*f,2)}, v4, s[12:15], s{sA} offen offset:{f*32}")
    a("s_waitcnt vmcnt(0)")
    for f in range(4):
        for k in range(2):
            a(f"v_lshlrev_b32 v{vBias+4*f+2*k}, 16, v{8+2*f+k}\nv_and_b32 v{vBias+4*f+2*k+1}, 0xffff0000, v{8+2*f+k}")
    a.label("G1_NOBIAS")
    if diag: a("s_memtime s[96:97]")
    a(f"""
    v_lshlrev_b32 v4, 4, v0
    v_add_u32 v5, {G1_XBUF}, v4
    s_lshl_b32 s{sXs}, s{sJ}, 15
    s_lshl_b32 s{sA}, s{sW}, 13
    s_add_u32 s{sXs}, s{sXs}, s{sA}
    s_add_u32 s{sXs}, s{sXs}, {XN}
    s_lshl_b32 s{sFl}, s{sRole}, 7
    s_add_u32 s{sFl}, s{sFl}, {G1F}
    s_and_b32 s{sA}, s{sSl}, 15
    s_lshl_b32 s{sA}, s{sA}, 1
    s_lshr_b32 s{sB}, s{sW}, 1
    s_add_u32 s{sA}, s{sA}, s{sB}             ; head
    s_lshl_b32 s{sB}, s{sJ}, 5
    s_add_u32 s{sA}, s{sA}, s{sB}
    s_lshl_b32 s{sOut}, s{sA}, 13
    s_and_b32 s{sB}, s{sW}, 1
    """)
    sLb = 26
    a(f"s_lshl_b32 s{sLb}, s{sW}, 13")
    def xdma1(par, i):
        a(f"s_add_u32 m0, s{sLb}, {G1_XBUF + par*32768 + i*1024}")
        a(f"s_add_u32 s{sXs}, s{sXs}, {1024 if i else 's%d' % sXstep}")
        a.vm(f"buffer_load_dwordx4 v4, {WS}, s{sXs} offen lds", "x")
    a(f"s_add_u32 s{sXs}, s{sXs}, {7*1024}")
    a(f"s_cmp_eq_u32 s{sKind}, 1\ns_cbranch_scc1 G1_V\ns_cmp_eq_u32 s{sKind}, 3\ns_cbranch_scc1 G1_H")
    for kind in ("QK", "V", "H"):
        a.label(f"G1_{kind}")
        if kind == "QK":
            a(f"s_lshl_b32 s{sB}, s{sB}, 10\ns_add_u32 s{sOut}, s{sOut}, s{sB}")
            a(f"s_mov_b32 s{sB}, {QIMG}\ns_cmp_eq_u32 s{sKind}, 0\ns_cselect_b32 s{sB}, {KIMG}, s{sB}\ns_add_u32 s{sOut}, s{sOut}, s{sB}")
            step = f"s{sOstep}"
        elif kind == "V":
            a(f"s_lshl_b32 s{sB}, s{sB}, 12\ns_add_u32 s{sOut}, s{sOut}, s{sB}\ns_add_u32 s{sOut}, s{sOut}, {VIMG}")
            step = 4 * 32 * 8192
        else:
            a(f"s_and_b32 s{sA}, s{sSl}, 15\ns_lshl_b32 s{sA}, s{sA}, 2\ns_add_u32 s{sA}, s{sA}, s{sW}\ns_lshl_b32 s{sA}, s{sA}, 11")
            a(f"s_mul_i32 s{sB}, s{sJ}, {2*56*1024}\ns_add_u32 s{sOut}, s{sA}, s{sB}\ns_add_u32 s{sOut}, s{sOut}, {HIMG}")
            step = 4 * 2 * 56 * 1024
        acc = lambda par, mt, f: 128 + par * 32 + (mt * 4 + f) * 4
        vX = lambda s, mt: 16 + ((s % 3) * 2 + mt) * 4
        vS = 48
        def epilogue(par):
            jobs = []
            for n in range(4):
                if kind == "QK": mt, t = n >> 1, n & 1; srcs = (acc(par, mt, t), acc(par, mt, t + 2)); off = mt * 4096 + t * 2048
                elif kind == "V": srcs = (acc(par, 0, n), acc(par, 1, n)); off = n * 1024
                else: mt, t = n >> 1, n & 1; srcs = (acc(par, mt, 2 * t), acc(par, mt, 2 * t + 1)); off = mt * 56 * 1024 + t * 1024
                d = vS + 4 * n
                for h_ in range(2):
                    for k in range(2):
                        r = srcs[h_] + 2 * k
                        if kind == "H":
                            jobs.append(lambda r=r: a(f"v_max_f32 v{r}, 0, v{r}\nv_max_f32 v{r+1}, 0, v{r+1}"))
                            jobs.append(lambda r=r: a(f"v_mul_f32 v{r}, v{r}, v{r}\nv_mul_f32 v{r+1}, v{r+1}, v{r+1}"))
                            jobs.append(lambda r=r, d=d, h_=h_, k=k: a(f"v_cvt_pk_bf16_f32 v{d+2*h_+k}, v{r}, v{r+1}"))
                        else:
                            jobs.append(lambda r=r, d=d, h_=h_, k=k: a(f"v_cvt_pk_bf16_f32 v{d+2*h_+k}, v{r}, v{r+1}"))
                def st(d=d, off=off):
                    a(f"s_add_u32 s{sA}, s{sOut}, {off}")
                    a.vm(f"buffer_store_dwordx4 {vr(d,4)}, v4, {WS}, s{sA} offen sc1", "st")
                jobs.append(st)
            jobs.append(lambda: a(f"s_add_u32 s{sOut}, s{sOut}, {step}"))
            return jobs
        def publish(val):
            L = a.newlabel("G1F")
            a(f"s_cmp_lg_u32 s{sW}, 0\ns_cbranch_scc1 {L}")
            wait_init(a, 8)
            if val is None: a(f"s_sub_u32 s{sA}, s{sN}, 2\ns_max_u32 s{sA}, s{sA}, 1\ns_lshr_b32 s{sA}, s{sA}, s{sSh}"); val = f"s{sA}"
            flag_store(a, f"s{sFl}", val, 8)
            a.label(L)
        def segment(par, n):
            a("s_waitcnt vmcnt(4)" if n == 2 else "s_waitcnt vmcnt(0) lgkmcnt(0)"); a.vmq = []; a.dsq = []
            a("s_barrier")
            rd = lambda s: [a.ds(f"ds_read_b128 {vr(vX(s,mt),4)}, v5 offset:{par*32768 + s*2048 + mt*1024}", ("x", s)) for mt in range(2)]
            rd(0); rd(1)
            if n == 1: publish(1)
            if n == 2: publish(None)
            jobs = epilogue(1 - par) if n == 2 else []
            for s in range(16):
                if s + 2 < 16: rd(s + 2)
                a.wait_ds(("x", s))
                for mt in range(2):
                    for f in range(4):
                        d = acc(par, mt, f)
                        c = (vr(vBias + 4 * f, 4) if kind == "H" else "0") if s == 0 else vr(d, 4)
                        if kind == "V": a(f"v_mfma_f32_16x16x32_bf16 {vr(d,4)}, {vr(vX(s,mt),4)}, {ar(W(f,s),4)}, {c}")
                        else: a(f"v_mfma_f32_16x16x32_bf16 {vr(d,4)}, {ar(W(f,s),4)}, {vr(vX(s,mt),4)}, {c}")
                        if n and s < 8 and mt == 0 and f == 3: xdma1(1 - par, s)
                        elif jobs and s >= 8: jobs.pop(0)()
            assert not jobs
            if n == 1: a("s_waitcnt vmcnt(0)")
            a(f"s_add_u32 s{sN}, s{sN}, 1")
        a(f"s_mov_b32 s{sN}, 0")
        segment(0, 0)
        a.nop(8)
        for j in epilogue(0): j()
        if HOLD[0]:
            a("s_waitcnt vmcnt(0)\ns_barrier")
            publish(1)
        L = a.newlabel("G1LN")
        a(f"s_cmp_lg_u32 s{sW}, 0\ns_cbranch_scc1 {L}")
        wait_init(a, 8)
        a(f"v_lshrrev_b32 v8, 2, v0\ns_sub_u32 s{sA}, 11, s{sSh}\nv_lshlrev_b32 v8, s{sA}, v8\nv_and_b32 v9, 3, v0\nv_lshl_add_u32 v8, v9, 7, v8\ns_lshl_b32 s{sA}, s{sJ}, 9\ns_add_u32 s{sA}, s{sA}, {LNF}")
        poll_ge(a, f"buffer_load_dword v9, v8, {WS}, s{sA} offen sc1", [9], 1, "LN", sleep=2)
        if kind == "QK":
            a(f"s_cmp_eq_u32 s{sSh}, 0\ns_cbranch_scc1 {L}\ns_add_u32 s{sA}, s{sA}, {128*128}")
            poll_ge(a, f"buffer_load_dword v9, v8, {WS}, s{sA} offen sc1", [9], 1, "LN", sleep=2)
        if HOLD[0]:
            wait_init(a, 8)
            a(f"s_and_b32 s{sA}, s{sRole}, 31\ns_lshl_b32 s{sA}, s{sA}, 7\ns_add_u32 s{sA}, s{sA}, {CHF + 64}\nv_mov_b32 v8, 0")
            if HOLD[0] == 1:
                publish_now = a.newlabel("PUB")
            poll_ge(a, f"buffer_load_dword v9, v8, {WS}, s{sA} offen sc1", [9], 1, "STG", sleep=8)
        a.label(L)
        a("s_barrier")
        if diag: a("s_memrealtime s[66:67]")
        for i in range(8): xdma1(1, i)
        segment(1, 1)
        a.label(f"G1_LOOP_{kind}")
        segment(0, 2)
        segment(1, 2)
        a(f"s_cmp_lt_u32 s{sN}, s{sEnd}\ns_cbranch_scc1 G1_LOOP_{kind}")
        a.label(f"G1_END_{kind}")
        a.nop(8)
        for j in epilogue(1): j()
        a.wait_vm_all(True)
        a("s_barrier")
        L = a.newlabel("G1F")
        a(f"s_cmp_lg_u32 s{sW}, 0\ns_cbranch_scc1 {L}")
        flag_store(a, f"s{sFl}", 16, 8)
        a.label(L)
        a.vmq = []; a.dsq = []
        a("s_branch G1_DONE")
    a.label("G1_IDLE")
    peek()
    a.wait_vm_all(True)
    report()
    verdict(a)
    a.label("G1_DONE")

def attention(a, diag=False):
    sSeg, sQ, sKm, sVm, sO, sCh, sAt, sCnt = 18, 19, 20, 21, 22, 23, 24, 25
    sCC = 30
    sMask = 40
    c = (128 ** -0.5) * math.log2(math.e)
    a(f"""
    s_mov_b32 s{sCC}, {fbits(c):#x}
    s_mov_b32 s{sCC+1}, {fbits(c):#x}
    v_lshlrev_b32 v4, 4, v0
    v_and_b32 v5, 0x3d, v0
    v_lshlrev_b32 v5, 4, v5
    v_bfe_u32 v6, v0, 1, 1
    v_lshl_add_u32 v5, v6, 3, v5
    v_and_b32 v6, 15, v0
    v_lshrrev_b32 v7, 4, v0
    v_lshlrev_b32 v7, 2, v7
    """)
    for r in range(4):
        a(f"v_add_u32 v8, {r}, v7\nv_cmp_le_u32 s[{sMask+2*r}:{sMask+2*r+1}], v8, v6")
    a(f"""
    s_lshr_b32 s{sA}, s{sRole}, 1
    s_lshl_b32 s{sB}, s{sA}, 1
    s_and_b32 s{sC_}, s{sW}, 1
    s_add_u32 s{sB}, s{sB}, s{sC_}
    s_add_u32 s{sB}, s{sB}, 128
    s_lshl_b32 s{sA}, s{sA}, 2
    s_add_u32 s{sA}, s{sA}, s{sW}
    v_and_b32 v8, 1, v0
    v_lshl_add_u32 v8, v8, 6, s{sA}
    v_mov_b32 v9, s{sB}
    v_cmp_gt_u32 vcc, 2, v0
    s_mov_b32 s{sA}, {G1F}
    s_nop 0
    v_cndmask_b32 v8, v9, v8, vcc
    v_lshlrev_b32 v8, 7, v8
    """)
    poll_ge(a, f"buffer_load_dword v9, v8, {WS}, s{sA} offen sc1", [9], 16, "QKV")
    a(f"""
    s_mov_b32 s{sSeg}, s{sW}
    s_lshl_b32 s{sA}, s{sW}, 5
    s_add_u32 s{sA}, s{sA}, s{sRole}
    s_lshl_b32 s{sQ}, s{sA}, 13
    s_lshl_b32 s{sKm}, s{sA}, 12
    s_add_u32 s{sKm}, s{sKm}, {KMEM}
    s_lshl_b32 s{sVm}, s{sA}, 11
    s_add_u32 s{sVm}, s{sVm}, {VMEM}
    s_lshl_b32 s{sO}, s{sW}, 18
    s_lshl_b32 s{sB}, s{sRole}, 12
    s_add_u32 s{sO}, s{sO}, s{sB}
    s_add_u32 s{sO}, s{sO}, {OIMG}
    s_lshl_b32 s{sCh}, s{sRole}, 7
    s_add_u32 s{sCh}, s{sCh}, {CHF}
    s_lshl_b32 s{sAt}, s{sA}, 7
    s_add_u32 s{sAt}, s{sAt}, {ATF}
    s_mov_b32 s{sCnt}, 0
    v_mov_b32 v10, 0
    """)
    vQ, vK, vV, vKM, vVM = 16, 48, 80, 112, 128
    ONE = 136
    S = lambda qt, kt: 140 + (qt * 3 + kt) * 4
    PX = lambda qt: 164 + qt * 4
    PM = lambda qt: 172 + qt * 4
    L_ = lambda qt: 180 + qt * 4
    O = lambda qt, ft: 188 + (qt * 8 + ft) * 4
    for r in range(4): a(f"v_mov_b32 v{ONE+r}, 0x3f803f80")
    for qt in range(2): a(f"v_mov_b32 v{PM(qt)+1}, 0\nv_mov_b32 v{PM(qt)+2}, 0")
    mf = lambda d, A, B, c_: a(f"v_mfma_f32_16x16x32_bf16 {vr(d,4)}, {vr(A,4)}, {vr(B,4)}, {c_}")
    mf16 = lambda d, A, B, c_: a(f"v_mfma_f32_16x16x16_bf16 {vr(d,4)}, {vr(A,2)}, {vr(B,2)}, {c_}")
    if EARLY[0]:
        for r in range(4): a(f"v_mov_b32 v{vK+r}, -1")
        for qt in range(2):
            a(f"s_add_u32 s{sA}, s{sO}, {15*4*2*128*1024 + qt*128*1024}")
            for i in range(4): a(f"buffer_store_dwordx4 {vr(vK,4)}, v4, {WS}, s{sA} offen offset:{i*1024} sc1")
        a.nop(2)
    a.label("AT_LOOP")
    for (base, img) in ((vK, KIMG), (vQ, QIMG), (vV, VIMG)):
        for hf in range(2):
            a(f"s_add_u32 s{sA}, s{sQ}, {img + hf*4096}")
            for i in range(4):
                a.vm(f"buffer_load_dwordx4 {vr(base+16*hf+4*i,4)}, v4, {WS}, s{sA} offen offset:{i*1024} sc1", ("in", base))
    a.wait_vm(("in", vQ))
    for (qt, kt) in ((0, 0), (1, 0), (1, 1)):
        for s in range(4):
            mf(S(qt, kt), vK + 16 * kt + 4 * s, vQ + 16 * qt + 4 * s, "0" if s == 0 else vr(S(qt, kt), 4))
    a(f"s_add_u32 s{sB}, s{sSeg}, 1")
    if EARLY[0] == 2: a(f"s_min_u32 s{sB}, s{sB}, 61")
    poll_ge(a, f"buffer_load_dword v9, v10, {WS}, s{sCh} offen sc1", [9], f"s{sB}", "CH", sleep=SLEEP[0])
    def kmload():
        for i in range(4): a.vm(f"buffer_load_dwordx4 {vr(vKM+4*i,4)}, v4, {WS}, s{sKm} offen offset:{i*1024} sc1", "km")
        for i in range(4): a.vm(f"buffer_load_dwordx2 {vr(vVM+2*i,2)}, v5, {WS}, s{sKm} offen offset:{i*1024} sc1", "vm")
    if diag: a("s_memrealtime s[72:73]")
    kmload()
    a("v_mov_b32 v11, 0xff800000")
    for (qt, kt) in ((0, 0), (1, 1)):
        for r in range(4):
            a(f"v_cndmask_b32 v{S(qt,kt)+r}, v11, v{S(qt,kt)+r}, s[{sMask+2*r}:{sMask+2*r+1}]")
    a(f"v_max3_f32 v12, v{S(0,0)}, v{S(0,0)+1}, v{S(0,0)+2}\nv_max_f32 v12, v12, v{S(0,0)+3}")
    a(f"v_max3_f32 v14, v{S(1,0)}, v{S(1,0)+1}, v{S(1,0)+2}\nv_max3_f32 v14, v14, v{S(1,0)+3}, v{S(1,1)}")
    a(f"v_max3_f32 v14, v14, v{S(1,1)+1}, v{S(1,1)+2}\nv_max_f32 v14, v14, v{S(1,1)+3}")
    if EARLY[0]:
        a(f"s_cmp_lt_u32 s{sSeg}, {EFROM}\ns_cbranch_scc1 AT_KMOK\ns_mov_b32 s{sD}, 0")
        a.label("AT_KMCHK")
        a("s_waitcnt vmcnt(0)")
        rs = list(range(vKM, vKM + 24))
        a(f"v_max3_u32 v13, v{rs[0]}, v{rs[1]}, v{rs[2]}\nv_max3_u32 v15, v{rs[3]}, v{rs[4]}, v{rs[5]}")
        for k in range(6, 22, 4): a(f"v_max3_u32 v13, v13, v{rs[k]}, v{rs[k+1]}\nv_max3_u32 v15, v15, v{rs[k+2]}, v{rs[k+3]}")
        a(f"v_max3_u32 v13, v13, v{rs[22]}, v{rs[23]}\nv_max_u32 v13, v13, v15\nv_cmp_eq_u32 vcc, -1, v13\ns_cbranch_vccz AT_KMOK")
        a(f"s_add_u32 s{sD}, s{sD}, 1\ns_cmp_gt_u32 s{sD}, {POLL_BOUND}\ns_cbranch_scc1 AT_KMOK")
        keep = list(a.vmq); kmload(); a.vmq = keep
        a("s_branch AT_KMCHK")
        a.label("AT_KMOK")
    a.wait_vm("km")
    for qt in range(2):
        for s in range(4):
            mf(S(qt, 2), vKM + 4 * s, vQ + 16 * qt + 4 * s, "0" if s == 0 else vr(S(qt, 2), 4))
    a.nop(8)
    for qt in range(2):
        a(f"v_max3_f32 v{12+2*qt}, v{12+2*qt}, v{S(qt,2)+2}, v{S(qt,2)+3}")
    for op in ("v_permlane32_swap_b32", "v_permlane16_swap_b32"):
        a(f"v_mov_b32 v13, v12\nv_mov_b32 v15, v14\ns_nop 0\n{op} v12, v13\n{op} v14, v15\nv_max_f32 v12, v12, v13\nv_max_f32 v14, v14, v15")
    a(f"v_mul_f32 v12, s{sCC}, v12\nv_mul_f32 v14, s{sCC}, v14")
    for qt in range(2):
        m = 12 + 2 * qt
        prs = [S(qt, 2) + 2, S(qt, 0), S(qt, 0) + 2] + ([S(qt, 1), S(qt, 1) + 2] if qt else [])
        for r in prs:
            a(f"v_pk_fma_f32 {vr(r,2)}, {vr(r,2)}, s[{sCC}:{sCC+1}], {vr(m,2)} op_sel_hi:[1,1,0] neg_lo:[0,0,1] neg_hi:[0,0,1]")
        for r in prs: a(f"v_exp_f32 v{r}, v{r}\nv_exp_f32 v{r+1}, v{r+1}")
        a.nop(1)
        a(f"v_cvt_pk_bf16_f32 v{PM(qt)}, v{prs[0]}, v{prs[0]+1}\nv_cvt_pk_bf16_f32 v{PM(qt)+3}, v{prs[0]}, v{prs[0]+1}")
        for k, r in enumerate(prs[1:]): a(f"v_cvt_pk_bf16_f32 v{PX(qt)+k}, v{r}, v{r+1}")
    a.wait_vm_all()
    a.nop(2)
    for qt in range(2):
        mf16(L_(qt), ONE, PM(qt), "0")
        for ft in range(8): mf16(O(qt, ft), vVM + 2 * (ft >> 1), PM(qt) + 2 * (ft & 1), "0")
        m2 = mf if qt else mf16
        m2(L_(qt), ONE, PX(qt), vr(L_(qt), 4))
        for ft in range(8): m2(O(qt, ft), vV + 4 * ft, PX(qt), vr(O(qt, ft), 4))
    for qt in range(2):
        if qt: a.nop(4)
        a(f"v_rcp_f32 v12, v{L_(qt)}")
        if qt: a(f"s_add_u32 s{sA}, s{sO}, {128*1024}")
        else: a.nop(1)
        for pr in range(4):
            d = vK + 16 * qt + 4 * pr
            for h_ in range(2):
                for k in range(2):
                    r = O(qt, 2 * pr + h_) + 2 * k
                    a(f"v_pk_mul_f32 {vr(r,2)}, {vr(r,2)}, v[12:13] op_sel_hi:[1,0]")
                    a(f"v_cvt_pk_bf16_f32 v{d+2*h_+k}, v{r}, v{r+1}")
            a.vm(f"buffer_store_dwordx4 {vr(d,4)}, v4, {WS}, s{sA if qt else sO} offen offset:{pr*1024} sc1", "o")
    a(f"s_add_u32 s{sCnt}, s{sCnt}, 1")
    if EARLY[0]: a(f"s_cmp_ge_u32 s{sSeg}, 60\ns_cbranch_scc1 AT_FLAG")
    a.wait_vm_all()
    a.label("AT_FLAG")
    if diag: a("s_memrealtime s[74:75]")
    flag_store(a, f"s{sAt}", f"s{sCnt}", 8)
    a(f"""
    s_add_u32 s{sQ}, s{sQ}, {4*32*8192}
    s_add_u32 s{sKm}, s{sKm}, {4*32*4096}
    s_add_u32 s{sVm}, s{sVm}, {4*32*2048}
    s_add_u32 s{sO}, s{sO}, {4*2*128*1024}
    s_add_u32 s{sSeg}, s{sSeg}, 4
    s_cmp_lt_u32 s{sSeg}, 64
    s_cbranch_scc1 AT_LOOP
    """)
    a.vmq = []; a.dsq = []

def gemm2(a, diag=False):
    sCs, sU, sO, sH_, sX, sN, sPar, sLo, sLast = 18, 19, 20, 21, 22, 23, 24, 26, 25
    srd(a, 12, "Wo", 4096 * 1024)
    srd(a, 48, "w2", 1792 * 1024)
    srd(a, 52, "x", 2048 * 1024)
    srd(a, 56, "out", 2048 * 1024)
    srd(a, 60, "b2", 1024)
    a(f"""
    s_and_b32 s{sCs}, s{sRole}, 15
    s_lshr_b32 s{sU}, s{sRole}, 4
    v_and_b32 v100, 15, v0
    v_lshrrev_b32 v101, 4, v0
    v_and_b32 v102, 3, v0
    v_bfe_u32 v103, v0, 2, 2
    v_lshrrev_b32 v4, 2, v0
    v_lshlrev_b32 v4, 10, v4
    v_lshl_add_u32 v4, v102, 4, v4
    s_lshl_b32 s{sA}, s{sCs}, 6
    v_add_u32 v104, s{sA}, v4
    v_lshl_add_u32 v4, v101, 2, v103
    v_lshlrev_b32 v4, 6, v4
    v_lshl_add_u32 v4, v102, 4, v4
    s_mul_i32 s{sA}, s{sW}, 32768
    v_add_u32 v105, s{sA}, v4
    s_waitcnt lgkmcnt(0)
    """)
    Wo_ = lambda s, T: ar(8 * s + 4 * T, 4)
    VW2 = 144
    W2_ = lambda s, T: vr(VW2 + 8 * s + 4 * T, 4)
    chunks = [("o", c, 8) for c in range(8)] + [("2", c, 8) for c in range(3)] + [("2", 3, 4)]
    a(f"s_lshl_b32 s{sN}, s{sW}, 20\ns_mul_i32 s{sB}, s{sW}, {448*1024}")
    def issue(n):
        m, c, cnt = chunks[n]
        for i in range(cnt):
            a(f"s_add_u32 m0, s{sA}, {(n%4)*8192 + i*1024}\ns_nop 0")
            so = sN if m == "o" else sB
            a.vm(f"buffer_load_dwordx4 v104, {'s[12:15]' if m == 'o' else 's[48:51]'}, s{so} offen lds", ("w", n))
            a(f"s_add_u32 s{so}, s{so}, {16*1024}")
    for n in range(4): issue(n)
    for n, (m, c, cnt) in enumerate(chunks):
        a.wait_vm(("w", n))
        for s_ in range(cnt // 2):
            for T in range(2):
                for p in range(2):
                    base = (8 * (4 * c + s_) + 4 * T + 2 * p)
                    dst = ar(base, 2) if m == "o" else vr(VW2 + base, 2)
                    a.ds(f"ds_read_b64_tr_b16 {dst}, v105 offset:{(n%4)*8192 + (32*s_+16*p)*64 + T*8}")
        a.wait_ds_all()
        if n + 4 < len(chunks): issue(n + 4)
    if diag: a("s_memrealtime s[68:69]")
    vB = 8
    a(f"""
    v_lshlrev_b32 v4, 4, v101
    s_lshl_b32 s{sA}, s{sCs}, 6
    buffer_load_dwordx4 v[16:19], v4, s[60:63], s{sA} offen
    v_and_b32 v7, 7, v0
    v_lshl_add_u32 v6, v7, 10, v4
    v_add_u32 v6, s{sA}, v6
    v_lshlrev_b32 v5, 4, v0
    v_add_u32 v5, 131072, v5
    v_lshl_add_u32 v4, v101, 4, v7
    v_lshlrev_b32 v4, 4, v4
    v_lshrrev_b32 v3, 3, v100
    v_lshl_add_u32 v4, v3, 10, v4
    v_lshlrev_b32 v7, 7, v7
    s_mov_b32 s{sLo}, 0x00ff00ff
    s_mov_b32 s{sLo+1}, 0x00ff00ff
    s_waitcnt vmcnt(0)
    """)
    for k in range(4): a(f"v_lshlrev_b32 v{vB+2*k}, 16, v{16+k}\nv_and_b32 v{vB+2*k+1}, 0xffff0000, v{16+k}")
    a(f"v_min_u32 v16, 27, v0\nv_lshlrev_b32 v16, 7, v16\ns_mov_b32 s{sA}, {G1F + 160*128}")
    poll_ge(a, f"buffer_load_dword v17, v16, {WS}, s{sA} offen sc1", [17], 16, "H")
    a(f"s_mov_b32 s{sPar}, 0")
    a("s_barrier")
    vR = lambda k: 64 + 4 * k
    AC, AO = 24, 128
    def ld(n, sbase):
        if n and n % 2 == 0: a(f"s_add_u32 s{sbase}, s{sbase}, 4096")
        a.vm(f"buffer_load_dwordx4 {vr(vR(n),4)}, v4, {WS}, s{sbase} offen offset:{(n%2)*2048} sc1", ("a", n))
    def mm(n, Wf, first):
        a.wait_vm(("a", n))
        for par, acc in ((0, AC), (1, AO)):
            for T in range(2):
                a(f"v_mfma_f32_16x16x32_bf16 {vr(acc+4*T,4)}, {Wf(2*n+par,T)}, {vr(vR(n),4)}, {'0' if first else vr(acc+4*T,4)}")
    def hpart(su):
        a(f"""
        s_lshr_b32 s{sB}, s{su}, 1
        s_and_b32 s{sC_}, s{su}, 1
        s_lshl_b32 s{sC_}, s{sC_}, 7
        s_mul_i32 s{sH_}, s{sB}, {56*1024}
        s_mul_i32 s{sA}, s{sW}, {14*1024}
        s_add_u32 s{sH_}, s{sH_}, s{sA}
        s_add_u32 s{sH_}, s{sH_}, s{sC_}
        s_add_u32 s{sH_}, s{sH_}, {HIMG}
        """)
        for n in range(7): ld(n, sH_)
        for n in range(7): mm(n, W2_, n == 0)
        a.nop(8)
    NFULL = 256 // NSETS
    a(f"s_add_u32 s{sLast}, s{sU}, {NFULL*NSETS}\ns_cmp_ge_u32 s{sLast}, 256\ns_cselect_b32 s{sB}, {NSETS}, 0\ns_sub_u32 s{sLast}, s{sLast}, s{sB}")
    hpart(sLast)
    for k in range(8): a(f"v_mov_b32 v{56+k}, v{AC+k}\nv_mov_b32 v{136+k}, v{AO+k}")
    a.label("G2_LOOP")
    a(f"s_lshl_b32 s{sX}, s{sU}, 13")
    a(f"buffer_load_dwordx4 v[20:23], v6, s[52:55], s{sX} offen")
    a(f"s_cmp_lg_u32 s{sU}, s{sLast}\ns_cbranch_scc1 G2_H")
    for k in range(8): a(f"v_mov_b32 v{AC+k}, v{56+k}\nv_mov_b32 v{AO+k}, v{136+k}")
    a("s_branch G2_HE")
    a.label("G2_H")
    hpart(sU)
    a.label("G2_HE")
    a(f"""
    s_lshr_b32 s{sB}, s{sU}, 1
    s_and_b32 s{sC_}, s{sU}, 1
    s_lshl_b32 s{sC_}, s{sC_}, 7
    s_lshl_b32 s{sO}, s{sB}, 17
    s_lshl_b32 s{sA}, s{sW}, 15
    s_add_u32 s{sO}, s{sO}, s{sA}
    s_add_u32 s{sO}, s{sO}, s{sC_}
    s_add_u32 s{sO}, s{sO}, {OIMG}
    """)
    a(f"""
    s_lshr_b32 s{sB}, s{sU}, 2
    s_and_b32 s{sA}, s{sB}, 3
    s_lshl_b32 s{sA}, s{sA}, 12
    s_lshl_b32 s{sC_}, s{sW}, 10
    s_add_u32 s{sA}, s{sA}, s{sC_}
    s_add_u32 s{sA}, s{sA}, {ATF}
    s_lshr_b32 s{sB}, s{sB}, 2
    s_add_u32 s{sB}, s{sB}, 1
    """)
    if EARLY[0]:
        for k in range(8): a(f"v_mov_b32 v{40+k}, v{AC+k}\nv_mov_b32 v{48+k}, v{AO+k}")
    poll_ge(a, f"buffer_load_dword v17, v7, {WS}, s{sA} offen sc1", [17], f"s{sB}", "AT", sleep=SLEEP[0])
    if diag: a("s_memrealtime s[72:73]")
    a(f"s_mov_b32 s{sN}, 0")
    a.label("G2_OPART")
    for n in range(16): ld(n, sO)
    for n in range(16): mm(n, Wo_, False)
    a(f"s_lshl_b32 s{sA}, s{sW}, 11\ns_add_u32 s{sA}, s{sA}, s{sPar}\nv_add_u32 v16, s{sA}, v5")
    a.nop(6)
    if EARLY[0]:
        a(f"s_cmp_lt_u32 s{sU}, 240\ns_cbranch_scc1 G2_OOK\nv_cmp_u_f32 vcc, v{AC}, v{AC}\ns_cbranch_vccz G2_OOK")
        a(f"s_add_u32 s{sN}, s{sN}, 1\ns_cmp_gt_u32 s{sN}, 256\ns_cbranch_scc1 G2_OOK")
        for k in range(8): a(f"v_mov_b32 v{AC+k}, v{40+k}\nv_mov_b32 v{AO+k}, v{48+k}")
        a(f"s_sub_u32 s{sO}, s{sO}, {7*4096}\ns_branch G2_OPART")
        a.label("G2_OOK")
    for k in range(8): a(f"v_add_f32_dpp v{AC+k}, v{AO+k}, v{AC+k} row_ror:8 row_mask:0xf bank_mask:0xf")
    if diag: a(f"s_memrealtime s[74:75]\ns_mov_b32 s76, s{sN}")
    a.ds(f"ds_write_b128 v16, {vr(AC,4)}")
    a.ds(f"ds_write_b128 v16, {vr(AC+4,4)} offset:1024")
    a.wait_ds_all()
    a("s_barrier")
    a(f"s_cmp_lg_u32 s{sW}, 0\ns_cbranch_scc1 G2_NEXT")
    for w_ in range(1, 4):
        a.ds(f"ds_read_b128 {vr(56+8*w_,4)}, v16 offset:{w_*2048}", ("r", w_))
        a.ds(f"ds_read_b128 {vr(60+8*w_,4)}, v16 offset:{w_*2048+1024}", ("r", w_))
    for k in range(4):
        a(f"v_lshlrev_b32 v32, 16, v{20+k}\nv_and_b32 v33, 0xffff0000, v{20+k}")
        a(f"v_pk_add_f32 {vr(AC+2*k,2)}, {vr(AC+2*k,2)}, {vr(vB+2*k,2)}")
        a(f"v_pk_add_f32 {vr(AC+2*k,2)}, {vr(AC+2*k,2)}, v[32:33]")
    for w_ in range(1, 4):
        a.wait_ds(("r", w_))
        for k in range(4): a(f"v_pk_add_f32 {vr(AC+2*k,2)}, {vr(AC+2*k,2)}, {vr(56+8*w_+2*k,2)}")
    for k in range(4): a(f"v_cvt_pk_bf16_f32 v{36+k}, v{AC+2*k}, v{AC+2*k+1}")
    a(f"s_mov_b64 exec, s[{sLo}:{sLo+1}]\nbuffer_store_dwordx4 v[36:39], v6, s[56:59], s{sX} offen {OUTF[0]}\ns_mov_b64 exec, -1")
    a.label("G2_NEXT")
    a(f"""
    s_xor_b32 s{sPar}, s{sPar}, 8192
    s_add_u32 s{sU}, s{sU}, {NSETS}
    s_cmp_lt_u32 s{sU}, 256
    s_cbranch_scc1 G2_LOOP
    """)
    a.vmq = []; a.dsq = []
```

```python
from asm import *
from layout import *
import math

MISC = 131072
M_OFF = 0
X_OFF = 8192
KX_OFF = 16384
O_OFF = 13568
XS = 1088
sWS = 8
sTMP = 12
sH, sW, sStep = 16, 17, 18
sPst, sPld, sTag, sMpub, sMpoll, sMclr = 19, 20, 21, 22, 23, 24
sVx, sKx, sKm, sVm = 25, 26, 27, 28
sC = 30
sT0, sT1, sT2, sT3 = 32, 33, 34, 35
sCnt = 36
sLO8 = 38
sDBG = 40
sTS = 44
vIDX, vKx, vM16, vRing, vPst, vMpub, vXw, vXr, vOr = 1, 2, 3, 4, 5, 6, 7, 8, 9
vL8 = 0
vNEG = 10
vVA0 = 12
RA_OFF = 12544
vVX = 16
vPM = 24
vACC = 28
vA = 44
vRING = 76
vT = 124
vWK = 128
NRING = 6
WQ_SLOT = [2, 3, 1, 0]
def ringreg(i): return vRING + 8 * (i % NRING)
KXREG = [vRING + 8*4, vRING + 8*5, vRING + 0, vRING + 8]
def kx(kt, s): return KXREG[kt*2 + (s >> 1)] + 4 * (s & 1)
vXF = vRING + 16
def wv(t, s): return 8 * (t * 8 + s)
def wo(d, s): return 128 + 8 * (d * 4 + s)
def wk(t, s): return vWK + 8 * (t * 8 + s)

def wq_lds_imm(i):
    t, s = i >> 3, i & 7
    return WQ_SLOT[s >> 1] * 8192 + ((s & 1) * 2 + t) * 2048

def stamp(a, k, diag):
    if diag: a(f"s_memtime s[{sTS+2*k}:{sTS+2*k+1}]")

def prologue(a, P, diag=False):
    a(f"v_lshrrev_b32 v10, 6, v0\nv_and_b32 v0, 63, v0\nv_readfirstlane_b32 s{sW}, v10\ns_nop 3")
    prologue_a(a, P, True); prologue_b(a, P)

def prologue_a(a, P, dma):
    WNT[0] = P.get("wnt", "")
    order[:] = [x for x in P.get("order", "kvoq") for _ in range(4)]
    WQ_SLOT[:] = [2, 3, 0, 1] if P.get("qpre") else [2, 3, 1, 0]
    a(f"""
    s_load_dwordx4 s[48:51], s[0:1], {KA['Wq']}
    s_load_dwordx4 s[52:55], s[0:1], {KA['Wv']}
    s_load_dwordx2 s[56:57], s[0:1], {KA['mem0']}
    """)
    a(f"""
    v_and_b32 v100, 15, v0            ; n
    v_lshrrev_b32 v101, 4, v0         ; g
    v_and_b32 v102, 3, v0             ; c
    v_bfe_u32 v103, v0, 2, 2          ; r''
    """)
    a(f"""
    s_lshl_b32 s{sT2}, s{sH}, 8
    s_lshl_b32 s{sT3}, s{sW}, 6
    s_add_u32 s{sT2}, s{sT2}, s{sT3}
    v_lshrrev_b32 v10, 2, v0
    """)
    for k in range(4):
        a(f"v_lshlrev_b32 v11, 13, v10\nv_xor_b32 v104, {2*(k&1)}, v102\nv_lshl_add_u32 v11, v104, 4, v11\nv_add_u32 v{vSQ+k}, s{sT2}, v11")
        a(f"v_mov_b32 v{vSRC+k}, v{vSQ+k}\nv_mov_b32 v{vSRC+4+k}, v{vSQ+k}")
    a(f"s_lshl_b32 s{sT2}, s{sH}, 17\ns_lshl_b32 s{sT3}, s{sW}, 8\ns_add_u32 s{sT2}, s{sT2}, s{sT3}\nv_and_b32 v105, 1, v101")
    for k in range(2):
        a(f"v_lshl_add_u32 v10, v105, 2, 0\nv_xor_b32 v10, v10, v100\nv_xor_b32 v10, {8*k}, v10\nv_lshlrev_b32 v11, 10, v101\nv_lshl_add_u32 v10, v10, 4, v11\nv_add_u32 v{vSO+k}, s{sT2}, v10")
    a(f"""
    s_lshl_b32 s{sB0}, s{sW}, 15
    s_lshl_b32 s{sB1}, s{sW}, 13
    s_add_u32 s{sB1}, s{sB1}, {MISC}
    s_mov_b32 s62, 0x400000
    s_mov_b32 s63, 0x20000
    s_getpc_b64 s[{sSub}:{sSub+1}]
    s_add_u32 s{sSub}, s{sSub}, 12
    s_addc_u32 s{sSub+1}, s{sSub+1}, 0
    s_branch CH_SUBE
    """)
    for i in range(8):
        a(f"s_mov_b32 m0, s64\ns_add_u32 s64, s64, 1024\nbuffer_load_dwordx4 v{vSRC+i}, s[60:63], s65 offen {WNT[0]} lds\ns_add_u32 s65, s65, s66")
    a(f"s_setpc_b64 s[{sRet}:{sRet+1}]")
    a.label("CH_SUBE")
    a("s_waitcnt lgkmcnt(0)")
    for c in range(4 if P.get('cverd', 0) == 0 else 5): w_issue(a, c)
    a(f"""
    v_and_b32 v10, 2, v0
    v_cmp_eq_u32 vcc, 0, v10
    v_mov_b32 v11, 0xeeee
    v_mov_b32 v104, 0x4444
    v_cndmask_b32 v{vIDX}, v11, v104, vcc
    v_lshlrev_b32 v10, 4, v0
    v_add_u32 v{vM16}, {MISC}, v10
    s_lshl_b32 s{sT0}, s{sW}, 15
    v_add_u32 v{vRing}, s{sT0}, v10
    v_lshrrev_b32 v11, 2, v0
    v_lshlrev_b32 v11, 1, v11
    v_and_b32 v104, 1, v0
    v_add_u32 v11, v11, v104
    v_lshlrev_b32 v11, 4, v11
    v_add_u32 v{vOr}, {MISC+O_OFF}, v11
    v_lshlrev_b32 v10, 14, v101
    v_lshl_add_u32 v{vPst}, v100, 3, v10
    v_lshlrev_b32 v10, 4, v102
    v_bfe_u32 v11, v0, 2, 1
    v_lshl_add_u32 v10, v11, 3, v10
    v_lshrrev_b32 v11, 1, v101
    v_lshl_add_u32 v10, v11, 2, v10
    v_and_b32 v11, 1, v101
    v_lshl_add_u32 v{vMpub}, v11, 8, v10
    v_add_u32 v{vKx}, {KX_OFF}, v{vM16}
    v_mul_u32_u24 v10, {XS}, v101
    v_lshl_add_u32 v10, v100, 3, v10
    s_lshl_b32 s{sT0}, s{sW}, 8
    s_add_u32 s{sT0}, s{sT0}, {MISC+X_OFF}
    v_add_u32 v{vXw}, s{sT0}, v10
    v_mul_u32_u24 v10, {XS}, v102
    v_lshrrev_b32 v11, 2, v0
    v_lshl_add_u32 v10, v11, 3, v10
    v_add_u32 v{vXr}, {MISC+X_OFF}, v10
    v_bfe_u32 v10, v100, 1, 2
    v_and_b32 v11, 1, v100
    v_lshlrev_b32 v11, 4, v11
    v_mov_b32 v104, 0x3f80
    v_lshlrev_b32 v104, v11, v104
    """)
    for k in range(4):
        a(f"v_cmp_eq_u32 vcc, {k}, v10\ns_nop 1\nv_cndmask_b32 v{112+k}, 0, v104, vcc")
    a(f"s_mov_b32 s{sLO8}, 0x00ff00ff\ns_mov_b32 s{sLO8+1}, 0x00ff00ff\ns_mov_b32 s{sB1M}, 0xcccccccc\ns_mov_b32 s{sB1M+1}, 0xcccccccc\ns_mov_b32 s{sONE}, 0x3f803f80")
    c = (128 ** -0.5) * math.log2(math.e)
    import struct
    cb = struct.unpack("<I", struct.pack("<f", c))[0]
    a(f"s_mov_b32 s{sC}, {cb:#x}\ns_mov_b32 s{sC+1}, {cb:#x}")
    a(f"""
    s_lshl_b32 s{sT2}, s{sH}, 17
    s_lshl_b32 s{sT3}, s{sW}, 8
    s_add_u32 s{sT2}, s{sT2}, s{sT3}
    v_and_b32 v105, 1, v101            ; g&1
    v_lshrrev_b32 v106, 1, v101        ; g>>1
    v_and_b32 v107, 1, v103            ; r&1
    v_lshrrev_b32 v108, 1, v103        ; r>>1
    v_lshl_add_u32 v10, v106, 3, v105
    v_lshl_add_u32 v10, v108, 4, v10
    v_lshl_add_u32 v109, v107, 1, v10
    v_lshlrev_b32 v10, 4, v105
    v_lshl_add_u32 v10, v106, 2, v10
    v_add_u32 v110, v10, v107
    """)
    for t in range(2):
        a(f"v_lshlrev_b32 v10, 6, v109\nv_xor_b32 v11, {t}, v108\nv_lshl_add_u32 v10, v11, 5, v10\nv_lshl_add_u32 v10, v102, 3, v10")
        a(f"v_add_u32 v{vB1+t}, s{sB0}, v10\nv_add_u32 v{vB1+4+t}, s{sB1}, v10")
    for d in range(4):
        a(f"v_lshl_add_u32 v11, v105, 1, v107\nv_xor_b32 v11, {d}, v11\nv_lshlrev_b32 v10, 8, v110\nv_lshl_add_u32 v10, v11, 6, v10")
        a(f"v_lshl_add_u32 v10, v108, 5, v10\nv_lshl_add_u32 v10, v102, 3, v10")
        a(f"v_add_u32 v{vB2+d}, s{sB0}, v10\nv_add_u32 v{vB2+4+d}, s{sB1}, v10")
    a(f"""
    s_mov_b32 s12, s56
    s_mov_b32 s13, s57
    s_mov_b32 s14, 8192
    s_mov_b32 s15, 0x20000
    v_lshrrev_b32 v10, 2, v100
    v_lshlrev_b32 v10, 1, v10
    v_and_b32 v11, 1, v0
    v_add_u32 v10, v10, v11            ; row
    v_lshlrev_b32 v10, 10, v10
    v_bfe_u32 v11, v0, 1, 1
    v_lshl_add_u32 v10, v11, 5, v10
    v_lshl_add_u32 v10, v106, 6, v10
    v_lshl_add_u32 v10, v105, 4, v10
    s_lshl_b32 s{sT2}, s{sW}, 8        ; ksteps 2w, 2w+1
    v_add_u32 v10, s{sT2}, v10
    buffer_load_dwordx4 v[16:19], v10, s[12:15], 0 offen
    buffer_load_dwordx4 v[12:15], v10, s[12:15], 0 offen offset:128
    """)

order = ["k"] * 4 + ["v"] * 4 + ["o"] * 4 + ["q"] * 4
srd = {"q": 60, "k": 64, "v": 68, "o": 72}
WNT = ['']
sB0, sB1 = 76, 77
sSub, sRet = 68, 70
vSRC, vSQ, vSO, vB1, vB2 = 76, 84, 88, 90, 116
def w_issue(a, c):
    m = order[c]; cc = c & 3; slot = c % 5
    if cc == 0:
        src = {"q": 48, "k": 50, "v": 52, "o": 54}[m]
        a(f"s_mov_b32 s60, s{src}\ns_mov_b32 s61, s{src+1}\ns_mov_b32 s65, 0")
        change = c == 0 or (order[c - 1] == "o") != (m == "o")
        if change: a(f"s_mov_b32 s66, {4096 if m == 'o' else 131072}")
        if change and (c or m == "o"):
            for k in range(8): a(f"v_mov_b32 v{vSRC+k}, v{vSO + (k >> 2) if m == 'o' else vSQ + (k & 3)}")
    a(f"s_add_u32 s64, s{sB0}, {slot*8192}" if slot < 4 else f"s_mov_b32 s64, s{sB1}")
    a(f"s_swappc_b64 s[{sRet}:{sRet+1}], s[{sSub}:{sSub+1}]")
    a.vmq += [("w", c)] * 8

def prologue_b(a, P, first_chunk=None, peek=None):
    issue = lambda c: w_issue(a, c)
    CV = P.get("cverd", 0)
    a.vmq = [("w", c) for c in range(4 if CV == 0 else 5) for _ in range(8)]
    for c in range(16):
        m = order[c]; cc = c & 3; slot = c % 5
        a.wait_vm(("w", c))
        if c == 0:
            if first_chunk: first_chunk(a, 0, CV == 0)
            if CV == 0: issue(4)
        so, sb = (slot * 8192, 0) if slot < 4 else (0, 4)
        if m == "q" and P.get("qpre"):
            if c == P.get('peek', 13) and peek: peek(a)
            continue
        if m != "o":
            for s_ in range(2):
                for t in range(2):
                    for mm in range(4):
                        imm = so + (64 * s_ + 32 * (mm >> 1) + 4 * (mm & 1)) * 64
                        s = 2 * cc + s_
                        if m == "k": dst = vr(wk(t, s) + 2 * mm, 2)
                        elif m == "v": dst = ar(wv(t, s) + 2 * mm, 2)
                        else: dst = vr(vA + (s_ * 2 + t) * 8 + 2 * mm, 2)
                        a.ds(f"ds_read_b64_tr_b16 {dst}, v{vB1 + sb + t} offset:{imm}")
        else:
            for d in range(4):
                for mm in range(4):
                    imm = so + (8 * (mm >> 1) + 2 * (mm & 1)) * 256
                    a.ds(f"ds_read_b64_tr_b16 {ar(wo(d, cc) + 2*mm, 2)}, v{vB2 + sb + d} offset:{imm}")
        a.wait_ds_all()
        if m == "q":
            for k in range(8):
                a.ds(f"ds_write_b128 v{vRing}, {vr(vA + 4*k, 4)} offset:{WQ_SLOT[cc]*8192 + k*1024}")
            a.wait_ds_all()
        if CV and c == CV and first_chunk: first_chunk(a, 1, True)
        if P.get("qpre"):
            if c == 6: P["qpre"][0](a)
            if c + 5 < 12: issue(c + 5)
            if c == 10:
                P["qpre"][1](a)
                a(f"s_mov_b32 s60, s{sWS}\ns_mov_b32 s61, s{sWS+1}\ns_mov_b32 s62, {WS_BYTES}\ns_mov_b32 s66, 1024")
                a(f"s_lshl_b32 s65, s{sH}, 2\ns_add_u32 s65, s65, s{sW}\ns_lshl_b32 s65, s65, 15\ns_add_u32 s65, s65, {WQP - MISC}")
                for k in range(8): a(f"v_mov_b32 v{vSRC+k}, v{vM16}")
            for cq in {10: (0, 1, 2), 11: (3,)}.get(c, ()):
                a(f"s_add_u32 s64, s{sB0}, {WQ_SLOT[cq]*8192}\ns_swappc_b64 s[{sRet}:{sRet+1}], s[{sSub}:{sSub+1}]")
                a.vmq += [("w", 12 + cq)] * 8
        elif c + 5 < 16: issue(c + 5)
        if c == P.get('peek', 13) and peek: peek(a)
        if c == P.get("help_at", -1):
            lo, per = P["help"]
            a(f"s_lshl_b32 s{sT0}, s{sH}, 2\ns_add_u32 s{sT0}, s{sT0}, s{sW}\nv_lshlrev_b32 v10, 7, v0")
            for rep in range(P.get("help_rep", 2)):
                if rep: a(f"s_add_u32 s{sT0}, s{sT0}, {128 // P.get('help_rep', 2) + 1}\ns_and_b32 s{sT0}, s{sT0}, 127")
                a(f"s_mul_i32 s{sT1}, s{sT0}, {per*8192}\ns_add_u32 s{sT1}, s{sT1}, {lo*8192}")
                for k in range(per):
                    a(f"buffer_load_dword v11, v10, s[60:63], s{sT1} offen")
                    if k + 1 < per: a(f"s_add_u32 s{sT1}, s{sT1}, 8192")
    a("s_barrier")
    a(f"""
    ds_write_b128 v{vM16}, v[112:115] offset:{RA_OFF}
    v_lshlrev_b32 v{vL8}, 3, v0
    s_waitcnt lgkmcnt(0)
    """)

def seg_offsets(a, w, P):
    a(f"""
    s_and_b32 s{sT0}, s{sStep}, 3
    s_lshl_b32 s{sT1}, s{sT0}, 18
    s_lshl_b32 s{sT2}, s{sH}, 7
    s_add_u32 s{sPst}, s{sT1}, s{sT2}
    s_add_u32 s{sPst}, s{sPst}, {PART + w*65536}
    s_lshl_b32 s{sT3}, s{sH}, 13
    s_add_u32 s{sPld}, s{sT1}, s{sT3}
    s_add_u32 s{sPld}, s{sPld}, {PART - MISC + (w&1)*4096}
    s_add_u32 s{sT0}, s{sStep}, 3
    s_and_b32 s{sT0}, s{sT0}, 3
    s_lshl_b32 s{sT1}, s{sT0}, 18
    s_mov_b32 s{sTag}, 0
    s_lshr_b32 s{sT2}, s{sH}, 3
    s_lshl_b32 s{sT2}, s{sT2}, 11
    s_and_b32 s{sT3}, s{sH}, 1
    s_lshl_b32 s{sT3}, s{sT3}, 9
    s_add_u32 s{sT2}, s{sT2}, s{sT3}
    s_bfe_u32 s{sT3}, s{sH}, 0x20001
    s_lshl_b32 s{sT3}, s{sT3}, 6
    s_add_u32 s{sT2}, s{sT2}, s{sT3}
    s_lshl_b32 s{sT1}, s{sT0}, 13
    s_add_u32 s{sMclr}, s{sT1}, s{sT2}
    s_add_u32 s{sMclr}, s{sMclr}, {MBUF + (w&1)*1024}
    s_add_u32 s{sT0}, s{sStep}, 1
    s_and_b32 s{sT0}, s{sT0}, 3
    s_lshl_b32 s{sT1}, s{sT0}, 13
    s_add_u32 s{sMpub}, s{sT1}, s{sT2}
    s_add_u32 s{sMpub}, s{sMpub}, {MBUF + (w&1)*1024}
    s_add_u32 s{sMpoll}, s{sT1}, {MBUF - MISC + w*2048}
    s_lshl_b32 s{sT0}, s{sStep}, 5
    s_add_u32 s{sT0}, s{sT0}, s{sH}
    s_lshl_b32 s{sT1}, s{sT0}, 13
    s_add_u32 s{sVx}, s{sT1}, {VIMG - MISC + w*2048}
    s_add_u32 s{sKx}, s{sT1}, {KIMG - MISC + 32*8192}
    s_lshl_b32 s{sT1}, s{sT0}, 12
    s_add_u32 s{sKm}, s{sT1}, {KMEM - MISC + w*1024}
    s_lshl_b32 s{sT1}, s{sT0}, 11
    s_add_u32 s{sVm}, s{sT1}, {VMEM + w*512}
    """)

sRP, sRM, sMprev, sCP1, sCP2, sCM1, sVmPrev = 76, 77, 78, 79, 80, 81, 82
sKb, sStage = 75, 74
sONE = 42
sB1M = 40
def init_incr(a, w):
    a(f"""
    s_mov_b32 s{sRP}, 0
    s_mov_b32 s{sRM}, 8192
    s_mov_b32 s{sCP1}, s{sPst}
    s_mov_b32 s{sCP2}, s{sPld}
    s_sub_u32 s{sCM1}, s{sMpub}, 8192
    s_mov_b32 s{sMprev}, s{sCM1}
    """)
NP = [1]
def advance(a, w):
    a(f"""
    s_add_u32 s{sVx}, s{sVx}, {32*8192}
    s_add_u32 s{sKx}, s{sKx}, {32*8192}
    s_add_u32 s{sKm}, s{sKm}, {32*4096}
    s_sub_u32 s{sMclr}, s{sMprev}, {(w&1)*1024}
    s_mov_b32 s{sMprev}, s{sMpub}
    s_add_u32 s{sRM}, s{sRM}, 8192
    s_and_b32 s{sRM}, s{sRM}, 0x7fff
    s_add_u32 s{sMpub}, s{sRM}, s{sCM1}
    s_add_u32 s{sStep}, s{sStep}, 1
    """)
    if NP[0] == 1: a(f"s_xor_b32 s{sTag}, s{sTag}, 1")
    else:
        a(f"""
        s_add_u32 s{sRP}, s{sRP}, 0x40000
        s_and_b32 s{sRP}, s{sRP}, {NP[0]*0x40000 - 1}
        s_add_u32 s{sPst}, s{sRP}, s{sCP1}
        s_add_u32 s{sPld}, s{sRP}, s{sCP2}
        s_bfe_u32 s{sTag}, s{sStep}, {0x10000 + NP[0].bit_length() - 1}
        """)

def korder(w):
    own = [2 * w, 2 * w + 1]
    rest = [(2 * w + 2 + k) % 8 for k in range(6)]
    seq = [(0, own[0]), (1, own[0]), (0, own[1]), (1, own[1])] + [(0, s) for s in rest] + [(1, s) for s in rest]
    return own, rest, seq

ABL = [""]; NT = [""]
def ring_fill(a, w, i):
    if "r" in ABL[0] and i >= NRING: return
    t, s = korder(w)[2][i]
    r = ringreg(i); imm = WQ_SLOT[s >> 1] * 8192 + ((s & 1) * 2 + t) * 2048
    a.ds(f"ds_read_b128 {vr(r,4)}, v{vRing} offset:{imm}", ("ring", i))
    a.ds(f"ds_read_b128 {vr(r+4,4)}, v{vRing} offset:{imm+1024}", ("ring", i))

def kx_dma(a, w, i):
    a(f"s_add_u32 m0, s{sKb}, {i*1024}")
    a(f"s_add_u32 s{sT0}, s{sKx}, {i*1024}")
    a.vm(f"buffer_load_dwordx4 v{vM16}, s[{sWS}:{sWS+3}], s{sT0} offen {NT[0]} lds", "kx")

class Stream:
    def __init__(self): self.ops = []; self.fill = {}
    def add(self, f, pre=None): self.ops.append((f, pre)); return len(self.ops) - 1
    def at(self, g, f): self.fill.setdefault(g, []).append(f)
    def emit(self):
        for g, (f, pre) in enumerate(self.ops):
            if pre: pre()
            f()
            for x in self.fill.pop(g, []): x()
        assert not self.fill, self.fill.keys()

def loop(a, w, st, P, diag=False):
    tag = f"{w}{'s' if st else 'f'}"
    WS = f"s[{sWS}:{sWS+3}]"
    smf = lambda d, A, B: a(f"v_smfmac_f32_16x16x64_bf16 {vr(d,4)}, {vr(A,4)}, {B}, v{vIDX}")
    mf = lambda d, A, B, c: a(f"v_mfma_f32_16x16x32_bf16 {vr(d,4)}, {vr(A,4)}, {vr(B,4)}, {c}")
    mf16 = lambda d, A, B, c: a(f"v_mfma_f32_16x16x16_bf16 {vr(d,4)}, {vr(A,2)}, {vr(B,2)}, {c}")
    I = lambda t: (lambda: a(t))
    Af = lambda s: vA + 4 * s
    q = lambda t: vACC + 8 * t
    k_ = lambda t: vACC + 8 * t + 4
    vacc = lambda t: (vVA0, vPM)[t]
    own, rest, seq = korder(w)
    ABL[0] = P.get("abl", ""); NP[0] = P.get("np", 1); NT[0] = P.get("nt", "nt")
    SL = P.get("stamps", ["start", "qkend", "xbar", "scores", "pv", "obar", "opend", "pub", "bdone"])
    def ST(n):
        if diag and n in SL:
            if P.get("trace"): a(f"s_memrealtime s[{sTS+2*SL.index(n)}:{sTS+2*SL.index(n)+1}]")
            else: stamp(a, SL.index(n), diag)
    vVM = vVA0 + 2
    def zero_acc():
        if w == 3:
            a(f"v_mov_b32 v124, -1\nv_lshrrev_b32 v125, 8, v{vL8}\nv_bfe_u32 v126, v{vL8}, 7, 1\nv_lshl_add_u32 v125, v125, 2, v126\nv_bfe_u32 v126, v{vL8}, 1, 6\nv_lshl_add_u32 v125, v125, 8, v126")
        for r in range(16): a(f"v_mov_b32 v{vACC+r}, 0")
        for t in range(2):
            for r in range(4): a(f"v_mov_b32 v{vacc(t)+r}, 0")
    def mwrite():
        for o in own:
            a.ds(f"ds_write_b128 v{vM16}, {vr(Af(o),4)} offset:{M_OFF + o*1024}", "mw")
    hook = P.get("hooks")
    if hook: hook["ready"](a, w, tag, True)
    vxl = [lambda: a.vm(f"buffer_load_dwordx4 {vr(vVX,4)}, v{vM16}, {WS}, s{sVx} offen {NT[0]}", "vx"),
           lambda: a.vm(f"buffer_load_dwordx4 {vr(vVX+4,4)}, v{vM16}, {WS}, s{sVx} offen offset:1024 {NT[0]}", "vx")]
    a(f"s_mov_b32 s{sKb}, {MISC+KX_OFF}\ns_lshl_b32 s{sKx}, s{sH}, 13\ns_add_u32 s{sKx}, s{sKx}, {KIMG - MISC}")
    kx_dma(a, w, 2 * w); kx_dma(a, w, 2 * w + 1)
    a(f"s_mov_b32 s{sT2}, 0x05040100\ns_mov_b32 s{sT3}, 0x07060302")
    for k, b in enumerate((16, 12)):
        d_ = Af(own[k])
        a(f"v_perm_b32 v{d_}, v{b+1}, v{b}, s{sT2}\nv_perm_b32 v{d_+1}, v{b+3}, v{b+2}, s{sT2}\nv_perm_b32 v{d_+2}, v{b+1}, v{b}, s{sT3}\nv_perm_b32 v{d_+3}, v{b+3}, v{b+2}, s{sT3}")
    a(f"s_mov_b32 s{sStep}, 0\ns_mov_b32 s{sKb}, {MISC+KX_OFF+8192}")
    seg_offsets(a, w, P)
    if P.get("kxA"): kx_dma(a, w, 2 * w); kx_dma(a, w, 2 * w + 1)
    a(f"s_mov_b32 s{sVmPrev}, s{sKm}\ns_sub_u32 s{sMclr}, s{sMclr}, {(w&1)*1024}")
    init_incr(a, w)
    for i in range(NRING): ring_fill(a, w, i)
    zero_acc()
    a(f"s_waitcnt vmcnt(0)"); a.vmq = []
    a.wait_ds_all(True)
    LB = [Af(o) for o in own]
    loadB = lambda k: a(f"buffer_load_dwordx4 {vr(LB[k],4)}, v{vM16}, {WS}, s{sMpoll} offen offset:{k*1024} sc1")
    NS = P["depB"]
    def retryB():
        a.label(f"CH_RBRETRY_{tag}")
        loadB(0); loadB(1)
        if diag: a(f"s_add_u32 s{sTS+21}, s{sTS+21}, 1")
        a(f"s_add_u32 s{sCnt}, s{sCnt}, 1")
        a(f"s_cmp_gt_u32 s{sCnt}, {P['bound']}\ns_cbranch_scc1 CH_RBOK_{tag}\ns_branch CH_RB_{tag}")
    a(f"s_mov_b32 s{sCnt}, 0")
    for k in range(8): a(f"v_min_u32 v{LB[0]+k}, 0xfffffffe, v{LB[0]+k}")
    a.label(f"CH_RB_{tag}")
    ST("B_w0")
    a.dsq = []
    r_ = [LB[0] + k for k in range(8)]
    a(f"s_waitcnt vmcnt({2 * NS - 1})")
    a(f"v_max3_u32 v10, v{r_[0]}, v{r_[1]}, v{r_[2]}")
    a(f"v_max_u32 v10, v10, v{r_[3]}")
    a.ds(f"ds_write_b128 v{vM16}, {vr(LB[0],4)} offset:{M_OFF + own[0]*1024}", "mw")
    a(f"s_waitcnt vmcnt({2 * NS - 2})")
    a(f"v_max3_u32 v10, v10, v{r_[4]}, v{r_[5]}")
    a(f"v_max3_u32 v10, v10, v{r_[6]}, v{r_[7]}")
    a.ds(f"ds_write_b128 v{vM16}, {vr(LB[1],4)} offset:{M_OFF + own[1]*1024}", "mw")
    a(f"v_cmp_eq_u32 vcc, -1, v10")
    a(f"s_cbranch_vccnz CH_RBRETRY_{tag}" if not P.get("free") else "s_nop 0")
    a.label(f"CH_RBOK_{tag}")
    if diag:
        ST("bdone")
        a("s_waitcnt lgkmcnt(0)")
        a(f"s_cmp_eq_u32 s{sStep}, 0")
        a(f"s_cbranch_scc1 CH_NOACC_{tag}")
        for k in range(8):
            a(f"s_sub_u32 s{sT0}, s{sTS+2*k+2}, s{sTS+2*k}")
            a(f"s_add_u32 s{sTS+22+k}, s{sTS+22+k}, s{sT0}")
        if P.get("trace"):
            a(f"s_cmp_eq_u32 s{sStep}, {P['trace']}")
            for k, dst in enumerate((83, 84, 85, 86, 87, 88, 89, 100, 101)):
                a(f"s_cselect_b32 s{dst}, s{sTS+2*k}, s{dst}")
        a.label(f"CH_NOACC_{tag}")
        if w == 3 and P.get("steptime"):
            a(f"s_memrealtime s[{sT2}:{sT2+1}]\ns_lshl_b32 s{sT0}, s{sH}, 6\ns_add_u32 s{sT0}, s{sT0}, s{sStep}\ns_lshl_b32 s{sT0}, s{sT0}, 2\ns_add_u32 s{sT0}, s{sT0}, {DBG + 0x40000}\ns_waitcnt lgkmcnt(0)")
            a(f"v_mov_b32 v10, s{sT2}\nv_mov_b32 v11, 0\nbuffer_store_dword v10, v11, {WS}, s{sT0} offen")
            a(f"s_memtime s[{sT2}:{sT2+1}]\ns_add_u32 s{sT0}, s{sT0}, 0x10000\ns_waitcnt lgkmcnt(0)\nv_mov_b32 v10, s{sT2}\nbuffer_store_dword v10, v11, {WS}, s{sT0} offen")
    ST("start")
    a.vmq = ["stale"] * (2 * NS - 2) + (["dbg", "dbg"] if diag and w == 3 and P.get("steptime") else [])
    S = Stream()
    vs = [(t, s) for s in own + rest for t in range(2)]
    def vsm(S, pre=None):
        t, s = vs.pop(0)
        return S.add(lambda: smf(vacc(t), Af(s), ar(wv(t, s), 8)), pre)
    gq = {}
    aread = lambda s: a.ds(f"ds_read_b128 {vr(Af(s),4)}, v{vM16} offset:{M_OFF + s*1024}", ("A", s))
    NB = P["pre_bar"]
    def bar_and_reads():
        a.wait_ds("mw")
        ST("mbar0")
        a("s_barrier")
        ST("mbar1")
        for s in rest[:P["a_burst"]]: aread(s)
    xread = lambda sg: [a.ds(f"ds_read_b64_tr_b16 {vr(vXF+4*sg+2*p,2)}, v{vXr} offset:{(sg&1)*512 + p*256 + (sg>>1)*128}", ("X", sg)) for p in range(2)]
    for i in range(16):
        t, s = seq[i]
        def pre(i=i, s=s):
            a.wait_ds(("A", s))
            if i in (4, 7, 10, 13): ST(f"q{i}")
            a.wait_ds(("ring", i))
        if i == 4:
            for n in range(4): vsm(S)
        gq[i] = S.add(lambda t=t, s=s, i=i: smf(q(t), Af(s), vr(ringreg(i), 8)), pre)
        S.add(lambda t=t, s=s: smf(k_(t), Af(s), vr(wk(t, s), 8)))
    GB = P["pre_bar"] - 1
    S.at(GB, bar_and_reads)
    kxread = lambda kt, s: a.ds(f"ds_read_b128 {vr(kx(kt,s),4)}, v{vKx} offset:{(kt*4+s)*1024}", "kx")
    def half_fill(i, h):
        t, s = seq[i]
        r = ringreg(i) + 4 * h; imm = WQ_SLOT[s >> 1] * 8192 + ((s & 1) * 2 + t) * 2048 + h * 1024
        a.ds(f"ds_read_b128 {vr(r,4)}, v{vRing} offset:{imm}", ("ring", i))
    reads = [(GB + 1, lambda s=s: aread(s)) for s in rest[P["a_burst"]:]]
    ringr = [(gq[i - NRING], lambda i=i, h=h: half_fill(i, h)) for i in range(NRING, 16) for h in range(2)]
    npre = P["r_pre"]
    for n in range(npre): S.at(max(ringr[n][0], min(n + 1, GB)), ringr[n][1])
    if "r" not in ABL[0]: reads += ringr[npre:]
    if "k" not in ABL[0]: reads += [(gq[10 + n // 2], lambda n=n: kxread(n >> 2, n & 3)) for n in range(P["kx_in"])]
    g = GB + 1
    for (e, f) in reads:
        g = max(g, e)
        S.at(min(g, 35), f); g += 1
    def post(t, r0):
        return [I(f"v_add_f32 v{q(t)}, v{q(t)}, v{q(t)+2}"), I(f"v_add_f32 v{q(t)+1}, v{q(t)+1}, v{q(t)+3}"),
                I(f"v_add_f32 v{k_(t)}, v{k_(t)}, v{k_(t)+2}"), I(f"v_add_f32 v{k_(t)+1}, v{k_(t)+1}, v{k_(t)+3}"),
                I(f"v_cvt_pk_bf16_f32 v{r0}, v{q(t)}, v{q(t)+1}"), I(f"v_cvt_pk_bf16_f32 v{r0+1}, v{k_(t)}, v{k_(t)+1}"),
                lambda: a.ds(f"ds_write_b64 v{vXw}, {vr(r0,2)} offset:{t*128}", "xw")]
    p0 = post(0, vACC + 6)
    g0 = gq[10] + 2
    S.at(gq[10], lambda: a.nop(2)); S.at(gq[10] + 1, lambda: a.nop(2))
    g0 += P.get("p0off", 0)
    if "p" not in ABL[0] and not P.get("pboth"):
        for n in range(6): S.at(g0 + n, p0[n])
        if not P.get("xw2"): S.at(g0 + 5 + P.get("p0w", 0), p0[6])
    vONE = vACC
    if not P.get("one_late") and not P.get("pboth"):
        for n in range(4): S.at(g0 + 6 + n, I(f"v_mov_b32 v{vONE+n}, s{sONE}"))
    late = {}
    if P["jobs"] == "S" and "j" not in ABL[0]:
        jobs = [lambda: a.vm(f"buffer_store_dwordx4 {vr(vVX,4)}, v{vM16}, {WS}, s{sVmPrev} offen sc1", "exp"), vxl[0], vxl[1],
                lambda: kx_dma(a, w, 2 * w), lambda: kx_dma(a, w, 2 * w + 1)]
        if P.get("kxA"): jobs = jobs[:3] + [None] * 2
        if w == 3: jobs.append(lambda: a.vm(f"buffer_store_dword v124, v125, {WS}, s{sMclr} offen {st}", "clr"))
        if hook and w == P.get("fw", 0): jobs.append(lambda: hook["flag"](a))
        if hook and w == 2: S.at(P["j0"] + P["jw"] * w + P["jstr"] // 2, lambda: hook["look"](a))
        for n, jb in enumerate(jobs):
            if jb is None: continue
            g = P["j0"] + P["jstr"] * n + P["jw"] * w
            if n == 5: g = P["j0"] + P["jstr"] * (2 if w else 1) + P["jw"] * w + P["jstr"] // 2
            if n == 6: g = P["j0"] + P["jstr"] + P["jw"] * w + P["jstr"] // 2
            if g < 36: S.at(g, jb)
            else: late.setdefault(g - 36 + 2, []).append(jb)
    S.at(gq[12], I(f"s_add_u32 s{sMpoll}, s{sRM}, {MBUF - MISC + w*2048}"))
    if 35 not in S.fill: S.at(35, lambda: a.nop(1))
    S.emit()
    ST("qkend")
    T0, T1, Tm = vACC + 8, vACC + 12, vT
    def score(S, T, sg):
        A = {T0: kx(0, sg), T1: kx(1, sg), Tm: vXF + 4 * sg}[T]
        return S.add(lambda: mf(T, A, vXF + 4 * sg, "0" if sg == 0 else vr(T, 4)), lambda: a.wait_ds(("X", sg)))
    p1 = post(1, vACC + 4)
    S = Stream()
    if P.get("pboth"):
        a(f"v_pk_add_f32 {vr(q(0),2)}, {vr(q(0),2)}, {vr(q(0)+2,2)}\nv_pk_add_f32 {vr(k_(0),2)}, {vr(k_(0),2)}, {vr(k_(0)+2,2)}")
        p0[4](); p0[5]()
        if not P.get("xw2"): p0[6]()
        a.nop(2 if P.get("xw2") else 1)
    else: a.nop(6)
    a(f"v_pk_add_f32 {vr(q(1),2)}, {vr(q(1),2)}, {vr(q(1)+2,2)}\nv_pk_add_f32 {vr(k_(1),2)}, {vr(k_(1),2)}, {vr(k_(1)+2,2)}")
    for n in range(4, 6): p1[n]()
    if P.get("xw2"): a.ds(f"ds_write2_b64 v{vXw}, {vr(vACC+6,2)}, {vr(vACC+4,2)} offset0:0 offset1:16", "xw")
    else: p1[6]()
    for n in range(P["v_pre"]):
        g = vsm(S)
        if P["kx_in"] + n < 8: S.at(g, lambda n=n: kxread((P["kx_in"] + n) >> 2, (P["kx_in"] + n) & 3))
    assert P["kx_in"] + P["v_pre"] >= 8
    def xbar1():
        a.wait_ds("xw")
        a("s_barrier"); ST("xbar"); xread(0)
    g = vsm(S, xbar1)
    S.at(g, lambda: xread(1))
    S.at(vsm(S), lambda: xread(2)); S.at(vsm(S), lambda: xread(3))
    ones = list(range(4)) if P.get("one_late") or P.get("pboth") else []
    while vs:
        gl = vsm(S)
        if ones: S.at(gl, I(f"v_mov_b32 v{vONE+ones.pop(0)}, s{sONE}"))
    for g, l_ in late.items():
        for jb in l_: S.at(g, jb)
    S.at(gl, lambda: (a.wait_vm("stale"), a.wait_ds("kx"), ST("vdone")))
    m, t_ = vT, 11
    gs = [score(S, T, sg) for T in (T0, T1, Tm) for sg in range(4)]
    va = [I(f"v_add_f32 v{vacc(t)+k}, v{vacc(t)+k}, v{vacc(t)+k+2}") for t in range(2) for k in range(2)]
    for n in range(4): S.at(gs[n], lambda: a.nop(1))
    S.at(gs[4], va[0]); S.at(gs[4], va[1]); S.at(gs[5], va[2]); S.at(gs[5], va[3])
    S.at(gs[6], I(f"v_cvt_pk_bf16_f32 v{vVM}, v{vacc(0)}, v{vacc(0)+1}"))
    S.at(gs[7], I(f"v_cvt_pk_bf16_f32 v{vVM+1}, v{vacc(1)}, v{vacc(1)+1}"))
    S.at(gl, I(f"s_cmp_ge_u32 s{sStep}, 63\ns_cbranch_scc1 CH_DONE_{tag}"))
    S.at(gs[8], I(f"v_max3_f32 v10, v{T0}, v{T0+1}, v{T0+2}\nv_mov_b32 v{vPM+1}, 0\ns_nop 1"))
    S.at(gs[9], I(f"v_max_f32 v10, v10, v{T0+3}\nv_mov_b32 v{vPM+2}, 0\ns_nop 1"))
    S.at(gs[10], I(f"v_max3_f32 v10, v10, v{T1}, v{T1+1}"))
    S.at(gs[11], I(f"v_max3_f32 v10, v10, v{T1+2}, v{T1+3}"))
    S.emit()
    ST("scores")
    oacc = lambda d: vRING + 4 * d
    zq = list(range(16))
    z = lambda n: [a(f"v_mov_b32 v{vRING+zq.pop(0)}, 0") for _ in range(n)]
    z(7)
    a(f"v_max3_f32 v{m}, v10, v{Tm+2}, v{Tm+3}")
    a(f"v_mov_b32 v{t_}, v{m}")
    z(2)
    a(f"v_permlane32_swap_b32 v{m}, v{t_}")
    a(f"v_max_f32 v{m}, v{m}, v{t_}")
    a(f"v_mov_b32 v{t_}, v{m}")
    z(2)
    a(f"v_permlane16_swap_b32 v{m}, v{t_}")
    a(f"v_max_f32 v{m}, v{m}, v{t_}")
    a(f"v_mul_f32 v10, s{sC}, v{m}")
    pf = lambda r: a(f"v_pk_fma_f32 {vr(r,2)}, {vr(r,2)}, s[{sC}:{sC+1}], v[10:11] op_sel_hi:[1,1,0] neg_lo:[0,0,1] neg_hi:[0,0,1]")
    ex = lambda r: a(f"v_exp_f32 v{r}, v{r}")
    aX, aY, aL = vA, vA + 4, vA + 24
    vPX = vACC + 4
    pf(Tm + 2); pf(T0); ex(Tm + 2); ex(Tm + 3); pf(T0 + 2); pf(T1); pf(T1 + 2)
    a(f"v_cvt_pk_bf16_f32 v{vPM}, v{Tm+2}, v{Tm+3}")
    a(f"v_cvt_pk_bf16_f32 v{vPM+3}, v{Tm+2}, v{Tm+3}")
    ex(T0); ex(T0 + 1)
    mf16(aL, vONE, vPM, "0")
    ex(T0 + 2); ex(T0 + 3)
    mf16(aX, vVM, vPM, "0")
    ex(T1); ex(T1 + 1)
    mf16(aY, vVM, vPM + 2, "0")
    ex(T1 + 2); ex(T1 + 3)
    a(f"v_cvt_pk_bf16_f32 v{vPX}, v{T0}, v{T0+1}")
    a(f"v_cvt_pk_bf16_f32 v{vPX+1}, v{T0+2}, v{T0+3}")
    a(f"v_cvt_pk_bf16_f32 v{vPX+2}, v{T1}, v{T1+1}")
    a(f"v_cvt_pk_bf16_f32 v{vPX+3}, v{T1+2}, v{T1+3}")
    a.wait_vm("vx")
    a.nop(2 if "j" in ABL[0] else 1)
    mf(aL, vONE, vPX, vr(aL, 4)); z(2)
    mf(aX, vVX, vPX, vr(aX, 4)); z(2)
    mf(aY, vVX + 4, vPX, vr(aY, 4))
    ST("pv")
    z(1); a.nop(1)
    a(f"v_rcp_f32 v10, v{aL}")
    a.nop(3)
    vOW = vA + 8
    for r in range(4):
        if r == 2: a.nop(1)
        a(f"v_pk_mul_f32 {vr(aX+2*r,2)}, {vr(aX+2*r,2)}, v[10:11] op_sel_hi:[1,0]")
    for r in range(4):
        a(f"v_cvt_pk_bf16_f32 v{vOW+r}, v{aX+2*r}, v{aX+2*r+1}")
    a(f"s_not_b64 exec, s[{sB1M}:{sB1M+1}]")
    a.ds(f"ds_write_b128 v{vOr}, {vr(vOW,4)} offset:{w*512}", "ow")
    a("s_mov_b64 exec, -1")
    vOF = lambda s: vA + 12 + 4 * s
    a.nop(1)
    for r in range(4):
        a(f"v_mov_b32_dpp v{vOF(w)+r}, v{vOW+r} quad_perm:[0,1,0,1] row_mask:0xf bank_mask:0xf")
    a.nop(2)
    assert not zq
    S = Stream()
    orest = [(w + 1 + k) % 4 for k in range(3)]
    def obar():
        a.wait_ds_all()
        a("s_barrier")
        ST("obar")
        for s in orest: a.ds(f"ds_read_b128 {vr(vOF(s),4)}, v{vOr} offset:{s*512}", ("O", s))
    XW = vXF + 4 * w
    sel = lambda d, f, dst=vVX: f"v_cndmask_b32 v{dst+d}, v{f}, v{XW+d}, s[{sB1M}:{sB1M+1}]"
    dpp = lambda d: f"v_mov_b32_dpp v{10+d}, v{vVM+d} quad_perm:[2,3,2,3] row_mask:0xf bank_mask:0xf"
    pack = [I(dpp(0) + "\n" + sel(0, vVM)), I(dpp(1) + "\n" + sel(1, vVM + 1)), I(sel(2, 10)), I(sel(3, 11))]
    for d in range(4):
        g = S.add(lambda d=d: smf(oacc(d), vOF(w), ar(wo(d, w), 8)), obar if d == P["o_pre"] else None)
        S.at(g, pack[d])
    if P["o_pre"] == 4: S.at(g, obar)
    vST = vRING + 16
    go = [S.add(lambda d=d, s=s: smf(oacc(d), vOF(s), ar(wo(d, s), 8)), lambda s=s: a.wait_ds(("O", s))) for d in range(4) for s in orest]
    cv = lambda d, k: I(f"v_cvt_pk_bf16_f32 v{vST+2*d+k}, v{oacc(d)+2*k}, v{oacc(d)+2*k+1}")
    tg = lambda d: I(f"v_and_or_b32 v{vST+2*d}, v{vST+2*d}, -2, s{sTag}")
    def pst(d):
        if d: a(f"s_add_u32 s{sT0}, s{sPst}, {(d & 1) * 8192 + (d >> 1) * 4096}")
        a.vm(f"buffer_store_dwordx2 {vr(vST+2*d,2)}, v{vPst}, {WS}, s{sT0 if d else sPst} offen {st}", "pst")
    for d in range(3):
        g = go[3 * d + 2]
        if P.get("st4", 0) == 0:
            S.at(g + 1, lambda: a.nop(7)); S.at(g + 1, cv(d, 0)); S.at(g + 2, cv(d, 1)); S.at(g + 2, tg(d)); S.at(g + 2, lambda d=d: pst(d))
        else:
            S.at(g + 1, lambda: a.nop(3)); S.at(g + 2, lambda: a.nop(3)); S.at(g + 2, cv(d, 0)); S.at(g + 3, cv(d, 1)); S.at(g + 3, tg(d)); S.at(g + 3, lambda d=d: pst(d))
    S.emit()
    a.nop(8 if P.get("st4", 0) == 0 else 5)
    cv(3, 0)(); cv(3, 1)(); tg(3)(); pst(3)
    ST("opend")
    LA = [Af(rest[k]) for k in range(4)]
    vRA, vRD = Af(rest[4]), Af(rest[5])
    def issueA():
        for k in range(4): a(f"buffer_load_dwordx4 {vr(LA[k],4)}, v{vM16}, {WS}, s{sPld} offen offset:{k*1024} sc1")
    def adv():
        a(f"s_mov_b32 s{sCnt}, 0\ns_mov_b32 s{sVmPrev}, s{sKm}")
        advance(a, w)
        if hook: hook["ready"](a, w, tag, False)
    def chores():
        zero_acc()
        a(f"v_xor_b32 v{vKx}, 8192, v{vKx}\ns_xor_b32 s{sKb}, s{sKb}, 8192")
    a(f"s_mov_b32 s{sCnt}, 0")
    if w < 2:
        a.ds(f"ds_read_b128 {vr(vRA,4)}, v{vM16} offset:{RA_OFF}", "ra")
        if w == 1: chores()
        a.nop(P["dlyA"][w])
        issueA()
        ST("issA")
        if w == 0: chores()
        for i in range(P["nrA"]): ring_fill(a, w, i)
        DA = P["depA"][w]
        for _ in range(DA - 1):
            a.nop(P["gapA"]); issueA()
        a.wait_ds("ra")
        a.label(f"CH_RA_{tag}")
        ny = 4 * (DA - 1)
        for k in range(4):
            a(f"s_waitcnt vmcnt({ny + 3 - k})")
            if k == 3: ST("A_w2")
            a(f"v_bitop3_b32 v{11 if k else 10}, v{LA[k]}, v{LA[k]+2}, s{sTag} bitop3:0x7e")
            mf(vRD, LA[k], vRA, "0" if k == 0 else vr(vRD, 4))
            if 0 < k < 3: a("v_or_b32 v10, v10, v11")
        a(f"v_bitop3_b32 v10, v10, v11, 1 bitop3:0xa8\nv_cmp_ne_u32 vcc, 0, v10")
        a(f"s_cbranch_vccnz CH_RARETRY_{tag}" if not P.get("free") else "s_nop 0")
        a.label(f"CH_RAOK_{tag}")
        ST("A_ok")
        a.nop(5)
        a(f"v_permlane32_swap_b32 v{vRD}, v{vRD+2}")
        a(f"v_permlane32_swap_b32 v{vRD+1}, v{vRD+3}")
        a(f"s_mov_b64 exec, s[{sLO8}:{sLO8+1}]")
        a(f"v_pk_add_f32 {vr(vRD,2)}, {vr(vRD,2)}, {vr(vRD+2,2)}")
        a(f"v_cvt_pk_bf16_f32 v{vRD}, v{vRD}, v{vRD+1}")
        a(f"buffer_store_dword v{vRD}, v{vMpub}, {WS}, s{sMpub} offen {st}")
        a("s_mov_b64 exec, -1")
        ST("pub")
        if w == 0:
            for i in range(P["nrA"], NRING): ring_fill(a, w, i)
    else:
        chores()
        if P.get("kxA"):
            adv()
            for i in range(4): kx_dma(a, w, 4 * (w - 2) + i)
        for i in range(NRING): ring_fill(a, w, i)
    if w == 0 or (w > 1 and not P.get("kxA")): adv()
    a("s_barrier")
    a.nop(P["dlyB"])
    loadB(0); loadB(1)
    ST("issB")
    if w == 1: adv()
    for _ in range(NS - 1):
        a.nop(P["gapB"] if w != 1 else max(0, P["gapB"] - P["w1c"])); loadB(0); loadB(1)
    if w == 1:
        for i in range(P["nrA"], NRING): ring_fill(a, w, i)
    a.wait_ds_all()
    a.vmq = []
    a(f"s_branch CH_RB_{tag}")
    if w < 2:
        a.label(f"CH_RARETRY_{tag}")
        issueA()
        a(f"s_add_u32 s{sCnt}, s{sCnt}, 1")
        if diag: a(f"s_add_u32 s{sTS+20}, s{sTS+20}, 1")
        a(f"s_cmp_gt_u32 s{sCnt}, {P['bound']}")
        a(f"s_cbranch_scc1 CH_RAOK_{tag}")
        a(f"s_branch CH_RA_{tag}")
    retryB()
    a.label(f"CH_DONE_{tag}")
    a.wait_ds_all(True)
    a.nop(5)
    for f in va: f()
    a(f"v_cvt_pk_bf16_f32 v{vVM}, v{vacc(0)}, v{vacc(0)+1}\nv_cvt_pk_bf16_f32 v{vVM+1}, v{vacc(1)}, v{vacc(1)+1}")
    a.nop(2)
    a(dpp(0)); a(dpp(1))
    for d, f in enumerate((vVM, vVM + 1, 10, 11)): a(sel(d, f, T0))
    a(f"buffer_store_dwordx4 {vr(T0,4)}, v{vM16}, {WS}, s{sKm} offen sc1")
    a.dsq = []; a.vmq = []
    if hook: hook["done"](a, w)
```

```python
from asm import *
from layout import *
import math, struct

sWS = 8
WS = f"s[{sWS}:{sWS+3}]"
DB = "s[4:7]"
sW = 17
sRole = 16
sDead = 37
sA, sB, sC_, sD = 32, 33, 34, 35
POLL_BOUND = 1 << 16
SLEEP = [2]
QLATE = [0]
WVERD = [0]
EARLY = [1]
OUTF = ['']
HOLD = [0]
PREFETCH = [(48, 50, 58, 52)]

def fbits(x): return struct.unpack("<I", struct.pack("<f", x))[0]

def srd(a, d, ka, size):
    a(f"s_load_dwordx2 s[{d}:{d+1}], s[0:1], {KA[ka]}\ns_mov_b32 s{d+2}, {size}\ns_mov_b32 s{d+3}, 0x20000")

def poll_ge(a, load, vals, target, name, sleep=1, vtmp=None):
    L = a.newlabel("POLL_" + name); E = L + "_E"
    a(f"s_mov_b32 s{sD}, 0")
    a.label(L)
    a(f"s_cmp_lg_u32 s{sDead}, 0\ns_cbranch_scc1 {E}")
    a(load)
    a(f"s_add_u32 s{sD}, s{sD}, 1")
    a(f"s_cmp_gt_u32 s{sD}, {POLL_BOUND}\ns_cselect_b32 s{sDead}, 1, 0")
    a("s_waitcnt vmcnt(0)")
    v = vals[0]
    for k in range(1, len(vals)):
        a(f"v_min_u32 v{vtmp}, v{v}, v{vals[k]}"); v = vtmp
    a(f"v_cmp_gt_u32 vcc, {target}, v{v}")
    a(f"s_cbranch_vccz {E}")
    if sleep: a(f"s_sleep {sleep}")
    a(f"s_branch {L}")
    a.label(E)
    a.vmq = []

def flag_store(a, soff, sval, v0=2):
    a(f"v_mov_b32 v{v0}, {sval}\ns_mov_b64 exec, 1")
    a.vm(f"buffer_store_dword v{v0}, off, {WS}, {soff} sc1", "flag")
    a("s_mov_b64 exec, -1")

def layernorm(a, sTask, diag=False, local=None, after_loads=None, after_sum=None):
    srd(a, 60, "x", 2048 * 1024)
    a(f"""
    v_and_b32 v8, 7, v0
    v_lshrrev_b32 v9, 3, v0
    v_lshlrev_b32 v14, 10, v8
    v_lshl_add_u32 v14, v9, 4, v14
    s_lshl_b32 s27, s{sTask}, 13
    s_waitcnt lgkmcnt(0)
    """)
    R, F = 16, 48
    for s in range(8):
        a.vm(f"buffer_load_dwordx4 {vr(R+4*s,4)}, v14, s[60:63], s27 offen offset:{s*128}", ("ln", s))
    a(f"""
    v_lshrrev_b32 v15, 2, v9
    v_lshlrev_b32 v15, 11, v15
    v_and_b32 v9, 3, v9
    v_lshl_add_u32 v15, v9, 8, v15
    v_lshl_add_u32 v15, v8, 4, v15
    s_lshr_b32 s27, s{sTask}, 2
    s_lshl_b32 s27, s27, 15
    s_bfe_u32 s28, s{sTask}, 0x10001
    s_lshl_b32 s28, s28, 10
    s_add_u32 s27, s27, s28
    s_and_b32 s28, s{sTask}, 1
    s_lshl_b32 s28, s28, 7
    s_add_u32 s27, s27, s28
    s_add_u32 s27, s27, {XN}
    v_mov_b32 v10, 0
    v_mov_b32 v11, 0
    """)
    if after_loads: after_loads()
    for s in range(8):
        a.wait_vm(("ln", s))
        for k in range(4):
            r = R + 4 * s + k; f = F + 8 * s + 2 * k
            a(f"v_lshlrev_b32 v{f}, 16, v{r}\nv_and_b32 v{f+1}, 0xffff0000, v{r}")
            a(f"v_pk_add_f32 v[10:11], v[10:11], {vr(f,2)}")
    if diag: a("s_memrealtime s[72:73]")
    if after_sum: after_sum()
    def allred():
        a("v_add_f32 v10, v10, v11\ns_nop 1\nv_add_f32_dpp v10, v10, v10 row_ror:8 row_mask:0xf bank_mask:0xf")
        for op in ("v_permlane32_swap_b32", "v_permlane16_swap_b32"):
            a(f"v_mov_b32 v11, v10\ns_nop 1\n{op} v10, v11\nv_add_f32 v10, v10, v11")
    allred()
    a(f"v_mul_f32 v12, {fbits(1/512):#x}, v10\nv_mov_b32 v10, 0\nv_mov_b32 v11, 0")
    for k in range(32):
        f = F + 2 * k
        a(f"v_pk_add_f32 {vr(f,2)}, {vr(f,2)}, v[12:13] op_sel_hi:[1,0] neg_lo:[0,1] neg_hi:[0,1]")
        a(f"v_pk_fma_f32 v[10:11], {vr(f,2)}, {vr(f,2)}, v[10:11]")
    allred()
    a(f"v_mov_b32 v12, {fbits(1e-5):#x}\nv_fmac_f32 v12, {fbits(1/512):#x}, v10\nv_rsq_f32 v12, v12\ns_nop 0")
    for s in range(8):
        for k in range(4):
            f = F + 8 * s + 2 * k
            a(f"v_pk_mul_f32 {vr(f,2)}, {vr(f,2)}, v[12:13] op_sel_hi:[1,0]")
            a(f"v_cvt_pk_bf16_f32 v{R+4*s+k}, v{f}, v{f+1}")
        if local is None:
            a.vm(f"buffer_store_dwordx4 {vr(R+4*s,4)}, v15, {WS}, s27 offen sc1", "lnst")
            a(f"s_add_u32 s27, s27, 4096")
        else:
            if s == 0: a(f"s_and_b32 s27, s27, 0x7fff\ns_add_u32 s27, s27, {local}\nv_add_u32 v15, s27, v15")
            a.ds(f"ds_write_b128 v15, {vr(R+4*s,4)} offset:{s*4096}")
    if diag: a("s_memrealtime s[74:75]")

G1_XBUF = 98304
def gemm1(a, wait_init, verdict, sInit, diag=False):
    sSl, sJ, sKind, sRow, sOut, sN, sXs, sFl = 18, 19, 20, 21, 22, 23, 24, 25
    sSh, sXstep, sOstep, sEnd = 44, 45, 46, 47
    a(f"""
    s_lshr_b32 s{sSl}, s{sRole}, 2
    s_and_b32 s{sJ}, s{sRole}, 3
    s_mov_b32 s{sSh}, 0
    s_cmp_lt_u32 s{sRole}, 128
    s_cbranch_scc1 G1_MAP
    s_add_u32 s{sSl}, s{sSl}, 8
    s_cmp_ge_u32 s{sRole}, 160
    s_cbranch_scc1 G1_MAP
    s_lshr_b32 s{sSl}, s{sRole}, 1
    s_sub_u32 s{sSl}, s{sSl}, 32
    s_and_b32 s{sJ}, s{sRole}, 1
    s_mov_b32 s{sSh}, 1
    G1_MAP:
    s_lshr_b32 s{sXstep}, {4*32768}, s{sSh}
    s_sub_u32 s{sXstep}, s{sXstep}, {7*1024}
    s_lshr_b32 s{sOstep}, {4*32*8192}, s{sSh}
    s_lshl_b32 s{sEnd}, 16, s{sSh}
    s_lshr_b32 s{sKind}, s{sSl}, 4            ; 0 K, 1 V, 2 Q, 3 FFN1
    s_load_dwordx2 s[48:49], s[0:1], {KA['Wk']}
    s_load_dwordx2 s[50:51], s[0:1], {KA['Wv']}
    s_load_dwordx2 s[52:53], s[0:1], {KA['Wq']}
    s_load_dwordx2 s[54:55], s[0:1], {KA['w1']}
    s_load_dwordx2 s[56:57], s[0:1], {KA['b1']}
    s_load_dwordx2 s[58:59], s[0:1], {KA['Wo']}
    s_waitcnt lgkmcnt(0)
    s_mov_b32 s12, s48
    s_mov_b32 s13, s49
    s_mov_b32 s14, {512*4096*2}
    s_mov_b32 s{sRow}, 8192
    s_cmp_eq_u32 s{sKind}, 1
    s_cselect_b32 s12, s50, s12
    s_cselect_b32 s13, s51, s13
    s_cmp_eq_u32 s{sKind}, 2
    s_cselect_b32 s12, s52, s12
    s_cselect_b32 s13, s53, s13
    s_cmp_eq_u32 s{sKind}, 3
    s_cselect_b32 s12, s54, s12
    s_cselect_b32 s13, s55, s13
    s_cselect_b32 s14, {512*1792*2}, s14
    s_cselect_b32 s{sRow}, 3584, s{sRow}
    s_mov_b32 s15, 0x20000
    v_and_b32 v240, 15, v0
    v_lshrrev_b32 v241, 4, v0
    v_and_b32 v242, 3, v0
    v_bfe_u32 v243, v0, 2, 2
    v_lshrrev_b32 v4, 3, v0
    v_mul_lo_u32 v4, v4, s{sRow}
    v_and_b32 v5, 7, v0
    v_bfe_u32 v6, v0, 4, 1
    v_lshlrev_b32 v6, 1, v6
    v_xor_b32 v5, v5, v6
    v_xor_b32 v6, 4, v5
    s_and_b32 s{sA}, s{sSl}, 15
    s_lshl_b32 s{sA}, s{sA}, 9
    s_lshl_b32 s{sB}, s{sW}, 7
    s_add_u32 s{sA}, s{sA}, s{sB}
    v_add_u32 v4, s{sA}, v4
    v_lshl_add_u32 v244, v5, 4, v4
    v_lshl_add_u32 v245, v6, 4, v4
    v_lshl_add_u32 v4, v241, 3, v243
    v_lshlrev_b32 v4, 7, v4
    v_lshl_add_u32 v4, v242, 3, v4
    s_mul_i32 s{sA}, s{sW}, 24576
    v_add_u32 v4, s{sA}, v4
    v_lshrrev_b32 v5, 1, v243
    v_and_b32 v6, 1, v241
    v_lshl_add_u32 v5, v6, 1, v5
    """)
    for f in range(4):
        a(f"v_xor_b32 v6, {f}, v5\nv_lshl_add_u32 v{246+f}, v6, 5, v4")
    a(f"s_lshl_b32 s{sC_}, s{sRow}, 3\ns_mov_b32 s{sN}, 0")
    def issue(c):
        for i in range(8):
            a(f"s_add_u32 m0, s{sA}, {(c%3)*8192 + i*1024}\ns_nop 0")
            a.vm(f"buffer_load_dwordx4 v{244 + (i&1)}, s[12:15], s{sN} offen lds", ("w", c))
            a(f"s_add_u32 s{sN}, s{sN}, s{sC_}")
    def prefetch():
        if not PREFETCH[0]: return
        a(f"s_lshl_b32 s{sB}, s{sRole}, 2\ns_add_u32 s{sB}, s{sB}, s{sW}\ns_lshl_b32 s{sB}, s{sB}, 12\ns_add_u32 s{sD}, s{sB}, {896*4096}")
        a("v_lshlrev_b32 v13, 6, v0\ns_mov_b32 s42, 0x400000\ns_mov_b32 s43, 0x20000")
        for p in PREFETCH[0]:
            a(f"s_mov_b32 s40, s{p}\ns_mov_b32 s41, s{p+1}")
            a.vm(f"buffer_load_dword v252, v13, s[40:43], s{sB} offen", "pf")
            a.vm(f"buffer_load_dword v252, v13, s[40:43], s{sD} offen", "pf")
    sTask, sHave = 26, 31
    a(f"""
    s_mov_b32 s{sHave}, 0
    s_cmp_lt_u32 s{sRole}, 192
    s_cbranch_scc1 G1_LN0
    s_mul_i32 s{sTask}, s{sRole}, 3
    s_add_u32 s{sTask}, s{sTask}, s{sW}
    s_sub_u32 s{sTask}, s{sTask}, {192*3 - 160}
    s_cmp_lt_u32 s{sW}, 3
    s_cbranch_scc1 G1_LN
    s_branch G1_NOLN
    G1_LN0:
    s_and_b32 s{sB}, s{sRole}, 3
    s_cmp_lg_u32 s{sW}, s{sB}
    s_cbranch_scc1 G1_NOLN
    s_mov_b32 s{sTask}, s{sRole}
    s_cmp_lt_u32 s{sRole}, 144
    s_cbranch_scc1 G1_LN
    s_sub_u32 s{sTask}, s{sRole}, 16
    s_and_b32 s{sB}, s{sRole}, 0xf0
    s_cmp_lg_u32 s{sB}, 160
    s_cbranch_scc1 G1_NOLN
    G1_LN:
    """)
    layernorm(a, sTask, diag, None, prefetch)
    a(f"s_mov_b32 s{sHave}, 1\ns_branch G1_LN1")
    a.label("G1_NOLN")
    prefetch()
    a.label("G1_LN1")
    def peek():
        a(f"v_mov_b32 v2, {D_INIT}")
        a.vm(f"buffer_load_dword v251, v2, {DB}, 0 offen sc1", "peek")
    def report():
        L = a.newlabel("LNREP")
        a(f"s_cmp_eq_u32 s{sHave}, 0\ns_cbranch_scc1 {L}")
        a(f"v_readfirstlane_b32 s{sB}, v251\ns_nop 3\ns_cmp_ge_u32 s{sB}, {2*NINIT}\ns_cselect_b32 s{sInit}, 1, s{sInit}")
        keep = list(a.vmq)
        wait_init(a, 2)
        if diag: a("s_memrealtime s[76:77]")
        a(f"s_lshl_b32 s{sB}, s{sTask}, 7\ns_add_u32 s{sB}, s{sB}, {LNF}")
        flag_store(a, f"s{sB}", 1, 2)
        a.vmq = keep
        a.label(L)
    a(f"s_cmp_ge_u32 s{sRole}, 188\ns_cbranch_scc1 G1_IDLE")
    if QLATE[0]:
        a(f"s_cmp_lt_u32 s{sKind}, 2\ns_cbranch_scc1 G1_GO")
        peek(); a.wait_vm_all(True); report(); a(f"s_mov_b32 s{sHave}, 0")
        verdict(a)
        wait_init(a, 2)
        a(f"s_and_b32 s{sB}, s{sRole}, 63\ns_lshl_b32 s{sB}, s{sB}, 7\ns_add_u32 s{sB}, s{sB}, {G1F}")
        poll_ge(a, f"buffer_load_dword v2, off, {WS}, s{sB} sc1", [2], QLATE[0], "QL", sleep=16)
        a.label("G1_GO")
    a.vmq = []
    a(f"s_lshl_b32 s30, s{sJ}, 2\ns_add_u32 s30, s30, s{sW}")
    layernorm(a, 30, False, G1_XBUF, lambda: [peek()] + [issue(c) for c in range(3)], lambda: (a.wait_vm("peek"), report()))
    W = lambda f, s: 4 * (f * 16 + s)
    for c in range(8):
        a.wait_vm(("w", c))
        if c == WVERD[0]: verdict(a)
        for s_ in range(2):
            for f in range(4):
                for p in range(2):
                    a.ds(f"ds_read_b64_tr_b16 {ar(W(f, 2*c+s_) + 2*p, 2)}, v{246+f} offset:{(c%3)*8192 + (32*s_+4*p)*128}")
        a.wait_ds_all()
        if c + 3 < 8: issue(c + 3)
    if diag: a("s_memrealtime s[64:65]")
    vBias = 112
    for r in range(16): a(f"v_mov_b32 v{vBias+r}, 0")
    a(f"s_cmp_lg_u32 s{sKind}, 3\ns_cbranch_scc1 G1_NOBIAS")
    a(f"""
    s_mov_b32 s12, s56
    s_mov_b32 s13, s57
    s_mov_b32 s14, 3584
    s_and_b32 s{sA}, s{sSl}, 15
    s_lshl_b32 s{sA}, s{sA}, 9
    s_lshl_b32 s{sB}, s{sW}, 7
    s_add_u32 s{sA}, s{sA}, s{sB}
    v_lshlrev_b32 v4, 3, v241
    """)
    for f in range(4): a(f"buffer_load_dwordx2 {vr(8+2*f,2)}, v4, s[12:15], s{sA} offen offset:{f*32}")
    a("s_waitcnt vmcnt(0)")
    for f in range(4):
        for k in range(2):
            a(f"v_lshlrev_b32 v{vBias+4*f+2*k}, 16, v{8+2*f+k}\nv_and_b32 v{vBias+4*f+2*k+1}, 0xffff0000, v{8+2*f+k}")
    a.label("G1_NOBIAS")
    if diag: a("s_memtime s[96:97]")
    a(f"""
    v_lshlrev_b32 v4, 4, v0
    v_add_u32 v5, {G1_XBUF}, v4
    s_lshl_b32 s{sXs}, s{sJ}, 15
    s_lshl_b32 s{sA}, s{sW}, 13
    s_add_u32 s{sXs}, s{sXs}, s{sA}
    s_add_u32 s{sXs}, s{sXs}, {XN}
    s_lshl_b32 s{sFl}, s{sRole}, 7
    s_add_u32 s{sFl}, s{sFl}, {G1F}
    s_and_b32 s{sA}, s{sSl}, 15
    s_lshl_b32 s{sA}, s{sA}, 1
    s_lshr_b32 s{sB}, s{sW}, 1
    s_add_u32 s{sA}, s{sA}, s{sB}             ; head
    s_lshl_b32 s{sB}, s{sJ}, 5
    s_add_u32 s{sA}, s{sA}, s{sB}
    s_lshl_b32 s{sOut}, s{sA}, 13
    s_and_b32 s{sB}, s{sW}, 1
    """)
    sLb = 26
    a(f"s_lshl_b32 s{sLb}, s{sW}, 13")
    def xdma1(par, i):
        a(f"s_add_u32 m0, s{sLb}, {G1_XBUF + par*32768 + i*1024}")
        a(f"s_add_u32 s{sXs}, s{sXs}, {1024 if i else 's%d' % sXstep}")
        a.vm(f"buffer_load_dwordx4 v4, {WS}, s{sXs} offen lds", "x")
    a(f"s_add_u32 s{sXs}, s{sXs}, {7*1024}")
    a(f"s_cmp_eq_u32 s{sKind}, 1\ns_cbranch_scc1 G1_V\ns_cmp_eq_u32 s{sKind}, 3\ns_cbranch_scc1 G1_H")
    for kind in ("QK", "V", "H"):
        a.label(f"G1_{kind}")
        if kind == "QK":
            a(f"s_lshl_b32 s{sB}, s{sB}, 10\ns_add_u32 s{sOut}, s{sOut}, s{sB}")
            a(f"s_mov_b32 s{sB}, {QIMG}\ns_cmp_eq_u32 s{sKind}, 0\ns_cselect_b32 s{sB}, {KIMG}, s{sB}\ns_add_u32 s{sOut}, s{sOut}, s{sB}")
            step = f"s{sOstep}"
        elif kind == "V":
            a(f"s_lshl_b32 s{sB}, s{sB}, 12\ns_add_u32 s{sOut}, s{sOut}, s{sB}\ns_add_u32 s{sOut}, s{sOut}, {VIMG}")
            step = 4 * 32 * 8192
        else:
            a(f"s_and_b32 s{sA}, s{sSl}, 15\ns_lshl_b32 s{sA}, s{sA}, 2\ns_add_u32 s{sA}, s{sA}, s{sW}\ns_lshl_b32 s{sA}, s{sA}, 11")
            a(f"s_mul_i32 s{sB}, s{sJ}, {2*56*1024}\ns_add_u32 s{sOut}, s{sA}, s{sB}\ns_add_u32 s{sOut}, s{sOut}, {HIMG}")
            step = 4 * 2 * 56 * 1024
        acc = lambda par, mt, f: 128 + par * 32 + (mt * 4 + f) * 4
        vX = lambda s, mt: 16 + ((s % 3) * 2 + mt) * 4
        vS = 48
        def epilogue(par):
            jobs = []
            for n in range(4):
                if kind == "QK": mt, t = n >> 1, n & 1; srcs = (acc(par, mt, t), acc(par, mt, t + 2)); off = mt * 4096 + t * 2048
                elif kind == "V": srcs = (acc(par, 0, n), acc(par, 1, n)); off = n * 1024
                else: mt, t = n >> 1, n & 1; srcs = (acc(par, mt, 2 * t), acc(par, mt, 2 * t + 1)); off = mt * 56 * 1024 + t * 1024
                d = vS + 4 * n
                for h_ in range(2):
                    for k in range(2):
                        r = srcs[h_] + 2 * k
                        if kind == "H":
                            jobs.append(lambda r=r: a(f"v_max_f32 v{r}, 0, v{r}\nv_max_f32 v{r+1}, 0, v{r+1}"))
                            jobs.append(lambda r=r: a(f"v_mul_f32 v{r}, v{r}, v{r}\nv_mul_f32 v{r+1}, v{r+1}, v{r+1}"))
                            jobs.append(lambda r=r, d=d, h_=h_, k=k: a(f"v_cvt_pk_bf16_f32 v{d+2*h_+k}, v{r}, v{r+1}"))
                        else:
                            jobs.append(lambda r=r, d=d, h_=h_, k=k: a(f"v_cvt_pk_bf16_f32 v{d+2*h_+k}, v{r}, v{r+1}"))
                def st(d=d, off=off):
                    a(f"s_add_u32 s{sA}, s{sOut}, {off}")
                    a.vm(f"buffer_store_dwordx4 {vr(d,4)}, v4, {WS}, s{sA} offen sc1", "st")
                jobs.append(st)
            jobs.append(lambda: a(f"s_add_u32 s{sOut}, s{sOut}, {step}"))
            return jobs
        def publish(val):
            L = a.newlabel("G1F")
            a(f"s_cmp_lg_u32 s{sW}, 0\ns_cbranch_scc1 {L}")
            wait_init(a, 8)
            if val == 1: a(f"s_lshr_b32 s{sA}, 1, s{sSh}"); val = f"s{sA}"
            if val is None: a(f"s_sub_u32 s{sA}, s{sN}, 2\ns_max_u32 s{sA}, s{sA}, 1\ns_lshr_b32 s{sA}, s{sA}, s{sSh}"); val = f"s{sA}"
            flag_store(a, f"s{sFl}", val, 8)
            a.label(L)
        def segment(par, n):
            a("s_waitcnt vmcnt(4)" if n == 2 else "s_waitcnt vmcnt(0) lgkmcnt(0)"); a.vmq = []; a.dsq = []
            a("s_barrier")
            rd = lambda s: [a.ds(f"ds_read_b128 {vr(vX(s,mt),4)}, v5 offset:{par*32768 + s*2048 + mt*1024}", ("x", s)) for mt in range(2)]
            rd(0); rd(1)
            if n == 1: publish(1)
            if n == 2: publish(None)
            jobs = epilogue(1 - par) if n == 2 else []
            for s in range(16):
                if s + 2 < 16: rd(s + 2)
                a.wait_ds(("x", s))
                for mt in range(2):
                    for f in range(4):
                        d = acc(par, mt, f)
                        c = (vr(vBias + 4 * f, 4) if kind == "H" else "0") if s == 0 else vr(d, 4)
                        if kind == "V": a(f"v_mfma_f32_16x16x32_bf16 {vr(d,4)}, {vr(vX(s,mt),4)}, {ar(W(f,s),4)}, {c}")
                        else: a(f"v_mfma_f32_16x16x32_bf16 {vr(d,4)}, {ar(W(f,s),4)}, {vr(vX(s,mt),4)}, {c}")
                        if n and s < 8 and mt == 0 and f == 3: xdma1(1 - par, s)
                        elif jobs and s >= 8: jobs.pop(0)()
            assert not jobs
            if n == 1: a("s_waitcnt vmcnt(0)")
            a(f"s_add_u32 s{sN}, s{sN}, 1")
        a(f"s_mov_b32 s{sN}, 0")
        segment(0, 0)
        a.nop(8)
        for j in epilogue(0): j()
        if HOLD[0]:
            a("s_waitcnt vmcnt(0)\ns_barrier")
            publish(1)
        L = a.newlabel("G1LN")
        a(f"s_cmp_lg_u32 s{sW}, 0\ns_cbranch_scc1 {L}")
        wait_init(a, 8)
        a(f"v_lshrrev_b32 v8, 2, v0\ns_sub_u32 s{sA}, 11, s{sSh}\nv_lshlrev_b32 v8, s{sA}, v8\nv_and_b32 v9, 3, v0\nv_lshl_add_u32 v8, v9, 7, v8\ns_lshl_b32 s{sA}, s{sJ}, 9\ns_add_u32 s{sA}, s{sA}, {LNF}")
        poll_ge(a, f"buffer_load_dword v9, v8, {WS}, s{sA} offen sc1", [9], 1, "LN", sleep=2)
        if kind == "QK":
            a(f"s_cmp_eq_u32 s{sSh}, 0\ns_cbranch_scc1 {L}\ns_add_u32 s{sA}, s{sA}, {128*128}")
            poll_ge(a, f"buffer_load_dword v9, v8, {WS}, s{sA} offen sc1", [9], 1, "LN", sleep=2)
        if HOLD[0]:
            wait_init(a, 8)
            a(f"s_and_b32 s{sA}, s{sRole}, 31\ns_lshl_b32 s{sA}, s{sA}, 7\ns_add_u32 s{sA}, s{sA}, {CHF + 64}\nv_mov_b32 v8, 0")
            if HOLD[0] == 1:
                publish_now = a.newlabel("PUB")
            poll_ge(a, f"buffer_load_dword v9, v8, {WS}, s{sA} offen sc1", [9], 1, "STG", sleep=8)
        a.label(L)
        a("s_barrier")
        if diag: a("s_memrealtime s[66:67]")
        for i in range(8): xdma1(1, i)
        segment(1, 1)
        a.label(f"G1_LOOP_{kind}")
        segment(0, 2)
        segment(1, 2)
        a(f"s_cmp_lt_u32 s{sN}, s{sEnd}\ns_cbranch_scc1 G1_LOOP_{kind}")
        a.label(f"G1_END_{kind}")
        a.nop(8)
        for j in epilogue(1): j()
        a.wait_vm_all(True)
        a("s_barrier")
        L = a.newlabel("G1F")
        a(f"s_cmp_lg_u32 s{sW}, 0\ns_cbranch_scc1 {L}")
        flag_store(a, f"s{sFl}", 16, 8)
        a.label(L)
        a.vmq = []; a.dsq = []
        a("s_branch G1_DONE")
    a.label("G1_IDLE")
    peek()
    a.wait_vm_all(True)
    report()
    verdict(a)
    a.label("G1_DONE")

def attention(a, diag=False):
    sSeg, sQ, sKm, sGot, sO, sCh, sAt, sCnt = 18, 19, 20, 21, 22, 23, 24, 25
    sCC = 30
    sMask = 40
    c = (128 ** -0.5) * math.log2(math.e)
    a(f"""
    s_mov_b32 s{sCC}, {fbits(c):#x}
    s_mov_b32 s{sCC+1}, {fbits(c):#x}
    v_lshlrev_b32 v4, 4, v0
    v_and_b32 v5, 0x3d, v0
    v_lshlrev_b32 v5, 4, v5
    v_bfe_u32 v6, v0, 1, 1
    v_lshl_add_u32 v5, v6, 3, v5
    v_and_b32 v6, 15, v0
    v_lshrrev_b32 v7, 4, v0
    v_lshlrev_b32 v7, 2, v7
    """)
    for r in range(4):
        a(f"v_add_u32 v8, {r}, v7\nv_cmp_le_u32 s[{sMask+2*r}:{sMask+2*r+1}], v8, v6")
    a(f"""
    s_lshr_b32 s{sA}, s{sRole}, 1
    s_lshl_b32 s{sB}, s{sA}, 1
    s_and_b32 s{sC_}, s{sW}, 1
    s_add_u32 s{sB}, s{sB}, s{sC_}
    s_add_u32 s{sB}, s{sB}, 128
    s_lshl_b32 s{sA}, s{sA}, 2
    s_add_u32 s{sA}, s{sA}, s{sW}
    v_and_b32 v8, 1, v0
    v_lshl_add_u32 v8, v8, 6, s{sA}
    v_mov_b32 v9, s{sB}
    v_cmp_gt_u32 vcc, 2, v0
    s_mov_b32 s{sA}, {G1F}
    s_nop 0
    v_cndmask_b32 v8, v9, v8, vcc
    v_lshlrev_b32 v8, 7, v8
    """)
    a(f"s_mov_b32 s{sGot}, 0\nv_mov_b32 v252, v8")
    a(f"""
    s_mov_b32 s{sSeg}, s{sW}
    s_lshl_b32 s{sA}, s{sW}, 5
    s_add_u32 s{sA}, s{sA}, s{sRole}
    s_lshl_b32 s{sQ}, s{sA}, 13
    s_lshl_b32 s{sKm}, s{sA}, 12
    s_add_u32 s{sKm}, s{sKm}, {KMEM}
    s_lshl_b32 s{sO}, s{sW}, 18
    s_lshl_b32 s{sB}, s{sRole}, 12
    s_add_u32 s{sO}, s{sO}, s{sB}
    s_add_u32 s{sO}, s{sO}, {OIMG}
    s_lshl_b32 s{sCh}, s{sRole}, 7
    s_add_u32 s{sCh}, s{sCh}, {CHF}
    s_lshl_b32 s{sAt}, s{sA}, 7
    s_add_u32 s{sAt}, s{sAt}, {ATF}
    s_mov_b32 s{sCnt}, 0
    v_mov_b32 v10, 0
    """)
    vQ, vK, vV, vKM, vVM = 16, 48, 80, 112, 128
    ONE = 136
    S = lambda qt, kt: 140 + (qt * 3 + kt) * 4
    PX = lambda qt: 164 + qt * 4
    PM = lambda qt: 172 + qt * 4
    L_ = lambda qt: 180 + qt * 4
    O = lambda qt, ft: 188 + (qt * 8 + ft) * 4
    for r in range(4): a(f"v_mov_b32 v{ONE+r}, 0x3f803f80")
    for qt in range(2): a(f"v_mov_b32 v{PM(qt)+1}, 0\nv_mov_b32 v{PM(qt)+2}, 0")
    mf = lambda d, A, B, c_: a(f"v_mfma_f32_16x16x32_bf16 {vr(d,4)}, {vr(A,4)}, {vr(B,4)}, {c_}")
    mf16 = lambda d, A, B, c_: a(f"v_mfma_f32_16x16x16_bf16 {vr(d,4)}, {vr(A,2)}, {vr(B,2)}, {c_}")
    if EARLY[0]:
        for r in range(4): a(f"v_mov_b32 v{vK+r}, -1")
        for qt in range(2):
            a(f"s_add_u32 s{sA}, s{sO}, {15*4*2*128*1024 + qt*128*1024}")
            for i in range(4): a(f"buffer_store_dwordx4 {vr(vK,4)}, v4, {WS}, s{sA} offen offset:{i*1024} sc1")
        a.nop(2)
    a.label("AT_LOOP")
    a(f"s_lshr_b32 s{sB}, s{sSeg}, 2\ns_add_u32 s{sB}, s{sB}, 1\ns_cmp_ge_u32 s{sGot}, s{sB}\ns_cbranch_scc1 AT_IN\ns_mov_b32 s{sA}, {G1F}")
    poll_ge(a, f"buffer_load_dword v9, v252, {WS}, s{sA} offen sc1", [9], f"s{sB}", "QKV", sleep=4)
    a(f"v_cmp_gt_u32 vcc, 16, v9\ns_nop 1\ns_cmp_eq_u64 vcc, 0\ns_cselect_b32 s{sGot}, 16, 0")
    a.label("AT_IN")
    for (base, img) in ((vK, KIMG), (vQ, QIMG), (vV, VIMG)):
        for hf in range(2):
            a(f"s_add_u32 s{sA}, s{sQ}, {img + hf*4096}")
            for i in range(4):
                a.vm(f"buffer_load_dwordx4 {vr(base+16*hf+4*i,4)}, v4, {WS}, s{sA} offen offset:{i*1024} sc1", ("in", base))
    a.wait_vm(("in", vQ))
    for (qt, kt) in ((0, 0), (1, 0), (1, 1)):
        for s in range(4):
            mf(S(qt, kt), vK + 16 * kt + 4 * s, vQ + 16 * qt + 4 * s, "0" if s == 0 else vr(S(qt, kt), 4))
    a(f"s_add_u32 s{sB}, s{sSeg}, 1")
    if EARLY[0] == 2: a(f"s_min_u32 s{sB}, s{sB}, 61")
    poll_ge(a, f"buffer_load_dword v9, v10, {WS}, s{sCh} offen sc1", [9], f"s{sB}", "CH", sleep=SLEEP[0])
    def kmload():
        for i in range(4): a.vm(f"buffer_load_dwordx4 {vr(vKM+4*i,4)}, v4, {WS}, s{sKm} offen offset:{i*1024} sc1", "km")
        for i in range(4): a.vm(f"buffer_load_dwordx2 {vr(vVM+2*i,2)}, v5, {WS}, s{sKm} offen offset:{i*1024} sc1", "vm")
    if diag: a("s_memrealtime s[72:73]")
    kmload()
    a("v_mov_b32 v11, 0xff800000")
    for (qt, kt) in ((0, 0), (1, 1)):
        for r in range(4):
            a(f"v_cndmask_b32 v{S(qt,kt)+r}, v11, v{S(qt,kt)+r}, s[{sMask+2*r}:{sMask+2*r+1}]")
    a(f"v_max3_f32 v12, v{S(0,0)}, v{S(0,0)+1}, v{S(0,0)+2}\nv_max_f32 v12, v12, v{S(0,0)+3}")
    a(f"v_max3_f32 v14, v{S(1,0)}, v{S(1,0)+1}, v{S(1,0)+2}\nv_max3_f32 v14, v14, v{S(1,0)+3}, v{S(1,1)}")
    a(f"v_max3_f32 v14, v14, v{S(1,1)+1}, v{S(1,1)+2}\nv_max_f32 v14, v14, v{S(1,1)+3}")
    if EARLY[0]:
        a(f"s_cmp_lt_u32 s{sSeg}, {EFROM}\ns_cbranch_scc1 AT_KMOK\ns_mov_b32 s{sD}, 0")
        a.label("AT_KMCHK")
        a("s_waitcnt vmcnt(0)")
        rs = list(range(vKM, vKM + 24))
        a(f"v_max3_u32 v13, v{rs[0]}, v{rs[1]}, v{rs[2]}\nv_max3_u32 v15, v{rs[3]}, v{rs[4]}, v{rs[5]}")
        for k in range(6, 22, 4): a(f"v_max3_u32 v13, v13, v{rs[k]}, v{rs[k+1]}\nv_max3_u32 v15, v15, v{rs[k+2]}, v{rs[k+3]}")
        a(f"v_max3_u32 v13, v13, v{rs[22]}, v{rs[23]}\nv_max_u32 v13, v13, v15\nv_cmp_eq_u32 vcc, -1, v13\ns_cbranch_vccz AT_KMOK")
        a(f"s_add_u32 s{sD}, s{sD}, 1\ns_cmp_gt_u32 s{sD}, {POLL_BOUND}\ns_cbranch_scc1 AT_KMOK")
        keep = list(a.vmq); kmload(); a.vmq = keep
        a("s_branch AT_KMCHK")
        a.label("AT_KMOK")
    a.wait_vm("km")
    for qt in range(2):
        for s in range(4):
            mf(S(qt, 2), vKM + 4 * s, vQ + 16 * qt + 4 * s, "0" if s == 0 else vr(S(qt, 2), 4))
    a.nop(8)
    for qt in range(2):
        a(f"v_max3_f32 v{12+2*qt}, v{12+2*qt}, v{S(qt,2)+2}, v{S(qt,2)+3}")
    for op in ("v_permlane32_swap_b32", "v_permlane16_swap_b32"):
        a(f"v_mov_b32 v13, v12\nv_mov_b32 v15, v14\ns_nop 0\n{op} v12, v13\n{op} v14, v15\nv_max_f32 v12, v12, v13\nv_max_f32 v14, v14, v15")
    a(f"v_mul_f32 v12, s{sCC}, v12\nv_mul_f32 v14, s{sCC}, v14")
    for qt in range(2):
        m = 12 + 2 * qt
        prs = [S(qt, 2) + 2, S(qt, 0), S(qt, 0) + 2] + ([S(qt, 1), S(qt, 1) + 2] if qt else [])
        for r in prs:
            a(f"v_pk_fma_f32 {vr(r,2)}, {vr(r,2)}, s[{sCC}:{sCC+1}], {vr(m,2)} op_sel_hi:[1,1,0] neg_lo:[0,0,1] neg_hi:[0,0,1]")
        for r in prs: a(f"v_exp_f32 v{r}, v{r}\nv_exp_f32 v{r+1}, v{r+1}")
        a.nop(1)
        a(f"v_cvt_pk_bf16_f32 v{PM(qt)}, v{prs[0]}, v{prs[0]+1}\nv_cvt_pk_bf16_f32 v{PM(qt)+3}, v{prs[0]}, v{prs[0]+1}")
        for k, r in enumerate(prs[1:]): a(f"v_cvt_pk_bf16_f32 v{PX(qt)+k}, v{r}, v{r+1}")
    a.wait_vm_all()
    a.nop(2)
    for qt in range(2):
        mf16(L_(qt), ONE, PM(qt), "0")
        for ft in range(8): mf16(O(qt, ft), vVM + 2 * (ft >> 1), PM(qt) + 2 * (ft & 1), "0")
        m2 = mf if qt else mf16
        m2(L_(qt), ONE, PX(qt), vr(L_(qt), 4))
        for ft in range(8): m2(O(qt, ft), vV + 4 * ft, PX(qt), vr(O(qt, ft), 4))
    for qt in range(2):
        if qt: a.nop(4)
        a(f"v_rcp_f32 v12, v{L_(qt)}")
        if qt: a(f"s_add_u32 s{sA}, s{sO}, {128*1024}")
        else: a.nop(1)
        for pr in range(4):
            d = vK + 16 * qt + 4 * pr
            for h_ in range(2):
                for k in range(2):
                    r = O(qt, 2 * pr + h_) + 2 * k
                    a(f"v_pk_mul_f32 {vr(r,2)}, {vr(r,2)}, v[12:13] op_sel_hi:[1,0]")
                    a(f"v_cvt_pk_bf16_f32 v{d+2*h_+k}, v{r}, v{r+1}")
            a.vm(f"buffer_store_dwordx4 {vr(d,4)}, v4, {WS}, s{sA if qt else sO} offen offset:{pr*1024} sc1", "o")
    a(f"s_add_u32 s{sCnt}, s{sCnt}, 1")
    if EARLY[0]: a(f"s_cmp_ge_u32 s{sSeg}, 60\ns_cbranch_scc1 AT_FLAG")
    a.wait_vm_all()
    a.label("AT_FLAG")
    if diag: a("s_memrealtime s[74:75]")
    flag_store(a, f"s{sAt}", f"s{sCnt}", 8)
    a(f"""
    s_add_u32 s{sQ}, s{sQ}, {4*32*8192}
    s_add_u32 s{sKm}, s{sKm}, {4*32*4096}
    s_add_u32 s{sO}, s{sO}, {4*2*128*1024}
    s_add_u32 s{sSeg}, s{sSeg}, 4
    s_cmp_lt_u32 s{sSeg}, 64
    s_cbranch_scc1 AT_LOOP
    """)
    a.vmq = []; a.dsq = []

def gemm2(a, diag=False):
    sCs, sU, sO, sH_, sX, sN, sPar, sLo, sLast, sT, sF, sNeed = 18, 19, 20, 21, 22, 23, 24, 26, 25, 28, 30, 31
    srd(a, 12, "Wo", 4096 * 1024)
    srd(a, 48, "w2", 1792 * 1024)
    srd(a, 52, "x", 2048 * 1024)
    srd(a, 56, "out", 2048 * 1024)
    srd(a, 60, "b2", 1024)
    a(f"""
    s_and_b32 s{sCs}, s{sRole}, 15
    s_lshr_b32 s{sU}, s{sRole}, 4
    v_and_b32 v100, 15, v0
    v_lshrrev_b32 v101, 4, v0
    v_and_b32 v102, 3, v0
    v_bfe_u32 v103, v0, 2, 2
    v_lshrrev_b32 v4, 2, v0
    v_lshlrev_b32 v4, 10, v4
    v_lshl_add_u32 v4, v102, 4, v4
    s_lshl_b32 s{sA}, s{sCs}, 6
    v_add_u32 v104, s{sA}, v4
    v_lshl_add_u32 v4, v101, 2, v103
    v_lshlrev_b32 v4, 6, v4
    v_lshl_add_u32 v4, v102, 4, v4
    s_mul_i32 s{sA}, s{sW}, 32768
    v_add_u32 v105, s{sA}, v4
    s_waitcnt lgkmcnt(0)
    """)
    Wo_ = lambda s, T: ar(8 * s + 4 * T, 4)
    VW2 = 144
    W2_ = lambda s, T: vr(VW2 + 8 * s + 4 * T, 4)
    chunks = [("o", c, 8) for c in range(8)] + [("2", c, 8) for c in range(3)] + [("2", 3, 4)]
    a(f"s_lshl_b32 s{sN}, s{sW}, 20\ns_mul_i32 s{sB}, s{sW}, {448*1024}")
    def issue(n):
        m, c, cnt = chunks[n]
        for i in range(cnt):
            a(f"s_add_u32 m0, s{sA}, {(n%4)*8192 + i*1024}\ns_nop 0")
            so = sN if m == "o" else sB
            a.vm(f"buffer_load_dwordx4 v104, {'s[12:15]' if m == 'o' else 's[48:51]'}, s{so} offen lds", ("w", n))
            a(f"s_add_u32 s{so}, s{so}, {16*1024}")
    for n in range(4): issue(n)
    for n, (m, c, cnt) in enumerate(chunks):
        a.wait_vm(("w", n))
        for s_ in range(cnt // 2):
            for T in range(2):
                for p in range(2):
                    base = (8 * (4 * c + s_) + 4 * T + 2 * p)
                    dst = ar(base, 2) if m == "o" else vr(VW2 + base, 2)
                    a.ds(f"ds_read_b64_tr_b16 {dst}, v105 offset:{(n%4)*8192 + (32*s_+16*p)*64 + T*8}")
        a.wait_ds_all()
        if n + 4 < len(chunks): issue(n + 4)
    if diag: a("s_memrealtime s[68:69]")
    vB = 8
    a(f"""
    v_lshlrev_b32 v4, 4, v101
    s_lshl_b32 s{sA}, s{sCs}, 6
    buffer_load_dwordx4 v[16:19], v4, s[60:63], s{sA} offen
    v_and_b32 v7, 7, v0
    v_lshl_add_u32 v6, v7, 10, v4
    v_add_u32 v6, s{sA}, v6
    v_lshlrev_b32 v5, 4, v0
    v_add_u32 v5, 131072, v5
    v_lshl_add_u32 v4, v101, 4, v7
    v_lshlrev_b32 v4, 4, v4
    v_lshrrev_b32 v3, 3, v100
    v_lshl_add_u32 v4, v3, 10, v4
    v_lshlrev_b32 v7, 7, v7
    s_mov_b32 s{sLo}, 0x00ff00ff
    s_mov_b32 s{sLo+1}, 0x00ff00ff
    s_waitcnt vmcnt(0)
    """)
    for k in range(4): a(f"v_lshlrev_b32 v{vB+2*k}, 16, v{16+k}\nv_and_b32 v{vB+2*k+1}, 0xffff0000, v{16+k}")
    a(f"v_min_u32 v16, 27, v0\nv_lshlrev_b32 v16, 7, v16\ns_mov_b32 s{sA}, {G1F + 160*128}")
    poll_ge(a, f"buffer_load_dword v17, v16, {WS}, s{sA} offen sc1", [17], 16, "H")
    a(f"s_mov_b32 s{sPar}, 0")
    a("s_barrier")
    vR = lambda k: 64 + 4 * k
    AC, AO = 24, 128
    def ld(n, sbase, tag="a"):
        a(f"s_add_u32 s{sT}, s{sbase}, {(n>>1)*4096}")
        a.vm(f"buffer_load_dwordx4 {vr(vR(n),4)}, v4, {WS}, s{sT} offen offset:{(n%2)*2048} sc1", (tag, n))
    def mm(n, Wf, first, tag="a"):
        a.wait_vm((tag, n))
        for par, acc in ((0, AC), (1, AO)):
            for T in range(2):
                a(f"v_mfma_f32_16x16x32_bf16 {vr(acc+4*T,4)}, {Wf(2*n+par,T)}, {vr(vR(n),4)}, {'0' if first else vr(acc+4*T,4)}")
    def hload(su):
        a(f"""
        s_lshr_b32 s{sB}, s{su}, 1
        s_and_b32 s{sC_}, s{su}, 1
        s_lshl_b32 s{sC_}, s{sC_}, 7
        s_mul_i32 s{sH_}, s{sB}, {56*1024}
        s_mul_i32 s{sA}, s{sW}, {14*1024}
        s_add_u32 s{sH_}, s{sH_}, s{sA}
        s_add_u32 s{sH_}, s{sH_}, s{sC_}
        s_add_u32 s{sH_}, s{sH_}, {HIMG}
        """)
        for n in range(7): ld(n, sH_, "h")
    def hmm():
        for n in range(7): mm(n, W2_, n == 0, "h")
    NFULL = 256 // NSETS
    a(f"s_add_u32 s{sLast}, s{sU}, {NFULL*NSETS}\ns_cmp_ge_u32 s{sLast}, 256\ns_cselect_b32 s{sB}, {NSETS}, 0\ns_sub_u32 s{sLast}, s{sLast}, s{sB}")
    hload(sLast); hmm(); a.nop(8)
    for k in range(8): a(f"v_mov_b32 v{56+k}, v{AC+k}\nv_mov_b32 v{136+k}, v{AO+k}")
    a.label("G2_LOOP")
    a(f"""
    s_lshr_b32 s{sB}, s{sU}, 2
    s_and_b32 s{sF}, s{sB}, 3
    s_lshl_b32 s{sF}, s{sF}, 12
    s_lshl_b32 s{sC_}, s{sW}, 10
    s_add_u32 s{sF}, s{sF}, s{sC_}
    s_add_u32 s{sF}, s{sF}, {ATF}
    buffer_load_dword v17, v7, {WS}, s{sF} offen sc1
    s_lshr_b32 s{sNeed}, s{sB}, 2
    s_add_u32 s{sNeed}, s{sNeed}, 1
    s_lshl_b32 s{sX}, s{sU}, 13
    buffer_load_dwordx4 v[20:23], v6, s[52:55], s{sX} offen
    s_lshr_b32 s{sB}, s{sU}, 1
    s_and_b32 s{sC_}, s{sU}, 1
    s_lshl_b32 s{sC_}, s{sC_}, 7
    s_lshl_b32 s{sO}, s{sB}, 17
    s_lshl_b32 s{sA}, s{sW}, 15
    s_add_u32 s{sO}, s{sO}, s{sA}
    s_add_u32 s{sO}, s{sO}, s{sC_}
    s_add_u32 s{sO}, s{sO}, {OIMG}
    s_mov_b32 s{sN}, 0
    s_cmp_lg_u32 s{sU}, s{sLast}
    s_cbranch_scc1 G2_H
    """)
    for k in range(8): a(f"v_mov_b32 v{AC+k}, v{56+k}\nv_mov_b32 v{AO+k}, v{136+k}")
    a("s_branch G2_HE")
    a.label("G2_H")
    a.vmq = []
    hload(sU)
    keep = list(a.vmq)
    a(f"s_cmp_ge_u32 s{sU}, 240\ns_cbranch_scc1 G2_SLOW\ns_waitcnt vmcnt(8)\nv_cmp_gt_u32 vcc, s{sNeed}, v17\ns_cbranch_vccnz G2_SLOW")
    for n in range(7, 16): ld(n, sO)
    hmm()
    for n in range(7): ld(n, sO)
    OORD = list(range(7, 16)) + list(range(7))
    for n in OORD: mm(n, Wo_, False)
    a("s_branch G2_ODONE")
    a.label("G2_SLOW")
    a.vmq = keep
    hmm(); a.nop(8)
    a.label("G2_HE")
    if EARLY[0]:
        for k in range(8): a(f"v_mov_b32 v{40+k}, v{AC+k}\nv_mov_b32 v{48+k}, v{AO+k}")
    poll_ge(a, f"buffer_load_dword v17, v7, {WS}, s{sF} offen sc1", [17], f"s{sNeed}", "AT", sleep=SLEEP[0])
    if diag: a("s_memrealtime s[72:73]")
    a.label("G2_OPART")
    for n in OORD: ld(n, sO)
    for n in OORD: mm(n, Wo_, False)
    a.label("G2_ODONE")
    a(f"s_lshl_b32 s{sA}, s{sW}, 11\ns_add_u32 s{sA}, s{sA}, s{sPar}\nv_add_u32 v16, s{sA}, v5")
    a.nop(6)
    if EARLY[0]:
        a(f"s_cmp_lt_u32 s{sU}, 240\ns_cbranch_scc1 G2_OOK\nv_cmp_u_f32 vcc, v{AC}, v{AC}\ns_cbranch_vccz G2_OOK")
        a(f"s_add_u32 s{sN}, s{sN}, 1\ns_cmp_gt_u32 s{sN}, 256\ns_cbranch_scc1 G2_OOK")
        for k in range(8): a(f"v_mov_b32 v{AC+k}, v{40+k}\nv_mov_b32 v{AO+k}, v{48+k}")
        a("s_branch G2_OPART")
        a.label("G2_OOK")
    for k in range(8): a(f"v_add_f32_dpp v{AC+k}, v{AO+k}, v{AC+k} row_ror:8 row_mask:0xf bank_mask:0xf")
    if diag: a(f"s_memrealtime s[74:75]\ns_mov_b32 s76, s{sN}")
    a.ds(f"ds_write_b128 v16, {vr(AC,4)}")
    a.ds(f"ds_write_b128 v16, {vr(AC+4,4)} offset:1024")
    a.wait_ds_all()
    a("s_barrier")
    a(f"s_cmp_lg_u32 s{sW}, 0\ns_cbranch_scc1 G2_NEXT")
    for w_ in range(1, 4):
        a.ds(f"ds_read_b128 {vr(56+8*w_,4)}, v16 offset:{w_*2048}", ("r", w_))
        a.ds(f"ds_read_b128 {vr(60+8*w_,4)}, v16 offset:{w_*2048+1024}", ("r", w_))
    for k in range(4):
        a(f"v_lshlrev_b32 v32, 16, v{20+k}\nv_and_b32 v33, 0xffff0000, v{20+k}")
        a(f"v_pk_add_f32 {vr(AC+2*k,2)}, {vr(AC+2*k,2)}, {vr(vB+2*k,2)}")
        a(f"v_pk_add_f32 {vr(AC+2*k,2)}, {vr(AC+2*k,2)}, v[32:33]")
    for w_ in range(1, 4):
        a.wait_ds(("r", w_))
        for k in range(4): a(f"v_pk_add_f32 {vr(AC+2*k,2)}, {vr(AC+2*k,2)}, {vr(56+8*w_+2*k,2)}")
    for k in range(4): a(f"v_cvt_pk_bf16_f32 v{36+k}, v{AC+2*k}, v{AC+2*k+1}")
    a(f"s_mov_b64 exec, s[{sLo}:{sLo+1}]\nbuffer_store_dwordx4 v[36:39], v6, s[56:59], s{sX} offen {OUTF[0]}\ns_mov_b64 exec, -1")
    a.label("G2_NEXT")
    a(f"""
    s_xor_b32 s{sPar}, s{sPar}, 8192
    s_add_u32 s{sU}, s{sU}, {NSETS}
    s_cmp_lt_u32 s{sU}, 256
    s_cbranch_scc1 G2_LOOP
    """)
    a.vmq = []; a.dsq = []
```

```python
import sys
from asm import *
from layout import *
import os, importlib
C = importlib.import_module(os.environ.get("CHAINMOD", "chain"))
import workers as Wk
NAME = "parallel_sum__memory_aug_recurrent_mem_tr__dense_activation_squared_relu__prompt"
CH = dict(pre_bar=4, v_0=0, v_pre=3, o_pre=2, dlyA=(28, 40), st4=1, pboth=1, dlyB=16, w1c=20, pst0=1, pbar=1, nrA=3, bound=1 << 16, depA=(2, 2), depB=2, gapA=24, gapB=16, x0=0, xw_only=1, jbar=1, jobs='S', j0=4, jstr=10, jw=2, a_burst=2, r_pre=2, kx_in=5, nt='', pf0=(50, 52, 54, 48), cverd=4, vfirst=(0, 4), ph={'head': 3})
sDB = 4
sInit, sReady, sMode, sXcc, sTent = 84, 85, 86, 87, 83
sCounted, sLost = 29, 79
sA, sB, sC_, sD = Wk.sA, Wk.sB, Wk.sC_, Wk.sD
WS = Wk.WS
DB = f"s[{sDB}:{sDB+3}]"
ROLE_LDS = 163840 - 16
MODE_BOUND = 2000

def wait_init(a, v=2):
    L = a.newlabel("INIT")
    a(f"s_cmp_lg_u32 s{sInit}, 0\ns_cbranch_scc1 {L}")
    a(f"v_mov_b32 v{v}, {D_INIT}")
    Wk.poll_ge(a, f"buffer_load_dword v{v+1}, v{v}, {DB}, 0 offen sc1", [v + 1], 2 * NINIT, "INIT", sleep=4)
    a(f"s_mov_b32 s{sInit}, 1")
    a.label(L)

def atomic(a, op, off, val, dst, cmp=None):
    a(f"s_mov_b64 exec, 1\nv_mov_b32 v20, {val}\nv_mov_b32 v22, {off}")
    if cmp is not None:
        a(f"v_mov_b32 v21, {cmp}\nbuffer_atomic_cmpswap v[20:21], v22, {DB}, 0 offen sc0")
    else:
        a(f"buffer_atomic_{op} v20, v22, {DB}, 0 offen sc0")
    a(f"s_waitcnt vmcnt(0)\nv_readfirstlane_b32 s{dst}, v20\ns_mov_b64 exec, -1\ns_nop 3")

def claim(a, name, sRes, sOff):
    a.label(f"CLAIM_{name}")
    a(f"s_lshl_b32 s{sC_}, 1, s{sA}")
    atomic(a, "or", f"s{sOff}", f"s{sC_}", sB)
    a.label(f"CLAIM_{name}_R")
    a(f"s_and_b32 s{sD}, s{sB}, s{sC_}\ns_or_b32 s{sB}, s{sB}, s{sC_}\ns_mov_b32 s{sRes}, s{sA}")
    a(f"s_cmp_eq_u32 s{sD}, 0\ns_cbranch_scc1 CLAIM_{name}_E")
    a(f"s_mov_b32 s{sRes}, -1\ns_cmp_eq_u32 s{sB}, -1\ns_cbranch_scc1 CLAIM_{name}_E")
    a(f"s_ff0_i32_b32 s{sA}, s{sB}\ns_branch CLAIM_{name}")
    a.label(f"CLAIM_{name}_E")

def bcast(a, s):
    L = a.newlabel("BC")
    a(f"v_mov_b32 v22, {ROLE_LDS}")
    a(f"s_cmp_lg_u32 s{Wk.sW}, 0\ns_cbranch_scc1 {L}\nv_mov_b32 v20, s{s}\nds_write_b32 v22, v20\ns_waitcnt lgkmcnt(0)")
    a.label(L)
    a(f"s_barrier\nds_read_b32 v20, v22\ns_waitcnt lgkmcnt(0)\nv_readfirstlane_b32 s{s}, v20\ns_barrier")

def gen(P=CH, diag=False, force_slow=False):
    a = Asm()
    def mark(a, word, neg=False):
        if not P.get("marks"): return
        a(f"s_memrealtime s[98:99]\ns_waitcnt lgkmcnt(0)")
        if neg: a("s_not_b32 s98, s98")
        a(f"s_mov_b64 exec, 1\nv_mov_b32 v10, s98\nv_mov_b32 v11, {4*word}\nbuffer_atomic_umax v10, v11, {DB}, 0 offen\ns_mov_b64 exec, -1")
    Wk.SLEEP[0] = P.get('sleep', 1); Wk.PREFETCH[0] = P.get('pf', ());  Wk.EARLY[0] = P.get('early', 2); Wk.WVERD[0] = P.get('wverd', 0); Wk.QLATE[0] = P.get('qlate', 0); Wk.HOLD[0] = P.get('hold', 0); Wk.OUTF[0] = P.get('outf', 'sc1')
    sR = Wk.sRole
    a(f"""
    s_cmp_ge_u32 s2, 256
    s_cbranch_scc1 L_END
    s_load_dwordx2 s[{Wk.sWS}:{Wk.sWS+1}], s[0:1], {KA['ws']}
    s_load_dwordx2 s[{sDB}:{sDB+1}], s[0:1], {KA['dbg']}
    s_getreg_b32 s{sXcc}, hwreg(HW_REG_XCC_ID, 0, 4)
    s_mov_b32 s{Wk.sWS+2}, {WS_BYTES}
    s_mov_b32 s{Wk.sWS+3}, 0x20000
    s_mov_b32 s{sDB+2}, 256
    s_mov_b32 s{sDB+3}, 0x20000
    s_mov_b32 s{Wk.sDead}, 0
    s_mov_b32 s{sInit}, 0
    s_mov_b32 s82, 0
    s_mov_b32 s{sLost}, 0
    v_mov_b32 v250, 0
    v_lshrrev_b32 v1, 6, v0
    v_lshlrev_b32 v8, 4, v0
    v_readfirstlane_b32 s{Wk.sW}, v1
    v_and_b32 v0, 63, v0
    v_mov_b32 v12, -1
    v_mov_b32 v13, -1
    v_mov_b32 v14, -1
    v_mov_b32 v15, -1
    """)
    if diag: a("s_memrealtime s[90:91]")
    CX = 9 if force_slow else P.get('cx', 3)
    sOff, sTry, sDie, sWord, sSpec = 18, 19, 80, 81, 82
    def declare(a):
        L = a.newlabel("DECL")
        a(f"s_cmp_lg_u32 s{sB}, -1\ns_cbranch_scc1 {L}")
        a(f"s_mov_b64 exec, 1\nv_mov_b32 v20, 1\nv_mov_b32 v21, 0\nv_mov_b32 v22, {D_MODE}\nbuffer_atomic_cmpswap v[20:21], v22, {DB}, 0 offen\ns_mov_b64 exec, -1")
        a.label(L)
    a(f"""
    s_bfe_u32 s{sR}, s2, 0x50003
    s_waitcnt lgkmcnt(0)
    """)
    if P.get("marks"):
        a(f"s_cmp_lg_u32 s{Wk.sW}, 0\ns_cbranch_scc1 L_MK0\ns_and_b32 s3, s2, 15\ns_cmp_lg_u32 s3, 0\ns_cbranch_scc1 L_MK0")
        mark(a, 4, True)
        a.label("L_MK0")
    a(f"""
    s_mov_b32 s{sTent}, s{sR}
    s_add_u32 s{sDie}, s{sXcc}, {(15 - CX) % 8}
    s_and_b32 s{sDie}, s{sDie}, 7
    s_min_u32 s{sDie}, s{sDie}, 6
    s_lshl_b32 s{sWord}, s{sDie}, 2
    s_add_u32 s{sWord}, s{sWord}, {D_WM}
    s_cmp_eq_u32 s{sXcc}, {CX}
    s_cselect_b32 s{sWord}, {D_MASK}, s{sWord}
    s_and_b32 s3, s2, 0x87
    s_cmp_lg_u32 s3, 0
    s_cbranch_scc1 L_I3
    s_xor_b32 s3, s{Wk.sW}, s{sTent}
    s_bitcmp1_b32 s3, 0
    s_cbranch_scc0 L_I3
    """)
    a(f"s_lshr_b32 s{sA}, s2, 3")
    a(f"s_lshr_b32 s3, s{Wk.sW}, 1\ns_lshl_b32 s{sA}, s{sA}, 1\ns_add_u32 s{sA}, s{sA}, s3\nv_lshlrev_b32 v9, 4, v0")
    a(f"s_lshl_b32 s3, s{sA}, 13\ns_add_u32 s3, s3, {PART}")
    for k in range(8):
        a(f"buffer_store_dwordx4 v[12:15], v9, {WS}, s3 offen offset:{(k&3)*1024} sc1")
        if k == 3: a("s_add_u32 s3, s3, 4096")
    a(f"""
    s_lshl_b32 s3, s{sA}, 10
    s_add_u32 s3, s3, {MBUF}
    buffer_store_dwordx4 v[12:15], v9, {WS}, s3 offen sc1
    s_mul_i32 s3, s{sA}, 2560
    s_add_u32 s3, s3, {FLG}
    v_mov_b32 v16, 0
    v_mov_b32 v17, 0
    v_mov_b32 v18, 0
    v_mov_b32 v19, 0
    buffer_store_dwordx4 v[16:19], v9, {WS}, s3 offen sc1
    buffer_store_dwordx4 v[16:19], v9, {WS}, s3 offen offset:1024 sc1
    s_mov_b64 exec, 0xffffffff
    buffer_store_dwordx4 v[16:19], v9, {WS}, s3 offen offset:2048 sc1
    s_mov_b64 exec, -1
    s_waitcnt vmcnt(0)
    s_mov_b64 exec, 1
    v_mov_b32 v20, 1
    v_mov_b32 v22, {D_INIT}
    buffer_atomic_add v20, v22, {DB}, 0 offen
    s_mov_b64 exec, -1
    L_I3:
    s_cmp_lg_u32 s{Wk.sW}, 0
    s_cbranch_scc1 L_I2
    s_mov_b64 exec, 1
    s_lshl_b32 s3, 1, s{sTent}
    v_mov_b32 v250, s3
    v_mov_b32 v22, s{sWord}
    buffer_atomic_or v250, v22, {DB}, 0 offen sc0
    s_mov_b64 exec, -1
    L_I2:
    s_cmp_lg_u32 s{sXcc}, {CX}
    s_cbranch_scc1 L_NOSPEC
    s_mov_b32 s{sSpec}, 1
    s_branch L_CHAIN
    L_CLOST:
    s_waitcnt vmcnt(0)
    s_cmp_lg_u32 s{Wk.sW}, 0
    s_cbranch_scc1 L_ROLE
    s_mov_b32 s{sA}, s{sTent}
    s_mov_b32 s{sOff}, {D_MASK}
    """)
    claim(a, "A", sR, sOff)
    a(f"s_cmp_eq_u32 s{sR}, -1\ns_cbranch_scc1 L_WCLAIM")
    declare(a)
    a("s_branch L_ROLE")
    a.label("L_NOSPEC")
    if P.get("pf0"):
        a(f"s_xor_b32 s3, s{Wk.sW}, s{sTent}\ns_bitcmp1_b32 s3, 0\ns_cbranch_scc0 L_PF")
        a(f"s_lshr_b32 s3, s{sDie}, 1\ns_lshl_b32 s3, s3, 1\ns_lshr_b32 s44, s{sTent}, 4\ns_add_u32 s3, s3, s44\ns_cmp_eq_u32 s3, 5\ns_cbranch_scc1 L_PF")
        a(f"s_load_dwordx4 s[48:51], s[0:1], {KA['Wq']}\ns_load_dwordx4 s[52:55], s[0:1], {KA['Wv']}\ns_mov_b32 s42, 0x400000\ns_mov_b32 s43, 0x20000")
        a(f"v_lshlrev_b32 v13, 7, v0\ns_lshr_b32 s3, s{Wk.sW}, 1\ns_add_u32 s3, s3, s2\ns_and_b32 s3, s3, 255\ns_lshl_b32 s3, s3, 14\ns_add_u32 s44, s3, 8192\ns_waitcnt lgkmcnt(0)")
        for p in P["pf0"]:
            a(f"s_mov_b32 s40, s{p}\ns_mov_b32 s41, s{p+1}\nbuffer_load_dword v252, v13, s[40:43], s3 offen\nbuffer_load_dword v252, v13, s[40:43], s44 offen")
        a.label("L_PF")
    a(f"s_lshl_b32 s{sR}, s{sDie}, 5\ns_add_u32 s{sR}, s{sR}, s{sTent}\ns_mov_b32 s{sSpec}, 1\ns_branch L_WORK")
    a.label("L_WLOST")
    a("s_waitcnt vmcnt(0) lgkmcnt(0)")
    a(f"s_cmp_lg_u32 s{Wk.sW}, 0\ns_cbranch_scc1 L_ROLE2")
    a.label("L_WCLAIM")
    a(f"s_mov_b32 s{sOff}, s{sDie}\ns_mov_b32 s{sTry}, 0\ns_mov_b32 s{sA}, s{sTent}")
    a.label("L_WNEXT")
    a(f"s_cmp_ge_u32 s{sOff}, 7\ns_cselect_b32 s{sB}, 7, 0\ns_sub_u32 s{sOff}, s{sOff}, s{sB}")
    a(f"s_cmp_ge_u32 s{sOff}, 7\ns_cselect_b32 s{sB}, 7, 0\ns_sub_u32 s{sOff}, s{sOff}, s{sB}")
    a(f"s_lshl_b32 s{sOff}, s{sOff}, 2\ns_add_u32 s{sOff}, s{sOff}, {D_WM}")
    claim(a, "W", sR, sOff)
    a(f"s_sub_u32 s{sOff}, s{sOff}, {D_WM}\ns_lshr_b32 s{sOff}, s{sOff}, 2")
    a(f"s_cmp_eq_u32 s{sR}, -1\ns_cbranch_scc0 L_WGOT")
    a(f"s_add_u32 s{sOff}, s{sOff}, 1\ns_add_u32 s{sTry}, s{sTry}, 1\ns_mov_b32 s{sA}, 0\ns_cmp_lt_u32 s{sTry}, 7\ns_cbranch_scc1 L_WNEXT")
    atomic(a, "cmpswap", D_MODE, 2, sB, cmp=0)
    a(f"s_mov_b32 s{sA}, 0\ns_mov_b32 s{sOff}, {D_MASK}")
    claim(a, "B", sR, sOff)
    a("s_branch L_ROLE")
    a.label("L_WGOT")
    a(f"s_lshl_b32 s{sOff}, s{sOff}, 5\ns_add_u32 s{sR}, s{sR}, s{sOff}\ns_add_u32 s{sR}, s{sR}, 32")
    def verdict(a):
        L = a.newlabel("VERD")
        a(f"s_cmp_eq_u32 s{sSpec}, 0\ns_cbranch_scc1 {L}\ns_mov_b32 s{sSpec}, 0")
        a(f"v_readfirstlane_b32 s{sB}, v250\ns_nop 3\ns_lshr_b32 s{sB}, s{sB}, s{sTent}\ns_and_b32 s{sB}, s{sB}, 1")
        bcast(a, sB)
        a(f"s_cmp_lg_u32 s{sB}, 0\ns_cbranch_scc1 L_WLOST")
        a.label(L)
    a.label("L_ROLE")
    a.label("L_ROLE2")
    bcast(a, sR)
    a(f"s_cmp_lt_u32 s{sR}, 32\ns_cbranch_scc1 L_CHAIN")
    a(f"s_cmp_eq_u32 s{sR}, -1\ns_cbranch_scc1 L_FIN")
    a(f"s_waitcnt vmcnt(0)\ns_sub_u32 s{sR}, s{sR}, 32")
    a.label("L_WORK")
    if P.get("wpf"):
        a("s_getpc_b64 s[66:67]\nv_lshlrev_b32 v10, 7, v0")
        a(f"s_lshl_b32 s3, s{Wk.sW}, 13\nv_add_u32 v10, s3, v10\nv_min_u32 v10, {P['wpf']}, v10\nglobal_load_dword v252, v10, s[66:67]")
    if diag: a("s_memrealtime s[70:71]\ns_waitcnt lgkmcnt(0)\ns_mov_b32 s100, s70\ns_add_u32 s101, s16, 32")
    if diag: a("s_mov_b32 s64, 0\ns_mov_b32 s66, 0\ns_mov_b32 s68, 0\ns_mov_b32 s72, 0")
    if P.get("qp", 0):
        a(f"s_sub_u32 s3, s{sR}, 128\ns_and_b32 s3, s3, 0xffffffd0\ns_cmp_lg_u32 s3, 16\ns_cbranch_scc1 L_G1")
        a(f"s_and_b32 s18, s{sR}, 15\ns_lshr_b32 s3, s{sR}, 1\ns_and_b32 s3, s3, 16\ns_add_u32 s18, s18, s3")
        def qdone(a):
            a(f"s_cmp_lg_u32 s{Wk.sW}, 0\ns_cbranch_scc1 L_G1")
            a(f"s_lshl_b32 s3, 1, s18\ns_mov_b64 exec, 1\nv_mov_b32 v2, s3\nbuffer_atomic_or v2, off, {DB}, 0 offset:{D_QP}\ns_mov_b64 exec, -1")
            if diag: a("s_memrealtime s[40:41]\ns_waitcnt lgkmcnt(0)\ns_mov_b32 s100, s40")
        C.qprep(a, 18, qdone)
        a.label("L_G1")
    Wk.gemm1(a, wait_init, verdict, sInit, diag)
    if diag: a("s_memtime s[78:79]")
    if P.get("marks"):
        a(f"s_cmp_lg_u32 s{Wk.sW}, 0\ns_cbranch_scc1 L_MK2\ns_and_b32 s3, s{sR}, 7\ns_cmp_lg_u32 s3, 0\ns_cbranch_scc1 L_MK2")
        mark(a, 8)
        a.label("L_MK2")
    if diag: a("s_memrealtime s[92:93]")
    wait_init(a)
    a(f"s_cmp_ge_u32 s{sR}, 192\ns_cbranch_scc1 L_FIN\ns_cmp_lt_u32 s{sR}, 160\ns_cbranch_scc1 L_G2\ns_sub_u32 s{sR}, s{sR}, 160")
    Wk.attention(a, diag)
    a("s_branch L_FIN")
    a.label("L_G2")
    Wk.gemm2(a, diag)
    if P.get("marks"):
        a(f"s_waitcnt vmcnt(0)\ns_cmp_lg_u32 s{Wk.sW}, 0\ns_cbranch_scc1 L_FIN")
        mark(a, 9)
    a("s_branch L_FIN")
    a.label("L_CHAIN")
    if diag: a("s_memrealtime s[70:71]\ns_waitcnt lgkmcnt(0)\ns_mov_b32 s100, s70\ns_mov_b32 s101, s16")
    if P.get("cpf"):
        a("s_getpc_b64 s[66:67]\nv_lshlrev_b32 v10, 7, v0")
        a(f"s_lshl_b32 s3, s{Wk.sW}, 13\nv_add_u32 v10, s3, v10\nv_min_u32 v10, {P['cpf']}, v10\nglobal_load_dword v98, v10, s[66:67]")
    def first_chunk(a, part, share):
        L = a.newlabel("CV")
        a(f"s_cmp_eq_u32 s{sSpec}, 0\ns_cbranch_scc1 {L}")
        if part == 0:
            a(f"s_cmp_lg_u32 s{Wk.sW}, 0\ns_cbranch_scc1 {L}_B")
            a(f"v_readfirstlane_b32 s{sB}, v250\ns_lshl_b32 s3, 1, s{sTent}\ns_nop 2\ns_and_b32 s{sLost}, s{sB}, s3\ns_or_b32 s{sB}, s{sB}, s3")
            a(f"s_cmp_lg_u32 s{sLost}, 0\ns_cbranch_scc1 {L}_B")
            declare(a)
            a.label(L + "_B")
        if share:
            a(f"s_mov_b32 s{sSpec}, 0")
            if part: a("s_barrier")
            bcast(a, sLost)
            a(f"s_cmp_lg_u32 s{sLost}, 0\ns_cbranch_scc1 L_CLOST")
        a.label(L)
    sChf, sG1 = 88, 89
    def g1addr(a, lane):
        a(f"v_and_b32 v11, 3, {lane}\nv_bfe_u32 v10, {lane}, 2, 1\nv_lshlrev_b32 v10, 13, v10\nv_lshl_add_u32 v10, v11, 7, v10")
    def set_ready(a, v):
        for perm in ("quad_perm:[1,0,3,2]", "quad_perm:[2,3,0,1]", "row_half_mirror"):
            a(f"s_nop 1\nv_min_u32_dpp v{v}, v{v}, v{v} {perm} row_mask:0xf bank_mask:0xf")
        a(f"s_nop 0\nv_readfirstlane_b32 s{sReady}, v{v}\ns_nop 3\ns_lshl_b32 s{sReady}, s{sReady}, 2")
    def peek(a):
        a(f"s_lshl_b32 s{sChf}, s{C.sH}, 7\ns_add_u32 s{sChf}, s{sChf}, {CHF}")
        a(f"s_lshr_b32 s{sG1}, s{C.sH}, 1\ns_lshl_b32 s{sG1}, s{sG1}, 9\ns_add_u32 s{sG1}, s{sG1}, {G1F}")
        a(f"v_mov_b32 v124, -1\nv_mov_b32 v125, -1\nv_mov_b32 v126, -1\nv_mov_b32 v127, -1")
        a(f"s_lshl_b32 s3, s{C.sH}, 2\ns_add_u32 s3, s3, s{Wk.sW}\ns_lshl_b32 s3, s3, 10\ns_add_u32 s3, s3, {KMEM - C.MISC + EFROM*32*4096}")
        for sg in range(EFROM, 64):
            a(f"buffer_store_dwordx4 v[124:127], v{C.vM16}, {WS}, s3 offen sc1\ns_add_u32 s3, s3, {32*4096}")
        g1addr(a, "v0")
        a(f"v_mov_b32 v24, 0\nbuffer_load_dwordx2 v[26:27], v24, {DB}, 0 offen sc1\nbuffer_load_dword v25, v10, {WS}, s{sG1} offen sc1")
    def qlook(a):
        a(f"buffer_load_dword v29, off, {DB}, 0 offset:{D_QP} sc1")
    def qwait(a):
        keep = list(a.vmq)
        a(f"s_mov_b32 s{sD}, 0")
        a.label("L_QW")
        a(f"v_readfirstlane_b32 s{sB}, v29\ns_nop 3\ns_bitcmp1_b32 s{sB}, s{C.sH}\ns_cbranch_scc1 L_QOK")
        a(f"s_add_u32 s{sD}, s{sD}, 1\ns_cmp_gt_u32 s{sD}, {Wk.POLL_BOUND}\ns_cbranch_scc1 L_QOK\ns_sleep 2")
        a(f"buffer_load_dword v29, off, {DB}, 0 offset:{D_QP} sc1\ns_waitcnt vmcnt(0)\ns_branch L_QW")
        a.label("L_QOK")
        a.vmq = keep
    if P.get("qp", 0): P = dict(P, qpre=(qlook, qwait))
    C.prologue_a(a, P, True)
    C.prologue_b(a, P, first_chunk, peek)
    a(f"s_waitcnt vmcnt(0)\nv_readfirstlane_b32 s{sMode}, v26\nv_readfirstlane_b32 s3, v27")
    set_ready(a, 25)
    a(f"s_cmp_ge_u32 s3, {2 * NINIT}\ns_cselect_b32 s{sInit}, 1, s{sInit}\ns_cselect_b32 s{sReady}, s{sReady}, 0")
    wait_init(a, 10)
    if P.get("hold"):
        a(f"s_cmp_lg_u32 s{Wk.sW}, 0\ns_cbranch_scc1 L_STG\ns_add_u32 s3, s{sChf}, 64")
        Wk.flag_store(a, "s3", 1, 10)
        a.label("L_STG")
    a(f"s_cmp_lg_u32 s{sMode}, 0\ns_cbranch_scc1 L_MODEOK\nv_mov_b32 v10, {D_MODE}")
    Wk.poll_ge(a, f"buffer_load_dword v11, v10, {DB}, 0 offen sc1", [11], 1, "MODE")
    a(f"v_readfirstlane_b32 s{sMode}, v11\ns_nop 3")
    a.label("L_MODEOK")
    if P.get("marks"):
        a(f"s_cmp_lg_u32 s{Wk.sW}, 1\ns_cbranch_scc1 L_MK1")
        mark(a, 5); mark(a, 6, True)
        a.label("L_MK1")
    if diag:
        for k in range(20, 30): a(f"s_mov_b32 s{C.sTS+k}, 0")
        a("s_memrealtime s[92:93]\ns_memtime s[96:97]")
    stubs = []
    sPend = 29
    def ready(a, w, tag, first):
        if not first and w != 2: return
        L = a.newlabel("RDY")
        if first: a(f"s_mov_b32 s{C.sStep}, 0\ns_mov_b32 s{sPend}, 0")
        else:
            a(f"s_cmp_eq_u32 s{sPend}, 0\ns_cbranch_scc1 {L}_P\ns_mov_b32 s{sPend}, 0\ns_waitcnt vmcnt(4)")
            set_ready(a, C.vMpub)
            a.label(L + "_P")
        a(f"s_add_u32 s{C.sT0}, s{C.sStep}, 1\ns_min_u32 s{C.sT0}, s{C.sT0}, 63\ns_cmp_ge_u32 s{C.sT0}, s{sReady}\ns_cbranch_scc1 {L}_S")
        a.label(L)
        stubs.append((L, first))
    def look(a):
        L = a.newlabel("LOOK")
        a(f"s_add_u32 s{C.sT0}, s{C.sStep}, 6\ns_min_u32 s{C.sT0}, s{C.sT0}, 63\ns_cmp_lt_u32 s{C.sT0}, s{sReady}\ns_cbranch_scc1 {L}")
        a(f"v_lshrrev_b32 v10, 3, v{C.vL8}")
        g1addr(a, "v10")
        a(f"buffer_load_dword v{C.vMpub}, v10, {WS}, s{sG1} offen sc1\ns_mov_b32 s{sPend}, 1")
        a.label(L)
    def flag(a):
        if P.get("noflag"): return
        if P.get("marks"):
            L = a.newlabel("MK")
            a(f"s_and_b32 s{C.sT0}, s{C.sStep}, 15\ns_cmp_lg_u32 s{C.sT0}, 1\ns_cbranch_scc1 {L}\ns_cmp_lg_u32 s{C.sH}, 5\ns_cbranch_scc1 {L}")
            a(f"s_memrealtime s[98:99]\ns_lshr_b32 s{C.sT0}, s{C.sStep}, 4\ns_lshl_b32 s{C.sT0}, s{C.sT0}, 2\ns_add_u32 s{C.sT0}, s{C.sT0}, 40\ns_waitcnt lgkmcnt(0)")
            a(f"s_mov_b64 exec, 1\nv_mov_b32 v10, s98\nv_mov_b32 v11, s{C.sT0}\nbuffer_store_dword v10, v11, {DB}, 0 offen\ns_mov_b64 exec, -1")
            a.label(L)
        FL = a.newlabel("FLAG")
        FE = P.get("fevery", 4)
        a(f"s_and_b32 s{C.sT0}, s{C.sStep}, {FE-1}\ns_cmp_ge_u32 s{C.sStep}, {P.get('fall', 56)}\ns_cselect_b32 s{C.sT0}, {1 % FE}, s{C.sT0}\ns_cmp_lg_u32 s{C.sT0}, {1 % FE}\ns_cbranch_scc1 {FL}")
        a(f"s_sub_u32 s{C.sT0}, s{C.sStep}, 1\ns_max_i32 s{C.sT0}, s{C.sT0}, 0")
        if P.get("early", 1): a(f"s_cmp_gt_u32 s{C.sStep}, {EFROM}\ns_cselect_b32 s{C.sT0}, s{C.sStep}, s{C.sT0}")
        Wk.flag_store(a, f"s{sChf}", f"s{C.sT0}", 10); a.vmq.pop()
        a.label(FL)
    def done(a, w):
        a("s_barrier" if P.get("early", 1) else "s_waitcnt vmcnt(0)\ns_barrier")
        if w == 0: Wk.flag_store(a, f"s{sChf}", 64, 10)
        if w == 1: mark(a, 7)
        a.vmq = []
        a("s_branch L_FIN")
        for L, first in stubs:
            a.label(L + "_S")
            a(f"s_add_u32 s{C.sT0}, s{C.sStep}, 1\ns_min_u32 s{C.sT0}, s{C.sT0}, 63\ns_lshr_b32 s{C.sT0}, s{C.sT0}, 2\ns_add_u32 s{C.sT0}, s{C.sT0}, 1")
            a(f"v_lshrrev_b32 v10, 3, v{C.vL8}")
            g1addr(a, "v10")
            Wk.poll_ge(a, f"buffer_load_dword v11, v10, {WS}, s{sG1} offen sc1", [11], f"s{C.sT0}", "KV", sleep=0)
            set_ready(a, 11)
            a(f"s_branch {L}")
        stubs.clear()
    P = dict(P, hooks=dict(ready=ready, flag=flag, done=done, look=look))
    a(f"s_cmp_eq_u32 s{sMode}, 1\ns_cbranch_scc0 L_SLOW")
    for st in ("", "sc1"):
        if st: a.label("L_SLOW")
        t = "s" if st else "f"
        for w in range(1, 4): a(f"s_cmp_eq_u32 s{C.sW}, {w}\ns_cbranch_scc1 CH_W{w}{t}")
        for w in range(4):
            a.label(f"CH_W{w}{t}")
            C.loop(a, w, st, P, diag and not P.get('agg'))
    a.label("L_FIN")
    if diag:
        a("s_waitcnt vmcnt(0)\ns_memrealtime s[94:95]\ns_memtime s[98:99]\ns_waitcnt lgkmcnt(0)")
        a(f"s_lshl_b32 s3, s2, 2\ns_add_u32 s3, s3, s{Wk.sW}\ns_lshl_b32 s3, s3, 7\ns_add_u32 s3, s3, {DBG}")
        vals = [C.sTS + 20 + k for k in range(10)] + [90, 92, 94, 96, 98, sR, sXcc, Wk.sDead, 100, 101, 72, 74, 76, 78]
        for i, sg in enumerate(vals):
            a(f"v_mov_b32 v20, s{sg}\nv_mov_b32 v21, {4*i}\nbuffer_store_dword v20, v21, {WS}, s3 offen")
    a("s_waitcnt vmcnt(0)")
    a.label("L_END")
    return a.text()

def wrap(body):
    ref = open(f"cdna_kernels/{NAME}.s.ref").read().split("\n")
    head = [l for l in ref if l.startswith(";") and "@launch" not in l]
    return "\n".join(head) + f"""
; @launch grid=(256,1,1) block=(256,1,1) lds=163840
.amdgcn_target "amdgcn-amd-amdhsa--gfx950"
.text
.globl {NAME}_kernel
.p2align 8
.type {NAME}_kernel,@function
{NAME}_kernel:
{body}s_endpgm
.section .rodata,"a"
.p2align 6
.amdhsa_kernel {NAME}_kernel
  .amdhsa_next_free_vgpr 512
  .amdhsa_next_free_sgpr 102
  .amdhsa_accum_offset 256
  .amdhsa_group_segment_fixed_size 0
  .amdhsa_kernarg_size 120
  .amdhsa_user_sgpr_count 2
  .amdhsa_user_sgpr_kernarg_segment_ptr 1
  .amdhsa_system_sgpr_workgroup_id_x 1
.end_amdhsa_kernel
"""
if __name__ == "__main__":
    import ast
    P = dict(CH)
    if len(sys.argv) > 2: P.update(ast.literal_eval(sys.argv[2]))
    t = gen(P)
    hz = check(t)
    for h in hz[:12]: print(h)
    out = sys.argv[1] if len(sys.argv) > 1 else f"cdna_kernels/{NAME}.s"
    open(out, "w").write(wrap(t))
    print("lines", len(t.split("\n")), "hazards", len(hz))
```

```python
import sys
from asm import *
from layout import *
import os, importlib
C = importlib.import_module(os.environ.get("CHAINMOD", "chain"))
import workers as Wk
NAME = "parallel_sum__memory_aug_recurrent_mem_tr__dense_activation_squared_relu__prompt"
CH = dict(pre_bar=4, v_0=0, v_pre=3, o_pre=2, dlyA=(28, 40), st4=1, pboth=1, dlyB=16, w1c=20, pst0=1, pbar=1, nrA=3, bound=1 << 16, depA=(2, 2), depB=2, gapA=24, gapB=16, x0=0, xw_only=1, jbar=1, jobs='S', j0=4, jstr=10, jw=2, a_burst=2, r_pre=2, kx_in=5, nt='', pf0=(54, 50, 52), order='okvq', qp=1, cverd=4, vfirst=(0, 4), ph={'head': 3})
sDB = 4
sInit, sReady, sMode, sXcc, sTent = 84, 85, 86, 87, 83
sCounted, sLost = 29, 79
sA, sB, sC_, sD = Wk.sA, Wk.sB, Wk.sC_, Wk.sD
WS = Wk.WS
DB = f"s[{sDB}:{sDB+3}]"
ROLE_LDS = 163840 - 16
MODE_BOUND = 2000

def wait_init(a, v=2):
    L = a.newlabel("INIT")
    a(f"s_cmp_lg_u32 s{sInit}, 0\ns_cbranch_scc1 {L}")
    a(f"v_mov_b32 v{v}, {D_INIT}")
    Wk.poll_ge(a, f"buffer_load_dword v{v+1}, v{v}, {DB}, 0 offen sc1", [v + 1], 2 * NINIT, "INIT", sleep=4)
    a(f"s_mov_b32 s{sInit}, 1")
    a.label(L)

def atomic(a, op, off, val, dst, cmp=None):
    a(f"s_mov_b64 exec, 1\nv_mov_b32 v20, {val}\nv_mov_b32 v22, {off}")
    if cmp is not None:
        a(f"v_mov_b32 v21, {cmp}\nbuffer_atomic_cmpswap v[20:21], v22, {DB}, 0 offen sc0")
    else:
        a(f"buffer_atomic_{op} v20, v22, {DB}, 0 offen sc0")
    a(f"s_waitcnt vmcnt(0)\nv_readfirstlane_b32 s{dst}, v20\ns_mov_b64 exec, -1\ns_nop 3")

def claim(a, name, sRes, sOff):
    a.label(f"CLAIM_{name}")
    a(f"s_lshl_b32 s{sC_}, 1, s{sA}")
    atomic(a, "or", f"s{sOff}", f"s{sC_}", sB)
    a.label(f"CLAIM_{name}_R")
    a(f"s_and_b32 s{sD}, s{sB}, s{sC_}\ns_or_b32 s{sB}, s{sB}, s{sC_}\ns_mov_b32 s{sRes}, s{sA}")
    a(f"s_cmp_eq_u32 s{sD}, 0\ns_cbranch_scc1 CLAIM_{name}_E")
    a(f"s_mov_b32 s{sRes}, -1\ns_cmp_eq_u32 s{sB}, -1\ns_cbranch_scc1 CLAIM_{name}_E")
    a(f"s_ff0_i32_b32 s{sA}, s{sB}\ns_branch CLAIM_{name}")
    a.label(f"CLAIM_{name}_E")

def bcast(a, s):
    L = a.newlabel("BC")
    a(f"v_mov_b32 v22, {ROLE_LDS}")
    a(f"s_cmp_lg_u32 s{Wk.sW}, 0\ns_cbranch_scc1 {L}\nv_mov_b32 v20, s{s}\nds_write_b32 v22, v20\ns_waitcnt lgkmcnt(0)")
    a.label(L)
    a(f"s_barrier\nds_read_b32 v20, v22\ns_waitcnt lgkmcnt(0)\nv_readfirstlane_b32 s{s}, v20\ns_barrier")

def gen(P=CH, diag=False, force_slow=False):
    a = Asm()
    def mark(a, word, neg=False):
        if not P.get("marks"): return
        a(f"s_memrealtime s[98:99]\ns_waitcnt lgkmcnt(0)")
        if neg: a("s_not_b32 s98, s98")
        a(f"s_mov_b64 exec, 1\nv_mov_b32 v10, s98\nv_mov_b32 v11, {4*word}\nbuffer_atomic_umax v10, v11, {DB}, 0 offen\ns_mov_b64 exec, -1")
    Wk.SLEEP[0] = P.get('sleep', 1); Wk.PREFETCH[0] = P.get('pf', ());  Wk.EARLY[0] = P.get('early', 2); Wk.WVERD[0] = P.get('wverd', 0); Wk.QLATE[0] = P.get('qlate', 0); Wk.HOLD[0] = P.get('hold', 0); Wk.OUTF[0] = P.get('outf', 'sc1')
    sR = Wk.sRole
    a(f"""
    s_cmp_ge_u32 s2, 256
    s_cbranch_scc1 L_END
    s_load_dwordx2 s[{Wk.sWS}:{Wk.sWS+1}], s[0:1], {KA['ws']}
    s_load_dwordx2 s[{sDB}:{sDB+1}], s[0:1], {KA['dbg']}
    s_getreg_b32 s{sXcc}, hwreg(HW_REG_XCC_ID, 0, 4)
    s_mov_b32 s{Wk.sWS+2}, {WS_BYTES}
    s_mov_b32 s{Wk.sWS+3}, 0x20000
    s_mov_b32 s{sDB+2}, 256
    s_mov_b32 s{sDB+3}, 0x20000
    s_mov_b32 s{Wk.sDead}, 0
    s_mov_b32 s{sInit}, 0
    s_mov_b32 s82, 0
    s_mov_b32 s{sLost}, 0
    v_mov_b32 v250, 0
    v_lshrrev_b32 v1, 6, v0
    v_lshlrev_b32 v8, 4, v0
    v_readfirstlane_b32 s{Wk.sW}, v1
    v_and_b32 v0, 63, v0
    v_mov_b32 v12, -1
    v_mov_b32 v13, -1
    v_mov_b32 v14, -1
    v_mov_b32 v15, -1
    """)
    if diag: a("s_memrealtime s[90:91]")
    CX = 9 if force_slow else P.get('cx', 3)
    sOff, sTry, sDie, sWord, sSpec = 18, 19, 80, 81, 82
    def declare(a):
        L = a.newlabel("DECL")
        a(f"s_cmp_lg_u32 s{sB}, -1\ns_cbranch_scc1 {L}")
        a(f"s_mov_b64 exec, 1\nv_mov_b32 v20, 1\nv_mov_b32 v21, 0\nv_mov_b32 v22, {D_MODE}\nbuffer_atomic_cmpswap v[20:21], v22, {DB}, 0 offen\ns_mov_b64 exec, -1")
        a.label(L)
    a(f"""
    s_bfe_u32 s{sR}, s2, 0x50003
    s_waitcnt lgkmcnt(0)
    """)
    if P.get("marks"):
        a(f"s_cmp_lg_u32 s{Wk.sW}, 0\ns_cbranch_scc1 L_MK0\ns_and_b32 s3, s2, 15\ns_cmp_lg_u32 s3, 0\ns_cbranch_scc1 L_MK0")
        mark(a, 4, True)
        a.label("L_MK0")
    a(f"""
    s_mov_b32 s{sTent}, s{sR}
    s_add_u32 s{sDie}, s{sXcc}, {(15 - CX) % 8}
    s_and_b32 s{sDie}, s{sDie}, 7
    s_min_u32 s{sDie}, s{sDie}, 6
    s_lshl_b32 s{sWord}, s{sDie}, 2
    s_add_u32 s{sWord}, s{sWord}, {D_WM}
    s_cmp_eq_u32 s{sXcc}, {CX}
    s_cselect_b32 s{sWord}, {D_MASK}, s{sWord}
    s_and_b32 s3, s2, 0x87
    s_cmp_lg_u32 s3, 0
    s_cbranch_scc1 L_I3
    s_xor_b32 s3, s{Wk.sW}, s{sTent}
    s_bitcmp1_b32 s3, 0
    s_cbranch_scc0 L_I3
    """)
    a(f"s_lshr_b32 s{sA}, s2, 3")
    a(f"s_lshr_b32 s3, s{Wk.sW}, 1\ns_lshl_b32 s{sA}, s{sA}, 1\ns_add_u32 s{sA}, s{sA}, s3\nv_lshlrev_b32 v9, 4, v0")
    a(f"s_lshl_b32 s3, s{sA}, 13\ns_add_u32 s3, s3, {PART}")
    for k in range(8):
        a(f"buffer_store_dwordx4 v[12:15], v9, {WS}, s3 offen offset:{(k&3)*1024} sc1")
        if k == 3: a("s_add_u32 s3, s3, 4096")
    a(f"""
    s_lshl_b32 s3, s{sA}, 10
    s_add_u32 s3, s3, {MBUF}
    buffer_store_dwordx4 v[12:15], v9, {WS}, s3 offen sc1
    s_mul_i32 s3, s{sA}, 2560
    s_add_u32 s3, s3, {FLG}
    v_mov_b32 v16, 0
    v_mov_b32 v17, 0
    v_mov_b32 v18, 0
    v_mov_b32 v19, 0
    buffer_store_dwordx4 v[16:19], v9, {WS}, s3 offen sc1
    buffer_store_dwordx4 v[16:19], v9, {WS}, s3 offen offset:1024 sc1
    s_mov_b64 exec, 0xffffffff
    buffer_store_dwordx4 v[16:19], v9, {WS}, s3 offen offset:2048 sc1
    s_mov_b64 exec, -1
    s_waitcnt vmcnt(0)
    s_mov_b64 exec, 1
    v_mov_b32 v20, 1
    v_mov_b32 v22, {D_INIT}
    buffer_atomic_add v20, v22, {DB}, 0 offen
    s_mov_b64 exec, -1
    L_I3:
    s_cmp_lg_u32 s{Wk.sW}, 0
    s_cbranch_scc1 L_I2
    s_mov_b64 exec, 1
    s_lshl_b32 s3, 1, s{sTent}
    v_mov_b32 v250, s3
    v_mov_b32 v22, s{sWord}
    buffer_atomic_or v250, v22, {DB}, 0 offen sc0
    s_mov_b64 exec, -1
    L_I2:
    s_cmp_lg_u32 s{sXcc}, {CX}
    s_cbranch_scc1 L_NOSPEC
    s_mov_b32 s{sSpec}, 1
    s_branch L_CHAIN
    L_CLOST:
    s_waitcnt vmcnt(0)
    s_cmp_lg_u32 s{Wk.sW}, 0
    s_cbranch_scc1 L_ROLE
    s_mov_b32 s{sA}, s{sTent}
    s_mov_b32 s{sOff}, {D_MASK}
    """)
    claim(a, "A", sR, sOff)
    a(f"s_cmp_eq_u32 s{sR}, -1\ns_cbranch_scc1 L_WCLAIM")
    declare(a)
    a("s_branch L_ROLE")
    a.label("L_NOSPEC")
    if P.get("pf0"):
        a(f"s_xor_b32 s3, s{Wk.sW}, s{sTent}\ns_bitcmp1_b32 s3, 0\ns_cbranch_scc0 L_PF")
        a(f"s_lshr_b32 s3, s{sDie}, 1\ns_lshl_b32 s3, s3, 1\ns_lshr_b32 s44, s{sTent}, 4\ns_add_u32 s3, s3, s44\ns_cmp_eq_u32 s3, 5\ns_cbranch_scc1 L_PF")
        a(f"s_load_dwordx4 s[48:51], s[0:1], {KA['Wq']}\ns_load_dwordx4 s[52:55], s[0:1], {KA['Wv']}\ns_mov_b32 s42, 0x400000\ns_mov_b32 s43, 0x20000")
        a(f"v_lshlrev_b32 v13, 7, v0\ns_lshr_b32 s3, s{Wk.sW}, 1\ns_add_u32 s3, s3, s2\ns_and_b32 s3, s3, 255\ns_lshl_b32 s3, s3, 14\ns_add_u32 s44, s3, 8192\ns_waitcnt lgkmcnt(0)")
        for p in P["pf0"]:
            a(f"s_mov_b32 s40, s{p}\ns_mov_b32 s41, s{p+1}\nbuffer_load_dword v252, v13, s[40:43], s3 offen\nbuffer_load_dword v252, v13, s[40:43], s44 offen")
        a.label("L_PF")
    a(f"s_lshl_b32 s{sR}, s{sDie}, 5\ns_add_u32 s{sR}, s{sR}, s{sTent}\ns_mov_b32 s{sSpec}, 1\ns_branch L_WORK")
    a.label("L_WLOST")
    a("s_waitcnt vmcnt(0) lgkmcnt(0)")
    a(f"s_cmp_lg_u32 s{Wk.sW}, 0\ns_cbranch_scc1 L_ROLE2")
    a.label("L_WCLAIM")
    a(f"s_mov_b32 s{sOff}, s{sDie}\ns_mov_b32 s{sTry}, 0\ns_mov_b32 s{sA}, s{sTent}")
    a.label("L_WNEXT")
    a(f"s_cmp_ge_u32 s{sOff}, 7\ns_cselect_b32 s{sB}, 7, 0\ns_sub_u32 s{sOff}, s{sOff}, s{sB}")
    a(f"s_cmp_ge_u32 s{sOff}, 7\ns_cselect_b32 s{sB}, 7, 0\ns_sub_u32 s{sOff}, s{sOff}, s{sB}")
    a(f"s_lshl_b32 s{sOff}, s{sOff}, 2\ns_add_u32 s{sOff}, s{sOff}, {D_WM}")
    claim(a, "W", sR, sOff)
    a(f"s_sub_u32 s{sOff}, s{sOff}, {D_WM}\ns_lshr_b32 s{sOff}, s{sOff}, 2")
    a(f"s_cmp_eq_u32 s{sR}, -1\ns_cbranch_scc0 L_WGOT")
    a(f"s_add_u32 s{sOff}, s{sOff}, 1\ns_add_u32 s{sTry}, s{sTry}, 1\ns_mov_b32 s{sA}, 0\ns_cmp_lt_u32 s{sTry}, 7\ns_cbranch_scc1 L_WNEXT")
    atomic(a, "cmpswap", D_MODE, 2, sB, cmp=0)
    a(f"s_mov_b32 s{sA}, 0\ns_mov_b32 s{sOff}, {D_MASK}")
    claim(a, "B", sR, sOff)
    a("s_branch L_ROLE")
    a.label("L_WGOT")
    a(f"s_lshl_b32 s{sOff}, s{sOff}, 5\ns_add_u32 s{sR}, s{sR}, s{sOff}\ns_add_u32 s{sR}, s{sR}, 32")
    def verdict(a):
        L = a.newlabel("VERD")
        a(f"s_cmp_eq_u32 s{sSpec}, 0\ns_cbranch_scc1 {L}\ns_mov_b32 s{sSpec}, 0")
        a(f"v_readfirstlane_b32 s{sB}, v250\ns_nop 3\ns_lshr_b32 s{sB}, s{sB}, s{sTent}\ns_and_b32 s{sB}, s{sB}, 1")
        bcast(a, sB)
        a(f"s_cmp_lg_u32 s{sB}, 0\ns_cbranch_scc1 L_WLOST")
        a.label(L)
    a.label("L_ROLE")
    a.label("L_ROLE2")
    bcast(a, sR)
    a(f"s_cmp_lt_u32 s{sR}, 32\ns_cbranch_scc1 L_CHAIN")
    a(f"s_cmp_eq_u32 s{sR}, -1\ns_cbranch_scc1 L_FIN")
    a(f"s_waitcnt vmcnt(0)\ns_sub_u32 s{sR}, s{sR}, 32")
    a("; ======================== workers")
    a.label("L_WORK")
    if P.get("wpf"):
        a("s_getpc_b64 s[66:67]\nv_lshlrev_b32 v10, 7, v0")
        a(f"s_lshl_b32 s3, s{Wk.sW}, 13\nv_add_u32 v10, s3, v10\nv_min_u32 v10, {P['wpf']}, v10\nglobal_load_dword v252, v10, s[66:67]")
    if diag: a("s_memrealtime s[70:71]\ns_waitcnt lgkmcnt(0)\ns_mov_b32 s100, s70\ns_add_u32 s101, s16, 32")
    if diag: a("s_mov_b32 s64, 0\ns_mov_b32 s66, 0\ns_mov_b32 s68, 0\ns_mov_b32 s72, 0")
    if P.get("qp", 0):
        a(f"s_sub_u32 s3, s{sR}, 128\ns_and_b32 s3, s3, 0xffffffd0\ns_cmp_lg_u32 s3, 16\ns_cbranch_scc1 L_G1")
        a(f"s_and_b32 s18, s{sR}, 15\ns_lshr_b32 s3, s{sR}, 1\ns_and_b32 s3, s3, 16\ns_add_u32 s18, s18, s3")
        def qdone(a):
            a(f"s_cmp_lg_u32 s{Wk.sW}, 0\ns_cbranch_scc1 L_G1")
            a(f"s_lshl_b32 s3, 1, s18\ns_mov_b64 exec, 1\nv_mov_b32 v2, s3\nbuffer_atomic_or v2, off, {DB}, 0 offset:{D_QP}\ns_mov_b64 exec, -1")
            if diag: a("s_memrealtime s[40:41]\ns_waitcnt lgkmcnt(0)\ns_mov_b32 s100, s40")
        C.qprep(a, 18, qdone)
        a.label("L_G1")
    Wk.gemm1(a, wait_init, verdict, sInit, diag)
    if diag: a("s_memtime s[78:79]")
    if P.get("marks"):
        a(f"s_cmp_lg_u32 s{Wk.sW}, 0\ns_cbranch_scc1 L_MK2\ns_and_b32 s3, s{sR}, 7\ns_cmp_lg_u32 s3, 0\ns_cbranch_scc1 L_MK2")
        mark(a, 8)
        a.label("L_MK2")
    if diag: a("s_memrealtime s[92:93]")
    wait_init(a)
    a(f"s_cmp_ge_u32 s{sR}, 192\ns_cbranch_scc1 L_FIN\ns_cmp_lt_u32 s{sR}, 160\ns_cbranch_scc1 L_G2\ns_sub_u32 s{sR}, s{sR}, 160")
    Wk.attention(a, diag)
    a("s_branch L_FIN")
    a.label("L_G2")
    Wk.gemm2(a, diag)
    if P.get("marks"):
        a(f"s_waitcnt vmcnt(0)\ns_cmp_lg_u32 s{Wk.sW}, 0\ns_cbranch_scc1 L_FIN")
        mark(a, 9)
    a("s_branch L_FIN")
    a("; ======================== recurrence")
    a.label("L_CHAIN")
    if diag: a("s_memrealtime s[70:71]\ns_waitcnt lgkmcnt(0)\ns_mov_b32 s100, s70\ns_mov_b32 s101, s16")
    if P.get("cpf"):
        a("s_getpc_b64 s[66:67]\nv_lshlrev_b32 v10, 7, v0")
        a(f"s_lshl_b32 s3, s{Wk.sW}, 13\nv_add_u32 v10, s3, v10\nv_min_u32 v10, {P['cpf']}, v10\nglobal_load_dword v98, v10, s[66:67]")
    def first_chunk(a, part, share):
        L = a.newlabel("CV")
        a(f"s_cmp_eq_u32 s{sSpec}, 0\ns_cbranch_scc1 {L}")
        if part == 0:
            a(f"s_cmp_lg_u32 s{Wk.sW}, 0\ns_cbranch_scc1 {L}_B")
            a(f"v_readfirstlane_b32 s{sB}, v250\ns_lshl_b32 s3, 1, s{sTent}\ns_nop 2\ns_and_b32 s{sLost}, s{sB}, s3\ns_or_b32 s{sB}, s{sB}, s3")
            a(f"s_cmp_lg_u32 s{sLost}, 0\ns_cbranch_scc1 {L}_B")
            declare(a)
            a.label(L + "_B")
        if share:
            a(f"s_mov_b32 s{sSpec}, 0")
            if part: a("s_barrier")
            bcast(a, sLost)
            a(f"s_cmp_lg_u32 s{sLost}, 0\ns_cbranch_scc1 L_CLOST")
        a.label(L)
    sChf, sG1 = 88, 89
    def g1addr(a, lane):
        a(f"v_and_b32 v11, 3, {lane}\nv_bfe_u32 v10, {lane}, 2, 1\nv_lshlrev_b32 v10, 13, v10\nv_lshl_add_u32 v10, v11, 7, v10")
    def set_ready(a, v):
        for perm in ("quad_perm:[1,0,3,2]", "quad_perm:[2,3,0,1]", "row_half_mirror"):
            a(f"s_nop 1\nv_min_u32_dpp v{v}, v{v}, v{v} {perm} row_mask:0xf bank_mask:0xf")
        a(f"s_nop 0\nv_readfirstlane_b32 s{sReady}, v{v}\ns_nop 3\ns_lshl_b32 s{sReady}, s{sReady}, 2")
    def peek(a):
        a(f"s_lshl_b32 s{sChf}, s{C.sH}, 7\ns_add_u32 s{sChf}, s{sChf}, {CHF}")
        a(f"s_lshr_b32 s{sG1}, s{C.sH}, 1\ns_lshl_b32 s{sG1}, s{sG1}, 9\ns_add_u32 s{sG1}, s{sG1}, {G1F}")
        a(f"v_mov_b32 v124, -1\nv_mov_b32 v125, -1\nv_mov_b32 v126, -1\nv_mov_b32 v127, -1")
        a(f"s_lshl_b32 s3, s{C.sH}, 2\ns_add_u32 s3, s3, s{Wk.sW}\ns_lshl_b32 s3, s3, 10\ns_add_u32 s3, s3, {KMEM - C.MISC + EFROM*32*4096}")
        for sg in range(EFROM, 64):
            a(f"buffer_store_dwordx4 v[124:127], v{C.vM16}, {WS}, s3 offen sc1\ns_add_u32 s3, s3, {32*4096}")
        g1addr(a, "v0")
        a(f"v_mov_b32 v24, 0\nbuffer_load_dwordx2 v[26:27], v24, {DB}, 0 offen sc1\nbuffer_load_dword v25, v10, {WS}, s{sG1} offen sc1")
    def qtest(a, v, late):
        a(f"v_readfirstlane_b32 s{sB}, v{v}\ns_nop 3\ns_bitcmp1_b32 s{sB}, s{C.sH}\ns_cbranch_scc0 {late}")
    def qlook(a, v):
        a(f"buffer_load_dword v{v}, off, {DB}, 0 offset:{D_QP} sc1")
    def qwait(a):
        keep = list(a.vmq)
        if diag: a("s_memrealtime s[72:73]")
        a(f"s_mov_b32 s{sD}, 0")
        a.label("L_QW")
        a(f"v_readfirstlane_b32 s{sB}, v29\ns_nop 3\ns_bitcmp1_b32 s{sB}, s{C.sH}\ns_cbranch_scc1 L_QOK")
        a(f"s_add_u32 s{sD}, s{sD}, 1\ns_cmp_gt_u32 s{sD}, {Wk.POLL_BOUND}\ns_cbranch_scc1 L_QOK\ns_sleep 2")
        a(f"buffer_load_dword v29, off, {DB}, 0 offset:{D_QP} sc1\ns_waitcnt vmcnt(0)\ns_branch L_QW")
        a.label("L_QOK")
        if diag: a("s_memrealtime s[74:75]\ns_waitcnt lgkmcnt(0)\ns_mov_b32 s100, s72\ns_mov_b32 s101, s74")
        a.vmq = keep
    if P.get("qp", 0): P = dict(P, qpre=(qlook, qwait, qtest))
    C.prologue_a(a, P, True)
    C.prologue_b(a, P, first_chunk, peek)
    a(f"s_waitcnt vmcnt(0)\nv_readfirstlane_b32 s{sMode}, v26\nv_readfirstlane_b32 s3, v27")
    set_ready(a, 25)
    a(f"s_cmp_ge_u32 s3, {2 * NINIT}\ns_cselect_b32 s{sInit}, 1, s{sInit}\ns_cselect_b32 s{sReady}, s{sReady}, 0")
    wait_init(a, 10)
    if P.get("hold"):
        a(f"s_cmp_lg_u32 s{Wk.sW}, 0\ns_cbranch_scc1 L_STG\ns_add_u32 s3, s{sChf}, 64")
        Wk.flag_store(a, "s3", 1, 10)
        a.label("L_STG")
    a(f"s_cmp_lg_u32 s{sMode}, 0\ns_cbranch_scc1 L_MODEOK\nv_mov_b32 v10, {D_MODE}")
    Wk.poll_ge(a, f"buffer_load_dword v11, v10, {DB}, 0 offen sc1", [11], 1, "MODE")
    a(f"v_readfirstlane_b32 s{sMode}, v11\ns_nop 3")
    a.label("L_MODEOK")
    if P.get("marks"):
        a(f"s_cmp_lg_u32 s{Wk.sW}, 1\ns_cbranch_scc1 L_MK1")
        mark(a, 5); mark(a, 6, True)
        a.label("L_MK1")
    if diag:
        for k in range(20, 30): a(f"s_mov_b32 s{C.sTS+k}, 0")
        a("s_memrealtime s[92:93]\ns_memtime s[96:97]")
    stubs = []
    sPend = 29
    def ready(a, w, tag, first):
        if not first and w != 2: return
        L = a.newlabel("RDY")
        if first: a(f"s_mov_b32 s{C.sStep}, 0\ns_mov_b32 s{sPend}, 0")
        else:
            a(f"s_cmp_eq_u32 s{sPend}, 0\ns_cbranch_scc1 {L}_P\ns_mov_b32 s{sPend}, 0\ns_waitcnt vmcnt(4)")
            set_ready(a, C.vMpub)
            a.label(L + "_P")
        a(f"s_add_u32 s{C.sT0}, s{C.sStep}, 1\ns_min_u32 s{C.sT0}, s{C.sT0}, 63\ns_cmp_ge_u32 s{C.sT0}, s{sReady}\ns_cbranch_scc1 {L}_S")
        a.label(L)
        stubs.append((L, first))
    def look(a):
        L = a.newlabel("LOOK")
        a(f"s_add_u32 s{C.sT0}, s{C.sStep}, 6\ns_min_u32 s{C.sT0}, s{C.sT0}, 63\ns_cmp_lt_u32 s{C.sT0}, s{sReady}\ns_cbranch_scc1 {L}")
        a(f"v_lshrrev_b32 v10, 3, v{C.vL8}")
        g1addr(a, "v10")
        a(f"buffer_load_dword v{C.vMpub}, v10, {WS}, s{sG1} offen sc1\ns_mov_b32 s{sPend}, 1")
        a.label(L)
    def flag(a):
        if P.get("noflag"): return
        if P.get("marks"):
            L = a.newlabel("MK")
            a(f"s_and_b32 s{C.sT0}, s{C.sStep}, 15\ns_cmp_lg_u32 s{C.sT0}, 1\ns_cbranch_scc1 {L}\ns_cmp_lg_u32 s{C.sH}, 5\ns_cbranch_scc1 {L}")
            a(f"s_memrealtime s[98:99]\ns_lshr_b32 s{C.sT0}, s{C.sStep}, 4\ns_lshl_b32 s{C.sT0}, s{C.sT0}, 2\ns_add_u32 s{C.sT0}, s{C.sT0}, 40\ns_waitcnt lgkmcnt(0)")
            a(f"s_mov_b64 exec, 1\nv_mov_b32 v10, s98\nv_mov_b32 v11, s{C.sT0}\nbuffer_store_dword v10, v11, {DB}, 0 offen\ns_mov_b64 exec, -1")
            a.label(L)
        FL = a.newlabel("FLAG")
        FE = P.get("fevery", 4)
        a(f"s_and_b32 s{C.sT0}, s{C.sStep}, {FE-1}\ns_cmp_ge_u32 s{C.sStep}, {P.get('fall', 56)}\ns_cselect_b32 s{C.sT0}, {1 % FE}, s{C.sT0}\ns_cmp_lg_u32 s{C.sT0}, {1 % FE}\ns_cbranch_scc1 {FL}")
        a(f"s_sub_u32 s{C.sT0}, s{C.sStep}, 1\ns_max_i32 s{C.sT0}, s{C.sT0}, 0")
        if P.get("early", 1): a(f"s_cmp_gt_u32 s{C.sStep}, {EFROM}\ns_cselect_b32 s{C.sT0}, s{C.sStep}, s{C.sT0}")
        Wk.flag_store(a, f"s{sChf}", f"s{C.sT0}", 10); a.vmq.pop()
        a.label(FL)
    def done(a, w):
        a("s_barrier" if P.get("early", 1) else "s_waitcnt vmcnt(0)\ns_barrier")
        if w == 0: Wk.flag_store(a, f"s{sChf}", 64, 10)
        if w == 1: mark(a, 7)
        a.vmq = []
        a("s_branch L_FIN")
        for L, first in stubs:
            a.label(L + "_S")
            a(f"s_add_u32 s{C.sT0}, s{C.sStep}, 1\ns_min_u32 s{C.sT0}, s{C.sT0}, 63\ns_lshr_b32 s{C.sT0}, s{C.sT0}, 2\ns_add_u32 s{C.sT0}, s{C.sT0}, 1")
            a(f"v_lshrrev_b32 v10, 3, v{C.vL8}")
            g1addr(a, "v10")
            Wk.poll_ge(a, f"buffer_load_dword v11, v10, {WS}, s{sG1} offen sc1", [11], f"s{C.sT0}", "KV", sleep=0)
            set_ready(a, 11)
            a(f"s_branch {L}")
        stubs.clear()
    P = dict(P, hooks=dict(ready=ready, flag=flag, done=done, look=look))
    a(f"s_cmp_eq_u32 s{sMode}, 1\ns_cbranch_scc0 L_SLOW")
    for st in ("", "sc1"):
        if st: a.label("L_SLOW")
        t = "s" if st else "f"
        for w in range(1, 4): a(f"s_cmp_eq_u32 s{C.sW}, {w}\ns_cbranch_scc1 CH_W{w}{t}")
        for w in range(4):
            a.label(f"CH_W{w}{t}")
            C.loop(a, w, st, P, diag and not P.get('agg'))
    a.label("L_FIN")
    if diag:
        a("s_waitcnt vmcnt(0)\ns_memrealtime s[94:95]\ns_memtime s[98:99]\ns_waitcnt lgkmcnt(0)")
        a(f"s_lshl_b32 s3, s2, 2\ns_add_u32 s3, s3, s{Wk.sW}\ns_lshl_b32 s3, s3, 7\ns_add_u32 s3, s3, {DBG}")
        vals = [C.sTS + 20 + k for k in range(10)] + [90, 92, 94, 96, 98, sR, sXcc, Wk.sDead, 100, 101, 72, 74, 76, 78]
        for i, sg in enumerate(vals):
            a(f"v_mov_b32 v20, s{sg}\nv_mov_b32 v21, {4*i}\nbuffer_store_dword v20, v21, {WS}, s3 offen")
    a("s_waitcnt vmcnt(0)")
    a.label("L_END")
    return a.text()

def wrap(body):
    ref = open(f"cdna_kernels/{NAME}.s.ref").read().split("\n")
    head = [l for l in ref if l.startswith(";") and "@launch" not in l]
    return "\n".join(head) + f"""
; One persistent launch, one workgroup per CU, roles claimed through d_debug:
;   32 workgroups on one die run the 64-step memory recurrence (one head each, weights resident in registers / LDS,
;   all-reduce through that die's L2; a device-scope variant is used when they do not share a die);
;   the others do layernorm, the K/V/Q/FFN1 GEMMs, attention of the x rows and the output GEMM behind it.
; Generated by my own script (gen/main.py).
; @launch grid=(256,1,1) block=(256,1,1) lds=163840
.amdgcn_target "amdgcn-amd-amdhsa--gfx950"
.text
.globl {NAME}_kernel
.p2align 8
.type {NAME}_kernel,@function
{NAME}_kernel:
{body}s_endpgm
.section .rodata,"a"
.p2align 6
.amdhsa_kernel {NAME}_kernel
  .amdhsa_next_free_vgpr 512
  .amdhsa_next_free_sgpr 102
  .amdhsa_accum_offset 256
  .amdhsa_group_segment_fixed_size 0
  .amdhsa_kernarg_size 120
  .amdhsa_user_sgpr_count 2
  .amdhsa_user_sgpr_kernarg_segment_ptr 1
  .amdhsa_system_sgpr_workgroup_id_x 1
.end_amdhsa_kernel
"""
if __name__ == "__main__":
    import ast
    P = dict(CH)
    if len(sys.argv) > 2: P.update(ast.literal_eval(sys.argv[2]))
    t = gen(P)
    hz = check(t)
    for h in hz[:12]: print(h)
    out = sys.argv[1] if len(sys.argv) > 1 else f"cdna_kernels/{NAME}.s"
    open(out, "w").write(wrap(t))
    print("lines", len(t.split("\n")), "hazards", len(hz))
```

```python
import sys
from asm import *
from layout import *
import os, importlib
C = importlib.import_module(os.environ.get("CHAINMOD", "chain"))
import workers as Wk
NAME = "parallel_sum__memory_aug_recurrent_mem_tr__dense_activation_squared_relu__prompt"
CH = dict(pre_bar=8, el=4, elgap=16, v_0=0, v_pre=4, o_pre=2, dlyA=(28, 40), st4=1, pboth=1, dlyB=0, w1c=20, pst0=1, pbar=1, nrA=3, bound=1 << 16, depA=(2, 2), depB=2, gapA=24, gapB=16, x0=0, xw_only=1, jbar=1, jobs='S', j0=4, jstr=10, jw=2, a_burst=2, r_pre=2, kx_in=5, nt='', pf0=(54, 50, 52), order='okvq', qp=1, cverd=4, vfirst=(4, 4), ph={'head': 2}, jl=1)
sDB = 4
sInit, sReady, sMode, sXcc, sTent = 84, 85, 86, 87, 83
sCounted, sLost = 29, 79
sA, sB, sC_, sD = Wk.sA, Wk.sB, Wk.sC_, Wk.sD
WS = Wk.WS
DB = f"s[{sDB}:{sDB+3}]"
ROLE_LDS = 163840 - 16
MODE_BOUND = 2000

def wait_init(a, v=2):
    L = a.newlabel("INIT")
    a(f"s_cmp_lg_u32 s{sInit}, 0\ns_cbranch_scc1 {L}")
    a(f"v_mov_b32 v{v}, {D_INIT}")
    Wk.poll_ge(a, f"buffer_load_dword v{v+1}, v{v}, {DB}, 0 offen sc1", [v + 1], 2 * NINIT, "INIT", sleep=4)
    a(f"s_mov_b32 s{sInit}, 1")
    a.label(L)

def atomic(a, op, off, val, dst, cmp=None):
    a(f"s_mov_b64 exec, 1\nv_mov_b32 v20, {val}\nv_mov_b32 v22, {off}")
    if cmp is not None:
        a(f"v_mov_b32 v21, {cmp}\nbuffer_atomic_cmpswap v[20:21], v22, {DB}, 0 offen sc0")
    else:
        a(f"buffer_atomic_{op} v20, v22, {DB}, 0 offen sc0")
    a(f"s_waitcnt vmcnt(0)\nv_readfirstlane_b32 s{dst}, v20\ns_mov_b64 exec, -1\ns_nop 3")

def claim(a, name, sRes, sOff):
    a.label(f"CLAIM_{name}")
    a(f"s_lshl_b32 s{sC_}, 1, s{sA}")
    atomic(a, "or", f"s{sOff}", f"s{sC_}", sB)
    a.label(f"CLAIM_{name}_R")
    a(f"s_and_b32 s{sD}, s{sB}, s{sC_}\ns_or_b32 s{sB}, s{sB}, s{sC_}\ns_mov_b32 s{sRes}, s{sA}")
    a(f"s_cmp_eq_u32 s{sD}, 0\ns_cbranch_scc1 CLAIM_{name}_E")
    a(f"s_mov_b32 s{sRes}, -1\ns_cmp_eq_u32 s{sB}, -1\ns_cbranch_scc1 CLAIM_{name}_E")
    a(f"s_ff0_i32_b32 s{sA}, s{sB}\ns_branch CLAIM_{name}")
    a.label(f"CLAIM_{name}_E")

def bcast(a, s):
    L = a.newlabel("BC")
    a(f"v_mov_b32 v22, {ROLE_LDS}")
    a(f"s_cmp_lg_u32 s{Wk.sW}, 0\ns_cbranch_scc1 {L}\nv_mov_b32 v20, s{s}\nds_write_b32 v22, v20\ns_waitcnt lgkmcnt(0)")
    a.label(L)
    a(f"s_barrier\nds_read_b32 v20, v22\ns_waitcnt lgkmcnt(0)\nv_readfirstlane_b32 s{s}, v20\ns_barrier")

def gen(P=CH, diag=False, force_slow=False):
    a = Asm()
    def mark(a, word, neg=False):
        if not P.get("marks"): return
        a(f"s_memrealtime s[98:99]\ns_waitcnt lgkmcnt(0)")
        if neg: a("s_not_b32 s98, s98")
        a(f"s_mov_b64 exec, 1\nv_mov_b32 v10, s98\nv_mov_b32 v11, {4*word}\nbuffer_atomic_umax v10, v11, {DB}, 0 offen\ns_mov_b64 exec, -1")
    Wk.SLEEP[0] = P.get('sleep', 1); Wk.PREFETCH[0] = P.get('pf', ());  Wk.EARLY[0] = P.get('early', 2); Wk.WVERD[0] = P.get('wverd', 0); Wk.QLATE[0] = P.get('qlate', 0); Wk.HOLD[0] = P.get('hold', 0); Wk.OUTF[0] = P.get('outf', 'sc1')
    sR = Wk.sRole
    a(f"""
    s_cmp_ge_u32 s2, 256
    s_cbranch_scc1 L_END
    s_load_dwordx2 s[{Wk.sWS}:{Wk.sWS+1}], s[0:1], {KA['ws']}
    s_load_dwordx2 s[{sDB}:{sDB+1}], s[0:1], {KA['dbg']}
    s_getreg_b32 s{sXcc}, hwreg(HW_REG_XCC_ID, 0, 4)
    s_mov_b32 s{Wk.sWS+2}, {WS_BYTES}
    s_mov_b32 s{Wk.sWS+3}, 0x20000
    s_mov_b32 s{sDB+2}, 256
    s_mov_b32 s{sDB+3}, 0x20000
    s_mov_b32 s{Wk.sDead}, 0
    s_mov_b32 s{sInit}, 0
    s_mov_b32 s82, 0
    s_mov_b32 s{sLost}, 0
    v_mov_b32 v250, 0
    v_lshrrev_b32 v1, 6, v0
    v_lshlrev_b32 v8, 4, v0
    v_readfirstlane_b32 s{Wk.sW}, v1
    v_and_b32 v0, 63, v0
    v_mov_b32 v12, -1
    v_mov_b32 v13, -1
    v_mov_b32 v14, -1
    v_mov_b32 v15, -1
    """)
    if diag: a("s_memrealtime s[90:91]")
    CX = 9 if force_slow else P.get('cx', 3)
    sOff, sTry, sDie, sWord, sSpec = 18, 19, 80, 81, 82
    def declare(a):
        L = a.newlabel("DECL")
        a(f"s_cmp_lg_u32 s{sB}, -1\ns_cbranch_scc1 {L}")
        a(f"s_mov_b64 exec, 1\nv_mov_b32 v20, 1\nv_mov_b32 v21, 0\nv_mov_b32 v22, {D_MODE}\nbuffer_atomic_cmpswap v[20:21], v22, {DB}, 0 offen\ns_mov_b64 exec, -1")
        a.label(L)
    a(f"""
    s_bfe_u32 s{sR}, s2, 0x50003
    s_waitcnt lgkmcnt(0)
    """)
    if P.get("marks"):
        a(f"s_cmp_lg_u32 s{Wk.sW}, 0\ns_cbranch_scc1 L_MK0\ns_and_b32 s3, s2, 15\ns_cmp_lg_u32 s3, 0\ns_cbranch_scc1 L_MK0")
        mark(a, 4, True)
        a.label("L_MK0")
    a(f"""
    s_mov_b32 s{sTent}, s{sR}
    s_add_u32 s{sDie}, s{sXcc}, {(15 - CX) % 8}
    s_and_b32 s{sDie}, s{sDie}, 7
    s_min_u32 s{sDie}, s{sDie}, 6
    s_lshl_b32 s{sWord}, s{sDie}, 2
    s_add_u32 s{sWord}, s{sWord}, {D_WM}
    s_cmp_eq_u32 s{sXcc}, {CX}
    s_cselect_b32 s{sWord}, {D_MASK}, s{sWord}
    s_and_b32 s3, s2, 0x87
    s_cmp_lg_u32 s3, 0
    s_cbranch_scc1 L_I3
    s_xor_b32 s3, s{Wk.sW}, s{sTent}
    s_bitcmp1_b32 s3, 0
    s_cbranch_scc0 L_I3
    """)
    a(f"s_lshr_b32 s{sA}, s2, 3")
    a(f"s_lshr_b32 s3, s{Wk.sW}, 1\ns_lshl_b32 s{sA}, s{sA}, 1\ns_add_u32 s{sA}, s{sA}, s3\nv_lshlrev_b32 v9, 4, v0")
    a(f"s_lshl_b32 s3, s{sA}, 13\ns_add_u32 s3, s3, {PART}")
    for k in range(8):
        a(f"buffer_store_dwordx4 v[12:15], v9, {WS}, s3 offen offset:{(k&3)*1024} sc1")
        if k == 3: a("s_add_u32 s3, s3, 4096")
    a(f"""
    s_lshl_b32 s3, s{sA}, 10
    s_add_u32 s3, s3, {MBUF}
    buffer_store_dwordx4 v[12:15], v9, {WS}, s3 offen sc1
    s_mul_i32 s3, s{sA}, 2560
    s_add_u32 s3, s3, {FLG}
    v_mov_b32 v16, 0
    v_mov_b32 v17, 0
    v_mov_b32 v18, 0
    v_mov_b32 v19, 0
    buffer_store_dwordx4 v[16:19], v9, {WS}, s3 offen sc1
    buffer_store_dwordx4 v[16:19], v9, {WS}, s3 offen offset:1024 sc1
    s_mov_b64 exec, 0xffffffff
    buffer_store_dwordx4 v[16:19], v9, {WS}, s3 offen offset:2048 sc1
    s_mov_b64 exec, -1
    s_waitcnt vmcnt(0)
    s_mov_b64 exec, 1
    v_mov_b32 v20, 1
    v_mov_b32 v22, {D_INIT}
    buffer_atomic_add v20, v22, {DB}, 0 offen
    s_mov_b64 exec, -1
    L_I3:
    s_cmp_lg_u32 s{Wk.sW}, 0
    s_cbranch_scc1 L_I2
    s_mov_b64 exec, 1
    s_lshl_b32 s3, 1, s{sTent}
    v_mov_b32 v250, s3
    v_mov_b32 v22, s{sWord}
    buffer_atomic_or v250, v22, {DB}, 0 offen sc0
    s_mov_b64 exec, -1
    L_I2:
    s_cmp_lg_u32 s{sXcc}, {CX}
    s_cbranch_scc1 L_NOSPEC
    s_mov_b32 s{sSpec}, 1
    s_branch L_CHAIN
    L_CLOST:
    s_waitcnt vmcnt(0)
    s_cmp_lg_u32 s{Wk.sW}, 0
    s_cbranch_scc1 L_ROLE
    s_mov_b32 s{sA}, s{sTent}
    s_mov_b32 s{sOff}, {D_MASK}
    """)
    claim(a, "A", sR, sOff)
    a(f"s_cmp_eq_u32 s{sR}, -1\ns_cbranch_scc1 L_WCLAIM")
    declare(a)
    a("s_branch L_ROLE")
    a.label("L_NOSPEC")
    if P.get("pf0"):
        a(f"s_xor_b32 s3, s{Wk.sW}, s{sTent}\ns_bitcmp1_b32 s3, 0\ns_cbranch_scc0 L_PF")
        a(f"s_lshr_b32 s3, s{sDie}, 1\ns_lshl_b32 s3, s3, 1\ns_lshr_b32 s44, s{sTent}, 4\ns_add_u32 s3, s3, s44\ns_cmp_eq_u32 s3, 5\ns_cbranch_scc1 L_PF")
        a(f"s_load_dwordx4 s[48:51], s[0:1], {KA['Wq']}\ns_load_dwordx4 s[52:55], s[0:1], {KA['Wv']}\ns_mov_b32 s42, 0x400000\ns_mov_b32 s43, 0x20000")
        a(f"v_lshlrev_b32 v13, 7, v0\ns_lshr_b32 s3, s{Wk.sW}, 1\ns_add_u32 s3, s3, s2\ns_and_b32 s3, s3, 255\ns_lshl_b32 s3, s3, 14\ns_add_u32 s44, s3, 8192\ns_waitcnt lgkmcnt(0)")
        for p in P["pf0"]:
            a(f"s_mov_b32 s40, s{p}\ns_mov_b32 s41, s{p+1}\nbuffer_load_dword v252, v13, s[40:43], s3 offen\nbuffer_load_dword v252, v13, s[40:43], s44 offen")
        a.label("L_PF")
    a(f"s_lshl_b32 s{sR}, s{sDie}, 5\ns_add_u32 s{sR}, s{sR}, s{sTent}\ns_mov_b32 s{sSpec}, 1\ns_branch L_WORK")
    a.label("L_WLOST")
    a("s_waitcnt vmcnt(0) lgkmcnt(0)")
    a(f"s_cmp_lg_u32 s{Wk.sW}, 0\ns_cbranch_scc1 L_ROLE2")
    a.label("L_WCLAIM")
    a(f"s_mov_b32 s{sOff}, s{sDie}\ns_mov_b32 s{sTry}, 0\ns_mov_b32 s{sA}, s{sTent}")
    a.label("L_WNEXT")
    a(f"s_cmp_ge_u32 s{sOff}, 7\ns_cselect_b32 s{sB}, 7, 0\ns_sub_u32 s{sOff}, s{sOff}, s{sB}")
    a(f"s_cmp_ge_u32 s{sOff}, 7\ns_cselect_b32 s{sB}, 7, 0\ns_sub_u32 s{sOff}, s{sOff}, s{sB}")
    a(f"s_lshl_b32 s{sOff}, s{sOff}, 2\ns_add_u32 s{sOff}, s{sOff}, {D_WM}")
    claim(a, "W", sR, sOff)
    a(f"s_sub_u32 s{sOff}, s{sOff}, {D_WM}\ns_lshr_b32 s{sOff}, s{sOff}, 2")
    a(f"s_cmp_eq_u32 s{sR}, -1\ns_cbranch_scc0 L_WGOT")
    a(f"s_add_u32 s{sOff}, s{sOff}, 1\ns_add_u32 s{sTry}, s{sTry}, 1\ns_mov_b32 s{sA}, 0\ns_cmp_lt_u32 s{sTry}, 7\ns_cbranch_scc1 L_WNEXT")
    atomic(a, "cmpswap", D_MODE, 2, sB, cmp=0)
    a(f"s_mov_b32 s{sA}, 0\ns_mov_b32 s{sOff}, {D_MASK}")
    claim(a, "B", sR, sOff)
    a("s_branch L_ROLE")
    a.label("L_WGOT")
    a(f"s_lshl_b32 s{sOff}, s{sOff}, 5\ns_add_u32 s{sR}, s{sR}, s{sOff}\ns_add_u32 s{sR}, s{sR}, 32")
    def verdict(a):
        L = a.newlabel("VERD")
        a(f"s_cmp_eq_u32 s{sSpec}, 0\ns_cbranch_scc1 {L}\ns_mov_b32 s{sSpec}, 0")
        a(f"v_readfirstlane_b32 s{sB}, v250\ns_nop 3\ns_lshr_b32 s{sB}, s{sB}, s{sTent}\ns_and_b32 s{sB}, s{sB}, 1")
        bcast(a, sB)
        a(f"s_cmp_lg_u32 s{sB}, 0\ns_cbranch_scc1 L_WLOST")
        a.label(L)
    a.label("L_ROLE")
    a.label("L_ROLE2")
    bcast(a, sR)
    a(f"s_cmp_lt_u32 s{sR}, 32\ns_cbranch_scc1 L_CHAIN")
    a(f"s_cmp_eq_u32 s{sR}, -1\ns_cbranch_scc1 L_FIN")
    a(f"s_waitcnt vmcnt(0)\ns_sub_u32 s{sR}, s{sR}, 32")
    a("; ======================== workers")
    a.label("L_WORK")
    if P.get("wpf"):
        a("s_getpc_b64 s[66:67]\nv_lshlrev_b32 v10, 7, v0")
        a(f"s_lshl_b32 s3, s{Wk.sW}, 13\nv_add_u32 v10, s3, v10\nv_min_u32 v10, {P['wpf']}, v10\nglobal_load_dword v252, v10, s[66:67]")
    if diag: a("s_memrealtime s[70:71]\ns_waitcnt lgkmcnt(0)\ns_mov_b32 s100, s70\ns_add_u32 s101, s16, 32")
    if diag: a("s_mov_b32 s64, 0\ns_mov_b32 s66, 0\ns_mov_b32 s68, 0\ns_mov_b32 s72, 0")
    if P.get("qp", 0):
        a(f"s_sub_u32 s3, s{sR}, 128\ns_and_b32 s3, s3, 0xffffffd0\ns_cmp_lg_u32 s3, 16\ns_cbranch_scc1 L_G1")
        a(f"s_and_b32 s18, s{sR}, 15\ns_lshr_b32 s3, s{sR}, 1\ns_and_b32 s3, s3, 16\ns_add_u32 s18, s18, s3")
        def qdone(a):
            a(f"s_cmp_lg_u32 s{Wk.sW}, 0\ns_cbranch_scc1 L_G1")
            a(f"s_lshl_b32 s3, 1, s18\ns_mov_b64 exec, 1\nv_mov_b32 v2, s3\nbuffer_atomic_or v2, off, {DB}, 0 offset:{D_QP}\ns_mov_b64 exec, -1")
            if diag: a("s_memrealtime s[40:41]\ns_waitcnt lgkmcnt(0)\ns_mov_b32 s100, s40")
        C.qprep(a, 18, qdone)
        a.label("L_G1")
    Wk.gemm1(a, wait_init, verdict, sInit, diag)
    if diag: a("s_memtime s[78:79]")
    if P.get("marks"):
        a(f"s_cmp_lg_u32 s{Wk.sW}, 0\ns_cbranch_scc1 L_MK2\ns_and_b32 s3, s{sR}, 7\ns_cmp_lg_u32 s3, 0\ns_cbranch_scc1 L_MK2")
        mark(a, 8)
        a.label("L_MK2")
    if diag: a("s_memrealtime s[92:93]")
    wait_init(a)
    a(f"s_cmp_ge_u32 s{sR}, 192\ns_cbranch_scc1 L_FIN\ns_cmp_lt_u32 s{sR}, 160\ns_cbranch_scc1 L_G2\ns_sub_u32 s{sR}, s{sR}, 160")
    Wk.attention(a, diag)
    a("s_branch L_FIN")
    a.label("L_G2")
    Wk.gemm2(a, diag)
    if P.get("marks"):
        a(f"s_waitcnt vmcnt(0)\ns_cmp_lg_u32 s{Wk.sW}, 0\ns_cbranch_scc1 L_FIN")
        mark(a, 9)
    a("s_branch L_FIN")
    a("; ======================== recurrence")
    a.label("L_CHAIN")
    if diag: a("s_memrealtime s[70:71]\ns_waitcnt lgkmcnt(0)\ns_mov_b32 s100, s70\ns_mov_b32 s101, s16")
    if P.get("cpf"):
        a("s_getpc_b64 s[66:67]\nv_lshlrev_b32 v10, 7, v0")
        a(f"s_lshl_b32 s3, s{Wk.sW}, 13\nv_add_u32 v10, s3, v10\nv_min_u32 v10, {P['cpf']}, v10\nglobal_load_dword v98, v10, s[66:67]")
    def first_chunk(a, part, share):
        L = a.newlabel("CV")
        a(f"s_cmp_eq_u32 s{sSpec}, 0\ns_cbranch_scc1 {L}")
        if part == 0:
            a(f"s_cmp_lg_u32 s{Wk.sW}, 0\ns_cbranch_scc1 {L}_B")
            a(f"v_readfirstlane_b32 s{sB}, v250\ns_lshl_b32 s3, 1, s{sTent}\ns_nop 2\ns_and_b32 s{sLost}, s{sB}, s3\ns_or_b32 s{sB}, s{sB}, s3")
            a(f"s_cmp_lg_u32 s{sLost}, 0\ns_cbranch_scc1 {L}_B")
            declare(a)
            a.label(L + "_B")
        if share:
            a(f"s_mov_b32 s{sSpec}, 0")
            if part: a("s_barrier")
            bcast(a, sLost)
            a(f"s_cmp_lg_u32 s{sLost}, 0\ns_cbranch_scc1 L_CLOST")
        a.label(L)
    sChf, sG1 = 88, 89
    def g1addr(a, lane):
        a(f"v_and_b32 v11, 3, {lane}\nv_bfe_u32 v10, {lane}, 2, 1\nv_lshlrev_b32 v10, 13, v10\nv_lshl_add_u32 v10, v11, 7, v10")
    def set_ready(a, v):
        for perm in ("quad_perm:[1,0,3,2]", "quad_perm:[2,3,0,1]", "row_half_mirror"):
            a(f"s_nop 1\nv_min_u32_dpp v{v}, v{v}, v{v} {perm} row_mask:0xf bank_mask:0xf")
        a(f"s_nop 0\nv_readfirstlane_b32 s{sReady}, v{v}\ns_nop 3\ns_lshl_b32 s{sReady}, s{sReady}, 2")
    def peek(a):
        a(f"s_lshl_b32 s{sChf}, s{C.sH}, 7\ns_add_u32 s{sChf}, s{sChf}, {CHF}")
        a(f"s_lshr_b32 s{sG1}, s{C.sH}, 1\ns_lshl_b32 s{sG1}, s{sG1}, 9\ns_add_u32 s{sG1}, s{sG1}, {G1F}")
        a(f"v_mov_b32 v124, -1\nv_mov_b32 v125, -1\nv_mov_b32 v126, -1\nv_mov_b32 v127, -1")
        a(f"s_lshl_b32 s3, s{C.sH}, 2\ns_add_u32 s3, s3, s{Wk.sW}\ns_lshl_b32 s3, s3, 10\ns_add_u32 s3, s3, {KMEM - C.MISC + EFROM*32*4096}")
        for sg in range(EFROM, 64):
            a(f"buffer_store_dwordx4 v[124:127], v{C.vM16}, {WS}, s3 offen sc1\ns_add_u32 s3, s3, {32*4096}")
        g1addr(a, "v0")
        a(f"v_mov_b32 v24, 0\nbuffer_load_dwordx2 v[26:27], v24, {DB}, 0 offen sc1\nbuffer_load_dword v25, v10, {WS}, s{sG1} offen sc1")
    def qtest(a, v, late):
        a(f"v_readfirstlane_b32 s{sB}, v{v}\ns_nop 3\ns_bitcmp1_b32 s{sB}, s{C.sH}\ns_cbranch_scc0 {late}")
    def qlook(a, v):
        a(f"buffer_load_dword v{v}, off, {DB}, 0 offset:{D_QP} sc1")
    def qwait(a):
        keep = list(a.vmq)
        if diag: a("s_memrealtime s[72:73]")
        a(f"s_mov_b32 s{sD}, 0")
        a.label("L_QW")
        a(f"v_readfirstlane_b32 s{sB}, v29\ns_nop 3\ns_bitcmp1_b32 s{sB}, s{C.sH}\ns_cbranch_scc1 L_QOK")
        a(f"s_add_u32 s{sD}, s{sD}, 1\ns_cmp_gt_u32 s{sD}, {Wk.POLL_BOUND}\ns_cbranch_scc1 L_QOK\ns_sleep 2")
        a(f"buffer_load_dword v29, off, {DB}, 0 offset:{D_QP} sc1\ns_waitcnt vmcnt(0)\ns_branch L_QW")
        a.label("L_QOK")
        if diag: a("s_memrealtime s[74:75]\ns_waitcnt lgkmcnt(0)\ns_mov_b32 s100, s72\ns_mov_b32 s101, s74")
        a.vmq = keep
    if P.get("qp", 0): P = dict(P, qpre=(qlook, qwait, qtest))
    if P.get("order1"):
        b = Asm(); b.uid = a.uid + 1000
        P1 = dict(P, order=P["order1"])
        C.prologue_a(b, P1, True); C.prologue_b(b, P1, first_chunk, peek)
        import re as _re
        alt = _re.sub(r"\b(CH_SUBE|CH_QJOIN|CH_QLATE|L_QW|L_QOK)\b", r"\1_X", b.text())
        a(f"s_and_b32 s3, s{C.sH}, 3\ns_cmp_eq_u32 s3, 1\ns_cbranch_scc0 L_ORD0")
        a(alt); a("s_branch L_ORD1")
        a.label("L_ORD0")
        a.uid = b.uid + 1
    C.prologue_a(a, P, True)
    C.prologue_b(a, P, first_chunk, peek)
    a.label("L_ORD1")
    a(f"s_waitcnt vmcnt(0)\nv_readfirstlane_b32 s{sMode}, v26\nv_readfirstlane_b32 s3, v27")
    set_ready(a, 25)
    a(f"s_cmp_ge_u32 s3, {2 * NINIT}\ns_cselect_b32 s{sInit}, 1, s{sInit}\ns_cselect_b32 s{sReady}, s{sReady}, 0")
    wait_init(a, 10)
    if P.get("hold"):
        a(f"s_cmp_lg_u32 s{Wk.sW}, 0\ns_cbranch_scc1 L_STG\ns_add_u32 s3, s{sChf}, 64")
        Wk.flag_store(a, "s3", 1, 10)
        a.label("L_STG")
    a(f"s_cmp_lg_u32 s{sMode}, 0\ns_cbranch_scc1 L_MODEOK\nv_mov_b32 v10, {D_MODE}")
    Wk.poll_ge(a, f"buffer_load_dword v11, v10, {DB}, 0 offen sc1", [11], 1, "MODE")
    a(f"v_readfirstlane_b32 s{sMode}, v11\ns_nop 3")
    a.label("L_MODEOK")
    if P.get("marks"):
        a(f"s_cmp_lg_u32 s{Wk.sW}, 1\ns_cbranch_scc1 L_MK1")
        mark(a, 5); mark(a, 6, True)
        a.label("L_MK1")
    if diag:
        for k in range(20, 30): a(f"s_mov_b32 s{C.sTS+k}, 0")
        a("s_memrealtime s[92:93]\ns_memtime s[96:97]")
    stubs = []
    sPend = 29
    def ready(a, w, tag, first):
        if not first and w != 2: return
        L = a.newlabel("RDY")
        if first: a(f"s_mov_b32 s{C.sStep}, 0\ns_mov_b32 s{sPend}, 0")
        else:
            a(f"s_cmp_eq_u32 s{sPend}, 0\ns_cbranch_scc1 {L}_P\ns_mov_b32 s{sPend}, 0\ns_waitcnt vmcnt(4)")
            set_ready(a, C.vMpub)
            a.label(L + "_P")
        a(f"s_add_u32 s{C.sT0}, s{C.sStep}, 1\ns_min_u32 s{C.sT0}, s{C.sT0}, 63\ns_cmp_ge_u32 s{C.sT0}, s{sReady}\ns_cbranch_scc1 {L}_S")
        a.label(L)
        stubs.append((L, first))
    def look(a):
        L = a.newlabel("LOOK")
        a(f"s_add_u32 s{C.sT0}, s{C.sStep}, 6\ns_min_u32 s{C.sT0}, s{C.sT0}, 63\ns_cmp_lt_u32 s{C.sT0}, s{sReady}\ns_cbranch_scc1 {L}")
        a(f"v_lshrrev_b32 v10, 3, v{C.vL8}")
        g1addr(a, "v10")
        a(f"buffer_load_dword v{C.vMpub}, v10, {WS}, s{sG1} offen sc1\ns_mov_b32 s{sPend}, 1")
        a.label(L)
    def flag(a):
        if P.get("noflag"): return
        if P.get("marks"):
            L = a.newlabel("MK")
            a(f"s_and_b32 s{C.sT0}, s{C.sStep}, 15\ns_cmp_lg_u32 s{C.sT0}, 1\ns_cbranch_scc1 {L}\ns_cmp_lg_u32 s{C.sH}, 5\ns_cbranch_scc1 {L}")
            a(f"s_memrealtime s[98:99]\ns_lshr_b32 s{C.sT0}, s{C.sStep}, 4\ns_lshl_b32 s{C.sT0}, s{C.sT0}, 2\ns_add_u32 s{C.sT0}, s{C.sT0}, 40\ns_waitcnt lgkmcnt(0)")
            a(f"s_mov_b64 exec, 1\nv_mov_b32 v10, s98\nv_mov_b32 v11, s{C.sT0}\nbuffer_store_dword v10, v11, {DB}, 0 offen\ns_mov_b64 exec, -1")
            a.label(L)
        FL = a.newlabel("FLAG")
        FE = P.get("fevery", 4)
        a(f"s_and_b32 s{C.sT0}, s{C.sStep}, {FE-1}\ns_cmp_ge_u32 s{C.sStep}, {P.get('fall', 56)}\ns_cselect_b32 s{C.sT0}, {1 % FE}, s{C.sT0}\ns_cmp_lg_u32 s{C.sT0}, {1 % FE}\ns_cbranch_scc1 {FL}")
        a(f"s_sub_u32 s{C.sT0}, s{C.sStep}, 1\ns_max_i32 s{C.sT0}, s{C.sT0}, 0")
        if P.get("early", 1): a(f"s_cmp_gt_u32 s{C.sStep}, {EFROM}\ns_cselect_b32 s{C.sT0}, s{C.sStep}, s{C.sT0}")
        Wk.flag_store(a, f"s{sChf}", f"s{C.sT0}", 10); a.vmq.pop()
        a.label(FL)
    def done(a, w):
        a("s_barrier" if P.get("early", 1) else "s_waitcnt vmcnt(0)\ns_barrier")
        if w == 0: Wk.flag_store(a, f"s{sChf}", 64, 10)
        if w == 1: mark(a, 7)
        a.vmq = []
        a("s_branch L_FIN")
        for L, first in stubs:
            a.label(L + "_S")
            a(f"s_add_u32 s{C.sT0}, s{C.sStep}, 1\ns_min_u32 s{C.sT0}, s{C.sT0}, 63\ns_lshr_b32 s{C.sT0}, s{C.sT0}, 2\ns_add_u32 s{C.sT0}, s{C.sT0}, 1")
            a(f"v_lshrrev_b32 v10, 3, v{C.vL8}")
            g1addr(a, "v10")
            Wk.poll_ge(a, f"buffer_load_dword v11, v10, {WS}, s{sG1} offen sc1", [11], f"s{C.sT0}", "KV", sleep=0)
            set_ready(a, 11)
            a(f"s_branch {L}")
        stubs.clear()
    P = dict(P, hooks=dict(ready=ready, flag=flag, done=done, look=look))
    a(f"s_cmp_eq_u32 s{sMode}, 1\ns_cbranch_scc0 L_SLOW")
    for st in ("", "sc1"):
        if st: a.label("L_SLOW")
        t = "s" if st else "f"
        for w in range(1, 4): a(f"s_cmp_eq_u32 s{C.sW}, {w}\ns_cbranch_scc1 CH_W{w}{t}")
        for w in range(4):
            a.label(f"CH_W{w}{t}")
            C.loop(a, w, st, P, diag and not P.get('agg'))
    a.label("L_FIN")
    if diag:
        a("s_waitcnt vmcnt(0)\ns_memrealtime s[94:95]\ns_memtime s[98:99]\ns_waitcnt lgkmcnt(0)")
        a(f"s_lshl_b32 s3, s2, 2\ns_add_u32 s3, s3, s{Wk.sW}\ns_lshl_b32 s3, s3, 7\ns_add_u32 s3, s3, {DBG}")
        vals = [C.sTS + 20 + k for k in range(10)] + [90, 92, 94, 96, 98, sR, sXcc, Wk.sDead, 100, 101, 72, 74, 76, 78]
        for i, sg in enumerate(vals):
            a(f"v_mov_b32 v20, s{sg}\nv_mov_b32 v21, {4*i}\nbuffer_store_dword v20, v21, {WS}, s3 offen")
    a("s_waitcnt vmcnt(0)")
    a.label("L_END")
    return a.text()

def wrap(body):
    ref = open(f"cdna_kernels/{NAME}.s.ref").read().split("\n")
    head = [l for l in ref if l.startswith(";") and "@launch" not in l]
    return "\n".join(head) + f"""
; One persistent launch, one workgroup per CU, roles claimed through d_debug:
;   32 workgroups on one die run the 64-step memory recurrence (one head each, weights resident in registers / LDS,
;   all-reduce through that die's L2; a device-scope variant is used when they do not share a die);
;   the others do layernorm, the K/V/Q/FFN1 GEMMs, attention of the x rows and the output GEMM behind it.
; Generated by my own script (gen/main.py).
; @launch grid=(256,1,1) block=(256,1,1) lds=163840
.amdgcn_target "amdgcn-amd-amdhsa--gfx950"
.text
.globl {NAME}_kernel
.p2align 8
.type {NAME}_kernel,@function
{NAME}_kernel:
{body}s_endpgm
.section .rodata,"a"
.p2align 6
.amdhsa_kernel {NAME}_kernel
  .amdhsa_next_free_vgpr 512
  .amdhsa_next_free_sgpr 102
  .amdhsa_accum_offset 256
  .amdhsa_group_segment_fixed_size 0
  .amdhsa_kernarg_size 120
  .amdhsa_user_sgpr_count 2
  .amdhsa_user_sgpr_kernarg_segment_ptr 1
  .amdhsa_system_sgpr_workgroup_id_x 1
.end_amdhsa_kernel
"""
if __name__ == "__main__":
    import ast
    P = dict(CH)
    if len(sys.argv) > 2: P.update(ast.literal_eval(sys.argv[2]))
    t = gen(P)
    hz = check(t)
    for h in hz[:12]: print(h)
    out = sys.argv[1] if len(sys.argv) > 1 else f"cdna_kernels/{NAME}.s"
    open(out, "w").write(wrap(t))
    print("lines", len(t.split("\n")), "hazards", len(hz))
```

```python
from asm import *
from layout import *
import math, struct

sWS = 8
WS = f"s[{sWS}:{sWS+3}]"
DB = "s[4:7]"
sW = 17
sRole = 16
sDead = 37
sA, sB, sC_, sD = 32, 33, 34, 35
POLL_BOUND = 1 << 16
SLEEP = [2]
VP = [None]
QLATE = [0]
WVERD = [0]
EARLY = [1]
OUTF = ['']
HOLD = [0]
PREFETCH = [(48, 50, 58, 52)]

def fbits(x): return struct.unpack("<I", struct.pack("<f", x))[0]

def srd(a, d, ka, size):
    a(f"s_load_dwordx2 s[{d}:{d+1}], s[0:1], {KA[ka]}\ns_mov_b32 s{d+2}, {size}\ns_mov_b32 s{d+3}, 0x20000")

def poll_ge(a, load, vals, target, name, sleep=1, vtmp=None):
    L = a.newlabel("POLL_" + name); E = L + "_E"
    a(f"s_mov_b32 s{sD}, 0")
    a.label(L)
    a(f"s_cmp_lg_u32 s{sDead}, 0\ns_cbranch_scc1 {E}")
    a(load)
    a(f"s_add_u32 s{sD}, s{sD}, 1")
    a(f"s_cmp_gt_u32 s{sD}, {POLL_BOUND}\ns_cselect_b32 s{sDead}, 1, 0")
    a("s_waitcnt vmcnt(0)")
    v = vals[0]
    for k in range(1, len(vals)):
        a(f"v_min_u32 v{vtmp}, v{v}, v{vals[k]}"); v = vtmp
    a(f"v_cmp_gt_u32 vcc, {target}, v{v}")
    a(f"s_cbranch_vccz {E}")
    if sleep: a(f"s_sleep {sleep}")
    a(f"s_branch {L}")
    a.label(E)
    a.vmq = []

def flag_store(a, soff, sval, v0=2):
    a(f"v_mov_b32 v{v0}, {sval}\ns_mov_b64 exec, 1")
    a.vm(f"buffer_store_dword v{v0}, off, {WS}, {soff} sc1", "flag")
    a("s_mov_b64 exec, -1")

def layernorm(a, sTask, diag=False, local=None, after_loads=None, after_sum=None):
    srd(a, 60, "x", 2048 * 1024)
    a(f"""
    v_and_b32 v8, 7, v0
    v_lshrrev_b32 v9, 3, v0
    v_lshlrev_b32 v14, 10, v8
    v_lshl_add_u32 v14, v9, 4, v14
    s_lshl_b32 s27, s{sTask}, 13
    s_waitcnt lgkmcnt(0)
    """)
    R, F = 16, 48
    for s in range(8):
        a.vm(f"buffer_load_dwordx4 {vr(R+4*s,4)}, v14, s[60:63], s27 offen offset:{s*128}", ("ln", s))
    a(f"""
    v_lshrrev_b32 v15, 2, v9
    v_lshlrev_b32 v15, 11, v15
    v_and_b32 v9, 3, v9
    v_lshl_add_u32 v15, v9, 8, v15
    v_lshl_add_u32 v15, v8, 4, v15
    s_lshr_b32 s27, s{sTask}, 2
    s_lshl_b32 s27, s27, 15
    s_bfe_u32 s28, s{sTask}, 0x10001
    s_lshl_b32 s28, s28, 10
    s_add_u32 s27, s27, s28
    s_and_b32 s28, s{sTask}, 1
    s_lshl_b32 s28, s28, 7
    s_add_u32 s27, s27, s28
    s_add_u32 s27, s27, {XN}
    v_mov_b32 v10, 0
    v_mov_b32 v11, 0
    """)
    if after_loads: after_loads()
    for s in range(8):
        a.wait_vm(("ln", s))
        for k in range(4):
            r = R + 4 * s + k; f = F + 8 * s + 2 * k
            a(f"v_lshlrev_b32 v{f}, 16, v{r}\nv_and_b32 v{f+1}, 0xffff0000, v{r}")
            a(f"v_pk_add_f32 v[10:11], v[10:11], {vr(f,2)}")
    if diag: a("s_memrealtime s[72:73]")
    if after_sum: after_sum()
    def allred():
        a("v_add_f32 v10, v10, v11\ns_nop 1\nv_add_f32_dpp v10, v10, v10 row_ror:8 row_mask:0xf bank_mask:0xf")
        for op in ("v_permlane32_swap_b32", "v_permlane16_swap_b32"):
            a(f"v_mov_b32 v11, v10\ns_nop 1\n{op} v10, v11\nv_add_f32 v10, v10, v11")
    allred()
    a(f"v_mul_f32 v12, {fbits(1/512):#x}, v10\nv_mov_b32 v10, 0\nv_mov_b32 v11, 0")
    for k in range(32):
        f = F + 2 * k
        a(f"v_pk_add_f32 {vr(f,2)}, {vr(f,2)}, v[12:13] op_sel_hi:[1,0] neg_lo:[0,1] neg_hi:[0,1]")
        a(f"v_pk_fma_f32 v[10:11], {vr(f,2)}, {vr(f,2)}, v[10:11]")
    allred()
    a(f"v_mov_b32 v12, {fbits(1e-5):#x}\nv_fmac_f32 v12, {fbits(1/512):#x}, v10\nv_rsq_f32 v12, v12\ns_nop 0")
    for s in range(8):
        for k in range(4):
            f = F + 8 * s + 2 * k
            a(f"v_pk_mul_f32 {vr(f,2)}, {vr(f,2)}, v[12:13] op_sel_hi:[1,0]")
            a(f"v_cvt_pk_bf16_f32 v{R+4*s+k}, v{f}, v{f+1}")
        if local is None:
            a.vm(f"buffer_store_dwordx4 {vr(R+4*s,4)}, v15, {WS}, s27 offen sc1", "lnst")
            a(f"s_add_u32 s27, s27, 4096")
        else:
            if s == 0: a(f"s_and_b32 s27, s27, 0x7fff\ns_add_u32 s27, s27, {local}\nv_add_u32 v15, s27, v15")
            a.ds(f"ds_write_b128 v15, {vr(R+4*s,4)} offset:{s*4096}")
    if diag: a("s_memrealtime s[74:75]")

G1_XBUF = 98304
def gemm1(a, wait_init, verdict, sInit, diag=False):
    sSl, sJ, sKind, sRow, sOut, sN, sXs, sFl = 18, 19, 20, 21, 22, 23, 24, 25
    sSh, sXstep, sOstep, sEnd = 44, 45, 46, 47
    a(f"""
    s_lshr_b32 s{sSl}, s{sRole}, 2
    s_and_b32 s{sJ}, s{sRole}, 3
    s_mov_b32 s{sSh}, 0
    s_cmp_lt_u32 s{sRole}, 128
    s_cbranch_scc1 G1_MAP
    s_add_u32 s{sSl}, s{sSl}, 8
    s_cmp_ge_u32 s{sRole}, 160
    s_cbranch_scc1 G1_MAP
    s_lshr_b32 s{sSl}, s{sRole}, 1
    s_sub_u32 s{sSl}, s{sSl}, 32
    s_and_b32 s{sJ}, s{sRole}, 1
    s_mov_b32 s{sSh}, 1
    G1_MAP:
    s_lshr_b32 s{sXstep}, {4*32768}, s{sSh}
    s_sub_u32 s{sXstep}, s{sXstep}, {7*1024}
    s_lshr_b32 s{sOstep}, {4*32*8192}, s{sSh}
    s_lshl_b32 s{sEnd}, 16, s{sSh}
    s_lshr_b32 s{sKind}, s{sSl}, 4            ; 0 K, 1 V, 2 Q, 3 FFN1
    s_load_dwordx2 s[48:49], s[0:1], {KA['Wk']}
    s_load_dwordx2 s[50:51], s[0:1], {KA['Wv']}
    s_load_dwordx2 s[52:53], s[0:1], {KA['Wq']}
    s_load_dwordx2 s[54:55], s[0:1], {KA['w1']}
    s_load_dwordx2 s[56:57], s[0:1], {KA['b1']}
    s_load_dwordx2 s[58:59], s[0:1], {KA['Wo']}
    s_waitcnt lgkmcnt(0)
    s_mov_b32 s12, s48
    s_mov_b32 s13, s49
    s_mov_b32 s14, {512*4096*2}
    s_mov_b32 s{sRow}, 8192
    s_cmp_eq_u32 s{sKind}, 1
    s_cselect_b32 s12, s50, s12
    s_cselect_b32 s13, s51, s13
    s_cmp_eq_u32 s{sKind}, 2
    s_cselect_b32 s12, s52, s12
    s_cselect_b32 s13, s53, s13
    s_cmp_eq_u32 s{sKind}, 3
    s_cselect_b32 s12, s54, s12
    s_cselect_b32 s13, s55, s13
    s_cselect_b32 s14, {512*1792*2}, s14
    s_cselect_b32 s{sRow}, 3584, s{sRow}
    s_mov_b32 s15, 0x20000
    v_and_b32 v240, 15, v0
    v_lshrrev_b32 v241, 4, v0
    v_and_b32 v242, 3, v0
    v_bfe_u32 v243, v0, 2, 2
    v_lshrrev_b32 v4, 3, v0
    v_mul_lo_u32 v4, v4, s{sRow}
    v_and_b32 v5, 7, v0
    v_bfe_u32 v6, v0, 4, 1
    v_lshlrev_b32 v6, 1, v6
    v_xor_b32 v5, v5, v6
    v_xor_b32 v6, 4, v5
    s_and_b32 s{sA}, s{sSl}, 15
    s_lshl_b32 s{sA}, s{sA}, 9
    s_lshl_b32 s{sB}, s{sW}, 7
    s_add_u32 s{sA}, s{sA}, s{sB}
    v_add_u32 v4, s{sA}, v4
    v_lshl_add_u32 v244, v5, 4, v4
    v_lshl_add_u32 v245, v6, 4, v4
    v_lshl_add_u32 v4, v241, 3, v243
    v_lshlrev_b32 v4, 7, v4
    v_lshl_add_u32 v4, v242, 3, v4
    s_mul_i32 s{sA}, s{sW}, 24576
    v_add_u32 v4, s{sA}, v4
    v_lshrrev_b32 v5, 1, v243
    v_and_b32 v6, 1, v241
    v_lshl_add_u32 v5, v6, 1, v5
    """)
    for f in range(4):
        a(f"v_xor_b32 v6, {f}, v5\nv_lshl_add_u32 v{246+f}, v6, 5, v4")
    a(f"s_lshl_b32 s{sC_}, s{sRow}, 3\ns_mov_b32 s{sN}, 0")
    def issue(c):
        for i in range(8):
            a(f"s_add_u32 m0, s{sA}, {(c%3)*8192 + i*1024}\ns_nop 0")
            a.vm(f"buffer_load_dwordx4 v{244 + (i&1)}, s[12:15], s{sN} offen lds", ("w", c))
            a(f"s_add_u32 s{sN}, s{sN}, s{sC_}")
    def prefetch():
        if not PREFETCH[0]: return
        a(f"s_lshl_b32 s{sB}, s{sRole}, 2\ns_add_u32 s{sB}, s{sB}, s{sW}\ns_lshl_b32 s{sB}, s{sB}, 12\ns_add_u32 s{sD}, s{sB}, {896*4096}")
        a("v_lshlrev_b32 v13, 6, v0\ns_mov_b32 s42, 0x400000\ns_mov_b32 s43, 0x20000")
        for p in PREFETCH[0]:
            a(f"s_mov_b32 s40, s{p}\ns_mov_b32 s41, s{p+1}")
            a.vm(f"buffer_load_dword v252, v13, s[40:43], s{sB} offen", "pf")
            a.vm(f"buffer_load_dword v252, v13, s[40:43], s{sD} offen", "pf")
    sTask, sHave = 26, 31
    a(f"""
    s_mov_b32 s{sHave}, 0
    s_cmp_lt_u32 s{sRole}, 192
    s_cbranch_scc1 G1_LN0
    s_mul_i32 s{sTask}, s{sRole}, 3
    s_add_u32 s{sTask}, s{sTask}, s{sW}
    s_sub_u32 s{sTask}, s{sTask}, {192*3 - 160}
    s_cmp_lt_u32 s{sW}, 3
    s_cbranch_scc1 G1_LN
    s_sub_u32 s{sTask}, s{sRole}, 64
    s_cmp_lt_u32 s{sTask}, {137 if VP[0] else 0}
    s_cbranch_scc1 G1_LN
    s_branch G1_NOLN
    G1_LN0:
    s_sub_u32 s{sB}, s{sRole}, 128
    s_cmp_lt_u32 s{sB}, {9 if VP[0] else 0}
    s_cbranch_scc1 G1_NOLN
    s_and_b32 s{sB}, s{sRole}, 3
    s_cmp_lg_u32 s{sW}, s{sB}
    s_cbranch_scc1 G1_NOLN
    s_mov_b32 s{sTask}, s{sRole}
    s_cmp_lt_u32 s{sRole}, 144
    s_cbranch_scc1 G1_LN
    s_sub_u32 s{sTask}, s{sRole}, 16
    s_and_b32 s{sB}, s{sRole}, 0xf0
    s_cmp_lg_u32 s{sB}, 160
    s_cbranch_scc1 G1_NOLN
    G1_LN:
    """)
    layernorm(a, sTask, diag, None, prefetch)
    a(f"s_mov_b32 s{sHave}, 1\ns_branch G1_LN1")
    a.label("G1_NOLN")
    prefetch()
    a.label("G1_LN1")
    def peek():
        a(f"v_mov_b32 v2, {D_INIT}")
        a.vm(f"buffer_load_dword v251, v2, {DB}, 0 offen sc1", "peek")
    def report():
        L = a.newlabel("LNREP")
        a(f"s_cmp_eq_u32 s{sHave}, 0\ns_cbranch_scc1 {L}")
        a(f"v_readfirstlane_b32 s{sB}, v251\ns_nop 3\ns_cmp_ge_u32 s{sB}, {2*NINIT}\ns_cselect_b32 s{sInit}, 1, s{sInit}")
        keep = list(a.vmq)
        wait_init(a, 2)
        if diag: a("s_memrealtime s[76:77]")
        a(f"s_lshl_b32 s{sB}, s{sTask}, 7\ns_add_u32 s{sB}, s{sB}, {LNF}")
        flag_store(a, f"s{sB}", 1, 2)
        a.vmq = keep
        a.label(L)
    a(f"s_cmp_ge_u32 s{sRole}, 188\ns_cbranch_scc1 G1_IDLE")
    if QLATE[0]:
        a(f"s_cmp_lt_u32 s{sKind}, 2\ns_cbranch_scc1 G1_GO")
        peek(); a.wait_vm_all(True); report(); a(f"s_mov_b32 s{sHave}, 0")
        verdict(a)
        wait_init(a, 2)
        a(f"s_and_b32 s{sB}, s{sRole}, 63\ns_lshl_b32 s{sB}, s{sB}, 7\ns_add_u32 s{sB}, s{sB}, {G1F}")
        poll_ge(a, f"buffer_load_dword v2, off, {WS}, s{sB} sc1", [2], QLATE[0], "QL", sleep=16)
        a.label("G1_GO")
    a.vmq = []
    a(f"s_lshl_b32 s30, s{sJ}, 2\ns_add_u32 s30, s30, s{sW}")
    layernorm(a, 30, False, G1_XBUF, lambda: [peek()] + [issue(c) for c in range(3)], lambda: (a.wait_vm("peek"), report()))
    W = lambda f, s: 4 * (f * 16 + s)
    for c in range(8):
        a.wait_vm(("w", c))
        if c == WVERD[0]: verdict(a)
        for s_ in range(2):
            for f in range(4):
                for p in range(2):
                    a.ds(f"ds_read_b64_tr_b16 {ar(W(f, 2*c+s_) + 2*p, 2)}, v{246+f} offset:{(c%3)*8192 + (32*s_+4*p)*128}")
        a.wait_ds_all()
        if c + 3 < 8: issue(c + 3)
    if diag: a("s_memrealtime s[64:65]")
    vBias = 112
    for r in range(16): a(f"v_mov_b32 v{vBias+r}, 0")
    a(f"s_cmp_lg_u32 s{sKind}, 3\ns_cbranch_scc1 G1_NOBIAS")
    a(f"""
    s_mov_b32 s12, s56
    s_mov_b32 s13, s57
    s_mov_b32 s14, 3584
    s_and_b32 s{sA}, s{sSl}, 15
    s_lshl_b32 s{sA}, s{sA}, 9
    s_lshl_b32 s{sB}, s{sW}, 7
    s_add_u32 s{sA}, s{sA}, s{sB}
    v_lshlrev_b32 v4, 3, v241
    """)
    for f in range(4): a(f"buffer_load_dwordx2 {vr(8+2*f,2)}, v4, s[12:15], s{sA} offen offset:{f*32}")
    a("s_waitcnt vmcnt(0)")
    for f in range(4):
        for k in range(2):
            a(f"v_lshlrev_b32 v{vBias+4*f+2*k}, 16, v{8+2*f+k}\nv_and_b32 v{vBias+4*f+2*k+1}, 0xffff0000, v{8+2*f+k}")
    a.label("G1_NOBIAS")
    if diag: a("s_memtime s[96:97]")
    a(f"""
    v_lshlrev_b32 v4, 4, v0
    v_add_u32 v5, {G1_XBUF}, v4
    s_lshl_b32 s{sXs}, s{sJ}, 15
    s_lshl_b32 s{sA}, s{sW}, 13
    s_add_u32 s{sXs}, s{sXs}, s{sA}
    s_add_u32 s{sXs}, s{sXs}, {XN}
    s_lshl_b32 s{sFl}, s{sRole}, 7
    s_add_u32 s{sFl}, s{sFl}, {G1F}
    s_and_b32 s{sA}, s{sSl}, 15
    s_lshl_b32 s{sA}, s{sA}, 1
    s_lshr_b32 s{sB}, s{sW}, 1
    s_add_u32 s{sA}, s{sA}, s{sB}             ; head
    s_lshl_b32 s{sB}, s{sJ}, 5
    s_add_u32 s{sA}, s{sA}, s{sB}
    s_lshl_b32 s{sOut}, s{sA}, 13
    s_and_b32 s{sB}, s{sW}, 1
    """)
    sLb = 26
    a(f"s_lshl_b32 s{sLb}, s{sW}, 13")
    def xdma1(par, i):
        a(f"s_add_u32 m0, s{sLb}, {G1_XBUF + par*32768 + i*1024}")
        a(f"s_add_u32 s{sXs}, s{sXs}, {1024 if i else 's%d' % sXstep}")
        a.vm(f"buffer_load_dwordx4 v4, {WS}, s{sXs} offen lds", "x")
    a(f"s_add_u32 s{sXs}, s{sXs}, {7*1024}")
    a(f"s_cmp_eq_u32 s{sKind}, 1\ns_cbranch_scc1 G1_V\ns_cmp_eq_u32 s{sKind}, 3\ns_cbranch_scc1 G1_H")
    for kind in ("QK", "V", "H"):
        a.label(f"G1_{kind}")
        if kind == "QK":
            a(f"s_lshl_b32 s{sB}, s{sB}, 10\ns_add_u32 s{sOut}, s{sOut}, s{sB}")
            a(f"s_mov_b32 s{sB}, {QIMG}\ns_cmp_eq_u32 s{sKind}, 0\ns_cselect_b32 s{sB}, {KIMG}, s{sB}\ns_add_u32 s{sOut}, s{sOut}, s{sB}")
            step = f"s{sOstep}"
        elif kind == "V":
            a(f"s_lshl_b32 s{sB}, s{sB}, 12\ns_add_u32 s{sOut}, s{sOut}, s{sB}\ns_add_u32 s{sOut}, s{sOut}, {VIMG}")
            step = 4 * 32 * 8192
        else:
            a(f"s_and_b32 s{sA}, s{sSl}, 15\ns_lshl_b32 s{sA}, s{sA}, 2\ns_add_u32 s{sA}, s{sA}, s{sW}\ns_lshl_b32 s{sA}, s{sA}, 11")
            a(f"s_mul_i32 s{sB}, s{sJ}, {2*56*1024}\ns_add_u32 s{sOut}, s{sA}, s{sB}\ns_add_u32 s{sOut}, s{sOut}, {HIMG}")
            step = 4 * 2 * 56 * 1024
        acc = lambda par, mt, f: 128 + par * 32 + (mt * 4 + f) * 4
        vX = lambda s, mt: 16 + ((s % 3) * 2 + mt) * 4
        vS = 48
        def epilogue(par):
            jobs = []
            for n in range(4):
                if kind == "QK": mt, t = n >> 1, n & 1; srcs = (acc(par, mt, t), acc(par, mt, t + 2)); off = mt * 4096 + t * 2048
                elif kind == "V": srcs = (acc(par, 0, n), acc(par, 1, n)); off = n * 1024
                else: mt, t = n >> 1, n & 1; srcs = (acc(par, mt, 2 * t), acc(par, mt, 2 * t + 1)); off = mt * 56 * 1024 + t * 1024
                d = vS + 4 * n
                for h_ in range(2):
                    for k in range(2):
                        r = srcs[h_] + 2 * k
                        if kind == "H":
                            jobs.append(lambda r=r: a(f"v_max_f32 v{r}, 0, v{r}\nv_max_f32 v{r+1}, 0, v{r+1}"))
                            jobs.append(lambda r=r: a(f"v_mul_f32 v{r}, v{r}, v{r}\nv_mul_f32 v{r+1}, v{r+1}, v{r+1}"))
                            jobs.append(lambda r=r, d=d, h_=h_, k=k: a(f"v_cvt_pk_bf16_f32 v{d+2*h_+k}, v{r}, v{r+1}"))
                        else:
                            jobs.append(lambda r=r, d=d, h_=h_, k=k: a(f"v_cvt_pk_bf16_f32 v{d+2*h_+k}, v{r}, v{r+1}"))
                def st(d=d, off=off):
                    a(f"s_add_u32 s{sA}, s{sOut}, {off}")
                    a.vm(f"buffer_store_dwordx4 {vr(d,4)}, v4, {WS}, s{sA} offen sc1", "st")
                jobs.append(st)
            jobs.append(lambda: a(f"s_add_u32 s{sOut}, s{sOut}, {step}"))
            return jobs
        def publish(val):
            L = a.newlabel("G1F")
            a(f"s_cmp_lg_u32 s{sW}, 0\ns_cbranch_scc1 {L}")
            wait_init(a, 8)
            if val == 1: a(f"s_lshr_b32 s{sA}, 1, s{sSh}"); val = f"s{sA}"
            if val is None: a(f"s_sub_u32 s{sA}, s{sN}, 2\ns_max_u32 s{sA}, s{sA}, 1\ns_lshr_b32 s{sA}, s{sA}, s{sSh}"); val = f"s{sA}"
            flag_store(a, f"s{sFl}", val, 8)
            a.label(L)
        def segment(par, n):
            a("s_waitcnt vmcnt(4)" if n == 2 else "s_waitcnt vmcnt(0) lgkmcnt(0)"); a.vmq = []; a.dsq = []
            a("s_barrier")
            rd = lambda s: [a.ds(f"ds_read_b128 {vr(vX(s,mt),4)}, v5 offset:{par*32768 + s*2048 + mt*1024}", ("x", s)) for mt in range(2)]
            rd(0); rd(1)
            if n == 1: publish(1)
            if n == 2: publish(None)
            jobs = epilogue(1 - par) if n == 2 else []
            for s in range(16):
                if s + 2 < 16: rd(s + 2)
                a.wait_ds(("x", s))
                for mt in range(2):
                    for f in range(4):
                        d = acc(par, mt, f)
                        c = (vr(vBias + 4 * f, 4) if kind == "H" else "0") if s == 0 else vr(d, 4)
                        if kind == "V": a(f"v_mfma_f32_16x16x32_bf16 {vr(d,4)}, {vr(vX(s,mt),4)}, {ar(W(f,s),4)}, {c}")
                        else: a(f"v_mfma_f32_16x16x32_bf16 {vr(d,4)}, {ar(W(f,s),4)}, {vr(vX(s,mt),4)}, {c}")
                        if n and s < 8 and mt == 0 and f == 3: xdma1(1 - par, s)
                        elif jobs and s >= 8: jobs.pop(0)()
            assert not jobs
            if n == 1: a("s_waitcnt vmcnt(0)")
            a(f"s_add_u32 s{sN}, s{sN}, 1")
        a(f"s_mov_b32 s{sN}, 0")
        segment(0, 0)
        a.nop(8)
        for j in epilogue(0): j()
        if HOLD[0]:
            a("s_waitcnt vmcnt(0)\ns_barrier")
            publish(1)
        L = a.newlabel("G1LN")
        a(f"s_cmp_lg_u32 s{sW}, 0\ns_cbranch_scc1 {L}")
        wait_init(a, 8)
        a(f"v_lshrrev_b32 v8, 2, v0\ns_sub_u32 s{sA}, 11, s{sSh}\nv_lshlrev_b32 v8, s{sA}, v8\nv_and_b32 v9, 3, v0\nv_lshl_add_u32 v8, v9, 7, v8\ns_lshl_b32 s{sA}, s{sJ}, 9\ns_add_u32 s{sA}, s{sA}, {LNF}")
        poll_ge(a, f"buffer_load_dword v9, v8, {WS}, s{sA} offen sc1", [9], 1, "LN", sleep=2)
        if kind == "QK":
            a(f"s_cmp_eq_u32 s{sSh}, 0\ns_cbranch_scc1 {L}\ns_add_u32 s{sA}, s{sA}, {128*128}")
            poll_ge(a, f"buffer_load_dword v9, v8, {WS}, s{sA} offen sc1", [9], 1, "LN", sleep=2)
        if HOLD[0]:
            wait_init(a, 8)
            a(f"s_and_b32 s{sA}, s{sRole}, 31\ns_lshl_b32 s{sA}, s{sA}, 7\ns_add_u32 s{sA}, s{sA}, {CHF + 64}\nv_mov_b32 v8, 0")
            if HOLD[0] == 1:
                publish_now = a.newlabel("PUB")
            poll_ge(a, f"buffer_load_dword v9, v8, {WS}, s{sA} offen sc1", [9], 1, "STG", sleep=8)
        a.label(L)
        a("s_barrier")
        if diag: a("s_memrealtime s[66:67]")
        for i in range(8): xdma1(1, i)
        segment(1, 1)
        a.label(f"G1_LOOP_{kind}")
        segment(0, 2)
        segment(1, 2)
        a(f"s_cmp_lt_u32 s{sN}, s{sEnd}\ns_cbranch_scc1 G1_LOOP_{kind}")
        a.label(f"G1_END_{kind}")
        a.nop(8)
        for j in epilogue(1): j()
        a.wait_vm_all(True)
        a("s_barrier")
        L = a.newlabel("G1F")
        a(f"s_cmp_lg_u32 s{sW}, 0\ns_cbranch_scc1 {L}")
        flag_store(a, f"s{sFl}", 16, 8)
        a.label(L)
        a.vmq = []; a.dsq = []
        a("s_branch G1_DONE")
    a.label("G1_IDLE")
    peek()
    a.wait_vm_all(True)
    report()
    verdict(a)
    a.label("G1_DONE")

def attention(a, diag=False):
    sSeg, sQ, sKm, sGot, sO, sCh, sAt, sCnt = 18, 19, 20, 21, 22, 23, 24, 25
    sCC = 30
    sMask = 40
    c = (128 ** -0.5) * math.log2(math.e)
    a(f"""
    s_mov_b32 s{sCC}, {fbits(c):#x}
    s_mov_b32 s{sCC+1}, {fbits(c):#x}
    v_lshlrev_b32 v4, 4, v0
    v_and_b32 v5, 0x3d, v0
    v_lshlrev_b32 v5, 4, v5
    v_bfe_u32 v6, v0, 1, 1
    v_lshl_add_u32 v5, v6, 3, v5
    v_and_b32 v6, 15, v0
    v_lshrrev_b32 v7, 4, v0
    v_lshlrev_b32 v7, 2, v7
    """)
    for r in range(4):
        a(f"v_add_u32 v8, {r}, v7\nv_cmp_le_u32 s[{sMask+2*r}:{sMask+2*r+1}], v8, v6")
    a(f"""
    s_lshr_b32 s{sA}, s{sRole}, 1
    s_lshl_b32 s{sB}, s{sA}, 1
    s_and_b32 s{sC_}, s{sW}, 1
    s_add_u32 s{sB}, s{sB}, s{sC_}
    s_add_u32 s{sB}, s{sB}, 128
    s_lshl_b32 s{sA}, s{sA}, 2
    s_add_u32 s{sA}, s{sA}, s{sW}
    v_and_b32 v8, 1, v0
    v_lshl_add_u32 v8, v8, 6, s{sA}
    v_mov_b32 v9, s{sB}
    v_cmp_gt_u32 vcc, 2, v0
    s_mov_b32 s{sA}, {G1F}
    s_nop 0
    v_cndmask_b32 v8, v9, v8, vcc
    v_lshlrev_b32 v8, 7, v8
    """)
    a(f"s_mov_b32 s{sGot}, 0\nv_mov_b32 v252, v8")
    a(f"""
    s_mov_b32 s{sSeg}, s{sW}
    s_lshl_b32 s{sA}, s{sW}, 5
    s_add_u32 s{sA}, s{sA}, s{sRole}
    s_lshl_b32 s{sQ}, s{sA}, 13
    s_lshl_b32 s{sKm}, s{sA}, 12
    s_add_u32 s{sKm}, s{sKm}, {KMEM}
    s_lshl_b32 s{sO}, s{sW}, 18
    s_lshl_b32 s{sB}, s{sRole}, 12
    s_add_u32 s{sO}, s{sO}, s{sB}
    s_add_u32 s{sO}, s{sO}, {OIMG}
    s_lshl_b32 s{sCh}, s{sRole}, 7
    s_add_u32 s{sCh}, s{sCh}, {CHF}
    s_lshl_b32 s{sAt}, s{sA}, 7
    s_add_u32 s{sAt}, s{sAt}, {ATF}
    s_mov_b32 s{sCnt}, 0
    v_mov_b32 v10, 0
    """)
    vQ, vK, vV, vKM, vVM = 16, 48, 80, 112, 128
    ONE = 136
    S = lambda qt, kt: 140 + (qt * 3 + kt) * 4
    PX = lambda qt: 164 + qt * 4
    PM = lambda qt: 172 + qt * 4
    L_ = lambda qt: 180 + qt * 4
    O = lambda qt, ft: 188 + (qt * 8 + ft) * 4
    for r in range(4): a(f"v_mov_b32 v{ONE+r}, 0x3f803f80")
    for qt in range(2): a(f"v_mov_b32 v{PM(qt)+1}, 0\nv_mov_b32 v{PM(qt)+2}, 0")
    mf = lambda d, A, B, c_: a(f"v_mfma_f32_16x16x32_bf16 {vr(d,4)}, {vr(A,4)}, {vr(B,4)}, {c_}")
    mf16 = lambda d, A, B, c_: a(f"v_mfma_f32_16x16x16_bf16 {vr(d,4)}, {vr(A,2)}, {vr(B,2)}, {c_}")
    if EARLY[0]:
        for r in range(4): a(f"v_mov_b32 v{vK+r}, -1")
        for qt in range(2):
            a(f"s_add_u32 s{sA}, s{sO}, {15*4*2*128*1024 + qt*128*1024}")
            for i in range(4): a(f"buffer_store_dwordx4 {vr(vK,4)}, v4, {WS}, s{sA} offen offset:{i*1024} sc1")
        a.nop(2)
    a.label("AT_LOOP")
    a(f"s_lshr_b32 s{sB}, s{sSeg}, 2\ns_add_u32 s{sB}, s{sB}, 1\ns_cmp_ge_u32 s{sGot}, s{sB}\ns_cbranch_scc1 AT_IN\ns_mov_b32 s{sA}, {G1F}")
    poll_ge(a, f"buffer_load_dword v9, v252, {WS}, s{sA} offen sc1", [9], f"s{sB}", "QKV", sleep=4)
    a(f"v_cmp_gt_u32 vcc, 16, v9\ns_nop 1\ns_cmp_eq_u64 vcc, 0\ns_cselect_b32 s{sGot}, 16, 0")
    a.label("AT_IN")
    for (base, img) in ((vK, KIMG), (vQ, QIMG), (vV, VIMG)):
        for hf in range(2):
            a(f"s_add_u32 s{sA}, s{sQ}, {img + hf*4096}")
            for i in range(4):
                a.vm(f"buffer_load_dwordx4 {vr(base+16*hf+4*i,4)}, v4, {WS}, s{sA} offen offset:{i*1024} sc1", ("in", base))
    a.wait_vm(("in", vQ))
    for (qt, kt) in ((0, 0), (1, 0), (1, 1)):
        for s in range(4):
            mf(S(qt, kt), vK + 16 * kt + 4 * s, vQ + 16 * qt + 4 * s, "0" if s == 0 else vr(S(qt, kt), 4))
    a(f"s_add_u32 s{sB}, s{sSeg}, 1")
    if EARLY[0] == 2: a(f"s_min_u32 s{sB}, s{sB}, 61")
    poll_ge(a, f"buffer_load_dword v9, v10, {WS}, s{sCh} offen sc1", [9], f"s{sB}", "CH", sleep=SLEEP[0])
    def kmload():
        for i in range(4): a.vm(f"buffer_load_dwordx4 {vr(vKM+4*i,4)}, v4, {WS}, s{sKm} offen offset:{i*1024} sc1", "km")
        for i in range(4): a.vm(f"buffer_load_dwordx2 {vr(vVM+2*i,2)}, v5, {WS}, s{sKm} offen offset:{i*1024} sc1", "vm")
    if diag: a("s_memrealtime s[72:73]")
    kmload()
    a("v_mov_b32 v11, 0xff800000")
    for (qt, kt) in ((0, 0), (1, 1)):
        for r in range(4):
            a(f"v_cndmask_b32 v{S(qt,kt)+r}, v11, v{S(qt,kt)+r}, s[{sMask+2*r}:{sMask+2*r+1}]")
    a(f"v_max3_f32 v12, v{S(0,0)}, v{S(0,0)+1}, v{S(0,0)+2}\nv_max_f32 v12, v12, v{S(0,0)+3}")
    a(f"v_max3_f32 v14, v{S(1,0)}, v{S(1,0)+1}, v{S(1,0)+2}\nv_max3_f32 v14, v14, v{S(1,0)+3}, v{S(1,1)}")
    a(f"v_max3_f32 v14, v14, v{S(1,1)+1}, v{S(1,1)+2}\nv_max_f32 v14, v14, v{S(1,1)+3}")
    if EARLY[0]:
        a(f"s_cmp_lt_u32 s{sSeg}, {EFROM}\ns_cbranch_scc1 AT_KMOK\ns_mov_b32 s{sD}, 0")
        a.label("AT_KMCHK")
        a("s_waitcnt vmcnt(0)")
        rs = list(range(vKM, vKM + 24))
        a(f"v_max3_u32 v13, v{rs[0]}, v{rs[1]}, v{rs[2]}\nv_max3_u32 v15, v{rs[3]}, v{rs[4]}, v{rs[5]}")
        for k in range(6, 22, 4): a(f"v_max3_u32 v13, v13, v{rs[k]}, v{rs[k+1]}\nv_max3_u32 v15, v15, v{rs[k+2]}, v{rs[k+3]}")
        a(f"v_max3_u32 v13, v13, v{rs[22]}, v{rs[23]}\nv_max_u32 v13, v13, v15\nv_cmp_eq_u32 vcc, -1, v13\ns_cbranch_vccz AT_KMOK")
        a(f"s_add_u32 s{sD}, s{sD}, 1\ns_cmp_gt_u32 s{sD}, {POLL_BOUND}\ns_cbranch_scc1 AT_KMOK")
        keep = list(a.vmq); kmload(); a.vmq = keep
        a("s_branch AT_KMCHK")
        a.label("AT_KMOK")
    a.wait_vm("km")
    for qt in range(2):
        for s in range(4):
            mf(S(qt, 2), vKM + 4 * s, vQ + 16 * qt + 4 * s, "0" if s == 0 else vr(S(qt, 2), 4))
    a.nop(8)
    for qt in range(2):
        a(f"v_max3_f32 v{12+2*qt}, v{12+2*qt}, v{S(qt,2)+2}, v{S(qt,2)+3}")
    for op in ("v_permlane32_swap_b32", "v_permlane16_swap_b32"):
        a(f"v_mov_b32 v13, v12\nv_mov_b32 v15, v14\ns_nop 0\n{op} v12, v13\n{op} v14, v15\nv_max_f32 v12, v12, v13\nv_max_f32 v14, v14, v15")
    a(f"v_mul_f32 v12, s{sCC}, v12\nv_mul_f32 v14, s{sCC}, v14")
    for qt in range(2):
        m = 12 + 2 * qt
        prs = [S(qt, 2) + 2, S(qt, 0), S(qt, 0) + 2] + ([S(qt, 1), S(qt, 1) + 2] if qt else [])
        for r in prs:
            a(f"v_pk_fma_f32 {vr(r,2)}, {vr(r,2)}, s[{sCC}:{sCC+1}], {vr(m,2)} op_sel_hi:[1,1,0] neg_lo:[0,0,1] neg_hi:[0,0,1]")
        for r in prs: a(f"v_exp_f32 v{r}, v{r}\nv_exp_f32 v{r+1}, v{r+1}")
        a.nop(1)
        a(f"v_cvt_pk_bf16_f32 v{PM(qt)}, v{prs[0]}, v{prs[0]+1}\nv_cvt_pk_bf16_f32 v{PM(qt)+3}, v{prs[0]}, v{prs[0]+1}")
        for k, r in enumerate(prs[1:]): a(f"v_cvt_pk_bf16_f32 v{PX(qt)+k}, v{r}, v{r+1}")
    a.wait_vm_all()
    a.nop(2)
    for qt in range(2):
        mf16(L_(qt), ONE, PM(qt), "0")
        for ft in range(8): mf16(O(qt, ft), vVM + 2 * (ft >> 1), PM(qt) + 2 * (ft & 1), "0")
        m2 = mf if qt else mf16
        m2(L_(qt), ONE, PX(qt), vr(L_(qt), 4))
        for ft in range(8): m2(O(qt, ft), vV + 4 * ft, PX(qt), vr(O(qt, ft), 4))
    for qt in range(2):
        if qt: a.nop(4)
        a(f"v_rcp_f32 v12, v{L_(qt)}")
        if qt: a(f"s_add_u32 s{sA}, s{sO}, {128*1024}")
        else: a.nop(1)
        for pr in range(4):
            d = vK + 16 * qt + 4 * pr
            for h_ in range(2):
                for k in range(2):
                    r = O(qt, 2 * pr + h_) + 2 * k
                    a(f"v_pk_mul_f32 {vr(r,2)}, {vr(r,2)}, v[12:13] op_sel_hi:[1,0]")
                    a(f"v_cvt_pk_bf16_f32 v{d+2*h_+k}, v{r}, v{r+1}")
            a.vm(f"buffer_store_dwordx4 {vr(d,4)}, v4, {WS}, s{sA if qt else sO} offen offset:{pr*1024} sc1", "o")
    a(f"s_add_u32 s{sCnt}, s{sCnt}, 1")
    if EARLY[0]: a(f"s_cmp_ge_u32 s{sSeg}, 60\ns_cbranch_scc1 AT_FLAG")
    a.wait_vm_all()
    a.label("AT_FLAG")
    if diag: a("s_memrealtime s[74:75]")
    flag_store(a, f"s{sAt}", f"s{sCnt}", 8)
    a(f"""
    s_add_u32 s{sQ}, s{sQ}, {4*32*8192}
    s_add_u32 s{sKm}, s{sKm}, {4*32*4096}
    s_add_u32 s{sO}, s{sO}, {4*2*128*1024}
    s_add_u32 s{sSeg}, s{sSeg}, 4
    s_cmp_lt_u32 s{sSeg}, 64
    s_cbranch_scc1 AT_LOOP
    """)
    a.vmq = []; a.dsq = []

def gemm2(a, diag=False):
    sCs, sU, sO, sH_, sX, sN, sPar, sLo, sLast, sT, sF, sNeed = 18, 19, 20, 21, 22, 23, 24, 26, 25, 28, 30, 31
    srd(a, 12, "Wo", 4096 * 1024)
    srd(a, 48, "w2", 1792 * 1024)
    srd(a, 52, "x", 2048 * 1024)
    srd(a, 56, "out", 2048 * 1024)
    srd(a, 60, "b2", 1024)
    a(f"""
    s_and_b32 s{sCs}, s{sRole}, 15
    s_lshr_b32 s{sU}, s{sRole}, 4
    v_and_b32 v100, 15, v0
    v_lshrrev_b32 v101, 4, v0
    v_and_b32 v102, 3, v0
    v_bfe_u32 v103, v0, 2, 2
    v_lshrrev_b32 v4, 2, v0
    v_lshlrev_b32 v4, 10, v4
    v_lshl_add_u32 v4, v102, 4, v4
    s_lshl_b32 s{sA}, s{sCs}, 6
    v_add_u32 v104, s{sA}, v4
    v_lshl_add_u32 v4, v101, 2, v103
    v_lshlrev_b32 v4, 6, v4
    v_lshl_add_u32 v4, v102, 4, v4
    s_mul_i32 s{sA}, s{sW}, 32768
    v_add_u32 v105, s{sA}, v4
    s_waitcnt lgkmcnt(0)
    """)
    Wo_ = lambda s, T: ar(8 * s + 4 * T, 4)
    VW2 = 144
    W2_ = lambda s, T: vr(VW2 + 8 * s + 4 * T, 4)
    chunks = [("o", c, 8) for c in range(8)] + [("2", c, 8) for c in range(3)] + [("2", 3, 4)]
    a(f"s_lshl_b32 s{sN}, s{sW}, 20\ns_mul_i32 s{sB}, s{sW}, {448*1024}")
    def issue(n):
        m, c, cnt = chunks[n]
        for i in range(cnt):
            a(f"s_add_u32 m0, s{sA}, {(n%4)*8192 + i*1024}\ns_nop 0")
            so = sN if m == "o" else sB
            a.vm(f"buffer_load_dwordx4 v104, {'s[12:15]' if m == 'o' else 's[48:51]'}, s{so} offen lds", ("w", n))
            a(f"s_add_u32 s{so}, s{so}, {16*1024}")
    for n in range(4): issue(n)
    for n, (m, c, cnt) in enumerate(chunks):
        a.wait_vm(("w", n))
        for s_ in range(cnt // 2):
            for T in range(2):
                for p in range(2):
                    base = (8 * (4 * c + s_) + 4 * T + 2 * p)
                    dst = ar(base, 2) if m == "o" else vr(VW2 + base, 2)
                    a.ds(f"ds_read_b64_tr_b16 {dst}, v105 offset:{(n%4)*8192 + (32*s_+16*p)*64 + T*8}")
        a.wait_ds_all()
        if n + 4 < len(chunks): issue(n + 4)
    if diag: a("s_memrealtime s[68:69]")
    vB = 8
    a(f"""
    v_lshlrev_b32 v4, 4, v101
    s_lshl_b32 s{sA}, s{sCs}, 6
    buffer_load_dwordx4 v[16:19], v4, s[60:63], s{sA} offen
    v_and_b32 v7, 7, v0
    v_lshl_add_u32 v6, v7, 10, v4
    v_add_u32 v6, s{sA}, v6
    v_lshlrev_b32 v5, 4, v0
    v_add_u32 v5, 131072, v5
    v_lshl_add_u32 v4, v101, 4, v7
    v_lshlrev_b32 v4, 4, v4
    v_lshrrev_b32 v3, 3, v100
    v_lshl_add_u32 v4, v3, 10, v4
    v_lshlrev_b32 v7, 7, v7
    s_mov_b32 s{sLo}, 0x00ff00ff
    s_mov_b32 s{sLo+1}, 0x00ff00ff
    s_waitcnt vmcnt(0)
    """)
    for k in range(4): a(f"v_lshlrev_b32 v{vB+2*k}, 16, v{16+k}\nv_and_b32 v{vB+2*k+1}, 0xffff0000, v{16+k}")
    a(f"v_min_u32 v16, 27, v0\nv_lshlrev_b32 v16, 7, v16\ns_mov_b32 s{sA}, {G1F + 160*128}")
    poll_ge(a, f"buffer_load_dword v17, v16, {WS}, s{sA} offen sc1", [17], 16, "H")
    a(f"s_mov_b32 s{sPar}, 0")
    a("s_barrier")
    vR = lambda k: 64 + 4 * k
    AC, AO = 24, 128
    def ld(n, sbase, tag="a"):
        a(f"s_add_u32 s{sT}, s{sbase}, {(n>>1)*4096}")
        a.vm(f"buffer_load_dwordx4 {vr(vR(n),4)}, v4, {WS}, s{sT} offen offset:{(n%2)*2048} sc1", (tag, n))
    def mm(n, Wf, first, tag="a"):
        a.wait_vm((tag, n))
        for par, acc in ((0, AC), (1, AO)):
            for T in range(2):
                a(f"v_mfma_f32_16x16x32_bf16 {vr(acc+4*T,4)}, {Wf(2*n+par,T)}, {vr(vR(n),4)}, {'0' if first else vr(acc+4*T,4)}")
    def hload(su):
        a(f"""
        s_lshr_b32 s{sB}, s{su}, 1
        s_and_b32 s{sC_}, s{su}, 1
        s_lshl_b32 s{sC_}, s{sC_}, 7
        s_mul_i32 s{sH_}, s{sB}, {56*1024}
        s_mul_i32 s{sA}, s{sW}, {14*1024}
        s_add_u32 s{sH_}, s{sH_}, s{sA}
        s_add_u32 s{sH_}, s{sH_}, s{sC_}
        s_add_u32 s{sH_}, s{sH_}, {HIMG}
        """)
        for n in range(7): ld(n, sH_, "h")
    def hmm():
        for n in range(7): mm(n, W2_, n == 0, "h")
    NFULL = 256 // NSETS
    a(f"s_add_u32 s{sLast}, s{sU}, {NFULL*NSETS}\ns_cmp_ge_u32 s{sLast}, 256\ns_cselect_b32 s{sB}, {NSETS}, 0\ns_sub_u32 s{sLast}, s{sLast}, s{sB}")
    hload(sLast); hmm(); a.nop(8)
    for k in range(8): a(f"v_mov_b32 v{56+k}, v{AC+k}\nv_mov_b32 v{136+k}, v{AO+k}")
    a.label("G2_LOOP")
    a(f"""
    s_lshr_b32 s{sB}, s{sU}, 2
    s_and_b32 s{sF}, s{sB}, 3
    s_lshl_b32 s{sF}, s{sF}, 12
    s_lshl_b32 s{sC_}, s{sW}, 10
    s_add_u32 s{sF}, s{sF}, s{sC_}
    s_add_u32 s{sF}, s{sF}, {ATF}
    buffer_load_dword v17, v7, {WS}, s{sF} offen sc1
    s_lshr_b32 s{sNeed}, s{sB}, 2
    s_add_u32 s{sNeed}, s{sNeed}, 1
    s_lshl_b32 s{sX}, s{sU}, 13
    buffer_load_dwordx4 v[20:23], v6, s[52:55], s{sX} offen
    s_lshr_b32 s{sB}, s{sU}, 1
    s_and_b32 s{sC_}, s{sU}, 1
    s_lshl_b32 s{sC_}, s{sC_}, 7
    s_lshl_b32 s{sO}, s{sB}, 17
    s_lshl_b32 s{sA}, s{sW}, 15
    s_add_u32 s{sO}, s{sO}, s{sA}
    s_add_u32 s{sO}, s{sO}, s{sC_}
    s_add_u32 s{sO}, s{sO}, {OIMG}
    s_mov_b32 s{sN}, 0
    s_cmp_lg_u32 s{sU}, s{sLast}
    s_cbranch_scc1 G2_H
    """)
    for k in range(8): a(f"v_mov_b32 v{AC+k}, v{56+k}\nv_mov_b32 v{AO+k}, v{136+k}")
    a("s_branch G2_HE")
    a.label("G2_H")
    a.vmq = []
    hload(sU)
    keep = list(a.vmq)
    a(f"s_cmp_ge_u32 s{sU}, 240\ns_cbranch_scc1 G2_SLOW\ns_waitcnt vmcnt(8)\nv_cmp_gt_u32 vcc, s{sNeed}, v17\ns_cbranch_vccnz G2_SLOW")
    for n in range(7, 16): ld(n, sO)
    hmm()
    for n in range(7): ld(n, sO)
    OORD = list(range(7, 16)) + list(range(7))
    for n in OORD: mm(n, Wo_, False)
    a("s_branch G2_ODONE")
    a.label("G2_SLOW")
    a.vmq = keep
    hmm(); a.nop(8)
    a.label("G2_HE")
    if EARLY[0]:
        for k in range(8): a(f"v_mov_b32 v{40+k}, v{AC+k}\nv_mov_b32 v{48+k}, v{AO+k}")
    poll_ge(a, f"buffer_load_dword v17, v7, {WS}, s{sF} offen sc1", [17], f"s{sNeed}", "AT", sleep=SLEEP[0])
    if diag: a("s_memrealtime s[72:73]")
    a.label("G2_OPART")
    for n in OORD: ld(n, sO)
    for n in OORD: mm(n, Wo_, False)
    a.label("G2_ODONE")
    a(f"s_lshl_b32 s{sA}, s{sW}, 11\ns_add_u32 s{sA}, s{sA}, s{sPar}\nv_add_u32 v16, s{sA}, v5")
    a.nop(6)
    if EARLY[0]:
        a(f"s_cmp_lt_u32 s{sU}, 240\ns_cbranch_scc1 G2_OOK\nv_cmp_u_f32 vcc, v{AC}, v{AC}\ns_cbranch_vccz G2_OOK")
        a(f"s_add_u32 s{sN}, s{sN}, 1\ns_cmp_gt_u32 s{sN}, 256\ns_cbranch_scc1 G2_OOK")
        for k in range(8): a(f"v_mov_b32 v{AC+k}, v{40+k}\nv_mov_b32 v{AO+k}, v{48+k}")
        a("s_branch G2_OPART")
        a.label("G2_OOK")
    for k in range(8): a(f"v_add_f32_dpp v{AC+k}, v{AO+k}, v{AC+k} row_ror:8 row_mask:0xf bank_mask:0xf")
    if diag: a(f"s_memrealtime s[74:75]\ns_mov_b32 s76, s{sN}")
    a.ds(f"ds_write_b128 v16, {vr(AC,4)}")
    a.ds(f"ds_write_b128 v16, {vr(AC+4,4)} offset:1024")
    a.wait_ds_all()
    a("s_barrier")
    a(f"s_cmp_lg_u32 s{sW}, 0\ns_cbranch_scc1 G2_NEXT")
    for w_ in range(1, 4):
        a.ds(f"ds_read_b128 {vr(56+8*w_,4)}, v16 offset:{w_*2048}", ("r", w_))
        a.ds(f"ds_read_b128 {vr(60+8*w_,4)}, v16 offset:{w_*2048+1024}", ("r", w_))
    for k in range(4):
        a(f"v_lshlrev_b32 v32, 16, v{20+k}\nv_and_b32 v33, 0xffff0000, v{20+k}")
        a(f"v_pk_add_f32 {vr(AC+2*k,2)}, {vr(AC+2*k,2)}, {vr(vB+2*k,2)}")
        a(f"v_pk_add_f32 {vr(AC+2*k,2)}, {vr(AC+2*k,2)}, v[32:33]")
    for w_ in range(1, 4):
        a.wait_ds(("r", w_))
        for k in range(4): a(f"v_pk_add_f32 {vr(AC+2*k,2)}, {vr(AC+2*k,2)}, {vr(56+8*w_+2*k,2)}")
    for k in range(4): a(f"v_cvt_pk_bf16_f32 v{36+k}, v{AC+2*k}, v{AC+2*k+1}")
    a(f"s_mov_b64 exec, s[{sLo}:{sLo+1}]\nbuffer_store_dwordx4 v[36:39], v6, s[56:59], s{sX} offen {OUTF[0]}\ns_mov_b64 exec, -1")
    a.label("G2_NEXT")
    a(f"""
    s_xor_b32 s{sPar}, s{sPar}, 8192
    s_add_u32 s{sU}, s{sU}, {NSETS}
    s_cmp_lt_u32 s{sU}, 256
    s_cbranch_scc1 G2_LOOP
    """)
    a.vmq = []; a.dsq = []
```

```python
import sys
from asm import *
from layout import *
import os, importlib
C = importlib.import_module(os.environ.get("CHAINMOD", "chain"))
import workers as Wk
NAME = "parallel_sum__memory_aug_recurrent_mem_tr__dense_activation_squared_relu__prompt"
CH = dict(pre_bar=8, el=4, elgap=16, v_0=0, v_pre=4, o_pre=2, dlyA=(38, 40), st4=1, pboth=1, dlyB=4, w1c=20, pst0=1, pbar=1, nrA=3, bound=1 << 16, depA=(1, 2), depB=2, gapA=20, gapB=16, x0=0, xw_only=1, jbar=1, jobs='S', j0=4, jstr=10, jw=2, a_burst=2, r_pre=2, kx_in=5, nt='', pf0=(54, 50, 52), order='okvq', qp=1, cverd=4, vfirst=(4, 4), ph={'head': 2}, jl=1)
sDB = 4
sInit, sReady, sMode, sXcc, sTent = 84, 85, 86, 87, 83
sCounted, sLost = 29, 79
sA, sB, sC_, sD = Wk.sA, Wk.sB, Wk.sC_, Wk.sD
WS = Wk.WS
DB = f"s[{sDB}:{sDB+3}]"
ROLE_LDS = 163840 - 16
MODE_BOUND = 2000

def wait_init(a, v=2):
    L = a.newlabel("INIT")
    a(f"s_cmp_lg_u32 s{sInit}, 0\ns_cbranch_scc1 {L}")
    a(f"v_mov_b32 v{v}, {D_INIT}")
    Wk.poll_ge(a, f"buffer_load_dword v{v+1}, v{v}, {DB}, 0 offen sc1", [v + 1], 2 * NINIT, "INIT", sleep=4)
    a(f"s_mov_b32 s{sInit}, 1")
    a.label(L)

def atomic(a, op, off, val, dst, cmp=None):
    a(f"s_mov_b64 exec, 1\nv_mov_b32 v20, {val}\nv_mov_b32 v22, {off}")
    if cmp is not None:
        a(f"v_mov_b32 v21, {cmp}\nbuffer_atomic_cmpswap v[20:21], v22, {DB}, 0 offen sc0")
    else:
        a(f"buffer_atomic_{op} v20, v22, {DB}, 0 offen sc0")
    a(f"s_waitcnt vmcnt(0)\nv_readfirstlane_b32 s{dst}, v20\ns_mov_b64 exec, -1\ns_nop 3")

def claim(a, name, sRes, sOff):
    a.label(f"CLAIM_{name}")
    a(f"s_lshl_b32 s{sC_}, 1, s{sA}")
    atomic(a, "or", f"s{sOff}", f"s{sC_}", sB)
    a.label(f"CLAIM_{name}_R")
    a(f"s_and_b32 s{sD}, s{sB}, s{sC_}\ns_or_b32 s{sB}, s{sB}, s{sC_}\ns_mov_b32 s{sRes}, s{sA}")
    a(f"s_cmp_eq_u32 s{sD}, 0\ns_cbranch_scc1 CLAIM_{name}_E")
    a(f"s_mov_b32 s{sRes}, -1\ns_cmp_eq_u32 s{sB}, -1\ns_cbranch_scc1 CLAIM_{name}_E")
    a(f"s_ff0_i32_b32 s{sA}, s{sB}\ns_branch CLAIM_{name}")
    a.label(f"CLAIM_{name}_E")

def bcast(a, s):
    L = a.newlabel("BC")
    a(f"v_mov_b32 v22, {ROLE_LDS}")
    a(f"s_cmp_lg_u32 s{Wk.sW}, 0\ns_cbranch_scc1 {L}\nv_mov_b32 v20, s{s}\nds_write_b32 v22, v20\ns_waitcnt lgkmcnt(0)")
    a.label(L)
    a(f"s_barrier\nds_read_b32 v20, v22\ns_waitcnt lgkmcnt(0)\nv_readfirstlane_b32 s{s}, v20\ns_barrier")

def gen(P=CH, diag=False, force_slow=False):
    a = Asm()
    def mark(a, word, neg=False):
        if not P.get("marks"): return
        a(f"s_memrealtime s[98:99]\ns_waitcnt lgkmcnt(0)")
        if neg: a("s_not_b32 s98, s98")
        a(f"s_mov_b64 exec, 1\nv_mov_b32 v10, s98\nv_mov_b32 v11, {4*word}\nbuffer_atomic_umax v10, v11, {DB}, 0 offen\ns_mov_b64 exec, -1")
    Wk.SLEEP[0] = P.get('sleep', 1); Wk.PREFETCH[0] = P.get('pf', ());  Wk.EARLY[0] = P.get('early', 2); Wk.WVERD[0] = P.get('wverd', 0); Wk.QLATE[0] = P.get('qlate', 0); Wk.VP[0] = P.get('vp'); Wk.HOLD[0] = P.get('hold', 0); Wk.OUTF[0] = P.get('outf', 'sc1')
    sR = Wk.sRole
    a(f"""
    s_cmp_ge_u32 s2, 256
    s_cbranch_scc1 L_END
    s_load_dwordx2 s[{Wk.sWS}:{Wk.sWS+1}], s[0:1], {KA['ws']}
    s_load_dwordx2 s[{sDB}:{sDB+1}], s[0:1], {KA['dbg']}
    s_getreg_b32 s{sXcc}, hwreg(HW_REG_XCC_ID, 0, 4)
    s_mov_b32 s{Wk.sWS+2}, {WS_BYTES}
    s_mov_b32 s{Wk.sWS+3}, 0x20000
    s_mov_b32 s{sDB+2}, 256
    s_mov_b32 s{sDB+3}, 0x20000
    s_mov_b32 s{Wk.sDead}, 0
    s_mov_b32 s{sInit}, 0
    s_mov_b32 s82, 0
    s_mov_b32 s{sLost}, 0
    v_mov_b32 v250, 0
    v_lshrrev_b32 v1, 6, v0
    v_lshlrev_b32 v8, 4, v0
    v_readfirstlane_b32 s{Wk.sW}, v1
    v_and_b32 v0, 63, v0
    v_mov_b32 v12, -1
    v_mov_b32 v13, -1
    v_mov_b32 v14, -1
    v_mov_b32 v15, -1
    """)
    if diag: a("s_memrealtime s[90:91]")
    CX = 9 if force_slow else P.get('cx', 3)
    sOff, sTry, sDie, sWord, sSpec = 18, 19, 80, 81, 82
    def declare(a):
        L = a.newlabel("DECL")
        a(f"s_cmp_lg_u32 s{sB}, -1\ns_cbranch_scc1 {L}")
        a(f"s_mov_b64 exec, 1\nv_mov_b32 v20, 1\nv_mov_b32 v21, 0\nv_mov_b32 v22, {D_MODE}\nbuffer_atomic_cmpswap v[20:21], v22, {DB}, 0 offen\ns_mov_b64 exec, -1")
        a.label(L)
    a(f"""
    s_bfe_u32 s{sR}, s2, 0x50003
    s_waitcnt lgkmcnt(0)
    """)
    if P.get("marks"):
        a(f"s_cmp_lg_u32 s{Wk.sW}, 0\ns_cbranch_scc1 L_MK0\ns_and_b32 s3, s2, 15\ns_cmp_lg_u32 s3, 0\ns_cbranch_scc1 L_MK0")
        mark(a, 4, True)
        a.label("L_MK0")
    if P.get("hperm"):
        a(f"s_cmp_lg_u32 s{sXcc}, {CX}\ns_cbranch_scc1 L_HP\ns_lshr_b32 s3, s{sR}, 3\ns_lshl_b32 s3, s3, 1\ns_lshr_b32 s3, {P['hperm']}, s3\ns_and_b32 s3, s3, 3")
        a(f"s_and_b32 s{sR}, s{sR}, 7\ns_lshl_b32 s{sR}, s{sR}, 2\ns_or_b32 s{sR}, s{sR}, s3")
        a.label("L_HP")
    a(f"""
    s_mov_b32 s{sTent}, s{sR}
    s_add_u32 s{sDie}, s{sXcc}, {(15 - CX) % 8}
    s_and_b32 s{sDie}, s{sDie}, 7
    s_min_u32 s{sDie}, s{sDie}, 6
    s_lshl_b32 s{sWord}, s{sDie}, 2
    s_add_u32 s{sWord}, s{sWord}, {D_WM}
    s_cmp_eq_u32 s{sXcc}, {CX}
    s_cselect_b32 s{sWord}, {D_MASK}, s{sWord}
    s_and_b32 s3, s2, 0x87
    s_cmp_lg_u32 s3, 0
    s_cbranch_scc1 L_I3
    s_xor_b32 s3, s{Wk.sW}, s{sTent}
    s_bitcmp1_b32 s3, 0
    s_cbranch_scc0 L_I3
    """)
    a(f"s_lshr_b32 s{sA}, s2, 3")
    a(f"s_lshr_b32 s3, s{Wk.sW}, 1\ns_lshl_b32 s{sA}, s{sA}, 1\ns_add_u32 s{sA}, s{sA}, s3\nv_lshlrev_b32 v9, 4, v0")
    a(f"s_lshl_b32 s3, s{sA}, 13\ns_add_u32 s3, s3, {PART}")
    for k in range(8):
        a(f"buffer_store_dwordx4 v[12:15], v9, {WS}, s3 offen offset:{(k&3)*1024} sc1")
        if k == 3: a("s_add_u32 s3, s3, 4096")
    a(f"""
    s_lshl_b32 s3, s{sA}, 10
    s_add_u32 s3, s3, {MBUF}
    buffer_store_dwordx4 v[12:15], v9, {WS}, s3 offen sc1
    s_mul_i32 s3, s{sA}, 2560
    s_add_u32 s3, s3, {FLG}
    v_mov_b32 v16, 0
    v_mov_b32 v17, 0
    v_mov_b32 v18, 0
    v_mov_b32 v19, 0
    buffer_store_dwordx4 v[16:19], v9, {WS}, s3 offen sc1
    buffer_store_dwordx4 v[16:19], v9, {WS}, s3 offen offset:1024 sc1
    s_mov_b64 exec, 0xffffffff
    buffer_store_dwordx4 v[16:19], v9, {WS}, s3 offen offset:2048 sc1
    s_mov_b64 exec, -1
    s_waitcnt vmcnt(0)
    s_mov_b64 exec, 1
    v_mov_b32 v20, 1
    v_mov_b32 v22, {D_INIT}
    buffer_atomic_add v20, v22, {DB}, 0 offen
    s_mov_b64 exec, -1
    L_I3:
    s_cmp_lg_u32 s{Wk.sW}, 0
    s_cbranch_scc1 L_I2
    s_mov_b64 exec, 1
    s_lshl_b32 s3, 1, s{sTent}
    v_mov_b32 v250, s3
    v_mov_b32 v22, s{sWord}
    buffer_atomic_or v250, v22, {DB}, 0 offen sc0
    s_mov_b64 exec, -1
    L_I2:
    s_cmp_lg_u32 s{sXcc}, {CX}
    s_cbranch_scc1 L_NOSPEC
    s_mov_b32 s{sSpec}, 1
    s_branch L_CHAIN
    L_CLOST:
    s_waitcnt vmcnt(0)
    s_cmp_lg_u32 s{Wk.sW}, 0
    s_cbranch_scc1 L_ROLE
    s_mov_b32 s{sA}, s{sTent}
    s_mov_b32 s{sOff}, {D_MASK}
    """)
    claim(a, "A", sR, sOff)
    a(f"s_cmp_eq_u32 s{sR}, -1\ns_cbranch_scc1 L_WCLAIM")
    declare(a)
    a("s_branch L_ROLE")
    a.label("L_NOSPEC")
    if P.get("pf0"):
        a(f"s_xor_b32 s3, s{Wk.sW}, s{sTent}\ns_bitcmp1_b32 s3, 0\ns_cbranch_scc0 L_PF")
        a(f"s_lshr_b32 s3, s{sDie}, 1\ns_lshl_b32 s3, s3, 1\ns_lshr_b32 s44, s{sTent}, 4\ns_add_u32 s3, s3, s44\ns_cmp_eq_u32 s3, 5\ns_cbranch_scc1 L_PF")
        if P.get("vp"): a(f"s_lshl_b32 s3, s{sDie}, 5\ns_add_u32 s3, s3, s{sTent}\ns_sub_u32 s3, s3, 128\ns_cmp_lt_u32 s3, 9\ns_cbranch_scc1 L_PF")
        a(f"s_load_dwordx4 s[48:51], s[0:1], {KA['Wq']}\ns_load_dwordx4 s[52:55], s[0:1], {KA['Wv']}\ns_mov_b32 s42, 0x400000\ns_mov_b32 s43, 0x20000")
        a(f"v_lshlrev_b32 v13, 7, v0\ns_lshr_b32 s3, s{Wk.sW}, 1\ns_add_u32 s3, s3, s2\ns_and_b32 s3, s3, 255\ns_lshl_b32 s3, s3, 14\ns_add_u32 s44, s3, 8192\ns_waitcnt lgkmcnt(0)")
        for p in P["pf0"]:
            a(f"s_mov_b32 s40, s{p}\ns_mov_b32 s41, s{p+1}\nbuffer_load_dword v252, v13, s[40:43], s3 offen\nbuffer_load_dword v252, v13, s[40:43], s44 offen")
        a.label("L_PF")
    a(f"s_lshl_b32 s{sR}, s{sDie}, 5\ns_add_u32 s{sR}, s{sR}, s{sTent}\ns_mov_b32 s{sSpec}, 1\ns_branch L_WORK")
    a.label("L_WLOST")
    a("s_waitcnt vmcnt(0) lgkmcnt(0)")
    a(f"s_cmp_lg_u32 s{Wk.sW}, 0\ns_cbranch_scc1 L_ROLE2")
    a.label("L_WCLAIM")
    a(f"s_mov_b32 s{sOff}, s{sDie}\ns_mov_b32 s{sTry}, 0\ns_mov_b32 s{sA}, s{sTent}")
    a.label("L_WNEXT")
    a(f"s_cmp_ge_u32 s{sOff}, 7\ns_cselect_b32 s{sB}, 7, 0\ns_sub_u32 s{sOff}, s{sOff}, s{sB}")
    a(f"s_cmp_ge_u32 s{sOff}, 7\ns_cselect_b32 s{sB}, 7, 0\ns_sub_u32 s{sOff}, s{sOff}, s{sB}")
    a(f"s_lshl_b32 s{sOff}, s{sOff}, 2\ns_add_u32 s{sOff}, s{sOff}, {D_WM}")
    claim(a, "W", sR, sOff)
    a(f"s_sub_u32 s{sOff}, s{sOff}, {D_WM}\ns_lshr_b32 s{sOff}, s{sOff}, 2")
    a(f"s_cmp_eq_u32 s{sR}, -1\ns_cbranch_scc0 L_WGOT")
    a(f"s_add_u32 s{sOff}, s{sOff}, 1\ns_add_u32 s{sTry}, s{sTry}, 1\ns_mov_b32 s{sA}, 0\ns_cmp_lt_u32 s{sTry}, 7\ns_cbranch_scc1 L_WNEXT")
    atomic(a, "cmpswap", D_MODE, 2, sB, cmp=0)
    a(f"s_mov_b32 s{sA}, 0\ns_mov_b32 s{sOff}, {D_MASK}")
    claim(a, "B", sR, sOff)
    a("s_branch L_ROLE")
    a.label("L_WGOT")
    a(f"s_lshl_b32 s{sOff}, s{sOff}, 5\ns_add_u32 s{sR}, s{sR}, s{sOff}\ns_add_u32 s{sR}, s{sR}, 32")
    def verdict(a):
        L = a.newlabel("VERD")
        a(f"s_cmp_eq_u32 s{sSpec}, 0\ns_cbranch_scc1 {L}\ns_mov_b32 s{sSpec}, 0")
        a(f"v_readfirstlane_b32 s{sB}, v250\ns_nop 3\ns_lshr_b32 s{sB}, s{sB}, s{sTent}\ns_and_b32 s{sB}, s{sB}, 1")
        bcast(a, sB)
        a(f"s_cmp_lg_u32 s{sB}, 0\ns_cbranch_scc1 L_WLOST")
        a.label(L)
    a.label("L_ROLE")
    a.label("L_ROLE2")
    bcast(a, sR)
    a(f"s_cmp_lt_u32 s{sR}, 32\ns_cbranch_scc1 L_CHAIN")
    a(f"s_cmp_eq_u32 s{sR}, -1\ns_cbranch_scc1 L_FIN")
    a(f"s_waitcnt vmcnt(0)\ns_sub_u32 s{sR}, s{sR}, 32")
    a("; ======================== workers")
    a.label("L_WORK")
    if P.get("wpf"):
        a("s_getpc_b64 s[66:67]\nv_lshlrev_b32 v10, 7, v0")
        a(f"s_lshl_b32 s3, s{Wk.sW}, 13\nv_add_u32 v10, s3, v10\nv_min_u32 v10, {P['wpf']}, v10\nglobal_load_dword v252, v10, s[66:67]")
    if diag: a("s_memrealtime s[70:71]\ns_waitcnt lgkmcnt(0)\ns_mov_b32 s100, s70\ns_add_u32 s101, s16, 32")
    if diag: a("s_mov_b32 s64, 0\ns_mov_b32 s66, 0\ns_mov_b32 s68, 0\ns_mov_b32 s72, 0")
    if P.get("qp", 0):
        if P.get("vp"):
            a(f"s_sub_u32 s3, s{sR}, 128\ns_cmp_ge_u32 s3, 9\ns_cbranch_scc1 L_NV")
            a(f"s_lshl_b32 s18, s3, 2\ns_add_u32 s18, s18, 1\ns_min_u32 s18, s18, 31\ns_load_dwordx2 s[60:61], s[0:1], {KA['Wv']}\ns_mov_b32 s67, {WVP}\ns_mov_b32 s19, {D_VP}\ns_branch L_PREP")
            a.label("L_NV")
        a(f"s_sub_u32 s3, s{sR}, 128\ns_and_b32 s3, s3, 0xffffffd0\ns_cmp_lg_u32 s3, 16\ns_cbranch_scc1 L_G1")
        a(f"s_and_b32 s18, s{sR}, 15\ns_lshr_b32 s3, s{sR}, 1\ns_and_b32 s3, s3, 16\ns_add_u32 s18, s18, s3")
        a(f"s_load_dwordx2 s[60:61], s[0:1], {KA['Wq']}\ns_mov_b32 s67, {WQP}\ns_mov_b32 s19, {D_QP}")
        a.label("L_PREP")
        def qdone(a):
            a(f"s_cmp_lg_u32 s{Wk.sW}, 0\ns_cbranch_scc1 L_G1")
            a(f"s_lshl_b32 s3, 1, s18\ns_mov_b64 exec, 1\nv_mov_b32 v2, s3\nbuffer_atomic_or v2, off, {DB}, s19\ns_mov_b64 exec, -1")
            if diag: a("s_memrealtime s[40:41]\ns_waitcnt lgkmcnt(0)\ns_mov_b32 s100, s40")
        C.qprep(a, 18, qdone)
        a.label("L_G1")
    Wk.gemm1(a, wait_init, verdict, sInit, diag)
    if diag: a("s_memtime s[78:79]")
    if P.get("marks"):
        a(f"s_cmp_lg_u32 s{Wk.sW}, 0\ns_cbranch_scc1 L_MK2\ns_and_b32 s3, s{sR}, 7\ns_cmp_lg_u32 s3, 0\ns_cbranch_scc1 L_MK2")
        mark(a, 8)
        a.label("L_MK2")
    if diag: a("s_memrealtime s[92:93]")
    wait_init(a)
    a(f"s_cmp_ge_u32 s{sR}, 192\ns_cbranch_scc1 L_FIN\ns_cmp_lt_u32 s{sR}, 160\ns_cbranch_scc1 L_G2\ns_sub_u32 s{sR}, s{sR}, 160")
    Wk.attention(a, diag)
    a("s_branch L_FIN")
    a.label("L_G2")
    Wk.gemm2(a, diag)
    if P.get("marks"):
        a(f"s_waitcnt vmcnt(0)\ns_cmp_lg_u32 s{Wk.sW}, 0\ns_cbranch_scc1 L_FIN")
        mark(a, 9)
    a("s_branch L_FIN")
    a("; ======================== recurrence")
    a.label("L_CHAIN")
    if diag: a("s_memrealtime s[70:71]\ns_waitcnt lgkmcnt(0)\ns_mov_b32 s100, s70\ns_mov_b32 s101, s16")
    if P.get("cpf"):
        a("s_getpc_b64 s[66:67]\nv_lshlrev_b32 v10, 7, v0")
        a(f"s_lshl_b32 s3, s{Wk.sW}, 13\nv_add_u32 v10, s3, v10\nv_min_u32 v10, {P['cpf']}, v10\nglobal_load_dword v98, v10, s[66:67]")
    def first_chunk(a, part, share):
        L = a.newlabel("CV")
        a(f"s_cmp_eq_u32 s{sSpec}, 0\ns_cbranch_scc1 {L}")
        if part == 0:
            a(f"s_cmp_lg_u32 s{Wk.sW}, 0\ns_cbranch_scc1 {L}_B")
            a(f"v_readfirstlane_b32 s{sB}, v250\ns_lshl_b32 s3, 1, s{sTent}\ns_nop 2\ns_and_b32 s{sLost}, s{sB}, s3\ns_or_b32 s{sB}, s{sB}, s3")
            a(f"s_cmp_lg_u32 s{sLost}, 0\ns_cbranch_scc1 {L}_B")
            declare(a)
            a.label(L + "_B")
        if share:
            a(f"s_mov_b32 s{sSpec}, 0")
            if part: a("s_barrier")
            bcast(a, sLost)
            a(f"s_cmp_lg_u32 s{sLost}, 0\ns_cbranch_scc1 L_CLOST")
        a.label(L)
    sChf, sG1 = 88, 89
    def g1addr(a, lane):
        a(f"v_and_b32 v11, 3, {lane}\nv_bfe_u32 v10, {lane}, 2, 1\nv_lshlrev_b32 v10, 13, v10\nv_lshl_add_u32 v10, v11, 7, v10")
    def set_ready(a, v):
        for perm in ("quad_perm:[1,0,3,2]", "quad_perm:[2,3,0,1]", "row_half_mirror"):
            a(f"s_nop 1\nv_min_u32_dpp v{v}, v{v}, v{v} {perm} row_mask:0xf bank_mask:0xf")
        a(f"s_nop 0\nv_readfirstlane_b32 s{sReady}, v{v}\ns_nop 3\ns_lshl_b32 s{sReady}, s{sReady}, 2")
    def peek(a):
        a(f"s_lshl_b32 s{sChf}, s{C.sH}, 7\ns_add_u32 s{sChf}, s{sChf}, {CHF}")
        a(f"s_lshr_b32 s{sG1}, s{C.sH}, 1\ns_lshl_b32 s{sG1}, s{sG1}, 9\ns_add_u32 s{sG1}, s{sG1}, {G1F}")
        a(f"v_mov_b32 v124, -1\nv_mov_b32 v125, -1\nv_mov_b32 v126, -1\nv_mov_b32 v127, -1")
        a(f"s_lshl_b32 s3, s{C.sH}, 2\ns_add_u32 s3, s3, s{Wk.sW}\ns_lshl_b32 s3, s3, 10\ns_add_u32 s3, s3, {KMEM - C.MISC + EFROM*32*4096}")
        for sg in range(EFROM, 64):
            a(f"buffer_store_dwordx4 v[124:127], v{C.vM16}, {WS}, s3 offen sc1\ns_add_u32 s3, s3, {32*4096}")
        g1addr(a, "v0")
        a(f"v_mov_b32 v24, 0\nbuffer_load_dwordx2 v[26:27], v24, {DB}, 0 offen sc1\nbuffer_load_dword v25, v10, {WS}, s{sG1} offen sc1")
    def qtest(a, v, late):
        a(f"v_readfirstlane_b32 s{sB}, v{v}\ns_nop 3\ns_bitcmp1_b32 s{sB}, s{C.sH}\ns_cbranch_scc0 {late}")
    def qlook(a, v):
        a(f"buffer_load_dword v{v}, off, {DB}, 0 offset:{D_QP} sc1")
    def qwait(a):
        keep = list(a.vmq)
        if diag: a("s_memrealtime s[72:73]")
        a(f"s_mov_b32 s{sD}, 0")
        a.label("L_QW")
        a(f"v_readfirstlane_b32 s{sB}, v29\ns_nop 3\ns_bitcmp1_b32 s{sB}, s{C.sH}\ns_cbranch_scc1 L_QOK")
        a(f"s_add_u32 s{sD}, s{sD}, 1\ns_cmp_gt_u32 s{sD}, {Wk.POLL_BOUND}\ns_cbranch_scc1 L_QOK\ns_sleep 2")
        a(f"buffer_load_dword v29, off, {DB}, 0 offset:{D_QP} sc1\ns_waitcnt vmcnt(0)\ns_branch L_QW")
        a.label("L_QOK")
        if diag: a("s_memrealtime s[74:75]\ns_waitcnt lgkmcnt(0)\ns_mov_b32 s100, s72\ns_mov_b32 s101, s74")
        a.vmq = keep
    if P.get("qp", 0): P = dict(P, qpre=(qlook, qwait, qtest))
    if P.get("vp"):
        def vwait(a):
            a(f"s_mov_b32 s{sD}, 0")
            a.label("L_VW")
            a(f"buffer_load_dwordx2 v[28:29], off, {DB}, 0 offset:{D_QP} sc1\ns_waitcnt vmcnt(0)\nv_and_b32 v28, v28, v29\ns_nop 0")
            a(f"v_readfirstlane_b32 s{sB}, v28\ns_nop 3\ns_bitcmp1_b32 s{sB}, s{C.sH}\ns_cbranch_scc1 L_VOK")
            a(f"s_add_u32 s{sD}, s{sD}, 1\ns_cmp_gt_u32 s{sD}, {Wk.POLL_BOUND}\ns_cbranch_scc1 L_VOK\ns_sleep 2\ns_branch L_VW")
            a.label("L_VOK")
            if diag: a("s_memrealtime s[74:75]\ns_waitcnt lgkmcnt(0)\ns_mov_b32 s100, s74\ns_mov_b32 s101, s74")
            a.vmq = []
        b = Asm(); b.uid = a.uid + 1000
        P1 = dict(P, order=P["vp"], vpre=vwait)
        C.prologue_a(b, P1, True); C.prologue_b(b, P1, first_chunk, peek)
        alt = b.text().replace("CH_SUBE", "CH_SUBE_X")
        a(f"s_bitcmp1_b32 {sum(1 << h for h in SLOWH):#x}, s{C.sH}\ns_cbranch_scc0 L_ORD0")
        a(alt); a("s_branch L_ORD1")
        a.label("L_ORD0")
        a.uid = b.uid + 1
    C.prologue_a(a, P, True)
    C.prologue_b(a, P, first_chunk, peek)
    a.label("L_ORD1")
    a(f"s_waitcnt vmcnt(0)\nv_readfirstlane_b32 s{sMode}, v26\nv_readfirstlane_b32 s3, v27")
    set_ready(a, 25)
    a(f"s_cmp_ge_u32 s3, {2 * NINIT}\ns_cselect_b32 s{sInit}, 1, s{sInit}\ns_cselect_b32 s{sReady}, s{sReady}, 0")
    wait_init(a, 10)
    if P.get("hold"):
        a(f"s_cmp_lg_u32 s{Wk.sW}, 0\ns_cbranch_scc1 L_STG\ns_add_u32 s3, s{sChf}, 64")
        Wk.flag_store(a, "s3", 1, 10)
        a.label("L_STG")
    a(f"s_cmp_lg_u32 s{sMode}, 0\ns_cbranch_scc1 L_MODEOK\nv_mov_b32 v10, {D_MODE}")
    Wk.poll_ge(a, f"buffer_load_dword v11, v10, {DB}, 0 offen sc1", [11], 1, "MODE")
    a(f"v_readfirstlane_b32 s{sMode}, v11\ns_nop 3")
    a.label("L_MODEOK")
    if P.get("marks"):
        a(f"s_cmp_lg_u32 s{Wk.sW}, 1\ns_cbranch_scc1 L_MK1")
        mark(a, 5); mark(a, 6, True)
        a.label("L_MK1")
    if diag:
        for k in range(20, 30): a(f"s_mov_b32 s{C.sTS+k}, 0")
        a("s_memrealtime s[92:93]\ns_memtime s[96:97]")
    stubs = []
    sPend = 29
    def ready(a, w, tag, first):
        if not first and w != 2: return
        L = a.newlabel("RDY")
        if first: a(f"s_mov_b32 s{C.sStep}, 0\ns_mov_b32 s{sPend}, 0")
        else:
            a(f"s_cmp_eq_u32 s{sPend}, 0\ns_cbranch_scc1 {L}_P\ns_mov_b32 s{sPend}, 0\ns_waitcnt vmcnt(4)")
            set_ready(a, C.vMpub)
            a.label(L + "_P")
        a(f"s_add_u32 s{C.sT0}, s{C.sStep}, 1\ns_min_u32 s{C.sT0}, s{C.sT0}, 63\ns_cmp_ge_u32 s{C.sT0}, s{sReady}\ns_cbranch_scc1 {L}_S")
        a.label(L)
        stubs.append((L, first))
    def look(a):
        L = a.newlabel("LOOK")
        a(f"s_add_u32 s{C.sT0}, s{C.sStep}, 6\ns_min_u32 s{C.sT0}, s{C.sT0}, 63\ns_cmp_lt_u32 s{C.sT0}, s{sReady}\ns_cbranch_scc1 {L}")
        a(f"v_lshrrev_b32 v10, 3, v{C.vL8}")
        g1addr(a, "v10")
        a(f"buffer_load_dword v{C.vMpub}, v10, {WS}, s{sG1} offen sc1\ns_mov_b32 s{sPend}, 1")
        a.label(L)
    def flag(a):
        if P.get("noflag"): return
        if P.get("marks"):
            L = a.newlabel("MK")
            a(f"s_and_b32 s{C.sT0}, s{C.sStep}, 15\ns_cmp_lg_u32 s{C.sT0}, 1\ns_cbranch_scc1 {L}\ns_cmp_lg_u32 s{C.sH}, 5\ns_cbranch_scc1 {L}")
            a(f"s_memrealtime s[98:99]\ns_lshr_b32 s{C.sT0}, s{C.sStep}, 4\ns_lshl_b32 s{C.sT0}, s{C.sT0}, 2\ns_add_u32 s{C.sT0}, s{C.sT0}, 40\ns_waitcnt lgkmcnt(0)")
            a(f"s_mov_b64 exec, 1\nv_mov_b32 v10, s98\nv_mov_b32 v11, s{C.sT0}\nbuffer_store_dword v10, v11, {DB}, 0 offen\ns_mov_b64 exec, -1")
            a.label(L)
        FL = a.newlabel("FLAG")
        FE = P.get("fevery", 4)
        a(f"s_and_b32 s{C.sT0}, s{C.sStep}, {FE-1}\ns_cmp_ge_u32 s{C.sStep}, {P.get('fall', 56)}\ns_cselect_b32 s{C.sT0}, {1 % FE}, s{C.sT0}\ns_cmp_lg_u32 s{C.sT0}, {1 % FE}\ns_cbranch_scc1 {FL}")
        a(f"s_sub_u32 s{C.sT0}, s{C.sStep}, 1\ns_max_i32 s{C.sT0}, s{C.sT0}, 0")
        if P.get("early", 1): a(f"s_cmp_gt_u32 s{C.sStep}, {EFROM}\ns_cselect_b32 s{C.sT0}, s{C.sStep}, s{C.sT0}")
        Wk.flag_store(a, f"s{sChf}", f"s{C.sT0}", 10); a.vmq.pop()
        a.label(FL)
    def done(a, w):
        a("s_barrier" if P.get("early", 1) else "s_waitcnt vmcnt(0)\ns_barrier")
        if w == 0: Wk.flag_store(a, f"s{sChf}", 64, 10)
        if w == 1: mark(a, 7)
        a.vmq = []
        a("s_branch L_FIN")
        for L, first in stubs:
            a.label(L + "_S")
            a(f"s_add_u32 s{C.sT0}, s{C.sStep}, 1\ns_min_u32 s{C.sT0}, s{C.sT0}, 63\ns_lshr_b32 s{C.sT0}, s{C.sT0}, 2\ns_add_u32 s{C.sT0}, s{C.sT0}, 1")
            a(f"v_lshrrev_b32 v10, 3, v{C.vL8}")
            g1addr(a, "v10")
            Wk.poll_ge(a, f"buffer_load_dword v11, v10, {WS}, s{sG1} offen sc1", [11], f"s{C.sT0}", "KV", sleep=0)
            set_ready(a, 11)
            a(f"s_branch {L}")
        stubs.clear()
    P = dict(P, hooks=dict(ready=ready, flag=flag, done=done, look=look))
    a(f"s_cmp_eq_u32 s{sMode}, 1\ns_cbranch_scc0 L_SLOW")
    for st in ("", "sc1"):
        if st: a.label("L_SLOW")
        t = "s" if st else "f"
        for w in range(1, 4): a(f"s_cmp_eq_u32 s{C.sW}, {w}\ns_cbranch_scc1 CH_W{w}{t}")
        for w in range(4):
            a.label(f"CH_W{w}{t}")
            C.loop(a, w, st, P, diag and not P.get('agg'))
    a.label("L_FIN")
    if diag:
        a("s_waitcnt vmcnt(0)\ns_memrealtime s[94:95]\ns_memtime s[98:99]\ns_waitcnt lgkmcnt(0)")
        a(f"s_lshl_b32 s3, s2, 2\ns_add_u32 s3, s3, s{Wk.sW}\ns_lshl_b32 s3, s3, 7\ns_add_u32 s3, s3, {DBG}")
        vals = [C.sTS + 20 + k for k in range(10)] + [90, 92, 94, 96, 98, sR, sXcc, Wk.sDead, 100, 101, 72, 74, 76, 78]
        for i, sg in enumerate(vals):
            a(f"v_mov_b32 v20, s{sg}\nv_mov_b32 v21, {4*i}\nbuffer_store_dword v20, v21, {WS}, s3 offen")
    a("s_waitcnt vmcnt(0)")
    a.label("L_END")
    return a.text()

def wrap(body):
    ref = open(f"cdna_kernels/{NAME}.s.ref").read().split("\n")
    head = [l for l in ref if l.startswith(";") and "@launch" not in l]
    return "\n".join(head) + f"""
; One persistent launch, one workgroup per CU, roles claimed through d_debug:
;   32 workgroups on one die run the 64-step memory recurrence (one head each, weights resident in registers / LDS,
;   all-reduce through that die's L2; a device-scope variant is used when they do not share a die);
;   the others do layernorm, the K/V/Q/FFN1 GEMMs, attention of the x rows and the output GEMM behind it.
; Generated by my own script (gen/main.py).
; @launch grid=(256,1,1) block=(256,1,1) lds=163840
.amdgcn_target "amdgcn-amd-amdhsa--gfx950"
.text
.globl {NAME}_kernel
.p2align 8
.type {NAME}_kernel,@function
{NAME}_kernel:
{body}s_endpgm
.section .rodata,"a"
.p2align 6
.amdhsa_kernel {NAME}_kernel
  .amdhsa_next_free_vgpr 512
  .amdhsa_next_free_sgpr 102
  .amdhsa_accum_offset 256
  .amdhsa_group_segment_fixed_size 0
  .amdhsa_kernarg_size 120
  .amdhsa_user_sgpr_count 2
  .amdhsa_user_sgpr_kernarg_segment_ptr 1
  .amdhsa_system_sgpr_workgroup_id_x 1
.end_amdhsa_kernel
"""
if __name__ == "__main__":
    import ast
    P = dict(CH)
    if len(sys.argv) > 2: P.update(ast.literal_eval(sys.argv[2]))
    t = gen(P)
    hz = check(t)
    for h in hz[:12]: print(h)
    out = sys.argv[1] if len(sys.argv) > 1 else f"cdna_kernels/{NAME}.s"
    open(out, "w").write(wrap(t))
    print("lines", len(t.split("\n")), "hazards", len(hz))
```
